```python
import torch

def _softmax(x, axis=-1):
    return torch.softmax(x, dim=axis)
def _gelu(x):
    return torch.nn.functional.gelu(x, approximate="tanh")
def _silu(x):
    return torch.nn.functional.silu(x)
def _sigmoid(x):
    return torch.sigmoid(x)
def _layernorm(x, axis=-1, eps=1e-5):
    m = x.mean(dim=axis, keepdim=True)
    v = x.var(dim=axis, keepdim=True, unbiased=False)
    return (x - m) / torch.sqrt(v + eps)
def _scatter_add(tgt, idx, src, axis=0):
    return tgt.clone().index_add_(axis, idx, src)
def _segment_sum(src, seg, n):
    out = torch.zeros((n,) + src.shape[1:], dtype=src.dtype)
    return out.index_add_(0, seg, src)
def _pad(x, pw):
    flat = tuple(v for pair in reversed(pw) for v in pair)
    return torch.nn.functional.pad(x, flat)

kernel_name = 'sequential_preLN__mha_block__mixer_channel_mlp__prompt'

def setup_inputs():

    _w = (lambda a: (lambda t: t.to(torch.bfloat16) if t.is_floating_point() else t)(torch.as_tensor(a)))
    def _A_setup():
        B, S, D, H = 1, 2048, 512, 32
        return {
            "x": _w((lambda *s: torch.randn(*s, dtype=torch.bfloat16) * 0.05)(B, S, D)),
            "wqkv": _w((lambda *s: torch.randn(*s, dtype=torch.bfloat16) * 0.05)(D, 3 * D)),
            "wo": _w((lambda *s: torch.randn(*s, dtype=torch.bfloat16) * 0.05)(D, D)),
        }
    _A_in = _A_setup()

    def _B_setup():
        B, S, D, F = 1, 2048, 512, 1792
        return {
            "x": _w((lambda *s: torch.randn(*s, dtype=torch.bfloat16) * 0.05)(B, S, D)),
            "w1": _w((lambda *s: torch.randn(*s, dtype=torch.bfloat16) * 3.2)(D, F) * (D ** -0.5)),
            "b1": _w((lambda *s: torch.randn(*s, dtype=torch.bfloat16) * 1.6)(F)),
            "w2": _w((lambda *s: torch.randn(*s, dtype=torch.bfloat16) * 0.05)(F, D) * (F ** -0.5)),
            "b2": _w((lambda *s: torch.randn(*s, dtype=torch.bfloat16) * 0.1)(D)),
        }
    _B_in = _B_setup()

    return {
        "A_x": _A_in["x"],
        "A_wqkv": _A_in["wqkv"],
        "A_wo": _A_in["wo"],
        "B_x": _B_in["x"],
        "B_w1": _B_in["w1"],
        "B_b1": _B_in["b1"],
        "B_w2": _B_in["w2"],
        "B_b2": _B_in["b2"],
    }

def reference(A_x, A_wqkv, A_wo, B_x, B_w1, B_b1, B_w2, B_b2):
    def _A_ref(x, wqkv, wo):
        B, S, D = x.shape
        H = 32
        Dh = D // H
        qkv = (lambda x, *d: x.permute(*d))((x @ wqkv).reshape(B, S, 3, H, Dh), 2, 0, 3, 1, 4)
        q, k, v = qkv[0], qkv[1], qkv[2]
        scores = torch.einsum("bhqd,bhkd->bhqk", q, k) * (Dh ** -0.5)
        p = _softmax(scores, axis=-1)
        o = torch.einsum("bhqk,bhkd->bhqd", p, v)
        return (lambda x, *d: x.permute(*d))(o, 0, 2, 1, 3).reshape(B, S, D) @ wo

    def _B_ref(x, w1, b1, w2, b2):
        y = _layernorm(x, axis=-1)
        h = _gelu(torch.einsum("bsd,df->bsf", y, w1) + b1)
        return torch.einsum("bsf,fd->bsd", h, w2) + b2

    x = A_x
    h = x + _A_ref(_layernorm(x, axis=-1), A_wqkv, A_wo)
    h2 = h + _B_ref(_layernorm(h, axis=-1), B_w1, B_b1, B_w2, B_b2)
    return h2
```

```python
import re

def _regs(tok):
    tok = tok.strip()
    neg = tok.startswith('-')
    if neg: tok = tok[1:]
    m = re.match(r'^abs\((.*)\)$', tok)
    if m: tok = m.group(1)
    m = re.match(r'^\|(.*)\|$', tok)
    if m: tok = m.group(1)
    m = re.match(r'^([vas])(\d+)$', tok)
    if m: return [(m.group(1), int(m.group(2)))]
    m = re.match(r'^([vas])\[(\d+):(\d+)\]$', tok)
    if m: return [(m.group(1), i) for i in range(int(m.group(2)), int(m.group(3)) + 1)]
    if tok == 'vcc': return [('s', 106), ('s', 107)]
    if tok == 'vcc_lo': return [('s', 106)]
    if tok == 'vcc_hi': return [('s', 107)]
    if tok == 'exec': return [('s', 126), ('s', 127)]
    if tok == 'exec_lo': return [('s', 126)]
    if tok == 'exec_hi': return [('s', 127)]
    if tok == 'm0': return [('s', 124)]
    return []

TRANS = ('v_exp_f32', 'v_log_f32', 'v_rcp_f32', 'v_rsq_f32', 'v_sqrt_f32', 'v_sin_f32', 'v_cos_f32', 'v_exp_f16', 'v_rcp_f16', 'v_rcp_iflag_f32')
RMW = ('v_fmac_f32', 'v_dot2c_f32_bf16', 'v_fmac_f32_e32', 'v_pk_fmac_f16', 'v_writelane_b32', 'v_mac_f32')

class Ins:
    __slots__ = ('text', 'op', 'wr', 'rd', 'cls', 'passes', 'srcC', 'srcAB', 'label', 'is_branch', 'target', 'store_data', 'dpp')
    def __init__(self, text):
        self.text = text
        self.label = None; self.is_branch = False; self.target = None
        self.wr = []; self.rd = []; self.cls = 'other'; self.passes = 0; self.srcC = []; self.srcAB = []; self.store_data = []; self.dpp = False
        t = text.split(';')[0].strip()
        if t.endswith(':'):
            self.label = t[:-1]; self.op = ''; self.cls = 'label'; return
        parts = t.split(None, 1)
        self.op = op = parts[0]
        rest = parts[1] if len(parts) > 1 else ''
        ops = []; cur = ''; depth = 0
        for ch in rest:
            if ch in '[(': depth += 1
            if ch in '])': depth -= 1
            if ch == ',' and depth == 0: ops.append(cur.strip()); cur = ''
            else: cur += ch
        if cur.strip(): ops.append(cur.strip())
        mods = ''
        if ops:
            sp = ops[-1].split()
            ops[-1] = sp[0]; mods = ' '.join(sp[1:])
        self.dpp = ('row_' in mods) or ('quad_perm' in mods) or ('wave_' in mods) or ('row_' in rest)
        R = [_regs(o) for o in ops]
        flat = lambda L: [x for l in L for x in l]
        base = op.replace('_e32', '').replace('_e64', '').replace('_dpp', '').replace('_sdwa', '')
        if op.startswith('v_mfma') or op.startswith('v_smfmac'):
            self.cls = 'mfma'
            self.wr = R[0]; self.srcAB = R[1] + R[2]; self.srcC = R[3] if len(R) > 3 else []
            self.rd = self.srcAB + self.srcC
            if '32x32x16' in op or '32x32x8' in op: self.passes = 8
            elif '16x16x32' in op or '16x16x16' in op: self.passes = 4
            else: raise ValueError('mfma passes? ' + op)
        elif op.startswith('v_cmp'):
            self.cls = 'valu'; self.wr = R[0]; self.rd = flat(R[1:]) + [('s', 126), ('s', 127)]
            if op.startswith('v_cmpx'): self.wr = self.wr + [('s', 126), ('s', 127)]
        elif op.startswith('v_readfirstlane') or op.startswith('v_readlane'):
            self.cls = 'valu_rl'; self.wr = R[0]; self.rd = flat(R[1:])
        elif op.startswith('v_permlane'):
            self.cls = 'permlane'; self.wr = R[0] + R[1]; self.rd = R[0] + R[1]
        elif op.startswith('v_'):
            self.cls = 'trans' if base in TRANS else 'valu'
            self.wr = list(R[0]); self.rd = flat(R[1:])
            if base in ('v_add_co_u32', 'v_sub_co_u32', 'v_addc_co_u32', 'v_subb_co_u32', 'v_div_scale_f32', 'v_mad_u64_u32'):
                self.wr += R[1]; self.rd = flat(R[2:])
            if base in RMW: self.rd = self.rd + R[0]
            if base == 'v_cndmask_b32' and len(R) == 3: self.rd += [('s', 106), ('s', 107)]
        elif op.startswith('buffer_') or op.startswith('global_') or op.startswith('flat_'):
            self.cls = 'vmem'
            if 'store' in op or ('atomic' in op):
                if op.startswith('buffer'):
                    self.rd = flat(R); self.store_data = R[0] if len(R[0]) >= 3 else []
                else:
                    if 'atomic' in op and 'sc0' in mods and len(R) == 4:
                        self.wr = R[0]; self.rd = flat(R[1:])
                    else:
                        self.rd = flat(R); self.store_data = R[1] if len(R) > 1 and len(R[1]) >= 3 else []
            elif op in ('buffer_inv', 'buffer_wbl2'):
                pass
            elif 'lds' in mods.split() or '_lds_' in op:
                self.rd = flat(R) + [('s', 124)]; self.cls = 'vmem_lds'
            else:
                self.wr = R[0]; self.rd = flat(R[1:])
        elif op.startswith('ds_'):
            self.cls = 'ds'
            if op.startswith('ds_read') or op.startswith('ds_bpermute') or op.startswith('ds_permute') or op.startswith('ds_swizzle') or '_rtn' in op:
                self.wr = R[0]; self.rd = flat(R[1:])
            else:
                self.rd = flat(R)
        elif op.startswith('s_'):
            self.cls = 'salu'
            if op in ('s_branch',) or op.startswith('s_cbranch'):
                self.is_branch = True; self.target = ops[0]
            elif op.startswith('s_cmp') or op in ('s_waitcnt', 's_barrier', 's_nop', 's_endpgm', 's_sleep', 's_setprio', 's_bitcmp1_b32', 's_bitcmp0_b32'):
                self.rd = flat(R)
            elif op.startswith('s_load') or op.startswith('s_buffer_load') or op.startswith('s_memtime') or op.startswith('s_memrealtime'):
                self.cls = 'smem'; self.wr = R[0]; self.rd = flat(R[1:])
            else:
                self.wr = list(R[0]) if R else []; self.rd = flat(R[1:])
                if 'saveexec' in op: self.wr += [('s', 126), ('s', 127)]; self.rd += [('s', 126), ('s', 127)]
    def states(self):
        if self.cls == 'label': return 0
        if self.op == 's_nop': return int(self.text.split()[1]) + 1
        return 1

def isv(r): return r[0] in ('v', 'a')

def required(prev, cur):
    need = 0
    pw = set(prev.wr); cr = set(cur.rd); cw = set(cur.wr)
    valu_like = ('valu', 'trans', 'valu_rl', 'permlane')
    pv = prev.cls in valu_like
    if pv:
        vw = {r for r in pw if isv(r)}
        sw = {r for r in pw if r[0] == 's'}
        if cur.cls == 'mfma' and (vw & cr): need = max(need, 2)
        if cur.cls == 'mfma' and (('s', 126) in sw): need = max(need, 4)
        if cur.cls == 'permlane' and (vw & cr): need = max(need, 2)
        if cur.cls == 'valu_rl' and (vw & cr): need = max(need, 1)
        if cur.dpp and (vw & cr): need = max(need, 2)
        if cur.dpp and (('s', 126) in sw): need = max(need, 5)
        if prev.cls == 'trans' and cur.cls in valu_like + ('mfma',) and cur.cls != 'trans' and (vw & cr): need = max(need, 1 if cur.cls != 'mfma' else 2)
        if prev.cls == 'trans' and cur.cls in ('vmem', 'ds', 'vmem_lds') and (vw & cr): need = max(need, 1)
        if cur.cls in ('vmem', 'vmem_lds') and (sw & cr): need = max(need, 5)
        if cur.cls in valu_like and (sw & {r for r in cr if r[0] == 's' and r[1] not in (126, 127)}): need = max(need, 4 if cur.cls == 'valu_rl' else 2)
        if cur.cls in valu_like and (sw & {('s', 126), ('s', 127)}) and cur.cls in ('valu_rl', 'permlane'): need = max(need, 4)
        if cur.cls == 'salu' and (sw & cr): need = max(need, 1)
        if cur.cls == 'smem' and (sw & cr): need = max(need, 5)
    if prev.cls == 'salu':
        if ('s', 124) in pw and cur.cls in ('vmem_lds',): need = max(need, 1)
    if prev.cls == 'mfma':
        P = prev.passes
        tab_rw = {2: 5, 4: 8, 8: 12, 16: 20}[P]
        tab_ov = {2: 4, 4: 6, 8: 10, 16: 18}[P]
        war = {2: 1, 4: 3, 8: 7, 16: 15}[P]
        if cur.cls == 'mfma':
            if pw & set(cur.srcAB): need = max(need, tab_rw)
            if pw & set(cur.srcC):
                if list(cur.srcC) == list(prev.wr) and cur.passes == prev.passes: need = max(need, 0 if P >= 4 else 2)
                else: need = max(need, tab_ov)
            if (pw & cw) and not (pw & set(cur.srcC)): need = max(need, tab_ov)
        else:
            if pw & (cr | cw): need = max(need, tab_rw)
            if cur.cls in valu_like and (set(prev.srcC) & cw): need = max(need, war)
    if prev.store_data:
        if set(prev.store_data) & cw: need = max(need, 2)
    return need

class Asm:
    def __init__(self):
        self.ins = []
        self.nlabel = 0
    def __call__(self, text):
        for line in text.split('\n'):
            line = line.strip()
            if line and not line.startswith(';'):
                self.ins.append(Ins(line))
    def label(self, name): self.ins.append(Ins(name + ':'))
    def newlabel(self, p='L'):
        self.nlabel += 1
        return f'{p}_{self.nlabel}'
    def fix_hazards(self, window=24):
        for it in range(10):
            changed = False
            self._bsrc = None
            n = 0
            while n < len(self.ins):
                cur = self.ins[n]
                if cur.cls == 'label' or (not cur.wr and not cur.rd): n += 1; continue
                need = 0
                for hist in self._histories(n, None, window):
                    dist = 0
                    for p in hist:
                        if p.wr or p.store_data or p.srcC:
                            r = required(p, cur)
                            if r > dist: need = max(need, r - dist)
                        dist += p.states()
                        if dist >= window: break
                if need > 0:
                    k = need
                    while k > 0:
                        m = min(k, 16); self.ins.insert(n, Ins(f's_nop {m-1}')); n += 1; k -= m
                    changed = True
                    self._bsrc = None
                n += 1
            if not changed: return
        raise RuntimeError('hazard loop')
    def _branch_sources(self, label):
        if self._bsrc is None:
            self._bsrc = {}
            for bi, b in enumerate(self.ins):
                if b.is_branch: self._bsrc.setdefault(b.target, []).append(bi)
        return self._bsrc.get(label, [])
    def _histories(self, n, labels, window):
        res = []
        def walk(idx, acc, dist, depth):
            i = idx - 1
            while i >= 0 and dist < window:
                p = self.ins[i]
                if p.cls == 'label':
                    if depth < 3:
                        for bi in self._branch_sources(p.label):
                            walk(bi + 1, list(acc), dist, depth + 1)
                    j = i - 1
                    while j >= 0 and self.ins[j].cls == 'label': j -= 1
                    if j >= 0 and self.ins[j].op in ('s_branch', 's_endpgm'):
                        res.append(acc); return
                    i -= 1; continue
                acc.append(p); dist += p.states(); i -= 1
            res.append(acc)
        walk(n, [], 0, 0)
        return res
    def text(self):
        out = []
        for i in self.ins:
            out.append(i.text if i.cls == 'label' else '    ' + i.text)
        return '\n'.join(out) + '\n'

class RegAlloc:
    def __init__(self, kind, start=0, limit=256):
        self.kind = kind; self.next = start; self.limit = limit; self.hi = start
    def alloc(self, n=1, align=None):
        if align is None: align = 1 if n == 1 else (2 if n == 2 else 4)
        b = (self.next + align - 1) // align * align
        self.next = b + n
        self.hi = max(self.hi, self.next)
        assert self.next <= self.limit, f'out of {self.kind} regs'
        return b
    def mark(self): return self.next
    def release(self, m): self.next = m

def v(b, n=1): return f'v{b}' if n == 1 else f'v[{b}:{b+n-1}]'
def a(b, n=1): return f'a{b}' if n == 1 else f'a[{b}:{b+n-1}]'
def s(b, n=1): return f's{b}' if n == 1 else f's[{b}:{b+n-1}]'
```

```python
import sys, struct
from dsl import *

NAME = "sequential_preLN__mha_block__mixer_channel_mlp__prompt"
WS_QF = 0
WS_KF = 2 << 20
WS_VF = 4 << 20
WS_KMAX = 6 << 20
WS_OF = 8 << 20
WS_HF = 10 << 20
WS_MF = 12 << 20
WS_HS = (19 << 20) + (512 << 10)
WS_STAMP = 20 << 20
WS_STAMP2 = 22 << 20
WS_SIZE = 24 << 20
STAMP = False
RT = False
FLAGS = set()
def f2u(x): return struct.unpack('<I', struct.pack('<f', x))[0]
LOG2E = 1.4426950408889634

class Kern:
    def __init__(self, name, grid, block, lds):
        self.name = name; self.grid = grid; self.block = block; self.lds = lds
        self.A = Asm()
        self.V = RegAlloc('v', 1, 256)
        self.S = RegAlloc('s', 3, 100)
        self.accum = None
        self.stamps = []
        self.dostamp = STAMP
    def stamp(self):
        if not self.dostamp: return
        r = self.S.alloc(2)
        self.stamps.append(r)
        self.A(f"s_memtime {s(r,2)}")
    def rt_begin(self):
        if not RT: return
        self.rt0 = self.S.alloc(2)
        self.A(f"s_memrealtime {s(self.rt0,2)}")
        self.mt0 = self.S.alloc(2)
        self.A(f"s_memtime {s(self.mt0,2)}")
    def rt_end(self, sSrd, kidx, vt0, vt1):
        if not RT: return
        A = self.A
        r1 = self.S.alloc(2); m1 = self.S.alloc(2); t = self.S.alloc(); w = self.S.alloc()
        A("s_waitcnt vmcnt(0)")
        A(f"s_memrealtime {s(r1,2)}")
        A(f"s_memtime {s(m1,2)}")
        A("s_mov_b64 exec, -1")
        A(f"v_lshrrev_b32 {v(vt0)}, 6, v0")
        A("s_nop 1")
        A(f"v_readfirstlane_b32 {s(w)}, {v(vt0)}")
        A(f"s_lshl_b32 {s(t)}, s2, 4")
        A(f"s_add_u32 {s(t)}, {s(t)}, {s(w)}")
        A(f"s_lshl_b32 {s(t)}, {s(t)}, 4")
        A(f"s_add_u32 {s(t)}, {s(t)}, {WS_STAMP + 0x40000 + kidx*0x10000}")
        A("s_waitcnt lgkmcnt(0)")
        A(f"s_sub_u32 {s(m1)}, {s(m1)}, {s(self.mt0)}")
        A("s_mov_b64 exec, 1")
        A(f"v_mov_b32 {v(vt1)}, 0")
        for i, r in enumerate((self.rt0, r1, m1)):
            A(f"v_mov_b32 {v(vt0)}, {s(r)}")
            A(f"buffer_store_dword {v(vt0)}, {v(vt1)}, {s(sSrd,4)}, {s(t)} offen offset:{4*i}")
    def stamp_out(self, sSrd, kidx, vt0, vt1):
        if not self.dostamp: return
        A = self.A
        self.stamp()
        t = self.S.alloc(); w = self.S.alloc()
        A("s_mov_b64 exec, -1")
        A(f"v_lshrrev_b32 {v(vt0)}, 6, v0")
        A("s_nop 1")
        A(f"v_readfirstlane_b32 {s(w)}, {v(vt0)}")
        A(f"s_lshl_b32 {s(t)}, s2, 4")
        A(f"s_add_u32 {s(t)}, {s(t)}, {s(w)}")
        A(f"s_lshl_b32 {s(t)}, {s(t)}, 6")
        A(f"s_add_u32 {s(t)}, {s(t)}, {WS_STAMP2 + kidx*0x40000}")
        A("s_waitcnt lgkmcnt(0)")
        A("s_mov_b64 exec, 1")
        A(f"v_mov_b32 {v(vt1)}, 0")
        for i, r in enumerate(self.stamps):
            A(f"v_mov_b32 {v(vt0)}, {s(r)}")
            A(f"buffer_store_dword {v(vt0)}, {v(vt1)}, {s(sSrd,4)}, {s(t)} offen offset:{4*i}")
    def finish(self, agprs=0):
        self.A.fix_hazards()
        nv = self.V.hi
        acc = (nv + 3) // 4 * 4
        tot = acc + agprs if agprs else nv
        assert acc <= 256 or agprs == 0 or True
        txt = f".globl {self.name}\n.p2align 8\n.type {self.name},@function\n{self.name}:\n" + self.A.text()
        kd = f""".amdhsa_kernel {self.name}
  .amdhsa_next_free_vgpr {tot}
  .amdhsa_next_free_sgpr {max(self.S.hi, 16)}
  .amdhsa_accum_offset {min(acc, 256)}
  .amdhsa_group_segment_fixed_size 0
  .amdhsa_kernarg_size 88
  .amdhsa_user_sgpr_count 2
  .amdhsa_user_sgpr_kernarg_segment_ptr 1
  .amdhsa_system_sgpr_workgroup_id_x 1
.end_amdhsa_kernel
"""
        return txt, kd

def srd(A, sd, sptr, nbytes):
    A(f"s_mov_b32 {s(sd)}, {s(sptr)}")
    A(f"s_and_b32 {s(sd+1)}, {s(sptr+1)}, 0xffff")
    A(f"s_mov_b32 {s(sd+2)}, {nbytes}")
    A(f"s_mov_b32 {s(sd+3)}, 0x20000")

def swap_add(A, x, t, op="v_add_f32"):
    A(f"v_mov_b32 {v(t)}, {v(x)}")
    A(f"v_permlane32_swap_b32 {v(x)}, {v(t)}")
    A(f"{op} {v(x)}, {v(x)}, {v(t)}")

def tr_base(A, vdst, vLane, vHf, t0, t1, hfmul_rows, add=0):
    A(f"v_and_b32 {v(t0)}, 15, {v(vLane)}")
    A(f"v_lshrrev_b32 {v(t1)}, 2, {v(t0)}")
    sh = {8: 3, 4: 2}[hfmul_rows]
    A(f"v_lshl_add_u32 {v(t1)}, {v(vHf)}, {sh}, {v(t1)}")
    A(f"v_lshlrev_b32 {v(t1)}, 6, {v(t1)}")
    A(f"v_and_b32 {v(t0)}, 3, {v(t0)}")
    A(f"v_lshl_add_u32 {v(t1)}, {v(t0)}, 3, {v(t1)}")
    A(f"v_bfe_u32 {v(t0)}, {v(vLane)}, 4, 1")
    A(f"v_lshl_add_u32 {v(vdst)}, {v(t0)}, 5, {v(t1)}")
    if add: A(f"v_add_u32 {v(vdst)}, {add}, {v(vdst)}")

def k1():
    XR = 0; WR = 32768; CS = WR + 4 * 24576; ST = CS + 1536
    K = Kern("k1_qkv_kernel", (256, 1, 1), (768, 1, 1), ST + 2048)
    A, V, S = K.A, K.V, K.S
    END = "K1_END"
    sP = S.alloc(4); sWs = S.alloc(2)
    A(f"s_load_dwordx4 {s(sP,4)}, s[0:1], 0")
    A(f"s_load_dwordx2 {s(sWs,2)}, s[0:1], 80")
    A(f"s_cmp_ge_u32 s2, 256")
    A(f"s_cbranch_scc1 {END}")
    K.rt_begin()
    K.stamp()
    sX = S.alloc(4); sWq = S.alloc(4); sO = S.alloc(4)
    sW8, sW, sXcd, sJ, sRt, sHq, sRot, sT0, sT1, sXb, sWb, sLx, sLw, sx, sw, sTt, sCh = [S.alloc() for _ in range(17)]
    vLane, vT0, vT1, vT2, vHf, vTok = [V.alloc() for _ in range(6)]
    A(f"v_lshrrev_b32 {v(vT0)}, 6, v0")
    A(f"v_and_b32 {v(vLane)}, 63, v0")
    A(f"v_readfirstlane_b32 {s(sW8)}, {v(vT0)}")
    A(f"s_and_b32 {s(sXcd)}, s2, 7")
    A(f"s_lshr_b32 {s(sJ)}, s2, 3")
    A(f"s_and_b32 {s(sW)}, {s(sW8)}, 3")
    A(f"s_and_b32 {s(sT0)}, {s(sXcd)}, 3")
    A(f"s_lshl_b32 {s(sT0)}, {s(sT0)}, 3")
    A(f"s_and_b32 {s(sT1)}, {s(sJ)}, 7")
    A(f"s_add_u32 {s(sRt)}, {s(sT0)}, {s(sT1)}")
    A(f"s_lshr_b32 {s(sT0)}, {s(sXcd)}, 2")
    A(f"s_lshl_b32 {s(sT0)}, {s(sT0)}, 2")
    A(f"s_lshr_b32 {s(sHq)}, {s(sJ)}, 3")
    A(f"s_lshl_b32 {s(sRot)}, {s(sHq)}, 1")
    A(f"s_add_u32 {s(sRot)}, {s(sRot)}, {s(sT1)}")
    A(f"s_add_u32 {s(sRot)}, {s(sRot)}, {s(sXcd)}")
    A(f"s_add_u32 {s(sHq)}, {s(sHq)}, {s(sT0)}")
    A(f"s_and_b32 {s(sTt)}, {s(sW)}, 1")
    A(f"s_lshr_b32 {s(sCh)}, {s(sW)}, 1")
    A(f"s_cmp_lt_u32 {s(sW8)}, 4")
    A(f"s_cbranch_scc1 K1_COMPUTE")
    A(f"s_cmp_ge_u32 {s(sW8)}, 8")
    A(f"s_cbranch_scc1 K1_STATS")
    m0_ = V.mark()
    vXoff, vWoff = V.alloc(), V.alloc()
    A(f"s_lshl_b32 {s(sXb)}, {s(sRt)}, 16")
    A(f"s_lshl_b32 {s(sT0)}, {s(sW)}, 13")
    A(f"s_add_u32 {s(sXb)}, {s(sXb)}, {s(sT0)}")
    A(f"s_mul_i32 {s(sWb)}, {s(sW)}, {8*3072}")
    A(f"s_lshl_b32 {s(sT0)}, {s(sHq)}, 7")
    A(f"s_add_u32 {s(sWb)}, {s(sWb)}, {s(sT0)}")
    A(f"s_lshl_b32 {s(sLx)}, {s(sW)}, 10")
    A(f"s_add_u32 {s(sLw)}, {s(sLx)}, {WR}")
    A(f"s_lshl_b32 {s(sT0)}, {s(sTt)}, 2")
    A(f"v_lshrrev_b32 {v(vT0)}, 4, {v(vLane)}")
    A(f"v_or_b32 {v(vT0)}, {s(sT0)}, {v(vT0)}")
    A(f"v_and_b32 {v(vT1)}, 7, {v(vLane)}")
    A(f"v_xor_b32 {v(vT0)}, {v(vT0)}, {v(vT1)}")
    A(f"v_lshlrev_b32 {v(vT0)}, 4, {v(vT0)}")
    A(f"v_lshrrev_b32 {v(vT1)}, 3, {v(vLane)}")
    A(f"v_lshlrev_b32 {v(vT1)}, 10, {v(vT1)}")
    A(f"v_add_u32 {v(vXoff)}, {v(vT0)}, {v(vT1)}")
    A(f"v_bfe_u32 {v(vT0)}, {v(vLane)}, 2, 3")
    A(f"v_mul_u32_u24 {v(vT0)}, 3072, {v(vT0)}")
    A(f"v_and_b32 {v(vT1)}, 3, {v(vLane)}")
    A(f"v_lshl_add_u32 {v(vT0)}, {v(vT1)}, 4, {v(vT0)}")
    A(f"v_lshrrev_b32 {v(vT1)}, 5, {v(vLane)}")
    A(f"v_lshl_add_u32 {v(vWoff)}, {v(vT1)}, 6, {v(vT0)}")
    A("s_waitcnt lgkmcnt(0)")
    srd(A, sX, sP, 2048 * 512 * 2)
    srd(A, sWq, sP + 2, 512 * 1536 * 2)
    def dma_stage(st):
        slot = st & 3
        A(f"s_add_u32 {s(sT0)}, {s(sRot)}, {st}")
        A(f"s_and_b32 {s(sT0)}, {s(sT0)}, 7")
        A(f"s_lshl_b32 {s(sx)}, {s(sT0)}, 7")
        A(f"s_add_u32 {s(sx)}, {s(sx)}, {s(sXb)}")
        A(f"s_mul_i32 {s(sw)}, {s(sT0)}, {64*3072}")
        A(f"s_add_u32 {s(sw)}, {s(sw)}, {s(sWb)}")
        for n in range(2):
            A(f"s_add_u32 m0, {s(sLx)}, {XR + slot*8192 + n*4096}")
            A(f"s_add_u32 {s(sT1)}, {s(sx)}, {n*32768}")
            A(f"buffer_load_dwordx4 {v(vXoff)}, {s(sX,4)}, {s(sT1)} offen lds")
        for b in range(3):
            for n in range(2):
                A(f"s_add_u32 m0, {s(sLw)}, {slot*24576 + b*8192 + n*4096}")
                A(f"s_add_u32 {s(sT1)}, {s(sw)}, {b*1024 + n*32*3072}")
                A(f"buffer_load_dwordx4 {v(vWoff)}, {s(sWq,4)}, {s(sT1)} offen lds")
    dma_stage(0); dma_stage(1)
    A("s_waitcnt vmcnt(8)")
    A("s_barrier")
    dma_stage(2); dma_stage(3)
    for sp in range(1, 8):
        vm = {1: 16, 2: 16, 3: 16, 4: 16, 5: 16, 6: 8, 7: 0}[sp]
        A(f"s_waitcnt vmcnt({vm})")
        A("s_barrier")
        if sp + 3 < 8: dma_stage(sp + 3)
    A("s_endpgm")
    V.release(m0_)
    def x_addrs(vXA):
        A(f"v_lshrrev_b32 {v(vHf)}, 5, {v(vLane)}")
        A(f"v_and_b32 {v(vTok)}, 31, {v(vLane)}")
        A(f"v_lshrrev_b32 {v(vT2)}, 1, {v(vTok)}")
        A(f"v_and_b32 {v(vT2)}, 7, {v(vT2)}")
        A(f"s_lshl_b32 {s(sT1)}, {s(sTt)}, 12")
        for i in range(4):
            A(f"v_add_u32 {v(vT0)}, {2*i}, {v(vHf)}")
            A(f"v_xor_b32 {v(vT0)}, {v(vT0)}, {v(vT2)}")
            A(f"v_lshlrev_b32 {v(vT0)}, 4, {v(vT0)}")
            A(f"v_lshl_add_u32 {v(vT0)}, {v(vTok)}, 7, {v(vT0)}")
            A(f"v_add_u32 {v(vXA[i])}, {s(sT1)}, {v(vT0)}")
    def w_addr(vWA):
        A(f"v_and_b32 {v(vT0)}, 15, {v(vLane)}")
        A(f"v_lshrrev_b32 {v(vT1)}, 2, {v(vT0)}")
        A(f"v_lshlrev_b32 {v(vT1)}, 6, {v(vT1)}")
        A(f"v_lshl_add_u32 {v(vT1)}, {v(vHf)}, 10, {v(vT1)}")
        A(f"v_and_b32 {v(vT0)}, 3, {v(vT0)}")
        A(f"v_lshl_add_u32 {v(vT1)}, {v(vT0)}, 3, {v(vT1)}")
        A(f"v_bfe_u32 {v(vT0)}, {v(vLane)}, 4, 1")
        A(f"v_lshl_add_u32 {v(vT1)}, {v(vT0)}, 5, {v(vT1)}")
        A(f"v_add_u32 {v(vWA)}, {WR}, {v(vT1)}")
    A.label("K1_STATS")
    vXA = [V.alloc() for _ in range(2)]
    Xf = [V.alloc(4) for _ in range(2)]
    un = V.alloc(8); sq = V.alloc(8); sm = V.alloc(8); vMask = V.alloc()
    A(f"v_lshrrev_b32 {v(vHf)}, 5, {v(vLane)}")
    A(f"v_and_b32 {v(vTok)}, 31, {v(vLane)}")
    A(f"v_lshrrev_b32 {v(vT2)}, 1, {v(vTok)}")
    A(f"v_and_b32 {v(vT2)}, 7, {v(vT2)}")
    A(f"s_lshl_b32 {s(sT1)}, {s(sTt)}, 12")
    for jx in range(2):
        A(f"s_lshl_b32 {s(sT0)}, {s(sCh)}, 1")
        A(f"s_add_u32 {s(sT0)}, {s(sT0)}, {4*jx}")
        A(f"v_add_u32 {v(vT0)}, {s(sT0)}, {v(vHf)}")
        A(f"v_xor_b32 {v(vT0)}, {v(vT0)}, {v(vT2)}")
        A(f"v_lshlrev_b32 {v(vT0)}, 4, {v(vT0)}")
        A(f"v_lshl_add_u32 {v(vT0)}, {v(vTok)}, 7, {v(vT0)}")
        A(f"v_add_u32 {v(vXA[jx])}, {s(sT1)}, {v(vT0)}")
    A(f"v_mov_b32 {v(vMask)}, 0xffff0000")
    for i in range(8):
        A(f"v_mov_b32 {v(sq+i)}, 0"); A(f"v_mov_b32 {v(sm+i)}, 0")
    def sstage(st):
        if "nos" in FLAGS: return
        slot = st & 3
        for jx in range(2):
            A(f"ds_read_b128 {v(Xf[jx],4)}, {v(vXA[jx])} offset:{XR + slot*8192}")
        for jx in range(2):
            A(f"s_waitcnt lgkmcnt({1-jx})")
            for i in range(4):
                A(f"v_lshlrev_b32 {v(un+2*i)}, 16, {v(Xf[jx]+i)}")
                A(f"v_and_b32 {v(un+2*i+1)}, {v(vMask)}, {v(Xf[jx]+i)}")
            for i in range(8):
                A(f"v_fmac_f32 {v(sq+i)}, {v(un+i)}, {v(un+i)}")
                A(f"v_add_f32 {v(sm+i)}, {v(un+i)}, {v(sm+i)}")
    for st in range(8):
        A("s_barrier")
        sstage(st)
    for L in (sq, sm):
        for st in (4, 2, 1):
            for i in range(st): A(f"v_add_f32 {v(L+i)}, {v(L+i)}, {v(L+i+st)}")
    swap_add(A, sm, vT1)
    swap_add(A, sq, vT2)
    A(f"s_lshl_b32 {s(sT0)}, {s(sW)}, 8")
    A(f"s_add_u32 {s(sT0)}, {s(sT0)}, {ST}")
    A(f"v_lshl_add_u32 {v(vT0)}, {v(vTok)}, 2, {s(sT0)}")
    A(f"ds_write_b32 {v(vT0)}, {v(sm)}")
    A(f"ds_write_b32 {v(vT0)}, {v(sq)} offset:128")
    A("s_waitcnt lgkmcnt(0)")
    A("s_barrier")
    A("s_endpgm")
    V.release(m0_)
    A.label("K1_COMPUTE")
    vXA = [V.alloc() for _ in range(4)]; vWA = [V.alloc() for _ in range(4)]
    acc = [V.alloc(16) for _ in range(3)]
    mk = V.mark()
    csa = [V.alloc(4) for _ in range(3)]; msk = V.alloc(4)
    Xf = [V.alloc(4) for _ in range(2)]
    Wf = [[V.alloc(4) for _ in range(3)] for _ in range(2)]
    A(f"v_lshrrev_b32 {v(vHf)}, 5, {v(vLane)}")
    A(f"v_and_b32 {v(vTok)}, 31, {v(vLane)}")
    A(f"v_lshrrev_b32 {v(vT2)}, 1, {v(vTok)}")
    A(f"v_and_b32 {v(vT2)}, 7, {v(vT2)}")
    A(f"s_lshl_b32 {s(sT1)}, {s(sTt)}, 12")
    for pos in range(4):
        A(f"s_xor_b32 {s(sT0)}, {s(sTt)}, {pos}")
        A(f"s_lshl_b32 {s(sT0)}, {s(sT0)}, 1")
        A(f"v_add_u32 {v(vT0)}, {s(sT0)}, {v(vHf)}")
        A(f"v_xor_b32 {v(vT0)}, {v(vT0)}, {v(vT2)}")
        A(f"v_lshlrev_b32 {v(vT0)}, 4, {v(vT0)}")
        A(f"v_lshl_add_u32 {v(vT0)}, {v(vTok)}, 7, {v(vT0)}")
        A(f"v_add_u32 {v(vXA[pos])}, {s(sT1)}, {v(vT0)}")
    w_addr(vWA[0])
    A(f"s_lshl_b32 {s(sw)}, {s(sCh)}, 9")
    A(f"s_lshl_b32 {s(sT0)}, {s(sTt)}, 11")
    A(f"s_sub_u32 {s(sT1)}, {s(sw)}, {s(sT0)}")
    A(f"s_add_u32 {s(sw)}, {s(sw)}, {s(sT0)}")
    A(f"v_add_u32 {v(vWA[1])}, {s(sT1)}, {v(vWA[0])}")
    A(f"v_add_u32 {v(vWA[0])}, {s(sw)}, {v(vWA[0])}")
    A(f"v_add_u32 {v(vWA[2])}, {2*24576}, {v(vWA[0])}")
    A(f"v_add_u32 {v(vWA[3])}, {2*24576}, {v(vWA[1])}")
    A(f"v_and_b32 {v(vT0)}, 15, {v(vLane)}")
    A(f"v_bfe_u32 {v(vT1)}, {v(vLane)}, 4, 1")
    A(f"v_cmp_eq_u32 vcc, {v(vT0)}, {v(vT1)}")
    A(f"v_mov_b32 {v(vT0)}, 0x3f803f80")
    for i in range(4): A(f"v_cndmask_b32 {v(msk+i)}, 0, {v(vT0)}, vcc")
    def reads(n):
        if "noc" in FLAGS or "noread" in FLAGS: return
        slot = (n >> 2) & 3; pos = n & 3; bf = n & 1
        A(f"ds_read_b128 {v(Xf[bf],4)}, {v(vXA[pos])} offset:{XR + slot*8192}")
        wa = vWA[(pos & 1) + (2 if slot >= 2 else 0)]
        for b in range(3):
            o = (slot & 1) * 24576 + b * 8192 + pos * 2048
            A(f"ds_read_b64_tr_b16 {v(Wf[bf][b],2)}, {v(wa)} offset:{o}")
            A(f"ds_read_b64_tr_b16 {v(Wf[bf][b]+2,2)}, {v(wa)} offset:{o+256}")
    def compute(n):
        if "noc" in FLAGS: return
        bf = n & 1
        c = lambda b: "0" if n == 0 else v(acc[b], 16)
        cs_ = (n & 1) == 0
        def mc(b):
            if cs_: A(f"v_mfma_f32_16x16x32_bf16 {v(csa[b],4)}, {v(Wf[bf][b],4)}, {v(msk,4)}, {'0' if n == 0 else v(csa[b],4)}")
        A(f"v_mfma_f32_32x32x16_bf16 {v(acc[0],16)}, {v(Wf[bf][0],4)}, {v(Xf[bf],4)}, {c(0)}")
        mc(0)
        A(f"v_mfma_f32_32x32x16_bf16 {v(acc[1],16)}, {v(Wf[bf][1],4)}, {v(Xf[bf],4)}, {c(1)}")
        mc(1)
        A(f"v_mfma_f32_32x32x16_bf16 {v(acc[2],16)}, {v(Xf[bf],4)}, {v(Wf[bf][2],4)}, {c(2)}")
        mc(2)
    A("s_waitcnt lgkmcnt(0)")
    srd(A, sO, sWs, WS_SIZE)
    sTile, sHp, sQo, sKo, sVo = [S.alloc() for _ in range(5)]
    sSave = S.alloc(2)
    A(f"s_lshl_b32 {s(sTile)}, {s(sRt)}, 1")
    A(f"s_add_u32 {s(sTile)}, {s(sTile)}, {s(sTt)}")
    A(f"s_lshl_b32 {s(sHp)}, {s(sHq)}, 1")
    A(f"s_add_u32 {s(sHp)}, {s(sHp)}, {s(sCh)}")
    A(f"s_lshl_b32 {s(sT0)}, {s(sHp)}, 17")
    A(f"s_lshl_b32 {s(sT1)}, {s(sTile)}, 10")
    A(f"s_add_u32 {s(sQo)}, {s(sT0)}, {s(sT1)}")
    A(f"s_add_u32 {s(sKo)}, {s(sQo)}, {WS_KF}")
    A(f"s_add_u32 {s(sVo)}, {s(sQo)}, {WS_VF}")
    K.stamp()
    A("s_barrier")
    K.stamp()
    reads(0)
    for n in range(32):
        if n + 1 < 32:
            if (n + 1) % 4 == 0:
                sp = (n + 1) // 4
                A(f"s_waitcnt lgkmcnt(0)")
                A("s_barrier")
                if sp in (2, 4, 6): K.stamp()
            reads(n + 1)
            A("s_waitcnt lgkmcnt(7)")
        else:
            A("s_waitcnt lgkmcnt(0)")
        compute(n)
    K.stamp()
    A(f"v_and_b32 {v(vT0)}, 15, {v(vLane)}")
    A(f"v_lshrrev_b32 {v(vT1)}, 4, {v(vLane)}")
    A(f"v_lshlrev_b32 {v(vT1)}, 4, {v(vT1)}")
    A(f"v_lshl_add_u32 {v(vT1)}, {v(vT0)}, 6, {v(vT1)}")
    A(f"s_mul_i32 {s(sx)}, {s(sTt)}, 768")
    A(f"s_lshl_b32 {s(sw)}, {s(sCh)}, 7")
    A(f"s_add_u32 {s(sx)}, {s(sx)}, {s(sw)}")
    A(f"s_add_u32 {s(sx)}, {s(sx)}, {CS}")
    A(f"v_add_u32 {v(vT1)}, {s(sx)}, {v(vT1)}")
    A(f"v_cmp_gt_u32 vcc, 2, {v(vT0)}")
    A(f"s_and_saveexec_b64 {s(sSave,2)}, vcc")
    for b in range(3): A(f"ds_write_b128 {v(vT1)}, {v(csa[b],4)} offset:{b*256}")
    A(f"s_mov_b64 exec, {s(sSave,2)}")
    A("s_waitcnt lgkmcnt(0)")
    A("s_barrier")
    K.stamp()
    V.release(mk)
    csr = V.alloc(16); csr2 = V.alloc(16); st1 = V.alloc(16); st2 = V.alloc(16)
    vCv, vMean, vRstd, vL16, vRq = [V.alloc() for _ in range(5)]
    A(f"s_lshl_b32 {s(sx)}, {s(sTt)}, 8")
    A(f"s_add_u32 {s(sx)}, {s(sx)}, {ST}")
    A(f"v_lshl_add_u32 {v(vT1)}, {v(vTok)}, 2, {s(sx)}")
    p4 = V.alloc(4)
    A(f"ds_read_b32 {v(p4)}, {v(vT1)}")
    A(f"ds_read_b32 {v(p4+1)}, {v(vT1)} offset:512")
    A(f"ds_read_b32 {v(p4+2)}, {v(vT1)} offset:128")
    A(f"ds_read_b32 {v(p4+3)}, {v(vT1)} offset:640")
    A(f"s_lshl_b32 {s(sw)}, {s(sCh)}, 7")
    A(f"s_add_u32 {s(sw)}, {s(sw)}, {CS}")
    A(f"v_lshl_add_u32 {v(vT0)}, {v(vHf)}, 4, {s(sw)}")
    for a_ in range(4):
        A(f"ds_read_b128 {v(csr+4*a_,4)}, {v(vT0)} offset:{a_*32}")
    for a_ in range(4):
        A(f"ds_read_b128 {v(st1+4*a_,4)}, {v(vT0)} offset:{768+a_*32}")
    A("s_waitcnt lgkmcnt(4)")
    for a_ in range(4):
        A(f"ds_read_b128 {v(csr2+4*a_,4)}, {v(vT0)} offset:{256+a_*32}")
    for a_ in range(4):
        A(f"ds_read_b128 {v(st2+4*a_,4)}, {v(vT0)} offset:{768+256+a_*32}")
    A(f"v_lshl_add_u32 {v(vT1)}, {v(vTok)}, 2, {s(sw)}")
    vCv2 = V.alloc()
    A(f"ds_read_b32 {v(vCv)}, {v(vT1)} offset:512")
    A(f"ds_read_b32 {v(vCv2)}, {v(vT1)} offset:{768+512}")
    A("s_waitcnt lgkmcnt(10)")
    for r in range(16): A(f"v_add_f32 {v(csr+r)}, {v(csr+r)}, {v(st1+r)}")
    A("s_waitcnt lgkmcnt(0)")
    for r in range(16): A(f"v_add_f32 {v(csr2+r)}, {v(csr2+r)}, {v(st2+r)}")
    A(f"v_add_f32 {v(vCv)}, {v(vCv)}, {v(vCv2)}")
    A(f"v_lshlrev_b32 {v(vL16)}, 4, {v(vLane)}")
    pk = V.alloc(8); pk2 = V.alloc(8); pk3 = pk
    vMr = p4 + 1
    A(f"v_add_f32 {v(p4)}, {v(p4)}, {v(p4+1)}")
    A(f"v_add_f32 {v(p4+2)}, {v(p4+2)}, {v(p4+3)}")
    A(f"v_mul_f32 {v(vMean)}, {f2u(1/512.):#x}, {v(p4)}")
    A(f"v_mul_f32 {v(vT1)}, {v(vMean)}, {v(vMean)}")
    A(f"v_mov_b32 {v(vT2)}, {f2u(1/512.):#x}")
    A(f"v_fma_f32 {v(vT1)}, {v(p4+2)}, {v(vT2)}, -{v(vT1)}")
    A(f"v_max_f32 {v(vT1)}, 0, {v(vT1)}")
    A(f"v_add_f32 {v(vT1)}, {f2u(1e-5):#x}, {v(vT1)}")
    A(f"v_rsq_f32 {v(vRstd)}, {v(vT1)}")
    A(f"v_mul_f32 {v(vMr)}, {v(vMean)}, {v(vRstd)}")
    A(f"s_lshl_b32 {s(sx)}, {s(sW)}, 8")
    A(f"s_add_u32 {s(sx)}, {s(sx)}, {ST + 1024}")
    A(f"v_lshl_add_u32 {v(vT1)}, {v(vTok)}, 2, {s(sx)}")
    A(f"ds_write_b32 {v(vT1)}, {v(vMr)}")
    A(f"ds_write_b32 {v(vT1)}, {v(vRstd)} offset:128")
    A(f"v_lshl_add_u32 {v(vT0)}, {v(vHf)}, 4, {s(sx)}")
    A(f"v_mul_f32 {v(vRq)}, {f2u(LOG2E*0.25):#x}, {v(vRstd)}")
    A("s_waitcnt lgkmcnt(0)")
    for a_ in range(4):
        A(f"ds_read_b128 {v(st1+4*a_,4)}, {v(vT0)} offset:{a_*32}")
    for a_ in range(4):
        A(f"ds_read_b128 {v(st2+4*a_,4)}, {v(vT0)} offset:{128+a_*32}")
    for r in range(16):
        A(f"v_fma_f32 {v(acc[0]+r)}, -{v(vMean)}, {v(csr+r)}, {v(acc[0]+r)}")
    for r in range(16):
        A(f"v_mul_f32 {v(acc[0]+r)}, {v(vRq)}, {v(acc[0]+r)}")
    for i in range(8):
        A(f"v_cvt_pk_bf16_f32 {v(pk+i)}, {v(acc[0]+2*i)}, {v(acc[0]+2*i+1)}")
    A(f"buffer_store_dwordx4 {v(pk,4)}, {v(vL16)}, {s(sO,4)}, {s(sQo)} offen")
    A(f"s_add_u32 {s(sT0)}, {s(sQo)}, 65536")
    A(f"buffer_store_dwordx4 {v(pk+4,4)}, {v(vL16)}, {s(sO,4)}, {s(sT0)} offen")
    for r in range(16):
        A(f"v_fma_f32 {v(acc[1]+r)}, -{v(vMean)}, {v(csr2+r)}, {v(acc[1]+r)}")
    for r in range(16):
        A(f"v_mul_f32 {v(acc[1]+r)}, {v(vRstd)}, {v(acc[1]+r)}")
    for i in range(8):
        A(f"v_cvt_pk_bf16_f32 {v(pk2+i)}, {v(acc[1]+2*i)}, {v(acc[1]+2*i+1)}")
    A(f"buffer_store_dwordx4 {v(pk2,4)}, {v(vL16)}, {s(sO,4)}, {s(sKo)} offen")
    A(f"s_add_u32 {s(sT0)}, {s(sKo)}, 65536")
    A(f"buffer_store_dwordx4 {v(pk2+4,4)}, {v(vL16)}, {s(sO,4)}, {s(sT0)} offen")
    A("s_waitcnt lgkmcnt(0)")
    for r in range(16):
        A(f"v_mul_f32 {v(st1+r)}, {v(vCv)}, {v(st1+r)}")
    for r in range(16):
        A(f"v_fma_f32 {v(acc[2]+r)}, {v(acc[2]+r)}, {v(st2+r)}, -{v(st1+r)}")
    for i in range(8):
        A(f"v_cvt_pk_bf16_f32 {v(pk3+i)}, {v(acc[2]+2*i)}, {v(acc[2]+2*i+1)}")
    A(f"v_lshrrev_b32 {v(vT0)}, 4, {v(vTok)}")
    A(f"v_lshlrev_b32 {v(vT0)}, 16, {v(vT0)}")
    A(f"v_lshl_add_u32 {v(vT0)}, {v(vHf)}, 8, {v(vT0)}")
    A(f"v_and_b32 {v(vT1)}, 15, {v(vTok)}")
    A(f"v_lshl_add_u32 {v(vT0)}, {v(vT1)}, 4, {v(vT0)}")
    A(f"buffer_store_dwordx4 {v(pk3,4)}, {v(vT0)}, {s(sO,4)}, {s(sVo)} offen")
    A(f"buffer_store_dwordx4 {v(pk3+4,4)}, {v(vT0)}, {s(sO,4)}, {s(sVo)} offen offset:512")
    K.stamp()
    vN = [V.alloc(), V.alloc()]
    for e in range(2):
        for i in range(4):
            A(f"v_lshlrev_b32 {v(csr+2*i)}, 16, {v(pk2+4*e+i)}")
            A(f"v_and_b32 {v(csr+2*i+1)}, 0xffff0000, {v(pk2+4*e+i)}")
        A(f"v_mul_f32 {v(vN[e])}, {v(csr)}, {v(csr)}")
        for i in range(1, 8): A(f"v_fmac_f32 {v(vN[e])}, {v(csr+i)}, {v(csr+i)}")
    swap_add(A, vN[0], vT2)
    swap_add(A, vN[1], vT1)
    for sh in (8, 4, 2, 1):
        for e in range(2):
            A(f"v_max_f32_dpp {v(vN[e])}, {v(vN[e])}, {v(vN[e])} row_ror:{sh} row_mask:0xf bank_mask:0xf")
    sN = [S.alloc() for _ in range(4)]
    for e in range(2):
        A(f"v_readlane_b32 {s(sN[2*e])}, {v(vN[e])}, 0")
        A(f"v_readlane_b32 {s(sN[2*e+1])}, {v(vN[e])}, 16")
    for e in range(2):
        A(f"s_max_u32 {s(sN[2*e])}, {s(sN[2*e])}, {s(sN[2*e+1])}")
    A(f"s_lshl_b32 {s(sT0)}, {s(sHp)}, 9")
    A(f"s_lshl_b32 {s(sT1)}, {s(sTile)}, 2")
    A(f"s_add_u32 {s(sT0)}, {s(sT0)}, {s(sT1)}")
    A(f"s_add_u32 {s(sT0)}, {s(sT0)}, {WS_KMAX}")
    A(f"v_mov_b32 {v(vN[0])}, {s(sN[0])}")
    A(f"v_mov_b32 {v(vN[1])}, {s(sN[2])}")
    A(f"v_mov_b32 {v(vT1)}, 0")
    A("s_mov_b64 exec, 1")
    A(f"buffer_store_dword {v(vN[0])}, {v(vT1)}, {s(sO,4)}, {s(sT0)} offen")
    A(f"buffer_store_dword {v(vN[1])}, {v(vT1)}, {s(sO,4)}, {s(sT0)} offen offset:256")
    K.stamp_out(sO, 0, vT0, vT1)
    K.rt_end(sO, 0, vT0, vT1)
    A.label(END)
    A("s_endpgm")
    print("k1 vgprs", V.hi, "sgprs", S.hi, "lds", K.lds)
    return K

def wave_max64(A, x, sdst, stmp):
    for sh in (8, 4, 2, 1):
        A(f"v_max_f32_dpp {v(x)}, {v(x)}, {v(x)} row_ror:{sh} row_mask:0xf bank_mask:0xf")
    A(f"v_readlane_b32 {s(sdst)}, {v(x)}, 0")
    for ln in (16, 32, 48):
        A(f"v_readlane_b32 {s(stmp)}, {v(x)}, {ln}")
        A(f"s_max_u32 {s(sdst)}, {s(sdst)}, {s(stmp)}")

def k2(nqb=2):
    ks = nqb
    KR = 0; VR = 65536; ON = 131072; EX = ON + 4608
    K = Kern("k2_attn_kernel", (256, 1, 1), (512, 1, 1), EX)
    A, V, S = K.A, K.V, K.S
    END = "K2_END"
    sWs = S.alloc(2)
    A(f"s_load_dwordx2 {s(sWs,2)}, s[0:1], 80")
    A(f"s_cmp_ge_u32 s2, 256")
    A(f"s_cbranch_scc1 {END}")
    K.rt_begin()
    K.stamp()
    sO = S.alloc(4)
    sW, sXcd, sJ, sHead, sQb, sT0, sT1, sWq, sKh, sHb, sIt, sKm = [S.alloc() for _ in range(12)]
    vLane, vT0, vT1, vT2, vHf, vTok, vL16, vK, vV, vVinc = [V.alloc() for _ in range(10)]
    A(f"v_lshrrev_b32 {v(vT0)}, 6, v0")
    A(f"v_and_b32 {v(vLane)}, 63, v0")
    A(f"v_readfirstlane_b32 {s(sW)}, {v(vT0)}")
    A(f"s_and_b32 {s(sXcd)}, s2, 7")
    A(f"s_lshr_b32 {s(sJ)}, s2, 3")
    A(f"s_and_b32 {s(sT0)}, {s(sJ)}, 3")
    A(f"s_lshl_b32 {s(sHead)}, {s(sXcd)}, 2")
    A(f"s_add_u32 {s(sHead)}, {s(sHead)}, {s(sT0)}")
    A(f"s_lshr_b32 {s(sQb)}, {s(sJ)}, 2")
    if ks == 2:
        A(f"s_and_b32 {s(sWq)}, {s(sW)}, 3")
        A(f"s_lshr_b32 {s(sKh)}, {s(sW)}, 2")
    else:
        A(f"s_mov_b32 {s(sWq)}, {s(sW)}")
        A(f"s_mov_b32 {s(sKh)}, 0")
    A(f"s_lshl_b32 {s(sHb)}, {s(sHead)}, 16")
    A(f"v_lshlrev_b32 {v(vL16)}, 4, {v(vLane)}")
    A("s_waitcnt lgkmcnt(0)")
    srd(A, sO, sWs, WS_SIZE)
    Q = [V.alloc(4) for _ in range(nqb)]
    vKm = V.alloc()
    A(f"s_lshl_b32 {s(sT0)}, {s(sQb)}, 3")
    A(f"s_mul_i32 {s(sT1)}, {s(sWq)}, {nqb}")
    A(f"s_add_u32 {s(sT0)}, {s(sT0)}, {s(sT1)}")
    sQt = S.alloc()
    A(f"s_mov_b32 {s(sQt)}, {s(sT0)}")
    A(f"s_lshl_b32 {s(sT0)}, {s(sT0)}, 10")
    A(f"s_add_u32 {s(sT0)}, {s(sT0)}, {s(sHb)}")
    for b in range(nqb):
        A(f"buffer_load_dwordx4 {v(Q[b],4)}, {v(vL16)}, {s(sO,4)}, {s(sT0)} offen offset:{b*1024}")
    A(f"v_lshlrev_b32 {v(vT0)}, 2, {v(vLane)}")
    A(f"s_lshl_b32 {s(sT0)}, {s(sHead)}, 8")
    A(f"s_add_u32 {s(sT0)}, {s(sT0)}, {WS_KMAX}")
    A(f"buffer_load_dword {v(vKm)}, {v(vT0)}, {s(sO,4)}, {s(sT0)} offen")
    sL, sG = S.alloc(), S.alloc()
    for g in range(4):
        if ks == 2:
            A(f"s_lshl_b32 {s(sL)}, {s(sKh)}, 5")
            A(f"s_lshl_b32 {s(sT0)}, {s(sWq)}, 1")
            A(f"s_add_u32 {s(sL)}, {s(sL)}, {s(sT0)}")
            if g: A(f"s_add_u32 {s(sL)}, {s(sL)}, {8*g}")
        else:
            A(f"s_lshl_b32 {s(sL)}, {s(sW)}, 1")
            if g: A(f"s_add_u32 {s(sL)}, {s(sL)}, {16*g}")
        A(f"s_lshl_b32 {s(sT0)}, {s(sQb)}, 3")
        A(f"s_add_u32 {s(sG)}, {s(sL)}, {s(sT0)}")
        A(f"s_and_b32 {s(sG)}, {s(sG)}, 63")
        A(f"s_lshl_b32 {s(sG)}, {s(sG)}, 10")
        A(f"s_add_u32 {s(sG)}, {s(sG)}, {s(sHb)}")
        A(f"s_lshl_b32 {s(sL)}, {s(sL)}, 10")
        A(f"s_add_u32 m0, {s(sL)}, {KR}")
        A(f"s_add_u32 {s(sT0)}, {s(sG)}, {WS_KF}")
        A(f"buffer_load_dwordx4 {v(vL16)}, {s(sO,4)}, {s(sT0)} offen lds")
        A(f"buffer_load_dwordx4 {v(vL16)}, {s(sO,4)}, {s(sT0)} offen offset:1024 lds")
        A(f"s_add_u32 m0, {s(sL)}, {VR}")
        A(f"s_add_u32 {s(sT0)}, {s(sG)}, {WS_VF}")
        A(f"buffer_load_dwordx4 {v(vL16)}, {s(sO,4)}, {s(sT0)} offen lds")
        A(f"buffer_load_dwordx4 {v(vL16)}, {s(sO,4)}, {s(sT0)} offen offset:1024 lds")
    K.stamp()
    A(f"v_mov_b32 {v(vT1)}, 0x3f803f80")
    A(f"v_lshlrev_b32 {v(vT0)}, 2, v0")
    A(f"v_add_u32 {v(vT0)}, {ON}, {v(vT0)}")
    A(f"ds_write_b32 {v(vT0)}, {v(vT1)}")
    A(f"ds_write_b32 {v(vT0)}, {v(vT1)} offset:2048")
    A(f"v_cmp_gt_u32 vcc, 128, v0")
    sSave = S.alloc(2)
    A(f"s_and_saveexec_b64 {s(sSave,2)}, vcc")
    A(f"ds_write_b32 {v(vT0)}, {v(vT1)} offset:4096")
    A(f"s_mov_b64 exec, {s(sSave,2)}")
    A(f"v_lshrrev_b32 {v(vHf)}, 5, {v(vLane)}")
    A(f"v_and_b32 {v(vTok)}, 31, {v(vLane)}")
    A(f"s_lshl_b32 {s(sT0)}, {s(sKh)}, 15")
    A(f"v_add_u32 {v(vK)}, {s(sT0)}, {v(vL16)}")
    A(f"v_lshlrev_b32 {v(vT0)}, 8, {v(vHf)}")
    A(f"v_lshl_add_u32 {v(vT0)}, {v(vTok)}, 4, {v(vT0)}")
    A(f"s_add_u32 {s(sT0)}, {s(sT0)}, {VR}")
    A(f"v_add_u32 {v(vT0)}, {s(sT0)}, {v(vT0)}")
    A(f"v_subrev_u32 {v(vT1)}, 20, {v(vTok)}")
    A(f"v_cmp_gt_u32 vcc, 8, {v(vT1)}")
    A(f"v_mov_b32 {v(vT1)}, {ON}")
    A(f"v_mov_b32 {v(vT2)}, {ON+64}")
    A(f"v_cndmask_b32 {v(vT1)}, {v(vT1)}, {v(vT2)}, vcc")
    A(f"v_cmp_gt_u32 vcc, 16, {v(vTok)}")
    A(f"v_cndmask_b32 {v(vV)}, {v(vT1)}, {v(vT0)}, vcc")
    A(f"v_mov_b32 {v(vT1)}, 4096")
    A(f"v_cndmask_b32 {v(vVinc)}, 0, {v(vT1)}, vcc")
    Kf = [V.alloc(4) for _ in range(2)]; Vf0 = [V.alloc(4) for _ in range(2)]; Vf1 = [V.alloc(4) for _ in range(2)]
    QB = [dict(S=[V.alloc(16), V.alloc(16)], P=V.alloc(8), O=V.alloc(16), C=V.alloc(16)) for _ in range(nqb)]
    ngrp_after = 12
    A(f"s_waitcnt vmcnt(16)")
    wave_max64(A, vKm, sKm, sT0)
    bad = S.alloc(2)
    for b in range(nqb):
        un = QB[b]["S"][0]
        for i in range(4):
            A(f"v_lshlrev_b32 {v(un+2*i)}, 16, {v(Q[b]+i)}")
            A(f"v_and_b32 {v(un+2*i+1)}, 0xffff0000, {v(Q[b]+i)}")
        A(f"v_mul_f32 {v(vT0)}, {v(un)}, {v(un)}")
        for i in range(1, 8): A(f"v_fmac_f32 {v(vT0)}, {v(un+i)}, {v(un+i)}")
        swap_add(A, vT0, vT1)
        A(f"v_mul_f32 {v(vT0)}, {s(sKm)}, {v(vT0)}")
        A(f"v_sqrt_f32 {v(vT0)}, {v(vT0)}")
        A(f"v_mov_b32 {v(vT1)}, {f2u(0.01):#x}")
        A(f"v_fmac_f32 {v(vT1)}, {f2u(1.01):#x}, {v(vT0)}")
        A(f"v_mov_b32 {v(vT2)}, {f2u(40.0):#x}")
        A(f"v_cmp_nge_f32 vcc, {v(vT2)}, {v(vT1)}")
        if b == 0: A(f"s_mov_b64 {s(bad,2)}, vcc")
        else: A(f"s_or_b64 {s(bad,2)}, {s(bad,2)}, vcc")
        for r in range(16): A(f"v_sub_f32 {v(QB[b]['C']+r)}, 0, {v(vT1)}")
        for r in range(16): A(f"v_mov_b32 {v(QB[b]['O']+r)}, 0")
        for r in range(4, 8): A(f"v_mov_b32 {v(QB[b]['P']+r)}, 0")
    for r in range(4): A(f"v_mov_b32 {v(Vf1[1]+r)}, 0")
    A(f"s_waitcnt vmcnt({ngrp_after}) lgkmcnt(0)")
    A("s_barrier")
    K.stamp()
    A(f"s_cmp_lg_u64 {s(bad,2)}, 0")
    A(f"s_cbranch_scc1 K2_SLOW")
    NT = 64 // ks
    mf = "v_mfma_f32_32x32x16_bf16"
    A(f"ds_read_b128 {v(Kf[0],4)}, {v(vK)}")
    A(f"ds_read_b128 {v(Kf[1],4)}, {v(vK)} offset:1024")
    A(f"ds_read_b128 {v(Vf0[0],4)}, {v(vV)}")
    A("s_waitcnt lgkmcnt(2)")
    for b in range(nqb):
        A(f"{mf} {v(QB[b]['S'][0],16)}, {v(Kf[0],4)}, {v(Q[b],4)}, {v(QB[b]['C'],16)}")
    A(f"s_mov_b32 {s(sIt)}, 0")
    A.label("K2_LOOP")
    A(f"s_cmp_lg_u32 {s(sIt)}, 1")
    A(f"s_cbranch_scc1 K2_NOSYNC")
    A("s_waitcnt vmcnt(0)")
    A("s_barrier")
    A.label("K2_NOSYNC")
    for t in range(4):
        cur, nxt = t & 1, (t + 1) & 1
        A("s_waitcnt lgkmcnt(0)")
        for b in range(nqb):
            q = QB[b]; Sx = q["S"][cur]; Sn = q["S"][nxt]; P = q["P"]; O = q["O"]
            ex = [f"v_exp_f32 {v(Sx+i)}, {v(Sx+i)}" for i in range(16)]
            cv = [f"v_cvt_pk_bf16_f32 {v(P+i)}, {v(Sx+2*i)}, {v(Sx+2*i+1)}" for i in range(8)]
            A(f"{mf} {v(Sn,16)}, {v(Kf[nxt],4)}, {v(Q[b],4)}, {v(q['C'],16)}")
            for x in ex[0:4]: A(x)
            A(cv[0])
            for x in ex[4:6]: A(x)
            A(cv[1])
            A(f"{mf} {v(O,16)}, {v(Vf1[nxt],4)}, {v(P+4,4)}, {v(O,16)}")
            if b == 0:
                A(f"ds_read_b128 {v(Kf[cur],4)}, {v(vK)} offset:{(t+2)*1024}")
                A(f"ds_read_b128 {v(Vf0[nxt],4)}, {v(vV)} offset:{(t+1)*1024}")
                A(f"ds_read_b128 {v(Vf1[cur],4)}, {v(vV)} offset:{t*1024+512}")
            for x in ex[6:8]: A(x)
            A(cv[2])
            for x in ex[8:10]: A(x)
            A(cv[3])
            for x in ex[10:12]: A(x)
            A(cv[4])
            A(f"{mf} {v(O,16)}, {v(Vf0[cur],4)}, {v(P,4)}, {v(O,16)}")
            for x in ex[12:14]: A(x)
            A(cv[5])
            for x in ex[14:16]: A(x)
            A(cv[6])
            A(cv[7])
    A(f"v_add_u32 {v(vK)}, 4096, {v(vK)}")
    A(f"v_add_u32 {v(vV)}, {v(vVinc)}, {v(vV)}")
    A(f"s_add_u32 {s(sIt)}, {s(sIt)}, 1")
    A(f"s_cmp_lt_u32 {s(sIt)}, {NT//4}")
    A(f"s_cbranch_scc1 K2_LOOP")
    A("s_waitcnt lgkmcnt(0)")
    for b in range(nqb):
        A(f"{mf} {v(QB[b]['O'],16)}, {v(Vf1[1],4)}, {v(QB[b]['P']+4,4)}, {v(QB[b]['O'],16)}")
    A("s_branch K2_FIN")
    A.label("K2_SLOW")
    A("s_waitcnt vmcnt(0)")
    A("s_barrier")
    for b in range(nqb):
        A(f"v_mov_b32 {v(QB[b]['C'])}, {f2u(-3.0e38):#x}")
    A(f"s_mov_b32 {s(sIt)}, 0")
    A.label("K2_SLOOP")
    A(f"ds_read_b128 {v(Kf[0],4)}, {v(vK)}")
    A(f"ds_read_b128 {v(Vf0[0],4)}, {v(vV)}")
    A(f"ds_read_b128 {v(Vf1[0],4)}, {v(vV)} offset:512")
    A("s_waitcnt lgkmcnt(0)")
    for b in range(nqb):
        q = QB[b]; Sx = q["S"][0]; P = q["P"]; O = q["O"]; m = q["C"]; mn = q["C"] + 1; al = q["C"] + 2
        A(f"{mf} {v(Sx,16)}, {v(Kf[0],4)}, {v(Q[b],4)}, 0")
        A(f"v_max_f32 {v(mn)}, {v(Sx)}, {v(Sx+1)}")
        for i in range(2, 16): A(f"v_max_f32 {v(mn)}, {v(mn)}, {v(Sx+i)}")
        swap_add(A, mn, vT1, "v_max_f32")
        A(f"v_max_f32 {v(mn)}, {v(mn)}, {v(m)}")
        A(f"v_sub_f32 {v(al)}, {v(m)}, {v(mn)}")
        A(f"v_exp_f32 {v(al)}, {v(al)}")
        A(f"v_mov_b32 {v(m)}, {v(mn)}")
        for i in range(16): A(f"v_sub_f32 {v(Sx+i)}, {v(Sx+i)}, {v(mn)}")
        for i in range(16): A(f"v_exp_f32 {v(Sx+i)}, {v(Sx+i)}")
        for i in range(16): A(f"v_mul_f32 {v(O+i)}, {v(al)}, {v(O+i)}")
        for i in range(8): A(f"v_cvt_pk_bf16_f32 {v(P+i)}, {v(Sx+2*i)}, {v(Sx+2*i+1)}")
        A(f"{mf} {v(O,16)}, {v(Vf0[0],4)}, {v(P,4)}, {v(O,16)}")
        A(f"{mf} {v(O,16)}, {v(Vf1[0],4)}, {v(P+4,4)}, {v(O,16)}")
    A(f"v_add_u32 {v(vK)}, 1024, {v(vK)}")
    A(f"v_lshrrev_b32 {v(vT0)}, 2, {v(vVinc)}")
    A(f"v_add_u32 {v(vV)}, {v(vT0)}, {v(vV)}")
    A(f"s_add_u32 {s(sIt)}, {s(sIt)}, 1")
    A(f"s_cmp_lt_u32 {s(sIt)}, {NT}")
    A(f"s_cbranch_scc1 K2_SLOOP")
    A(f"s_mov_b32 {s(sIt)}, -1")
    A.label("K2_FIN")
    K.stamp()
    if ks == 2:
        vM = [V.alloc(), V.alloc()]
        for b in range(2):
            A(f"v_sub_f32 {v(vM[b])}, 0, {v(QB[b]['C'])}")
        A(f"s_cmp_lg_u32 {s(sIt)}, -1")
        A(f"s_cbranch_scc1 K2_F1")
        for b in range(2):
            A(f"v_mov_b32 {v(vM[b])}, {v(QB[b]['C'])}")
        A.label("K2_F1")
        snd = V.alloc(10); kp = V.alloc(10)
        A(f"s_cmp_eq_u32 {s(sKh)}, 0")
        A(f"s_cbranch_scc1 K2_F2")
        for r in range(9):
            A(f"v_mov_b32 {v(snd+r)}, {v(QB[0]['O']+r)}"); A(f"v_mov_b32 {v(kp+r)}, {v(QB[1]['O']+r)}")
        A(f"v_mov_b32 {v(snd+9)}, {v(vM[0])}"); A(f"v_mov_b32 {v(kp+9)}, {v(vM[1])}")
        A("s_branch K2_F3")
        A.label("K2_F2")
        for r in range(9):
            A(f"v_mov_b32 {v(snd+r)}, {v(QB[1]['O']+r)}"); A(f"v_mov_b32 {v(kp+r)}, {v(QB[0]['O']+r)}")
        A(f"v_mov_b32 {v(snd+9)}, {v(vM[1])}"); A(f"v_mov_b32 {v(kp+9)}, {v(vM[0])}")
        A.label("K2_F3")
        A("s_barrier")
        A(f"s_mul_i32 {s(sT0)}, {s(sW)}, 2560")
        A(f"v_lshlrev_b32 {v(vT0)}, 2, {v(vLane)}")
        A(f"v_add_u32 {v(vT0)}, {s(sT0)}, {v(vT0)}")
        for r in range(10): A(f"ds_write_b32 {v(vT0)}, {v(snd+r)} offset:{r*256}")
        A("s_waitcnt lgkmcnt(0)")
        A("s_barrier")
        A(f"s_xor_b32 {s(sT0)}, {s(sW)}, 4")
        A(f"s_mul_i32 {s(sT0)}, {s(sT0)}, 2560")
        A(f"v_lshlrev_b32 {v(vT0)}, 2, {v(vLane)}")
        A(f"v_add_u32 {v(vT0)}, {s(sT0)}, {v(vT0)}")
        for r in range(10): A(f"ds_read_b32 {v(snd+r)}, {v(vT0)} offset:{r*256}")
        A("s_waitcnt lgkmcnt(0)")
        A(f"v_max_f32 {v(vT0)}, {v(kp+9)}, {v(snd+9)}")
        A(f"v_sub_f32 {v(vT1)}, {v(kp+9)}, {v(vT0)}")
        A(f"v_sub_f32 {v(vT2)}, {v(snd+9)}, {v(vT0)}")
        A(f"v_exp_f32 {v(vT1)}, {v(vT1)}")
        A(f"v_exp_f32 {v(vT2)}, {v(vT2)}")
        for r in range(9): A(f"v_mul_f32 {v(kp+r)}, {v(vT1)}, {v(kp+r)}")
        for r in range(9): A(f"v_fmac_f32 {v(kp+r)}, {v(vT2)}, {v(snd+r)}")
        outs = [(kp, None)]
        A(f"s_add_u32 {s(sQt)}, {s(sQt)}, {s(sKh)}")
    else:
        outs = [(QB[0]["O"], None)]
    for (O, _) in outs:
        A(f"v_rcp_f32 {v(vT0)}, {v(O+8)}")
        for r in range(8): A(f"v_mul_f32 {v(O+r)}, {v(vT0)}, {v(O+r)}")
        pk = V.alloc(4)
        for i in range(4): A(f"v_cvt_pk_bf16_f32 {v(pk+i)}, {v(O+2*i)}, {v(O+2*i+1)}")
        A(f"s_lshl_b32 {s(sT0)}, {s(sQt)}, 15")
        A(f"s_lshl_b32 {s(sT1)}, {s(sHead)}, 10")
        A(f"s_add_u32 {s(sT0)}, {s(sT0)}, {s(sT1)}")
        A(f"s_add_u32 {s(sT0)}, {s(sT0)}, {WS_OF}")
        A(f"buffer_store_dwordx4 {v(pk,4)}, {v(vL16)}, {s(sO,4)}, {s(sT0)} offen")
    K.stamp_out(sO, 1, vT0, vT1)
    K.rt_end(sO, 1, vT0, vT1)
    A.label(END)
    A("s_endpgm")
    print("k2 vgprs", V.hi, "sgprs", S.hi, "lds", K.lds)
    return K

def wave_ids(K, sW8, sW, vLane, vT0):
    A = K.A
    A(f"v_lshrrev_b32 {v(vT0)}, 6, v0")
    A(f"v_and_b32 {v(vLane)}, 63, v0")
    A(f"v_readfirstlane_b32 {s(sW8)}, {v(vT0)}")
    A(f"s_and_b32 {s(sW)}, {s(sW8)}, 3")

def w_voff(A, vdst, vLane, pitch, t0, t1):
    A(f"v_bfe_u32 {v(t0)}, {v(vLane)}, 2, 3")
    A(f"v_mul_u32_u24 {v(t0)}, {pitch}, {v(t0)}")
    A(f"v_and_b32 {v(t1)}, 3, {v(vLane)}")
    A(f"v_lshl_add_u32 {v(t0)}, {v(t1)}, 4, {v(t0)}")
    A(f"v_lshrrev_b32 {v(t1)}, 5, {v(vLane)}")
    A(f"v_lshl_add_u32 {v(vdst)}, {v(t1)}, 6, {v(t0)}")

def tr_pi_base(A, vdst, vLane, vHf, t0, t1):
    A(f"v_and_b32 {v(t0)}, 15, {v(vLane)}")
    A(f"v_lshrrev_b32 {v(t1)}, 2, {v(t0)}")
    A(f"v_lshl_add_u32 {v(t1)}, {v(vHf)}, 2, {v(t1)}")
    A(f"v_lshlrev_b32 {v(t1)}, 6, {v(t1)}")
    A(f"v_and_b32 {v(t0)}, 3, {v(t0)}")
    A(f"v_lshl_add_u32 {v(t1)}, {v(t0)}, 3, {v(t1)}")
    A(f"v_bfe_u32 {v(t0)}, {v(vLane)}, 4, 1")
    A(f"v_lshl_add_u32 {v(vdst)}, {v(t0)}, 5, {v(t1)}")

def reduce4(K, acc, RED, sW, vL16, vT0, sT0, out):
    A = K.A
    A(f"s_lshl_b32 {s(sT0)}, {s(sW)}, 12")
    A(f"s_add_u32 {s(sT0)}, {s(sT0)}, {RED}")
    A(f"v_add_u32 {v(vT0)}, {s(sT0)}, {v(vL16)}")
    for t in range(4):
        for q in range(4):
            A(f"ds_write_b128 {v(vT0)}, {v(acc[t]+4*q,4)} offset:{t*16384 + q*1024}")
    A("s_waitcnt lgkmcnt(0)")
    A("s_barrier")
    A(f"s_lshl_b32 {s(sT0)}, {s(sW)}, 14")
    A(f"s_add_u32 {s(sT0)}, {s(sT0)}, {RED}")
    A(f"v_add_u32 {v(vT0)}, {s(sT0)}, {v(vL16)}")
    for p in range(4):
        for q in range(4):
            A(f"ds_read_b128 {v(acc[p]+4*q,4)}, {v(vT0)} offset:{p*4096 + q*1024}")
    A("s_waitcnt lgkmcnt(8)")
    for r in range(16): A(f"v_add_f32 {v(out+r)}, {v(acc[0]+r)}, {v(acc[1]+r)}")
    A("s_waitcnt lgkmcnt(0)")
    for r in range(16): A(f"v_add_f32 {v(acc[2]+r)}, {v(acc[2]+r)}, {v(acc[3]+r)}")
    for r in range(16): A(f"v_add_f32 {v(out+r)}, {v(out+r)}, {v(acc[2]+r)}")

def k3():
    WO = 0; XT = 65536; RED = XT + 8192
    K = Kern("k3_oproj_kernel", (256, 1, 1), (512, 1, 1), RED + 65536)
    A, V, S = K.A, K.V, K.S
    END = "K3_END"
    sP = S.alloc(4); sWs = S.alloc(2)
    A(f"s_load_dwordx2 {s(sP,2)}, s[0:1], 0")
    A(f"s_load_dwordx2 {s(sP+2,2)}, s[0:1], 16")
    A(f"s_load_dwordx2 {s(sWs,2)}, s[0:1], 80")
    A(f"s_cmp_ge_u32 s2, 256")
    A(f"s_cbranch_scc1 {END}")
    K.rt_begin()
    K.stamp()
    sX = S.alloc(4); sWo = S.alloc(4); sO = S.alloc(4)
    sW8, sW, sXcd, sJ, sRt, sCt, sT0, sT1, sB = [S.alloc() for _ in range(9)]
    vLane, vT0, vT1, vT2, vHf, vTok, vL16 = [V.alloc() for _ in range(7)]
    wave_ids(K, sW8, sW, vLane, vT0)
    A(f"s_and_b32 {s(sXcd)}, s2, 7")
    A(f"s_lshr_b32 {s(sJ)}, s2, 3")
    A(f"s_and_b32 {s(sT0)}, {s(sJ)}, 3")
    A(f"s_lshl_b32 {s(sRt)}, {s(sXcd)}, 2")
    A(f"s_add_u32 {s(sRt)}, {s(sRt)}, {s(sT0)}")
    A(f"s_lshr_b32 {s(sCt)}, {s(sJ)}, 2")
    A(f"s_cmp_lt_u32 {s(sW8)}, 4")
    A(f"s_cbranch_scc1 K3_COMPUTE")
    mk0 = V.mark()
    vWoff, vXoff = V.alloc(), V.alloc()
    w_voff(A, vWoff, vLane, 1024, vT0, vT1)
    A(f"s_and_b32 {s(sT0)}, {s(sW)}, 1")
    A(f"s_lshl_b32 {s(sT0)}, {s(sT0)}, 2")
    A(f"v_lshrrev_b32 {v(vT0)}, 4, {v(vLane)}")
    A(f"v_or_b32 {v(vT0)}, {s(sT0)}, {v(vT0)}")
    A(f"v_and_b32 {v(vT1)}, 7, {v(vLane)}")
    A(f"v_xor_b32 {v(vT0)}, {v(vT0)}, {v(vT1)}")
    A(f"v_lshlrev_b32 {v(vT0)}, 4, {v(vT0)}")
    A(f"v_lshrrev_b32 {v(vT1)}, 3, {v(vLane)}")
    A(f"v_lshlrev_b32 {v(vT1)}, 10, {v(vT1)}")
    A(f"v_add_u32 {v(vXoff)}, {v(vT0)}, {v(vT1)}")
    A("s_waitcnt lgkmcnt(0)")
    srd(A, sX, sP, 2048 * 512 * 2)
    srd(A, sWo, sP + 2, 512 * 512 * 2)
    A(f"s_lshl_b32 {s(sB)}, {s(sW)}, 17")
    A(f"s_lshl_b32 {s(sT0)}, {s(sCt)}, 7")
    A(f"s_add_u32 {s(sB)}, {s(sB)}, {s(sT0)}")
    A(f"s_lshl_b32 {s(sT1)}, {s(sW)}, 14")
    for g in range(16):
        A(f"s_add_u32 m0, {s(sT1)}, {WO + g*1024}")
        A(f"s_add_u32 {s(sT0)}, {s(sB)}, {g*8192}")
        A(f"buffer_load_dwordx4 {v(vWoff)}, {s(sWo,4)}, {s(sT0)} offen lds")
        if g == 7:
            pass
    A(f"s_lshl_b32 {s(sB)}, {s(sRt)}, 16")
    A(f"s_lshl_b32 {s(sT0)}, {s(sCt)}, 7")
    A(f"s_add_u32 {s(sB)}, {s(sB)}, {s(sT0)}")
    A(f"s_lshl_b32 {s(sT0)}, {s(sW)}, 13")
    A(f"s_add_u32 {s(sB)}, {s(sB)}, {s(sT0)}")
    A(f"s_lshl_b32 {s(sT1)}, {s(sW)}, 10")
    for n in range(2):
        A(f"s_add_u32 m0, {s(sT1)}, {XT + n*4096}")
        A(f"s_add_u32 {s(sT0)}, {s(sB)}, {n*32768}")
        A(f"buffer_load_dwordx4 {v(vXoff)}, {s(sX,4)}, {s(sT0)} offen lds")
    A("s_waitcnt vmcnt(10)")
    A("s_barrier")
    A("s_waitcnt vmcnt(0)")
    A("s_barrier")
    A("s_endpgm")
    V.release(mk0)
    A.label("K3_COMPUTE")
    Af = [[V.alloc(4) for _ in range(8)] for _ in range(2)]
    acc = [V.alloc(16) for _ in range(4)]
    Bf = [[V.alloc(4) for _ in range(2)] for _ in range(2)]
    vB = V.alloc()
    A(f"v_lshlrev_b32 {v(vL16)}, 4, {v(vLane)}")
    A(f"v_lshrrev_b32 {v(vHf)}, 5, {v(vLane)}")
    A(f"v_and_b32 {v(vTok)}, 31, {v(vLane)}")
    A("s_waitcnt lgkmcnt(0)")
    srd(A, sO, sWs, WS_SIZE)
    A(f"s_lshl_b32 {s(sB)}, {s(sRt)}, 16")
    A(f"s_lshl_b32 {s(sT0)}, {s(sW)}, 13")
    A(f"s_add_u32 {s(sB)}, {s(sB)}, {s(sT0)}")
    A(f"s_add_u32 {s(sB)}, {s(sB)}, {WS_OF}")
    for h in range(2):
        for r in range(2):
            A(f"s_add_u32 {s(sT0)}, {s(sB)}, {r*32768 + h*4096}")
            for i in range(4):
                A(f"buffer_load_dwordx4 {v(Af[r][4*h+i],4)}, {v(vL16)}, {s(sO,4)}, {s(sT0)} offen offset:{i*1024}")
    tr_pi_base(A, vB, vLane, vHf, vT0, vT1)
    A(f"s_lshl_b32 {s(sT0)}, {s(sW)}, 14")
    A(f"v_add_u32 {v(vB)}, {s(sT0)}, {v(vB)}")
    def rd(i):
        for b in range(2):
            A(f"ds_read_b64_tr_b16 {v(Bf[i&1][b],2)}, {v(vB)} offset:{WO + i*2048 + b*512}")
            A(f"ds_read_b64_tr_b16 {v(Bf[i&1][b]+2,2)}, {v(vB)} offset:{WO + i*2048 + b*512 + 1024}")
    K.stamp()
    A("s_barrier")
    K.stamp()
    rd(0)
    for i in range(8):
        if i == 3:
            A("s_barrier")
        if i + 1 < 8:
            rd(i + 1)
            A(f"s_waitcnt lgkmcnt(4)")
        else:
            A(f"s_waitcnt lgkmcnt(0)")
        if i == 0: A("s_waitcnt vmcnt(8)")
        if i == 4: A("s_waitcnt vmcnt(0)")
        for b in range(2):
            for r in range(2):
                t = 2 * b + r
                A(f"v_mfma_f32_32x32x16_bf16 {v(acc[t],16)}, {v(Bf[i&1][b],4)}, {v(Af[r][i],4)}, {'0' if i == 0 else v(acc[t],16)}")
    K.stamp()
    xr = V.alloc(8); out = V.alloc(16)
    sBb, sRr = S.alloc(), S.alloc()
    A(f"s_lshr_b32 {s(sBb)}, {s(sW)}, 1")
    A(f"s_and_b32 {s(sRr)}, {s(sW)}, 1")
    A(f"v_lshrrev_b32 {v(vT2)}, 1, {v(vTok)}")
    A(f"v_and_b32 {v(vT2)}, 7, {v(vT2)}")
    A(f"s_lshl_b32 {s(sT0)}, {s(sRr)}, 12")
    A(f"s_add_u32 {s(sT0)}, {s(sT0)}, {XT}")
    A(f"v_lshlrev_b32 {v(vT1)}, 7, {v(vTok)}")
    A(f"v_lshl_add_u32 {v(vT1)}, {v(vHf)}, 3, {v(vT1)}")
    A(f"v_add_u32 {v(vT1)}, {s(sT0)}, {v(vT1)}")
    A(f"s_lshl_b32 {s(sT1)}, {s(sBb)}, 2")
    for a_ in range(4):
        A(f"s_add_u32 {s(sT0)}, {s(sT1)}, {a_}")
        A(f"v_xor_b32 {v(vT0)}, {s(sT0)}, {v(vT2)}")
        A(f"v_lshl_add_u32 {v(vT0)}, {v(vT0)}, 4, {v(vT1)}")
        A(f"ds_read_b64 {v(xr+2*a_,2)}, {v(vT0)}")
    reduce4(K, acc, RED, sW, vL16, vT0, sT0, out)
    K.stamp()
    un = acc[0]
    for i in range(8):
        A(f"v_lshlrev_b32 {v(un+2*i)}, 16, {v(xr+i)}")
        A(f"v_and_b32 {v(un+2*i+1)}, 0xffff0000, {v(xr+i)}")
    for r in range(16): A(f"v_add_f32 {v(out+r)}, {v(out+r)}, {v(un+r)}")
    pk = acc[1]
    for i in range(8): A(f"v_cvt_pk_bf16_f32 {v(pk+i)}, {v(out+2*i)}, {v(out+2*i+1)}")
    A(f"s_lshl_b32 {s(sT0)}, {s(sRt)}, 1")
    A(f"s_add_u32 {s(sT0)}, {s(sT0)}, {s(sRr)}")
    A(f"s_lshl_b32 {s(sB)}, {s(sT0)}, 15")
    A(f"s_lshl_b32 {s(sT1)}, {s(sCt)}, 12")
    A(f"s_add_u32 {s(sB)}, {s(sB)}, {s(sT1)}")
    A(f"s_lshl_b32 {s(sT1)}, {s(sBb)}, 11")
    A(f"s_add_u32 {s(sB)}, {s(sB)}, {s(sT1)}")
    A(f"s_add_u32 {s(sB)}, {s(sB)}, {WS_HF}")
    A(f"buffer_store_dwordx4 {v(pk,4)}, {v(vL16)}, {s(sO,4)}, {s(sB)} offen")
    A(f"buffer_store_dwordx4 {v(pk+4,4)}, {v(vL16)}, {s(sO,4)}, {s(sB)} offen offset:1024")
    for i in range(8):
        A(f"v_lshlrev_b32 {v(un+2*i)}, 16, {v(pk+i)}")
        A(f"v_and_b32 {v(un+2*i+1)}, 0xffff0000, {v(pk+i)}")
    st = V.alloc(2)
    A(f"v_add_f32 {v(st)}, {v(un)}, {v(un+1)}")
    A(f"v_mul_f32 {v(st+1)}, {v(un)}, {v(un)}")
    A(f"v_fmac_f32 {v(st+1)}, {v(un+1)}, {v(un+1)}")
    for r in range(2, 16):
        A(f"v_add_f32 {v(st)}, {v(st)}, {v(un+r)}")
        A(f"v_fmac_f32 {v(st+1)}, {v(un+r)}, {v(un+r)}")
    swap_add(A, st, vT1)
    swap_add(A, st + 1, vT2)
    A(f"s_lshl_b32 {s(sT0)}, {s(sT0)}, 12")
    A(f"s_lshl_b32 {s(sT1)}, {s(sCt)}, 9")
    A(f"s_add_u32 {s(sT0)}, {s(sT0)}, {s(sT1)}")
    A(f"s_lshl_b32 {s(sT1)}, {s(sBb)}, 8")
    A(f"s_add_u32 {s(sT0)}, {s(sT0)}, {s(sT1)}")
    A(f"s_add_u32 {s(sT0)}, {s(sT0)}, {WS_HS}")
    A(f"v_lshlrev_b32 {v(vT0)}, 3, {v(vTok)}")
    A("s_mov_b32 exec_hi, 0")
    A(f"buffer_store_dwordx2 {v(st,2)}, {v(vT0)}, {s(sO,4)}, {s(sT0)} offen")
    K.stamp_out(sO, 2, vT0, vT1)
    K.rt_end(sO, 2, vT0, vT1)
    A.label(END)
    A("s_endpgm")
    print("k3 vgprs", V.hi, "sgprs", S.hi, "lds", K.lds)
    return K

def k4():
    W1 = 0; CS = 131072; BI = CS + 4 * 512 * 1;
    BI = CS + 2048
    K = Kern("k4_mlp1_kernel", (256, 1, 1), (512, 1, 1), BI + 512)
    A, V, S = K.A, K.V, K.S
    END = "K4_END"
    sP = S.alloc(4); sWs = S.alloc(2)
    A(f"s_load_dwordx4 {s(sP,4)}, s[0:1], 32")
    A(f"s_load_dwordx2 {s(sWs,2)}, s[0:1], 80")
    sW8, sW, sXcd, sJ, sRt, sCt, sT0, sT1, sB, sRot = [S.alloc() for _ in range(10)]
    A(f"s_and_b32 {s(sXcd)}, s2, 7")
    A(f"s_lshr_b32 {s(sJ)}, s2, 3")
    A(f"s_cmp_ge_u32 {s(sJ)}, 28")
    A(f"s_cbranch_scc1 {END}")
    K.rt_begin()
    K.stamp()
    sW1 = S.alloc(4); sO = S.alloc(4); sB1 = S.alloc(4)
    vLane, vT0, vT1, vT2, vHf, vTok, vL16 = [V.alloc() for _ in range(7)]
    wave_ids(K, sW8, sW, vLane, vT0)
    A(f"s_and_b32 {s(sT0)}, {s(sXcd)}, 3")
    A(f"s_lshl_b32 {s(sT0)}, {s(sT0)}, 2")
    A(f"s_and_b32 {s(sT1)}, {s(sJ)}, 3")
    A(f"s_add_u32 {s(sRt)}, {s(sT0)}, {s(sT1)}")
    A(f"s_lshr_b32 {s(sT0)}, {s(sXcd)}, 2")
    A(f"s_mul_i32 {s(sT0)}, {s(sT0)}, 7")
    A(f"s_lshr_b32 {s(sCt)}, {s(sJ)}, 2")
    A(f"s_add_u32 {s(sCt)}, {s(sCt)}, {s(sT0)}")
    A(f"s_cmp_lt_u32 {s(sW8)}, 4")
    A(f"s_cbranch_scc1 K4_COMPUTE")
    mk0 = V.mark()
    vWoff = V.alloc()
    w_voff(A, vWoff, vLane, 3584, vT0, vT1)
    A("s_waitcnt lgkmcnt(0)")
    srd(A, sW1, sP, 512 * 1792 * 2)
    A(f"s_mul_i32 {s(sB)}, {s(sW)}, {32*3584}")
    A(f"s_lshl_b32 {s(sT0)}, {s(sCt)}, 8")
    A(f"s_add_u32 {s(sB)}, {s(sB)}, {s(sT0)}")
    A(f"s_lshl_b32 {s(sT1)}, {s(sW)}, 12")
    def dma(p, c):
        for q in range(4):
            A(f"s_add_u32 m0, {s(sT1)}, {W1 + p*65536 + c*16384 + q*1024}")
            A(f"s_add_u32 {s(sT0)}, {s(sB)}, {(128*c + 8*q)*3584 + p*128}")
            A(f"buffer_load_dwordx4 {v(vWoff)}, {s(sW1,4)}, {s(sT0)} offen lds")
    seq = [(p, c) for p in range(2) for c in range(4)]
    dma(*seq[0]); dma(*seq[1])
    for n in range(8):
        if n + 2 < 8: dma(*seq[n + 2])
        rem = min(8, n + 3) - (n + 1)
        A(f"s_waitcnt vmcnt({4*rem})")
        A("s_barrier")
    A("s_endpgm")
    V.release(mk0)
    A.label("K4_COMPUTE")
    Af = [V.alloc(4) for _ in range(32)]
    acc = [V.alloc(16) for _ in range(4)]
    Bf = [[V.alloc(4) for _ in range(2)] for _ in range(2)]
    csa = [V.alloc(4) for _ in range(4)]; msk = V.alloc(4)
    vB = [V.alloc() for _ in range(4)]
    hs = acc[3]
    A(f"v_lshlrev_b32 {v(vL16)}, 4, {v(vLane)}")
    A(f"v_lshrrev_b32 {v(vHf)}, 5, {v(vLane)}")
    A(f"v_and_b32 {v(vTok)}, 31, {v(vLane)}")
    A("s_waitcnt lgkmcnt(0)")
    srd(A, sO, sWs, WS_SIZE)
    srd(A, sB1, sP + 2, 1792 * 2)
    sR32 = S.alloc()
    A(f"s_lshl_b32 {s(sR32)}, {s(sRt)}, 2")
    A(f"s_add_u32 {s(sR32)}, {s(sR32)}, {s(sW)}")
    A(f"s_lshl_b32 {s(sT0)}, {s(sR32)}, 12")
    A(f"s_add_u32 {s(sT0)}, {s(sT0)}, {WS_HS}")
    A(f"v_lshlrev_b32 {v(vT0)}, 3, {v(vTok)}")
    A(f"v_lshl_add_u32 {v(vT0)}, {v(vHf)}, 11, {v(vT0)}")
    for i in range(8):
        A(f"buffer_load_dwordx2 {v(hs+2*i,2)}, {v(vT0)}, {s(sO,4)}, {s(sT0)} offen offset:{i*256}")
    vb1 = V.alloc()
    A(f"v_lshlrev_b32 {v(vT1)}, 2, {v(vLane)}")
    A(f"s_lshl_b32 {s(sT1)}, {s(sCt)}, 8")
    A(f"buffer_load_dword {v(vb1)}, {v(vT1)}, {s(sB1,4)}, {s(sT1)} offen")
    A(f"s_lshl_b32 {s(sB)}, {s(sR32)}, 15")
    A(f"s_add_u32 {s(sB)}, {s(sB)}, {WS_HF}")
    sQ = [S.alloc() for _ in range(4)]
    for q in range(4):
        A(f"s_xor_b32 {s(sQ[q])}, {s(sW)}, {q}")
        A(f"s_lshl_b32 {s(sQ[q])}, {s(sQ[q])}, 10")
    for g in range(8):
        for q in range(4):
            A(f"s_add_u32 {s(sT0)}, {s(sB)}, {s(sQ[q])}")
            A(f"s_add_u32 {s(sT0)}, {s(sT0)}, {g*4096}") if g else None
            A(f"buffer_load_dwordx4 {v(Af[4*g+q],4)}, {v(vL16)}, {s(sO,4)}, {s(sT0)} offen")
    tr_pi_base(A, vB[0], vLane, vHf, vT0, vT1)
    for q in (3, 2, 1, 0):
        A(f"s_lshl_b32 {s(sT0)}, {s(sQ[q])}, 1")
        A(f"v_add_u32 {v(vB[q])}, {s(sT0)}, {v(vB[0])}")
    A(f"v_and_b32 {v(vT0)}, 15, {v(vLane)}")
    A(f"v_bfe_u32 {v(vT1)}, {v(vLane)}, 4, 1")
    A(f"v_cmp_eq_u32 vcc, {v(vT0)}, {v(vT1)}")
    A(f"v_mov_b32 {v(vT0)}, 0x3f803f80")
    for i in range(4): A(f"v_cndmask_b32 {v(msk+i)}, 0, {v(vT0)}, vcc")
    A("s_waitcnt vmcnt(32)")
    vMean, vRs, vMr = V.alloc(), V.alloc(), V.alloc()
    for st_ in (4, 2, 1):
        for i in range(st_):
            A(f"v_add_f32 {v(hs+2*i)}, {v(hs+2*i)}, {v(hs+2*(i+st_))}")
            A(f"v_add_f32 {v(hs+2*i+1)}, {v(hs+2*i+1)}, {v(hs+2*(i+st_)+1)}")
    swap_add(A, hs, vT1)
    swap_add(A, hs + 1, vT2)
    A(f"v_mul_f32 {v(vMean)}, {f2u(1/512.):#x}, {v(hs)}")
    A(f"v_mul_f32 {v(vT1)}, {v(vMean)}, {v(vMean)}")
    A(f"v_mov_b32 {v(vT2)}, {f2u(1/512.):#x}")
    A(f"v_fma_f32 {v(vT1)}, {v(hs+1)}, {v(vT2)}, -{v(vT1)}")
    A(f"v_max_f32 {v(vT1)}, 0, {v(vT1)}")
    A(f"v_add_f32 {v(vT2)}, {f2u(1e-5):#x}, {v(vT1)}")
    A(f"v_rcp_f32 {v(vT0)}, {v(vT2)}")
    A(f"v_rsq_f32 {v(vRs)}, {v(vT2)}")
    A(f"v_mul_f32 {v(vT1)}, {v(vT1)}, {v(vT0)}")
    A(f"v_add_f32 {v(vT1)}, {f2u(1e-5):#x}, {v(vT1)}")
    A(f"v_rsq_f32 {v(vT1)}, {v(vT1)}")
    A(f"v_mul_f32 {v(vRs)}, {v(vRs)}, {v(vT1)}")
    A(f"v_mul_f32 {v(vMr)}, {v(vMean)}, {v(vRs)}")
    A(f"v_lshlrev_b32 {v(hs)}, 16, {v(vb1)}")
    A(f"v_and_b32 {v(hs+1)}, 0xffff0000, {v(vb1)}")
    A(f"v_lshlrev_b32 {v(vT0)}, 3, {v(vLane)}")
    A(f"v_add_u32 {v(vT0)}, {BI}, {v(vT0)}")
    A(f"ds_write_b64 {v(vT0)}, {v(hs,2)}")
    def rd(n):
        p, pos = n >> 5, n & 31
        for b in range(2):
            o = (pos >> 2) * 8192 + b * 512
            base = vB[pos & 3]
            A(f"ds_read_b64_tr_b16 {v(Bf[n&1][b],2)}, {v(base)} offset:{o}")
            A(f"ds_read_b64_tr_b16 {v(Bf[n&1][b]+2,2)}, {v(base)} offset:{o+1024}")
    K.stamp()
    A("s_barrier")
    K.stamp()
    rd(0)
    for n in range(64):
        p, pos = n >> 5, n & 31
        if n + 1 < 64:
            if (n + 1) % 8 == 0:
                A("s_waitcnt lgkmcnt(0)")
                A("s_barrier")
                if n + 1 == 32:
                    K.stamp()
                    for q in range(4): A(f"v_add_u32 {v(vB[q])}, 65536, {v(vB[q])}")
            rd(n + 1)
            A("s_waitcnt lgkmcnt(4)")
        else:
            A("s_waitcnt lgkmcnt(0)")
        if p == 0 and pos % 4 == 0:
            A(f"s_waitcnt vmcnt({28 - pos})")
        for b in range(2):
            t = 2 * p + b
            A(f"v_mfma_f32_32x32x16_bf16 {v(acc[t],16)}, {v(Bf[n&1][b],4)}, {v(Af[pos],4)}, {'0' if pos == 0 else v(acc[t],16)}")
            if pos % 4 == 0:
                A(f"v_mfma_f32_16x16x32_bf16 {v(csa[t],4)}, {v(Bf[n&1][b],4)}, {v(msk,4)}, {'0' if pos == 0 else v(csa[t],4)}")
    K.stamp()
    sSave = S.alloc(2)
    A(f"v_and_b32 {v(vT0)}, 15, {v(vLane)}")
    A(f"v_lshrrev_b32 {v(vT1)}, 4, {v(vLane)}")
    A(f"v_lshlrev_b32 {v(vT1)}, 4, {v(vT1)}")
    A(f"v_lshl_add_u32 {v(vT1)}, {v(vT0)}, 6, {v(vT1)}")
    A(f"s_lshl_b32 {s(sT0)}, {s(sW)}, 9")
    A(f"s_add_u32 {s(sT0)}, {s(sT0)}, {CS}")
    A(f"v_add_u32 {v(vT1)}, {s(sT0)}, {v(vT1)}")
    A(f"v_cmp_gt_u32 vcc, 2, {v(vT0)}")
    A(f"s_and_saveexec_b64 {s(sSave,2)}, vcc")
    for t in range(4): A(f"ds_write_b128 {v(vT1)}, {v(csa[t],4)} offset:{t*128}")
    A(f"s_mov_b64 exec, {s(sSave,2)}")
    A("s_waitcnt lgkmcnt(0)")
    A("s_barrier")
    K.stamp()
    A(f"v_lshlrev_b32 {v(vT0)}, 4, {v(vHf)}")
    A(f"v_add_u32 {v(vT0)}, {CS}, {v(vT0)}")
    c1 = -2.0 * 0.7978845608028654 * LOG2E
    c2 = c1 * 0.044715
    vC1, vC2 = V.alloc(), V.alloc()
    A(f"v_mov_b32 {v(vC1)}, {f2u(c1):#x}")
    A(f"v_mov_b32 {v(vC2)}, {f2u(c2):#x}")
    tmp = Af[0]
    def R(i): return Af[0] + 16 * i
    A(f"s_lshl_b32 {s(sB)}, {s(sR32)}, 0")
    A(f"s_mul_i32 {s(sB)}, {s(sB)}, {112*1024}")
    A(f"s_lshl_b32 {s(sT0)}, {s(sCt)}, 13")
    A(f"s_add_u32 {s(sB)}, {s(sB)}, {s(sT0)}")
    A(f"s_add_u32 {s(sB)}, {s(sB)}, {WS_MF}")
    for t in range(4):
        for pw in range(4):
            for a_ in range(4):
                A(f"ds_read_b128 {v(R(pw)+4*a_,4)}, {v(vT0)} offset:{pw*512 + t*128 + a_*32}")
        for a_ in range(4):
            A(f"ds_read_b128 {v(R(4)+4*a_,4)}, {v(vT0)} offset:{2048 + t*128 + a_*32}")
        A("s_waitcnt lgkmcnt(12)")
        A("s_waitcnt lgkmcnt(4)")
        for r in range(16):
            A(f"v_add_f32 {v(R(0)+r)}, {v(R(0)+r)}, {v(R(1)+r)}")
            A(f"v_add_f32 {v(R(2)+r)}, {v(R(2)+r)}, {v(R(3)+r)}")
        for r in range(16): A(f"v_add_f32 {v(R(0)+r)}, {v(R(0)+r)}, {v(R(2)+r)}")
        A("s_waitcnt lgkmcnt(0)")
        for r in range(16): A(f"v_fma_f32 {v(R(4)+r)}, -{v(vMr)}, {v(R(0)+r)}, {v(R(4)+r)}")
        x = acc[t]
        for r in range(16): A(f"v_fma_f32 {v(x+r)}, {v(x+r)}, {v(vRs)}, {v(R(4)+r)}")
        for r in range(16): A(f"v_mul_f32 {v(R(0)+r)}, {v(x+r)}, {v(x+r)}")
        for r in range(16): A(f"v_fma_f32 {v(R(0)+r)}, {v(R(0)+r)}, {v(vC2)}, {v(vC1)}")
        for r in range(16): A(f"v_mul_f32 {v(R(0)+r)}, {v(R(0)+r)}, {v(x+r)}")
        for r in range(16): A(f"v_exp_f32 {v(R(0)+r)}, {v(R(0)+r)}")
        for r in range(16): A(f"v_add_f32 {v(R(0)+r)}, 1.0, {v(R(0)+r)}")
        for r in range(16): A(f"v_rcp_f32 {v(R(0)+r)}, {v(R(0)+r)}")
        for r in range(16): A(f"v_mul_f32 {v(x+r)}, {v(x+r)}, {v(R(0)+r)}")
        pk = R(5 + (t & 1))
        for i in range(8): A(f"v_cvt_pk_bf16_f32 {v(pk+i)}, {v(x+2*i)}, {v(x+2*i+1)}")
        A(f"buffer_store_dwordx4 {v(pk,4)}, {v(vL16)}, {s(sO,4)}, {s(sB)} offen offset:{t*2048}") if t < 2 else A(f"buffer_store_dwordx4 {v(pk,4)}, {v(vL16)}, {s(sO,4)}, {s(sT1)} offen offset:{(t-2)*2048}")
        A(f"buffer_store_dwordx4 {v(pk+4,4)}, {v(vL16)}, {s(sO,4)}, {s(sB)} offen offset:{t*2048+1024}") if t < 2 else A(f"buffer_store_dwordx4 {v(pk+4,4)}, {v(vL16)}, {s(sO,4)}, {s(sT1)} offen offset:{(t-2)*2048+1024}")
        if t == 1: A(f"s_add_u32 {s(sT1)}, {s(sB)}, 4096")
    K.stamp_out(sO, 3, vT0, vT1)
    K.rt_end(sO, 3, vT0, vT1)
    A.label(END)
    A("s_endpgm")
    print("k4 vgprs", V.hi, "sgprs", S.hi, "lds", K.lds)
    return K

def k5():
    W2 = 0; RED = 0
    K = Kern("k5_mlp2_kernel", (256, 1, 1), (512, 1, 1), 131072)
    A, V, S = K.A, K.V, K.S
    END = "K5_END"
    sP = S.alloc(4); sWs = S.alloc(2); sOut = S.alloc(2)
    A(f"s_load_dwordx4 {s(sP,4)}, s[0:1], 48")
    A(f"s_load_dwordx2 {s(sOut,2)}, s[0:1], 64")
    A(f"s_load_dwordx2 {s(sWs,2)}, s[0:1], 80")
    A(f"s_cmp_ge_u32 s2, 256")
    A(f"s_cbranch_scc1 {END}")
    K.rt_begin()
    K.stamp()
    sW2 = S.alloc(4); sO = S.alloc(4); sB2 = S.alloc(4); sOu = S.alloc(4)
    sW8, sW, sXcd, sJ, sRt, sCt, sT0, sT1, sB = [S.alloc() for _ in range(9)]
    vLane, vT0, vT1, vT2, vHf, vTok, vL16 = [V.alloc() for _ in range(7)]
    wave_ids(K, sW8, sW, vLane, vT0)
    A(f"s_and_b32 {s(sXcd)}, s2, 7")
    A(f"s_lshr_b32 {s(sJ)}, s2, 3")
    A(f"s_and_b32 {s(sT0)}, {s(sJ)}, 3")
    A(f"s_lshl_b32 {s(sRt)}, {s(sXcd)}, 2")
    A(f"s_add_u32 {s(sRt)}, {s(sRt)}, {s(sT0)}")
    A(f"s_lshr_b32 {s(sCt)}, {s(sJ)}, 2")
    A(f"s_cmp_lt_u32 {s(sW8)}, 4")
    A(f"s_cbranch_scc1 K5_COMPUTE")
    mk0 = V.mark()
    vWoff = V.alloc()
    w_voff(A, vWoff, vLane, 1024, vT0, vT1)
    A("s_waitcnt lgkmcnt(0)")
    srd(A, sW2, sP, 1792 * 512 * 2)
    A(f"s_mul_i32 {s(sB)}, {s(sW)}, {448*1024}")
    A(f"s_lshl_b32 {s(sT0)}, {s(sCt)}, 7")
    A(f"s_add_u32 {s(sB)}, {s(sB)}, {s(sT0)}")
    A(f"s_lshl_b32 {s(sT1)}, {s(sW)}, 15")
    def dma(c):
        for q in range(8):
            A(f"s_add_u32 m0, {s(sT1)}, {W2 + (c&3)*8192 + q*1024}")
            A(f"s_add_u32 {s(sT0)}, {s(sB)}, {(64*c + 8*q)*1024}")
            A(f"buffer_load_dwordx4 {v(vWoff)}, {s(sW2,4)}, {s(sT0)} offen lds")
    dma(0); dma(1)
    A("s_waitcnt vmcnt(8)")
    A("s_barrier")
    dma(2); dma(3)
    for sp in range(1, 7):
        issued = min(sp + 2, 6)
        A(f"s_waitcnt vmcnt({8*(issued - sp)})")
        A("s_barrier")
        if sp + 3 < 7: dma(sp + 3)
    A("s_endpgm")
    V.release(mk0)
    A.label("K5_COMPUTE")
    NW = 12
    Af = [[V.alloc(4) for _ in range(2)] for _ in range(NW)]
    acc = [V.alloc(16) for _ in range(4)]
    Bf = [[V.alloc(4) for _ in range(2)] for _ in range(2)]
    vB = V.alloc()
    hr = V.alloc(8); b2r = V.alloc(8)
    A(f"v_lshlrev_b32 {v(vL16)}, 4, {v(vLane)}")
    A(f"v_lshrrev_b32 {v(vHf)}, 5, {v(vLane)}")
    A(f"v_and_b32 {v(vTok)}, 31, {v(vLane)}")
    A("s_waitcnt lgkmcnt(0)")
    srd(A, sO, sWs, WS_SIZE)
    srd(A, sB2, sP + 2, 512 * 2)
    srd(A, sOu, sOut, 2048 * 512 * 2)
    sBb, sRr, sA0, sA1 = [S.alloc() for _ in range(4)]
    A(f"s_lshr_b32 {s(sBb)}, {s(sW)}, 1")
    A(f"s_and_b32 {s(sRr)}, {s(sW)}, 1")
    A(f"s_lshl_b32 {s(sT0)}, {s(sRt)}, 1")
    A(f"s_add_u32 {s(sT0)}, {s(sT0)}, {s(sRr)}")
    A(f"s_lshl_b32 {s(sB)}, {s(sT0)}, 15")
    A(f"s_lshl_b32 {s(sT1)}, {s(sCt)}, 12")
    A(f"s_add_u32 {s(sB)}, {s(sB)}, {s(sT1)}")
    A(f"s_lshl_b32 {s(sT1)}, {s(sBb)}, 11")
    A(f"s_add_u32 {s(sB)}, {s(sB)}, {s(sT1)}")
    A(f"s_add_u32 {s(sB)}, {s(sB)}, {WS_HF}")
    A(f"buffer_load_dwordx4 {v(hr,4)}, {v(vL16)}, {s(sO,4)}, {s(sB)} offen")
    A(f"buffer_load_dwordx4 {v(hr+4,4)}, {v(vL16)}, {s(sO,4)}, {s(sB)} offen offset:1024")
    A(f"s_lshl_b32 {s(sT0)}, {s(sCt)}, 7")
    A(f"s_lshl_b32 {s(sT1)}, {s(sBb)}, 6")
    A(f"s_add_u32 {s(sT0)}, {s(sT0)}, {s(sT1)}")
    A(f"v_lshlrev_b32 {v(vT0)}, 3, {v(vHf)}")
    for a_ in range(4):
        A(f"buffer_load_dwordx2 {v(b2r+2*a_,2)}, {v(vT0)}, {s(sB2,4)}, {s(sT0)} offen offset:{a_*16}")
    A(f"s_mul_i32 {s(sA0)}, {s(sRt)}, {2*112*1024}")
    A(f"s_mul_i32 {s(sT0)}, {s(sW)}, {28*1024}")
    A(f"s_add_u32 {s(sA0)}, {s(sA0)}, {s(sT0)}")
    A(f"s_add_u32 {s(sA0)}, {s(sA0)}, {WS_MF}")
    A(f"s_add_u32 {s(sA1)}, {s(sA0)}, {112*1024}")
    def lda(n):
        for r, sa in ((0, sA0), (1, sA1)):
            if n % 4 == 0 and n:
                A(f"s_add_u32 {s(sa)}, {s(sa)}, 4096")
            A(f"buffer_load_dwordx4 {v(Af[n % NW][r],4)}, {v(vL16)}, {s(sO,4)}, {s(sa)} offen offset:{(n&3)*1024}")
    for n in range(NW): lda(n)
    tr_pi_base(A, vB, vLane, vHf, vT0, vT1)
    A(f"s_lshl_b32 {s(sT0)}, {s(sW)}, 15")
    A(f"v_add_u32 {v(vB)}, {s(sT0)}, {v(vB)}")
    def rd(n):
        c, i = n >> 2, n & 3
        for b in range(2):
            o = W2 + (c & 3) * 8192 + i * 2048 + b * 512
            A(f"ds_read_b64_tr_b16 {v(Bf[n&1][b],2)}, {v(vB)} offset:{o}")
            A(f"ds_read_b64_tr_b16 {v(Bf[n&1][b]+2,2)}, {v(vB)} offset:{o+1024}")
    K.stamp()
    A("s_barrier")
    K.stamp()
    rd(0)
    for n in range(28):
        if n + 1 < 28:
            if (n + 1) % 4 == 0:
                A("s_waitcnt lgkmcnt(0)")
                A("s_barrier")
                if n + 1 == 12: K.stamp()
            rd(n + 1)
            A("s_waitcnt lgkmcnt(4)")
        else:
            A("s_waitcnt lgkmcnt(0)")
        later = min(n + NW - 1, 27) - n
        A(f"s_waitcnt vmcnt({2*later})")
        for b in range(2):
            for r in range(2):
                t = 2 * b + r
                A(f"v_mfma_f32_32x32x16_bf16 {v(acc[t],16)}, {v(Bf[n&1][b],4)}, {v(Af[n%NW][r],4)}, {'0' if n == 0 else v(acc[t],16)}")
        if n + NW < 28: lda(n + NW)
    K.stamp()
    A("s_barrier")
    out = Af[0][0]
    reduce4(K, acc, RED, sW, vL16, vT0, sT0, out)
    K.stamp()
    un = acc[0]
    for i in range(8):
        A(f"v_lshlrev_b32 {v(un+2*i)}, 16, {v(hr+i)}")
        A(f"v_and_b32 {v(un+2*i+1)}, 0xffff0000, {v(hr+i)}")
    for r in range(16): A(f"v_add_f32 {v(out+r)}, {v(out+r)}, {v(un+r)}")
    for i in range(8):
        A(f"v_lshlrev_b32 {v(un+2*i)}, 16, {v(b2r+i)}")
        A(f"v_and_b32 {v(un+2*i+1)}, 0xffff0000, {v(b2r+i)}")
    for r in range(16): A(f"v_add_f32 {v(out+r)}, {v(out+r)}, {v(un+r)}")
    pk = acc[1]
    for i in range(8): A(f"v_cvt_pk_bf16_f32 {v(pk+i)}, {v(out+2*i)}, {v(out+2*i+1)}")
    for base in (0, 4):
        A(f"v_permlane32_swap_b32 {v(pk+base)}, {v(pk+base+2)}")
        A(f"v_permlane32_swap_b32 {v(pk+base+1)}, {v(pk+base+3)}")
    A(f"s_lshl_b32 {s(sT0)}, {s(sRt)}, 16")
    A(f"s_lshl_b32 {s(sT1)}, {s(sRr)}, 15")
    A(f"s_add_u32 {s(sT0)}, {s(sT0)}, {s(sT1)}")
    A(f"s_lshl_b32 {s(sT1)}, {s(sCt)}, 7")
    A(f"s_add_u32 {s(sT0)}, {s(sT0)}, {s(sT1)}")
    A(f"s_lshl_b32 {s(sT1)}, {s(sBb)}, 6")
    A(f"s_add_u32 {s(sT0)}, {s(sT0)}, {s(sT1)}")
    A(f"v_lshlrev_b32 {v(vT0)}, 10, {v(vTok)}")
    A(f"v_lshl_add_u32 {v(vT0)}, {v(vHf)}, 4, {v(vT0)}")
    A(f"buffer_store_dwordx4 {v(pk,4)}, {v(vT0)}, {s(sOu,4)}, {s(sT0)} offen")
    A(f"buffer_store_dwordx4 {v(pk+4,4)}, {v(vT0)}, {s(sOu,4)}, {s(sT0)} offen offset:32")
    K.stamp_out(sO, 4, vT0, vT1)
    K.rt_end(sO, 4, vT0, vT1)
    A.label(END)
    A("s_endpgm")
    print("k5 vgprs", V.hi, "sgprs", S.hi, "lds", K.lds)
    return K

def build(kernels, path):
    hdr = open(f"cdna_kernels/{NAME}.s.ref").read().split("; Override launch")[0]
    out = hdr
    for K in kernels:
        out += f"; @launch kernel={K.name} grid=({K.grid[0]},{K.grid[1]},{K.grid[2]}) block=({K.block[0]},{K.block[1]},{K.block[2]}) lds={K.lds}\n"
    out += '.amdgcn_target "amdgcn-amd-amdhsa--gfx950"\n.text\n'
    kds = ""
    for K in kernels:
        t, kd = K.finish()
        out += t; kds += ".p2align 6\n" + kd
    out += '.section .rodata,"a"\n' + kds
    open(path, "w").write(out)

if __name__ == "__main__":
    if "stamp" in sys.argv: STAMP = True
    if "rt" in sys.argv: RT = True
    FLAGS = set(sys.argv[2:])
    ks = [k1(), k2(1 if 'q1' in FLAGS else 2), k3(), k4(), k5()]
    build(ks, sys.argv[1] if len(sys.argv) > 1 else "out.s")
```

```python
import sys, struct
from dsl import *

NAME = "sequential_preLN__mha_block__mixer_channel_mlp__prompt"
WS_QF = 0
WS_KF = 2 << 20
WS_VF = 4 << 20
WS_KMAX = 6 << 20
WS_OF = 8 << 20
WS_HF = 10 << 20
WS_MF = 12 << 20
WS_HS = (19 << 20) + (512 << 10)
WS_STAMP = 20 << 20
WS_STAMP2 = 22 << 20
WS_SIZE = 24 << 20
STAMP = False
RT = False
FLAGS = set()
def _flags():
    import gen as _g
    return _g.FLAGS | FLAGS
def f2u(x): return struct.unpack('<I', struct.pack('<f', x))[0]
LOG2E = 1.4426950408889634

class Kern:
    def __init__(self, name, grid, block, lds):
        self.name = name; self.grid = grid; self.block = block; self.lds = lds
        self.A = Asm()
        self.V = RegAlloc('v', 1, 256)
        self.S = RegAlloc('s', 3, 100)
        self.accum = None
        self.stamps = []
        import gen as _g; self.dostamp = _g.STAMP or STAMP
    def stamp(self):
        if not self.dostamp: return
        r = 66 + 2 * len(self.stamps)
        assert r + 2 <= 100
        self.S.hi = max(self.S.hi, r + 2)
        self.stamps.append(r)
        self.A(f"s_memtime {s(r,2)}")
    def rt_begin(self):
        import gen as _g
        if not (RT or _g.RT): return
        self.rt0 = self.S.alloc(2)
        self.A(f"s_memrealtime {s(self.rt0,2)}")
        self.mt0 = self.S.alloc(2)
        self.A(f"s_memtime {s(self.mt0,2)}")
    def rt_end(self, sSrd, kidx, vt0, vt1):
        import gen as _g
        if not (RT or _g.RT): return
        A = self.A
        r1 = self.S.alloc(2); m1 = self.S.alloc(2); t = self.S.alloc(); w = self.S.alloc()
        A("s_waitcnt vmcnt(0)")
        A(f"s_memrealtime {s(r1,2)}")
        A(f"s_memtime {s(m1,2)}")
        A("s_mov_b64 exec, -1")
        A(f"v_lshrrev_b32 {v(vt0)}, 6, v0")
        A("s_nop 1")
        A(f"v_readfirstlane_b32 {s(w)}, {v(vt0)}")
        A(f"s_lshl_b32 {s(t)}, s2, 4")
        A(f"s_add_u32 {s(t)}, {s(t)}, {s(w)}")
        A(f"s_lshl_b32 {s(t)}, {s(t)}, 4")
        A(f"s_add_u32 {s(t)}, {s(t)}, {WS_STAMP + 0x40000 + kidx*0x10000}")
        A("s_waitcnt lgkmcnt(0)")
        A(f"s_sub_u32 {s(m1)}, {s(m1)}, {s(self.mt0)}")
        A("s_mov_b64 exec, 1")
        A(f"v_mov_b32 {v(vt1)}, 0")
        for i, r in enumerate((self.rt0, r1, m1)):
            A(f"v_mov_b32 {v(vt0)}, {s(r)}")
            A(f"buffer_store_dword {v(vt0)}, {v(vt1)}, {s(sSrd,4)}, {s(t)} offen offset:{4*i}")
    def stamp_out(self, sSrd, kidx, vt0, vt1):
        if not self.dostamp: return
        A = self.A
        self.stamp()
        t = self.S.alloc(); w = self.S.alloc()
        A("s_mov_b64 exec, -1")
        A(f"v_lshrrev_b32 {v(vt0)}, 6, v0")
        A("s_nop 1")
        A(f"v_readfirstlane_b32 {s(w)}, {v(vt0)}")
        A(f"s_lshl_b32 {s(t)}, s2, 4")
        A(f"s_add_u32 {s(t)}, {s(t)}, {s(w)}")
        A(f"s_lshl_b32 {s(t)}, {s(t)}, 6")
        A(f"s_add_u32 {s(t)}, {s(t)}, {WS_STAMP2 + kidx*0x40000}")
        A("s_waitcnt lgkmcnt(0)")
        A("s_mov_b64 exec, 1")
        A(f"v_mov_b32 {v(vt1)}, 0")
        for i, r in enumerate(self.stamps):
            A(f"v_mov_b32 {v(vt0)}, {s(r)}")
            A(f"buffer_store_dword {v(vt0)}, {v(vt1)}, {s(sSrd,4)}, {s(t)} offen offset:{4*i}")
    def finish(self, agprs=0):
        self.A.fix_hazards()
        nv = self.V.hi
        acc = (nv + 3) // 4 * 4
        tot = acc + agprs if agprs else nv
        assert acc <= 256 or agprs == 0 or True
        txt = f".globl {self.name}\n.p2align 8\n.type {self.name},@function\n{self.name}:\n" + self.A.text()
        kd = f""".amdhsa_kernel {self.name}
  .amdhsa_next_free_vgpr {tot}
  .amdhsa_next_free_sgpr {max(self.S.hi, 16)}
  .amdhsa_accum_offset {min(acc, 256)}
  .amdhsa_group_segment_fixed_size 0
  .amdhsa_kernarg_size 88
  .amdhsa_user_sgpr_count 2
  .amdhsa_user_sgpr_kernarg_segment_ptr 1
  .amdhsa_system_sgpr_workgroup_id_x 1
.end_amdhsa_kernel
"""
        return txt, kd

def srd(A, sd, sptr, nbytes):
    A(f"s_mov_b32 {s(sd)}, {s(sptr)}")
    A(f"s_and_b32 {s(sd+1)}, {s(sptr+1)}, 0xffff")
    A(f"s_mov_b32 {s(sd+2)}, {nbytes}")
    A(f"s_mov_b32 {s(sd+3)}, 0x20000")

def swap_add(A, x, t, op="v_add_f32"):
    A(f"v_mov_b32 {v(t)}, {v(x)}")
    A(f"v_permlane32_swap_b32 {v(x)}, {v(t)}")
    A(f"{op} {v(x)}, {v(x)}, {v(t)}")

def tr_base(A, vdst, vLane, vHf, t0, t1, hfmul_rows, add=0):
    A(f"v_and_b32 {v(t0)}, 15, {v(vLane)}")
    A(f"v_lshrrev_b32 {v(t1)}, 2, {v(t0)}")
    sh = {8: 3, 4: 2}[hfmul_rows]
    A(f"v_lshl_add_u32 {v(t1)}, {v(vHf)}, {sh}, {v(t1)}")
    A(f"v_lshlrev_b32 {v(t1)}, 6, {v(t1)}")
    A(f"v_and_b32 {v(t0)}, 3, {v(t0)}")
    A(f"v_lshl_add_u32 {v(t1)}, {v(t0)}, 3, {v(t1)}")
    A(f"v_bfe_u32 {v(t0)}, {v(vLane)}, 4, 1")
    A(f"v_lshl_add_u32 {v(vdst)}, {v(t0)}, 5, {v(t1)}")
    if add: A(f"v_add_u32 {v(vdst)}, {add}, {v(vdst)}")

def k1():
    XR = 0; WR = 32768; CS = WR + 4 * 24576; ST = CS + 1536
    K = Kern("k1_qkv_kernel", (256, 1, 1), (768, 1, 1), ST + 2048)
    A, V, S = K.A, K.V, K.S
    END = "K1_END"
    sP = S.alloc(4); sWs = S.alloc(2)
    K.sWs = sWs
    A(f"s_load_dwordx4 {s(sP,4)}, s[0:1], 0")
    A(f"s_load_dwordx2 {s(sWs,2)}, s[0:1], 80")
    A(f"s_cmp_ge_u32 s2, 256")
    A(f"s_cbranch_scc1 {END}")
    K.rt_begin()
    K.stamp()
    sX = S.alloc(4); sWq = S.alloc(4); sO = S.alloc(4)
    sW8, sW, sXcd, sJ, sRt, sHq, sRot, sT0, sT1, sXb, sWb, sLx, sLw, sx, sw, sTt, sCh = [S.alloc() for _ in range(17)]
    vLane, vT0, vT1, vT2, vHf, vTok = [V.alloc() for _ in range(6)]
    A(f"v_lshrrev_b32 {v(vT0)}, 6, v0")
    A(f"v_and_b32 {v(vLane)}, 63, v0")
    A(f"v_readfirstlane_b32 {s(sW8)}, {v(vT0)}")
    A(f"s_and_b32 {s(sXcd)}, s2, 7")
    A(f"s_lshr_b32 {s(sJ)}, s2, 3")
    A(f"s_and_b32 {s(sW)}, {s(sW8)}, 3")
    A(f"s_and_b32 {s(sT0)}, {s(sXcd)}, 3")
    A(f"s_lshl_b32 {s(sT0)}, {s(sT0)}, 3")
    A(f"s_and_b32 {s(sT1)}, {s(sJ)}, 7")
    A(f"s_add_u32 {s(sRt)}, {s(sT0)}, {s(sT1)}")
    A(f"s_lshr_b32 {s(sT0)}, {s(sXcd)}, 2")
    A(f"s_lshl_b32 {s(sT0)}, {s(sT0)}, 2")
    A(f"s_lshr_b32 {s(sHq)}, {s(sJ)}, 3")
    A(f"s_lshl_b32 {s(sRot)}, {s(sHq)}, 1")
    A(f"s_add_u32 {s(sRot)}, {s(sRot)}, {s(sT1)}")
    A(f"s_add_u32 {s(sRot)}, {s(sRot)}, {s(sXcd)}")
    A(f"s_add_u32 {s(sHq)}, {s(sHq)}, {s(sT0)}")
    A(f"s_and_b32 {s(sTt)}, {s(sW)}, 1")
    A(f"s_lshr_b32 {s(sCh)}, {s(sW)}, 1")
    A(f"s_cmp_lt_u32 {s(sW8)}, 4")
    A(f"s_cbranch_scc1 K1_COMPUTE")
    A(f"s_cmp_ge_u32 {s(sW8)}, 8")
    A(f"s_cbranch_scc1 K1_STATS")
    m0_ = V.mark()
    vXoff, vWoff = V.alloc(), V.alloc()
    A(f"s_lshl_b32 {s(sXb)}, {s(sRt)}, 16")
    A(f"s_lshl_b32 {s(sT0)}, {s(sW)}, 13")
    A(f"s_add_u32 {s(sXb)}, {s(sXb)}, {s(sT0)}")
    A(f"s_mul_i32 {s(sWb)}, {s(sW)}, {8*3072}")
    A(f"s_lshl_b32 {s(sT0)}, {s(sHq)}, 7")
    A(f"s_add_u32 {s(sWb)}, {s(sWb)}, {s(sT0)}")
    A(f"s_lshl_b32 {s(sLx)}, {s(sW)}, 10")
    A(f"s_add_u32 {s(sLw)}, {s(sLx)}, {WR}")
    A(f"s_lshl_b32 {s(sT0)}, {s(sTt)}, 2")
    A(f"v_lshrrev_b32 {v(vT0)}, 4, {v(vLane)}")
    A(f"v_or_b32 {v(vT0)}, {s(sT0)}, {v(vT0)}")
    A(f"v_and_b32 {v(vT1)}, 7, {v(vLane)}")
    A(f"v_xor_b32 {v(vT0)}, {v(vT0)}, {v(vT1)}")
    A(f"v_lshlrev_b32 {v(vT0)}, 4, {v(vT0)}")
    A(f"v_lshrrev_b32 {v(vT1)}, 3, {v(vLane)}")
    A(f"v_lshlrev_b32 {v(vT1)}, 10, {v(vT1)}")
    A(f"v_add_u32 {v(vXoff)}, {v(vT0)}, {v(vT1)}")
    A(f"v_bfe_u32 {v(vT0)}, {v(vLane)}, 2, 3")
    A(f"v_mul_u32_u24 {v(vT0)}, 3072, {v(vT0)}")
    A(f"v_and_b32 {v(vT1)}, 3, {v(vLane)}")
    A(f"v_lshl_add_u32 {v(vT0)}, {v(vT1)}, 4, {v(vT0)}")
    A(f"v_lshrrev_b32 {v(vT1)}, 5, {v(vLane)}")
    A(f"v_lshl_add_u32 {v(vWoff)}, {v(vT1)}, 6, {v(vT0)}")
    A("s_waitcnt lgkmcnt(0)")
    srd(A, sX, sP, 2048 * 512 * 2)
    srd(A, sWq, sP + 2, 512 * 1536 * 2)
    def dma_stage(st):
        slot = st & 3
        A(f"s_add_u32 {s(sT0)}, {s(sRot)}, {st}")
        A(f"s_and_b32 {s(sT0)}, {s(sT0)}, 7")
        A(f"s_lshl_b32 {s(sx)}, {s(sT0)}, 7")
        A(f"s_add_u32 {s(sx)}, {s(sx)}, {s(sXb)}")
        A(f"s_mul_i32 {s(sw)}, {s(sT0)}, {64*3072}")
        A(f"s_add_u32 {s(sw)}, {s(sw)}, {s(sWb)}")
        for n in range(2):
            A(f"s_add_u32 m0, {s(sLx)}, {XR + slot*8192 + n*4096}")
            A(f"s_add_u32 {s(sT1)}, {s(sx)}, {n*32768}")
            A(f"buffer_load_dwordx4 {v(vXoff)}, {s(sX,4)}, {s(sT1)} offen lds")
        for b in range(3):
            for n in range(2):
                A(f"s_add_u32 m0, {s(sLw)}, {slot*24576 + b*8192 + n*4096}")
                A(f"s_add_u32 {s(sT1)}, {s(sw)}, {b*1024 + n*32*3072}")
                A(f"buffer_load_dwordx4 {v(vWoff)}, {s(sWq,4)}, {s(sT1)} offen lds")
    dma_stage(0); dma_stage(1)
    A("s_waitcnt vmcnt(8)")
    A("s_barrier")
    dma_stage(2); dma_stage(3)
    for sp in range(1, 8):
        vm = {1: 16, 2: 16, 3: 16, 4: 16, 5: 16, 6: 8, 7: 0}[sp]
        A(f"s_waitcnt vmcnt({vm})")
        A("s_barrier")
        if sp + 3 < 8: dma_stage(sp + 3)
    A("s_endpgm")
    V.release(m0_)
    def x_addrs(vXA):
        A(f"v_lshrrev_b32 {v(vHf)}, 5, {v(vLane)}")
        A(f"v_and_b32 {v(vTok)}, 31, {v(vLane)}")
        A(f"v_lshrrev_b32 {v(vT2)}, 1, {v(vTok)}")
        A(f"v_and_b32 {v(vT2)}, 7, {v(vT2)}")
        A(f"s_lshl_b32 {s(sT1)}, {s(sTt)}, 12")
        for i in range(4):
            A(f"v_add_u32 {v(vT0)}, {2*i}, {v(vHf)}")
            A(f"v_xor_b32 {v(vT0)}, {v(vT0)}, {v(vT2)}")
            A(f"v_lshlrev_b32 {v(vT0)}, 4, {v(vT0)}")
            A(f"v_lshl_add_u32 {v(vT0)}, {v(vTok)}, 7, {v(vT0)}")
            A(f"v_add_u32 {v(vXA[i])}, {s(sT1)}, {v(vT0)}")
    def w_addr(vWA):
        A(f"v_and_b32 {v(vT0)}, 15, {v(vLane)}")
        A(f"v_lshrrev_b32 {v(vT1)}, 2, {v(vT0)}")
        A(f"v_lshlrev_b32 {v(vT1)}, 6, {v(vT1)}")
        A(f"v_lshl_add_u32 {v(vT1)}, {v(vHf)}, 10, {v(vT1)}")
        A(f"v_and_b32 {v(vT0)}, 3, {v(vT0)}")
        A(f"v_lshl_add_u32 {v(vT1)}, {v(vT0)}, 3, {v(vT1)}")
        A(f"v_bfe_u32 {v(vT0)}, {v(vLane)}, 4, 1")
        A(f"v_lshl_add_u32 {v(vT1)}, {v(vT0)}, 5, {v(vT1)}")
        A(f"v_add_u32 {v(vWA)}, {WR}, {v(vT1)}")
    A.label("K1_STATS")
    vXA = [V.alloc() for _ in range(2)]
    Xf = [V.alloc(4) for _ in range(2)]
    un = V.alloc(8); sq = V.alloc(8); sm = V.alloc(8); vMask = V.alloc()
    A(f"v_lshrrev_b32 {v(vHf)}, 5, {v(vLane)}")
    A(f"v_and_b32 {v(vTok)}, 31, {v(vLane)}")
    A(f"v_lshrrev_b32 {v(vT2)}, 1, {v(vTok)}")
    A(f"v_and_b32 {v(vT2)}, 7, {v(vT2)}")
    A(f"s_lshl_b32 {s(sT1)}, {s(sTt)}, 12")
    for jx in range(2):
        A(f"s_lshl_b32 {s(sT0)}, {s(sCh)}, 1")
        A(f"s_add_u32 {s(sT0)}, {s(sT0)}, {4*jx}")
        A(f"v_add_u32 {v(vT0)}, {s(sT0)}, {v(vHf)}")
        A(f"v_xor_b32 {v(vT0)}, {v(vT0)}, {v(vT2)}")
        A(f"v_lshlrev_b32 {v(vT0)}, 4, {v(vT0)}")
        A(f"v_lshl_add_u32 {v(vT0)}, {v(vTok)}, 7, {v(vT0)}")
        A(f"v_add_u32 {v(vXA[jx])}, {s(sT1)}, {v(vT0)}")
    A(f"v_mov_b32 {v(vMask)}, 0xffff0000")
    for i in range(8):
        A(f"v_mov_b32 {v(sq+i)}, 0"); A(f"v_mov_b32 {v(sm+i)}, 0")
    def sstage(st):
        if "nos" in _flags(): return
        slot = st & 3
        for jx in range(2):
            A(f"ds_read_b128 {v(Xf[jx],4)}, {v(vXA[jx])} offset:{XR + slot*8192}")
        for jx in range(2):
            A(f"s_waitcnt lgkmcnt({1-jx})")
            for i in range(4):
                A(f"v_lshlrev_b32 {v(un+2*i)}, 16, {v(Xf[jx]+i)}")
                A(f"v_and_b32 {v(un+2*i+1)}, {v(vMask)}, {v(Xf[jx]+i)}")
            for i in range(8):
                A(f"v_fmac_f32 {v(sq+i)}, {v(un+i)}, {v(un+i)}")
                A(f"v_add_f32 {v(sm+i)}, {v(un+i)}, {v(sm+i)}")
    for st in range(8):
        A("s_barrier")
        sstage(st)
    for L in (sq, sm):
        for st in (4, 2, 1):
            for i in range(st): A(f"v_add_f32 {v(L+i)}, {v(L+i)}, {v(L+i+st)}")
    swap_add(A, sm, vT1)
    swap_add(A, sq, vT2)
    A(f"s_lshl_b32 {s(sT0)}, {s(sW)}, 8")
    A(f"s_add_u32 {s(sT0)}, {s(sT0)}, {ST}")
    A(f"v_lshl_add_u32 {v(vT0)}, {v(vTok)}, 2, {s(sT0)}")
    A(f"ds_write_b32 {v(vT0)}, {v(sm)}")
    A(f"ds_write_b32 {v(vT0)}, {v(sq)} offset:128")
    A("s_waitcnt lgkmcnt(0)")
    A("s_barrier")
    A("s_endpgm")
    V.release(m0_)
    A.label("K1_COMPUTE")
    vXA = [V.alloc() for _ in range(4)]; vWA = [V.alloc() for _ in range(4)]
    acc = [V.alloc(16) for _ in range(3)]
    mk = V.mark()
    csa = [V.alloc(4) for _ in range(3)]; msk = V.alloc(4)
    Xf = [V.alloc(4) for _ in range(2)]
    Wf = [[V.alloc(4) for _ in range(3)] for _ in range(2)]
    A(f"v_lshrrev_b32 {v(vHf)}, 5, {v(vLane)}")
    A(f"v_and_b32 {v(vTok)}, 31, {v(vLane)}")
    A(f"v_lshrrev_b32 {v(vT2)}, 1, {v(vTok)}")
    A(f"v_and_b32 {v(vT2)}, 7, {v(vT2)}")
    A(f"s_lshl_b32 {s(sT1)}, {s(sTt)}, 12")
    for pos in range(4):
        A(f"s_xor_b32 {s(sT0)}, {s(sTt)}, {pos}")
        A(f"s_lshl_b32 {s(sT0)}, {s(sT0)}, 1")
        A(f"v_add_u32 {v(vT0)}, {s(sT0)}, {v(vHf)}")
        A(f"v_xor_b32 {v(vT0)}, {v(vT0)}, {v(vT2)}")
        A(f"v_lshlrev_b32 {v(vT0)}, 4, {v(vT0)}")
        A(f"v_lshl_add_u32 {v(vT0)}, {v(vTok)}, 7, {v(vT0)}")
        A(f"v_add_u32 {v(vXA[pos])}, {s(sT1)}, {v(vT0)}")
    w_addr(vWA[0])
    A(f"s_lshl_b32 {s(sw)}, {s(sCh)}, 9")
    A(f"s_lshl_b32 {s(sT0)}, {s(sTt)}, 11")
    A(f"s_sub_u32 {s(sT1)}, {s(sw)}, {s(sT0)}")
    A(f"s_add_u32 {s(sw)}, {s(sw)}, {s(sT0)}")
    A(f"v_add_u32 {v(vWA[1])}, {s(sT1)}, {v(vWA[0])}")
    A(f"v_add_u32 {v(vWA[0])}, {s(sw)}, {v(vWA[0])}")
    A(f"v_add_u32 {v(vWA[2])}, {2*24576}, {v(vWA[0])}")
    A(f"v_add_u32 {v(vWA[3])}, {2*24576}, {v(vWA[1])}")
    A(f"v_and_b32 {v(vT0)}, 15, {v(vLane)}")
    A(f"v_bfe_u32 {v(vT1)}, {v(vLane)}, 4, 1")
    A(f"v_cmp_eq_u32 vcc, {v(vT0)}, {v(vT1)}")
    A(f"v_mov_b32 {v(vT0)}, 0x3f803f80")
    for i in range(4): A(f"v_cndmask_b32 {v(msk+i)}, 0, {v(vT0)}, vcc")
    def reads(n):
        if "noc" in _flags() or "noread" in _flags(): return
        slot = (n >> 2) & 3; pos = n & 3; bf = n & 1
        A(f"ds_read_b128 {v(Xf[bf],4)}, {v(vXA[pos])} offset:{XR + slot*8192}")
        wa = vWA[(pos & 1) + (2 if slot >= 2 else 0)]
        for b in range(3):
            o = (slot & 1) * 24576 + b * 8192 + pos * 2048
            A(f"ds_read_b64_tr_b16 {v(Wf[bf][b],2)}, {v(wa)} offset:{o}")
            A(f"ds_read_b64_tr_b16 {v(Wf[bf][b]+2,2)}, {v(wa)} offset:{o+256}")
    def compute(n):
        if "noc" in _flags(): return
        bf = n & 1
        c = lambda b: "0" if n == 0 else v(acc[b], 16)
        cs_ = (n & 1) == 0
        def mc(b):
            if cs_: A(f"v_mfma_f32_16x16x32_bf16 {v(csa[b],4)}, {v(Wf[bf][b],4)}, {v(msk,4)}, {'0' if n == 0 else v(csa[b],4)}")
        A(f"v_mfma_f32_32x32x16_bf16 {v(acc[0],16)}, {v(Wf[bf][0],4)}, {v(Xf[bf],4)}, {c(0)}")
        mc(0)
        A(f"v_mfma_f32_32x32x16_bf16 {v(acc[1],16)}, {v(Wf[bf][1],4)}, {v(Xf[bf],4)}, {c(1)}")
        mc(1)
        A(f"v_mfma_f32_32x32x16_bf16 {v(acc[2],16)}, {v(Xf[bf],4)}, {v(Wf[bf][2],4)}, {c(2)}")
        mc(2)
    A("s_waitcnt lgkmcnt(0)")
    srd(A, sO, sWs, WS_SIZE)
    sTile, sHp, sQo, sKo, sVo = [S.alloc() for _ in range(5)]
    sSave = S.alloc(2)
    A(f"s_lshl_b32 {s(sTile)}, {s(sRt)}, 1")
    A(f"s_add_u32 {s(sTile)}, {s(sTile)}, {s(sTt)}")
    A(f"s_lshl_b32 {s(sHp)}, {s(sHq)}, 1")
    A(f"s_add_u32 {s(sHp)}, {s(sHp)}, {s(sCh)}")
    A(f"s_lshl_b32 {s(sT0)}, {s(sHp)}, 17")
    A(f"s_lshl_b32 {s(sT1)}, {s(sTile)}, 10")
    A(f"s_add_u32 {s(sQo)}, {s(sT0)}, {s(sT1)}")
    A(f"s_add_u32 {s(sKo)}, {s(sQo)}, {WS_KF}")
    A(f"s_add_u32 {s(sVo)}, {s(sQo)}, {WS_VF}")
    K.stamp()
    A("s_barrier")
    K.stamp()
    reads(0)
    for n in range(32):
        if n + 1 < 32:
            if (n + 1) % 4 == 0:
                sp = (n + 1) // 4
                A(f"s_waitcnt lgkmcnt(0)")
                A("s_barrier")
                if sp in (2, 4, 6): K.stamp()
            reads(n + 1)
            A("s_waitcnt lgkmcnt(7)")
        else:
            A("s_waitcnt lgkmcnt(0)")
        compute(n)
    K.stamp()
    A(f"v_and_b32 {v(vT0)}, 15, {v(vLane)}")
    A(f"v_lshrrev_b32 {v(vT1)}, 4, {v(vLane)}")
    A(f"v_lshlrev_b32 {v(vT1)}, 4, {v(vT1)}")
    A(f"v_lshl_add_u32 {v(vT1)}, {v(vT0)}, 6, {v(vT1)}")
    A(f"s_mul_i32 {s(sx)}, {s(sTt)}, 768")
    A(f"s_lshl_b32 {s(sw)}, {s(sCh)}, 7")
    A(f"s_add_u32 {s(sx)}, {s(sx)}, {s(sw)}")
    A(f"s_add_u32 {s(sx)}, {s(sx)}, {CS}")
    A(f"v_add_u32 {v(vT1)}, {s(sx)}, {v(vT1)}")
    A(f"v_cmp_gt_u32 vcc, 2, {v(vT0)}")
    A(f"s_and_saveexec_b64 {s(sSave,2)}, vcc")
    for b in range(3): A(f"ds_write_b128 {v(vT1)}, {v(csa[b],4)} offset:{b*256}")
    A(f"s_mov_b64 exec, {s(sSave,2)}")
    A("s_waitcnt lgkmcnt(0)")
    A("s_barrier")
    K.stamp()
    V.release(mk)
    csr = V.alloc(16); csr2 = V.alloc(16); st1 = V.alloc(16); st2 = V.alloc(16)
    vCv, vMean, vRstd, vL16, vRq = [V.alloc() for _ in range(5)]
    A(f"s_lshl_b32 {s(sx)}, {s(sTt)}, 8")
    A(f"s_add_u32 {s(sx)}, {s(sx)}, {ST}")
    A(f"v_lshl_add_u32 {v(vT1)}, {v(vTok)}, 2, {s(sx)}")
    p4 = V.alloc(4)
    A(f"ds_read_b32 {v(p4)}, {v(vT1)}")
    A(f"ds_read_b32 {v(p4+1)}, {v(vT1)} offset:512")
    A(f"ds_read_b32 {v(p4+2)}, {v(vT1)} offset:128")
    A(f"ds_read_b32 {v(p4+3)}, {v(vT1)} offset:640")
    A(f"s_lshl_b32 {s(sw)}, {s(sCh)}, 7")
    A(f"s_add_u32 {s(sw)}, {s(sw)}, {CS}")
    A(f"v_lshl_add_u32 {v(vT0)}, {v(vHf)}, 4, {s(sw)}")
    for a_ in range(4):
        A(f"ds_read_b128 {v(csr+4*a_,4)}, {v(vT0)} offset:{a_*32}")
    for a_ in range(4):
        A(f"ds_read_b128 {v(st1+4*a_,4)}, {v(vT0)} offset:{768+a_*32}")
    A("s_waitcnt lgkmcnt(4)")
    for a_ in range(4):
        A(f"ds_read_b128 {v(csr2+4*a_,4)}, {v(vT0)} offset:{256+a_*32}")
    for a_ in range(4):
        A(f"ds_read_b128 {v(st2+4*a_,4)}, {v(vT0)} offset:{768+256+a_*32}")
    A(f"v_lshl_add_u32 {v(vT1)}, {v(vTok)}, 2, {s(sw)}")
    vCv2 = V.alloc()
    A(f"ds_read_b32 {v(vCv)}, {v(vT1)} offset:512")
    A(f"ds_read_b32 {v(vCv2)}, {v(vT1)} offset:{768+512}")
    A("s_waitcnt lgkmcnt(10)")
    for r in range(16): A(f"v_add_f32 {v(csr+r)}, {v(csr+r)}, {v(st1+r)}")
    A("s_waitcnt lgkmcnt(0)")
    for r in range(16): A(f"v_add_f32 {v(csr2+r)}, {v(csr2+r)}, {v(st2+r)}")
    A(f"v_add_f32 {v(vCv)}, {v(vCv)}, {v(vCv2)}")
    A(f"v_lshlrev_b32 {v(vL16)}, 4, {v(vLane)}")
    pk = V.alloc(8); pk2 = V.alloc(8); pk3 = pk
    vMr = p4 + 1
    A(f"v_add_f32 {v(p4)}, {v(p4)}, {v(p4+1)}")
    A(f"v_add_f32 {v(p4+2)}, {v(p4+2)}, {v(p4+3)}")
    A(f"v_mul_f32 {v(vMean)}, {f2u(1/512.):#x}, {v(p4)}")
    A(f"v_mul_f32 {v(vT1)}, {v(vMean)}, {v(vMean)}")
    A(f"v_mov_b32 {v(vT2)}, {f2u(1/512.):#x}")
    A(f"v_fma_f32 {v(vT1)}, {v(p4+2)}, {v(vT2)}, -{v(vT1)}")
    A(f"v_max_f32 {v(vT1)}, 0, {v(vT1)}")
    A(f"v_add_f32 {v(vT1)}, {f2u(1e-5):#x}, {v(vT1)}")
    A(f"v_rsq_f32 {v(vRstd)}, {v(vT1)}")
    A(f"v_mul_f32 {v(vMr)}, {v(vMean)}, {v(vRstd)}")
    A(f"s_lshl_b32 {s(sx)}, {s(sW)}, 8")
    A(f"s_add_u32 {s(sx)}, {s(sx)}, {ST + 1024}")
    A(f"v_lshl_add_u32 {v(vT1)}, {v(vTok)}, 2, {s(sx)}")
    A(f"ds_write_b32 {v(vT1)}, {v(vMr)}")
    A(f"ds_write_b32 {v(vT1)}, {v(vRstd)} offset:128")
    A(f"v_lshl_add_u32 {v(vT0)}, {v(vHf)}, 4, {s(sx)}")
    A(f"v_mul_f32 {v(vRq)}, {f2u(LOG2E*0.25):#x}, {v(vRstd)}")
    A("s_waitcnt lgkmcnt(0)")
    for a_ in range(4):
        A(f"ds_read_b128 {v(st1+4*a_,4)}, {v(vT0)} offset:{a_*32}")
    for a_ in range(4):
        A(f"ds_read_b128 {v(st2+4*a_,4)}, {v(vT0)} offset:{128+a_*32}")
    for r in range(16):
        A(f"v_fma_f32 {v(acc[0]+r)}, -{v(vMean)}, {v(csr+r)}, {v(acc[0]+r)}")
    for r in range(16):
        A(f"v_mul_f32 {v(acc[0]+r)}, {v(vRq)}, {v(acc[0]+r)}")
    for i in range(8):
        A(f"v_cvt_pk_bf16_f32 {v(pk+i)}, {v(acc[0]+2*i)}, {v(acc[0]+2*i+1)}")
    A(f"buffer_store_dwordx4 {v(pk,4)}, {v(vL16)}, {s(sO,4)}, {s(sQo)} offen")
    A(f"s_add_u32 {s(sT0)}, {s(sQo)}, 65536")
    A(f"buffer_store_dwordx4 {v(pk+4,4)}, {v(vL16)}, {s(sO,4)}, {s(sT0)} offen")
    for r in range(16):
        A(f"v_fma_f32 {v(acc[1]+r)}, -{v(vMean)}, {v(csr2+r)}, {v(acc[1]+r)}")
    for r in range(16):
        A(f"v_mul_f32 {v(acc[1]+r)}, {v(vRstd)}, {v(acc[1]+r)}")
    for i in range(8):
        A(f"v_cvt_pk_bf16_f32 {v(pk2+i)}, {v(acc[1]+2*i)}, {v(acc[1]+2*i+1)}")
    A(f"buffer_store_dwordx4 {v(pk2,4)}, {v(vL16)}, {s(sO,4)}, {s(sKo)} offen")
    A(f"s_add_u32 {s(sT0)}, {s(sKo)}, 65536")
    A(f"buffer_store_dwordx4 {v(pk2+4,4)}, {v(vL16)}, {s(sO,4)}, {s(sT0)} offen")
    A("s_waitcnt lgkmcnt(0)")
    for r in range(16):
        A(f"v_mul_f32 {v(st1+r)}, {v(vCv)}, {v(st1+r)}")
    for r in range(16):
        A(f"v_fma_f32 {v(acc[2]+r)}, {v(acc[2]+r)}, {v(st2+r)}, -{v(st1+r)}")
    for i in range(8):
        A(f"v_cvt_pk_bf16_f32 {v(pk3+i)}, {v(acc[2]+2*i)}, {v(acc[2]+2*i+1)}")
    A(f"v_lshrrev_b32 {v(vT0)}, 4, {v(vTok)}")
    A(f"v_lshlrev_b32 {v(vT0)}, 16, {v(vT0)}")
    A(f"v_lshl_add_u32 {v(vT0)}, {v(vHf)}, 8, {v(vT0)}")
    A(f"v_and_b32 {v(vT1)}, 15, {v(vTok)}")
    A(f"v_lshl_add_u32 {v(vT0)}, {v(vT1)}, 4, {v(vT0)}")
    A(f"buffer_store_dwordx4 {v(pk3,4)}, {v(vT0)}, {s(sO,4)}, {s(sVo)} offen")
    A(f"buffer_store_dwordx4 {v(pk3+4,4)}, {v(vT0)}, {s(sO,4)}, {s(sVo)} offen offset:512")
    K.stamp()
    vN = [V.alloc(), V.alloc()]
    for e in range(2):
        for i in range(4):
            A(f"v_lshlrev_b32 {v(csr+2*i)}, 16, {v(pk2+4*e+i)}")
            A(f"v_and_b32 {v(csr+2*i+1)}, 0xffff0000, {v(pk2+4*e+i)}")
        A(f"v_mul_f32 {v(vN[e])}, {v(csr)}, {v(csr)}")
        for i in range(1, 8): A(f"v_fmac_f32 {v(vN[e])}, {v(csr+i)}, {v(csr+i)}")
    swap_add(A, vN[0], vT2)
    swap_add(A, vN[1], vT1)
    for sh in (8, 4, 2, 1):
        for e in range(2):
            A(f"v_max_f32_dpp {v(vN[e])}, {v(vN[e])}, {v(vN[e])} row_ror:{sh} row_mask:0xf bank_mask:0xf")
    sN = [S.alloc() for _ in range(4)]
    for e in range(2):
        A(f"v_readlane_b32 {s(sN[2*e])}, {v(vN[e])}, 0")
        A(f"v_readlane_b32 {s(sN[2*e+1])}, {v(vN[e])}, 16")
    for e in range(2):
        A(f"s_max_u32 {s(sN[2*e])}, {s(sN[2*e])}, {s(sN[2*e+1])}")
    A(f"s_lshl_b32 {s(sT0)}, {s(sHp)}, 9")
    A(f"s_lshl_b32 {s(sT1)}, {s(sTile)}, 2")
    A(f"s_add_u32 {s(sT0)}, {s(sT0)}, {s(sT1)}")
    A(f"s_add_u32 {s(sT0)}, {s(sT0)}, {WS_KMAX}")
    A(f"v_mov_b32 {v(vN[0])}, {s(sN[0])}")
    A(f"v_mov_b32 {v(vN[1])}, {s(sN[2])}")
    A(f"v_mov_b32 {v(vT1)}, 0")
    A("s_mov_b64 exec, 1")
    A(f"buffer_store_dword {v(vN[0])}, {v(vT1)}, {s(sO,4)}, {s(sT0)} offen")
    A(f"buffer_store_dword {v(vN[1])}, {v(vT1)}, {s(sO,4)}, {s(sT0)} offen offset:256")
    K.stamp_out(sO, 0, vT0, vT1)
    K.rt_end(sO, 0, vT0, vT1)
    A.label(END)
    A("s_endpgm")
    print("k1 vgprs", V.hi, "sgprs", S.hi, "lds", K.lds)
    return K

def wave_max64(A, x, sdst, stmp):
    for sh in (8, 4, 2, 1):
        A(f"v_max_f32_dpp {v(x)}, {v(x)}, {v(x)} row_ror:{sh} row_mask:0xf bank_mask:0xf")
    A(f"v_readlane_b32 {s(sdst)}, {v(x)}, 0")
    for ln in (16, 32, 48):
        A(f"v_readlane_b32 {s(stmp)}, {v(x)}, {ln}")
        A(f"s_max_u32 {s(sdst)}, {s(sdst)}, {s(stmp)}")

def k2(nqb=2):
    ks = nqb
    KR = 0; VR = 65536; ON = 131072; EX = ON + 4608
    K = Kern("k2_attn_kernel", (256, 1, 1), (512, 1, 1), EX)
    A, V, S = K.A, K.V, K.S
    END = "K2_END"
    sWs = S.alloc(2)
    A(f"s_load_dwordx2 {s(sWs,2)}, s[0:1], 80")
    A(f"s_cmp_ge_u32 s2, 256")
    A(f"s_cbranch_scc1 {END}")
    K.rt_begin()
    K.stamp()
    sO = S.alloc(4)
    sW, sXcd, sJ, sHead, sQb, sT0, sT1, sWq, sKh, sHb, sIt, sKm = [S.alloc() for _ in range(12)]
    vLane, vT0, vT1, vT2, vHf, vTok, vL16, vK, vV, vVinc = [V.alloc() for _ in range(10)]
    A(f"v_lshrrev_b32 {v(vT0)}, 6, v0")
    A(f"v_and_b32 {v(vLane)}, 63, v0")
    A(f"v_readfirstlane_b32 {s(sW)}, {v(vT0)}")
    A(f"s_and_b32 {s(sXcd)}, s2, 7")
    A(f"s_lshr_b32 {s(sJ)}, s2, 3")
    A(f"s_and_b32 {s(sT0)}, {s(sJ)}, 3")
    A(f"s_lshl_b32 {s(sHead)}, {s(sXcd)}, 2")
    A(f"s_add_u32 {s(sHead)}, {s(sHead)}, {s(sT0)}")
    A(f"s_lshr_b32 {s(sQb)}, {s(sJ)}, 2")
    if ks == 2:
        A(f"s_and_b32 {s(sWq)}, {s(sW)}, 3")
        A(f"s_lshr_b32 {s(sKh)}, {s(sW)}, 2")
    else:
        A(f"s_mov_b32 {s(sWq)}, {s(sW)}")
        A(f"s_mov_b32 {s(sKh)}, 0")
    A(f"s_lshl_b32 {s(sHb)}, {s(sHead)}, 16")
    A(f"v_lshlrev_b32 {v(vL16)}, 4, {v(vLane)}")
    A("s_waitcnt lgkmcnt(0)")
    srd(A, sO, sWs, WS_SIZE)
    Q = [V.alloc(4) for _ in range(nqb)]
    vKm = V.alloc()
    A(f"s_lshl_b32 {s(sT0)}, {s(sQb)}, 3")
    A(f"s_mul_i32 {s(sT1)}, {s(sWq)}, {nqb}")
    A(f"s_add_u32 {s(sT0)}, {s(sT0)}, {s(sT1)}")
    sQt = S.alloc()
    A(f"s_mov_b32 {s(sQt)}, {s(sT0)}")
    A(f"s_lshl_b32 {s(sT0)}, {s(sT0)}, 10")
    A(f"s_add_u32 {s(sT0)}, {s(sT0)}, {s(sHb)}")
    for b in range(nqb):
        A(f"buffer_load_dwordx4 {v(Q[b],4)}, {v(vL16)}, {s(sO,4)}, {s(sT0)} offen offset:{b*1024}")
    A(f"v_lshlrev_b32 {v(vT0)}, 2, {v(vLane)}")
    A(f"s_lshl_b32 {s(sT0)}, {s(sHead)}, 8")
    A(f"s_add_u32 {s(sT0)}, {s(sT0)}, {WS_KMAX}")
    A(f"buffer_load_dword {v(vKm)}, {v(vT0)}, {s(sO,4)}, {s(sT0)} offen")
    sL, sG = S.alloc(), S.alloc()
    for g in range(4):
        if ks == 2:
            A(f"s_lshl_b32 {s(sL)}, {s(sKh)}, 5")
            A(f"s_lshl_b32 {s(sT0)}, {s(sWq)}, 1")
            A(f"s_add_u32 {s(sL)}, {s(sL)}, {s(sT0)}")
            if g: A(f"s_add_u32 {s(sL)}, {s(sL)}, {8*g}")
        else:
            A(f"s_lshl_b32 {s(sL)}, {s(sW)}, 1")
            if g: A(f"s_add_u32 {s(sL)}, {s(sL)}, {16*g}")
        A(f"s_lshl_b32 {s(sT0)}, {s(sQb)}, 3")
        A(f"s_add_u32 {s(sG)}, {s(sL)}, {s(sT0)}")
        A(f"s_and_b32 {s(sG)}, {s(sG)}, 63")
        A(f"s_lshl_b32 {s(sG)}, {s(sG)}, 10")
        A(f"s_add_u32 {s(sG)}, {s(sG)}, {s(sHb)}")
        A(f"s_lshl_b32 {s(sL)}, {s(sL)}, 10")
        A(f"s_add_u32 m0, {s(sL)}, {KR}")
        A(f"s_add_u32 {s(sT0)}, {s(sG)}, {WS_KF}")
        A(f"buffer_load_dwordx4 {v(vL16)}, {s(sO,4)}, {s(sT0)} offen lds")
        A(f"buffer_load_dwordx4 {v(vL16)}, {s(sO,4)}, {s(sT0)} offen offset:1024 lds")
        A(f"s_add_u32 m0, {s(sL)}, {VR}")
        A(f"s_add_u32 {s(sT0)}, {s(sG)}, {WS_VF}")
        A(f"buffer_load_dwordx4 {v(vL16)}, {s(sO,4)}, {s(sT0)} offen lds")
        A(f"buffer_load_dwordx4 {v(vL16)}, {s(sO,4)}, {s(sT0)} offen offset:1024 lds")
    K.stamp()
    A(f"v_mov_b32 {v(vT1)}, 0x3f803f80")
    A(f"v_lshlrev_b32 {v(vT0)}, 2, v0")
    A(f"v_add_u32 {v(vT0)}, {ON}, {v(vT0)}")
    A(f"ds_write_b32 {v(vT0)}, {v(vT1)}")
    A(f"ds_write_b32 {v(vT0)}, {v(vT1)} offset:2048")
    A(f"v_cmp_gt_u32 vcc, 128, v0")
    sSave = S.alloc(2)
    A(f"s_and_saveexec_b64 {s(sSave,2)}, vcc")
    A(f"ds_write_b32 {v(vT0)}, {v(vT1)} offset:4096")
    A(f"s_mov_b64 exec, {s(sSave,2)}")
    A(f"v_lshrrev_b32 {v(vHf)}, 5, {v(vLane)}")
    A(f"v_and_b32 {v(vTok)}, 31, {v(vLane)}")
    A(f"s_lshl_b32 {s(sT0)}, {s(sKh)}, 15")
    A(f"v_add_u32 {v(vK)}, {s(sT0)}, {v(vL16)}")
    A(f"v_lshlrev_b32 {v(vT0)}, 8, {v(vHf)}")
    A(f"v_lshl_add_u32 {v(vT0)}, {v(vTok)}, 4, {v(vT0)}")
    A(f"s_add_u32 {s(sT0)}, {s(sT0)}, {VR}")
    A(f"v_add_u32 {v(vT0)}, {s(sT0)}, {v(vT0)}")
    A(f"v_subrev_u32 {v(vT1)}, 20, {v(vTok)}")
    A(f"v_cmp_gt_u32 vcc, 8, {v(vT1)}")
    A(f"v_mov_b32 {v(vT1)}, {ON}")
    A(f"v_mov_b32 {v(vT2)}, {ON+64}")
    A(f"v_cndmask_b32 {v(vT1)}, {v(vT1)}, {v(vT2)}, vcc")
    A(f"v_cmp_gt_u32 vcc, 16, {v(vTok)}")
    A(f"v_cndmask_b32 {v(vV)}, {v(vT1)}, {v(vT0)}, vcc")
    A(f"v_mov_b32 {v(vT1)}, 4096")
    A(f"v_cndmask_b32 {v(vVinc)}, 0, {v(vT1)}, vcc")
    Kf = [V.alloc(4) for _ in range(2)]; Vf0 = [V.alloc(4) for _ in range(2)]; Vf1 = [V.alloc(4) for _ in range(2)]
    QB = [dict(S=[V.alloc(16), V.alloc(16)], P=V.alloc(8), O=V.alloc(16), C=V.alloc(16)) for _ in range(nqb)]
    ngrp_after = 12
    A(f"s_waitcnt vmcnt(16)")
    wave_max64(A, vKm, sKm, sT0)
    bad = S.alloc(2)
    for b in range(nqb):
        un = QB[b]["S"][0]
        for i in range(4):
            A(f"v_lshlrev_b32 {v(un+2*i)}, 16, {v(Q[b]+i)}")
            A(f"v_and_b32 {v(un+2*i+1)}, 0xffff0000, {v(Q[b]+i)}")
        A(f"v_mul_f32 {v(vT0)}, {v(un)}, {v(un)}")
        for i in range(1, 8): A(f"v_fmac_f32 {v(vT0)}, {v(un+i)}, {v(un+i)}")
        swap_add(A, vT0, vT1)
        A(f"v_mul_f32 {v(vT0)}, {s(sKm)}, {v(vT0)}")
        A(f"v_sqrt_f32 {v(vT0)}, {v(vT0)}")
        A(f"v_mov_b32 {v(vT1)}, {f2u(0.01):#x}")
        A(f"v_fmac_f32 {v(vT1)}, {f2u(1.01):#x}, {v(vT0)}")
        A(f"v_mov_b32 {v(vT2)}, {f2u(40.0):#x}")
        A(f"v_cmp_nge_f32 vcc, {v(vT2)}, {v(vT1)}")
        if b == 0: A(f"s_mov_b64 {s(bad,2)}, vcc")
        else: A(f"s_or_b64 {s(bad,2)}, {s(bad,2)}, vcc")
        for r in range(16): A(f"v_sub_f32 {v(QB[b]['C']+r)}, 0, {v(vT1)}")
        for r in range(16): A(f"v_mov_b32 {v(QB[b]['O']+r)}, 0")
        for r in range(4, 8): A(f"v_mov_b32 {v(QB[b]['P']+r)}, 0")
    for r in range(4): A(f"v_mov_b32 {v(Vf1[1]+r)}, 0")
    A(f"s_waitcnt vmcnt({ngrp_after}) lgkmcnt(0)")
    A("s_barrier")
    K.stamp()
    A(f"s_cmp_lg_u64 {s(bad,2)}, 0")
    A(f"s_cbranch_scc1 K2_SLOW")
    NT = 64 // ks
    mf = "v_mfma_f32_32x32x16_bf16"
    A(f"ds_read_b128 {v(Kf[0],4)}, {v(vK)}")
    A(f"ds_read_b128 {v(Kf[1],4)}, {v(vK)} offset:1024")
    A(f"ds_read_b128 {v(Vf0[0],4)}, {v(vV)}")
    A("s_waitcnt lgkmcnt(2)")
    for b in range(nqb):
        A(f"{mf} {v(QB[b]['S'][0],16)}, {v(Kf[0],4)}, {v(Q[b],4)}, {v(QB[b]['C'],16)}")
    A(f"s_mov_b32 {s(sIt)}, 0")
    A.label("K2_LOOP")
    A(f"s_cmp_lg_u32 {s(sIt)}, 1")
    A(f"s_cbranch_scc1 K2_NOSYNC")
    A("s_waitcnt vmcnt(0)")
    A("s_barrier")
    A.label("K2_NOSYNC")
    for t in range(4):
        cur, nxt = t & 1, (t + 1) & 1
        A("s_waitcnt lgkmcnt(0)")
        for b in range(nqb):
            q = QB[b]; Sx = q["S"][cur]; Sn = q["S"][nxt]; P = q["P"]; O = q["O"]
            ex = [f"v_exp_f32 {v(Sx+i)}, {v(Sx+i)}" for i in range(16)]
            cv = [f"v_cvt_pk_bf16_f32 {v(P+i)}, {v(Sx+2*i)}, {v(Sx+2*i+1)}" for i in range(8)]
            A(f"{mf} {v(Sn,16)}, {v(Kf[nxt],4)}, {v(Q[b],4)}, {v(q['C'],16)}")
            for x in ex[0:4]: A(x)
            A(cv[0])
            for x in ex[4:6]: A(x)
            A(cv[1])
            A(f"{mf} {v(O,16)}, {v(Vf1[nxt],4)}, {v(P+4,4)}, {v(O,16)}")
            if b == 0:
                A(f"ds_read_b128 {v(Kf[cur],4)}, {v(vK)} offset:{(t+2)*1024}")
                A(f"ds_read_b128 {v(Vf0[nxt],4)}, {v(vV)} offset:{(t+1)*1024}")
                A(f"ds_read_b128 {v(Vf1[cur],4)}, {v(vV)} offset:{t*1024+512}")
            for x in ex[6:8]: A(x)
            A(cv[2])
            for x in ex[8:10]: A(x)
            A(cv[3])
            for x in ex[10:12]: A(x)
            A(cv[4])
            A(f"{mf} {v(O,16)}, {v(Vf0[cur],4)}, {v(P,4)}, {v(O,16)}")
            for x in ex[12:14]: A(x)
            A(cv[5])
            for x in ex[14:16]: A(x)
            A(cv[6])
            A(cv[7])
    A(f"v_add_u32 {v(vK)}, 4096, {v(vK)}")
    A(f"v_add_u32 {v(vV)}, {v(vVinc)}, {v(vV)}")
    A(f"s_add_u32 {s(sIt)}, {s(sIt)}, 1")
    A(f"s_cmp_lt_u32 {s(sIt)}, {NT//4}")
    A(f"s_cbranch_scc1 K2_LOOP")
    A("s_waitcnt lgkmcnt(0)")
    for b in range(nqb):
        A(f"{mf} {v(QB[b]['O'],16)}, {v(Vf1[1],4)}, {v(QB[b]['P']+4,4)}, {v(QB[b]['O'],16)}")
    A("s_branch K2_FIN")
    A.label("K2_SLOW")
    A("s_waitcnt vmcnt(0)")
    A("s_barrier")
    for b in range(nqb):
        A(f"v_mov_b32 {v(QB[b]['C'])}, {f2u(-3.0e38):#x}")
    A(f"s_mov_b32 {s(sIt)}, 0")
    A.label("K2_SLOOP")
    A(f"ds_read_b128 {v(Kf[0],4)}, {v(vK)}")
    A(f"ds_read_b128 {v(Vf0[0],4)}, {v(vV)}")
    A(f"ds_read_b128 {v(Vf1[0],4)}, {v(vV)} offset:512")
    A("s_waitcnt lgkmcnt(0)")
    for b in range(nqb):
        q = QB[b]; Sx = q["S"][0]; P = q["P"]; O = q["O"]; m = q["C"]; mn = q["C"] + 1; al = q["C"] + 2
        A(f"{mf} {v(Sx,16)}, {v(Kf[0],4)}, {v(Q[b],4)}, 0")
        A(f"v_max_f32 {v(mn)}, {v(Sx)}, {v(Sx+1)}")
        for i in range(2, 16): A(f"v_max_f32 {v(mn)}, {v(mn)}, {v(Sx+i)}")
        swap_add(A, mn, vT1, "v_max_f32")
        A(f"v_max_f32 {v(mn)}, {v(mn)}, {v(m)}")
        A(f"v_sub_f32 {v(al)}, {v(m)}, {v(mn)}")
        A(f"v_exp_f32 {v(al)}, {v(al)}")
        A(f"v_mov_b32 {v(m)}, {v(mn)}")
        for i in range(16): A(f"v_sub_f32 {v(Sx+i)}, {v(Sx+i)}, {v(mn)}")
        for i in range(16): A(f"v_exp_f32 {v(Sx+i)}, {v(Sx+i)}")
        for i in range(16): A(f"v_mul_f32 {v(O+i)}, {v(al)}, {v(O+i)}")
        for i in range(8): A(f"v_cvt_pk_bf16_f32 {v(P+i)}, {v(Sx+2*i)}, {v(Sx+2*i+1)}")
        A(f"{mf} {v(O,16)}, {v(Vf0[0],4)}, {v(P,4)}, {v(O,16)}")
        A(f"{mf} {v(O,16)}, {v(Vf1[0],4)}, {v(P+4,4)}, {v(O,16)}")
    A(f"v_add_u32 {v(vK)}, 1024, {v(vK)}")
    A(f"v_lshrrev_b32 {v(vT0)}, 2, {v(vVinc)}")
    A(f"v_add_u32 {v(vV)}, {v(vT0)}, {v(vV)}")
    A(f"s_add_u32 {s(sIt)}, {s(sIt)}, 1")
    A(f"s_cmp_lt_u32 {s(sIt)}, {NT}")
    A(f"s_cbranch_scc1 K2_SLOOP")
    A(f"s_mov_b32 {s(sIt)}, -1")
    A.label("K2_FIN")
    K.stamp()
    if ks == 2:
        vM = [V.alloc(), V.alloc()]
        for b in range(2):
            A(f"v_sub_f32 {v(vM[b])}, 0, {v(QB[b]['C'])}")
        A(f"s_cmp_lg_u32 {s(sIt)}, -1")
        A(f"s_cbranch_scc1 K2_F1")
        for b in range(2):
            A(f"v_mov_b32 {v(vM[b])}, {v(QB[b]['C'])}")
        A.label("K2_F1")
        snd = V.alloc(10); kp = V.alloc(10)
        A(f"s_cmp_eq_u32 {s(sKh)}, 0")
        A(f"s_cbranch_scc1 K2_F2")
        for r in range(9):
            A(f"v_mov_b32 {v(snd+r)}, {v(QB[0]['O']+r)}"); A(f"v_mov_b32 {v(kp+r)}, {v(QB[1]['O']+r)}")
        A(f"v_mov_b32 {v(snd+9)}, {v(vM[0])}"); A(f"v_mov_b32 {v(kp+9)}, {v(vM[1])}")
        A("s_branch K2_F3")
        A.label("K2_F2")
        for r in range(9):
            A(f"v_mov_b32 {v(snd+r)}, {v(QB[1]['O']+r)}"); A(f"v_mov_b32 {v(kp+r)}, {v(QB[0]['O']+r)}")
        A(f"v_mov_b32 {v(snd+9)}, {v(vM[1])}"); A(f"v_mov_b32 {v(kp+9)}, {v(vM[0])}")
        A.label("K2_F3")
        A("s_barrier")
        A(f"s_mul_i32 {s(sT0)}, {s(sW)}, 2560")
        A(f"v_lshlrev_b32 {v(vT0)}, 2, {v(vLane)}")
        A(f"v_add_u32 {v(vT0)}, {s(sT0)}, {v(vT0)}")
        for r in range(10): A(f"ds_write_b32 {v(vT0)}, {v(snd+r)} offset:{r*256}")
        A("s_waitcnt lgkmcnt(0)")
        A("s_barrier")
        A(f"s_xor_b32 {s(sT0)}, {s(sW)}, 4")
        A(f"s_mul_i32 {s(sT0)}, {s(sT0)}, 2560")
        A(f"v_lshlrev_b32 {v(vT0)}, 2, {v(vLane)}")
        A(f"v_add_u32 {v(vT0)}, {s(sT0)}, {v(vT0)}")
        for r in range(10): A(f"ds_read_b32 {v(snd+r)}, {v(vT0)} offset:{r*256}")
        A("s_waitcnt lgkmcnt(0)")
        A(f"v_max_f32 {v(vT0)}, {v(kp+9)}, {v(snd+9)}")
        A(f"v_sub_f32 {v(vT1)}, {v(kp+9)}, {v(vT0)}")
        A(f"v_sub_f32 {v(vT2)}, {v(snd+9)}, {v(vT0)}")
        A(f"v_exp_f32 {v(vT1)}, {v(vT1)}")
        A(f"v_exp_f32 {v(vT2)}, {v(vT2)}")
        for r in range(9): A(f"v_mul_f32 {v(kp+r)}, {v(vT1)}, {v(kp+r)}")
        for r in range(9): A(f"v_fmac_f32 {v(kp+r)}, {v(vT2)}, {v(snd+r)}")
        outs = [(kp, None)]
        A(f"s_add_u32 {s(sQt)}, {s(sQt)}, {s(sKh)}")
    else:
        outs = [(QB[0]["O"], None)]
    for (O, _) in outs:
        A(f"v_rcp_f32 {v(vT0)}, {v(O+8)}")
        for r in range(8): A(f"v_mul_f32 {v(O+r)}, {v(vT0)}, {v(O+r)}")
        pk = V.alloc(4)
        for i in range(4): A(f"v_cvt_pk_bf16_f32 {v(pk+i)}, {v(O+2*i)}, {v(O+2*i+1)}")
        A(f"s_lshl_b32 {s(sT0)}, {s(sQt)}, 15")
        A(f"s_lshl_b32 {s(sT1)}, {s(sHead)}, 10")
        A(f"s_add_u32 {s(sT0)}, {s(sT0)}, {s(sT1)}")
        A(f"s_add_u32 {s(sT0)}, {s(sT0)}, {WS_OF}")
        A(f"buffer_store_dwordx4 {v(pk,4)}, {v(vL16)}, {s(sO,4)}, {s(sT0)} offen")
    K.stamp_out(sO, 1, vT0, vT1)
    K.rt_end(sO, 1, vT0, vT1)
    A.label(END)
    A("s_endpgm")
    print("k2 vgprs", V.hi, "sgprs", S.hi, "lds", K.lds)
    return K

def wave_ids(K, sW8, sW, vLane, vT0):
    A = K.A
    A(f"v_lshrrev_b32 {v(vT0)}, 6, v0")
    A(f"v_and_b32 {v(vLane)}, 63, v0")
    A(f"v_readfirstlane_b32 {s(sW8)}, {v(vT0)}")
    A(f"s_and_b32 {s(sW)}, {s(sW8)}, 3")

def w_voff(A, vdst, vLane, pitch, t0, t1):
    A(f"v_bfe_u32 {v(t0)}, {v(vLane)}, 2, 3")
    A(f"v_mul_u32_u24 {v(t0)}, {pitch}, {v(t0)}")
    A(f"v_and_b32 {v(t1)}, 3, {v(vLane)}")
    A(f"v_lshl_add_u32 {v(t0)}, {v(t1)}, 4, {v(t0)}")
    A(f"v_lshrrev_b32 {v(t1)}, 5, {v(vLane)}")
    A(f"v_lshl_add_u32 {v(vdst)}, {v(t1)}, 6, {v(t0)}")

def tr_pi_base(A, vdst, vLane, vHf, t0, t1):
    A(f"v_and_b32 {v(t0)}, 15, {v(vLane)}")
    A(f"v_lshrrev_b32 {v(t1)}, 2, {v(t0)}")
    A(f"v_lshl_add_u32 {v(t1)}, {v(vHf)}, 2, {v(t1)}")
    A(f"v_lshlrev_b32 {v(t1)}, 6, {v(t1)}")
    A(f"v_and_b32 {v(t0)}, 3, {v(t0)}")
    A(f"v_lshl_add_u32 {v(t1)}, {v(t0)}, 3, {v(t1)}")
    A(f"v_bfe_u32 {v(t0)}, {v(vLane)}, 4, 1")
    A(f"v_lshl_add_u32 {v(vdst)}, {v(t0)}, 5, {v(t1)}")

def reduce4(K, acc, RED, sW, vL16, vT0, sT0, out):
    A = K.A
    A(f"s_lshl_b32 {s(sT0)}, {s(sW)}, 12")
    A(f"s_add_u32 {s(sT0)}, {s(sT0)}, {RED}")
    A(f"v_add_u32 {v(vT0)}, {s(sT0)}, {v(vL16)}")
    for t in range(4):
        for q in range(4):
            A(f"ds_write_b128 {v(vT0)}, {v(acc[t]+4*q,4)} offset:{t*16384 + q*1024}")
    A("s_waitcnt lgkmcnt(0)")
    A("s_barrier")
    A(f"s_lshl_b32 {s(sT0)}, {s(sW)}, 14")
    A(f"s_add_u32 {s(sT0)}, {s(sT0)}, {RED}")
    A(f"v_add_u32 {v(vT0)}, {s(sT0)}, {v(vL16)}")
    for p in range(4):
        for q in range(4):
            A(f"ds_read_b128 {v(acc[p]+4*q,4)}, {v(vT0)} offset:{p*4096 + q*1024}")
    A("s_waitcnt lgkmcnt(8)")
    for r in range(16): A(f"v_add_f32 {v(out+r)}, {v(acc[0]+r)}, {v(acc[1]+r)}")
    A("s_waitcnt lgkmcnt(0)")
    for r in range(16): A(f"v_add_f32 {v(acc[2]+r)}, {v(acc[2]+r)}, {v(acc[3]+r)}")
    for r in range(16): A(f"v_add_f32 {v(out+r)}, {v(out+r)}, {v(acc[2]+r)}")

def k3():
    WO = 0; XT = 65536; RED = XT + 8192
    K = Kern("k3_oproj_kernel", (256, 1, 1), (512, 1, 1), RED + 65536)
    A, V, S = K.A, K.V, K.S
    END = "K3_END"
    sP = S.alloc(4); sWs = S.alloc(2)
    A(f"s_load_dwordx2 {s(sP,2)}, s[0:1], 0")
    A(f"s_load_dwordx2 {s(sP+2,2)}, s[0:1], 16")
    A(f"s_load_dwordx2 {s(sWs,2)}, s[0:1], 80")
    A(f"s_cmp_ge_u32 s2, 256")
    A(f"s_cbranch_scc1 {END}")
    K.rt_begin()
    K.stamp()
    sX = S.alloc(4); sWo = S.alloc(4); sO = S.alloc(4)
    sW8, sW, sXcd, sJ, sRt, sCt, sT0, sT1, sB = [S.alloc() for _ in range(9)]
    vLane, vT0, vT1, vT2, vHf, vTok, vL16 = [V.alloc() for _ in range(7)]
    wave_ids(K, sW8, sW, vLane, vT0)
    A(f"s_and_b32 {s(sXcd)}, s2, 7")
    A(f"s_lshr_b32 {s(sJ)}, s2, 3")
    A(f"s_and_b32 {s(sT0)}, {s(sJ)}, 3")
    A(f"s_lshl_b32 {s(sRt)}, {s(sXcd)}, 2")
    A(f"s_add_u32 {s(sRt)}, {s(sRt)}, {s(sT0)}")
    A(f"s_lshr_b32 {s(sCt)}, {s(sJ)}, 2")
    A(f"s_cmp_lt_u32 {s(sW8)}, 4")
    A(f"s_cbranch_scc1 K3_COMPUTE")
    mk0 = V.mark()
    vWoff, vXoff = V.alloc(), V.alloc()
    w_voff(A, vWoff, vLane, 1024, vT0, vT1)
    A(f"s_and_b32 {s(sT0)}, {s(sW)}, 1")
    A(f"s_lshl_b32 {s(sT0)}, {s(sT0)}, 2")
    A(f"v_lshrrev_b32 {v(vT0)}, 4, {v(vLane)}")
    A(f"v_or_b32 {v(vT0)}, {s(sT0)}, {v(vT0)}")
    A(f"v_and_b32 {v(vT1)}, 7, {v(vLane)}")
    A(f"v_xor_b32 {v(vT0)}, {v(vT0)}, {v(vT1)}")
    A(f"v_lshlrev_b32 {v(vT0)}, 4, {v(vT0)}")
    A(f"v_lshrrev_b32 {v(vT1)}, 3, {v(vLane)}")
    A(f"v_lshlrev_b32 {v(vT1)}, 10, {v(vT1)}")
    A(f"v_add_u32 {v(vXoff)}, {v(vT0)}, {v(vT1)}")
    A("s_waitcnt lgkmcnt(0)")
    srd(A, sX, sP, 2048 * 512 * 2)
    srd(A, sWo, sP + 2, 512 * 512 * 2)
    A(f"s_lshl_b32 {s(sB)}, {s(sW)}, 17")
    A(f"s_lshl_b32 {s(sT0)}, {s(sCt)}, 7")
    A(f"s_add_u32 {s(sB)}, {s(sB)}, {s(sT0)}")
    A(f"s_lshl_b32 {s(sT1)}, {s(sW)}, 14")
    for g in range(16):
        A(f"s_add_u32 m0, {s(sT1)}, {WO + g*1024}")
        A(f"s_add_u32 {s(sT0)}, {s(sB)}, {g*8192}")
        A(f"buffer_load_dwordx4 {v(vWoff)}, {s(sWo,4)}, {s(sT0)} offen lds")
        if g == 7:
            pass
    A(f"s_lshl_b32 {s(sB)}, {s(sRt)}, 16")
    A(f"s_lshl_b32 {s(sT0)}, {s(sCt)}, 7")
    A(f"s_add_u32 {s(sB)}, {s(sB)}, {s(sT0)}")
    A(f"s_lshl_b32 {s(sT0)}, {s(sW)}, 13")
    A(f"s_add_u32 {s(sB)}, {s(sB)}, {s(sT0)}")
    A(f"s_lshl_b32 {s(sT1)}, {s(sW)}, 10")
    for n in range(2):
        A(f"s_add_u32 m0, {s(sT1)}, {XT + n*4096}")
        A(f"s_add_u32 {s(sT0)}, {s(sB)}, {n*32768}")
        A(f"buffer_load_dwordx4 {v(vXoff)}, {s(sX,4)}, {s(sT0)} offen lds")
    A("s_waitcnt vmcnt(10)")
    A("s_barrier")
    A("s_waitcnt vmcnt(0)")
    A("s_barrier")
    A("s_endpgm")
    V.release(mk0)
    A.label("K3_COMPUTE")
    Af = [[V.alloc(4) for _ in range(8)] for _ in range(2)]
    acc = [V.alloc(16) for _ in range(4)]
    Bf = [[V.alloc(4) for _ in range(2)] for _ in range(2)]
    vB = V.alloc()
    A(f"v_lshlrev_b32 {v(vL16)}, 4, {v(vLane)}")
    A(f"v_lshrrev_b32 {v(vHf)}, 5, {v(vLane)}")
    A(f"v_and_b32 {v(vTok)}, 31, {v(vLane)}")
    A("s_waitcnt lgkmcnt(0)")
    srd(A, sO, sWs, WS_SIZE)
    A(f"s_lshl_b32 {s(sB)}, {s(sRt)}, 16")
    A(f"s_lshl_b32 {s(sT0)}, {s(sW)}, 13")
    A(f"s_add_u32 {s(sB)}, {s(sB)}, {s(sT0)}")
    A(f"s_add_u32 {s(sB)}, {s(sB)}, {WS_OF}")
    for h in range(2):
        for r in range(2):
            A(f"s_add_u32 {s(sT0)}, {s(sB)}, {r*32768 + h*4096}")
            for i in range(4):
                A(f"buffer_load_dwordx4 {v(Af[r][4*h+i],4)}, {v(vL16)}, {s(sO,4)}, {s(sT0)} offen offset:{i*1024}")
    tr_pi_base(A, vB, vLane, vHf, vT0, vT1)
    A(f"s_lshl_b32 {s(sT0)}, {s(sW)}, 14")
    A(f"v_add_u32 {v(vB)}, {s(sT0)}, {v(vB)}")
    def rd(i):
        for b in range(2):
            A(f"ds_read_b64_tr_b16 {v(Bf[i&1][b],2)}, {v(vB)} offset:{WO + i*2048 + b*512}")
            A(f"ds_read_b64_tr_b16 {v(Bf[i&1][b]+2,2)}, {v(vB)} offset:{WO + i*2048 + b*512 + 1024}")
    K.stamp()
    A("s_barrier")
    K.stamp()
    rd(0)
    for i in range(8):
        if i == 3:
            A("s_barrier")
        if i + 1 < 8:
            rd(i + 1)
            A(f"s_waitcnt lgkmcnt(4)")
        else:
            A(f"s_waitcnt lgkmcnt(0)")
        if i == 0: A("s_waitcnt vmcnt(8)")
        if i == 4: A("s_waitcnt vmcnt(0)")
        for b in range(2):
            for r in range(2):
                t = 2 * b + r
                A(f"v_mfma_f32_32x32x16_bf16 {v(acc[t],16)}, {v(Bf[i&1][b],4)}, {v(Af[r][i],4)}, {'0' if i == 0 else v(acc[t],16)}")
    K.stamp()
    xr = V.alloc(8); out = V.alloc(16)
    sBb, sRr = S.alloc(), S.alloc()
    A(f"s_lshr_b32 {s(sBb)}, {s(sW)}, 1")
    A(f"s_and_b32 {s(sRr)}, {s(sW)}, 1")
    A(f"v_lshrrev_b32 {v(vT2)}, 1, {v(vTok)}")
    A(f"v_and_b32 {v(vT2)}, 7, {v(vT2)}")
    A(f"s_lshl_b32 {s(sT0)}, {s(sRr)}, 12")
    A(f"s_add_u32 {s(sT0)}, {s(sT0)}, {XT}")
    A(f"v_lshlrev_b32 {v(vT1)}, 7, {v(vTok)}")
    A(f"v_lshl_add_u32 {v(vT1)}, {v(vHf)}, 3, {v(vT1)}")
    A(f"v_add_u32 {v(vT1)}, {s(sT0)}, {v(vT1)}")
    A(f"s_lshl_b32 {s(sT1)}, {s(sBb)}, 2")
    for a_ in range(4):
        A(f"s_add_u32 {s(sT0)}, {s(sT1)}, {a_}")
        A(f"v_xor_b32 {v(vT0)}, {s(sT0)}, {v(vT2)}")
        A(f"v_lshl_add_u32 {v(vT0)}, {v(vT0)}, 4, {v(vT1)}")
        A(f"ds_read_b64 {v(xr+2*a_,2)}, {v(vT0)}")
    reduce4(K, acc, RED, sW, vL16, vT0, sT0, out)
    K.stamp()
    un = acc[0]
    for i in range(8):
        A(f"v_lshlrev_b32 {v(un+2*i)}, 16, {v(xr+i)}")
        A(f"v_and_b32 {v(un+2*i+1)}, 0xffff0000, {v(xr+i)}")
    for r in range(16): A(f"v_add_f32 {v(out+r)}, {v(out+r)}, {v(un+r)}")
    pk = acc[1]
    for i in range(8): A(f"v_cvt_pk_bf16_f32 {v(pk+i)}, {v(out+2*i)}, {v(out+2*i+1)}")
    A(f"s_lshl_b32 {s(sT0)}, {s(sRt)}, 1")
    A(f"s_add_u32 {s(sT0)}, {s(sT0)}, {s(sRr)}")
    A(f"s_lshl_b32 {s(sB)}, {s(sT0)}, 15")
    A(f"s_lshl_b32 {s(sT1)}, {s(sCt)}, 12")
    A(f"s_add_u32 {s(sB)}, {s(sB)}, {s(sT1)}")
    A(f"s_lshl_b32 {s(sT1)}, {s(sBb)}, 11")
    A(f"s_add_u32 {s(sB)}, {s(sB)}, {s(sT1)}")
    A(f"s_add_u32 {s(sB)}, {s(sB)}, {WS_HF}")
    A(f"buffer_store_dwordx4 {v(pk,4)}, {v(vL16)}, {s(sO,4)}, {s(sB)} offen")
    A(f"buffer_store_dwordx4 {v(pk+4,4)}, {v(vL16)}, {s(sO,4)}, {s(sB)} offen offset:1024")
    for i in range(8):
        A(f"v_lshlrev_b32 {v(un+2*i)}, 16, {v(pk+i)}")
        A(f"v_and_b32 {v(un+2*i+1)}, 0xffff0000, {v(pk+i)}")
    st = V.alloc(2)
    A(f"v_add_f32 {v(st)}, {v(un)}, {v(un+1)}")
    A(f"v_mul_f32 {v(st+1)}, {v(un)}, {v(un)}")
    A(f"v_fmac_f32 {v(st+1)}, {v(un+1)}, {v(un+1)}")
    for r in range(2, 16):
        A(f"v_add_f32 {v(st)}, {v(st)}, {v(un+r)}")
        A(f"v_fmac_f32 {v(st+1)}, {v(un+r)}, {v(un+r)}")
    swap_add(A, st, vT1)
    swap_add(A, st + 1, vT2)
    A(f"s_lshl_b32 {s(sT0)}, {s(sT0)}, 12")
    A(f"s_lshl_b32 {s(sT1)}, {s(sCt)}, 9")
    A(f"s_add_u32 {s(sT0)}, {s(sT0)}, {s(sT1)}")
    A(f"s_lshl_b32 {s(sT1)}, {s(sBb)}, 8")
    A(f"s_add_u32 {s(sT0)}, {s(sT0)}, {s(sT1)}")
    A(f"s_add_u32 {s(sT0)}, {s(sT0)}, {WS_HS}")
    A(f"v_lshlrev_b32 {v(vT0)}, 3, {v(vTok)}")
    A("s_mov_b32 exec_hi, 0")
    A(f"buffer_store_dwordx2 {v(st,2)}, {v(vT0)}, {s(sO,4)}, {s(sT0)} offen")
    K.stamp_out(sO, 2, vT0, vT1)
    K.rt_end(sO, 2, vT0, vT1)
    A.label(END)
    A("s_endpgm")
    print("k3 vgprs", V.hi, "sgprs", S.hi, "lds", K.lds)
    return K

def k4():
    W1 = 0; CS = 131072; BI = CS + 4 * 512 * 1;
    BI = CS + 2048
    K = Kern("k4_mlp1_kernel", (256, 1, 1), (512, 1, 1), BI + 512)
    A, V, S = K.A, K.V, K.S
    END = "K4_END"
    sP = S.alloc(4); sWs = S.alloc(2)
    A(f"s_load_dwordx4 {s(sP,4)}, s[0:1], 32")
    A(f"s_load_dwordx2 {s(sWs,2)}, s[0:1], 80")
    sW8, sW, sXcd, sJ, sRt, sCt, sT0, sT1, sB, sRot = [S.alloc() for _ in range(10)]
    A(f"s_and_b32 {s(sXcd)}, s2, 7")
    A(f"s_lshr_b32 {s(sJ)}, s2, 3")
    A(f"s_cmp_ge_u32 {s(sJ)}, 28")
    A(f"s_cbranch_scc1 {END}")
    K.rt_begin()
    K.stamp()
    sW1 = S.alloc(4); sO = S.alloc(4); sB1 = S.alloc(4)
    vLane, vT0, vT1, vT2, vHf, vTok, vL16 = [V.alloc() for _ in range(7)]
    wave_ids(K, sW8, sW, vLane, vT0)
    A(f"s_and_b32 {s(sT0)}, {s(sXcd)}, 3")
    A(f"s_lshl_b32 {s(sT0)}, {s(sT0)}, 2")
    A(f"s_and_b32 {s(sT1)}, {s(sJ)}, 3")
    A(f"s_add_u32 {s(sRt)}, {s(sT0)}, {s(sT1)}")
    A(f"s_lshr_b32 {s(sT0)}, {s(sXcd)}, 2")
    A(f"s_mul_i32 {s(sT0)}, {s(sT0)}, 7")
    A(f"s_lshr_b32 {s(sCt)}, {s(sJ)}, 2")
    A(f"s_add_u32 {s(sCt)}, {s(sCt)}, {s(sT0)}")
    A(f"s_cmp_lt_u32 {s(sW8)}, 4")
    A(f"s_cbranch_scc1 K4_COMPUTE")
    mk0 = V.mark()
    vWoff = V.alloc()
    w_voff(A, vWoff, vLane, 3584, vT0, vT1)
    A("s_waitcnt lgkmcnt(0)")
    srd(A, sW1, sP, 512 * 1792 * 2)
    A(f"s_mul_i32 {s(sB)}, {s(sW)}, {32*3584}")
    A(f"s_lshl_b32 {s(sT0)}, {s(sCt)}, 8")
    A(f"s_add_u32 {s(sB)}, {s(sB)}, {s(sT0)}")
    A(f"s_lshl_b32 {s(sT1)}, {s(sW)}, 12")
    def dma(p, c):
        for q in range(4):
            A(f"s_add_u32 m0, {s(sT1)}, {W1 + p*65536 + c*16384 + q*1024}")
            A(f"s_add_u32 {s(sT0)}, {s(sB)}, {(128*c + 8*q)*3584 + p*128}")
            A(f"buffer_load_dwordx4 {v(vWoff)}, {s(sW1,4)}, {s(sT0)} offen lds")
    seq = [(p, c) for p in range(2) for c in range(4)]
    dma(*seq[0]); dma(*seq[1])
    for n in range(8):
        if n + 2 < 8: dma(*seq[n + 2])
        rem = min(8, n + 3) - (n + 1)
        A(f"s_waitcnt vmcnt({4*rem})")
        A("s_barrier")
    A("s_endpgm")
    V.release(mk0)
    A.label("K4_COMPUTE")
    Af = [V.alloc(4) for _ in range(32)]
    acc = [V.alloc(16) for _ in range(4)]
    Bf = [[V.alloc(4) for _ in range(2)] for _ in range(2)]
    csa = [V.alloc(4) for _ in range(4)]; msk = V.alloc(4)
    vB = [V.alloc() for _ in range(4)]
    hs = acc[3]
    A(f"v_lshlrev_b32 {v(vL16)}, 4, {v(vLane)}")
    A(f"v_lshrrev_b32 {v(vHf)}, 5, {v(vLane)}")
    A(f"v_and_b32 {v(vTok)}, 31, {v(vLane)}")
    A("s_waitcnt lgkmcnt(0)")
    srd(A, sO, sWs, WS_SIZE)
    srd(A, sB1, sP + 2, 1792 * 2)
    sR32 = S.alloc()
    A(f"s_lshl_b32 {s(sR32)}, {s(sRt)}, 2")
    A(f"s_add_u32 {s(sR32)}, {s(sR32)}, {s(sW)}")
    A(f"s_lshl_b32 {s(sT0)}, {s(sR32)}, 12")
    A(f"s_add_u32 {s(sT0)}, {s(sT0)}, {WS_HS}")
    A(f"v_lshlrev_b32 {v(vT0)}, 3, {v(vTok)}")
    A(f"v_lshl_add_u32 {v(vT0)}, {v(vHf)}, 11, {v(vT0)}")
    for i in range(8):
        A(f"buffer_load_dwordx2 {v(hs+2*i,2)}, {v(vT0)}, {s(sO,4)}, {s(sT0)} offen offset:{i*256}")
    vb1 = V.alloc()
    A(f"v_lshlrev_b32 {v(vT1)}, 2, {v(vLane)}")
    A(f"s_lshl_b32 {s(sT1)}, {s(sCt)}, 8")
    A(f"buffer_load_dword {v(vb1)}, {v(vT1)}, {s(sB1,4)}, {s(sT1)} offen")
    A(f"s_lshl_b32 {s(sB)}, {s(sR32)}, 15")
    A(f"s_add_u32 {s(sB)}, {s(sB)}, {WS_HF}")
    sQ = [S.alloc() for _ in range(4)]
    for q in range(4):
        A(f"s_xor_b32 {s(sQ[q])}, {s(sW)}, {q}")
        A(f"s_lshl_b32 {s(sQ[q])}, {s(sQ[q])}, 10")
    for g in range(8):
        for q in range(4):
            A(f"s_add_u32 {s(sT0)}, {s(sB)}, {s(sQ[q])}")
            A(f"s_add_u32 {s(sT0)}, {s(sT0)}, {g*4096}") if g else None
            A(f"buffer_load_dwordx4 {v(Af[4*g+q],4)}, {v(vL16)}, {s(sO,4)}, {s(sT0)} offen")
    tr_pi_base(A, vB[0], vLane, vHf, vT0, vT1)
    for q in (3, 2, 1, 0):
        A(f"s_lshl_b32 {s(sT0)}, {s(sQ[q])}, 1")
        A(f"v_add_u32 {v(vB[q])}, {s(sT0)}, {v(vB[0])}")
    A(f"v_and_b32 {v(vT0)}, 15, {v(vLane)}")
    A(f"v_bfe_u32 {v(vT1)}, {v(vLane)}, 4, 1")
    A(f"v_cmp_eq_u32 vcc, {v(vT0)}, {v(vT1)}")
    A(f"v_mov_b32 {v(vT0)}, 0x3f803f80")
    for i in range(4): A(f"v_cndmask_b32 {v(msk+i)}, 0, {v(vT0)}, vcc")
    A("s_waitcnt vmcnt(32)")
    vMean, vRs, vMr = V.alloc(), V.alloc(), V.alloc()
    for st_ in (4, 2, 1):
        for i in range(st_):
            A(f"v_add_f32 {v(hs+2*i)}, {v(hs+2*i)}, {v(hs+2*(i+st_))}")
            A(f"v_add_f32 {v(hs+2*i+1)}, {v(hs+2*i+1)}, {v(hs+2*(i+st_)+1)}")
    swap_add(A, hs, vT1)
    swap_add(A, hs + 1, vT2)
    A(f"v_mul_f32 {v(vMean)}, {f2u(1/512.):#x}, {v(hs)}")
    A(f"v_mul_f32 {v(vT1)}, {v(vMean)}, {v(vMean)}")
    A(f"v_mov_b32 {v(vT2)}, {f2u(1/512.):#x}")
    A(f"v_fma_f32 {v(vT1)}, {v(hs+1)}, {v(vT2)}, -{v(vT1)}")
    A(f"v_max_f32 {v(vT1)}, 0, {v(vT1)}")
    A(f"v_add_f32 {v(vT2)}, {f2u(1e-5):#x}, {v(vT1)}")
    A(f"v_rcp_f32 {v(vT0)}, {v(vT2)}")
    A(f"v_rsq_f32 {v(vRs)}, {v(vT2)}")
    A(f"v_mul_f32 {v(vT1)}, {v(vT1)}, {v(vT0)}")
    A(f"v_add_f32 {v(vT1)}, {f2u(1e-5):#x}, {v(vT1)}")
    A(f"v_rsq_f32 {v(vT1)}, {v(vT1)}")
    A(f"v_mul_f32 {v(vRs)}, {v(vRs)}, {v(vT1)}")
    A(f"v_mul_f32 {v(vMr)}, {v(vMean)}, {v(vRs)}")
    A(f"v_lshlrev_b32 {v(hs)}, 16, {v(vb1)}")
    A(f"v_and_b32 {v(hs+1)}, 0xffff0000, {v(vb1)}")
    A(f"v_lshlrev_b32 {v(vT0)}, 3, {v(vLane)}")
    A(f"v_add_u32 {v(vT0)}, {BI}, {v(vT0)}")
    A(f"ds_write_b64 {v(vT0)}, {v(hs,2)}")
    def rd(n):
        p, pos = n >> 5, n & 31
        for b in range(2):
            o = (pos >> 2) * 8192 + b * 512
            base = vB[pos & 3]
            A(f"ds_read_b64_tr_b16 {v(Bf[n&1][b],2)}, {v(base)} offset:{o}")
            A(f"ds_read_b64_tr_b16 {v(Bf[n&1][b]+2,2)}, {v(base)} offset:{o+1024}")
    K.stamp()
    A("s_barrier")
    K.stamp()
    rd(0)
    for n in range(64):
        p, pos = n >> 5, n & 31
        if n + 1 < 64:
            if (n + 1) % 8 == 0:
                A("s_waitcnt lgkmcnt(0)")
                A("s_barrier")
                if n + 1 == 32:
                    K.stamp()
                    for q in range(4): A(f"v_add_u32 {v(vB[q])}, 65536, {v(vB[q])}")
            rd(n + 1)
            A("s_waitcnt lgkmcnt(4)")
        else:
            A("s_waitcnt lgkmcnt(0)")
        if p == 0 and pos % 4 == 0:
            A(f"s_waitcnt vmcnt({28 - pos})")
        for b in range(2):
            t = 2 * p + b
            A(f"v_mfma_f32_32x32x16_bf16 {v(acc[t],16)}, {v(Bf[n&1][b],4)}, {v(Af[pos],4)}, {'0' if pos == 0 else v(acc[t],16)}")
            if pos % 4 == 0:
                A(f"v_mfma_f32_16x16x32_bf16 {v(csa[t],4)}, {v(Bf[n&1][b],4)}, {v(msk,4)}, {'0' if pos == 0 else v(csa[t],4)}")
    K.stamp()
    sSave = S.alloc(2)
    A(f"v_and_b32 {v(vT0)}, 15, {v(vLane)}")
    A(f"v_lshrrev_b32 {v(vT1)}, 4, {v(vLane)}")
    A(f"v_lshlrev_b32 {v(vT1)}, 4, {v(vT1)}")
    A(f"v_lshl_add_u32 {v(vT1)}, {v(vT0)}, 6, {v(vT1)}")
    A(f"s_lshl_b32 {s(sT0)}, {s(sW)}, 9")
    A(f"s_add_u32 {s(sT0)}, {s(sT0)}, {CS}")
    A(f"v_add_u32 {v(vT1)}, {s(sT0)}, {v(vT1)}")
    A(f"v_cmp_gt_u32 vcc, 2, {v(vT0)}")
    A(f"s_and_saveexec_b64 {s(sSave,2)}, vcc")
    for t in range(4): A(f"ds_write_b128 {v(vT1)}, {v(csa[t],4)} offset:{t*128}")
    A(f"s_mov_b64 exec, {s(sSave,2)}")
    A("s_waitcnt lgkmcnt(0)")
    A("s_barrier")
    K.stamp()
    A(f"v_lshlrev_b32 {v(vT0)}, 4, {v(vHf)}")
    A(f"v_add_u32 {v(vT0)}, {CS}, {v(vT0)}")
    c1 = -2.0 * 0.7978845608028654 * LOG2E
    c2 = c1 * 0.044715
    vC1, vC2 = V.alloc(), V.alloc()
    A(f"v_mov_b32 {v(vC1)}, {f2u(c1):#x}")
    A(f"v_mov_b32 {v(vC2)}, {f2u(c2):#x}")
    tmp = Af[0]
    def R(i): return Af[0] + 16 * i
    A(f"s_lshl_b32 {s(sB)}, {s(sR32)}, 0")
    A(f"s_mul_i32 {s(sB)}, {s(sB)}, {112*1024}")
    A(f"s_lshl_b32 {s(sT0)}, {s(sCt)}, 13")
    A(f"s_add_u32 {s(sB)}, {s(sB)}, {s(sT0)}")
    A(f"s_add_u32 {s(sB)}, {s(sB)}, {WS_MF}")
    for t in range(4):
        for pw in range(4):
            for a_ in range(4):
                A(f"ds_read_b128 {v(R(pw)+4*a_,4)}, {v(vT0)} offset:{pw*512 + t*128 + a_*32}")
        for a_ in range(4):
            A(f"ds_read_b128 {v(R(4)+4*a_,4)}, {v(vT0)} offset:{2048 + t*128 + a_*32}")
        A("s_waitcnt lgkmcnt(12)")
        A("s_waitcnt lgkmcnt(4)")
        for r in range(16):
            A(f"v_add_f32 {v(R(0)+r)}, {v(R(0)+r)}, {v(R(1)+r)}")
            A(f"v_add_f32 {v(R(2)+r)}, {v(R(2)+r)}, {v(R(3)+r)}")
        for r in range(16): A(f"v_add_f32 {v(R(0)+r)}, {v(R(0)+r)}, {v(R(2)+r)}")
        A("s_waitcnt lgkmcnt(0)")
        for r in range(16): A(f"v_fma_f32 {v(R(4)+r)}, -{v(vMr)}, {v(R(0)+r)}, {v(R(4)+r)}")
        x = acc[t]
        for r in range(16): A(f"v_fma_f32 {v(x+r)}, {v(x+r)}, {v(vRs)}, {v(R(4)+r)}")
        for r in range(16): A(f"v_mul_f32 {v(R(0)+r)}, {v(x+r)}, {v(x+r)}")
        for r in range(16): A(f"v_fma_f32 {v(R(0)+r)}, {v(R(0)+r)}, {v(vC2)}, {v(vC1)}")
        for r in range(16): A(f"v_mul_f32 {v(R(0)+r)}, {v(R(0)+r)}, {v(x+r)}")
        for r in range(16): A(f"v_exp_f32 {v(R(0)+r)}, {v(R(0)+r)}")
        for r in range(16): A(f"v_add_f32 {v(R(0)+r)}, 1.0, {v(R(0)+r)}")
        for r in range(16): A(f"v_rcp_f32 {v(R(0)+r)}, {v(R(0)+r)}")
        for r in range(16): A(f"v_mul_f32 {v(x+r)}, {v(x+r)}, {v(R(0)+r)}")
        pk = R(5 + (t & 1))
        for i in range(8): A(f"v_cvt_pk_bf16_f32 {v(pk+i)}, {v(x+2*i)}, {v(x+2*i+1)}")
        A(f"buffer_store_dwordx4 {v(pk,4)}, {v(vL16)}, {s(sO,4)}, {s(sB)} offen offset:{t*2048}") if t < 2 else A(f"buffer_store_dwordx4 {v(pk,4)}, {v(vL16)}, {s(sO,4)}, {s(sT1)} offen offset:{(t-2)*2048}")
        A(f"buffer_store_dwordx4 {v(pk+4,4)}, {v(vL16)}, {s(sO,4)}, {s(sB)} offen offset:{t*2048+1024}") if t < 2 else A(f"buffer_store_dwordx4 {v(pk+4,4)}, {v(vL16)}, {s(sO,4)}, {s(sT1)} offen offset:{(t-2)*2048+1024}")
        if t == 1: A(f"s_add_u32 {s(sT1)}, {s(sB)}, 4096")
    K.stamp_out(sO, 3, vT0, vT1)
    K.rt_end(sO, 3, vT0, vT1)
    A.label(END)
    A("s_endpgm")
    print("k4 vgprs", V.hi, "sgprs", S.hi, "lds", K.lds)
    return K

def k5():
    W2 = 0; RED = 0
    K = Kern("k5_mlp2_kernel", (256, 1, 1), (512, 1, 1), 131072)
    A, V, S = K.A, K.V, K.S
    END = "K5_END"
    sP = S.alloc(4); sWs = S.alloc(2); sOut = S.alloc(2)
    A(f"s_load_dwordx4 {s(sP,4)}, s[0:1], 48")
    A(f"s_load_dwordx2 {s(sOut,2)}, s[0:1], 64")
    A(f"s_load_dwordx2 {s(sWs,2)}, s[0:1], 80")
    A(f"s_cmp_ge_u32 s2, 256")
    A(f"s_cbranch_scc1 {END}")
    K.rt_begin()
    K.stamp()
    sW2 = S.alloc(4); sO = S.alloc(4); sB2 = S.alloc(4); sOu = S.alloc(4)
    sW8, sW, sXcd, sJ, sRt, sCt, sT0, sT1, sB = [S.alloc() for _ in range(9)]
    vLane, vT0, vT1, vT2, vHf, vTok, vL16 = [V.alloc() for _ in range(7)]
    wave_ids(K, sW8, sW, vLane, vT0)
    A(f"s_and_b32 {s(sXcd)}, s2, 7")
    A(f"s_lshr_b32 {s(sJ)}, s2, 3")
    A(f"s_and_b32 {s(sT0)}, {s(sJ)}, 3")
    A(f"s_lshl_b32 {s(sRt)}, {s(sXcd)}, 2")
    A(f"s_add_u32 {s(sRt)}, {s(sRt)}, {s(sT0)}")
    A(f"s_lshr_b32 {s(sCt)}, {s(sJ)}, 2")
    A(f"s_cmp_lt_u32 {s(sW8)}, 4")
    A(f"s_cbranch_scc1 K5_COMPUTE")
    mk0 = V.mark()
    vWoff = V.alloc()
    w_voff(A, vWoff, vLane, 1024, vT0, vT1)
    A("s_waitcnt lgkmcnt(0)")
    srd(A, sW2, sP, 1792 * 512 * 2)
    A(f"s_mul_i32 {s(sB)}, {s(sW)}, {448*1024}")
    A(f"s_lshl_b32 {s(sT0)}, {s(sCt)}, 7")
    A(f"s_add_u32 {s(sB)}, {s(sB)}, {s(sT0)}")
    A(f"s_lshl_b32 {s(sT1)}, {s(sW)}, 15")
    def dma(c):
        for q in range(8):
            A(f"s_add_u32 m0, {s(sT1)}, {W2 + (c&3)*8192 + q*1024}")
            A(f"s_add_u32 {s(sT0)}, {s(sB)}, {(64*c + 8*q)*1024}")
            A(f"buffer_load_dwordx4 {v(vWoff)}, {s(sW2,4)}, {s(sT0)} offen lds")
    dma(0); dma(1)
    A("s_waitcnt vmcnt(8)")
    A("s_barrier")
    dma(2); dma(3)
    for sp in range(1, 7):
        issued = min(sp + 2, 6)
        A(f"s_waitcnt vmcnt({8*(issued - sp)})")
        A("s_barrier")
        if sp + 3 < 7: dma(sp + 3)
    A("s_endpgm")
    V.release(mk0)
    A.label("K5_COMPUTE")
    NW = 12
    Af = [[V.alloc(4) for _ in range(2)] for _ in range(NW)]
    acc = [V.alloc(16) for _ in range(4)]
    Bf = [[V.alloc(4) for _ in range(2)] for _ in range(2)]
    vB = V.alloc()
    hr = V.alloc(8); b2r = V.alloc(8)
    A(f"v_lshlrev_b32 {v(vL16)}, 4, {v(vLane)}")
    A(f"v_lshrrev_b32 {v(vHf)}, 5, {v(vLane)}")
    A(f"v_and_b32 {v(vTok)}, 31, {v(vLane)}")
    A("s_waitcnt lgkmcnt(0)")
    srd(A, sO, sWs, WS_SIZE)
    srd(A, sB2, sP + 2, 512 * 2)
    srd(A, sOu, sOut, 2048 * 512 * 2)
    sBb, sRr, sA0, sA1 = [S.alloc() for _ in range(4)]
    A(f"s_lshr_b32 {s(sBb)}, {s(sW)}, 1")
    A(f"s_and_b32 {s(sRr)}, {s(sW)}, 1")
    A(f"s_lshl_b32 {s(sT0)}, {s(sRt)}, 1")
    A(f"s_add_u32 {s(sT0)}, {s(sT0)}, {s(sRr)}")
    A(f"s_lshl_b32 {s(sB)}, {s(sT0)}, 15")
    A(f"s_lshl_b32 {s(sT1)}, {s(sCt)}, 12")
    A(f"s_add_u32 {s(sB)}, {s(sB)}, {s(sT1)}")
    A(f"s_lshl_b32 {s(sT1)}, {s(sBb)}, 11")
    A(f"s_add_u32 {s(sB)}, {s(sB)}, {s(sT1)}")
    A(f"s_add_u32 {s(sB)}, {s(sB)}, {WS_HF}")
    A(f"buffer_load_dwordx4 {v(hr,4)}, {v(vL16)}, {s(sO,4)}, {s(sB)} offen")
    A(f"buffer_load_dwordx4 {v(hr+4,4)}, {v(vL16)}, {s(sO,4)}, {s(sB)} offen offset:1024")
    A(f"s_lshl_b32 {s(sT0)}, {s(sCt)}, 7")
    A(f"s_lshl_b32 {s(sT1)}, {s(sBb)}, 6")
    A(f"s_add_u32 {s(sT0)}, {s(sT0)}, {s(sT1)}")
    A(f"v_lshlrev_b32 {v(vT0)}, 3, {v(vHf)}")
    for a_ in range(4):
        A(f"buffer_load_dwordx2 {v(b2r+2*a_,2)}, {v(vT0)}, {s(sB2,4)}, {s(sT0)} offen offset:{a_*16}")
    A(f"s_mul_i32 {s(sA0)}, {s(sRt)}, {2*112*1024}")
    A(f"s_mul_i32 {s(sT0)}, {s(sW)}, {28*1024}")
    A(f"s_add_u32 {s(sA0)}, {s(sA0)}, {s(sT0)}")
    A(f"s_add_u32 {s(sA0)}, {s(sA0)}, {WS_MF}")
    A(f"s_add_u32 {s(sA1)}, {s(sA0)}, {112*1024}")
    def lda(n):
        for r, sa in ((0, sA0), (1, sA1)):
            if n % 4 == 0 and n:
                A(f"s_add_u32 {s(sa)}, {s(sa)}, 4096")
            A(f"buffer_load_dwordx4 {v(Af[n % NW][r],4)}, {v(vL16)}, {s(sO,4)}, {s(sa)} offen offset:{(n&3)*1024}")
    for n in range(NW): lda(n)
    tr_pi_base(A, vB, vLane, vHf, vT0, vT1)
    A(f"s_lshl_b32 {s(sT0)}, {s(sW)}, 15")
    A(f"v_add_u32 {v(vB)}, {s(sT0)}, {v(vB)}")
    def rd(n):
        c, i = n >> 2, n & 3
        for b in range(2):
            o = W2 + (c & 3) * 8192 + i * 2048 + b * 512
            A(f"ds_read_b64_tr_b16 {v(Bf[n&1][b],2)}, {v(vB)} offset:{o}")
            A(f"ds_read_b64_tr_b16 {v(Bf[n&1][b]+2,2)}, {v(vB)} offset:{o+1024}")
    K.stamp()
    A("s_barrier")
    K.stamp()
    rd(0)
    for n in range(28):
        if n + 1 < 28:
            if (n + 1) % 4 == 0:
                A("s_waitcnt lgkmcnt(0)")
                A("s_barrier")
                if n + 1 == 12: K.stamp()
            rd(n + 1)
            A("s_waitcnt lgkmcnt(4)")
        else:
            A("s_waitcnt lgkmcnt(0)")
        later = min(n + NW - 1, 27) - n
        A(f"s_waitcnt vmcnt({2*later})")
        for b in range(2):
            for r in range(2):
                t = 2 * b + r
                A(f"v_mfma_f32_32x32x16_bf16 {v(acc[t],16)}, {v(Bf[n&1][b],4)}, {v(Af[n%NW][r],4)}, {'0' if n == 0 else v(acc[t],16)}")
        if n + NW < 28: lda(n + NW)
    K.stamp()
    A("s_barrier")
    out = Af[0][0]
    reduce4(K, acc, RED, sW, vL16, vT0, sT0, out)
    K.stamp()
    un = acc[0]
    for i in range(8):
        A(f"v_lshlrev_b32 {v(un+2*i)}, 16, {v(hr+i)}")
        A(f"v_and_b32 {v(un+2*i+1)}, 0xffff0000, {v(hr+i)}")
    for r in range(16): A(f"v_add_f32 {v(out+r)}, {v(out+r)}, {v(un+r)}")
    for i in range(8):
        A(f"v_lshlrev_b32 {v(un+2*i)}, 16, {v(b2r+i)}")
        A(f"v_and_b32 {v(un+2*i+1)}, 0xffff0000, {v(b2r+i)}")
    for r in range(16): A(f"v_add_f32 {v(out+r)}, {v(out+r)}, {v(un+r)}")
    pk = acc[1]
    for i in range(8): A(f"v_cvt_pk_bf16_f32 {v(pk+i)}, {v(out+2*i)}, {v(out+2*i+1)}")
    for base in (0, 4):
        A(f"v_permlane32_swap_b32 {v(pk+base)}, {v(pk+base+2)}")
        A(f"v_permlane32_swap_b32 {v(pk+base+1)}, {v(pk+base+3)}")
    A(f"s_lshl_b32 {s(sT0)}, {s(sRt)}, 16")
    A(f"s_lshl_b32 {s(sT1)}, {s(sRr)}, 15")
    A(f"s_add_u32 {s(sT0)}, {s(sT0)}, {s(sT1)}")
    A(f"s_lshl_b32 {s(sT1)}, {s(sCt)}, 7")
    A(f"s_add_u32 {s(sT0)}, {s(sT0)}, {s(sT1)}")
    A(f"s_lshl_b32 {s(sT1)}, {s(sBb)}, 6")
    A(f"s_add_u32 {s(sT0)}, {s(sT0)}, {s(sT1)}")
    A(f"v_lshlrev_b32 {v(vT0)}, 10, {v(vTok)}")
    A(f"v_lshl_add_u32 {v(vT0)}, {v(vHf)}, 4, {v(vT0)}")
    A(f"buffer_store_dwordx4 {v(pk,4)}, {v(vT0)}, {s(sOu,4)}, {s(sT0)} offen")
    A(f"buffer_store_dwordx4 {v(pk+4,4)}, {v(vT0)}, {s(sOu,4)}, {s(sT0)} offen offset:32")
    K.stamp_out(sO, 4, vT0, vT1)
    K.rt_end(sO, 4, vT0, vT1)
    A.label(END)
    A("s_endpgm")
    print("k5 vgprs", V.hi, "sgprs", S.hi, "lds", K.lds)
    return K

def build(kernels, path):
    hdr = open(f"cdna_kernels/{NAME}.s.ref").read().split("; Override launch")[0]
    out = hdr
    for K in kernels:
        out += f"; @launch kernel={K.name} grid=({K.grid[0]},{K.grid[1]},{K.grid[2]}) block=({K.block[0]},{K.block[1]},{K.block[2]}) lds={K.lds}\n"
    out += '.amdgcn_target "amdgcn-amd-amdhsa--gfx950"\n.text\n'
    kds = ""
    for K in kernels:
        t, kd = K.finish()
        out += t; kds += ".p2align 6\n" + kd
    out += '.section .rodata,"a"\n' + kds
    open(path, "w").write(out)

if __name__ == "__main__":
    if "stamp" in sys.argv: STAMP = True
    if "rt" in sys.argv: RT = True
    FLAGS = set(sys.argv[2:])
    ks = [k1(), k2(1 if 'q1' in FLAGS else 2), k3(), k4(), k5()]
    build(ks, sys.argv[1] if len(sys.argv) > 1 else "out.s")
```

```python
import sys
import gen as G
from gen import *
from dsl import *

WS_CNT = (19 << 20) + (768 << 10)
G.WS_CNT = WS_CNT

def km(nqb=2, prio=True):
    ks = nqb
    KR = 0; VR = 65536; ON = 131072
    WO = 0; XT = 65536; RED = XT + 8192
    W1 = 0; CS = 139264; BI = CS + 2048
    W2 = 0; RED5 = 0
    K = Kern("km_fused_kernel", (256, 1, 1), (512, 1, 1), BI + 512)
    A, V, S = K.A, K.V, K.S
    END = "KM_END"
    sWs = S.alloc(2); sPx = S.alloc(2); sPwo = S.alloc(2); sP1 = S.alloc(4); sP2 = S.alloc(4); sPo = S.alloc(2)
    A(f"s_load_dwordx2 {s(sWs,2)}, s[0:1], 80")
    A(f"s_load_dwordx2 {s(sPx,2)}, s[0:1], 0")
    A(f"s_load_dwordx2 {s(sPwo,2)}, s[0:1], 16")
    A(f"s_load_dwordx4 {s(sP1,4)}, s[0:1], 32")
    A(f"s_load_dwordx4 {s(sP2,4)}, s[0:1], 48")
    A(f"s_load_dwordx2 {s(sPo,2)}, s[0:1], 64")
    A(f"s_cmp_ge_u32 s2, 256")
    A(f"s_cbranch_scc1 {END}")
    K.rt_begin()
    K.stamp()
    sO = S.alloc(4); sRa = S.alloc(4); sRb = S.alloc(4)
    sW8, sW, sXcd, sJ, sT0, sT1, sB, sJ3, sJ2, sCn = [S.alloc() for _ in range(10)]
    sSave = S.alloc(2)
    vLane, vT0, vT1, vT2, vHf, vTok, vL16 = [V.alloc() for _ in range(7)]
    hpk = V.alloc(8)
    wave_ids(K, sW8, sW, vLane, vT0)
    A(f"s_and_b32 {s(sXcd)}, s2, 7")
    A(f"s_lshr_b32 {s(sJ)}, s2, 3")
    A(f"s_and_b32 {s(sJ3)}, {s(sJ)}, 3")
    A(f"s_lshr_b32 {s(sJ2)}, {s(sJ)}, 2")
    A(f"v_lshlrev_b32 {v(vL16)}, 4, {v(vLane)}")
    A(f"v_lshrrev_b32 {v(vHf)}, 5, {v(vLane)}")
    A(f"v_and_b32 {v(vTok)}, 31, {v(vLane)}")
    def signal(off_sgpr):
        A(f"v_mov_b32 {v(vT0)}, 1")
        A(f"v_mov_b32 {v(vT1)}, 0")
        A(f"s_mov_b64 exec, 1")
        A(f"buffer_atomic_add {v(vT0)}, {v(vT1)}, {s(sO,4)}, {s(off_sgpr)} offen sc1")
        A(f"s_mov_b64 exec, -1")
    def poll(off_sgpr, target, tag):
        A(f"v_mov_b32 {v(vT1)}, 0")
        A(f"s_mov_b32 {s(sT1)}, 3000000")
        A.label(f"KM_POLL_{tag}")
        A(f"buffer_load_dword {v(vT0)}, {v(vT1)}, {s(sO,4)}, {s(off_sgpr)} offen sc1")
        A("s_waitcnt vmcnt(0)")
        A(f"v_readfirstlane_b32 {s(sT0)}, {v(vT0)}")
        A(f"s_cmp_ge_u32 {s(sT0)}, {target}")
        A(f"s_cbranch_scc1 KM_PD_{tag}")
        A("s_sleep 1")
        A(f"s_sub_u32 {s(sT1)}, {s(sT1)}, 1")
        A(f"s_cmp_lg_u32 {s(sT1)}, 0")
        A(f"s_cbranch_scc1 KM_POLL_{tag}")
        A.label(f"KM_PD_{tag}")
    def only_wave0(tag, body):
        A(f"s_cmp_lg_u32 {s(sW8)}, 0")
        A(f"s_cbranch_scc1 KM_NW0_{tag}")
        body()
        A.label(f"KM_NW0_{tag}")
    def cnt_off(dst, base, idx_expr):
        idx_expr(dst)
        A(f"s_lshl_b32 {s(dst)}, {s(dst)}, 8")
        A(f"s_add_u32 {s(dst)}, {s(dst)}, {WS_CNT + base}")
    mkV = V.mark(); mkS = S.mark()
    sHead, sWq, sKh, sHb, sIt, sKm, sQt, sL, sG, sL0 = [S.alloc() for _ in range(10)]
    sQb = sJ2
    vK, vV, vVinc = [V.alloc() for _ in range(3)]
    A(f"s_lshl_b32 {s(sHead)}, {s(sXcd)}, 2")
    A(f"s_add_u32 {s(sHead)}, {s(sHead)}, {s(sJ3)}")
    if ks == 2:
        A(f"s_mov_b32 {s(sWq)}, {s(sW)}")
        A(f"s_lshr_b32 {s(sKh)}, {s(sW8)}, 2")
    else:
        A(f"s_mov_b32 {s(sWq)}, {s(sW8)}")
        A(f"s_mov_b32 {s(sKh)}, 0")
    A(f"s_lshl_b32 {s(sHb)}, {s(sHead)}, 16")
    Q = [V.alloc(4) for _ in range(nqb)]
    vKm = V.alloc()
    A(f"s_lshl_b32 {s(sT0)}, {s(sQb)}, 3")
    A(f"s_mul_i32 {s(sT1)}, {s(sWq)}, {nqb}")
    A(f"s_add_u32 {s(sQt)}, {s(sT0)}, {s(sT1)}")
    if ks == 2:
        A(f"s_lshl_b32 {s(sL0)}, {s(sKh)}, 5")
        A(f"s_lshl_b32 {s(sT0)}, {s(sWq)}, 1")
        A(f"s_add_u32 {s(sL0)}, {s(sL0)}, {s(sT0)}")
        gstep = 8
    else:
        A(f"s_lshl_b32 {s(sL0)}, {s(sW8)}, 1")
        gstep = 16
    A(f"s_lshl_b32 {s(sB)}, {s(sQt)}, 10")
    A(f"s_add_u32 {s(sB)}, {s(sB)}, {s(sHb)}")
    A(f"v_lshlrev_b32 {v(vT2)}, 2, {v(vLane)}")
    A("s_waitcnt lgkmcnt(0)")
    srd(A, sO, sWs, WS_SIZE)
    def kv_group(g):
        A(f"s_add_u32 {s(sL)}, {s(sL0)}, {gstep*g}")
        A(f"s_lshl_b32 {s(sT0)}, {s(sQb)}, 3")
        A(f"s_add_u32 {s(sG)}, {s(sL)}, {s(sT0)}")
        A(f"s_and_b32 {s(sG)}, {s(sG)}, 63")
        A(f"s_lshl_b32 {s(sG)}, {s(sG)}, 10")
        A(f"s_add_u32 {s(sG)}, {s(sG)}, {s(sHb)}")
        A(f"s_lshl_b32 {s(sL)}, {s(sL)}, 10")
        A(f"s_add_u32 m0, {s(sL)}, {KR}")
        A(f"s_add_u32 {s(sT0)}, {s(sG)}, {WS_KF}")
        A(f"buffer_load_dwordx4 {v(vL16)}, {s(sO,4)}, {s(sT0)} offen lds")
        A(f"buffer_load_dwordx4 {v(vL16)}, {s(sO,4)}, {s(sT0)} offen offset:1024 lds")
        A(f"s_add_u32 m0, {s(sL)}, {VR}")
        A(f"s_add_u32 {s(sT0)}, {s(sG)}, {WS_VF}")
        A(f"buffer_load_dwordx4 {v(vL16)}, {s(sO,4)}, {s(sT0)} offen lds")
        A(f"buffer_load_dwordx4 {v(vL16)}, {s(sO,4)}, {s(sT0)} offen offset:1024 lds")
    for b in range(nqb):
        A(f"buffer_load_dwordx4 {v(Q[b],4)}, {v(vL16)}, {s(sO,4)}, {s(sB)} offen offset:{b*1024}")
    A(f"s_lshl_b32 {s(sT0)}, {s(sHead)}, 8")
    A(f"s_add_u32 {s(sT0)}, {s(sT0)}, {WS_KMAX}")
    A(f"buffer_load_dword {v(vKm)}, {v(vT2)}, {s(sO,4)}, {s(sT0)} offen")
    kv_group(0)
    K.stamp()
    A(f"v_mov_b32 {v(vT1)}, 0x3f803f80")
    A(f"v_lshlrev_b32 {v(vT0)}, 2, v0")
    A(f"v_add_u32 {v(vT0)}, {ON}, {v(vT0)}")
    A(f"ds_write_b32 {v(vT0)}, {v(vT1)}")
    A(f"ds_write_b32 {v(vT0)}, {v(vT1)} offset:2048")
    A(f"v_cmp_gt_u32 vcc, 128, v0")
    A(f"s_and_saveexec_b64 {s(sSave,2)}, vcc")
    A(f"ds_write_b32 {v(vT0)}, {v(vT1)} offset:4096")
    A(f"s_mov_b64 exec, {s(sSave,2)}")
    A(f"s_lshl_b32 {s(sT0)}, {s(sKh)}, 15")
    A(f"v_add_u32 {v(vK)}, {s(sT0)}, {v(vL16)}")
    A(f"v_lshlrev_b32 {v(vT0)}, 8, {v(vHf)}")
    A(f"v_lshl_add_u32 {v(vT0)}, {v(vTok)}, 4, {v(vT0)}")
    A(f"s_add_u32 {s(sT0)}, {s(sT0)}, {VR}")
    A(f"v_add_u32 {v(vT0)}, {s(sT0)}, {v(vT0)}")
    A(f"v_subrev_u32 {v(vT1)}, 20, {v(vTok)}")
    A(f"v_cmp_gt_u32 vcc, 8, {v(vT1)}")
    A(f"v_mov_b32 {v(vT1)}, {ON}")
    A(f"v_mov_b32 {v(vT2)}, {ON+64}")
    A(f"v_cndmask_b32 {v(vT1)}, {v(vT1)}, {v(vT2)}, vcc")
    A(f"v_cmp_gt_u32 vcc, 16, {v(vTok)}")
    A(f"v_cndmask_b32 {v(vV)}, {v(vT1)}, {v(vT0)}, vcc")
    A(f"v_mov_b32 {v(vT1)}, 4096")
    A(f"v_cndmask_b32 {v(vVinc)}, 0, {v(vT1)}, vcc")
    Kf = [V.alloc(4) for _ in range(2)]; Vf0 = [V.alloc(4) for _ in range(2)]; Vf1 = [V.alloc(4) for _ in range(2)]
    QB = [dict(S=[V.alloc(16), V.alloc(16)], P=V.alloc(8), O=V.alloc(16), C=V.alloc(16)) for _ in range(nqb)]
    for b in range(nqb):
        for r in range(16): A(f"v_mov_b32 {v(QB[b]['O']+r)}, 0")
        for r in range(4, 8): A(f"v_mov_b32 {v(QB[b]['P']+r)}, 0")
    for r in range(4): A(f"v_mov_b32 {v(Vf1[1]+r)}, 0")
    A(f"s_waitcnt vmcnt(4)")
    wave_max64(A, vKm, sKm, sT0)
    bad = S.alloc(2)
    for b in range(nqb):
        un = QB[b]["S"][0]
        for i in range(4):
            A(f"v_lshlrev_b32 {v(un+2*i)}, 16, {v(Q[b]+i)}")
            A(f"v_and_b32 {v(un+2*i+1)}, 0xffff0000, {v(Q[b]+i)}")
        A(f"v_mul_f32 {v(vT0)}, {v(un)}, {v(un)}")
        for i in range(1, 8): A(f"v_fmac_f32 {v(vT0)}, {v(un+i)}, {v(un+i)}")
        swap_add(A, vT0, vT1)
        A(f"v_mul_f32 {v(vT0)}, {s(sKm)}, {v(vT0)}")
        A(f"v_sqrt_f32 {v(vT0)}, {v(vT0)}")
        A(f"v_mov_b32 {v(vT1)}, {f2u(0.01):#x}")
        A(f"v_fmac_f32 {v(vT1)}, {f2u(1.01):#x}, {v(vT0)}")
        A(f"v_mov_b32 {v(vT2)}, {f2u(40.0):#x}")
        A(f"v_cmp_nge_f32 vcc, {v(vT2)}, {v(vT1)}")
        if b == 0: A(f"s_mov_b64 {s(bad,2)}, vcc")
        else: A(f"s_or_b64 {s(bad,2)}, {s(bad,2)}, vcc")
        for r in range(16): A(f"v_sub_f32 {v(QB[b]['C']+r)}, 0, {v(vT1)}")
    A(f"s_waitcnt vmcnt(0) lgkmcnt(0)")
    A("s_barrier")
    K.stamp()
    A(f"s_cmp_lg_u64 {s(bad,2)}, 0")
    A(f"s_cbranch_scc1 KM_SLOW")
    NT = 64 // ks
    mf = "v_mfma_f32_32x32x16_bf16"
    A(f"ds_read_b128 {v(Kf[0],4)}, {v(vK)}")
    A(f"ds_read_b128 {v(Kf[1],4)}, {v(vK)} offset:1024")
    A(f"ds_read_b128 {v(Vf0[0],4)}, {v(vV)}")
    kv_group(1)
    A("s_waitcnt lgkmcnt(2)")
    for b in range(nqb):
        A(f"{mf} {v(QB[b]['S'][0],16)}, {v(Kf[0],4)}, {v(Q[b],4)}, {v(QB[b]['C'],16)}")
    kv_group(2)
    kv_group(3)
    if prio:
        A(f"s_cmp_lt_u32 {s(sW8)}, 4")
        A(f"s_cbranch_scc1 KM_NP")
        A("s_setprio 1")
        A.label("KM_NP")
    A(f"s_mov_b32 {s(sIt)}, 0")
    A.label("KM_LOOP")
    A(f"s_cmp_lg_u32 {s(sIt)}, 1")
    A(f"s_cbranch_scc1 KM_NOSYNC")
    A("s_waitcnt vmcnt(0)")
    A("s_barrier")
    A.label("KM_NOSYNC")
    if prio:
        A(f"s_cmp_lg_u32 {s(sIt)}, {NT//8}")
        A(f"s_cbranch_scc1 KM_NP2")
        A("s_setprio 0")
        A.label("KM_NP2")
    for t in range(4):
        cur, nxt = t & 1, (t + 1) & 1
        A("s_waitcnt lgkmcnt(0)")
        for b in range(nqb):
            q = QB[b]; Sx = q["S"][cur]; Sn = q["S"][nxt]; P = q["P"]; O = q["O"]
            ex = [f"v_exp_f32 {v(Sx+i)}, {v(Sx+i)}" for i in range(16)]
            cv = [f"v_cvt_pk_bf16_f32 {v(P+i)}, {v(Sx+2*i)}, {v(Sx+2*i+1)}" for i in range(8)]
            A(f"{mf} {v(Sn,16)}, {v(Kf[nxt],4)}, {v(Q[b],4)}, {v(q['C'],16)}")
            for x in ex[0:4]: A(x)
            A(cv[0])
            for x in ex[4:6]: A(x)
            A(cv[1])
            A(f"{mf} {v(O,16)}, {v(Vf1[nxt],4)}, {v(P+4,4)}, {v(O,16)}")
            if b == 0:
                A(f"ds_read_b128 {v(Kf[cur],4)}, {v(vK)} offset:{(t+2)*1024}")
                A(f"ds_read_b128 {v(Vf0[nxt],4)}, {v(vV)} offset:{(t+1)*1024}")
                A(f"ds_read_b128 {v(Vf1[cur],4)}, {v(vV)} offset:{t*1024+512}")
            for x in ex[6:8]: A(x)
            A(cv[2])
            for x in ex[8:10]: A(x)
            A(cv[3])
            for x in ex[10:12]: A(x)
            A(cv[4])
            A(f"{mf} {v(O,16)}, {v(Vf0[cur],4)}, {v(P,4)}, {v(O,16)}")
            for x in ex[12:14]: A(x)
            A(cv[5])
            for x in ex[14:16]: A(x)
            A(cv[6])
            A(cv[7])
    A(f"v_add_u32 {v(vK)}, 4096, {v(vK)}")
    A(f"v_add_u32 {v(vV)}, {v(vVinc)}, {v(vV)}")
    A(f"s_add_u32 {s(sIt)}, {s(sIt)}, 1")
    A(f"s_cmp_lt_u32 {s(sIt)}, {NT//4}")
    A(f"s_cbranch_scc1 KM_LOOP")
    A("s_waitcnt lgkmcnt(0)")
    for b in range(nqb):
        A(f"{mf} {v(QB[b]['O'],16)}, {v(Vf1[1],4)}, {v(QB[b]['P']+4,4)}, {v(QB[b]['O'],16)}")
    A("s_branch KM_FIN")
    A.label("KM_SLOW")
    kv_group(1); kv_group(2); kv_group(3)
    A("s_waitcnt vmcnt(0)")
    A("s_barrier")
    for b in range(nqb):
        A(f"v_mov_b32 {v(QB[b]['C'])}, {f2u(-3.0e38):#x}")
    A(f"s_mov_b32 {s(sIt)}, 0")
    A.label("KM_SLOOP")
    A(f"ds_read_b128 {v(Kf[0],4)}, {v(vK)}")
    A(f"ds_read_b128 {v(Vf0[0],4)}, {v(vV)}")
    A(f"ds_read_b128 {v(Vf1[0],4)}, {v(vV)} offset:512")
    A("s_waitcnt lgkmcnt(0)")
    for b in range(nqb):
        q = QB[b]; Sx = q["S"][0]; P = q["P"]; O = q["O"]; m = q["C"]; mn = q["C"] + 1; al = q["C"] + 2
        A(f"{mf} {v(Sx,16)}, {v(Kf[0],4)}, {v(Q[b],4)}, 0")
        A(f"v_max_f32 {v(mn)}, {v(Sx)}, {v(Sx+1)}")
        for i in range(2, 16): A(f"v_max_f32 {v(mn)}, {v(mn)}, {v(Sx+i)}")
        swap_add(A, mn, vT1, "v_max_f32")
        A(f"v_max_f32 {v(mn)}, {v(mn)}, {v(m)}")
        A(f"v_sub_f32 {v(al)}, {v(m)}, {v(mn)}")
        A(f"v_exp_f32 {v(al)}, {v(al)}")
        A(f"v_mov_b32 {v(m)}, {v(mn)}")
        for i in range(16): A(f"v_sub_f32 {v(Sx+i)}, {v(Sx+i)}, {v(mn)}")
        for i in range(16): A(f"v_exp_f32 {v(Sx+i)}, {v(Sx+i)}")
        for i in range(16): A(f"v_mul_f32 {v(O+i)}, {v(al)}, {v(O+i)}")
        for i in range(8): A(f"v_cvt_pk_bf16_f32 {v(P+i)}, {v(Sx+2*i)}, {v(Sx+2*i+1)}")
        A(f"{mf} {v(O,16)}, {v(Vf0[0],4)}, {v(P,4)}, {v(O,16)}")
        A(f"{mf} {v(O,16)}, {v(Vf1[0],4)}, {v(P+4,4)}, {v(O,16)}")
    A(f"v_add_u32 {v(vK)}, 1024, {v(vK)}")
    A(f"v_lshrrev_b32 {v(vT0)}, 2, {v(vVinc)}")
    A(f"v_add_u32 {v(vV)}, {v(vT0)}, {v(vV)}")
    A(f"s_add_u32 {s(sIt)}, {s(sIt)}, 1")
    A(f"s_cmp_lt_u32 {s(sIt)}, {NT}")
    A(f"s_cbranch_scc1 KM_SLOOP")
    A(f"s_mov_b32 {s(sIt)}, -1")
    A.label("KM_FIN")
    if prio: A("s_setprio 0")
    K.stamp()
    if ks == 2:
        vM = [V.alloc(), V.alloc()]
        for b in range(2): A(f"v_sub_f32 {v(vM[b])}, 0, {v(QB[b]['C'])}")
        A(f"s_cmp_lg_u32 {s(sIt)}, -1")
        A(f"s_cbranch_scc1 KM_F1")
        for b in range(2): A(f"v_mov_b32 {v(vM[b])}, {v(QB[b]['C'])}")
        A.label("KM_F1")
        snd = QB[0]["S"][0]; kp = QB[0]["S"][1]
        A(f"s_cmp_eq_u32 {s(sKh)}, 0")
        A(f"s_cbranch_scc1 KM_F2")
        for r in range(9):
            A(f"v_mov_b32 {v(snd+r)}, {v(QB[0]['O']+r)}"); A(f"v_mov_b32 {v(kp+r)}, {v(QB[1]['O']+r)}")
        A(f"v_mov_b32 {v(snd+9)}, {v(vM[0])}"); A(f"v_mov_b32 {v(kp+9)}, {v(vM[1])}")
        A("s_branch KM_F3")
        A.label("KM_F2")
        for r in range(9):
            A(f"v_mov_b32 {v(snd+r)}, {v(QB[1]['O']+r)}"); A(f"v_mov_b32 {v(kp+r)}, {v(QB[0]['O']+r)}")
        A(f"v_mov_b32 {v(snd+9)}, {v(vM[1])}"); A(f"v_mov_b32 {v(kp+9)}, {v(vM[0])}")
        A.label("KM_F3")
        A("s_barrier")
        A(f"s_mul_i32 {s(sT0)}, {s(sW8)}, 2560")
        A(f"v_lshlrev_b32 {v(vT2)}, 2, {v(vLane)}")
        A(f"v_add_u32 {v(vT0)}, {s(sT0)}, {v(vT2)}")
        for r in range(10): A(f"ds_write_b32 {v(vT0)}, {v(snd+r)} offset:{r*256}")
        A("s_waitcnt lgkmcnt(0)")
        A("s_barrier")
        A(f"s_xor_b32 {s(sT0)}, {s(sW8)}, 4")
        A(f"s_mul_i32 {s(sT0)}, {s(sT0)}, 2560")
        A(f"v_add_u32 {v(vT0)}, {s(sT0)}, {v(vT2)}")
        for r in range(10): A(f"ds_read_b32 {v(snd+r)}, {v(vT0)} offset:{r*256}")
        A("s_waitcnt lgkmcnt(0)")
        A(f"v_max_f32 {v(vT0)}, {v(kp+9)}, {v(snd+9)}")
        A(f"v_sub_f32 {v(vT1)}, {v(kp+9)}, {v(vT0)}")
        A(f"v_sub_f32 {v(vT2)}, {v(snd+9)}, {v(vT0)}")
        A(f"v_exp_f32 {v(vT1)}, {v(vT1)}")
        A(f"v_exp_f32 {v(vT2)}, {v(vT2)}")
        for r in range(9): A(f"v_mul_f32 {v(kp+r)}, {v(vT1)}, {v(kp+r)}")
        for r in range(9): A(f"v_fmac_f32 {v(kp+r)}, {v(vT2)}, {v(snd+r)}")
        Of = kp
        A(f"s_add_u32 {s(sQt)}, {s(sQt)}, {s(sKh)}")
    else:
        Of = QB[0]["O"]
    A(f"v_rcp_f32 {v(vT0)}, {v(Of+8)}")
    for r in range(8): A(f"v_mul_f32 {v(Of+r)}, {v(vT0)}, {v(Of+r)}")
    pk = QB[0]["P"]
    for i in range(4): A(f"v_cvt_pk_bf16_f32 {v(pk+i)}, {v(Of+2*i)}, {v(Of+2*i+1)}")
    A(f"s_lshl_b32 {s(sT0)}, {s(sQt)}, 15")
    A(f"s_lshl_b32 {s(sT1)}, {s(sHead)}, 10")
    A(f"s_add_u32 {s(sT0)}, {s(sT0)}, {s(sT1)}")
    A(f"s_add_u32 {s(sT0)}, {s(sT0)}, {WS_OF}")
    A(f"buffer_store_dwordx4 {v(pk,4)}, {v(vL16)}, {s(sO,4)}, {s(sT0)} offen sc1")
    A("s_waitcnt vmcnt(0)")
    A("s_barrier")
    K.stamp()
    V.release(mkV); S.release(mkS)
    sRt, sCt, sBb, sRr, sR128, sCt4 = [S.alloc() for _ in range(6)]
    A(f"s_lshl_b32 {s(sRt)}, {s(sXcd)}, 2")
    A(f"s_add_u32 {s(sRt)}, {s(sRt)}, {s(sJ3)}")
    A(f"s_mov_b32 {s(sCt)}, {s(sJ2)}")
    A(f"s_lshr_b32 {s(sBb)}, {s(sW)}, 1")
    A(f"s_and_b32 {s(sRr)}, {s(sW)}, 1")
    A(f"s_lshl_b32 {s(sR128)}, {s(sXcd)}, 1")
    A(f"s_and_b32 {s(sT0)}, {s(sJ)}, 1")
    A(f"s_add_u32 {s(sR128)}, {s(sR128)}, {s(sT0)}")
    A(f"s_lshr_b32 {s(sCt4)}, {s(sJ)}, 1")
    A(f"s_cmp_lt_u32 {s(sW8)}, 4")
    A(f"s_cbranch_scc1 KM_C3")
    mkL = V.mark()
    vWoff, vXoff = V.alloc(), V.alloc()
    w_voff(A, vWoff, vLane, 1024, vT0, vT1)
    A(f"s_and_b32 {s(sT0)}, {s(sW)}, 1")
    A(f"s_lshl_b32 {s(sT0)}, {s(sT0)}, 2")
    A(f"v_lshrrev_b32 {v(vT0)}, 4, {v(vLane)}")
    A(f"v_or_b32 {v(vT0)}, {s(sT0)}, {v(vT0)}")
    A(f"v_and_b32 {v(vT1)}, 7, {v(vLane)}")
    A(f"v_xor_b32 {v(vT0)}, {v(vT0)}, {v(vT1)}")
    A(f"v_lshlrev_b32 {v(vT0)}, 4, {v(vT0)}")
    A(f"v_lshrrev_b32 {v(vT1)}, 3, {v(vLane)}")
    A(f"v_lshlrev_b32 {v(vT1)}, 10, {v(vT1)}")
    A(f"v_add_u32 {v(vXoff)}, {v(vT0)}, {v(vT1)}")
    srd(A, sRa, sPwo, 512 * 512 * 2)
    srd(A, sRb, sPx, 2048 * 512 * 2)
    A(f"s_lshl_b32 {s(sB)}, {s(sW)}, 17")
    A(f"s_lshl_b32 {s(sT0)}, {s(sCt)}, 7")
    A(f"s_add_u32 {s(sB)}, {s(sB)}, {s(sT0)}")
    A(f"s_lshl_b32 {s(sT1)}, {s(sW)}, 14")
    for g in range(16):
        A(f"s_add_u32 m0, {s(sT1)}, {WO + g*1024}")
        A(f"s_add_u32 {s(sT0)}, {s(sB)}, {g*8192}")
        A(f"buffer_load_dwordx4 {v(vWoff)}, {s(sRa,4)}, {s(sT0)} offen lds")
    A(f"s_lshl_b32 {s(sB)}, {s(sRt)}, 16")
    A(f"s_lshl_b32 {s(sT0)}, {s(sCt)}, 7")
    A(f"s_add_u32 {s(sB)}, {s(sB)}, {s(sT0)}")
    A(f"s_lshl_b32 {s(sT0)}, {s(sW)}, 13")
    A(f"s_add_u32 {s(sB)}, {s(sB)}, {s(sT0)}")
    A(f"s_lshl_b32 {s(sT1)}, {s(sW)}, 10")
    for n in range(2):
        A(f"s_add_u32 m0, {s(sT1)}, {XT + n*4096}")
        A(f"s_add_u32 {s(sT0)}, {s(sB)}, {n*32768}")
        A(f"buffer_load_dwordx4 {v(vXoff)}, {s(sRb,4)}, {s(sT0)} offen lds")
    vW1off = V.alloc()
    w_voff(A, vW1off, vLane, 3584, vT0, vT1)
    srd(A, sRa, sP1, 512 * 1792 * 2)
    srd(A, sRb, sP2, 1792 * 512 * 2)
    sB1, sB2 = S.alloc(), S.alloc()
    A(f"s_mul_i32 {s(sB1)}, {s(sW)}, {32*3584}")
    A(f"s_lshl_b32 {s(sT0)}, {s(sCt4)}, 8")
    A(f"s_add_u32 {s(sB1)}, {s(sB1)}, {s(sT0)}")
    A(f"s_mul_i32 {s(sB2)}, {s(sW)}, {448*1024}")
    A(f"s_lshl_b32 {s(sT0)}, {s(sCt)}, 7")
    A(f"s_add_u32 {s(sB2)}, {s(sB2)}, {s(sT0)}")
    def dma_w1(p):
        A(f"s_lshl_b32 {s(sT1)}, {s(sW)}, 12")
        for c in range(4):
            for q in range(4):
                A(f"s_add_u32 m0, {s(sT1)}, {W1 + p*65536 + c*16384 + q*1024}")
                A(f"s_add_u32 {s(sT0)}, {s(sB1)}, {(128*c + 8*q)*3584 + p*128}")
                A(f"buffer_load_dwordx4 {v(vW1off)}, {s(sRa,4)}, {s(sT0)} offen lds")
    def dma_w2(c):
        A(f"s_lshl_b32 {s(sT1)}, {s(sW)}, 15")
        for q in range(8):
            A(f"s_add_u32 m0, {s(sT1)}, {W2 + (c&3)*8192 + q*1024}")
            A(f"s_add_u32 {s(sT0)}, {s(sB2)}, {(64*c + 8*q)*1024}")
            A(f"buffer_load_dwordx4 {v(vWoff)}, {s(sRb,4)}, {s(sT0)} offen lds")
    A("s_waitcnt vmcnt(0)")
    A("s_barrier")
    A("s_barrier")
    A(f"s_cmp_ge_u32 {s(sJ)}, 28")
    A(f"s_cbranch_scc1 KM_L_NOP4")
    dma_w1(0)
    A("s_barrier")
    A("s_barrier")
    dma_w1(1)
    A("s_waitcnt vmcnt(16)")
    A("s_barrier")
    A("s_waitcnt vmcnt(0)")
    A("s_barrier")
    A("s_barrier")
    for c in range(4): dma_w2(c)
    A("s_barrier")
    A("s_branch KM_L_P5")
    A.label("KM_L_NOP4")
    A("s_barrier")
    A("s_barrier")
    for c in range(4): dma_w2(c)
    A.label("KM_L_P5")
    A("s_waitcnt vmcnt(0)")
    A("s_barrier")
    for y in range(1, 7):
        if y >= 4: A(f"s_waitcnt vmcnt({8*(6-y)})")
        A("s_barrier")
        if y + 3 < 7: dma_w2(y + 3)
    A("s_endpgm")
    V.release(mkL)
    A.label("KM_C3")
    def w0_sync2():
        cnt_off(sCn, 0, lambda d: A(f"s_mov_b32 {s(d)}, {s(sJ2)}"))
        signal(sCn)
        cnt_off(sCn, 0, lambda d: A(f"s_mov_b32 {s(d)}, {s(sXcd)}"))
        poll(sCn, 32, "2")
    only_wave0("2", w0_sync2)
    mkC = V.mark()
    Af = [[V.alloc(4) for _ in range(8)] for _ in range(2)]
    acc = [V.alloc(16) for _ in range(4)]
    Bf = [[V.alloc(4) for _ in range(2)] for _ in range(2)]
    vB = V.alloc()
    tr_pi_base(A, vB, vLane, vHf, vT0, vT1)
    vBl = V.alloc()
    A(f"v_mov_b32 {v(vBl)}, {v(vB)}")
    A(f"s_lshl_b32 {s(sT0)}, {s(sW)}, 14")
    A(f"v_add_u32 {v(vB)}, {s(sT0)}, {v(vB)}")
    A(f"s_lshl_b32 {s(sB)}, {s(sRt)}, 16")
    A(f"s_lshl_b32 {s(sT0)}, {s(sW)}, 13")
    A(f"s_add_u32 {s(sB)}, {s(sB)}, {s(sT0)}")
    A(f"s_add_u32 {s(sB)}, {s(sB)}, {WS_OF}")
    A("s_barrier")
    K.stamp()
    for h in range(2):
        for r in range(2):
            A(f"s_add_u32 {s(sT0)}, {s(sB)}, {r*32768 + h*4096}")
            for i in range(4):
                A(f"buffer_load_dwordx4 {v(Af[r][4*h+i],4)}, {v(vL16)}, {s(sO,4)}, {s(sT0)} offen offset:{i*1024} sc1")
    def rd3(i):
        for b in range(2):
            A(f"ds_read_b64_tr_b16 {v(Bf[i&1][b],2)}, {v(vB)} offset:{WO + i*2048 + b*512}")
            A(f"ds_read_b64_tr_b16 {v(Bf[i&1][b]+2,2)}, {v(vB)} offset:{WO + i*2048 + b*512 + 1024}")
    rd3(0)
    xr = V.alloc(8); out = V.alloc(16)
    A(f"v_lshrrev_b32 {v(vT2)}, 1, {v(vTok)}")
    A(f"v_and_b32 {v(vT2)}, 7, {v(vT2)}")
    A(f"s_lshl_b32 {s(sT0)}, {s(sRr)}, 12")
    A(f"s_add_u32 {s(sT0)}, {s(sT0)}, {XT}")
    A(f"v_lshlrev_b32 {v(vT1)}, 7, {v(vTok)}")
    A(f"v_lshl_add_u32 {v(vT1)}, {v(vHf)}, 3, {v(vT1)}")
    A(f"v_add_u32 {v(vT1)}, {s(sT0)}, {v(vT1)}")
    A(f"s_lshl_b32 {s(sT1)}, {s(sBb)}, 2")
    for a_ in range(4):
        A(f"s_add_u32 {s(sT0)}, {s(sT1)}, {a_}")
        A(f"v_xor_b32 {v(vT0)}, {s(sT0)}, {v(vT2)}")
        A(f"v_lshl_add_u32 {v(vT0)}, {v(vT0)}, 4, {v(vT1)}")
        A(f"ds_read_b64 {v(xr+2*a_,2)}, {v(vT0)}")
    for i in range(8):
        if i + 1 < 8:
            rd3(i + 1)
            A(f"s_waitcnt lgkmcnt(4)")
        else:
            A(f"s_waitcnt lgkmcnt(0)")
        if i == 0: A("s_waitcnt vmcnt(8)")
        if i == 4: A("s_waitcnt vmcnt(0)")
        for b in range(2):
            for r in range(2):
                t = 2 * b + r
                A(f"v_mfma_f32_32x32x16_bf16 {v(acc[t],16)}, {v(Bf[i&1][b],4)}, {v(Af[r][i],4)}, {'0' if i == 0 else v(acc[t],16)}")
    A("s_barrier")
    K.stamp()
    reduce4(K, acc, RED, sW, vL16, vT0, sT0, out)
    un = acc[0]
    for i in range(8):
        A(f"v_lshlrev_b32 {v(un+2*i)}, 16, {v(xr+i)}")
        A(f"v_and_b32 {v(un+2*i+1)}, 0xffff0000, {v(xr+i)}")
    for r in range(16): A(f"v_add_f32 {v(out+r)}, {v(out+r)}, {v(un+r)}")
    for i in range(8): A(f"v_cvt_pk_bf16_f32 {v(hpk+i)}, {v(out+2*i)}, {v(out+2*i+1)}")
    A(f"s_lshl_b32 {s(sT0)}, {s(sRt)}, 1")
    A(f"s_add_u32 {s(sT0)}, {s(sT0)}, {s(sRr)}")
    A(f"s_lshl_b32 {s(sB)}, {s(sT0)}, 15")
    A(f"s_lshl_b32 {s(sT1)}, {s(sCt)}, 12")
    A(f"s_add_u32 {s(sB)}, {s(sB)}, {s(sT1)}")
    A(f"s_lshl_b32 {s(sT1)}, {s(sBb)}, 11")
    A(f"s_add_u32 {s(sB)}, {s(sB)}, {s(sT1)}")
    A(f"s_add_u32 {s(sB)}, {s(sB)}, {WS_HF}")
    A(f"buffer_store_dwordx4 {v(hpk,4)}, {v(vL16)}, {s(sO,4)}, {s(sB)} offen sc1")
    A(f"buffer_store_dwordx4 {v(hpk+4,4)}, {v(vL16)}, {s(sO,4)}, {s(sB)} offen offset:1024 sc1")
    for i in range(8):
        A(f"v_lshlrev_b32 {v(un+2*i)}, 16, {v(hpk+i)}")
        A(f"v_and_b32 {v(un+2*i+1)}, 0xffff0000, {v(hpk+i)}")
    st = V.alloc(2)
    A(f"v_add_f32 {v(st)}, {v(un)}, {v(un+1)}")
    A(f"v_mul_f32 {v(st+1)}, {v(un)}, {v(un)}")
    A(f"v_fmac_f32 {v(st+1)}, {v(un+1)}, {v(un+1)}")
    for r in range(2, 16):
        A(f"v_add_f32 {v(st)}, {v(st)}, {v(un+r)}")
        A(f"v_fmac_f32 {v(st+1)}, {v(un+r)}, {v(un+r)}")
    swap_add(A, st, vT1)
    swap_add(A, st + 1, vT2)
    A(f"s_lshl_b32 {s(sT0)}, {s(sT0)}, 12")
    A(f"s_lshl_b32 {s(sT1)}, {s(sCt)}, 9")
    A(f"s_add_u32 {s(sT0)}, {s(sT0)}, {s(sT1)}")
    A(f"s_lshl_b32 {s(sT1)}, {s(sBb)}, 8")
    A(f"s_add_u32 {s(sT0)}, {s(sT0)}, {s(sT1)}")
    A(f"s_add_u32 {s(sT0)}, {s(sT0)}, {WS_HS}")
    A(f"v_lshlrev_b32 {v(vT0)}, 3, {v(vTok)}")
    A("s_mov_b32 exec_hi, 0")
    A(f"buffer_store_dwordx2 {v(st,2)}, {v(vT0)}, {s(sO,4)}, {s(sT0)} offen sc1")
    A("s_mov_b64 exec, -1")
    A("s_waitcnt vmcnt(0)")
    A("s_barrier")
    K.stamp()
    V.release(mkC)
    vBl = V.alloc()
    tr_pi_base(A, vBl, vLane, vHf, vT0, vT1)
    def sig3():
        def idx(d):
            A(f"s_lshl_b32 {s(d)}, {s(sXcd)}, 1")
            A(f"s_lshr_b32 {s(sT0)}, {s(sJ3)}, 1")
            A(f"s_add_u32 {s(d)}, {s(d)}, {s(sT0)}")
        cnt_off(sCn, 2048, idx)
        signal(sCn)
    only_wave0("3s", sig3)
    A(f"s_cmp_ge_u32 {s(sJ)}, 28")
    A(f"s_cbranch_scc1 KM_C5")
    def w0_sync3():
        cnt_off(sCn, 2048, lambda d: A(f"s_mov_b32 {s(d)}, {s(sR128)}"))
        poll(sCn, 16, "3")
    only_wave0("3", w0_sync3)
    mk4 = V.mark()
    Af = [V.alloc(4) for _ in range(32)]
    acc = [V.alloc(16) for _ in range(4)]
    Bf = [[V.alloc(4) for _ in range(2)] for _ in range(2)]
    csa = [V.alloc(4) for _ in range(4)]; msk = V.alloc(4)
    vB = [V.alloc() for _ in range(4)]
    hs = acc[3]
    vb1 = V.alloc()
    sR32 = S.alloc(); sQ = [S.alloc() for _ in range(4)]
    srd(A, sRa, sP1 + 2, 1792 * 2)
    A(f"s_lshl_b32 {s(sR32)}, {s(sR128)}, 2")
    A(f"s_add_u32 {s(sR32)}, {s(sR32)}, {s(sW)}")
    A(f"v_lshlrev_b32 {v(vT1)}, 2, {v(vLane)}")
    A(f"s_lshl_b32 {s(sT1)}, {s(sCt4)}, 8")
    A(f"buffer_load_dword {v(vb1)}, {v(vT1)}, {s(sRa,4)}, {s(sT1)} offen")
    for q in range(4):
        A(f"s_xor_b32 {s(sQ[q])}, {s(sW)}, {q}")
        A(f"s_lshl_b32 {s(sQ[q])}, {s(sQ[q])}, 10")
    for q in range(4):
        A(f"s_lshl_b32 {s(sT0)}, {s(sQ[q])}, 1")
        A(f"v_add_u32 {v(vB[q])}, {s(sT0)}, {v(vBl)}")
    A(f"v_and_b32 {v(vT0)}, 15, {v(vLane)}")
    A(f"v_bfe_u32 {v(vT1)}, {v(vLane)}, 4, 1")
    A(f"v_cmp_eq_u32 vcc, {v(vT0)}, {v(vT1)}")
    A(f"v_mov_b32 {v(vT0)}, 0x3f803f80")
    for i in range(4): A(f"v_cndmask_b32 {v(msk+i)}, 0, {v(vT0)}, vcc")
    A(f"s_lshl_b32 {s(sB)}, {s(sR32)}, 15")
    A(f"s_add_u32 {s(sB)}, {s(sB)}, {WS_HF}")
    A(f"s_lshl_b32 {s(sT1)}, {s(sR32)}, 12")
    A(f"s_add_u32 {s(sT1)}, {s(sT1)}, {WS_HS}")
    A(f"v_lshlrev_b32 {v(vT2)}, 3, {v(vTok)}")
    A(f"v_lshl_add_u32 {v(vT2)}, {v(vHf)}, 11, {v(vT2)}")
    A("s_barrier")
    K.stamp()
    for i in range(8):
        A(f"buffer_load_dwordx2 {v(hs+2*i,2)}, {v(vT2)}, {s(sO,4)}, {s(sT1)} offen offset:{i*256} sc1")
    for g in range(8):
        for q in range(4):
            A(f"s_add_u32 {s(sT0)}, {s(sB)}, {s(sQ[q])}")
            if g: A(f"s_add_u32 {s(sT0)}, {s(sT0)}, {g*4096}")
            A(f"buffer_load_dwordx4 {v(Af[4*g+q],4)}, {v(vL16)}, {s(sO,4)}, {s(sT0)} offen sc1")
    def rd4(n):
        pos = n & 31
        for b in range(2):
            o = (pos >> 2) * 8192 + b * 512
            A(f"ds_read_b64_tr_b16 {v(Bf[n&1][b],2)}, {v(vB[pos&3])} offset:{o}")
            A(f"ds_read_b64_tr_b16 {v(Bf[n&1][b]+2,2)}, {v(vB[pos&3])} offset:{o+1024}")
    rd4(0)
    A("s_waitcnt vmcnt(32)")
    vMean, vRs, vMr = V.alloc(), V.alloc(), V.alloc()
    for st_ in (4, 2, 1):
        for i in range(st_):
            A(f"v_add_f32 {v(hs+2*i)}, {v(hs+2*i)}, {v(hs+2*(i+st_))}")
            A(f"v_add_f32 {v(hs+2*i+1)}, {v(hs+2*i+1)}, {v(hs+2*(i+st_)+1)}")
    swap_add(A, hs, vT1)
    swap_add(A, hs + 1, vT2)
    A(f"v_mul_f32 {v(vMean)}, {f2u(1/512.):#x}, {v(hs)}")
    A(f"v_mul_f32 {v(vT1)}, {v(vMean)}, {v(vMean)}")
    A(f"v_mov_b32 {v(vT2)}, {f2u(1/512.):#x}")
    A(f"v_fma_f32 {v(vT1)}, {v(hs+1)}, {v(vT2)}, -{v(vT1)}")
    A(f"v_max_f32 {v(vT1)}, 0, {v(vT1)}")
    A(f"v_add_f32 {v(vT2)}, {f2u(1e-5):#x}, {v(vT1)}")
    A(f"v_rcp_f32 {v(vT0)}, {v(vT2)}")
    A(f"v_rsq_f32 {v(vRs)}, {v(vT2)}")
    A(f"v_mul_f32 {v(vT1)}, {v(vT1)}, {v(vT0)}")
    A(f"v_add_f32 {v(vT1)}, {f2u(1e-5):#x}, {v(vT1)}")
    A(f"v_rsq_f32 {v(vT1)}, {v(vT1)}")
    A(f"v_mul_f32 {v(vRs)}, {v(vRs)}, {v(vT1)}")
    A(f"v_mul_f32 {v(vMr)}, {v(vMean)}, {v(vRs)}")
    A(f"v_lshlrev_b32 {v(hs)}, 16, {v(vb1)}")
    A(f"v_and_b32 {v(hs+1)}, 0xffff0000, {v(vb1)}")
    A(f"v_lshlrev_b32 {v(vT0)}, 3, {v(vLane)}")
    A(f"v_add_u32 {v(vT0)}, {BI}, {v(vT0)}")
    A(f"ds_write_b64 {v(vT0)}, {v(hs,2)}")
    for n in range(64):
        p, pos = n >> 5, n & 31
        if n + 1 < 64:
            if n + 1 == 32:
                A("s_waitcnt lgkmcnt(0)")
                A("s_barrier")
                K.stamp()
                for q in range(4): A(f"v_add_u32 {v(vB[q])}, 65536, {v(vB[q])}")
            rd4(n + 1)
            A("s_waitcnt lgkmcnt(4)")
        else:
            A("s_waitcnt lgkmcnt(0)")
        if p == 0 and pos % 4 == 0:
            A(f"s_waitcnt vmcnt({28 - pos})")
        for b in range(2):
            t = 2 * p + b
            A(f"v_mfma_f32_32x32x16_bf16 {v(acc[t],16)}, {v(Bf[n&1][b],4)}, {v(Af[pos],4)}, {'0' if pos == 0 else v(acc[t],16)}")
            if pos % 4 == 0:
                A(f"v_mfma_f32_16x16x32_bf16 {v(csa[t],4)}, {v(Bf[n&1][b],4)}, {v(msk,4)}, {'0' if pos == 0 else v(csa[t],4)}")
    A(f"v_and_b32 {v(vT0)}, 15, {v(vLane)}")
    A(f"v_lshrrev_b32 {v(vT1)}, 4, {v(vLane)}")
    A(f"v_lshlrev_b32 {v(vT1)}, 4, {v(vT1)}")
    A(f"v_lshl_add_u32 {v(vT1)}, {v(vT0)}, 6, {v(vT1)}")
    A(f"s_lshl_b32 {s(sT0)}, {s(sW)}, 9")
    A(f"s_add_u32 {s(sT0)}, {s(sT0)}, {CS}")
    A(f"v_add_u32 {v(vT1)}, {s(sT0)}, {v(vT1)}")
    A(f"v_cmp_gt_u32 vcc, 2, {v(vT0)}")
    A(f"s_and_saveexec_b64 {s(sSave,2)}, vcc")
    for t in range(4): A(f"ds_write_b128 {v(vT1)}, {v(csa[t],4)} offset:{t*128}")
    A(f"s_mov_b64 exec, {s(sSave,2)}")
    A("s_waitcnt lgkmcnt(0)")
    A("s_barrier")
    K.stamp()
    A(f"v_lshlrev_b32 {v(vT0)}, 4, {v(vHf)}")
    A(f"v_add_u32 {v(vT0)}, {CS}, {v(vT0)}")
    c1 = -2.0 * 0.7978845608028654 * LOG2E
    c2 = c1 * 0.044715
    vC1, vC2 = msk, msk + 1
    A(f"v_mov_b32 {v(vC1)}, {f2u(c1):#x}")
    A(f"v_mov_b32 {v(vC2)}, {f2u(c2):#x}")
    def R(i): return Af[0] + 16 * i
    A(f"s_mul_i32 {s(sB)}, {s(sR32)}, {112*1024}")
    A(f"s_lshl_b32 {s(sT0)}, {s(sCt4)}, 13")
    A(f"s_add_u32 {s(sB)}, {s(sB)}, {s(sT0)}")
    A(f"s_add_u32 {s(sB)}, {s(sB)}, {WS_MF}")
    A(f"s_add_u32 {s(sT1)}, {s(sB)}, 4096")
    for t in range(4):
        for pw in range(4):
            for a_ in range(4):
                A(f"ds_read_b128 {v(R(pw)+4*a_,4)}, {v(vT0)} offset:{pw*512 + t*128 + a_*32}")
        A("s_waitcnt lgkmcnt(8)")
        for a_ in range(4):
            A(f"ds_read_b128 {v(R(4)+4*a_,4)}, {v(vT0)} offset:{2048 + t*128 + a_*32}")
        for r in range(16): A(f"v_add_f32 {v(R(0)+r)}, {v(R(0)+r)}, {v(R(1)+r)}")
        A("s_waitcnt lgkmcnt(4)")
        for r in range(16): A(f"v_add_f32 {v(R(2)+r)}, {v(R(2)+r)}, {v(R(3)+r)}")
        for r in range(16): A(f"v_add_f32 {v(R(0)+r)}, {v(R(0)+r)}, {v(R(2)+r)}")
        A("s_waitcnt lgkmcnt(0)")
        for r in range(16): A(f"v_fma_f32 {v(R(4)+r)}, -{v(vMr)}, {v(R(0)+r)}, {v(R(4)+r)}")
        x = acc[t]
        for r in range(16): A(f"v_fma_f32 {v(x+r)}, {v(x+r)}, {v(vRs)}, {v(R(4)+r)}")
        for r in range(16): A(f"v_mul_f32 {v(R(0)+r)}, {v(x+r)}, {v(x+r)}")
        for r in range(16): A(f"v_fma_f32 {v(R(0)+r)}, {v(R(0)+r)}, {v(vC2)}, {v(vC1)}")
        for r in range(16): A(f"v_mul_f32 {v(R(0)+r)}, {v(R(0)+r)}, {v(x+r)}")
        for r in range(16): A(f"v_exp_f32 {v(R(0)+r)}, {v(R(0)+r)}")
        for r in range(16): A(f"v_add_f32 {v(R(0)+r)}, 1.0, {v(R(0)+r)}")
        for r in range(16): A(f"v_rcp_f32 {v(R(0)+r)}, {v(R(0)+r)}")
        for r in range(16): A(f"v_mul_f32 {v(x+r)}, {v(x+r)}, {v(R(0)+r)}")
        pk = R(5 + (t & 1))
        for i in range(8): A(f"v_cvt_pk_bf16_f32 {v(pk+i)}, {v(x+2*i)}, {v(x+2*i+1)}")
        sb = sB if t < 2 else sT1
        A(f"buffer_store_dwordx4 {v(pk,4)}, {v(vL16)}, {s(sO,4)}, {s(sb)} offen offset:{(t&1)*2048} sc1")
        A(f"buffer_store_dwordx4 {v(pk+4,4)}, {v(vL16)}, {s(sO,4)}, {s(sb)} offen offset:{(t&1)*2048+1024} sc1")
    A("s_waitcnt vmcnt(0)")
    A("s_barrier")
    K.stamp()
    def sig4():
        cnt_off(sCn, 6144, lambda d: A(f"s_mov_b32 {s(d)}, {s(sR128)}"))
        signal(sCn)
    only_wave0("4s", sig4)
    V.release(mk4)
    A.label("KM_C5")
    def w0_sync4():
        def idx(d):
            A(f"s_lshl_b32 {s(d)}, {s(sXcd)}, 1")
            A(f"s_lshr_b32 {s(sT0)}, {s(sJ3)}, 1")
            A(f"s_add_u32 {s(d)}, {s(d)}, {s(sT0)}")
        cnt_off(sCn, 6144, idx)
        poll(sCn, 14, "4")
    only_wave0("4", w0_sync4)
    NW = 12
    Af = [[V.alloc(4) for _ in range(2)] for _ in range(NW)]
    acc = [V.alloc(16) for _ in range(4)]
    Bf = [[V.alloc(4) for _ in range(2)] for _ in range(2)]
    vB = V.alloc(); b2r = V.alloc(8)
    sA0, sA1 = S.alloc(), S.alloc()
    srd(A, sRa, sP2 + 2, 512 * 2)
    srd(A, sRb, sPo, 2048 * 512 * 2)
    A(f"s_lshl_b32 {s(sT0)}, {s(sCt)}, 7")
    A(f"s_lshl_b32 {s(sT1)}, {s(sBb)}, 6")
    A(f"s_add_u32 {s(sT0)}, {s(sT0)}, {s(sT1)}")
    A(f"v_lshlrev_b32 {v(vT0)}, 3, {v(vHf)}")
    for a_ in range(4):
        A(f"buffer_load_dwordx2 {v(b2r+2*a_,2)}, {v(vT0)}, {s(sRa,4)}, {s(sT0)} offen offset:{a_*16}")
    A(f"s_mul_i32 {s(sA0)}, {s(sRt)}, {2*112*1024}")
    A(f"s_mul_i32 {s(sT0)}, {s(sW)}, {28*1024}")
    A(f"s_add_u32 {s(sA0)}, {s(sA0)}, {s(sT0)}")
    A(f"s_add_u32 {s(sA0)}, {s(sA0)}, {WS_MF}")
    A(f"s_add_u32 {s(sA1)}, {s(sA0)}, {112*1024}")
    A(f"s_lshl_b32 {s(sT0)}, {s(sW)}, 15")
    A(f"v_add_u32 {v(vB)}, {s(sT0)}, {v(vBl)}")
    def lda(n):
        for r, sa in ((0, sA0), (1, sA1)):
            if n % 4 == 0 and n: A(f"s_add_u32 {s(sa)}, {s(sa)}, 4096")
            A(f"buffer_load_dwordx4 {v(Af[n % NW][r],4)}, {v(vL16)}, {s(sO,4)}, {s(sa)} offen offset:{(n&3)*1024} sc1")
    def rd5(n):
        c, i = n >> 2, n & 3
        for b in range(2):
            o = W2 + (c & 3) * 8192 + i * 2048 + b * 512
            A(f"ds_read_b64_tr_b16 {v(Bf[n&1][b],2)}, {v(vB)} offset:{o}")
            A(f"ds_read_b64_tr_b16 {v(Bf[n&1][b]+2,2)}, {v(vB)} offset:{o+1024}")
    A("s_barrier")
    K.stamp()
    for n in range(NW): lda(n)
    rd5(0)
    for n in range(28):
        if n + 1 < 28:
            if (n + 1) % 4 == 0:
                A("s_waitcnt lgkmcnt(0)")
                A("s_barrier")
            rd5(n + 1)
            A("s_waitcnt lgkmcnt(4)")
        else:
            A("s_waitcnt lgkmcnt(0)")
        later = min(n + NW - 1, 27) - n
        A(f"s_waitcnt vmcnt({2*later})")
        for b in range(2):
            for r in range(2):
                t = 2 * b + r
                A(f"v_mfma_f32_32x32x16_bf16 {v(acc[t],16)}, {v(Bf[n&1][b],4)}, {v(Af[n%NW][r],4)}, {'0' if n == 0 else v(acc[t],16)}")
        if n + NW < 28: lda(n + NW)
    K.stamp()
    A("s_barrier")
    out = Af[0][0]
    reduce4(K, acc, RED5, sW, vL16, vT0, sT0, out)
    un = acc[0]
    for i in range(8):
        A(f"v_lshlrev_b32 {v(un+2*i)}, 16, {v(hpk+i)}")
        A(f"v_and_b32 {v(un+2*i+1)}, 0xffff0000, {v(hpk+i)}")
    for r in range(16): A(f"v_add_f32 {v(out+r)}, {v(out+r)}, {v(un+r)}")
    for i in range(8):
        A(f"v_lshlrev_b32 {v(un+2*i)}, 16, {v(b2r+i)}")
        A(f"v_and_b32 {v(un+2*i+1)}, 0xffff0000, {v(b2r+i)}")
    for r in range(16): A(f"v_add_f32 {v(out+r)}, {v(out+r)}, {v(un+r)}")
    pk = acc[1]
    for i in range(8): A(f"v_cvt_pk_bf16_f32 {v(pk+i)}, {v(out+2*i)}, {v(out+2*i+1)}")
    for base in (0, 4):
        A(f"v_permlane32_swap_b32 {v(pk+base)}, {v(pk+base+2)}")
        A(f"v_permlane32_swap_b32 {v(pk+base+1)}, {v(pk+base+3)}")
    A(f"s_lshl_b32 {s(sT0)}, {s(sRt)}, 16")
    A(f"s_lshl_b32 {s(sT1)}, {s(sRr)}, 15")
    A(f"s_add_u32 {s(sT0)}, {s(sT0)}, {s(sT1)}")
    A(f"s_lshl_b32 {s(sT1)}, {s(sCt)}, 7")
    A(f"s_add_u32 {s(sT0)}, {s(sT0)}, {s(sT1)}")
    A(f"s_lshl_b32 {s(sT1)}, {s(sBb)}, 6")
    A(f"s_add_u32 {s(sT0)}, {s(sT0)}, {s(sT1)}")
    A(f"v_lshlrev_b32 {v(vT0)}, 10, {v(vTok)}")
    A(f"v_lshl_add_u32 {v(vT0)}, {v(vHf)}, 4, {v(vT0)}")
    A(f"buffer_store_dwordx4 {v(pk,4)}, {v(vT0)}, {s(sRb,4)}, {s(sT0)} offen")
    A(f"buffer_store_dwordx4 {v(pk+4,4)}, {v(vT0)}, {s(sRb,4)}, {s(sT0)} offen offset:32")
    K.stamp_out(sO, 1, vT0, vT1)
    K.rt_end(sO, 1, vT0, vT1)
    A.label(END)
    A("s_endpgm")
    print("km vgprs", V.hi, "sgprs", S.hi, "lds", K.lds)
    return K

def k1z():
    K = G.k1()
    ins = K.A.ins
    idx = next(i for i, x in enumerate(ins) if x.label == "K1_STATS")
    from dsl import Ins
    code = f"""
s_cmp_ge_u32 s2, 40
s_cbranch_scc1 K1_NOZ
s_waitcnt lgkmcnt(0)
s_mov_b32 s96, s{K.sWs}
s_and_b32 s97, s{K.sWs+1}, 0xffff
s_mov_b32 s98, {WS_SIZE}
s_mov_b32 s99, 0x20000
s_lshl_b32 s95, s2, 8
s_add_u32 s95, s95, {WS_CNT}
v_mov_b32 v2, 0
v_mov_b32 v3, 0
s_mov_b64 exec, 1
buffer_store_dword v2, v3, s[96:99], s95 offen
s_mov_b64 exec, -1
K1_NOZ:
""".strip().split("\n")
    for k, line in enumerate(code): ins.insert(idx + 1 + k, Ins(line))
    K.S.hi = max(K.S.hi, 100)
    return K

if __name__ == "__main__":
    if "stamp" in sys.argv: G.STAMP = True
    if "rt" in sys.argv: G.RT = True
    G.FLAGS = set(sys.argv[2:])
    ks = [k1z(), km(1 if 'q1' in G.FLAGS else 2, prio=('noprio' not in G.FLAGS))]
    build(ks, sys.argv[1] if len(sys.argv) > 1 else "out.s")
```

```python
import sys, struct
from dsl import *

NAME = "sequential_preLN__mha_block__mixer_channel_mlp__prompt"
WS_QF = 0
WS_KF = 2 << 20
WS_VF = 4 << 20
WS_KMAX = 6 << 20
WS_OF = 8 << 20
WS_HF = 10 << 20
WS_MF = 12 << 20
WS_HS = (19 << 20) + (512 << 10)
WS_STAMP = 20 << 20
WS_STAMP2 = 22 << 20
WS_SIZE = 24 << 20
STAMP = False
RT = False
FLAGS = set()
def _flags():
    import gen as _g
    return _g.FLAGS | FLAGS
def f2u(x): return struct.unpack('<I', struct.pack('<f', x))[0]
LOG2E = 1.4426950408889634

class Kern:
    def __init__(self, name, grid, block, lds):
        self.name = name; self.grid = grid; self.block = block; self.lds = lds
        self.A = Asm()
        self.V = RegAlloc('v', 1, 256)
        self.S = RegAlloc('s', 3, 100)
        self.accum = None
        self.stamps = []
        import gen as _g; self.dostamp = _g.STAMP or STAMP
    def stamp(self, idx=None):
        if not self.dostamp: return
        if not hasattr(self, "vstamp"):
            self.vstamp = self.V.alloc(); self.nst = 0
            self.S.hi = max(self.S.hi, 100)
        if idx is None:
            idx = self.nst; self.nst += 1
        self.A("s_memtime s[98:99]")
        self.A("s_waitcnt lgkmcnt(0)")
        self.A(f"v_writelane_b32 {v(self.vstamp)}, s98, {idx}")
    def rt_begin(self):
        import gen as _g
        if not (RT or _g.RT): return
        self.rt0 = self.S.alloc(2)
        self.A(f"s_memrealtime {s(self.rt0,2)}")
        self.mt0 = self.S.alloc(2)
        self.A(f"s_memtime {s(self.mt0,2)}")
    def rt_end(self, sSrd, kidx, vt0, vt1):
        import gen as _g
        if not (RT or _g.RT): return
        A = self.A
        r1 = self.S.alloc(2); m1 = self.S.alloc(2); t = self.S.alloc(); w = self.S.alloc()
        A("s_waitcnt vmcnt(0)")
        A(f"s_memrealtime {s(r1,2)}")
        A(f"s_memtime {s(m1,2)}")
        A("s_mov_b64 exec, -1")
        A(f"v_lshrrev_b32 {v(vt0)}, 6, v0")
        A("s_nop 1")
        A(f"v_readfirstlane_b32 {s(w)}, {v(vt0)}")
        A(f"s_lshl_b32 {s(t)}, s2, 4")
        A(f"s_add_u32 {s(t)}, {s(t)}, {s(w)}")
        A(f"s_lshl_b32 {s(t)}, {s(t)}, 4")
        A(f"s_add_u32 {s(t)}, {s(t)}, {WS_STAMP + 0x40000 + kidx*0x10000}")
        A("s_waitcnt lgkmcnt(0)")
        A(f"s_sub_u32 {s(m1)}, {s(m1)}, {s(self.mt0)}")
        A("s_mov_b64 exec, 1")
        A(f"v_mov_b32 {v(vt1)}, 0")
        for i, r in enumerate((self.rt0, r1, m1)):
            A(f"v_mov_b32 {v(vt0)}, {s(r)}")
            A(f"buffer_store_dword {v(vt0)}, {v(vt1)}, {s(sSrd,4)}, {s(t)} offen offset:{4*i}")
    def stamp_out(self, sSrd, kidx, vt0, vt1, final=None):
        if not self.dostamp: return
        A = self.A
        self.stamp(final)
        A("s_mov_b64 exec, -1")
        A(f"v_lshrrev_b32 {v(vt0)}, 6, v0")
        A("s_nop 1")
        A(f"v_readfirstlane_b32 s97, {v(vt0)}")
        A(f"s_lshl_b32 s96, s2, 4")
        A(f"s_add_u32 s96, s96, s97")
        A(f"s_lshl_b32 s96, s96, 6")
        A(f"s_add_u32 s96, s96, {WS_STAMP2 + kidx*0x40000}")
        A(f"v_and_b32 {v(vt1)}, 63, v0")
        A(f"v_lshlrev_b32 {v(vt1)}, 2, {v(vt1)}")
        A("s_mov_b64 exec, 0xffff")
        A(f"buffer_store_dword {v(self.vstamp)}, {v(vt1)}, {s(sSrd,4)}, s96 offen")
    def finish(self, agprs=0):
        self.A.fix_hazards()
        nv = self.V.hi
        acc = (nv + 3) // 4 * 4
        tot = acc + agprs if agprs else nv
        assert acc <= 256 or agprs == 0 or True
        txt = f".globl {self.name}\n.p2align 8\n.type {self.name},@function\n{self.name}:\n" + self.A.text()
        kd = f""".amdhsa_kernel {self.name}
  .amdhsa_next_free_vgpr {tot}
  .amdhsa_next_free_sgpr {max(self.S.hi, 16)}
  .amdhsa_accum_offset {min(acc, 256)}
  .amdhsa_group_segment_fixed_size 0
  .amdhsa_kernarg_size 88
  .amdhsa_user_sgpr_count 2
  .amdhsa_user_sgpr_kernarg_segment_ptr 1
  .amdhsa_system_sgpr_workgroup_id_x 1
.end_amdhsa_kernel
"""
        return txt, kd

def srd(A, sd, sptr, nbytes):
    A(f"s_mov_b32 {s(sd)}, {s(sptr)}")
    A(f"s_and_b32 {s(sd+1)}, {s(sptr+1)}, 0xffff")
    A(f"s_mov_b32 {s(sd+2)}, {nbytes}")
    A(f"s_mov_b32 {s(sd+3)}, 0x20000")

def swap_add(A, x, t, op="v_add_f32"):
    A(f"v_mov_b32 {v(t)}, {v(x)}")
    A(f"v_permlane32_swap_b32 {v(x)}, {v(t)}")
    A(f"{op} {v(x)}, {v(x)}, {v(t)}")

def tr_base(A, vdst, vLane, vHf, t0, t1, hfmul_rows, add=0):
    A(f"v_and_b32 {v(t0)}, 15, {v(vLane)}")
    A(f"v_lshrrev_b32 {v(t1)}, 2, {v(t0)}")
    sh = {8: 3, 4: 2}[hfmul_rows]
    A(f"v_lshl_add_u32 {v(t1)}, {v(vHf)}, {sh}, {v(t1)}")
    A(f"v_lshlrev_b32 {v(t1)}, 6, {v(t1)}")
    A(f"v_and_b32 {v(t0)}, 3, {v(t0)}")
    A(f"v_lshl_add_u32 {v(t1)}, {v(t0)}, 3, {v(t1)}")
    A(f"v_bfe_u32 {v(t0)}, {v(vLane)}, 4, 1")
    A(f"v_lshl_add_u32 {v(vdst)}, {v(t0)}, 5, {v(t1)}")
    if add: A(f"v_add_u32 {v(vdst)}, {add}, {v(vdst)}")

HOOK = None
def k1():
    import gen as _g
    HOOK = _g.HOOK
    XR = 0; WR = 32768; CS = WR + 4 * 24576; ST = CS + 1536
    K = Kern("k1_qkv_kernel", (256, 1, 1), (768, 1, 1), ST + 2048)
    A, V, S = K.A, K.V, K.S
    END = "K1_END"
    sP = S.alloc(4); sWs = S.alloc(2)
    K.sWs = sWs
    A(f"s_load_dwordx4 {s(sP,4)}, s[0:1], 0")
    A(f"s_load_dwordx2 {s(sWs,2)}, s[0:1], 80")
    A(f"s_cmp_ge_u32 s2, 256")
    A(f"s_cbranch_scc1 {END}")
    K.rt_begin()
    K.stamp()
    sX = S.alloc(4); sWq = S.alloc(4); sO = S.alloc(4)
    sW8, sW, sXcd, sJ, sRt, sHq, sRot, sT0, sT1, sXb, sWb, sLx, sLw, sx, sw, sTt, sCh = [S.alloc() for _ in range(17)]
    vLane, vT0, vT1, vT2, vHf, vTok = [V.alloc() for _ in range(6)]
    K.vT = (vT0, vT1); K.sW8 = sW8
    A(f"v_lshrrev_b32 {v(vT0)}, 6, v0")
    A(f"v_and_b32 {v(vLane)}, 63, v0")
    A(f"v_readfirstlane_b32 {s(sW8)}, {v(vT0)}")
    A(f"s_and_b32 {s(sXcd)}, s2, 7")
    A(f"s_lshr_b32 {s(sJ)}, s2, 3")
    A(f"s_and_b32 {s(sW)}, {s(sW8)}, 3")
    A(f"s_and_b32 {s(sT0)}, {s(sXcd)}, 3")
    A(f"s_lshl_b32 {s(sT0)}, {s(sT0)}, 3")
    A(f"s_and_b32 {s(sT1)}, {s(sJ)}, 7")
    A(f"s_add_u32 {s(sRt)}, {s(sT0)}, {s(sT1)}")
    A(f"s_lshr_b32 {s(sT0)}, {s(sXcd)}, 2")
    A(f"s_lshl_b32 {s(sT0)}, {s(sT0)}, 2")
    A(f"s_lshr_b32 {s(sHq)}, {s(sJ)}, 3")
    A(f"s_lshl_b32 {s(sRot)}, {s(sHq)}, 1")
    A(f"s_add_u32 {s(sRot)}, {s(sRot)}, {s(sT1)}")
    A(f"s_add_u32 {s(sRot)}, {s(sRot)}, {s(sXcd)}")
    A(f"s_add_u32 {s(sHq)}, {s(sHq)}, {s(sT0)}")
    A(f"s_and_b32 {s(sTt)}, {s(sW)}, 1")
    A(f"s_lshr_b32 {s(sCh)}, {s(sW)}, 1")
    A(f"s_cmp_lt_u32 {s(sW8)}, 4")
    A(f"s_cbranch_scc1 K1_COMPUTE")
    A(f"s_cmp_ge_u32 {s(sW8)}, 8")
    A(f"s_cbranch_scc1 K1_STATS")
    m0_ = V.mark()
    vXoff, vWoff = V.alloc(), V.alloc()
    A(f"s_lshl_b32 {s(sXb)}, {s(sRt)}, 16")
    A(f"s_lshl_b32 {s(sT0)}, {s(sW)}, 13")
    A(f"s_add_u32 {s(sXb)}, {s(sXb)}, {s(sT0)}")
    A(f"s_mul_i32 {s(sWb)}, {s(sW)}, {8*3072}")
    A(f"s_lshl_b32 {s(sT0)}, {s(sHq)}, 7")
    A(f"s_add_u32 {s(sWb)}, {s(sWb)}, {s(sT0)}")
    A(f"s_lshl_b32 {s(sLx)}, {s(sW)}, 10")
    A(f"s_add_u32 {s(sLw)}, {s(sLx)}, {WR}")
    A(f"s_lshl_b32 {s(sT0)}, {s(sTt)}, 2")
    A(f"v_lshrrev_b32 {v(vT0)}, 4, {v(vLane)}")
    A(f"v_or_b32 {v(vT0)}, {s(sT0)}, {v(vT0)}")
    A(f"v_and_b32 {v(vT1)}, 7, {v(vLane)}")
    A(f"v_xor_b32 {v(vT0)}, {v(vT0)}, {v(vT1)}")
    A(f"v_lshlrev_b32 {v(vT0)}, 4, {v(vT0)}")
    A(f"v_lshrrev_b32 {v(vT1)}, 3, {v(vLane)}")
    A(f"v_lshlrev_b32 {v(vT1)}, 10, {v(vT1)}")
    A(f"v_add_u32 {v(vXoff)}, {v(vT0)}, {v(vT1)}")
    A(f"v_bfe_u32 {v(vT0)}, {v(vLane)}, 2, 3")
    A(f"v_mul_u32_u24 {v(vT0)}, 3072, {v(vT0)}")
    A(f"v_and_b32 {v(vT1)}, 3, {v(vLane)}")
    A(f"v_lshl_add_u32 {v(vT0)}, {v(vT1)}, 4, {v(vT0)}")
    A(f"v_lshrrev_b32 {v(vT1)}, 5, {v(vLane)}")
    A(f"v_lshl_add_u32 {v(vWoff)}, {v(vT1)}, 6, {v(vT0)}")
    A("s_waitcnt lgkmcnt(0)")
    srd(A, sX, sP, 2048 * 512 * 2)
    srd(A, sWq, sP + 2, 512 * 1536 * 2)
    def dma_stage(st):
        slot = st & 3
        A(f"s_add_u32 {s(sT0)}, {s(sRot)}, {st}")
        A(f"s_and_b32 {s(sT0)}, {s(sT0)}, 7")
        A(f"s_lshl_b32 {s(sx)}, {s(sT0)}, 7")
        A(f"s_add_u32 {s(sx)}, {s(sx)}, {s(sXb)}")
        A(f"s_mul_i32 {s(sw)}, {s(sT0)}, {64*3072}")
        A(f"s_add_u32 {s(sw)}, {s(sw)}, {s(sWb)}")
        for n in range(2):
            A(f"s_add_u32 m0, {s(sLx)}, {XR + slot*8192 + n*4096}")
            A(f"s_add_u32 {s(sT1)}, {s(sx)}, {n*32768}")
            A(f"buffer_load_dwordx4 {v(vXoff)}, {s(sX,4)}, {s(sT1)} offen lds")
        for b in range(3):
            for n in range(2):
                A(f"s_add_u32 m0, {s(sLw)}, {slot*24576 + b*8192 + n*4096}")
                A(f"s_add_u32 {s(sT1)}, {s(sw)}, {b*1024 + n*32*3072}")
                A(f"buffer_load_dwordx4 {v(vWoff)}, {s(sWq,4)}, {s(sT1)} offen lds")
    dma_stage(0); dma_stage(1)
    A("s_waitcnt vmcnt(8)")
    A("s_barrier")
    dma_stage(2); dma_stage(3)
    for sp in range(1, 8):
        vm = {1: 16, 2: 16, 3: 16, 4: 16, 5: 16, 6: 8, 7: 0}[sp]
        A(f"s_waitcnt vmcnt({vm})")
        A("s_barrier")
        if sp + 3 < 8: dma_stage(sp + 3)
    A("s_endpgm")
    V.release(m0_)
    def x_addrs(vXA):
        A(f"v_lshrrev_b32 {v(vHf)}, 5, {v(vLane)}")
        A(f"v_and_b32 {v(vTok)}, 31, {v(vLane)}")
        A(f"v_lshrrev_b32 {v(vT2)}, 1, {v(vTok)}")
        A(f"v_and_b32 {v(vT2)}, 7, {v(vT2)}")
        A(f"s_lshl_b32 {s(sT1)}, {s(sTt)}, 12")
        for i in range(4):
            A(f"v_add_u32 {v(vT0)}, {2*i}, {v(vHf)}")
            A(f"v_xor_b32 {v(vT0)}, {v(vT0)}, {v(vT2)}")
            A(f"v_lshlrev_b32 {v(vT0)}, 4, {v(vT0)}")
            A(f"v_lshl_add_u32 {v(vT0)}, {v(vTok)}, 7, {v(vT0)}")
            A(f"v_add_u32 {v(vXA[i])}, {s(sT1)}, {v(vT0)}")
    def w_addr(vWA):
        A(f"v_and_b32 {v(vT0)}, 15, {v(vLane)}")
        A(f"v_lshrrev_b32 {v(vT1)}, 2, {v(vT0)}")
        A(f"v_lshlrev_b32 {v(vT1)}, 6, {v(vT1)}")
        A(f"v_lshl_add_u32 {v(vT1)}, {v(vHf)}, 10, {v(vT1)}")
        A(f"v_and_b32 {v(vT0)}, 3, {v(vT0)}")
        A(f"v_lshl_add_u32 {v(vT1)}, {v(vT0)}, 3, {v(vT1)}")
        A(f"v_bfe_u32 {v(vT0)}, {v(vLane)}, 4, 1")
        A(f"v_lshl_add_u32 {v(vT1)}, {v(vT0)}, 5, {v(vT1)}")
        A(f"v_add_u32 {v(vWA)}, {WR}, {v(vT1)}")
    A.label("K1_STATS")
    vXA = [V.alloc() for _ in range(2)]
    Xf = [V.alloc(4) for _ in range(2)]
    un = V.alloc(8); sq = V.alloc(8); sm = V.alloc(8); vMask = V.alloc()
    A(f"v_lshrrev_b32 {v(vHf)}, 5, {v(vLane)}")
    A(f"v_and_b32 {v(vTok)}, 31, {v(vLane)}")
    A(f"v_lshrrev_b32 {v(vT2)}, 1, {v(vTok)}")
    A(f"v_and_b32 {v(vT2)}, 7, {v(vT2)}")
    A(f"s_lshl_b32 {s(sT1)}, {s(sTt)}, 12")
    for jx in range(2):
        A(f"s_lshl_b32 {s(sT0)}, {s(sCh)}, 1")
        A(f"s_add_u32 {s(sT0)}, {s(sT0)}, {4*jx}")
        A(f"v_add_u32 {v(vT0)}, {s(sT0)}, {v(vHf)}")
        A(f"v_xor_b32 {v(vT0)}, {v(vT0)}, {v(vT2)}")
        A(f"v_lshlrev_b32 {v(vT0)}, 4, {v(vT0)}")
        A(f"v_lshl_add_u32 {v(vT0)}, {v(vTok)}, 7, {v(vT0)}")
        A(f"v_add_u32 {v(vXA[jx])}, {s(sT1)}, {v(vT0)}")
    A(f"v_mov_b32 {v(vMask)}, 0xffff0000")
    for i in range(8):
        A(f"v_mov_b32 {v(sq+i)}, 0"); A(f"v_mov_b32 {v(sm+i)}, 0")
    if HOOK: HOOK("start", K, locals())
    def sstage(st):
        if "nos" in _flags(): return
        slot = st & 3
        for jx in range(2):
            A(f"ds_read_b128 {v(Xf[jx],4)}, {v(vXA[jx])} offset:{XR + slot*8192}")
        for jx in range(2):
            A(f"s_waitcnt lgkmcnt({1-jx})")
            for i in range(4):
                A(f"v_lshlrev_b32 {v(un+2*i)}, 16, {v(Xf[jx]+i)}")
                A(f"v_and_b32 {v(un+2*i+1)}, {v(vMask)}, {v(Xf[jx]+i)}")
            for i in range(8):
                A(f"v_fmac_f32 {v(sq+i)}, {v(un+i)}, {v(un+i)}")
                A(f"v_add_f32 {v(sm+i)}, {v(un+i)}, {v(sm+i)}")
    for st in range(8):
        A("s_barrier")
        sstage(st)
        if HOOK: HOOK(st, K, locals())
    for L in (sq, sm):
        for st in (4, 2, 1):
            for i in range(st): A(f"v_add_f32 {v(L+i)}, {v(L+i)}, {v(L+i+st)}")
    swap_add(A, sm, vT1)
    swap_add(A, sq, vT2)
    A(f"s_lshl_b32 {s(sT0)}, {s(sW)}, 8")
    A(f"s_add_u32 {s(sT0)}, {s(sT0)}, {ST}")
    A(f"v_lshl_add_u32 {v(vT0)}, {v(vTok)}, 2, {s(sT0)}")
    A(f"ds_write_b32 {v(vT0)}, {v(sm)}")
    A(f"ds_write_b32 {v(vT0)}, {v(sq)} offset:128")
    A("s_waitcnt lgkmcnt(0)")
    A("s_barrier")
    if HOOK: HOOK("end", K, locals())
    A("s_endpgm")
    V.release(m0_)
    A.label("K1_COMPUTE")
    vXA = [V.alloc() for _ in range(4)]; vWA = [V.alloc() for _ in range(4)]
    acc = [V.alloc(16) for _ in range(3)]
    mk = V.mark()
    csa = [V.alloc(4) for _ in range(3)]; msk = V.alloc(4)
    Xf = [V.alloc(4) for _ in range(2)]
    Wf = [[V.alloc(4) for _ in range(3)] for _ in range(2)]
    A(f"v_lshrrev_b32 {v(vHf)}, 5, {v(vLane)}")
    A(f"v_and_b32 {v(vTok)}, 31, {v(vLane)}")
    A(f"v_lshrrev_b32 {v(vT2)}, 1, {v(vTok)}")
    A(f"v_and_b32 {v(vT2)}, 7, {v(vT2)}")
    A(f"s_lshl_b32 {s(sT1)}, {s(sTt)}, 12")
    for pos in range(4):
        A(f"s_xor_b32 {s(sT0)}, {s(sTt)}, {pos}")
        A(f"s_lshl_b32 {s(sT0)}, {s(sT0)}, 1")
        A(f"v_add_u32 {v(vT0)}, {s(sT0)}, {v(vHf)}")
        A(f"v_xor_b32 {v(vT0)}, {v(vT0)}, {v(vT2)}")
        A(f"v_lshlrev_b32 {v(vT0)}, 4, {v(vT0)}")
        A(f"v_lshl_add_u32 {v(vT0)}, {v(vTok)}, 7, {v(vT0)}")
        A(f"v_add_u32 {v(vXA[pos])}, {s(sT1)}, {v(vT0)}")
    w_addr(vWA[0])
    A(f"s_lshl_b32 {s(sw)}, {s(sCh)}, 9")
    A(f"s_lshl_b32 {s(sT0)}, {s(sTt)}, 11")
    A(f"s_sub_u32 {s(sT1)}, {s(sw)}, {s(sT0)}")
    A(f"s_add_u32 {s(sw)}, {s(sw)}, {s(sT0)}")
    A(f"v_add_u32 {v(vWA[1])}, {s(sT1)}, {v(vWA[0])}")
    A(f"v_add_u32 {v(vWA[0])}, {s(sw)}, {v(vWA[0])}")
    A(f"v_add_u32 {v(vWA[2])}, {2*24576}, {v(vWA[0])}")
    A(f"v_add_u32 {v(vWA[3])}, {2*24576}, {v(vWA[1])}")
    A(f"v_and_b32 {v(vT0)}, 15, {v(vLane)}")
    A(f"v_bfe_u32 {v(vT1)}, {v(vLane)}, 4, 1")
    A(f"v_cmp_eq_u32 vcc, {v(vT0)}, {v(vT1)}")
    A(f"v_mov_b32 {v(vT0)}, 0x3f803f80")
    for i in range(4): A(f"v_cndmask_b32 {v(msk+i)}, 0, {v(vT0)}, vcc")
    def reads(n):
        if "noc" in _flags() or "noread" in _flags(): return
        slot = (n >> 2) & 3; pos = n & 3; bf = n & 1
        A(f"ds_read_b128 {v(Xf[bf],4)}, {v(vXA[pos])} offset:{XR + slot*8192}")
        wa = vWA[(pos & 1) + (2 if slot >= 2 else 0)]
        for b in range(3):
            o = (slot & 1) * 24576 + b * 8192 + pos * 2048
            A(f"ds_read_b64_tr_b16 {v(Wf[bf][b],2)}, {v(wa)} offset:{o}")
            A(f"ds_read_b64_tr_b16 {v(Wf[bf][b]+2,2)}, {v(wa)} offset:{o+256}")
    def compute(n):
        if "noc" in _flags(): return
        bf = n & 1
        c = lambda b: "0" if n == 0 else v(acc[b], 16)
        cs_ = (n & 1) == 0
        def mc(b):
            if cs_: A(f"v_mfma_f32_16x16x32_bf16 {v(csa[b],4)}, {v(Wf[bf][b],4)}, {v(msk,4)}, {'0' if n == 0 else v(csa[b],4)}")
        A(f"v_mfma_f32_32x32x16_bf16 {v(acc[0],16)}, {v(Wf[bf][0],4)}, {v(Xf[bf],4)}, {c(0)}")
        mc(0)
        A(f"v_mfma_f32_32x32x16_bf16 {v(acc[1],16)}, {v(Wf[bf][1],4)}, {v(Xf[bf],4)}, {c(1)}")
        mc(1)
        A(f"v_mfma_f32_32x32x16_bf16 {v(acc[2],16)}, {v(Xf[bf],4)}, {v(Wf[bf][2],4)}, {c(2)}")
        mc(2)
    A("s_waitcnt lgkmcnt(0)")
    srd(A, sO, sWs, WS_SIZE)
    sTile, sHp, sQo, sKo, sVo = [S.alloc() for _ in range(5)]
    sSave = S.alloc(2)
    A(f"s_lshl_b32 {s(sTile)}, {s(sRt)}, 1")
    A(f"s_add_u32 {s(sTile)}, {s(sTile)}, {s(sTt)}")
    A(f"s_lshl_b32 {s(sHp)}, {s(sHq)}, 1")
    A(f"s_add_u32 {s(sHp)}, {s(sHp)}, {s(sCh)}")
    A(f"s_lshl_b32 {s(sT0)}, {s(sHp)}, 17")
    A(f"s_lshl_b32 {s(sT1)}, {s(sTile)}, 10")
    A(f"s_add_u32 {s(sQo)}, {s(sT0)}, {s(sT1)}")
    A(f"s_add_u32 {s(sKo)}, {s(sQo)}, {WS_KF}")
    A(f"s_add_u32 {s(sVo)}, {s(sQo)}, {WS_VF}")
    K.stamp()
    A("s_barrier")
    K.stamp()
    reads(0)
    for n in range(32):
        if n + 1 < 32:
            if (n + 1) % 4 == 0:
                sp = (n + 1) // 4
                A(f"s_waitcnt lgkmcnt(0)")
                A("s_barrier")
                if sp in (2, 4, 6): K.stamp()
            reads(n + 1)
            A("s_waitcnt lgkmcnt(7)")
        else:
            A("s_waitcnt lgkmcnt(0)")
        compute(n)
    K.stamp()
    A(f"v_and_b32 {v(vT0)}, 15, {v(vLane)}")
    A(f"v_lshrrev_b32 {v(vT1)}, 4, {v(vLane)}")
    A(f"v_lshlrev_b32 {v(vT1)}, 4, {v(vT1)}")
    A(f"v_lshl_add_u32 {v(vT1)}, {v(vT0)}, 6, {v(vT1)}")
    A(f"s_mul_i32 {s(sx)}, {s(sTt)}, 768")
    A(f"s_lshl_b32 {s(sw)}, {s(sCh)}, 7")
    A(f"s_add_u32 {s(sx)}, {s(sx)}, {s(sw)}")
    A(f"s_add_u32 {s(sx)}, {s(sx)}, {CS}")
    A(f"v_add_u32 {v(vT1)}, {s(sx)}, {v(vT1)}")
    A(f"v_cmp_gt_u32 vcc, 2, {v(vT0)}")
    A(f"s_and_saveexec_b64 {s(sSave,2)}, vcc")
    for b in range(3): A(f"ds_write_b128 {v(vT1)}, {v(csa[b],4)} offset:{b*256}")
    A(f"s_mov_b64 exec, {s(sSave,2)}")
    A("s_waitcnt lgkmcnt(0)")
    A("s_barrier")
    K.stamp()
    V.release(mk)
    csr = V.alloc(16); csr2 = V.alloc(16); st1 = V.alloc(16); st2 = V.alloc(16)
    vCv, vMean, vRstd, vL16, vRq = [V.alloc() for _ in range(5)]
    A(f"s_lshl_b32 {s(sx)}, {s(sTt)}, 8")
    A(f"s_add_u32 {s(sx)}, {s(sx)}, {ST}")
    A(f"v_lshl_add_u32 {v(vT1)}, {v(vTok)}, 2, {s(sx)}")
    p4 = V.alloc(4)
    A(f"ds_read_b32 {v(p4)}, {v(vT1)}")
    A(f"ds_read_b32 {v(p4+1)}, {v(vT1)} offset:512")
    A(f"ds_read_b32 {v(p4+2)}, {v(vT1)} offset:128")
    A(f"ds_read_b32 {v(p4+3)}, {v(vT1)} offset:640")
    A(f"s_lshl_b32 {s(sw)}, {s(sCh)}, 7")
    A(f"s_add_u32 {s(sw)}, {s(sw)}, {CS}")
    A(f"v_lshl_add_u32 {v(vT0)}, {v(vHf)}, 4, {s(sw)}")
    for a_ in range(4):
        A(f"ds_read_b128 {v(csr+4*a_,4)}, {v(vT0)} offset:{a_*32}")
    for a_ in range(4):
        A(f"ds_read_b128 {v(st1+4*a_,4)}, {v(vT0)} offset:{768+a_*32}")
    A("s_waitcnt lgkmcnt(4)")
    for a_ in range(4):
        A(f"ds_read_b128 {v(csr2+4*a_,4)}, {v(vT0)} offset:{256+a_*32}")
    for a_ in range(4):
        A(f"ds_read_b128 {v(st2+4*a_,4)}, {v(vT0)} offset:{768+256+a_*32}")
    A(f"v_lshl_add_u32 {v(vT1)}, {v(vTok)}, 2, {s(sw)}")
    vCv2 = V.alloc()
    A(f"ds_read_b32 {v(vCv)}, {v(vT1)} offset:512")
    A(f"ds_read_b32 {v(vCv2)}, {v(vT1)} offset:{768+512}")
    A("s_waitcnt lgkmcnt(10)")
    for r in range(16): A(f"v_add_f32 {v(csr+r)}, {v(csr+r)}, {v(st1+r)}")
    A("s_waitcnt lgkmcnt(0)")
    for r in range(16): A(f"v_add_f32 {v(csr2+r)}, {v(csr2+r)}, {v(st2+r)}")
    A(f"v_add_f32 {v(vCv)}, {v(vCv)}, {v(vCv2)}")
    A(f"v_lshlrev_b32 {v(vL16)}, 4, {v(vLane)}")
    pk = V.alloc(8); pk2 = V.alloc(8); pk3 = pk
    vMr = p4 + 1
    A(f"v_add_f32 {v(p4)}, {v(p4)}, {v(p4+1)}")
    A(f"v_add_f32 {v(p4+2)}, {v(p4+2)}, {v(p4+3)}")
    A(f"v_mul_f32 {v(vMean)}, {f2u(1/512.):#x}, {v(p4)}")
    A(f"v_mul_f32 {v(vT1)}, {v(vMean)}, {v(vMean)}")
    A(f"v_mov_b32 {v(vT2)}, {f2u(1/512.):#x}")
    A(f"v_fma_f32 {v(vT1)}, {v(p4+2)}, {v(vT2)}, -{v(vT1)}")
    A(f"v_max_f32 {v(vT1)}, 0, {v(vT1)}")
    A(f"v_add_f32 {v(vT1)}, {f2u(1e-5):#x}, {v(vT1)}")
    A(f"v_rsq_f32 {v(vRstd)}, {v(vT1)}")
    A(f"v_mul_f32 {v(vMr)}, {v(vMean)}, {v(vRstd)}")
    A(f"s_lshl_b32 {s(sx)}, {s(sW)}, 8")
    A(f"s_add_u32 {s(sx)}, {s(sx)}, {ST + 1024}")
    A(f"v_lshl_add_u32 {v(vT1)}, {v(vTok)}, 2, {s(sx)}")
    A(f"ds_write_b32 {v(vT1)}, {v(vMr)}")
    A(f"ds_write_b32 {v(vT1)}, {v(vRstd)} offset:128")
    A(f"v_lshl_add_u32 {v(vT0)}, {v(vHf)}, 4, {s(sx)}")
    A(f"v_mul_f32 {v(vRq)}, {f2u(LOG2E*0.25):#x}, {v(vRstd)}")
    A("s_waitcnt lgkmcnt(0)")
    for a_ in range(4):
        A(f"ds_read_b128 {v(st1+4*a_,4)}, {v(vT0)} offset:{a_*32}")
    for a_ in range(4):
        A(f"ds_read_b128 {v(st2+4*a_,4)}, {v(vT0)} offset:{128+a_*32}")
    for r in range(16):
        A(f"v_fma_f32 {v(acc[0]+r)}, -{v(vMean)}, {v(csr+r)}, {v(acc[0]+r)}")
    for r in range(16):
        A(f"v_mul_f32 {v(acc[0]+r)}, {v(vRq)}, {v(acc[0]+r)}")
    for i in range(8):
        A(f"v_cvt_pk_bf16_f32 {v(pk+i)}, {v(acc[0]+2*i)}, {v(acc[0]+2*i+1)}")
    A(f"buffer_store_dwordx4 {v(pk,4)}, {v(vL16)}, {s(sO,4)}, {s(sQo)} offen")
    A(f"s_add_u32 {s(sT0)}, {s(sQo)}, 65536")
    A(f"buffer_store_dwordx4 {v(pk+4,4)}, {v(vL16)}, {s(sO,4)}, {s(sT0)} offen")
    for r in range(16):
        A(f"v_fma_f32 {v(acc[1]+r)}, -{v(vMean)}, {v(csr2+r)}, {v(acc[1]+r)}")
    for r in range(16):
        A(f"v_mul_f32 {v(acc[1]+r)}, {v(vRstd)}, {v(acc[1]+r)}")
    for i in range(8):
        A(f"v_cvt_pk_bf16_f32 {v(pk2+i)}, {v(acc[1]+2*i)}, {v(acc[1]+2*i+1)}")
    A(f"buffer_store_dwordx4 {v(pk2,4)}, {v(vL16)}, {s(sO,4)}, {s(sKo)} offen")
    A(f"s_add_u32 {s(sT0)}, {s(sKo)}, 65536")
    A(f"buffer_store_dwordx4 {v(pk2+4,4)}, {v(vL16)}, {s(sO,4)}, {s(sT0)} offen")
    A("s_waitcnt lgkmcnt(0)")
    for r in range(16):
        A(f"v_mul_f32 {v(st1+r)}, {v(vCv)}, {v(st1+r)}")
    for r in range(16):
        A(f"v_fma_f32 {v(acc[2]+r)}, {v(acc[2]+r)}, {v(st2+r)}, -{v(st1+r)}")
    for i in range(8):
        A(f"v_cvt_pk_bf16_f32 {v(pk3+i)}, {v(acc[2]+2*i)}, {v(acc[2]+2*i+1)}")
    A(f"v_lshrrev_b32 {v(vT0)}, 4, {v(vTok)}")
    A(f"v_lshlrev_b32 {v(vT0)}, 16, {v(vT0)}")
    A(f"v_lshl_add_u32 {v(vT0)}, {v(vHf)}, 8, {v(vT0)}")
    A(f"v_and_b32 {v(vT1)}, 15, {v(vTok)}")
    A(f"v_lshl_add_u32 {v(vT0)}, {v(vT1)}, 4, {v(vT0)}")
    A(f"buffer_store_dwordx4 {v(pk3,4)}, {v(vT0)}, {s(sO,4)}, {s(sVo)} offen")
    A(f"buffer_store_dwordx4 {v(pk3+4,4)}, {v(vT0)}, {s(sO,4)}, {s(sVo)} offen offset:512")
    K.stamp()
    vN = [V.alloc(), V.alloc()]
    for e in range(2):
        for i in range(4):
            A(f"v_lshlrev_b32 {v(csr+2*i)}, 16, {v(pk2+4*e+i)}")
            A(f"v_and_b32 {v(csr+2*i+1)}, 0xffff0000, {v(pk2+4*e+i)}")
        A(f"v_mul_f32 {v(vN[e])}, {v(csr)}, {v(csr)}")
        for i in range(1, 8): A(f"v_fmac_f32 {v(vN[e])}, {v(csr+i)}, {v(csr+i)}")
    swap_add(A, vN[0], vT2)
    swap_add(A, vN[1], vT1)
    for sh in (8, 4, 2, 1):
        for e in range(2):
            A(f"v_max_f32_dpp {v(vN[e])}, {v(vN[e])}, {v(vN[e])} row_ror:{sh} row_mask:0xf bank_mask:0xf")
    sN = [S.alloc() for _ in range(4)]
    for e in range(2):
        A(f"v_readlane_b32 {s(sN[2*e])}, {v(vN[e])}, 0")
        A(f"v_readlane_b32 {s(sN[2*e+1])}, {v(vN[e])}, 16")
    for e in range(2):
        A(f"s_max_u32 {s(sN[2*e])}, {s(sN[2*e])}, {s(sN[2*e+1])}")
    A(f"s_lshl_b32 {s(sT0)}, {s(sHp)}, 9")
    A(f"s_lshl_b32 {s(sT1)}, {s(sTile)}, 2")
    A(f"s_add_u32 {s(sT0)}, {s(sT0)}, {s(sT1)}")
    A(f"s_add_u32 {s(sT0)}, {s(sT0)}, {WS_KMAX}")
    A(f"v_mov_b32 {v(vN[0])}, {s(sN[0])}")
    A(f"v_mov_b32 {v(vN[1])}, {s(sN[2])}")
    A(f"v_mov_b32 {v(vT1)}, 0")
    A("s_mov_b64 exec, 1")
    A(f"buffer_store_dword {v(vN[0])}, {v(vT1)}, {s(sO,4)}, {s(sT0)} offen")
    A(f"buffer_store_dword {v(vN[1])}, {v(vT1)}, {s(sO,4)}, {s(sT0)} offen offset:256")
    K.stamp_out(sO, 0, vT0, vT1)
    K.rt_end(sO, 0, vT0, vT1)
    A.label(END)
    A("s_endpgm")
    print("k1 vgprs", V.hi, "sgprs", S.hi, "lds", K.lds)
    return K

def wave_max64(A, x, sdst, stmp):
    for sh in (8, 4, 2, 1):
        A(f"v_max_f32_dpp {v(x)}, {v(x)}, {v(x)} row_ror:{sh} row_mask:0xf bank_mask:0xf")
    A(f"v_readlane_b32 {s(sdst)}, {v(x)}, 0")
    for ln in (16, 32, 48):
        A(f"v_readlane_b32 {s(stmp)}, {v(x)}, {ln}")
        A(f"s_max_u32 {s(sdst)}, {s(sdst)}, {s(stmp)}")

def k2(nqb=2):
    ks = nqb
    KR = 0; VR = 65536; ON = 131072; EX = ON + 4608
    K = Kern("k2_attn_kernel", (256, 1, 1), (512, 1, 1), EX)
    A, V, S = K.A, K.V, K.S
    END = "K2_END"
    sWs = S.alloc(2)
    A(f"s_load_dwordx2 {s(sWs,2)}, s[0:1], 80")
    A(f"s_cmp_ge_u32 s2, 256")
    A(f"s_cbranch_scc1 {END}")
    K.rt_begin()
    K.stamp()
    sO = S.alloc(4)
    sW, sXcd, sJ, sHead, sQb, sT0, sT1, sWq, sKh, sHb, sIt, sKm = [S.alloc() for _ in range(12)]
    vLane, vT0, vT1, vT2, vHf, vTok, vL16, vK, vV, vVinc = [V.alloc() for _ in range(10)]
    A(f"v_lshrrev_b32 {v(vT0)}, 6, v0")
    A(f"v_and_b32 {v(vLane)}, 63, v0")
    A(f"v_readfirstlane_b32 {s(sW)}, {v(vT0)}")
    A(f"s_and_b32 {s(sXcd)}, s2, 7")
    A(f"s_lshr_b32 {s(sJ)}, s2, 3")
    A(f"s_and_b32 {s(sT0)}, {s(sJ)}, 3")
    A(f"s_lshl_b32 {s(sHead)}, {s(sXcd)}, 2")
    A(f"s_add_u32 {s(sHead)}, {s(sHead)}, {s(sT0)}")
    A(f"s_lshr_b32 {s(sQb)}, {s(sJ)}, 2")
    if ks == 2:
        A(f"s_and_b32 {s(sWq)}, {s(sW)}, 3")
        A(f"s_lshr_b32 {s(sKh)}, {s(sW)}, 2")
    else:
        A(f"s_mov_b32 {s(sWq)}, {s(sW)}")
        A(f"s_mov_b32 {s(sKh)}, 0")
    A(f"s_lshl_b32 {s(sHb)}, {s(sHead)}, 16")
    A(f"v_lshlrev_b32 {v(vL16)}, 4, {v(vLane)}")
    A("s_waitcnt lgkmcnt(0)")
    srd(A, sO, sWs, WS_SIZE)
    Q = [V.alloc(4) for _ in range(nqb)]
    vKm = V.alloc()
    A(f"s_lshl_b32 {s(sT0)}, {s(sQb)}, 3")
    A(f"s_mul_i32 {s(sT1)}, {s(sWq)}, {nqb}")
    A(f"s_add_u32 {s(sT0)}, {s(sT0)}, {s(sT1)}")
    sQt = S.alloc()
    A(f"s_mov_b32 {s(sQt)}, {s(sT0)}")
    A(f"s_lshl_b32 {s(sT0)}, {s(sT0)}, 10")
    A(f"s_add_u32 {s(sT0)}, {s(sT0)}, {s(sHb)}")
    for b in range(nqb):
        A(f"buffer_load_dwordx4 {v(Q[b],4)}, {v(vL16)}, {s(sO,4)}, {s(sT0)} offen offset:{b*1024}")
    A(f"v_lshlrev_b32 {v(vT0)}, 2, {v(vLane)}")
    A(f"s_lshl_b32 {s(sT0)}, {s(sHead)}, 8")
    A(f"s_add_u32 {s(sT0)}, {s(sT0)}, {WS_KMAX}")
    A(f"buffer_load_dword {v(vKm)}, {v(vT0)}, {s(sO,4)}, {s(sT0)} offen")
    sL, sG = S.alloc(), S.alloc()
    for g in range(4):
        if ks == 2:
            A(f"s_lshl_b32 {s(sL)}, {s(sKh)}, 5")
            A(f"s_lshl_b32 {s(sT0)}, {s(sWq)}, 1")
            A(f"s_add_u32 {s(sL)}, {s(sL)}, {s(sT0)}")
            if g: A(f"s_add_u32 {s(sL)}, {s(sL)}, {8*g}")
        else:
            A(f"s_lshl_b32 {s(sL)}, {s(sW)}, 1")
            if g: A(f"s_add_u32 {s(sL)}, {s(sL)}, {16*g}")
        A(f"s_lshl_b32 {s(sT0)}, {s(sQb)}, 3")
        A(f"s_add_u32 {s(sG)}, {s(sL)}, {s(sT0)}")
        A(f"s_and_b32 {s(sG)}, {s(sG)}, 63")
        A(f"s_lshl_b32 {s(sG)}, {s(sG)}, 10")
        A(f"s_add_u32 {s(sG)}, {s(sG)}, {s(sHb)}")
        A(f"s_lshl_b32 {s(sL)}, {s(sL)}, 10")
        A(f"s_add_u32 m0, {s(sL)}, {KR}")
        A(f"s_add_u32 {s(sT0)}, {s(sG)}, {WS_KF}")
        A(f"buffer_load_dwordx4 {v(vL16)}, {s(sO,4)}, {s(sT0)} offen lds")
        A(f"buffer_load_dwordx4 {v(vL16)}, {s(sO,4)}, {s(sT0)} offen offset:1024 lds")
        A(f"s_add_u32 m0, {s(sL)}, {VR}")
        A(f"s_add_u32 {s(sT0)}, {s(sG)}, {WS_VF}")
        A(f"buffer_load_dwordx4 {v(vL16)}, {s(sO,4)}, {s(sT0)} offen lds")
        A(f"buffer_load_dwordx4 {v(vL16)}, {s(sO,4)}, {s(sT0)} offen offset:1024 lds")
    K.stamp()
    A(f"v_mov_b32 {v(vT1)}, 0x3f803f80")
    A(f"v_lshlrev_b32 {v(vT0)}, 2, v0")
    A(f"v_add_u32 {v(vT0)}, {ON}, {v(vT0)}")
    A(f"ds_write_b32 {v(vT0)}, {v(vT1)}")
    A(f"ds_write_b32 {v(vT0)}, {v(vT1)} offset:2048")
    A(f"v_cmp_gt_u32 vcc, 128, v0")
    sSave = S.alloc(2)
    A(f"s_and_saveexec_b64 {s(sSave,2)}, vcc")
    A(f"ds_write_b32 {v(vT0)}, {v(vT1)} offset:4096")
    A(f"s_mov_b64 exec, {s(sSave,2)}")
    A(f"v_lshrrev_b32 {v(vHf)}, 5, {v(vLane)}")
    A(f"v_and_b32 {v(vTok)}, 31, {v(vLane)}")
    A(f"s_lshl_b32 {s(sT0)}, {s(sKh)}, 15")
    A(f"v_add_u32 {v(vK)}, {s(sT0)}, {v(vL16)}")
    A(f"v_lshlrev_b32 {v(vT0)}, 8, {v(vHf)}")
    A(f"v_lshl_add_u32 {v(vT0)}, {v(vTok)}, 4, {v(vT0)}")
    A(f"s_add_u32 {s(sT0)}, {s(sT0)}, {VR}")
    A(f"v_add_u32 {v(vT0)}, {s(sT0)}, {v(vT0)}")
    A(f"v_subrev_u32 {v(vT1)}, 20, {v(vTok)}")
    A(f"v_cmp_gt_u32 vcc, 8, {v(vT1)}")
    A(f"v_mov_b32 {v(vT1)}, {ON}")
    A(f"v_mov_b32 {v(vT2)}, {ON+64}")
    A(f"v_cndmask_b32 {v(vT1)}, {v(vT1)}, {v(vT2)}, vcc")
    A(f"v_cmp_gt_u32 vcc, 16, {v(vTok)}")
    A(f"v_cndmask_b32 {v(vV)}, {v(vT1)}, {v(vT0)}, vcc")
    A(f"v_mov_b32 {v(vT1)}, 4096")
    A(f"v_cndmask_b32 {v(vVinc)}, 0, {v(vT1)}, vcc")
    Kf = [V.alloc(4) for _ in range(2)]; Vf0 = [V.alloc(4) for _ in range(2)]; Vf1 = [V.alloc(4) for _ in range(2)]
    QB = [dict(S=[V.alloc(16), V.alloc(16)], P=V.alloc(8), O=V.alloc(16), C=V.alloc(16)) for _ in range(nqb)]
    ngrp_after = 12
    A(f"s_waitcnt vmcnt(16)")
    wave_max64(A, vKm, sKm, sT0)
    bad = S.alloc(2)
    for b in range(nqb):
        un = QB[b]["S"][0]
        for i in range(4):
            A(f"v_lshlrev_b32 {v(un+2*i)}, 16, {v(Q[b]+i)}")
            A(f"v_and_b32 {v(un+2*i+1)}, 0xffff0000, {v(Q[b]+i)}")
        A(f"v_mul_f32 {v(vT0)}, {v(un)}, {v(un)}")
        for i in range(1, 8): A(f"v_fmac_f32 {v(vT0)}, {v(un+i)}, {v(un+i)}")
        swap_add(A, vT0, vT1)
        A(f"v_mul_f32 {v(vT0)}, {s(sKm)}, {v(vT0)}")
        A(f"v_sqrt_f32 {v(vT0)}, {v(vT0)}")
        A(f"v_mov_b32 {v(vT1)}, {f2u(0.01):#x}")
        A(f"v_fmac_f32 {v(vT1)}, {f2u(1.01):#x}, {v(vT0)}")
        A(f"v_mov_b32 {v(vT2)}, {f2u(40.0):#x}")
        A(f"v_cmp_nge_f32 vcc, {v(vT2)}, {v(vT1)}")
        if b == 0: A(f"s_mov_b64 {s(bad,2)}, vcc")
        else: A(f"s_or_b64 {s(bad,2)}, {s(bad,2)}, vcc")
        for r in range(16): A(f"v_sub_f32 {v(QB[b]['C']+r)}, 0, {v(vT1)}")
        for r in range(16): A(f"v_mov_b32 {v(QB[b]['O']+r)}, 0")
        for r in range(4, 8): A(f"v_mov_b32 {v(QB[b]['P']+r)}, 0")
    for r in range(4): A(f"v_mov_b32 {v(Vf1[1]+r)}, 0")
    A(f"s_waitcnt vmcnt({ngrp_after}) lgkmcnt(0)")
    A("s_barrier")
    K.stamp()
    A(f"s_cmp_lg_u64 {s(bad,2)}, 0")
    A(f"s_cbranch_scc1 K2_SLOW")
    NT = 64 // ks
    mf = "v_mfma_f32_32x32x16_bf16"
    A(f"ds_read_b128 {v(Kf[0],4)}, {v(vK)}")
    A(f"ds_read_b128 {v(Kf[1],4)}, {v(vK)} offset:1024")
    A(f"ds_read_b128 {v(Vf0[0],4)}, {v(vV)}")
    A("s_waitcnt lgkmcnt(2)")
    for b in range(nqb):
        A(f"{mf} {v(QB[b]['S'][0],16)}, {v(Kf[0],4)}, {v(Q[b],4)}, {v(QB[b]['C'],16)}")
    A(f"s_mov_b32 {s(sIt)}, 0")
    A.label("K2_LOOP")
    A(f"s_cmp_lg_u32 {s(sIt)}, 1")
    A(f"s_cbranch_scc1 K2_NOSYNC")
    A("s_waitcnt vmcnt(0)")
    A("s_barrier")
    A.label("K2_NOSYNC")
    for t in range(4):
        cur, nxt = t & 1, (t + 1) & 1
        A("s_waitcnt lgkmcnt(0)")
        for b in range(nqb):
            q = QB[b]; Sx = q["S"][cur]; Sn = q["S"][nxt]; P = q["P"]; O = q["O"]
            ex = [f"v_exp_f32 {v(Sx+i)}, {v(Sx+i)}" for i in range(16)]
            cv = [f"v_cvt_pk_bf16_f32 {v(P+i)}, {v(Sx+2*i)}, {v(Sx+2*i+1)}" for i in range(8)]
            A(f"{mf} {v(Sn,16)}, {v(Kf[nxt],4)}, {v(Q[b],4)}, {v(q['C'],16)}")
            for x in ex[0:4]: A(x)
            A(cv[0])
            for x in ex[4:6]: A(x)
            A(cv[1])
            A(f"{mf} {v(O,16)}, {v(Vf1[nxt],4)}, {v(P+4,4)}, {v(O,16)}")
            if b == 0:
                A(f"ds_read_b128 {v(Kf[cur],4)}, {v(vK)} offset:{(t+2)*1024}")
                A(f"ds_read_b128 {v(Vf0[nxt],4)}, {v(vV)} offset:{(t+1)*1024}")
                A(f"ds_read_b128 {v(Vf1[cur],4)}, {v(vV)} offset:{t*1024+512}")
            for x in ex[6:8]: A(x)
            A(cv[2])
            for x in ex[8:10]: A(x)
            A(cv[3])
            for x in ex[10:12]: A(x)
            A(cv[4])
            A(f"{mf} {v(O,16)}, {v(Vf0[cur],4)}, {v(P,4)}, {v(O,16)}")
            for x in ex[12:14]: A(x)
            A(cv[5])
            for x in ex[14:16]: A(x)
            A(cv[6])
            A(cv[7])
    A(f"v_add_u32 {v(vK)}, 4096, {v(vK)}")
    A(f"v_add_u32 {v(vV)}, {v(vVinc)}, {v(vV)}")
    A(f"s_add_u32 {s(sIt)}, {s(sIt)}, 1")
    A(f"s_cmp_lt_u32 {s(sIt)}, {NT//4}")
    A(f"s_cbranch_scc1 K2_LOOP")
    A("s_waitcnt lgkmcnt(0)")
    for b in range(nqb):
        A(f"{mf} {v(QB[b]['O'],16)}, {v(Vf1[1],4)}, {v(QB[b]['P']+4,4)}, {v(QB[b]['O'],16)}")
    A("s_branch K2_FIN")
    A.label("K2_SLOW")
    A("s_waitcnt vmcnt(0)")
    A("s_barrier")
    for b in range(nqb):
        A(f"v_mov_b32 {v(QB[b]['C'])}, {f2u(-3.0e38):#x}")
    A(f"s_mov_b32 {s(sIt)}, 0")
    A.label("K2_SLOOP")
    A(f"ds_read_b128 {v(Kf[0],4)}, {v(vK)}")
    A(f"ds_read_b128 {v(Vf0[0],4)}, {v(vV)}")
    A(f"ds_read_b128 {v(Vf1[0],4)}, {v(vV)} offset:512")
    A("s_waitcnt lgkmcnt(0)")
    for b in range(nqb):
        q = QB[b]; Sx = q["S"][0]; P = q["P"]; O = q["O"]; m = q["C"]; mn = q["C"] + 1; al = q["C"] + 2
        A(f"{mf} {v(Sx,16)}, {v(Kf[0],4)}, {v(Q[b],4)}, 0")
        A(f"v_max_f32 {v(mn)}, {v(Sx)}, {v(Sx+1)}")
        for i in range(2, 16): A(f"v_max_f32 {v(mn)}, {v(mn)}, {v(Sx+i)}")
        swap_add(A, mn, vT1, "v_max_f32")
        A(f"v_max_f32 {v(mn)}, {v(mn)}, {v(m)}")
        A(f"v_sub_f32 {v(al)}, {v(m)}, {v(mn)}")
        A(f"v_exp_f32 {v(al)}, {v(al)}")
        A(f"v_mov_b32 {v(m)}, {v(mn)}")
        for i in range(16): A(f"v_sub_f32 {v(Sx+i)}, {v(Sx+i)}, {v(mn)}")
        for i in range(16): A(f"v_exp_f32 {v(Sx+i)}, {v(Sx+i)}")
        for i in range(16): A(f"v_mul_f32 {v(O+i)}, {v(al)}, {v(O+i)}")
        for i in range(8): A(f"v_cvt_pk_bf16_f32 {v(P+i)}, {v(Sx+2*i)}, {v(Sx+2*i+1)}")
        A(f"{mf} {v(O,16)}, {v(Vf0[0],4)}, {v(P,4)}, {v(O,16)}")
        A(f"{mf} {v(O,16)}, {v(Vf1[0],4)}, {v(P+4,4)}, {v(O,16)}")
    A(f"v_add_u32 {v(vK)}, 1024, {v(vK)}")
    A(f"v_lshrrev_b32 {v(vT0)}, 2, {v(vVinc)}")
    A(f"v_add_u32 {v(vV)}, {v(vT0)}, {v(vV)}")
    A(f"s_add_u32 {s(sIt)}, {s(sIt)}, 1")
    A(f"s_cmp_lt_u32 {s(sIt)}, {NT}")
    A(f"s_cbranch_scc1 K2_SLOOP")
    A(f"s_mov_b32 {s(sIt)}, -1")
    A.label("K2_FIN")
    K.stamp()
    if ks == 2:
        vM = [V.alloc(), V.alloc()]
        for b in range(2):
            A(f"v_sub_f32 {v(vM[b])}, 0, {v(QB[b]['C'])}")
        A(f"s_cmp_lg_u32 {s(sIt)}, -1")
        A(f"s_cbranch_scc1 K2_F1")
        for b in range(2):
            A(f"v_mov_b32 {v(vM[b])}, {v(QB[b]['C'])}")
        A.label("K2_F1")
        snd = V.alloc(10); kp = V.alloc(10)
        A(f"s_cmp_eq_u32 {s(sKh)}, 0")
        A(f"s_cbranch_scc1 K2_F2")
        for r in range(9):
            A(f"v_mov_b32 {v(snd+r)}, {v(QB[0]['O']+r)}"); A(f"v_mov_b32 {v(kp+r)}, {v(QB[1]['O']+r)}")
        A(f"v_mov_b32 {v(snd+9)}, {v(vM[0])}"); A(f"v_mov_b32 {v(kp+9)}, {v(vM[1])}")
        A("s_branch K2_F3")
        A.label("K2_F2")
        for r in range(9):
            A(f"v_mov_b32 {v(snd+r)}, {v(QB[1]['O']+r)}"); A(f"v_mov_b32 {v(kp+r)}, {v(QB[0]['O']+r)}")
        A(f"v_mov_b32 {v(snd+9)}, {v(vM[1])}"); A(f"v_mov_b32 {v(kp+9)}, {v(vM[0])}")
        A.label("K2_F3")
        A("s_barrier")
        A(f"s_mul_i32 {s(sT0)}, {s(sW)}, 2560")
        A(f"v_lshlrev_b32 {v(vT0)}, 2, {v(vLane)}")
        A(f"v_add_u32 {v(vT0)}, {s(sT0)}, {v(vT0)}")
        for r in range(10): A(f"ds_write_b32 {v(vT0)}, {v(snd+r)} offset:{r*256}")
        A("s_waitcnt lgkmcnt(0)")
        A("s_barrier")
        A(f"s_xor_b32 {s(sT0)}, {s(sW)}, 4")
        A(f"s_mul_i32 {s(sT0)}, {s(sT0)}, 2560")
        A(f"v_lshlrev_b32 {v(vT0)}, 2, {v(vLane)}")
        A(f"v_add_u32 {v(vT0)}, {s(sT0)}, {v(vT0)}")
        for r in range(10): A(f"ds_read_b32 {v(snd+r)}, {v(vT0)} offset:{r*256}")
        A("s_waitcnt lgkmcnt(0)")
        A(f"v_max_f32 {v(vT0)}, {v(kp+9)}, {v(snd+9)}")
        A(f"v_sub_f32 {v(vT1)}, {v(kp+9)}, {v(vT0)}")
        A(f"v_sub_f32 {v(vT2)}, {v(snd+9)}, {v(vT0)}")
        A(f"v_exp_f32 {v(vT1)}, {v(vT1)}")
        A(f"v_exp_f32 {v(vT2)}, {v(vT2)}")
        for r in range(9): A(f"v_mul_f32 {v(kp+r)}, {v(vT1)}, {v(kp+r)}")
        for r in range(9): A(f"v_fmac_f32 {v(kp+r)}, {v(vT2)}, {v(snd+r)}")
        outs = [(kp, None)]
        A(f"s_add_u32 {s(sQt)}, {s(sQt)}, {s(sKh)}")
    else:
        outs = [(QB[0]["O"], None)]
    for (O, _) in outs:
        A(f"v_rcp_f32 {v(vT0)}, {v(O+8)}")
        for r in range(8): A(f"v_mul_f32 {v(O+r)}, {v(vT0)}, {v(O+r)}")
        pk = V.alloc(4)
        for i in range(4): A(f"v_cvt_pk_bf16_f32 {v(pk+i)}, {v(O+2*i)}, {v(O+2*i+1)}")
        A(f"s_lshl_b32 {s(sT0)}, {s(sQt)}, 15")
        A(f"s_lshl_b32 {s(sT1)}, {s(sHead)}, 10")
        A(f"s_add_u32 {s(sT0)}, {s(sT0)}, {s(sT1)}")
        A(f"s_add_u32 {s(sT0)}, {s(sT0)}, {WS_OF}")
        A(f"buffer_store_dwordx4 {v(pk,4)}, {v(vL16)}, {s(sO,4)}, {s(sT0)} offen")
    K.stamp_out(sO, 1, vT0, vT1)
    K.rt_end(sO, 1, vT0, vT1)
    A.label(END)
    A("s_endpgm")
    print("k2 vgprs", V.hi, "sgprs", S.hi, "lds", K.lds)
    return K

def wave_ids(K, sW8, sW, vLane, vT0):
    A = K.A
    A(f"v_lshrrev_b32 {v(vT0)}, 6, v0")
    A(f"v_and_b32 {v(vLane)}, 63, v0")
    A(f"v_readfirstlane_b32 {s(sW8)}, {v(vT0)}")
    A(f"s_and_b32 {s(sW)}, {s(sW8)}, 3")

def w_voff(A, vdst, vLane, pitch, t0, t1):
    A(f"v_bfe_u32 {v(t0)}, {v(vLane)}, 2, 3")
    A(f"v_mul_u32_u24 {v(t0)}, {pitch}, {v(t0)}")
    A(f"v_and_b32 {v(t1)}, 3, {v(vLane)}")
    A(f"v_lshl_add_u32 {v(t0)}, {v(t1)}, 4, {v(t0)}")
    A(f"v_lshrrev_b32 {v(t1)}, 5, {v(vLane)}")
    A(f"v_lshl_add_u32 {v(vdst)}, {v(t1)}, 6, {v(t0)}")

def tr_pi_base(A, vdst, vLane, vHf, t0, t1):
    A(f"v_and_b32 {v(t0)}, 15, {v(vLane)}")
    A(f"v_lshrrev_b32 {v(t1)}, 2, {v(t0)}")
    A(f"v_lshl_add_u32 {v(t1)}, {v(vHf)}, 2, {v(t1)}")
    A(f"v_lshlrev_b32 {v(t1)}, 6, {v(t1)}")
    A(f"v_and_b32 {v(t0)}, 3, {v(t0)}")
    A(f"v_lshl_add_u32 {v(t1)}, {v(t0)}, 3, {v(t1)}")
    A(f"v_bfe_u32 {v(t0)}, {v(vLane)}, 4, 1")
    A(f"v_lshl_add_u32 {v(vdst)}, {v(t0)}, 5, {v(t1)}")

def reduce4(K, acc, RED, sW, vL16, vT0, sT0, out):
    A = K.A
    A(f"s_lshl_b32 {s(sT0)}, {s(sW)}, 12")
    A(f"s_add_u32 {s(sT0)}, {s(sT0)}, {RED}")
    A(f"v_add_u32 {v(vT0)}, {s(sT0)}, {v(vL16)}")
    for t in range(4):
        for q in range(4):
            A(f"ds_write_b128 {v(vT0)}, {v(acc[t]+4*q,4)} offset:{t*16384 + q*1024}")
    A("s_waitcnt lgkmcnt(0)")
    A("s_barrier")
    A(f"s_lshl_b32 {s(sT0)}, {s(sW)}, 14")
    A(f"s_add_u32 {s(sT0)}, {s(sT0)}, {RED}")
    A(f"v_add_u32 {v(vT0)}, {s(sT0)}, {v(vL16)}")
    for p in range(4):
        for q in range(4):
            A(f"ds_read_b128 {v(acc[p]+4*q,4)}, {v(vT0)} offset:{p*4096 + q*1024}")
    A("s_waitcnt lgkmcnt(8)")
    for r in range(16): A(f"v_add_f32 {v(out+r)}, {v(acc[0]+r)}, {v(acc[1]+r)}")
    A("s_waitcnt lgkmcnt(0)")
    for r in range(16): A(f"v_add_f32 {v(acc[2]+r)}, {v(acc[2]+r)}, {v(acc[3]+r)}")
    for r in range(16): A(f"v_add_f32 {v(out+r)}, {v(out+r)}, {v(acc[2]+r)}")

def k3():
    WO = 0; XT = 65536; RED = XT + 8192
    K = Kern("k3_oproj_kernel", (256, 1, 1), (512, 1, 1), RED + 65536)
    A, V, S = K.A, K.V, K.S
    END = "K3_END"
    sP = S.alloc(4); sWs = S.alloc(2)
    A(f"s_load_dwordx2 {s(sP,2)}, s[0:1], 0")
    A(f"s_load_dwordx2 {s(sP+2,2)}, s[0:1], 16")
    A(f"s_load_dwordx2 {s(sWs,2)}, s[0:1], 80")
    A(f"s_cmp_ge_u32 s2, 256")
    A(f"s_cbranch_scc1 {END}")
    K.rt_begin()
    K.stamp()
    sX = S.alloc(4); sWo = S.alloc(4); sO = S.alloc(4)
    sW8, sW, sXcd, sJ, sRt, sCt, sT0, sT1, sB = [S.alloc() for _ in range(9)]
    vLane, vT0, vT1, vT2, vHf, vTok, vL16 = [V.alloc() for _ in range(7)]
    wave_ids(K, sW8, sW, vLane, vT0)
    A(f"s_and_b32 {s(sXcd)}, s2, 7")
    A(f"s_lshr_b32 {s(sJ)}, s2, 3")
    A(f"s_and_b32 {s(sT0)}, {s(sJ)}, 3")
    A(f"s_lshl_b32 {s(sRt)}, {s(sXcd)}, 2")
    A(f"s_add_u32 {s(sRt)}, {s(sRt)}, {s(sT0)}")
    A(f"s_lshr_b32 {s(sCt)}, {s(sJ)}, 2")
    A(f"s_cmp_lt_u32 {s(sW8)}, 4")
    A(f"s_cbranch_scc1 K3_COMPUTE")
    mk0 = V.mark()
    vWoff, vXoff = V.alloc(), V.alloc()
    w_voff(A, vWoff, vLane, 1024, vT0, vT1)
    A(f"s_and_b32 {s(sT0)}, {s(sW)}, 1")
    A(f"s_lshl_b32 {s(sT0)}, {s(sT0)}, 2")
    A(f"v_lshrrev_b32 {v(vT0)}, 4, {v(vLane)}")
    A(f"v_or_b32 {v(vT0)}, {s(sT0)}, {v(vT0)}")
    A(f"v_and_b32 {v(vT1)}, 7, {v(vLane)}")
    A(f"v_xor_b32 {v(vT0)}, {v(vT0)}, {v(vT1)}")
    A(f"v_lshlrev_b32 {v(vT0)}, 4, {v(vT0)}")
    A(f"v_lshrrev_b32 {v(vT1)}, 3, {v(vLane)}")
    A(f"v_lshlrev_b32 {v(vT1)}, 10, {v(vT1)}")
    A(f"v_add_u32 {v(vXoff)}, {v(vT0)}, {v(vT1)}")
    A("s_waitcnt lgkmcnt(0)")
    srd(A, sX, sP, 2048 * 512 * 2)
    srd(A, sWo, sP + 2, 512 * 512 * 2)
    A(f"s_lshl_b32 {s(sB)}, {s(sW)}, 17")
    A(f"s_lshl_b32 {s(sT0)}, {s(sCt)}, 7")
    A(f"s_add_u32 {s(sB)}, {s(sB)}, {s(sT0)}")
    A(f"s_lshl_b32 {s(sT1)}, {s(sW)}, 14")
    for g in range(16):
        A(f"s_add_u32 m0, {s(sT1)}, {WO + g*1024}")
        A(f"s_add_u32 {s(sT0)}, {s(sB)}, {g*8192}")
        A(f"buffer_load_dwordx4 {v(vWoff)}, {s(sWo,4)}, {s(sT0)} offen lds")
        if g == 7:
            pass
    A(f"s_lshl_b32 {s(sB)}, {s(sRt)}, 16")
    A(f"s_lshl_b32 {s(sT0)}, {s(sCt)}, 7")
    A(f"s_add_u32 {s(sB)}, {s(sB)}, {s(sT0)}")
    A(f"s_lshl_b32 {s(sT0)}, {s(sW)}, 13")
    A(f"s_add_u32 {s(sB)}, {s(sB)}, {s(sT0)}")
    A(f"s_lshl_b32 {s(sT1)}, {s(sW)}, 10")
    for n in range(2):
        A(f"s_add_u32 m0, {s(sT1)}, {XT + n*4096}")
        A(f"s_add_u32 {s(sT0)}, {s(sB)}, {n*32768}")
        A(f"buffer_load_dwordx4 {v(vXoff)}, {s(sX,4)}, {s(sT0)} offen lds")
    A("s_waitcnt vmcnt(10)")
    A("s_barrier")
    A("s_waitcnt vmcnt(0)")
    A("s_barrier")
    A("s_endpgm")
    V.release(mk0)
    A.label("K3_COMPUTE")
    Af = [[V.alloc(4) for _ in range(8)] for _ in range(2)]
    acc = [V.alloc(16) for _ in range(4)]
    Bf = [[V.alloc(4) for _ in range(2)] for _ in range(2)]
    vB = V.alloc()
    A(f"v_lshlrev_b32 {v(vL16)}, 4, {v(vLane)}")
    A(f"v_lshrrev_b32 {v(vHf)}, 5, {v(vLane)}")
    A(f"v_and_b32 {v(vTok)}, 31, {v(vLane)}")
    A("s_waitcnt lgkmcnt(0)")
    srd(A, sO, sWs, WS_SIZE)
    A(f"s_lshl_b32 {s(sB)}, {s(sRt)}, 16")
    A(f"s_lshl_b32 {s(sT0)}, {s(sW)}, 13")
    A(f"s_add_u32 {s(sB)}, {s(sB)}, {s(sT0)}")
    A(f"s_add_u32 {s(sB)}, {s(sB)}, {WS_OF}")
    for h in range(2):
        for r in range(2):
            A(f"s_add_u32 {s(sT0)}, {s(sB)}, {r*32768 + h*4096}")
            for i in range(4):
                A(f"buffer_load_dwordx4 {v(Af[r][4*h+i],4)}, {v(vL16)}, {s(sO,4)}, {s(sT0)} offen offset:{i*1024}")
    tr_pi_base(A, vB, vLane, vHf, vT0, vT1)
    A(f"s_lshl_b32 {s(sT0)}, {s(sW)}, 14")
    A(f"v_add_u32 {v(vB)}, {s(sT0)}, {v(vB)}")
    def rd(i):
        for b in range(2):
            A(f"ds_read_b64_tr_b16 {v(Bf[i&1][b],2)}, {v(vB)} offset:{WO + i*2048 + b*512}")
            A(f"ds_read_b64_tr_b16 {v(Bf[i&1][b]+2,2)}, {v(vB)} offset:{WO + i*2048 + b*512 + 1024}")
    K.stamp()
    A("s_barrier")
    K.stamp()
    rd(0)
    for i in range(8):
        if i == 3:
            A("s_barrier")
        if i + 1 < 8:
            rd(i + 1)
            A(f"s_waitcnt lgkmcnt(4)")
        else:
            A(f"s_waitcnt lgkmcnt(0)")
        if i == 0: A("s_waitcnt vmcnt(8)")
        if i == 4: A("s_waitcnt vmcnt(0)")
        for b in range(2):
            for r in range(2):
                t = 2 * b + r
                A(f"v_mfma_f32_32x32x16_bf16 {v(acc[t],16)}, {v(Bf[i&1][b],4)}, {v(Af[r][i],4)}, {'0' if i == 0 else v(acc[t],16)}")
    K.stamp()
    xr = V.alloc(8); out = V.alloc(16)
    sBb, sRr = S.alloc(), S.alloc()
    A(f"s_lshr_b32 {s(sBb)}, {s(sW)}, 1")
    A(f"s_and_b32 {s(sRr)}, {s(sW)}, 1")
    A(f"v_lshrrev_b32 {v(vT2)}, 1, {v(vTok)}")
    A(f"v_and_b32 {v(vT2)}, 7, {v(vT2)}")
    A(f"s_lshl_b32 {s(sT0)}, {s(sRr)}, 12")
    A(f"s_add_u32 {s(sT0)}, {s(sT0)}, {XT}")
    A(f"v_lshlrev_b32 {v(vT1)}, 7, {v(vTok)}")
    A(f"v_lshl_add_u32 {v(vT1)}, {v(vHf)}, 3, {v(vT1)}")
    A(f"v_add_u32 {v(vT1)}, {s(sT0)}, {v(vT1)}")
    A(f"s_lshl_b32 {s(sT1)}, {s(sBb)}, 2")
    for a_ in range(4):
        A(f"s_add_u32 {s(sT0)}, {s(sT1)}, {a_}")
        A(f"v_xor_b32 {v(vT0)}, {s(sT0)}, {v(vT2)}")
        A(f"v_lshl_add_u32 {v(vT0)}, {v(vT0)}, 4, {v(vT1)}")
        A(f"ds_read_b64 {v(xr+2*a_,2)}, {v(vT0)}")
    reduce4(K, acc, RED, sW, vL16, vT0, sT0, out)
    K.stamp()
    un = acc[0]
    for i in range(8):
        A(f"v_lshlrev_b32 {v(un+2*i)}, 16, {v(xr+i)}")
        A(f"v_and_b32 {v(un+2*i+1)}, 0xffff0000, {v(xr+i)}")
    for r in range(16): A(f"v_add_f32 {v(out+r)}, {v(out+r)}, {v(un+r)}")
    pk = acc[1]
    for i in range(8): A(f"v_cvt_pk_bf16_f32 {v(pk+i)}, {v(out+2*i)}, {v(out+2*i+1)}")
    A(f"s_lshl_b32 {s(sT0)}, {s(sRt)}, 1")
    A(f"s_add_u32 {s(sT0)}, {s(sT0)}, {s(sRr)}")
    A(f"s_lshl_b32 {s(sB)}, {s(sT0)}, 15")
    A(f"s_lshl_b32 {s(sT1)}, {s(sCt)}, 12")
    A(f"s_add_u32 {s(sB)}, {s(sB)}, {s(sT1)}")
    A(f"s_lshl_b32 {s(sT1)}, {s(sBb)}, 11")
    A(f"s_add_u32 {s(sB)}, {s(sB)}, {s(sT1)}")
    A(f"s_add_u32 {s(sB)}, {s(sB)}, {WS_HF}")
    A(f"buffer_store_dwordx4 {v(pk,4)}, {v(vL16)}, {s(sO,4)}, {s(sB)} offen")
    A(f"buffer_store_dwordx4 {v(pk+4,4)}, {v(vL16)}, {s(sO,4)}, {s(sB)} offen offset:1024")
    for i in range(8):
        A(f"v_lshlrev_b32 {v(un+2*i)}, 16, {v(pk+i)}")
        A(f"v_and_b32 {v(un+2*i+1)}, 0xffff0000, {v(pk+i)}")
    st = V.alloc(2)
    A(f"v_add_f32 {v(st)}, {v(un)}, {v(un+1)}")
    A(f"v_mul_f32 {v(st+1)}, {v(un)}, {v(un)}")
    A(f"v_fmac_f32 {v(st+1)}, {v(un+1)}, {v(un+1)}")
    for r in range(2, 16):
        A(f"v_add_f32 {v(st)}, {v(st)}, {v(un+r)}")
        A(f"v_fmac_f32 {v(st+1)}, {v(un+r)}, {v(un+r)}")
    swap_add(A, st, vT1)
    swap_add(A, st + 1, vT2)
    A(f"s_lshl_b32 {s(sT0)}, {s(sT0)}, 12")
    A(f"s_lshl_b32 {s(sT1)}, {s(sCt)}, 9")
    A(f"s_add_u32 {s(sT0)}, {s(sT0)}, {s(sT1)}")
    A(f"s_lshl_b32 {s(sT1)}, {s(sBb)}, 8")
    A(f"s_add_u32 {s(sT0)}, {s(sT0)}, {s(sT1)}")
    A(f"s_add_u32 {s(sT0)}, {s(sT0)}, {WS_HS}")
    A(f"v_lshlrev_b32 {v(vT0)}, 3, {v(vTok)}")
    A("s_mov_b32 exec_hi, 0")
    A(f"buffer_store_dwordx2 {v(st,2)}, {v(vT0)}, {s(sO,4)}, {s(sT0)} offen")
    K.stamp_out(sO, 2, vT0, vT1)
    K.rt_end(sO, 2, vT0, vT1)
    A.label(END)
    A("s_endpgm")
    print("k3 vgprs", V.hi, "sgprs", S.hi, "lds", K.lds)
    return K

def k4():
    W1 = 0; CS = 131072; BI = CS + 4 * 512 * 1;
    BI = CS + 2048
    K = Kern("k4_mlp1_kernel", (256, 1, 1), (512, 1, 1), BI + 512)
    A, V, S = K.A, K.V, K.S
    END = "K4_END"
    sP = S.alloc(4); sWs = S.alloc(2)
    A(f"s_load_dwordx4 {s(sP,4)}, s[0:1], 32")
    A(f"s_load_dwordx2 {s(sWs,2)}, s[0:1], 80")
    sW8, sW, sXcd, sJ, sRt, sCt, sT0, sT1, sB, sRot = [S.alloc() for _ in range(10)]
    A(f"s_and_b32 {s(sXcd)}, s2, 7")
    A(f"s_lshr_b32 {s(sJ)}, s2, 3")
    A(f"s_cmp_ge_u32 {s(sJ)}, 28")
    A(f"s_cbranch_scc1 {END}")
    K.rt_begin()
    K.stamp()
    sW1 = S.alloc(4); sO = S.alloc(4); sB1 = S.alloc(4)
    vLane, vT0, vT1, vT2, vHf, vTok, vL16 = [V.alloc() for _ in range(7)]
    wave_ids(K, sW8, sW, vLane, vT0)
    A(f"s_and_b32 {s(sT0)}, {s(sXcd)}, 3")
    A(f"s_lshl_b32 {s(sT0)}, {s(sT0)}, 2")
    A(f"s_and_b32 {s(sT1)}, {s(sJ)}, 3")
    A(f"s_add_u32 {s(sRt)}, {s(sT0)}, {s(sT1)}")
    A(f"s_lshr_b32 {s(sT0)}, {s(sXcd)}, 2")
    A(f"s_mul_i32 {s(sT0)}, {s(sT0)}, 7")
    A(f"s_lshr_b32 {s(sCt)}, {s(sJ)}, 2")
    A(f"s_add_u32 {s(sCt)}, {s(sCt)}, {s(sT0)}")
    A(f"s_cmp_lt_u32 {s(sW8)}, 4")
    A(f"s_cbranch_scc1 K4_COMPUTE")
    mk0 = V.mark()
    vWoff = V.alloc()
    w_voff(A, vWoff, vLane, 3584, vT0, vT1)
    A("s_waitcnt lgkmcnt(0)")
    srd(A, sW1, sP, 512 * 1792 * 2)
    A(f"s_mul_i32 {s(sB)}, {s(sW)}, {32*3584}")
    A(f"s_lshl_b32 {s(sT0)}, {s(sCt)}, 8")
    A(f"s_add_u32 {s(sB)}, {s(sB)}, {s(sT0)}")
    A(f"s_lshl_b32 {s(sT1)}, {s(sW)}, 12")
    def dma(p, c):
        for q in range(4):
            A(f"s_add_u32 m0, {s(sT1)}, {W1 + p*65536 + c*16384 + q*1024}")
            A(f"s_add_u32 {s(sT0)}, {s(sB)}, {(128*c + 8*q)*3584 + p*128}")
            A(f"buffer_load_dwordx4 {v(vWoff)}, {s(sW1,4)}, {s(sT0)} offen lds")
    seq = [(p, c) for p in range(2) for c in range(4)]
    dma(*seq[0]); dma(*seq[1])
    for n in range(8):
        if n + 2 < 8: dma(*seq[n + 2])
        rem = min(8, n + 3) - (n + 1)
        A(f"s_waitcnt vmcnt({4*rem})")
        A("s_barrier")
    A("s_endpgm")
    V.release(mk0)
    A.label("K4_COMPUTE")
    Af = [V.alloc(4) for _ in range(32)]
    acc = [V.alloc(16) for _ in range(4)]
    Bf = [[V.alloc(4) for _ in range(2)] for _ in range(2)]
    csa = [V.alloc(4) for _ in range(4)]; msk = V.alloc(4)
    vB = [V.alloc() for _ in range(4)]
    hs = acc[3]
    A(f"v_lshlrev_b32 {v(vL16)}, 4, {v(vLane)}")
    A(f"v_lshrrev_b32 {v(vHf)}, 5, {v(vLane)}")
    A(f"v_and_b32 {v(vTok)}, 31, {v(vLane)}")
    A("s_waitcnt lgkmcnt(0)")
    srd(A, sO, sWs, WS_SIZE)
    srd(A, sB1, sP + 2, 1792 * 2)
    sR32 = S.alloc()
    A(f"s_lshl_b32 {s(sR32)}, {s(sRt)}, 2")
    A(f"s_add_u32 {s(sR32)}, {s(sR32)}, {s(sW)}")
    A(f"s_lshl_b32 {s(sT0)}, {s(sR32)}, 12")
    A(f"s_add_u32 {s(sT0)}, {s(sT0)}, {WS_HS}")
    A(f"v_lshlrev_b32 {v(vT0)}, 3, {v(vTok)}")
    A(f"v_lshl_add_u32 {v(vT0)}, {v(vHf)}, 11, {v(vT0)}")
    for i in range(8):
        A(f"buffer_load_dwordx2 {v(hs+2*i,2)}, {v(vT0)}, {s(sO,4)}, {s(sT0)} offen offset:{i*256}")
    vb1 = V.alloc()
    A(f"v_lshlrev_b32 {v(vT1)}, 2, {v(vLane)}")
    A(f"s_lshl_b32 {s(sT1)}, {s(sCt)}, 8")
    A(f"buffer_load_dword {v(vb1)}, {v(vT1)}, {s(sB1,4)}, {s(sT1)} offen")
    A(f"s_lshl_b32 {s(sB)}, {s(sR32)}, 15")
    A(f"s_add_u32 {s(sB)}, {s(sB)}, {WS_HF}")
    sQ = [S.alloc() for _ in range(4)]
    for q in range(4):
        A(f"s_xor_b32 {s(sQ[q])}, {s(sW)}, {q}")
        A(f"s_lshl_b32 {s(sQ[q])}, {s(sQ[q])}, 10")
    for g in range(8):
        for q in range(4):
            A(f"s_add_u32 {s(sT0)}, {s(sB)}, {s(sQ[q])}")
            A(f"s_add_u32 {s(sT0)}, {s(sT0)}, {g*4096}") if g else None
            A(f"buffer_load_dwordx4 {v(Af[4*g+q],4)}, {v(vL16)}, {s(sO,4)}, {s(sT0)} offen")
    tr_pi_base(A, vB[0], vLane, vHf, vT0, vT1)
    for q in (3, 2, 1, 0):
        A(f"s_lshl_b32 {s(sT0)}, {s(sQ[q])}, 1")
        A(f"v_add_u32 {v(vB[q])}, {s(sT0)}, {v(vB[0])}")
    A(f"v_and_b32 {v(vT0)}, 15, {v(vLane)}")
    A(f"v_bfe_u32 {v(vT1)}, {v(vLane)}, 4, 1")
    A(f"v_cmp_eq_u32 vcc, {v(vT0)}, {v(vT1)}")
    A(f"v_mov_b32 {v(vT0)}, 0x3f803f80")
    for i in range(4): A(f"v_cndmask_b32 {v(msk+i)}, 0, {v(vT0)}, vcc")
    A("s_waitcnt vmcnt(32)")
    vMean, vRs, vMr = V.alloc(), V.alloc(), V.alloc()
    for st_ in (4, 2, 1):
        for i in range(st_):
            A(f"v_add_f32 {v(hs+2*i)}, {v(hs+2*i)}, {v(hs+2*(i+st_))}")
            A(f"v_add_f32 {v(hs+2*i+1)}, {v(hs+2*i+1)}, {v(hs+2*(i+st_)+1)}")
    swap_add(A, hs, vT1)
    swap_add(A, hs + 1, vT2)
    A(f"v_mul_f32 {v(vMean)}, {f2u(1/512.):#x}, {v(hs)}")
    A(f"v_mul_f32 {v(vT1)}, {v(vMean)}, {v(vMean)}")
    A(f"v_mov_b32 {v(vT2)}, {f2u(1/512.):#x}")
    A(f"v_fma_f32 {v(vT1)}, {v(hs+1)}, {v(vT2)}, -{v(vT1)}")
    A(f"v_max_f32 {v(vT1)}, 0, {v(vT1)}")
    A(f"v_add_f32 {v(vT2)}, {f2u(1e-5):#x}, {v(vT1)}")
    A(f"v_rcp_f32 {v(vT0)}, {v(vT2)}")
    A(f"v_rsq_f32 {v(vRs)}, {v(vT2)}")
    A(f"v_mul_f32 {v(vT1)}, {v(vT1)}, {v(vT0)}")
    A(f"v_add_f32 {v(vT1)}, {f2u(1e-5):#x}, {v(vT1)}")
    A(f"v_rsq_f32 {v(vT1)}, {v(vT1)}")
    A(f"v_mul_f32 {v(vRs)}, {v(vRs)}, {v(vT1)}")
    A(f"v_mul_f32 {v(vMr)}, {v(vMean)}, {v(vRs)}")
    A(f"v_lshlrev_b32 {v(hs)}, 16, {v(vb1)}")
    A(f"v_and_b32 {v(hs+1)}, 0xffff0000, {v(vb1)}")
    A(f"v_lshlrev_b32 {v(vT0)}, 3, {v(vLane)}")
    A(f"v_add_u32 {v(vT0)}, {BI}, {v(vT0)}")
    A(f"ds_write_b64 {v(vT0)}, {v(hs,2)}")
    def rd(n):
        p, pos = n >> 5, n & 31
        for b in range(2):
            o = (pos >> 2) * 8192 + b * 512
            base = vB[pos & 3]
            A(f"ds_read_b64_tr_b16 {v(Bf[n&1][b],2)}, {v(base)} offset:{o}")
            A(f"ds_read_b64_tr_b16 {v(Bf[n&1][b]+2,2)}, {v(base)} offset:{o+1024}")
    K.stamp()
    A("s_barrier")
    K.stamp()
    rd(0)
    for n in range(64):
        p, pos = n >> 5, n & 31
        if n + 1 < 64:
            if (n + 1) % 8 == 0:
                A("s_waitcnt lgkmcnt(0)")
                A("s_barrier")
                if n + 1 == 32:
                    K.stamp()
                    for q in range(4): A(f"v_add_u32 {v(vB[q])}, 65536, {v(vB[q])}")
            rd(n + 1)
            A("s_waitcnt lgkmcnt(4)")
        else:
            A("s_waitcnt lgkmcnt(0)")
        if p == 0 and pos % 4 == 0:
            A(f"s_waitcnt vmcnt({28 - pos})")
        for b in range(2):
            t = 2 * p + b
            A(f"v_mfma_f32_32x32x16_bf16 {v(acc[t],16)}, {v(Bf[n&1][b],4)}, {v(Af[pos],4)}, {'0' if pos == 0 else v(acc[t],16)}")
            if pos % 4 == 0:
                A(f"v_mfma_f32_16x16x32_bf16 {v(csa[t],4)}, {v(Bf[n&1][b],4)}, {v(msk,4)}, {'0' if pos == 0 else v(csa[t],4)}")
    K.stamp()
    sSave = S.alloc(2)
    A(f"v_and_b32 {v(vT0)}, 15, {v(vLane)}")
    A(f"v_lshrrev_b32 {v(vT1)}, 4, {v(vLane)}")
    A(f"v_lshlrev_b32 {v(vT1)}, 4, {v(vT1)}")
    A(f"v_lshl_add_u32 {v(vT1)}, {v(vT0)}, 6, {v(vT1)}")
    A(f"s_lshl_b32 {s(sT0)}, {s(sW)}, 9")
    A(f"s_add_u32 {s(sT0)}, {s(sT0)}, {CS}")
    A(f"v_add_u32 {v(vT1)}, {s(sT0)}, {v(vT1)}")
    A(f"v_cmp_gt_u32 vcc, 2, {v(vT0)}")
    A(f"s_and_saveexec_b64 {s(sSave,2)}, vcc")
    for t in range(4): A(f"ds_write_b128 {v(vT1)}, {v(csa[t],4)} offset:{t*128}")
    A(f"s_mov_b64 exec, {s(sSave,2)}")
    A("s_waitcnt lgkmcnt(0)")
    A("s_barrier")
    K.stamp()
    A(f"v_lshlrev_b32 {v(vT0)}, 4, {v(vHf)}")
    A(f"v_add_u32 {v(vT0)}, {CS}, {v(vT0)}")
    c1 = -2.0 * 0.7978845608028654 * LOG2E
    c2 = c1 * 0.044715
    vC1, vC2 = V.alloc(), V.alloc()
    A(f"v_mov_b32 {v(vC1)}, {f2u(c1):#x}")
    A(f"v_mov_b32 {v(vC2)}, {f2u(c2):#x}")
    tmp = Af[0]
    def R(i): return Af[0] + 16 * i
    A(f"s_lshl_b32 {s(sB)}, {s(sR32)}, 0")
    A(f"s_mul_i32 {s(sB)}, {s(sB)}, {112*1024}")
    A(f"s_lshl_b32 {s(sT0)}, {s(sCt)}, 13")
    A(f"s_add_u32 {s(sB)}, {s(sB)}, {s(sT0)}")
    A(f"s_add_u32 {s(sB)}, {s(sB)}, {WS_MF}")
    for t in range(4):
        for pw in range(4):
            for a_ in range(4):
                A(f"ds_read_b128 {v(R(pw)+4*a_,4)}, {v(vT0)} offset:{pw*512 + t*128 + a_*32}")
        for a_ in range(4):
            A(f"ds_read_b128 {v(R(4)+4*a_,4)}, {v(vT0)} offset:{2048 + t*128 + a_*32}")
        A("s_waitcnt lgkmcnt(12)")
        A("s_waitcnt lgkmcnt(4)")
        for r in range(16):
            A(f"v_add_f32 {v(R(0)+r)}, {v(R(0)+r)}, {v(R(1)+r)}")
            A(f"v_add_f32 {v(R(2)+r)}, {v(R(2)+r)}, {v(R(3)+r)}")
        for r in range(16): A(f"v_add_f32 {v(R(0)+r)}, {v(R(0)+r)}, {v(R(2)+r)}")
        A("s_waitcnt lgkmcnt(0)")
        for r in range(16): A(f"v_fma_f32 {v(R(4)+r)}, -{v(vMr)}, {v(R(0)+r)}, {v(R(4)+r)}")
        x = acc[t]
        for r in range(16): A(f"v_fma_f32 {v(x+r)}, {v(x+r)}, {v(vRs)}, {v(R(4)+r)}")
        for r in range(16): A(f"v_mul_f32 {v(R(0)+r)}, {v(x+r)}, {v(x+r)}")
        for r in range(16): A(f"v_fma_f32 {v(R(0)+r)}, {v(R(0)+r)}, {v(vC2)}, {v(vC1)}")
        for r in range(16): A(f"v_mul_f32 {v(R(0)+r)}, {v(R(0)+r)}, {v(x+r)}")
        for r in range(16): A(f"v_exp_f32 {v(R(0)+r)}, {v(R(0)+r)}")
        for r in range(16): A(f"v_add_f32 {v(R(0)+r)}, 1.0, {v(R(0)+r)}")
        for r in range(16): A(f"v_rcp_f32 {v(R(0)+r)}, {v(R(0)+r)}")
        for r in range(16): A(f"v_mul_f32 {v(x+r)}, {v(x+r)}, {v(R(0)+r)}")
        pk = R(5 + (t & 1))
        for i in range(8): A(f"v_cvt_pk_bf16_f32 {v(pk+i)}, {v(x+2*i)}, {v(x+2*i+1)}")
        A(f"buffer_store_dwordx4 {v(pk,4)}, {v(vL16)}, {s(sO,4)}, {s(sB)} offen offset:{t*2048}") if t < 2 else A(f"buffer_store_dwordx4 {v(pk,4)}, {v(vL16)}, {s(sO,4)}, {s(sT1)} offen offset:{(t-2)*2048}")
        A(f"buffer_store_dwordx4 {v(pk+4,4)}, {v(vL16)}, {s(sO,4)}, {s(sB)} offen offset:{t*2048+1024}") if t < 2 else A(f"buffer_store_dwordx4 {v(pk+4,4)}, {v(vL16)}, {s(sO,4)}, {s(sT1)} offen offset:{(t-2)*2048+1024}")
        if t == 1: A(f"s_add_u32 {s(sT1)}, {s(sB)}, 4096")
    K.stamp_out(sO, 3, vT0, vT1)
    K.rt_end(sO, 3, vT0, vT1)
    A.label(END)
    A("s_endpgm")
    print("k4 vgprs", V.hi, "sgprs", S.hi, "lds", K.lds)
    return K

def k5():
    W2 = 0; RED = 0
    K = Kern("k5_mlp2_kernel", (256, 1, 1), (512, 1, 1), 131072)
    A, V, S = K.A, K.V, K.S
    END = "K5_END"
    sP = S.alloc(4); sWs = S.alloc(2); sOut = S.alloc(2)
    A(f"s_load_dwordx4 {s(sP,4)}, s[0:1], 48")
    A(f"s_load_dwordx2 {s(sOut,2)}, s[0:1], 64")
    A(f"s_load_dwordx2 {s(sWs,2)}, s[0:1], 80")
    A(f"s_cmp_ge_u32 s2, 256")
    A(f"s_cbranch_scc1 {END}")
    K.rt_begin()
    K.stamp()
    sW2 = S.alloc(4); sO = S.alloc(4); sB2 = S.alloc(4); sOu = S.alloc(4)
    sW8, sW, sXcd, sJ, sRt, sCt, sT0, sT1, sB = [S.alloc() for _ in range(9)]
    vLane, vT0, vT1, vT2, vHf, vTok, vL16 = [V.alloc() for _ in range(7)]
    wave_ids(K, sW8, sW, vLane, vT0)
    A(f"s_and_b32 {s(sXcd)}, s2, 7")
    A(f"s_lshr_b32 {s(sJ)}, s2, 3")
    A(f"s_and_b32 {s(sT0)}, {s(sJ)}, 3")
    A(f"s_lshl_b32 {s(sRt)}, {s(sXcd)}, 2")
    A(f"s_add_u32 {s(sRt)}, {s(sRt)}, {s(sT0)}")
    A(f"s_lshr_b32 {s(sCt)}, {s(sJ)}, 2")
    A(f"s_cmp_lt_u32 {s(sW8)}, 4")
    A(f"s_cbranch_scc1 K5_COMPUTE")
    mk0 = V.mark()
    vWoff = V.alloc()
    w_voff(A, vWoff, vLane, 1024, vT0, vT1)
    A("s_waitcnt lgkmcnt(0)")
    srd(A, sW2, sP, 1792 * 512 * 2)
    A(f"s_mul_i32 {s(sB)}, {s(sW)}, {448*1024}")
    A(f"s_lshl_b32 {s(sT0)}, {s(sCt)}, 7")
    A(f"s_add_u32 {s(sB)}, {s(sB)}, {s(sT0)}")
    A(f"s_lshl_b32 {s(sT1)}, {s(sW)}, 15")
    def dma(c):
        for q in range(8):
            A(f"s_add_u32 m0, {s(sT1)}, {W2 + (c&3)*8192 + q*1024}")
            A(f"s_add_u32 {s(sT0)}, {s(sB)}, {(64*c + 8*q)*1024}")
            A(f"buffer_load_dwordx4 {v(vWoff)}, {s(sW2,4)}, {s(sT0)} offen lds")
    dma(0); dma(1)
    A("s_waitcnt vmcnt(8)")
    A("s_barrier")
    dma(2); dma(3)
    for sp in range(1, 7):
        issued = min(sp + 2, 6)
        A(f"s_waitcnt vmcnt({8*(issued - sp)})")
        A("s_barrier")
        if sp + 3 < 7: dma(sp + 3)
    A("s_endpgm")
    V.release(mk0)
    A.label("K5_COMPUTE")
    NW = 12
    Af = [[V.alloc(4) for _ in range(2)] for _ in range(NW)]
    acc = [V.alloc(16) for _ in range(4)]
    Bf = [[V.alloc(4) for _ in range(2)] for _ in range(2)]
    vB = V.alloc()
    hr = V.alloc(8); b2r = V.alloc(8)
    A(f"v_lshlrev_b32 {v(vL16)}, 4, {v(vLane)}")
    A(f"v_lshrrev_b32 {v(vHf)}, 5, {v(vLane)}")
    A(f"v_and_b32 {v(vTok)}, 31, {v(vLane)}")
    A("s_waitcnt lgkmcnt(0)")
    srd(A, sO, sWs, WS_SIZE)
    srd(A, sB2, sP + 2, 512 * 2)
    srd(A, sOu, sOut, 2048 * 512 * 2)
    sBb, sRr, sA0, sA1 = [S.alloc() for _ in range(4)]
    A(f"s_lshr_b32 {s(sBb)}, {s(sW)}, 1")
    A(f"s_and_b32 {s(sRr)}, {s(sW)}, 1")
    A(f"s_lshl_b32 {s(sT0)}, {s(sRt)}, 1")
    A(f"s_add_u32 {s(sT0)}, {s(sT0)}, {s(sRr)}")
    A(f"s_lshl_b32 {s(sB)}, {s(sT0)}, 15")
    A(f"s_lshl_b32 {s(sT1)}, {s(sCt)}, 12")
    A(f"s_add_u32 {s(sB)}, {s(sB)}, {s(sT1)}")
    A(f"s_lshl_b32 {s(sT1)}, {s(sBb)}, 11")
    A(f"s_add_u32 {s(sB)}, {s(sB)}, {s(sT1)}")
    A(f"s_add_u32 {s(sB)}, {s(sB)}, {WS_HF}")
    A(f"buffer_load_dwordx4 {v(hr,4)}, {v(vL16)}, {s(sO,4)}, {s(sB)} offen")
    A(f"buffer_load_dwordx4 {v(hr+4,4)}, {v(vL16)}, {s(sO,4)}, {s(sB)} offen offset:1024")
    A(f"s_lshl_b32 {s(sT0)}, {s(sCt)}, 7")
    A(f"s_lshl_b32 {s(sT1)}, {s(sBb)}, 6")
    A(f"s_add_u32 {s(sT0)}, {s(sT0)}, {s(sT1)}")
    A(f"v_lshlrev_b32 {v(vT0)}, 3, {v(vHf)}")
    for a_ in range(4):
        A(f"buffer_load_dwordx2 {v(b2r+2*a_,2)}, {v(vT0)}, {s(sB2,4)}, {s(sT0)} offen offset:{a_*16}")
    A(f"s_mul_i32 {s(sA0)}, {s(sRt)}, {2*112*1024}")
    A(f"s_mul_i32 {s(sT0)}, {s(sW)}, {28*1024}")
    A(f"s_add_u32 {s(sA0)}, {s(sA0)}, {s(sT0)}")
    A(f"s_add_u32 {s(sA0)}, {s(sA0)}, {WS_MF}")
    A(f"s_add_u32 {s(sA1)}, {s(sA0)}, {112*1024}")
    def lda(n):
        for r, sa in ((0, sA0), (1, sA1)):
            if n % 4 == 0 and n:
                A(f"s_add_u32 {s(sa)}, {s(sa)}, 4096")
            A(f"buffer_load_dwordx4 {v(Af[n % NW][r],4)}, {v(vL16)}, {s(sO,4)}, {s(sa)} offen offset:{(n&3)*1024}")
    for n in range(NW): lda(n)
    tr_pi_base(A, vB, vLane, vHf, vT0, vT1)
    A(f"s_lshl_b32 {s(sT0)}, {s(sW)}, 15")
    A(f"v_add_u32 {v(vB)}, {s(sT0)}, {v(vB)}")
    def rd(n):
        c, i = n >> 2, n & 3
        for b in range(2):
            o = W2 + (c & 3) * 8192 + i * 2048 + b * 512
            A(f"ds_read_b64_tr_b16 {v(Bf[n&1][b],2)}, {v(vB)} offset:{o}")
            A(f"ds_read_b64_tr_b16 {v(Bf[n&1][b]+2,2)}, {v(vB)} offset:{o+1024}")
    K.stamp()
    A("s_barrier")
    K.stamp()
    rd(0)
    for n in range(28):
        if n + 1 < 28:
            if (n + 1) % 4 == 0:
                A("s_waitcnt lgkmcnt(0)")
                A("s_barrier")
                if n + 1 == 12: K.stamp()
            rd(n + 1)
            A("s_waitcnt lgkmcnt(4)")
        else:
            A("s_waitcnt lgkmcnt(0)")
        later = min(n + NW - 1, 27) - n
        A(f"s_waitcnt vmcnt({2*later})")
        for b in range(2):
            for r in range(2):
                t = 2 * b + r
                A(f"v_mfma_f32_32x32x16_bf16 {v(acc[t],16)}, {v(Bf[n&1][b],4)}, {v(Af[n%NW][r],4)}, {'0' if n == 0 else v(acc[t],16)}")
        if n + NW < 28: lda(n + NW)
    K.stamp()
    A("s_barrier")
    out = Af[0][0]
    reduce4(K, acc, RED, sW, vL16, vT0, sT0, out)
    K.stamp()
    un = acc[0]
    for i in range(8):
        A(f"v_lshlrev_b32 {v(un+2*i)}, 16, {v(hr+i)}")
        A(f"v_and_b32 {v(un+2*i+1)}, 0xffff0000, {v(hr+i)}")
    for r in range(16): A(f"v_add_f32 {v(out+r)}, {v(out+r)}, {v(un+r)}")
    for i in range(8):
        A(f"v_lshlrev_b32 {v(un+2*i)}, 16, {v(b2r+i)}")
        A(f"v_and_b32 {v(un+2*i+1)}, 0xffff0000, {v(b2r+i)}")
    for r in range(16): A(f"v_add_f32 {v(out+r)}, {v(out+r)}, {v(un+r)}")
    pk = acc[1]
    for i in range(8): A(f"v_cvt_pk_bf16_f32 {v(pk+i)}, {v(out+2*i)}, {v(out+2*i+1)}")
    for base in (0, 4):
        A(f"v_permlane32_swap_b32 {v(pk+base)}, {v(pk+base+2)}")
        A(f"v_permlane32_swap_b32 {v(pk+base+1)}, {v(pk+base+3)}")
    A(f"s_lshl_b32 {s(sT0)}, {s(sRt)}, 16")
    A(f"s_lshl_b32 {s(sT1)}, {s(sRr)}, 15")
    A(f"s_add_u32 {s(sT0)}, {s(sT0)}, {s(sT1)}")
    A(f"s_lshl_b32 {s(sT1)}, {s(sCt)}, 7")
    A(f"s_add_u32 {s(sT0)}, {s(sT0)}, {s(sT1)}")
    A(f"s_lshl_b32 {s(sT1)}, {s(sBb)}, 6")
    A(f"s_add_u32 {s(sT0)}, {s(sT0)}, {s(sT1)}")
    A(f"v_lshlrev_b32 {v(vT0)}, 10, {v(vTok)}")
    A(f"v_lshl_add_u32 {v(vT0)}, {v(vHf)}, 4, {v(vT0)}")
    A(f"buffer_store_dwordx4 {v(pk,4)}, {v(vT0)}, {s(sOu,4)}, {s(sT0)} offen")
    A(f"buffer_store_dwordx4 {v(pk+4,4)}, {v(vT0)}, {s(sOu,4)}, {s(sT0)} offen offset:32")
    K.stamp_out(sO, 4, vT0, vT1)
    K.rt_end(sO, 4, vT0, vT1)
    A.label(END)
    A("s_endpgm")
    print("k5 vgprs", V.hi, "sgprs", S.hi, "lds", K.lds)
    return K

def build(kernels, path):
    hdr = open(f"cdna_kernels/{NAME}.s.ref").read().split("; Override launch")[0]
    out = hdr
    for K in kernels:
        out += f"; @launch kernel={K.name} grid=({K.grid[0]},{K.grid[1]},{K.grid[2]}) block=({K.block[0]},{K.block[1]},{K.block[2]}) lds={K.lds}\n"
    out += '.amdgcn_target "amdgcn-amd-amdhsa--gfx950"\n.text\n'
    kds = ""
    for K in kernels:
        t, kd = K.finish()
        out += t; kds += ".p2align 6\n" + kd
    out += '.section .rodata,"a"\n' + kds
    open(path, "w").write(out)

if __name__ == "__main__":
    if "stamp" in sys.argv: STAMP = True
    if "rt" in sys.argv: RT = True
    FLAGS = set(sys.argv[2:])
    ks = [k1(), k2(1 if 'q1' in FLAGS else 2), k3(), k4(), k5()]
    build(ks, sys.argv[1] if len(sys.argv) > 1 else "out.s")
```

```python
import sys
import gen as G
from gen import *
from dsl import *

WS_CNT = (21 << 20)
G.WS_CNT = WS_CNT
G.WS_HS = WS_HS = 20 << 20
WS_CSG = (20 << 20) + (512 << 10)
G.WS_STAMP = WS_STAMP = (21 << 20) + (512 << 10)

PRIO_IT = 14
WIN5 = 8
def km(nqb=2, prio=True):
    ks = nqb
    LOCAL = 'local' in G.FLAGS
    LSC = '' if LOCAL else ' sc1'
    LLD = '' if (LOCAL and 'ldsc1' not in G.FLAGS) else ' sc1'
    KR = 0; VR = 65536; ON = 131072
    WO = 0; XT = 65536; RED = XT + 8192
    W1 = 0; CS = 139264; BI = CS + 512
    W2 = 0; RED5 = 0
    TKL = BI + 512 + 2048
    STP = BI + 512
    K = Kern("km_fused_kernel", (256, 1, 1), (512, 1, 1), BI + 512 + 2048 + 64)
    A, V, S = K.A, K.V, K.S
    END = "KM_END"
    sWs = S.alloc(2); sPx = S.alloc(2); sPwo = S.alloc(2); sP1 = S.alloc(4); sP2 = S.alloc(4); sPo = S.alloc(2)
    A(f"s_load_dwordx2 {s(sWs,2)}, s[0:1], 80")
    A(f"s_load_dwordx2 {s(sPx,2)}, s[0:1], 0")
    A(f"s_load_dwordx2 {s(sPwo,2)}, s[0:1], 16")
    A(f"s_load_dwordx4 {s(sP1,4)}, s[0:1], 32")
    A(f"s_load_dwordx4 {s(sP2,4)}, s[0:1], 48")
    A(f"s_load_dwordx2 {s(sPo,2)}, s[0:1], 64")
    A(f"s_cmp_ge_u32 s2, 256")
    A(f"s_cbranch_scc1 {END}")
    K.rt_begin()
    K.stamp()
    sO = S.alloc(4); sRa = S.alloc(4); sRb = S.alloc(4)
    sW8, sW, sXcd, sJ, sT0, sT1, sB, sJ3, sJ2, sCn = [S.alloc() for _ in range(10)]
    sSave = S.alloc(2)
    sXcP, sTkP = S.alloc(), S.alloc()
    vLane, vT0, vT1, vT2, vHf, vTok, vL16 = [V.alloc() for _ in range(7)]
    hpk = V.alloc(4)
    wave_ids(K, sW8, sW, vLane, vT0)
    A(f"s_and_b32 {s(sXcd)}, s2, 7")
    A(f"s_lshr_b32 {s(sJ)}, s2, 3")
    A(f"s_and_b32 {s(sJ3)}, {s(sJ)}, 3")
    A(f"s_lshr_b32 {s(sJ2)}, {s(sJ)}, 2")
    A(f"v_lshlrev_b32 {v(vL16)}, 4, {v(vLane)}")
    A(f"v_lshrrev_b32 {v(vHf)}, 5, {v(vLane)}")
    A(f"v_and_b32 {v(vTok)}, 31, {v(vLane)}")
    def signal(off_sgpr, local=False):
        A(f"v_mov_b32 {v(vT0)}, 1")
        A(f"v_mov_b32 {v(vT1)}, 0")
        A(f"s_mov_b64 exec, 1")
        A(f"buffer_atomic_add {v(vT0)}, {v(vT1)}, {s(sO,4)}, {s(off_sgpr)} offen" + ("" if local else " sc1"))
        A(f"s_mov_b64 exec, -1")
    def poll(off_sgpr, target, tag):
        A(f"v_mov_b32 {v(vT1)}, 0")
        A(f"s_mov_b32 {s(sT1)}, 3000000")
        A.label(f"KM_POLL_{tag}")
        A(f"buffer_load_dword {v(vT0)}, {v(vT1)}, {s(sO,4)}, {s(off_sgpr)} offen sc1")
        A("s_waitcnt vmcnt(0)")
        A(f"v_readfirstlane_b32 {s(sT0)}, {v(vT0)}")
        A(f"s_cmp_ge_u32 {s(sT0)}, {target}")
        A(f"s_cbranch_scc1 KM_PD_{tag}")
        A("s_sleep 1")
        A(f"s_sub_u32 {s(sT1)}, {s(sT1)}, 1")
        A(f"s_cmp_lg_u32 {s(sT1)}, 0")
        A(f"s_cbranch_scc1 KM_POLL_{tag}")
        A.label(f"KM_PD_{tag}")
    def only_wave0(tag, body):
        A(f"s_cmp_lg_u32 {s(sW8)}, 0")
        A(f"s_cbranch_scc1 KM_NW0_{tag}")
        body()
        A.label(f"KM_NW0_{tag}")
    def cnt_off(dst, base, idx_expr):
        idx_expr(dst)
        A(f"s_lshl_b32 {s(dst)}, {s(dst)}, 8")
        A(f"s_add_u32 {s(dst)}, {s(dst)}, {WS_CNT + base}")
    mkV = V.mark(); mkS = S.mark()
    sHead, sWq, sKh, sHb, sIt, sKm, sQt, sL, sG, sL0 = [S.alloc() for _ in range(10)]
    sQb = sJ2
    vK, vV, vVinc = [V.alloc() for _ in range(3)]
    A(f"s_lshl_b32 {s(sHead)}, {s(sXcd)}, 2")
    A(f"s_add_u32 {s(sHead)}, {s(sHead)}, {s(sJ3)}")
    if ks == 2:
        A(f"s_mov_b32 {s(sWq)}, {s(sW)}")
        A(f"s_lshr_b32 {s(sKh)}, {s(sW8)}, 2")
    else:
        A(f"s_mov_b32 {s(sWq)}, {s(sW8)}")
        A(f"s_mov_b32 {s(sKh)}, 0")
    A(f"s_lshl_b32 {s(sHb)}, {s(sHead)}, 16")
    Q = [V.alloc(4) for _ in range(nqb)]
    vKm = V.alloc()
    A(f"s_lshl_b32 {s(sT0)}, {s(sQb)}, 3")
    A(f"s_mul_i32 {s(sT1)}, {s(sWq)}, {nqb}")
    A(f"s_add_u32 {s(sQt)}, {s(sT0)}, {s(sT1)}")
    if ks == 2:
        A(f"s_lshl_b32 {s(sL0)}, {s(sKh)}, 5")
        A(f"s_lshl_b32 {s(sT0)}, {s(sWq)}, 1")
        A(f"s_add_u32 {s(sL0)}, {s(sL0)}, {s(sT0)}")
        gstep = 8
    else:
        A(f"s_lshl_b32 {s(sL0)}, {s(sW8)}, 1")
        gstep = 16
    A(f"s_lshl_b32 {s(sB)}, {s(sQt)}, 10")
    A(f"s_add_u32 {s(sB)}, {s(sB)}, {s(sHb)}")
    A(f"v_lshlrev_b32 {v(vT2)}, 2, {v(vLane)}")
    A("s_waitcnt lgkmcnt(0)")
    srd(A, sO, sWs, WS_SIZE)
    sXc, sTk = sXcP, sTkP
    vTk = V.alloc()
    if LOCAL:
        A(f"s_getreg_b32 {s(sXc)}, hwreg(HW_REG_XCC_ID)")
        A(f"s_and_b32 {s(sXc)}, {s(sXc)}, 7")
        A(f"s_cmp_lg_u32 {s(sW8)}, 0")
        A(f"s_cbranch_scc1 KM_NOTK")
        A(f"s_lshl_b32 {s(sT0)}, {s(sXc)}, 8")
        A(f"s_add_u32 {s(sT0)}, {s(sT0)}, {WS_CNT + 10240}")
        A(f"v_mov_b32 {v(vTk)}, 1")
        A(f"v_mov_b32 {v(vT0)}, 0")
        A(f"s_mov_b64 exec, 1")
        A(f"buffer_atomic_add {v(vTk)}, {v(vT0)}, {s(sO,4)}, {s(sT0)} offen sc0")
        A(f"s_mov_b64 exec, -1")
        A.label("KM_NOTK")
    else:
        A(f"s_mov_b32 {s(sXc)}, {s(sXcd)}")
        A(f"s_mov_b32 {s(sTk)}, {s(sJ)}")
    def kv_group(g):
        A(f"s_add_u32 {s(sL)}, {s(sL0)}, {gstep*g}")
        A(f"s_lshl_b32 {s(sT0)}, {s(sQb)}, 3")
        A(f"s_add_u32 {s(sG)}, {s(sL)}, {s(sT0)}")
        A(f"s_and_b32 {s(sG)}, {s(sG)}, 63")
        A(f"s_lshl_b32 {s(sG)}, {s(sG)}, 10")
        A(f"s_add_u32 {s(sG)}, {s(sG)}, {s(sHb)}")
        A(f"s_lshl_b32 {s(sL)}, {s(sL)}, 10")
        A(f"s_add_u32 m0, {s(sL)}, {KR}")
        A(f"s_add_u32 {s(sT0)}, {s(sG)}, {WS_KF}")
        A(f"buffer_load_dwordx4 {v(vL16)}, {s(sO,4)}, {s(sT0)} offen lds")
        A(f"buffer_load_dwordx4 {v(vL16)}, {s(sO,4)}, {s(sT0)} offen offset:1024 lds")
        A(f"s_add_u32 m0, {s(sL)}, {VR}")
        A(f"s_add_u32 {s(sT0)}, {s(sG)}, {WS_VF}")
        A(f"buffer_load_dwordx4 {v(vL16)}, {s(sO,4)}, {s(sT0)} offen lds")
        A(f"buffer_load_dwordx4 {v(vL16)}, {s(sO,4)}, {s(sT0)} offen offset:1024 lds")
    for b in range(nqb):
        A(f"buffer_load_dwordx4 {v(Q[b],4)}, {v(vL16)}, {s(sO,4)}, {s(sB)} offen offset:{b*1024}")
    A(f"s_lshl_b32 {s(sT0)}, {s(sHead)}, 8")
    A(f"s_add_u32 {s(sT0)}, {s(sT0)}, {WS_KMAX}")
    A(f"buffer_load_dword {v(vKm)}, {v(vT2)}, {s(sO,4)}, {s(sT0)} offen")
    kv_group(0)
    K.stamp()
    A(f"v_mov_b32 {v(vT1)}, 0x3f803f80")
    A(f"v_lshlrev_b32 {v(vT0)}, 2, v0")
    A(f"v_add_u32 {v(vT0)}, {ON}, {v(vT0)}")
    A(f"ds_write_b32 {v(vT0)}, {v(vT1)}")
    A(f"ds_write_b32 {v(vT0)}, {v(vT1)} offset:2048")
    A(f"v_cmp_gt_u32 vcc, 128, v0")
    A(f"s_and_saveexec_b64 {s(sSave,2)}, vcc")
    A(f"ds_write_b32 {v(vT0)}, {v(vT1)} offset:4096")
    A(f"s_mov_b64 exec, {s(sSave,2)}")
    A(f"s_lshl_b32 {s(sT0)}, {s(sKh)}, 15")
    A(f"v_add_u32 {v(vK)}, {s(sT0)}, {v(vL16)}")
    A(f"v_lshlrev_b32 {v(vT0)}, 8, {v(vHf)}")
    A(f"v_lshl_add_u32 {v(vT0)}, {v(vTok)}, 4, {v(vT0)}")
    A(f"s_add_u32 {s(sT0)}, {s(sT0)}, {VR}")
    A(f"v_add_u32 {v(vT0)}, {s(sT0)}, {v(vT0)}")
    A(f"v_subrev_u32 {v(vT1)}, 20, {v(vTok)}")
    A(f"v_cmp_gt_u32 vcc, 8, {v(vT1)}")
    A(f"v_mov_b32 {v(vT1)}, {ON}")
    A(f"v_mov_b32 {v(vT2)}, {ON+64}")
    A(f"v_cndmask_b32 {v(vT1)}, {v(vT1)}, {v(vT2)}, vcc")
    A(f"v_cmp_gt_u32 vcc, 16, {v(vTok)}")
    A(f"v_cndmask_b32 {v(vV)}, {v(vT1)}, {v(vT0)}, vcc")
    A(f"v_mov_b32 {v(vT1)}, 4096")
    A(f"v_cndmask_b32 {v(vVinc)}, 0, {v(vT1)}, vcc")
    Kf = [V.alloc(4) for _ in range(2)]; Vf0 = [V.alloc(4) for _ in range(2)]; Vf1 = [V.alloc(4) for _ in range(2)]
    QB = [dict(S=[V.alloc(16), V.alloc(16)], P=V.alloc(8), O=V.alloc(16), C=V.alloc(16)) for _ in range(nqb)]
    for b in range(nqb):
        for r in range(16): A(f"v_mov_b32 {v(QB[b]['O']+r)}, 0")
        for r in range(4, 8): A(f"v_mov_b32 {v(QB[b]['P']+r)}, 0")
    for r in range(4): A(f"v_mov_b32 {v(Vf1[1]+r)}, 0")
    A(f"s_waitcnt vmcnt(4)")
    wave_max64(A, vKm, sKm, sT0)
    bad = S.alloc(2)
    for b in range(nqb):
        un = QB[b]["S"][0]
        for i in range(4):
            A(f"v_lshlrev_b32 {v(un+2*i)}, 16, {v(Q[b]+i)}")
            A(f"v_and_b32 {v(un+2*i+1)}, 0xffff0000, {v(Q[b]+i)}")
        A(f"v_mul_f32 {v(vT0)}, {v(un)}, {v(un)}")
        for i in range(1, 8): A(f"v_fmac_f32 {v(vT0)}, {v(un+i)}, {v(un+i)}")
        swap_add(A, vT0, vT1)
        A(f"v_mul_f32 {v(vT0)}, {s(sKm)}, {v(vT0)}")
        A(f"v_sqrt_f32 {v(vT0)}, {v(vT0)}")
        A(f"v_mov_b32 {v(vT1)}, {f2u(0.01):#x}")
        A(f"v_fmac_f32 {v(vT1)}, {f2u(1.01):#x}, {v(vT0)}")
        A(f"v_mov_b32 {v(vT2)}, {f2u(40.0):#x}")
        A(f"v_cmp_nge_f32 vcc, {v(vT2)}, {v(vT1)}")
        if b == 0: A(f"s_mov_b64 {s(bad,2)}, vcc")
        else: A(f"s_or_b64 {s(bad,2)}, {s(bad,2)}, vcc")
        for r in range(16): A(f"v_sub_f32 {v(QB[b]['C']+r)}, 0, {v(vT1)}")
    if LOCAL:
        A(f"s_waitcnt vmcnt(0)")
        A(f"s_cmp_lg_u32 {s(sW8)}, 0")
        A(f"s_cbranch_scc1 KM_NOTK2")
        A(f"v_mov_b32 {v(vT0)}, {TKL}")
        A(f"s_mov_b64 exec, 1")
        A(f"ds_write_b32 {v(vT0)}, {v(vTk)}")
        A(f"s_mov_b64 exec, -1")
        A.label("KM_NOTK2")
    A(f"s_waitcnt vmcnt(0) lgkmcnt(0)")
    A("s_barrier")
    K.stamp()
    if LOCAL:
        A(f"v_mov_b32 {v(vT0)}, {TKL}")
        A(f"ds_read_b32 {v(vT1)}, {v(vT0)}")
        A(f"s_waitcnt lgkmcnt(0)")
        A(f"v_readfirstlane_b32 {s(sTk)}, {v(vT1)}")
    NT = 64 // ks
    mf = "v_mfma_f32_32x32x16_bf16"
    sPF = S.alloc(4); sPFo = S.alloc()
    A(f"s_lshl_b32 {s(sT0)}, {s(sJ)}, 2")
    A(f"s_add_u32 {s(sT0)}, {s(sT0)}, {s(sW)}")
    A(f"s_cmp_lt_u32 {s(sT0)}, 72")
    A(f"s_cselect_b32 {s(sPF)}, {s(sP1)}, {s(sP2)}")
    A(f"s_cselect_b32 {s(sPF+1)}, {s(sP1+1)}, {s(sP2+1)}")
    A(f"s_cselect_b32 {s(sT1)}, 16, 72")
    A(f"s_cmp_lt_u32 {s(sT0)}, 16")
    A(f"s_cselect_b32 {s(sPF)}, {s(sPwo)}, {s(sPF)}")
    A(f"s_cselect_b32 {s(sPF+1)}, {s(sPwo+1)}, {s(sPF+1)}")
    A(f"s_cselect_b32 {s(sT1)}, 0, {s(sT1)}")
    A(f"s_sub_u32 {s(sT0)}, {s(sT0)}, {s(sT1)}")
    A(f"s_lshl_b32 {s(sT0)}, {s(sT0)}, 15")
    A(f"s_add_u32 {s(sPF)}, {s(sPF)}, {s(sT0)}")
    A(f"s_addc_u32 {s(sPF+1)}, {s(sPF+1)}, 0")
    A(f"s_and_b32 {s(sPF+1)}, {s(sPF+1)}, 0xffff")
    A(f"s_mov_b32 {s(sPF+2)}, 32768")
    A(f"s_mov_b32 {s(sPF+3)}, 0x20000")
    A(f"s_mov_b32 {s(sPFo)}, 0")
    if "nopf" in G.FLAGS:
        A(f"s_mov_b32 {s(sPFo)}, 32768")
    if "pf2" in G.FLAGS:
        A(f"s_lshl_b32 {s(sT0)}, {s(sJ)}, 2")
        A(f"s_add_u32 {s(sT0)}, {s(sT0)}, {s(sW)}")
        A(f"s_cmp_lt_u32 {s(sT0)}, 72")
        A(f"s_cselect_b32 {s(sPFo)}, 0, 32768")
    vPF = V.alloc(4)
    A(f"s_cmp_lt_u32 {s(sW8)}, 4")
    A(f"s_cbranch_scc1 KM_OLD1")
    for g in range(1, 4):
        if ks == 2:
            A(f"s_lshr_b32 {s(sL)}, {s(sW)}, 1")
            A(f"s_lshl_b32 {s(sL)}, {s(sL)}, 5")
            A(f"s_and_b32 {s(sT0)}, {s(sW)}, 1")
            A(f"s_lshl_b32 {s(sT0)}, {s(sT0)}, 2")
            A(f"s_add_u32 {s(sL)}, {s(sL)}, {s(sT0)}")
            A(f"s_add_u32 {s(sL)}, {s(sL)}, {8*g}")
        else:
            A(f"s_lshl_b32 {s(sL)}, {s(sW)}, 2")
            A(f"s_add_u32 {s(sL)}, {s(sL)}, {16*g}")
        A(f"s_lshl_b32 {s(sT0)}, {s(sQb)}, 3")
        A(f"s_add_u32 {s(sG)}, {s(sL)}, {s(sT0)}")
        A(f"s_and_b32 {s(sG)}, {s(sG)}, 63")
        A(f"s_lshl_b32 {s(sG)}, {s(sG)}, 10")
        A(f"s_add_u32 {s(sG)}, {s(sG)}, {s(sHb)}")
        A(f"s_lshl_b32 {s(sL)}, {s(sL)}, 10")
        for reg, wsb in ((KR, WS_KF), (VR, WS_VF)):
            A(f"s_add_u32 m0, {s(sL)}, {reg}")
            A(f"s_add_u32 {s(sT0)}, {s(sG)}, {wsb}")
            for i in range(4):
                A(f"buffer_load_dwordx4 {v(vL16)}, {s(sO,4)}, {s(sT0)} offen offset:{i*1024} lds")
    A("s_waitcnt vmcnt(0)")
    A("s_barrier")
    if prio: A("s_setprio 1")
    A.label("KM_OLD1")
    A(f"s_cmp_lg_u64 {s(bad,2)}, 0")
    A(f"s_cbranch_scc1 KM_SLOW")
    A(f"ds_read_b128 {v(Kf[0],4)}, {v(vK)}")
    A(f"ds_read_b128 {v(Kf[1],4)}, {v(vK)} offset:1024")
    A(f"ds_read_b128 {v(Vf0[0],4)}, {v(vV)}")
    A("s_waitcnt lgkmcnt(2)")
    for b in range(nqb):
        A(f"{mf} {v(QB[b]['S'][0],16)}, {v(Kf[0],4)}, {v(Q[b],4)}, {v(QB[b]['C'],16)}")
    sA1i = S.alloc()
    a1it = 3 if ks == 1 else 1
    A(f"s_cmp_lt_u32 {s(sW8)}, 4")
    A(f"s_cselect_b32 {s(sA1i)}, {a1it}, -1")
    sPFl = S.alloc()
    A(f"s_cselect_b32 {s(sPFl)}, 0, 32768")
    A(f"s_mov_b32 {s(sIt)}, 0")
    A.label("KM_LOOP")
    A(f"s_cmp_lg_u32 {s(sIt)}, {s(sA1i)}")
    A(f"s_cbranch_scc1 KM_NOSYNC")
    A("s_barrier")
    A.label("KM_NOSYNC")
    if prio:
        A(f"s_cmp_lg_u32 {s(sIt)}, {PRIO_IT if ks == 1 else PRIO_IT // 2}")
        A(f"s_cbranch_scc1 KM_NP2")
        A("s_setprio 0")
        A.label("KM_NP2")
    npf = 3 if ks == 1 else 6
    A(f"s_cmp_ge_u32 {s(sPFo)}, {s(sPFl)}")
    A(f"s_cbranch_scc1 KM_NOPF")
    for i in range(npf):
        if i == 4: A(f"s_add_u32 {s(sT0)}, {s(sPFo)}, 4096")
        A(f"buffer_load_dwordx4 {v(vPF,4)}, {v(vL16)}, {s(sPF,4)}, {s(sPFo if i < 4 else sT0)} offen offset:{(i&3)*1024}")
    A(f"s_add_u32 {s(sPFo)}, {s(sPFo)}, {npf*1024}")
    A.label("KM_NOPF")
    for t in range(4):
        cur, nxt = t & 1, (t + 1) & 1
        A("s_waitcnt lgkmcnt(0)")
        for b in range(nqb):
            q = QB[b]; Sx = q["S"][cur]; Sn = q["S"][nxt]; P = q["P"]; O = q["O"]
            ex = [f"v_exp_f32 {v(Sx+i)}, {v(Sx+i)}" for i in range(16)]
            cv = [f"v_cvt_pk_bf16_f32 {v(P+i)}, {v(Sx+2*i)}, {v(Sx+2*i+1)}" for i in range(8)]
            A(f"{mf} {v(Sn,16)}, {v(Kf[nxt],4)}, {v(Q[b],4)}, {v(q['C'],16)}")
            for x in ex[0:4]: A(x)
            A(cv[0])
            for x in ex[4:6]: A(x)
            A(cv[1])
            A(f"{mf} {v(O,16)}, {v(Vf1[nxt],4)}, {v(P+4,4)}, {v(O,16)}")
            if b == 0:
                A(f"ds_read_b128 {v(Kf[cur],4)}, {v(vK)} offset:{(t+2)*1024}")
                A(f"ds_read_b128 {v(Vf0[nxt],4)}, {v(vV)} offset:{(t+1)*1024}")
                A(f"ds_read_b128 {v(Vf1[cur],4)}, {v(vV)} offset:{t*1024+512}")
            for x in ex[6:8]: A(x)
            A(cv[2])
            for x in ex[8:10]: A(x)
            A(cv[3])
            for x in ex[10:12]: A(x)
            A(cv[4])
            A(f"{mf} {v(O,16)}, {v(Vf0[cur],4)}, {v(P,4)}, {v(O,16)}")
            for x in ex[12:14]: A(x)
            A(cv[5])
            for x in ex[14:16]: A(x)
            A(cv[6])
            A(cv[7])
    A(f"v_add_u32 {v(vK)}, 4096, {v(vK)}")
    A(f"v_add_u32 {v(vV)}, {v(vVinc)}, {v(vV)}")
    A(f"s_add_u32 {s(sIt)}, {s(sIt)}, 1")
    A(f"s_cmp_lt_u32 {s(sIt)}, {NT//4}")
    A(f"s_cbranch_scc1 KM_LOOP")
    A("s_waitcnt lgkmcnt(0)")
    for b in range(nqb):
        A(f"{mf} {v(QB[b]['O'],16)}, {v(Vf1[1],4)}, {v(QB[b]['P']+4,4)}, {v(QB[b]['O'],16)}")
    A("s_branch KM_FIN")
    A.label("KM_SLOW")
    A(f"s_cmp_ge_u32 {s(sW8)}, 4")
    A(f"s_cbranch_scc1 KM_SLOW2")
    A("s_barrier")
    A.label("KM_SLOW2")
    for b in range(nqb):
        A(f"v_mov_b32 {v(QB[b]['C'])}, {f2u(-3.0e38):#x}")
    A(f"s_mov_b32 {s(sIt)}, 0")
    A.label("KM_SLOOP")
    A(f"ds_read_b128 {v(Kf[0],4)}, {v(vK)}")
    A(f"ds_read_b128 {v(Vf0[0],4)}, {v(vV)}")
    A(f"ds_read_b128 {v(Vf1[0],4)}, {v(vV)} offset:512")
    A("s_waitcnt lgkmcnt(0)")
    for b in range(nqb):
        q = QB[b]; Sx = q["S"][0]; P = q["P"]; O = q["O"]; m = q["C"]; mn = q["C"] + 1; al = q["C"] + 2
        A(f"{mf} {v(Sx,16)}, {v(Kf[0],4)}, {v(Q[b],4)}, 0")
        A(f"v_max_f32 {v(mn)}, {v(Sx)}, {v(Sx+1)}")
        for i in range(2, 16): A(f"v_max_f32 {v(mn)}, {v(mn)}, {v(Sx+i)}")
        swap_add(A, mn, vT1, "v_max_f32")
        A(f"v_max_f32 {v(mn)}, {v(mn)}, {v(m)}")
        A(f"v_sub_f32 {v(al)}, {v(m)}, {v(mn)}")
        A(f"v_exp_f32 {v(al)}, {v(al)}")
        A(f"v_mov_b32 {v(m)}, {v(mn)}")
        for i in range(16): A(f"v_sub_f32 {v(Sx+i)}, {v(Sx+i)}, {v(mn)}")
        for i in range(16): A(f"v_exp_f32 {v(Sx+i)}, {v(Sx+i)}")
        for i in range(16): A(f"v_mul_f32 {v(O+i)}, {v(al)}, {v(O+i)}")
        for i in range(8): A(f"v_cvt_pk_bf16_f32 {v(P+i)}, {v(Sx+2*i)}, {v(Sx+2*i+1)}")
        A(f"{mf} {v(O,16)}, {v(Vf0[0],4)}, {v(P,4)}, {v(O,16)}")
        A(f"{mf} {v(O,16)}, {v(Vf1[0],4)}, {v(P+4,4)}, {v(O,16)}")
    A(f"v_add_u32 {v(vK)}, 1024, {v(vK)}")
    A(f"v_lshrrev_b32 {v(vT0)}, 2, {v(vVinc)}")
    A(f"v_add_u32 {v(vV)}, {v(vT0)}, {v(vV)}")
    A(f"s_add_u32 {s(sIt)}, {s(sIt)}, 1")
    A(f"s_cmp_lt_u32 {s(sIt)}, {NT}")
    A(f"s_cbranch_scc1 KM_SLOOP")
    A(f"s_mov_b32 {s(sIt)}, -1")
    A.label("KM_FIN")
    if prio: A("s_setprio 0")
    K.stamp()
    if ks == 2:
        vM = [V.alloc(), V.alloc()]
        for b in range(2): A(f"v_sub_f32 {v(vM[b])}, 0, {v(QB[b]['C'])}")
        A(f"s_cmp_lg_u32 {s(sIt)}, -1")
        A(f"s_cbranch_scc1 KM_F1")
        for b in range(2): A(f"v_mov_b32 {v(vM[b])}, {v(QB[b]['C'])}")
        A.label("KM_F1")
        snd = QB[0]["S"][0]; kp = QB[0]["S"][1]
        A(f"s_cmp_eq_u32 {s(sKh)}, 0")
        A(f"s_cbranch_scc1 KM_F2")
        for r in range(9):
            A(f"v_mov_b32 {v(snd+r)}, {v(QB[0]['O']+r)}"); A(f"v_mov_b32 {v(kp+r)}, {v(QB[1]['O']+r)}")
        A(f"v_mov_b32 {v(snd+9)}, {v(vM[0])}"); A(f"v_mov_b32 {v(kp+9)}, {v(vM[1])}")
        A("s_branch KM_F3")
        A.label("KM_F2")
        for r in range(9):
            A(f"v_mov_b32 {v(snd+r)}, {v(QB[1]['O']+r)}"); A(f"v_mov_b32 {v(kp+r)}, {v(QB[0]['O']+r)}")
        A(f"v_mov_b32 {v(snd+9)}, {v(vM[1])}"); A(f"v_mov_b32 {v(kp+9)}, {v(vM[0])}")
        A.label("KM_F3")
        A("s_barrier")
        A(f"s_mul_i32 {s(sT0)}, {s(sW8)}, 2560")
        A(f"v_lshlrev_b32 {v(vT2)}, 2, {v(vLane)}")
        A(f"v_add_u32 {v(vT0)}, {s(sT0)}, {v(vT2)}")
        for r in range(10): A(f"ds_write_b32 {v(vT0)}, {v(snd+r)} offset:{r*256}")
        A("s_waitcnt lgkmcnt(0)")
        A("s_barrier")
        A(f"s_xor_b32 {s(sT0)}, {s(sW8)}, 4")
        A(f"s_mul_i32 {s(sT0)}, {s(sT0)}, 2560")
        A(f"v_add_u32 {v(vT0)}, {s(sT0)}, {v(vT2)}")
        for r in range(10): A(f"ds_read_b32 {v(snd+r)}, {v(vT0)} offset:{r*256}")
        A("s_waitcnt lgkmcnt(0)")
        A(f"v_max_f32 {v(vT0)}, {v(kp+9)}, {v(snd+9)}")
        A(f"v_sub_f32 {v(vT1)}, {v(kp+9)}, {v(vT0)}")
        A(f"v_sub_f32 {v(vT2)}, {v(snd+9)}, {v(vT0)}")
        A(f"v_exp_f32 {v(vT1)}, {v(vT1)}")
        A(f"v_exp_f32 {v(vT2)}, {v(vT2)}")
        for r in range(9): A(f"v_mul_f32 {v(kp+r)}, {v(vT1)}, {v(kp+r)}")
        for r in range(9): A(f"v_fmac_f32 {v(kp+r)}, {v(vT2)}, {v(snd+r)}")
        Of = kp
        A(f"s_add_u32 {s(sQt)}, {s(sQt)}, {s(sKh)}")
    else:
        Of = QB[0]["O"]
    A(f"v_rcp_f32 {v(vT0)}, {v(Of+8)}")
    for r in range(8): A(f"v_mul_f32 {v(Of+r)}, {v(vT0)}, {v(Of+r)}")
    pk = QB[0]["P"]
    for i in range(4): A(f"v_cvt_pk_bf16_f32 {v(pk+i)}, {v(Of+2*i)}, {v(Of+2*i+1)}")
    A(f"s_lshl_b32 {s(sT0)}, {s(sQt)}, 15")
    A(f"s_lshl_b32 {s(sT1)}, {s(sHead)}, 10")
    A(f"s_add_u32 {s(sT0)}, {s(sT0)}, {s(sT1)}")
    A(f"s_add_u32 {s(sT0)}, {s(sT0)}, {WS_OF}")
    A(f"buffer_store_dwordx4 {v(pk,4)}, {v(vL16)}, {s(sO,4)}, {s(sT0)} offen sc1")
    A("s_waitcnt vmcnt(0)")
    A("s_barrier")
    K.stamp()
    V.release(mkV); S.release(mkS)
    sRt, sCt, sR128, sCt4, sTb, sTr, sTi, sQbS = [S.alloc() for _ in range(8)]
    A(f"s_mov_b32 {s(sQbS)}, {s(sJ2)}")
    A(f"s_mov_b32 {s(sXcd)}, {s(sXc)}")
    A(f"s_and_b32 {s(sJ)}, {s(sTk)}, 31")
    A(f"s_and_b32 {s(sJ3)}, {s(sJ)}, 3")
    A(f"s_lshr_b32 {s(sJ2)}, {s(sJ)}, 2")
    A(f"s_lshl_b32 {s(sRt)}, {s(sXcd)}, 2")
    A(f"s_add_u32 {s(sRt)}, {s(sRt)}, {s(sJ3)}")
    A(f"s_mov_b32 {s(sCt)}, {s(sJ2)}")
    A(f"s_and_b32 {s(sTr)}, {s(sW8)}, 1")
    A(f"s_bfe_u32 {s(sTb)}, {s(sW8)}, 0x10001")
    A(f"s_lshr_b32 {s(sTi)}, {s(sW8)}, 2")
    A(f"s_lshl_b32 {s(sR128)}, {s(sXcd)}, 1")
    A(f"s_and_b32 {s(sT0)}, {s(sJ)}, 1")
    A(f"s_add_u32 {s(sR128)}, {s(sR128)}, {s(sT0)}")
    A(f"s_lshr_b32 {s(sCt4)}, {s(sJ)}, 1")
    vBl = V.alloc(); vWoff = V.alloc(); vW1off = V.alloc()
    tr_pi_base(A, vBl, vLane, vHf, vT0, vT1)
    sB1, sB2 = S.alloc(), S.alloc()
    sRw1 = S.alloc(4); sRw2 = S.alloc(4)
    def dma_w1(p):
        A(f"s_lshl_b32 {s(sT1)}, {s(sW)}, 12")
        for c in range(4):
            for q in range(4):
                A(f"s_add_u32 m0, {s(sT1)}, {W1 + p*65536 + c*16384 + q*1024}")
                A(f"s_add_u32 {s(sT0)}, {s(sB1)}, {(128*c + 8*q)*3584 + p*128}")
                A(f"buffer_load_dwordx4 {v(vW1off)}, {s(sRw1,4)}, {s(sT0)} offen lds")
    def dma_w2(c):
        A(f"s_lshl_b32 {s(sT1)}, {s(sW)}, 15")
        for q in range(8):
            A(f"s_add_u32 m0, {s(sT1)}, {W2 + (c&3)*8192 + q*1024}")
            A(f"s_add_u32 {s(sT0)}, {s(sB2)}, {(64*c + 8*q)*1024}")
            A(f"buffer_load_dwordx4 {v(vWoff)}, {s(sRw2,4)}, {s(sT0)} offen lds")
    def dma_w1_all8(p):
        A(f"s_lshl_b32 {s(sT1)}, {s(sW8)}, 13")
        A(f"s_mul_i32 {s(sB)}, {s(sW8)}, {64*3584}")
        A(f"s_lshl_b32 {s(sT0)}, {s(sCt4)}, 8")
        A(f"s_add_u32 {s(sB)}, {s(sB)}, {s(sT0)}")
        for q in range(8):
            A(f"s_add_u32 m0, {s(sT1)}, {W1 + p*65536 + q*1024}")
            A(f"s_add_u32 {s(sT0)}, {s(sB)}, {8*q*3584 + p*128}")
            A(f"buffer_load_dwordx4 {v(vW1off)}, {s(sRw1,4)}, {s(sT0)} offen lds")
    def dma_w2_lo8():
        A(f"s_lshr_b32 {s(sT1)}, {s(sW8)}, 2")
        A(f"s_mul_i32 {s(sB)}, {s(sT1)}, {448*1024}")
        A(f"s_lshl_b32 {s(sT0)}, {s(sCt)}, 7")
        A(f"s_add_u32 {s(sB)}, {s(sB)}, {s(sT0)}")
        A(f"s_lshl_b32 {s(sT0)}, {s(sW)}, 16")
        A(f"s_add_u32 {s(sB)}, {s(sB)}, {s(sT0)}")
        A(f"s_lshl_b32 {s(sT1)}, {s(sW8)}, 13")
        for q in range(8):
            A(f"s_add_u32 m0, {s(sT1)}, {W2 + q*1024}")
            A(f"s_add_u32 {s(sT0)}, {s(sB)}, {8*q*1024}")
            A(f"buffer_load_dwordx4 {v(vWoff)}, {s(sRw2,4)}, {s(sT0)} offen lds")
    def dma_w2_hi_upper():
        A(f"s_lshr_b32 {s(sT1)}, {s(sW)}, 1")
        A(f"s_add_u32 {s(sT1)}, {s(sT1)}, 2")
        A(f"s_mul_i32 {s(sB)}, {s(sT1)}, {448*1024}")
        A(f"s_lshl_b32 {s(sT0)}, {s(sCt)}, 7")
        A(f"s_add_u32 {s(sB)}, {s(sB)}, {s(sT0)}")
        A(f"s_and_b32 {s(sT0)}, {s(sW)}, 1")
        A(f"s_lshl_b32 {s(sT0)}, {s(sT0)}, 17")
        A(f"s_add_u32 {s(sB)}, {s(sB)}, {s(sT0)}")
        A(f"s_lshl_b32 {s(sT1)}, {s(sW)}, 14")
        for q in range(16):
            A(f"s_add_u32 m0, {s(sT1)}, {W2 + 65536 + q*1024}")
            A(f"s_add_u32 {s(sT0)}, {s(sB)}, {8*q*1024}")
            A(f"buffer_load_dwordx4 {v(vWoff)}, {s(sRw2,4)}, {s(sT0)} offen lds")
    def if_upper(tag, body):
        A(f"s_cmp_lt_u32 {s(sW8)}, 4")
        A(f"s_cbranch_scc1 KM_NU_{tag}")
        body()
        A.label(f"KM_NU_{tag}")
    def dma_wo():
        mk = V.mark()
        vXoff = V.alloc()
        A(f"s_and_b32 {s(sT0)}, {s(sW)}, 1")
        A(f"s_lshl_b32 {s(sT0)}, {s(sT0)}, 2")
        A(f"v_lshrrev_b32 {v(vT0)}, 4, {v(vLane)}")
        A(f"v_or_b32 {v(vT0)}, {s(sT0)}, {v(vT0)}")
        A(f"v_and_b32 {v(vT1)}, 7, {v(vLane)}")
        A(f"v_xor_b32 {v(vT0)}, {v(vT0)}, {v(vT1)}")
        A(f"v_lshlrev_b32 {v(vT0)}, 4, {v(vT0)}")
        A(f"v_lshrrev_b32 {v(vT1)}, 3, {v(vLane)}")
        A(f"v_lshlrev_b32 {v(vT1)}, 10, {v(vT1)}")
        A(f"v_add_u32 {v(vXoff)}, {v(vT0)}, {v(vT1)}")
        srd(A, sRa, sPwo, 512 * 512 * 2)
        srd(A, sRb, sPx, 2048 * 512 * 2)
        A(f"s_lshl_b32 {s(sB)}, {s(sW)}, 17")
        A(f"s_lshl_b32 {s(sT0)}, {s(sCt)}, 7")
        A(f"s_add_u32 {s(sB)}, {s(sB)}, {s(sT0)}")
        A(f"s_lshl_b32 {s(sT1)}, {s(sW)}, 14")
        for g in range(16):
            A(f"s_add_u32 m0, {s(sT1)}, {WO + g*1024}")
            A(f"s_add_u32 {s(sT0)}, {s(sB)}, {g*8192}")
            A(f"buffer_load_dwordx4 {v(vWoff)}, {s(sRa,4)}, {s(sT0)} offen lds")
        A(f"s_lshl_b32 {s(sB)}, {s(sRt)}, 16")
        A(f"s_lshl_b32 {s(sT0)}, {s(sCt)}, 7")
        A(f"s_add_u32 {s(sB)}, {s(sB)}, {s(sT0)}")
        A(f"s_lshl_b32 {s(sT0)}, {s(sW)}, 13")
        A(f"s_add_u32 {s(sB)}, {s(sB)}, {s(sT0)}")
        A(f"s_lshl_b32 {s(sT1)}, {s(sW)}, 10")
        for n in range(2):
            A(f"s_add_u32 m0, {s(sT1)}, {XT + n*4096}")
            A(f"s_add_u32 {s(sT0)}, {s(sB)}, {n*32768}")
            A(f"buffer_load_dwordx4 {v(vXoff)}, {s(sRb,4)}, {s(sT0)} offen lds")
        A(f"s_mul_i32 {s(sB1)}, {s(sW)}, {32*3584}")
        A(f"s_lshl_b32 {s(sT0)}, {s(sCt4)}, 8")
        A(f"s_add_u32 {s(sB1)}, {s(sB1)}, {s(sT0)}")
        A(f"s_mul_i32 {s(sB2)}, {s(sW)}, {448*1024}")
        A(f"s_lshl_b32 {s(sT0)}, {s(sCt)}, 7")
        A(f"s_add_u32 {s(sB2)}, {s(sB2)}, {s(sT0)}")
        A("s_waitcnt vmcnt(0)")
        V.release(mk)
    w_voff(A, vWoff, vLane, 1024, vT0, vT1)
    w_voff(A, vW1off, vLane, 3584, vT0, vT1)
    srd(A, sRw1, sP1, 512 * 1792 * 2)
    srd(A, sRw2, sP2, 1792 * 512 * 2)
    if_upper("wo", dma_wo)
    def w0_sync2():
        cnt_off(sCn, 0, lambda d: A(f"s_mov_b32 {s(d)}, {s(sQbS)}"))
        signal(sCn)
        cnt_off(sCn, 0, lambda d: A(f"s_mov_b32 {s(d)}, {s(sXcd)}"))
        poll(sCn, 32, "2")
    hpk4 = hpk
    mkC = V.mark()
    Af = [V.alloc(4) for _ in range(8)]
    acc = [V.alloc(16) for _ in range(2)]
    Bf = [[V.alloc(4) for _ in range(2)] for _ in range(2)]
    vB = V.alloc(); xr = V.alloc(4)
    sKq = S.alloc()
    A(f"s_lshr_b32 {s(sKq)}, {s(sW8)}, 1")
    A(f"s_lshl_b32 {s(sT0)}, {s(sKq)}, 14")
    A(f"v_add_u32 {v(vB)}, {s(sT0)}, {v(vBl)}")
    A(f"s_lshl_b32 {s(sB)}, {s(sRt)}, 16")
    A(f"s_lshl_b32 {s(sT0)}, {s(sTr)}, 15")
    A(f"s_add_u32 {s(sB)}, {s(sB)}, {s(sT0)}")
    A(f"s_lshl_b32 {s(sT0)}, {s(sKq)}, 13")
    A(f"s_add_u32 {s(sB)}, {s(sB)}, {s(sT0)}")
    A(f"s_add_u32 {s(sB)}, {s(sB)}, {WS_OF}")
    sB4 = S.alloc()
    A(f"s_add_u32 {s(sB4)}, {s(sB)}, 4096")
    A(f"v_mov_b32 {v(vT1)}, 0")
    A(f"v_lshlrev_b32 {v(vT0)}, 3, {v(vLane)}")
    A(f"v_add_u32 {v(vT0)}, {STP}, {v(vT0)}")
    A(f"ds_write_b32 {v(vT0)}, {v(vT1)}")
    A(f"ds_write_b32 {v(vT0)}, {v(vT1)} offset:4")
    A("s_waitcnt lgkmcnt(0)")
    only_wave0("2", w0_sync2)
    A("s_barrier")
    K.stamp()
    for i in range(8):
        A(f"buffer_load_dwordx4 {v(Af[i],4)}, {v(vL16)}, {s(sO,4)}, {s(sB if i < 4 else sB4)} offen offset:{(i&3)*1024} sc1")
    def rd3(i):
        for b in range(2):
            A(f"ds_read_b64_tr_b16 {v(Bf[i&1][b],2)}, {v(vB)} offset:{WO + i*2048 + b*512}")
            A(f"ds_read_b64_tr_b16 {v(Bf[i&1][b]+2,2)}, {v(vB)} offset:{WO + i*2048 + b*512 + 1024}")
    rd3(0)
    A(f"v_lshrrev_b32 {v(vT2)}, 1, {v(vTok)}")
    A(f"v_and_b32 {v(vT2)}, 7, {v(vT2)}")
    A(f"s_lshl_b32 {s(sT0)}, {s(sTr)}, 12")
    A(f"s_add_u32 {s(sT0)}, {s(sT0)}, {XT}")
    A(f"v_lshlrev_b32 {v(vT1)}, 7, {v(vTok)}")
    A(f"v_lshl_add_u32 {v(vT1)}, {v(vHf)}, 3, {v(vT1)}")
    A(f"v_add_u32 {v(vT1)}, {s(sT0)}, {v(vT1)}")
    A(f"s_lshl_b32 {s(sT1)}, {s(sTb)}, 2")
    A(f"s_lshl_b32 {s(sT0)}, {s(sTi)}, 1")
    A(f"s_add_u32 {s(sT1)}, {s(sT1)}, {s(sT0)}")
    for a_ in range(2):
        A(f"s_add_u32 {s(sT0)}, {s(sT1)}, {a_}")
        A(f"v_xor_b32 {v(vT0)}, {s(sT0)}, {v(vT2)}")
        A(f"v_lshl_add_u32 {v(vT0)}, {v(vT0)}, 4, {v(vT1)}")
        A(f"ds_read_b64 {v(xr+2*a_,2)}, {v(vT0)}")
    for i in range(8):
        if i + 1 < 8:
            rd3(i + 1)
            A(f"s_waitcnt lgkmcnt(4)")
        else:
            A(f"s_waitcnt lgkmcnt(0)")
        A(f"s_waitcnt vmcnt({7-i})")
        for b in range(2):
            A(f"v_mfma_f32_32x32x16_bf16 {v(acc[b],16)}, {v(Bf[i&1][b],4)}, {v(Af[i],4)}, {'0' if i == 0 else v(acc[b],16)}")
    A(f"s_lshl_b32 {s(sT0)}, {s(sTr)}, 14")
    A(f"s_lshl_b32 {s(sT1)}, {s(sKq)}, 12")
    A(f"s_add_u32 {s(sT0)}, {s(sT0)}, {s(sT1)}")
    A(f"s_add_u32 {s(sT0)}, {s(sT0)}, {RED}")
    A(f"v_add_u32 {v(vT0)}, {s(sT0)}, {v(vL16)}")
    for b in range(2):
        for q in range(4):
            A(f"ds_write_b128 {v(vT0)}, {v(acc[b]+4*q,4)} offset:{b*32768 + q*1024}")
    A("s_waitcnt lgkmcnt(0)")
    A("s_barrier")
    K.stamp()
    def own_reduce(REDB, dst):
        A(f"s_lshl_b32 {s(sT0)}, {s(sW)}, 14")
        A(f"s_lshl_b32 {s(sT1)}, {s(sTi)}, 11")
        A(f"s_add_u32 {s(sT0)}, {s(sT0)}, {s(sT1)}")
        A(f"s_add_u32 {s(sT0)}, {s(sT0)}, {REDB}")
        A(f"v_add_u32 {v(vT0)}, {s(sT0)}, {v(vL16)}")
        for p in range(4):
            for q in range(2):
                A(f"ds_read_b128 {v(dst+8*p+4*q,4)}, {v(vT0)} offset:{p*4096 + q*1024}")
        A("s_waitcnt lgkmcnt(4)")
        for r in range(8): A(f"v_add_f32 {v(dst+r)}, {v(dst+r)}, {v(dst+8+r)}")
        A("s_waitcnt lgkmcnt(0)")
        for r in range(8): A(f"v_add_f32 {v(dst+16+r)}, {v(dst+16+r)}, {v(dst+24+r)}")
        for r in range(8): A(f"v_add_f32 {v(dst+r)}, {v(dst+r)}, {v(dst+16+r)}")
    def w1p0():
        A(f"s_cmp_ge_u32 {s(sJ)}, 28")
        A(f"s_cbranch_scc1 KM_NW1A")
        dma_w1(0)
        A.label("KM_NW1A")
    out = Af[0]
    own_reduce(RED, out)
    un = acc[0]
    for i in range(4):
        A(f"v_lshlrev_b32 {v(un+2*i)}, 16, {v(xr+i)}")
        A(f"v_and_b32 {v(un+2*i+1)}, 0xffff0000, {v(xr+i)}")
    for r in range(8): A(f"v_add_f32 {v(out+r)}, {v(out+r)}, {v(un+r)}")
    for i in range(4): A(f"v_cvt_pk_bf16_f32 {v(hpk4+i)}, {v(out+2*i)}, {v(out+2*i+1)}")
    sR32o, sKs = S.alloc(), S.alloc()
    A(f"s_lshl_b32 {s(sR32o)}, {s(sRt)}, 1")
    A(f"s_add_u32 {s(sR32o)}, {s(sR32o)}, {s(sTr)}")
    A(f"s_lshl_b32 {s(sKs)}, {s(sCt)}, 2")
    A(f"s_lshl_b32 {s(sT0)}, {s(sTb)}, 1")
    A(f"s_add_u32 {s(sKs)}, {s(sKs)}, {s(sT0)}")
    A(f"s_add_u32 {s(sKs)}, {s(sKs)}, {s(sTi)}")
    A(f"s_lshl_b32 {s(sB)}, {s(sR32o)}, 15")
    A(f"s_lshl_b32 {s(sT0)}, {s(sKs)}, 10")
    A(f"s_add_u32 {s(sB)}, {s(sB)}, {s(sT0)}")
    A(f"s_add_u32 {s(sB)}, {s(sB)}, {WS_HF}")
    A(f"buffer_store_dwordx4 {v(hpk4,4)}, {v(vL16)}, {s(sO,4)}, {s(sB)} offen" + LSC)
    for i in range(4):
        A(f"v_lshlrev_b32 {v(un+2*i)}, 16, {v(hpk4+i)}")
        A(f"v_and_b32 {v(un+2*i+1)}, 0xffff0000, {v(hpk4+i)}")
    st = acc[1]
    A(f"v_add_f32 {v(st)}, {v(un)}, {v(un+1)}")
    A(f"v_mul_f32 {v(st+1)}, {v(un)}, {v(un)}")
    A(f"v_fmac_f32 {v(st+1)}, {v(un+1)}, {v(un+1)}")
    for r in range(2, 8):
        A(f"v_add_f32 {v(st)}, {v(st)}, {v(un+r)}")
        A(f"v_fmac_f32 {v(st+1)}, {v(un+r)}, {v(un+r)}")
    swap_add(A, st, vT1)
    swap_add(A, st + 1, vT2)
    A(f"s_lshl_b32 {s(sT0)}, {s(sTr)}, 8")
    A(f"s_add_u32 {s(sT0)}, {s(sT0)}, {STP}")
    A(f"v_lshl_add_u32 {v(vT0)}, {v(vTok)}, 3, {s(sT0)}")
    A("s_mov_b32 exec_hi, 0")
    A(f"ds_add_f32 {v(vT0)}, {v(st)}")
    A(f"ds_add_f32 {v(vT0)}, {v(st+1)} offset:4")
    A("s_mov_b64 exec, -1")
    A("s_waitcnt lgkmcnt(0)")
    A("s_barrier")
    A(f"s_cmp_ge_u32 {s(sW8)}, 2")
    A(f"s_cbranch_scc1 KM_NHS")
    A(f"ds_read_b64 {v(st,2)}, {v(vT0)}")
    A(f"s_lshl_b32 {s(sT0)}, {s(sR32o)}, 11")
    A(f"s_lshl_b32 {s(sT1)}, {s(sCt)}, 8")
    A(f"s_add_u32 {s(sT0)}, {s(sT0)}, {s(sT1)}")
    A(f"s_add_u32 {s(sT0)}, {s(sT0)}, {WS_HS}")
    A(f"v_lshlrev_b32 {v(vT0)}, 3, {v(vTok)}")
    A("s_waitcnt lgkmcnt(0)")
    A("s_mov_b32 exec_hi, 0")
    A(f"buffer_store_dwordx2 {v(st,2)}, {v(vT0)}, {s(sO,4)}, {s(sT0)} offen" + LSC)
    A("s_mov_b64 exec, -1")
    A.label("KM_NHS")
    A(f"s_cmp_ge_u32 {s(sJ)}, 28")
    A(f"s_cbranch_scc1 KM_NW1A")
    dma_w1_all8(0)
    A("s_waitcnt vmcnt(8) lgkmcnt(0)")
    A("s_branch KM_NW1B")
    A.label("KM_NW1A")
    dma_w2_lo8()
    A("s_waitcnt vmcnt(8) lgkmcnt(0)")
    A.label("KM_NW1B")
    A("s_barrier")
    K.stamp()
    V.release(mkC)
    def sig3():
        def idx(d):
            A(f"s_lshl_b32 {s(d)}, {s(sXcd)}, 1")
            A(f"s_lshr_b32 {s(sT0)}, {s(sJ3)}, 1")
            A(f"s_add_u32 {s(d)}, {s(d)}, {s(sT0)}")
        cnt_off(sCn, 2048, idx)
        signal(sCn, LOCAL)
    only_wave0("3s", sig3)
    A(f"s_cmp_ge_u32 {s(sJ)}, 28")
    A(f"s_cbranch_scc1 KM_NOP4")
    if_upper("w1", lambda: dma_w1(1))
    A("s_waitcnt vmcnt(0)") if False else None
    def w0_sync3():
        cnt_off(sCn, 2048, lambda d: A(f"s_mov_b32 {s(d)}, {s(sR128)}"))
        poll(sCn, 16, "3")
    mk4 = V.mark()
    Af = [V.alloc(4) for _ in range(16)]
    acc = [V.alloc(16) for _ in range(4)]
    Bf = [[V.alloc(4) for _ in range(4)] for _ in range(2)]
    csa = [V.alloc(4)]; msk = V.alloc(4)
    vB = [V.alloc() for _ in range(4)]; vB2 = [V.alloc() for _ in range(4)]
    hs = V.alloc(8); vb1 = V.alloc()
    sR32 = S.alloc(); sQ = [S.alloc() for _ in range(4)]
    srd(A, sRa, sP1 + 2, 1792 * 2)
    A(f"s_lshl_b32 {s(sR32)}, {s(sR128)}, 2")
    A(f"s_add_u32 {s(sR32)}, {s(sR32)}, {s(sW)}")
    A(f"v_lshlrev_b32 {v(vT1)}, 2, {v(vLane)}")
    A(f"s_lshl_b32 {s(sT1)}, {s(sCt4)}, 8")
    A(f"buffer_load_dword {v(vb1)}, {v(vT1)}, {s(sRa,4)}, {s(sT1)} offen")
    for q in range(4):
        A(f"s_xor_b32 {s(sQ[q])}, {s(sW)}, {q}")
        A(f"s_lshl_b32 {s(sQ[q])}, {s(sQ[q])}, 10")
    A(f"s_lshl_b32 {s(sT1)}, {s(sTi)}, 15")
    for q in range(4):
        A(f"s_lshl_b32 {s(sT0)}, {s(sQ[q])}, 1")
        A(f"s_add_u32 {s(sT0)}, {s(sT0)}, {s(sT1)}")
        A(f"v_add_u32 {v(vB[q])}, {s(sT0)}, {v(vBl)}")
        A(f"v_add_u32 {v(vB2[q])}, 65536, {v(vB[q])}")
    A(f"s_cmp_lt_u32 {s(sW8)}, 2")
    A(f"s_cbranch_scc1 KM_NCS")
    A(f"s_cmp_ge_u32 {s(sW8)}, 4")
    A(f"s_cbranch_scc1 KM_NCS")
    A(f"s_and_b32 {s(sT0)}, {s(sW8)}, 1")
    A(f"s_lshl_b32 {s(sT0)}, {s(sT0)}, 8")
    A(f"v_lshlrev_b32 {v(vT1)}, 2, {v(vLane)}")
    A(f"v_add_u32 {v(vT1)}, {s(sT0)}, {v(vT1)}")
    A(f"s_lshl_b32 {s(sT0)}, {s(sCt4)}, 9")
    A(f"s_add_u32 {s(sT0)}, {s(sT0)}, {WS_CSG}")
    for kc in range(8):
        A(f"buffer_load_dword {v(hs+kc)}, {v(vT1)}, {s(sO,4)}, {s(sT0)} offen")
        if kc < 7: A(f"s_add_u32 {s(sT0)}, {s(sT0)}, 7168")
    A("s_waitcnt vmcnt(0)")
    for st_ in (4, 2, 1):
        for i in range(st_): A(f"v_add_f32 {v(hs+i)}, {v(hs+i)}, {v(hs+i+st_)}")
    A(f"v_add_u32 {v(vT1)}, {CS}, {v(vT1)}")
    A(f"ds_write_b32 {v(vT1)}, {v(hs)}")
    A.label("KM_NCS")
    A("s_waitcnt vmcnt(0)")
    A(f"v_lshlrev_b32 {v(hs+2)}, 16, {v(vb1)}")
    A(f"v_and_b32 {v(hs+3)}, 0xffff0000, {v(vb1)}")
    A(f"v_lshlrev_b32 {v(vT0)}, 3, {v(vLane)}")
    A(f"v_add_u32 {v(vT0)}, {BI}, {v(vT0)}")
    A(f"ds_write_b64 {v(vT0)}, {v(hs+2,2)}")
    A(f"s_lshl_b32 {s(sB)}, {s(sR32)}, 15")
    A(f"s_lshl_b32 {s(sT0)}, {s(sTi)}, 14")
    A(f"s_add_u32 {s(sB)}, {s(sB)}, {s(sT0)}")
    A(f"s_add_u32 {s(sB)}, {s(sB)}, {WS_HF}")
    sHs = S.alloc()
    A(f"s_lshl_b32 {s(sHs)}, {s(sR32)}, 11")
    A(f"s_add_u32 {s(sHs)}, {s(sHs)}, {WS_HS}")
    A(f"v_lshlrev_b32 {v(vT2)}, 3, {v(vTok)}")
    A(f"v_lshl_add_u32 {v(vT2)}, {v(vHf)}, 10, {v(vT2)}")
    for q in range(4): A(f"s_add_u32 {s(sQ[q])}, {s(sQ[q])}, {s(sB)}")
    A("s_waitcnt vmcnt(0) lgkmcnt(0)")
    only_wave0("3", w0_sync3)
    K.stamp(1)
    A("s_barrier")
    K.stamp()
    def lda4(g):
        for q in range(4):
            if g: A(f"s_add_u32 {s(sQ[q])}, {s(sQ[q])}, 4096")
            A(f"buffer_load_dwordx4 {v(Af[4*g+q],4)}, {v(vL16)}, {s(sO,4)}, {s(sQ[q])} offen" + LLD)
    lda4(0)
    for i in range(4):
        A(f"buffer_load_dwordx2 {v(hs+2*i,2)}, {v(vT2)}, {s(sO,4)}, {s(sHs)} offen offset:{i*256}" + LLD)
    lda4(1)
    def rd4(n):
        for t in range(4):
            p, b = t >> 1, t & 1
            o = (n >> 2) * 8192 + b * 512
            base = (vB if p == 0 else vB2)[n & 3]
            A(f"ds_read_b64_tr_b16 {v(Bf[n&1][t],2)}, {v(base)} offset:{o}")
            A(f"ds_read_b64_tr_b16 {v(Bf[n&1][t]+2,2)}, {v(base)} offset:{o+1024}")
    rd4(0)
    A(f"v_lshlrev_b32 {v(acc[0])}, 16, {v(vb1)}") if False else None
    for n in range(16):
        if n + 1 < 16:
            rd4(n + 1)
            A("s_waitcnt lgkmcnt(8)")
        else:
            A("s_waitcnt lgkmcnt(0)")
        if n % 4 == 0: A(f"s_waitcnt vmcnt({ {0: 8, 4: 8, 8: 4, 12: 0}[n] })")
        for t in range(4):
            A(f"v_mfma_f32_32x32x16_bf16 {v(acc[t],16)}, {v(Bf[n&1][t],4)}, {v(Af[n],4)}, {'0' if n == 0 else v(acc[t],16)}")
        if n in (0, 1): lda4(n + 2)
    K.stamp()
    for st_ in (2, 1):
        for i in range(st_):
            A(f"v_add_f32 {v(hs+2*i)}, {v(hs+2*i)}, {v(hs+2*(i+st_))}")
            A(f"v_add_f32 {v(hs+2*i+1)}, {v(hs+2*i+1)}, {v(hs+2*(i+st_)+1)}")
    swap_add(A, hs, vT1)
    swap_add(A, hs + 1, vT2)
    A("s_waitcnt lgkmcnt(0)")
    A("s_barrier")
    A(f"s_lshl_b32 {s(sT0)}, {s(sW8)}, 13")
    A(f"s_add_u32 {s(sT0)}, {s(sT0)}, 65536")
    A(f"v_add_u32 {v(vT0)}, {s(sT0)}, {v(vL16)}")
    A(f"s_cmp_eq_u32 {s(sTi)}, 0")
    A(f"s_cbranch_scc1 KM_E1")
    for t in range(2):
        for q in range(4): A(f"ds_write_b128 {v(vT0)}, {v(acc[t]+4*q,4)} offset:{t*4096 + q*1024}")
    for r in range(32): A(f"v_mov_b32 {v(acc[0]+r)}, {v(acc[2]+r)}")
    A("s_branch KM_E2")
    A.label("KM_E1")
    for t in range(2):
        for q in range(4): A(f"ds_write_b128 {v(vT0)}, {v(acc[2+t]+4*q,4)} offset:{t*4096 + q*1024}")
    A.label("KM_E2")
    A("s_waitcnt lgkmcnt(0)")
    A("s_barrier")
    K.stamp()
    A(f"s_xor_b32 {s(sT0)}, {s(sW8)}, 4")
    A(f"s_lshl_b32 {s(sT0)}, {s(sT0)}, 13")
    A(f"s_add_u32 {s(sT0)}, {s(sT0)}, 65536")
    A(f"v_add_u32 {v(vT0)}, {s(sT0)}, {v(vL16)}")
    for t in range(2):
        for q in range(4): A(f"ds_read_b128 {v(acc[2+t]+4*q,4)}, {v(vT0)} offset:{t*4096 + q*1024}")
    def R(i): return Af[0] + 16 * i
    A(f"s_lshl_b32 {s(sT0)}, {s(sTi)}, 8")
    A(f"s_add_u32 {s(sT0)}, {s(sT0)}, {CS}")
    A(f"v_lshl_add_u32 {v(vT2)}, {v(vHf)}, 4, {s(sT0)}")
    for t in range(2):
        for a_ in range(4): A(f"ds_read_b128 {v(R(t)+4*a_,4)}, {v(vT2)} offset:{t*128 + a_*32}")
    A("s_waitcnt lgkmcnt(8)")
    vMean, vRs, vMr = csa[0], csa[0] + 1, csa[0] + 2
    vC1, vC2 = msk, msk + 1
    c1 = -2.0 * 0.7978845608028654 * LOG2E
    c2 = c1 * 0.044715
    A(f"v_mul_f32 {v(vMean)}, {f2u(1/512.):#x}, {v(hs)}")
    A(f"v_mul_f32 {v(vT1)}, {v(vMean)}, {v(vMean)}")
    A(f"v_mov_b32 {v(vT0)}, {f2u(1/512.):#x}")
    A(f"v_fma_f32 {v(vT1)}, {v(hs+1)}, {v(vT0)}, -{v(vT1)}")
    A(f"v_max_f32 {v(vT1)}, 0, {v(vT1)}")
    A(f"v_add_f32 {v(hs+2)}, {f2u(1e-5):#x}, {v(vT1)}")
    A(f"v_rcp_f32 {v(vT0)}, {v(hs+2)}")
    A(f"v_rsq_f32 {v(vRs)}, {v(hs+2)}")
    A(f"v_mul_f32 {v(vT1)}, {v(vT1)}, {v(vT0)}")
    A(f"v_add_f32 {v(vT1)}, {f2u(1e-5):#x}, {v(vT1)}")
    A(f"v_rsq_f32 {v(vT1)}, {v(vT1)}")
    A(f"v_mov_b32 {v(vC1)}, {f2u(c1):#x}")
    A(f"v_mov_b32 {v(vC2)}, {f2u(c2):#x}")
    A(f"v_mul_f32 {v(vRs)}, {v(vRs)}, {v(vT1)}")
    A(f"v_mul_f32 {v(vMr)}, {v(vMean)}, {v(vRs)}")
    for t in range(2):
        for a_ in range(4): A(f"ds_read_b128 {v(R(2+t)+4*a_,4)}, {v(vT2)} offset:{512 + t*128 + a_*32}")
    for r in range(32): A(f"v_add_f32 {v(acc[0]+r)}, {v(acc[0]+r)}, {v(acc[2]+r)}")
    A(f"s_mul_i32 {s(sB)}, {s(sR32)}, {112*1024}")
    A(f"s_lshl_b32 {s(sT0)}, {s(sCt4)}, 13")
    A(f"s_add_u32 {s(sB)}, {s(sB)}, {s(sT0)}")
    A(f"s_lshl_b32 {s(sT0)}, {s(sTi)}, 12")
    A(f"s_add_u32 {s(sB)}, {s(sB)}, {s(sT0)}")
    A(f"s_add_u32 {s(sB)}, {s(sB)}, {WS_MF}")
    A("s_waitcnt lgkmcnt(0)")
    for t in range(2):
        x = acc[t]; T = R(2 + t); Z = acc[2 + t]
        for r in range(16): A(f"v_fma_f32 {v(T+r)}, -{v(vMr)}, {v(R(t)+r)}, {v(T+r)}")
        for r in range(16): A(f"v_fma_f32 {v(x+r)}, {v(x+r)}, {v(vRs)}, {v(T+r)}")
        for r in range(16): A(f"v_mul_f32 {v(Z+r)}, {v(x+r)}, {v(x+r)}")
        for r in range(16): A(f"v_fma_f32 {v(Z+r)}, {v(Z+r)}, {v(vC2)}, {v(vC1)}")
        for r in range(16): A(f"v_mul_f32 {v(Z+r)}, {v(Z+r)}, {v(x+r)}")
        for r in range(16): A(f"v_exp_f32 {v(Z+r)}, {v(Z+r)}")
        for r in range(16): A(f"v_add_f32 {v(Z+r)}, 1.0, {v(Z+r)}")
        for r in range(16): A(f"v_rcp_f32 {v(Z+r)}, {v(Z+r)}")
        for r in range(16): A(f"v_mul_f32 {v(x+r)}, {v(x+r)}, {v(Z+r)}")
        pk = R(t)
        for i in range(8): A(f"v_cvt_pk_bf16_f32 {v(pk+i)}, {v(x+2*i)}, {v(x+2*i+1)}")
        A(f"buffer_store_dwordx4 {v(pk,4)}, {v(vL16)}, {s(sO,4)}, {s(sB)} offen offset:{t*2048}" + LSC)
        A(f"buffer_store_dwordx4 {v(pk+4,4)}, {v(vL16)}, {s(sO,4)}, {s(sB)} offen offset:{t*2048+1024}" + LSC)
    dma_w2_lo8()
    A("s_waitcnt vmcnt(8)")
    A("s_barrier")
    K.stamp()
    def sig4():
        cnt_off(sCn, 6144, lambda d: A(f"s_mov_b32 {s(d)}, {s(sR128)}"))
        signal(sCn, LOCAL)
    only_wave0("4s", sig4)
    V.release(mk4)
    A.label("KM_NOP4")
    if_upper("w2", dma_w2_hi_upper)
    def w0_sync4():
        def idx(d):
            A(f"s_lshl_b32 {s(d)}, {s(sXcd)}, 1")
            A(f"s_lshr_b32 {s(sT0)}, {s(sJ3)}, 1")
            A(f"s_add_u32 {s(d)}, {s(d)}, {s(sT0)}")
        cnt_off(sCn, 6144, idx)
        poll(sCn, 14, "4")
    NW = 12
    Af = [[V.alloc(4) for _ in range(2)] for _ in range(NW)]
    acc = [V.alloc(16) for _ in range(4)]
    Bf = [[V.alloc(4) for _ in range(2)] for _ in range(2)]
    vB = V.alloc(); b2r = V.alloc(4)
    sA0, sA1 = S.alloc(), S.alloc()
    srd(A, sRa, sP2 + 2, 512 * 2)
    srd(A, sRb, sPo, 2048 * 512 * 2)
    A(f"s_lshl_b32 {s(sT0)}, {s(sCt)}, 7")
    A(f"s_lshl_b32 {s(sT1)}, {s(sTb)}, 6")
    A(f"s_add_u32 {s(sT0)}, {s(sT0)}, {s(sT1)}")
    A(f"s_lshl_b32 {s(sT1)}, {s(sTi)}, 5")
    A(f"s_add_u32 {s(sT0)}, {s(sT0)}, {s(sT1)}")
    A(f"v_lshlrev_b32 {v(vT0)}, 3, {v(vHf)}")
    for a_ in range(2):
        A(f"buffer_load_dwordx2 {v(b2r+2*a_,2)}, {v(vT0)}, {s(sRa,4)}, {s(sT0)} offen offset:{a_*16}")
    A(f"s_cmp_lt_u32 {s(sW8)}, 4")
    A(f"s_cbranch_scc1 KM_C5")
    A("s_waitcnt vmcnt(0)")
    A("s_barrier")
    for y in range(1, 7):
        if y >= 4: A(f"s_waitcnt vmcnt({8*(6-y)})")
        A("s_barrier")
        if y + 3 < 7: dma_w2(y + 3)
    A("s_barrier")
    A("s_branch KM_Z")
    A.label("KM_C5")
    A(f"s_mul_i32 {s(sA0)}, {s(sRt)}, {2*112*1024}")
    A(f"s_mul_i32 {s(sT0)}, {s(sW)}, {28*1024}")
    A(f"s_add_u32 {s(sA0)}, {s(sA0)}, {s(sT0)}")
    A(f"s_add_u32 {s(sA0)}, {s(sA0)}, {WS_MF}")
    A(f"s_add_u32 {s(sA1)}, {s(sA0)}, {112*1024}")
    A(f"s_lshl_b32 {s(sT0)}, {s(sW)}, 15")
    A(f"v_add_u32 {v(vB)}, {s(sT0)}, {v(vBl)}")
    def lda(n):
        for r, sa in ((0, sA0), (1, sA1)):
            if n % 4 == 0 and n: A(f"s_add_u32 {s(sa)}, {s(sa)}, 4096")
            A(f"buffer_load_dwordx4 {v(Af[n % NW][r],4)}, {v(vL16)}, {s(sO,4)}, {s(sa)} offen offset:{(n&3)*1024}" + LLD)
    def rd5(n):
        c, i = n >> 2, n & 3
        for b in range(2):
            o = W2 + (c & 3) * 8192 + i * 2048 + b * 512
            A(f"ds_read_b64_tr_b16 {v(Bf[n&1][b],2)}, {v(vB)} offset:{o}")
            A(f"ds_read_b64_tr_b16 {v(Bf[n&1][b]+2,2)}, {v(vB)} offset:{o+1024}")
    A("s_waitcnt vmcnt(0)")
    only_wave0("4", w0_sync4)
    K.stamp(2)
    A("s_barrier")
    K.stamp()
    issued = 3
    for n in range(issued): lda(n)
    rd5(0)
    for n in range(28):
        if n + 1 < 28:
            if (n + 1) % 4 == 0:
                A("s_waitcnt lgkmcnt(0)")
                A("s_barrier")
            rd5(n + 1)
            A("s_waitcnt lgkmcnt(4)")
        else:
            A("s_waitcnt lgkmcnt(0)")
        A(f"s_waitcnt vmcnt({2*(issued - 1 - n)})")
        for b in range(2):
            for r in range(2):
                t = 2 * b + r
                A(f"v_mfma_f32_32x32x16_bf16 {v(acc[t],16)}, {v(Bf[n&1][b],4)}, {v(Af[n%NW][r],4)}, {'0' if n == 0 else v(acc[t],16)}")
        tgt = min(28, n + 1 + WIN5, issued + 2)
        while issued < tgt:
            lda(issued); issued += 1
    K.stamp()
    A("s_barrier")
    A(f"s_lshl_b32 {s(sT0)}, {s(sW)}, 12")
    A(f"s_add_u32 {s(sT0)}, {s(sT0)}, {RED5}")
    A(f"v_add_u32 {v(vT0)}, {s(sT0)}, {v(vL16)}")
    for t in range(4):
        for q in range(4):
            A(f"ds_write_b128 {v(vT0)}, {v(acc[t]+4*q,4)} offset:{t*16384 + q*1024}")
    A("s_waitcnt lgkmcnt(0)")
    A.label("KM_Z")
    A("s_barrier")
    out = Af[0][0]
    own_reduce(RED5, out)
    un = acc[0]
    for i in range(4):
        A(f"v_lshlrev_b32 {v(un+2*i)}, 16, {v(hpk4+i)}")
        A(f"v_and_b32 {v(un+2*i+1)}, 0xffff0000, {v(hpk4+i)}")
    for r in range(8): A(f"v_add_f32 {v(out+r)}, {v(out+r)}, {v(un+r)}")
    A("s_waitcnt vmcnt(0)")
    for i in range(4):
        A(f"v_lshlrev_b32 {v(un+2*i)}, 16, {v(b2r+i)}")
        A(f"v_and_b32 {v(un+2*i+1)}, 0xffff0000, {v(b2r+i)}")
    for r in range(8): A(f"v_add_f32 {v(out+r)}, {v(out+r)}, {v(un+r)}")
    pk = acc[1]
    for i in range(4): A(f"v_cvt_pk_bf16_f32 {v(pk+i)}, {v(out+2*i)}, {v(out+2*i+1)}")
    A(f"v_permlane32_swap_b32 {v(pk)}, {v(pk+2)}")
    A(f"v_permlane32_swap_b32 {v(pk+1)}, {v(pk+3)}")
    A(f"s_lshl_b32 {s(sT0)}, {s(sRt)}, 16")
    A(f"s_lshl_b32 {s(sT1)}, {s(sTr)}, 15")
    A(f"s_add_u32 {s(sT0)}, {s(sT0)}, {s(sT1)}")
    A(f"s_lshl_b32 {s(sT1)}, {s(sCt)}, 7")
    A(f"s_add_u32 {s(sT0)}, {s(sT0)}, {s(sT1)}")
    A(f"s_lshl_b32 {s(sT1)}, {s(sTb)}, 6")
    A(f"s_add_u32 {s(sT0)}, {s(sT0)}, {s(sT1)}")
    A(f"s_lshl_b32 {s(sT1)}, {s(sTi)}, 5")
    A(f"s_add_u32 {s(sT0)}, {s(sT0)}, {s(sT1)}")
    A(f"v_lshlrev_b32 {v(vT0)}, 10, {v(vTok)}")
    A(f"v_lshl_add_u32 {v(vT0)}, {v(vHf)}, 4, {v(vT0)}")
    A(f"buffer_store_dwordx4 {v(pk,4)}, {v(vT0)}, {s(sRb,4)}, {s(sT0)} offen")
    K.stamp_out(sO, 1, vT0, vT1)
    K.rt_end(sO, 1, vT0, vT1)
    A.label(END)
    A("s_endpgm")
    print("km vgprs", V.hi, "sgprs", S.hi, "lds", K.lds)
    return K

def k1_hook(ev, K, L):
    A, V, S = K.A, K.V, K.S
    vT0, vT1, vLane, sW8, sWs = L["vT0"], L["vT1"], L["vLane"], L["sW8"], L["sWs"]
    H = K.__dict__.setdefault("_h", {})
    if ev == "start":
        H["R0"] = V.alloc(32); H["AC"] = V.alloc(8); H["UN"] = V.alloc(8); H["vo"] = V.alloc()
        H["srd"] = S.alloc(4); H["t"] = [S.alloc() for _ in range(4)]; H["p"] = S.alloc(2); H["flag"] = S.alloc()
        R0, vo, srd_, t, p, flag = H["R0"], H["vo"], H["srd"], H["t"], H["p"], H["flag"]
        A(f"s_mov_b32 {s(flag)}, 0")
        A(f"s_cmp_lg_u32 {s(sW8)}, 8")
        A(f"s_cbranch_scc1 K1_NOCS0")
        A("s_waitcnt lgkmcnt(0)")
        A(f"s_cmp_ge_u32 s2, 48")
        A(f"s_cbranch_scc1 K1_NOZ")
        srd(A, srd_, sWs, WS_SIZE)
        A(f"s_lshl_b32 {s(t[0])}, s2, 8")
        A(f"s_add_u32 {s(t[0])}, {s(t[0])}, {WS_CNT}")
        A(f"v_mov_b32 {v(vT0)}, 0")
        A(f"v_mov_b32 {v(vT1)}, 0")
        A(f"s_mov_b64 exec, 1")
        A(f"buffer_store_dword {v(vT0)}, {v(vT1)}, {s(srd_,4)}, {s(t[0])} offen")
        A(f"s_mov_b64 exec, -1")
        A.label("K1_NOZ")
        A(f"s_cmp_ge_u32 s2, 224")
        A(f"s_cbranch_scc1 K1_NOCS0")
        A(f"s_mov_b32 {s(flag)}, 1")
        A(f"s_load_dwordx2 {s(p,2)}, s[0:1], 32")
        A(f"s_mul_i32 {s(t[0])}, s2, 2341")
        A(f"s_lshr_b32 {s(t[0])}, {s(t[0])}, 16")
        A(f"s_mul_i32 {s(t[1])}, {s(t[0])}, 28")
        A(f"s_sub_u32 {s(t[1])}, s2, {s(t[1])}")
        A(f"v_lshrrev_b32 {v(vo)}, 3, {v(vLane)}")
        A(f"v_mul_u32_u24 {v(vo)}, 3584, {v(vo)}")
        A(f"v_and_b32 {v(vT0)}, 7, {v(vLane)}")
        A(f"v_lshl_add_u32 {v(vo)}, {v(vT0)}, 4, {v(vo)}")
        A(f"s_mul_i32 {s(t[2])}, {s(t[0])}, {64*3584}")
        A(f"s_lshl_b32 {s(t[3])}, {s(t[1])}, 7")
        A(f"s_add_u32 {s(t[2])}, {s(t[2])}, {s(t[3])}")
        A("s_waitcnt lgkmcnt(0)")
        srd(A, srd_, p, 512 * 1792 * 2)
        for n in range(8):
            A(f"buffer_load_dwordx4 {v(R0+4*n,4)}, {v(vo)}, {s(srd_,4)}, {s(t[2])} offen")
            A(f"s_add_u32 {s(t[2])}, {s(t[2])}, {8*3584}")
        A.label("K1_NOCS0")
        for i in range(8): A(f"v_mov_b32 {v(H['AC']+i)}, 0")
    elif ev == "end":
        R0, AC, UN, srd_, t, flag = H["R0"], H["AC"], H["UN"], H["srd"], H["t"], H["flag"]
        A(f"s_cmp_eq_u32 {s(flag)}, 0")
        A(f"s_cbranch_scc1 K1_NOCS1")
        A("s_waitcnt vmcnt(0)")
        for n in range(8):
            for i in range(4):
                A(f"v_lshlrev_b32 {v(UN+2*i)}, 16, {v(R0+4*n+i)}")
                A(f"v_and_b32 {v(UN+2*i+1)}, 0xffff0000, {v(R0+4*n+i)}")
            for i in range(8): A(f"v_add_f32 {v(AC+i)}, {v(AC+i)}, {v(UN+i)}")
        for i in range(8): A(f"v_add_f32_dpp {v(AC+i)}, {v(AC+i)}, {v(AC+i)} row_ror:8 row_mask:0xf bank_mask:0xf")
        for sw in ("v_permlane16_swap_b32", "v_permlane32_swap_b32"):
            for i in range(8): A(f"v_mov_b32 {v(UN+i)}, {v(AC+i)}")
            for i in range(8): A(f"{sw} {v(AC+i)}, {v(UN+i)}")
            for i in range(8): A(f"v_add_f32 {v(AC+i)}, {v(AC+i)}, {v(UN+i)}")
        srd(A, srd_, sWs, WS_SIZE)
        A(f"s_mul_i32 {s(t[2])}, {s(t[0])}, 7168")
        A(f"s_lshl_b32 {s(t[3])}, {s(t[1])}, 8")
        A(f"s_add_u32 {s(t[2])}, {s(t[2])}, {s(t[3])}")
        A(f"s_add_u32 {s(t[2])}, {s(t[2])}, {WS_CSG}")
        A(f"v_and_b32 {v(vT0)}, 7, {v(vLane)}")
        A(f"v_lshlrev_b32 {v(vT0)}, 5, {v(vT0)}")
        A(f"s_mov_b64 exec, 0xff")
        A(f"buffer_store_dwordx4 {v(AC,4)}, {v(vT0)}, {s(srd_,4)}, {s(t[2])} offen")
        A(f"buffer_store_dwordx4 {v(AC+4,4)}, {v(vT0)}, {s(srd_,4)}, {s(t[2])} offen offset:16")
        A.label("K1_NOCS1")

def k1z():
    G.HOOK = k1_hook
    return G.k1()

if __name__ == "__main__":
    if "stamp" in sys.argv: G.STAMP = True
    if "rt" in sys.argv: G.RT = True
    G.FLAGS = set(sys.argv[2:])
    for a_ in sys.argv[2:]:
        if a_.startswith("prioit="): PRIO_IT = int(a_.split("=")[1])
    ks = [k1z(), km(1 if 'q1' in G.FLAGS else 2, prio=('noprio' not in G.FLAGS))]
    build(ks, sys.argv[1] if len(sys.argv) > 1 else "out.s")
```

```python
import sys, struct
from dsl import *

NAME = "sequential_preLN__mha_block__mixer_channel_mlp__prompt"
WS_QF = 0
WS_KF = 2 << 20
WS_VF = 4 << 20
WS_KMAX = 6 << 20
WS_OF = 8 << 20
WS_HF = 10 << 20
WS_MF = 12 << 20
WS_HS = (19 << 20) + (512 << 10)
WS_STAMP = 20 << 20
WS_STAMP2 = 22 << 20
WS_SIZE = 24 << 20
STAMP = False
RT = False
FLAGS = set()
def _flags():
    import gen as _g
    return _g.FLAGS | FLAGS
def f2u(x): return struct.unpack('<I', struct.pack('<f', x))[0]
LOG2E = 1.4426950408889634

class Kern:
    def __init__(self, name, grid, block, lds):
        self.name = name; self.grid = grid; self.block = block; self.lds = lds
        self.A = Asm()
        self.V = RegAlloc('v', 1, 256)
        self.S = RegAlloc('s', 3, 100)
        self.accum = None
        self.stamps = []
        import gen as _g; self.dostamp = _g.STAMP or STAMP
    def stamp(self, idx=None):
        if not self.dostamp: return
        if not hasattr(self, "vstamp"):
            self.vstamp = self.V.alloc(); self.nst = 0
            self.S.hi = max(self.S.hi, 100)
        if idx is None:
            idx = self.nst; self.nst += 1
        self.A("s_memtime s[98:99]")
        self.A("s_waitcnt lgkmcnt(0)")
        self.A(f"v_writelane_b32 {v(self.vstamp)}, s98, {idx}")
    def rt_begin(self):
        import gen as _g
        if not (RT or _g.RT): return
        self.rt0 = self.S.alloc(2)
        self.A(f"s_memrealtime {s(self.rt0,2)}")
        self.mt0 = self.S.alloc(2)
        self.A(f"s_memtime {s(self.mt0,2)}")
    def rt_end(self, sSrd, kidx, vt0, vt1):
        import gen as _g
        if not (RT or _g.RT): return
        A = self.A
        r1 = self.S.alloc(2); m1 = self.S.alloc(2); t = self.S.alloc(); w = self.S.alloc()
        A("s_waitcnt vmcnt(0)")
        A(f"s_memrealtime {s(r1,2)}")
        A(f"s_memtime {s(m1,2)}")
        A("s_mov_b64 exec, -1")
        A(f"v_lshrrev_b32 {v(vt0)}, 6, v0")
        A("s_nop 1")
        A(f"v_readfirstlane_b32 {s(w)}, {v(vt0)}")
        A(f"s_lshl_b32 {s(t)}, s2, 4")
        A(f"s_add_u32 {s(t)}, {s(t)}, {s(w)}")
        A(f"s_lshl_b32 {s(t)}, {s(t)}, 4")
        A(f"s_add_u32 {s(t)}, {s(t)}, {WS_STAMP + 0x40000 + kidx*0x10000}")
        A("s_waitcnt lgkmcnt(0)")
        A(f"s_sub_u32 {s(m1)}, {s(m1)}, {s(self.mt0)}")
        A("s_mov_b64 exec, 1")
        A(f"v_mov_b32 {v(vt1)}, 0")
        for i, r in enumerate((self.rt0, r1, m1)):
            A(f"v_mov_b32 {v(vt0)}, {s(r)}")
            A(f"buffer_store_dword {v(vt0)}, {v(vt1)}, {s(sSrd,4)}, {s(t)} offen offset:{4*i}")
    def stamp_out(self, sSrd, kidx, vt0, vt1, final=None):
        if not self.dostamp: return
        A = self.A
        self.stamp(final)
        A("s_mov_b64 exec, -1")
        A(f"v_lshrrev_b32 {v(vt0)}, 6, v0")
        A("s_nop 1")
        A(f"v_readfirstlane_b32 s97, {v(vt0)}")
        A(f"s_lshl_b32 s96, s2, 4")
        A(f"s_add_u32 s96, s96, s97")
        A(f"s_lshl_b32 s96, s96, 6")
        A(f"s_add_u32 s96, s96, {WS_STAMP2 + kidx*0x40000}")
        A(f"v_and_b32 {v(vt1)}, 63, v0")
        A(f"v_lshlrev_b32 {v(vt1)}, 2, {v(vt1)}")
        A("s_mov_b64 exec, 0xffff")
        A(f"buffer_store_dword {v(self.vstamp)}, {v(vt1)}, {s(sSrd,4)}, s96 offen")
    def finish(self, agprs=0):
        self.A.fix_hazards()
        nv = self.V.hi
        acc = (nv + 3) // 4 * 4
        tot = acc + agprs if agprs else nv
        assert acc <= 256 or agprs == 0 or True
        txt = f".globl {self.name}\n.p2align 8\n.type {self.name},@function\n{self.name}:\n" + self.A.text()
        kd = f""".amdhsa_kernel {self.name}
  .amdhsa_next_free_vgpr {tot}
  .amdhsa_next_free_sgpr {max(self.S.hi, 16)}
  .amdhsa_accum_offset {min(acc, 256)}
  .amdhsa_group_segment_fixed_size 0
  .amdhsa_kernarg_size 88
  .amdhsa_user_sgpr_count 2
  .amdhsa_user_sgpr_kernarg_segment_ptr 1
  .amdhsa_system_sgpr_workgroup_id_x 1
.end_amdhsa_kernel
"""
        return txt, kd

def srd(A, sd, sptr, nbytes):
    A(f"s_mov_b32 {s(sd)}, {s(sptr)}")
    A(f"s_and_b32 {s(sd+1)}, {s(sptr+1)}, 0xffff")
    A(f"s_mov_b32 {s(sd+2)}, {nbytes}")
    A(f"s_mov_b32 {s(sd+3)}, 0x20000")

def swap_add(A, x, t, op="v_add_f32"):
    A(f"v_mov_b32 {v(t)}, {v(x)}")
    A(f"v_permlane32_swap_b32 {v(x)}, {v(t)}")
    A(f"{op} {v(x)}, {v(x)}, {v(t)}")

def tr_base(A, vdst, vLane, vHf, t0, t1, hfmul_rows, add=0):
    A(f"v_and_b32 {v(t0)}, 15, {v(vLane)}")
    A(f"v_lshrrev_b32 {v(t1)}, 2, {v(t0)}")
    sh = {8: 3, 4: 2}[hfmul_rows]
    A(f"v_lshl_add_u32 {v(t1)}, {v(vHf)}, {sh}, {v(t1)}")
    A(f"v_lshlrev_b32 {v(t1)}, 6, {v(t1)}")
    A(f"v_and_b32 {v(t0)}, 3, {v(t0)}")
    A(f"v_lshl_add_u32 {v(t1)}, {v(t0)}, 3, {v(t1)}")
    A(f"v_bfe_u32 {v(t0)}, {v(vLane)}, 4, 1")
    A(f"v_lshl_add_u32 {v(vdst)}, {v(t0)}, 5, {v(t1)}")
    if add: A(f"v_add_u32 {v(vdst)}, {add}, {v(vdst)}")

HOOK = None
def k1():
    import gen as _g
    K1SC = ' sc1' if 'k1sc1' in _flags() else (' nt' if 'k1nt' in _flags() else '')
    HOOK = _g.HOOK
    XR = 0; WR = 32768; CS = WR + 4 * 24576; ST = CS + 1536
    K = Kern("k1_qkv_kernel", (256, 1, 1), (768, 1, 1), ST + 2048)
    A, V, S = K.A, K.V, K.S
    END = "K1_END"
    sP = S.alloc(4); sWs = S.alloc(2)
    K.sWs = sWs
    A(f"s_load_dwordx4 {s(sP,4)}, s[0:1], 0")
    A(f"s_load_dwordx2 {s(sWs,2)}, s[0:1], 80")
    A(f"s_cmp_ge_u32 s2, 256")
    A(f"s_cbranch_scc1 {END}")
    K.rt_begin()
    K.stamp()
    sX = S.alloc(4); sWq = S.alloc(4); sO = S.alloc(4)
    sW8, sW, sXcd, sJ, sRt, sHq, sRot, sT0, sT1, sXb, sWb, sLx, sLw, sx, sw, sTt, sCh = [S.alloc() for _ in range(17)]
    vLane, vT0, vT1, vT2, vHf, vTok = [V.alloc() for _ in range(6)]
    K.vT = (vT0, vT1); K.sW8 = sW8
    A(f"v_lshrrev_b32 {v(vT0)}, 6, v0")
    A(f"v_and_b32 {v(vLane)}, 63, v0")
    A(f"v_readfirstlane_b32 {s(sW8)}, {v(vT0)}")
    A(f"s_and_b32 {s(sXcd)}, s2, 7")
    A(f"s_lshr_b32 {s(sJ)}, s2, 3")
    A(f"s_and_b32 {s(sW)}, {s(sW8)}, 3")
    A(f"s_and_b32 {s(sT0)}, {s(sXcd)}, 3")
    A(f"s_lshl_b32 {s(sT0)}, {s(sT0)}, 3")
    A(f"s_and_b32 {s(sT1)}, {s(sJ)}, 7")
    A(f"s_add_u32 {s(sRt)}, {s(sT0)}, {s(sT1)}")
    A(f"s_lshr_b32 {s(sT0)}, {s(sXcd)}, 2")
    A(f"s_lshl_b32 {s(sT0)}, {s(sT0)}, 2")
    A(f"s_lshr_b32 {s(sHq)}, {s(sJ)}, 3")
    A(f"s_lshl_b32 {s(sRot)}, {s(sHq)}, 1")
    A(f"s_add_u32 {s(sRot)}, {s(sRot)}, {s(sT1)}")
    A(f"s_add_u32 {s(sRot)}, {s(sRot)}, {s(sXcd)}")
    A(f"s_add_u32 {s(sHq)}, {s(sHq)}, {s(sT0)}")
    A(f"s_and_b32 {s(sTt)}, {s(sW)}, 1")
    A(f"s_lshr_b32 {s(sCh)}, {s(sW)}, 1")
    A(f"s_cmp_lt_u32 {s(sW8)}, 4")
    A(f"s_cbranch_scc1 K1_COMPUTE")
    A(f"s_cmp_ge_u32 {s(sW8)}, 8")
    A(f"s_cbranch_scc1 K1_STATS")
    m0_ = V.mark()
    vWoff = V.alloc()
    A(f"s_mul_i32 {s(sWb)}, {s(sW)}, {8*3072}")
    A(f"s_lshl_b32 {s(sT0)}, {s(sHq)}, 7")
    A(f"s_add_u32 {s(sWb)}, {s(sWb)}, {s(sT0)}")
    A(f"s_lshl_b32 {s(sLx)}, {s(sW)}, 10")
    A(f"s_add_u32 {s(sLw)}, {s(sLx)}, {WR}")
    A(f"v_bfe_u32 {v(vT0)}, {v(vLane)}, 2, 3")
    A(f"v_mul_u32_u24 {v(vT0)}, 3072, {v(vT0)}")
    A(f"v_and_b32 {v(vT1)}, 3, {v(vLane)}")
    A(f"v_lshl_add_u32 {v(vT0)}, {v(vT1)}, 4, {v(vT0)}")
    A(f"v_lshrrev_b32 {v(vT1)}, 5, {v(vLane)}")
    A(f"v_lshl_add_u32 {v(vWoff)}, {v(vT1)}, 6, {v(vT0)}")
    A("s_waitcnt lgkmcnt(0)")
    srd(A, sWq, sP + 2, 512 * 1536 * 2)
    def dma_w(st):
        slot = st & 3
        A(f"s_add_u32 {s(sT0)}, {s(sRot)}, {st}")
        A(f"s_and_b32 {s(sT0)}, {s(sT0)}, 7")
        A(f"s_mul_i32 {s(sw)}, {s(sT0)}, {64*3072}")
        A(f"s_add_u32 {s(sw)}, {s(sw)}, {s(sWb)}")
        for b in range(3):
            for n in range(2):
                A(f"s_add_u32 m0, {s(sLw)}, {slot*24576 + b*8192 + n*4096}")
                A(f"s_add_u32 {s(sT1)}, {s(sw)}, {b*1024 + n*32*3072}")
                A(f"buffer_load_dwordx4 {v(vWoff)}, {s(sWq,4)}, {s(sT1)} offen lds")
    vXoffL = V.alloc()
    A(f"s_lshl_b32 {s(sXb)}, {s(sRt)}, 16")
    A(f"s_lshl_b32 {s(sT0)}, {s(sW)}, 13")
    A(f"s_add_u32 {s(sXb)}, {s(sXb)}, {s(sT0)}")
    A(f"s_lshl_b32 {s(sT0)}, {s(sTt)}, 2")
    A(f"v_lshrrev_b32 {v(vT0)}, 4, {v(vLane)}")
    A(f"v_or_b32 {v(vT0)}, {s(sT0)}, {v(vT0)}")
    A(f"v_and_b32 {v(vT1)}, 7, {v(vLane)}")
    A(f"v_xor_b32 {v(vT0)}, {v(vT0)}, {v(vT1)}")
    A(f"v_lshlrev_b32 {v(vT0)}, 4, {v(vT0)}")
    A(f"v_lshrrev_b32 {v(vT1)}, 3, {v(vLane)}")
    A(f"v_lshlrev_b32 {v(vT1)}, 10, {v(vT1)}")
    A(f"v_add_u32 {v(vXoffL)}, {v(vT0)}, {v(vT1)}")
    srd(A, sX, sP, 2048 * 512 * 2)
    def dma_xl(st):
        slot = st & 3
        A(f"s_add_u32 {s(sT0)}, {s(sRot)}, {st}")
        A(f"s_and_b32 {s(sT0)}, {s(sT0)}, 7")
        A(f"s_lshl_b32 {s(sx)}, {s(sT0)}, 7")
        A(f"s_add_u32 {s(sx)}, {s(sx)}, {s(sXb)}")
        for n in range(2):
            A(f"s_add_u32 m0, {s(sLx)}, {XR + slot*8192 + n*4096}")
            A(f"s_add_u32 {s(sT1)}, {s(sx)}, {n*32768}")
            A(f"buffer_load_dwordx4 {v(vXoffL)}, {s(sX,4)}, {s(sT1)} offen lds")
    def dma_stage(st): dma_xl(st); dma_w(st)
    dma_stage(0); dma_stage(1)
    A("s_waitcnt vmcnt(8)")
    A("s_barrier")
    dma_stage(2); dma_stage(3)
    for sp in range(1, 8):
        vm = {1: 16, 2: 16, 3: 16, 4: 16, 5: 16, 6: 8, 7: 0}[sp]
        A(f"s_waitcnt vmcnt({vm})")
        A("s_barrier")
        if sp + 3 < 8: dma_stage(sp + 3)
    A("s_endpgm")
    V.release(m0_)
    def x_addrs(vXA):
        A(f"v_lshrrev_b32 {v(vHf)}, 5, {v(vLane)}")
        A(f"v_and_b32 {v(vTok)}, 31, {v(vLane)}")
        A(f"v_lshrrev_b32 {v(vT2)}, 1, {v(vTok)}")
        A(f"v_and_b32 {v(vT2)}, 7, {v(vT2)}")
        A(f"s_lshl_b32 {s(sT1)}, {s(sTt)}, 12")
        for i in range(4):
            A(f"v_add_u32 {v(vT0)}, {2*i}, {v(vHf)}")
            A(f"v_xor_b32 {v(vT0)}, {v(vT0)}, {v(vT2)}")
            A(f"v_lshlrev_b32 {v(vT0)}, 4, {v(vT0)}")
            A(f"v_lshl_add_u32 {v(vT0)}, {v(vTok)}, 7, {v(vT0)}")
            A(f"v_add_u32 {v(vXA[i])}, {s(sT1)}, {v(vT0)}")
    def w_addr(vWA):
        A(f"v_and_b32 {v(vT0)}, 15, {v(vLane)}")
        A(f"v_lshrrev_b32 {v(vT1)}, 2, {v(vT0)}")
        A(f"v_lshlrev_b32 {v(vT1)}, 6, {v(vT1)}")
        A(f"v_lshl_add_u32 {v(vT1)}, {v(vHf)}, 10, {v(vT1)}")
        A(f"v_and_b32 {v(vT0)}, 3, {v(vT0)}")
        A(f"v_lshl_add_u32 {v(vT1)}, {v(vT0)}, 3, {v(vT1)}")
        A(f"v_bfe_u32 {v(vT0)}, {v(vLane)}, 4, 1")
        A(f"v_lshl_add_u32 {v(vT1)}, {v(vT0)}, 5, {v(vT1)}")
        A(f"v_add_u32 {v(vWA)}, {WR}, {v(vT1)}")
    A.label("K1_STATS")
    vXA = [V.alloc() for _ in range(2)]
    Xf = [V.alloc(4) for _ in range(2)]
    un = V.alloc(8); sq = V.alloc(8); sm = V.alloc(8); vMask = V.alloc()
    A(f"v_lshrrev_b32 {v(vHf)}, 5, {v(vLane)}")
    A(f"v_and_b32 {v(vTok)}, 31, {v(vLane)}")
    A(f"v_lshrrev_b32 {v(vT2)}, 1, {v(vTok)}")
    A(f"v_and_b32 {v(vT2)}, 7, {v(vT2)}")
    A(f"s_lshl_b32 {s(sT1)}, {s(sTt)}, 12")
    for jx in range(2):
        A(f"s_lshl_b32 {s(sT0)}, {s(sCh)}, 1")
        A(f"s_add_u32 {s(sT0)}, {s(sT0)}, {4*jx}")
        A(f"v_add_u32 {v(vT0)}, {s(sT0)}, {v(vHf)}")
        A(f"v_xor_b32 {v(vT0)}, {v(vT0)}, {v(vT2)}")
        A(f"v_lshlrev_b32 {v(vT0)}, 4, {v(vT0)}")
        A(f"v_lshl_add_u32 {v(vT0)}, {v(vTok)}, 7, {v(vT0)}")
        A(f"v_add_u32 {v(vXA[jx])}, {s(sT1)}, {v(vT0)}")
    A(f"v_mov_b32 {v(vMask)}, 0xffff0000")
    for i in range(8):
        A(f"v_mov_b32 {v(sq+i)}, 0"); A(f"v_mov_b32 {v(sm+i)}, 0")
    XH = 0
    if HOOK: HOOK("start", K, locals())
    def sstage(st):
        if "nos" in _flags(): return
        slot = st & 3
        for jx in range(2):
            A(f"ds_read_b128 {v(Xf[jx],4)}, {v(vXA[jx])} offset:{XR + slot*8192}")
        for jx in range(2):
            A(f"s_waitcnt lgkmcnt({1-jx})")
            for i in range(4):
                A(f"v_lshlrev_b32 {v(un+2*i)}, 16, {v(Xf[jx]+i)}")
                A(f"v_and_b32 {v(un+2*i+1)}, {v(vMask)}, {v(Xf[jx]+i)}")
            for i in range(8):
                A(f"v_fmac_f32 {v(sq+i)}, {v(un+i)}, {v(un+i)}")
                A(f"v_add_f32 {v(sm+i)}, {v(un+i)}, {v(sm+i)}")
    for st in range(8):
        A("s_barrier")
        sstage(st)
    for L in (sq, sm):
        for st in (4, 2, 1):
            for i in range(st): A(f"v_add_f32 {v(L+i)}, {v(L+i)}, {v(L+i+st)}")
    swap_add(A, sm, vT1)
    swap_add(A, sq, vT2)
    A(f"s_lshl_b32 {s(sT0)}, {s(sW)}, 8")
    A(f"s_add_u32 {s(sT0)}, {s(sT0)}, {ST}")
    A(f"v_lshl_add_u32 {v(vT0)}, {v(vTok)}, 2, {s(sT0)}")
    A(f"ds_write_b32 {v(vT0)}, {v(sm)}")
    A(f"ds_write_b32 {v(vT0)}, {v(sq)} offset:128")
    A("s_waitcnt lgkmcnt(0)")
    A("s_barrier")
    if HOOK: HOOK("end", K, locals())
    A("s_endpgm")
    V.release(m0_)
    A.label("K1_COMPUTE")
    vXA = [V.alloc() for _ in range(4)]; vWA = [V.alloc() for _ in range(4)]
    acc = [V.alloc(16) for _ in range(3)]
    mk = V.mark()
    csa = [V.alloc(4) for _ in range(3)]; msk = V.alloc(4)
    Xf = [V.alloc(4) for _ in range(2)]
    Wf = [[V.alloc(4) for _ in range(3)] for _ in range(2)]
    A(f"v_lshrrev_b32 {v(vHf)}, 5, {v(vLane)}")
    A(f"v_and_b32 {v(vTok)}, 31, {v(vLane)}")
    A(f"v_lshrrev_b32 {v(vT2)}, 1, {v(vTok)}")
    A(f"v_and_b32 {v(vT2)}, 7, {v(vT2)}")
    A(f"s_lshl_b32 {s(sT1)}, {s(sTt)}, 12")
    for pos in range(4):
        A(f"s_xor_b32 {s(sT0)}, {s(sTt)}, {pos}")
        A(f"s_lshl_b32 {s(sT0)}, {s(sT0)}, 1")
        A(f"v_add_u32 {v(vT0)}, {s(sT0)}, {v(vHf)}")
        A(f"v_xor_b32 {v(vT0)}, {v(vT0)}, {v(vT2)}")
        A(f"v_lshlrev_b32 {v(vT0)}, 4, {v(vT0)}")
        A(f"v_lshl_add_u32 {v(vT0)}, {v(vTok)}, 7, {v(vT0)}")
        A(f"v_add_u32 {v(vXA[pos])}, {s(sT1)}, {v(vT0)}")
    w_addr(vWA[0])
    A(f"s_lshl_b32 {s(sw)}, {s(sCh)}, 9")
    A(f"s_lshl_b32 {s(sT0)}, {s(sTt)}, 11")
    A(f"s_sub_u32 {s(sT1)}, {s(sw)}, {s(sT0)}")
    A(f"s_add_u32 {s(sw)}, {s(sw)}, {s(sT0)}")
    A(f"v_add_u32 {v(vWA[1])}, {s(sT1)}, {v(vWA[0])}")
    A(f"v_add_u32 {v(vWA[0])}, {s(sw)}, {v(vWA[0])}")
    A(f"v_add_u32 {v(vWA[2])}, {2*24576}, {v(vWA[0])}")
    A(f"v_add_u32 {v(vWA[3])}, {2*24576}, {v(vWA[1])}")
    A(f"v_and_b32 {v(vT0)}, 15, {v(vLane)}")
    A(f"v_bfe_u32 {v(vT1)}, {v(vLane)}, 4, 1")
    A(f"v_cmp_eq_u32 vcc, {v(vT0)}, {v(vT1)}")
    A(f"v_mov_b32 {v(vT0)}, 0x3f803f80")
    for i in range(4): A(f"v_cndmask_b32 {v(msk+i)}, 0, {v(vT0)}, vcc")
    def reads(n):
        if "noc" in _flags() or "noread" in _flags(): return
        slot = (n >> 2) & 3; pos = n & 3; bf = n & 1
        A(f"ds_read_b128 {v(Xf[bf],4)}, {v(vXA[pos])} offset:{XR + slot*8192}")
        wa = vWA[(pos & 1) + (2 if slot >= 2 else 0)]
        for b in range(3):
            o = (slot & 1) * 24576 + b * 8192 + pos * 2048
            A(f"ds_read_b64_tr_b16 {v(Wf[bf][b],2)}, {v(wa)} offset:{o}")
            A(f"ds_read_b64_tr_b16 {v(Wf[bf][b]+2,2)}, {v(wa)} offset:{o+256}")
    def compute(n):
        if "noc" in _flags(): return
        bf = n & 1
        c = lambda b: "0" if n == 0 else v(acc[b], 16)
        cs_ = (n & 1) == 0
        def mc(b):
            if cs_: A(f"v_mfma_f32_16x16x32_bf16 {v(csa[b],4)}, {v(Wf[bf][b],4)}, {v(msk,4)}, {'0' if n == 0 else v(csa[b],4)}")
        A(f"v_mfma_f32_32x32x16_bf16 {v(acc[0],16)}, {v(Wf[bf][0],4)}, {v(Xf[bf],4)}, {c(0)}")
        mc(0)
        A(f"v_mfma_f32_32x32x16_bf16 {v(acc[1],16)}, {v(Wf[bf][1],4)}, {v(Xf[bf],4)}, {c(1)}")
        mc(1)
        A(f"v_mfma_f32_32x32x16_bf16 {v(acc[2],16)}, {v(Xf[bf],4)}, {v(Wf[bf][2],4)}, {c(2)}")
        mc(2)
    A("s_waitcnt lgkmcnt(0)")
    srd(A, sO, sWs, WS_SIZE)
    sTile, sHp, sQo, sKo, sVo = [S.alloc() for _ in range(5)]
    sSave = S.alloc(2)
    A(f"s_lshl_b32 {s(sTile)}, {s(sRt)}, 1")
    A(f"s_add_u32 {s(sTile)}, {s(sTile)}, {s(sTt)}")
    A(f"s_lshl_b32 {s(sHp)}, {s(sHq)}, 1")
    A(f"s_add_u32 {s(sHp)}, {s(sHp)}, {s(sCh)}")
    A(f"s_lshl_b32 {s(sT0)}, {s(sHp)}, 17")
    A(f"s_lshl_b32 {s(sT1)}, {s(sTile)}, 10")
    A(f"s_add_u32 {s(sQo)}, {s(sT0)}, {s(sT1)}")
    A(f"s_add_u32 {s(sKo)}, {s(sQo)}, {WS_KF}")
    A(f"s_add_u32 {s(sVo)}, {s(sQo)}, {WS_VF}")
    K.stamp()
    A("s_barrier")
    K.stamp()
    reads(0)
    for n in range(32):
        if n + 1 < 32:
            if (n + 1) % 4 == 0:
                sp = (n + 1) // 4
                A(f"s_waitcnt lgkmcnt(0)")
                A("s_barrier")
                if sp in (2, 4, 6): K.stamp()
            reads(n + 1)
            A("s_waitcnt lgkmcnt(7)")
        else:
            A("s_waitcnt lgkmcnt(0)")
        compute(n)
    K.stamp()
    A(f"v_and_b32 {v(vT0)}, 15, {v(vLane)}")
    A(f"v_lshrrev_b32 {v(vT1)}, 4, {v(vLane)}")
    A(f"v_lshlrev_b32 {v(vT1)}, 4, {v(vT1)}")
    A(f"v_lshl_add_u32 {v(vT1)}, {v(vT0)}, 6, {v(vT1)}")
    A(f"s_mul_i32 {s(sx)}, {s(sTt)}, 768")
    A(f"s_lshl_b32 {s(sw)}, {s(sCh)}, 7")
    A(f"s_add_u32 {s(sx)}, {s(sx)}, {s(sw)}")
    A(f"s_add_u32 {s(sx)}, {s(sx)}, {CS}")
    A(f"v_add_u32 {v(vT1)}, {s(sx)}, {v(vT1)}")
    A(f"v_cmp_gt_u32 vcc, 2, {v(vT0)}")
    A(f"s_and_saveexec_b64 {s(sSave,2)}, vcc")
    for b in range(3): A(f"ds_write_b128 {v(vT1)}, {v(csa[b],4)} offset:{b*256}")
    A(f"s_mov_b64 exec, {s(sSave,2)}")
    A("s_waitcnt lgkmcnt(0)")
    A("s_barrier")
    K.stamp()
    V.release(mk)
    csr = V.alloc(16); csr2 = V.alloc(16); st1 = V.alloc(16); st2 = V.alloc(16)
    vCv, vMean, vRstd, vL16, vRq = [V.alloc() for _ in range(5)]
    A(f"s_lshl_b32 {s(sx)}, {s(sTt)}, 8")
    A(f"s_add_u32 {s(sx)}, {s(sx)}, {ST}")
    A(f"v_lshl_add_u32 {v(vT1)}, {v(vTok)}, 2, {s(sx)}")
    p4 = V.alloc(4)
    A(f"ds_read_b32 {v(p4)}, {v(vT1)}")
    A(f"ds_read_b32 {v(p4+1)}, {v(vT1)} offset:512")
    A(f"ds_read_b32 {v(p4+2)}, {v(vT1)} offset:128")
    A(f"ds_read_b32 {v(p4+3)}, {v(vT1)} offset:640")
    A(f"s_lshl_b32 {s(sw)}, {s(sCh)}, 7")
    A(f"s_add_u32 {s(sw)}, {s(sw)}, {CS}")
    A(f"v_lshl_add_u32 {v(vT0)}, {v(vHf)}, 4, {s(sw)}")
    for a_ in range(4):
        A(f"ds_read_b128 {v(csr+4*a_,4)}, {v(vT0)} offset:{a_*32}")
    for a_ in range(4):
        A(f"ds_read_b128 {v(st1+4*a_,4)}, {v(vT0)} offset:{768+a_*32}")
    A("s_waitcnt lgkmcnt(4)")
    for a_ in range(4):
        A(f"ds_read_b128 {v(csr2+4*a_,4)}, {v(vT0)} offset:{256+a_*32}")
    for a_ in range(4):
        A(f"ds_read_b128 {v(st2+4*a_,4)}, {v(vT0)} offset:{768+256+a_*32}")
    A(f"v_lshl_add_u32 {v(vT1)}, {v(vTok)}, 2, {s(sw)}")
    vCv2 = V.alloc()
    A(f"ds_read_b32 {v(vCv)}, {v(vT1)} offset:512")
    A(f"ds_read_b32 {v(vCv2)}, {v(vT1)} offset:{768+512}")
    A("s_waitcnt lgkmcnt(10)")
    for r in range(16): A(f"v_add_f32 {v(csr+r)}, {v(csr+r)}, {v(st1+r)}")
    A("s_waitcnt lgkmcnt(0)")
    for r in range(16): A(f"v_add_f32 {v(csr2+r)}, {v(csr2+r)}, {v(st2+r)}")
    A(f"v_add_f32 {v(vCv)}, {v(vCv)}, {v(vCv2)}")
    A(f"v_lshlrev_b32 {v(vL16)}, 4, {v(vLane)}")
    pk = V.alloc(8); pk2 = V.alloc(8); pk3 = pk
    vMr = p4 + 1
    A(f"v_add_f32 {v(p4)}, {v(p4)}, {v(p4+1)}")
    A(f"v_add_f32 {v(p4+2)}, {v(p4+2)}, {v(p4+3)}")
    A(f"v_mul_f32 {v(vMean)}, {f2u(1/512.):#x}, {v(p4)}")
    A(f"v_mul_f32 {v(vT1)}, {v(vMean)}, {v(vMean)}")
    A(f"v_mov_b32 {v(vT2)}, {f2u(1/512.):#x}")
    A(f"v_fma_f32 {v(vT1)}, {v(p4+2)}, {v(vT2)}, -{v(vT1)}")
    A(f"v_max_f32 {v(vT1)}, 0, {v(vT1)}")
    A(f"v_add_f32 {v(vT1)}, {f2u(1e-5):#x}, {v(vT1)}")
    A(f"v_rsq_f32 {v(vRstd)}, {v(vT1)}")
    A(f"v_mul_f32 {v(vMr)}, {v(vMean)}, {v(vRstd)}")
    A(f"s_lshl_b32 {s(sx)}, {s(sW)}, 8")
    A(f"s_add_u32 {s(sx)}, {s(sx)}, {ST + 1024}")
    A(f"v_lshl_add_u32 {v(vT1)}, {v(vTok)}, 2, {s(sx)}")
    A(f"ds_write_b32 {v(vT1)}, {v(vMr)}")
    A(f"ds_write_b32 {v(vT1)}, {v(vRstd)} offset:128")
    A(f"v_lshl_add_u32 {v(vT0)}, {v(vHf)}, 4, {s(sx)}")
    A(f"v_mul_f32 {v(vRq)}, {f2u(LOG2E*0.25):#x}, {v(vRstd)}")
    A("s_waitcnt lgkmcnt(0)")
    for a_ in range(4):
        A(f"ds_read_b128 {v(st1+4*a_,4)}, {v(vT0)} offset:{a_*32}")
    for a_ in range(4):
        A(f"ds_read_b128 {v(st2+4*a_,4)}, {v(vT0)} offset:{128+a_*32}")
    for r in range(16):
        A(f"v_fma_f32 {v(acc[0]+r)}, -{v(vMean)}, {v(csr+r)}, {v(acc[0]+r)}")
    for r in range(16):
        A(f"v_mul_f32 {v(acc[0]+r)}, {v(vRq)}, {v(acc[0]+r)}")
    for i in range(8):
        A(f"v_cvt_pk_bf16_f32 {v(pk+i)}, {v(acc[0]+2*i)}, {v(acc[0]+2*i+1)}")
    A(f"buffer_store_dwordx4 {v(pk,4)}, {v(vL16)}, {s(sO,4)}, {s(sQo)} offen" + K1SC)
    A(f"s_add_u32 {s(sT0)}, {s(sQo)}, 65536")
    A(f"buffer_store_dwordx4 {v(pk+4,4)}, {v(vL16)}, {s(sO,4)}, {s(sT0)} offen" + K1SC)
    for r in range(16):
        A(f"v_fma_f32 {v(acc[1]+r)}, -{v(vMean)}, {v(csr2+r)}, {v(acc[1]+r)}")
    for r in range(16):
        A(f"v_mul_f32 {v(acc[1]+r)}, {v(vRstd)}, {v(acc[1]+r)}")
    for i in range(8):
        A(f"v_cvt_pk_bf16_f32 {v(pk2+i)}, {v(acc[1]+2*i)}, {v(acc[1]+2*i+1)}")
    A(f"buffer_store_dwordx4 {v(pk2,4)}, {v(vL16)}, {s(sO,4)}, {s(sKo)} offen" + K1SC)
    A(f"s_add_u32 {s(sT0)}, {s(sKo)}, 65536")
    A(f"buffer_store_dwordx4 {v(pk2+4,4)}, {v(vL16)}, {s(sO,4)}, {s(sT0)} offen" + K1SC)
    A("s_waitcnt lgkmcnt(0)")
    for r in range(16):
        A(f"v_mul_f32 {v(st1+r)}, {v(vCv)}, {v(st1+r)}")
    for r in range(16):
        A(f"v_fma_f32 {v(acc[2]+r)}, {v(acc[2]+r)}, {v(st2+r)}, -{v(st1+r)}")
    for i in range(8):
        A(f"v_cvt_pk_bf16_f32 {v(pk3+i)}, {v(acc[2]+2*i)}, {v(acc[2]+2*i+1)}")
    A(f"v_lshrrev_b32 {v(vT0)}, 4, {v(vTok)}")
    A(f"v_lshlrev_b32 {v(vT0)}, 16, {v(vT0)}")
    A(f"v_lshl_add_u32 {v(vT0)}, {v(vHf)}, 8, {v(vT0)}")
    A(f"v_and_b32 {v(vT1)}, 15, {v(vTok)}")
    A(f"v_lshl_add_u32 {v(vT0)}, {v(vT1)}, 4, {v(vT0)}")
    A(f"buffer_store_dwordx4 {v(pk3,4)}, {v(vT0)}, {s(sO,4)}, {s(sVo)} offen" + K1SC)
    A(f"buffer_store_dwordx4 {v(pk3+4,4)}, {v(vT0)}, {s(sO,4)}, {s(sVo)} offen offset:512" + K1SC)
    K.stamp()
    vN = [V.alloc(), V.alloc()]
    for e in range(2):
        for i in range(4):
            A(f"v_lshlrev_b32 {v(csr+2*i)}, 16, {v(pk2+4*e+i)}")
            A(f"v_and_b32 {v(csr+2*i+1)}, 0xffff0000, {v(pk2+4*e+i)}")
        A(f"v_mul_f32 {v(vN[e])}, {v(csr)}, {v(csr)}")
        for i in range(1, 8): A(f"v_fmac_f32 {v(vN[e])}, {v(csr+i)}, {v(csr+i)}")
    swap_add(A, vN[0], vT2)
    swap_add(A, vN[1], vT1)
    for sh in (8, 4, 2, 1):
        for e in range(2):
            A(f"v_max_f32_dpp {v(vN[e])}, {v(vN[e])}, {v(vN[e])} row_ror:{sh} row_mask:0xf bank_mask:0xf")
    sN = [S.alloc() for _ in range(4)]
    for e in range(2):
        A(f"v_readlane_b32 {s(sN[2*e])}, {v(vN[e])}, 0")
        A(f"v_readlane_b32 {s(sN[2*e+1])}, {v(vN[e])}, 16")
    for e in range(2):
        A(f"s_max_u32 {s(sN[2*e])}, {s(sN[2*e])}, {s(sN[2*e+1])}")
    A(f"s_lshl_b32 {s(sT0)}, {s(sHp)}, 9")
    A(f"s_lshl_b32 {s(sT1)}, {s(sTile)}, 2")
    A(f"s_add_u32 {s(sT0)}, {s(sT0)}, {s(sT1)}")
    A(f"s_add_u32 {s(sT0)}, {s(sT0)}, {WS_KMAX}")
    A(f"v_mov_b32 {v(vN[0])}, {s(sN[0])}")
    A(f"v_mov_b32 {v(vN[1])}, {s(sN[2])}")
    A(f"v_mov_b32 {v(vT1)}, 0")
    A("s_mov_b64 exec, 1")
    A(f"buffer_store_dword {v(vN[0])}, {v(vT1)}, {s(sO,4)}, {s(sT0)} offen")
    A(f"buffer_store_dword {v(vN[1])}, {v(vT1)}, {s(sO,4)}, {s(sT0)} offen offset:256")
    K.stamp_out(sO, 0, vT0, vT1)
    K.rt_end(sO, 0, vT0, vT1)
    A.label(END)
    A("s_endpgm")
    print("k1 vgprs", V.hi, "sgprs", S.hi, "lds", K.lds)
    return K

def wave_max64(A, x, sdst, stmp):
    for sh in (8, 4, 2, 1):
        A(f"v_max_f32_dpp {v(x)}, {v(x)}, {v(x)} row_ror:{sh} row_mask:0xf bank_mask:0xf")
    A(f"v_readlane_b32 {s(sdst)}, {v(x)}, 0")
    for ln in (16, 32, 48):
        A(f"v_readlane_b32 {s(stmp)}, {v(x)}, {ln}")
        A(f"s_max_u32 {s(sdst)}, {s(sdst)}, {s(stmp)}")

def k2(nqb=2):
    ks = nqb
    KR = 0; VR = 65536; ON = 131072; EX = ON + 4608
    K = Kern("k2_attn_kernel", (256, 1, 1), (512, 1, 1), EX)
    A, V, S = K.A, K.V, K.S
    END = "K2_END"
    sWs = S.alloc(2)
    A(f"s_load_dwordx2 {s(sWs,2)}, s[0:1], 80")
    A(f"s_cmp_ge_u32 s2, 256")
    A(f"s_cbranch_scc1 {END}")
    K.rt_begin()
    K.stamp()
    sO = S.alloc(4)
    sW, sXcd, sJ, sHead, sQb, sT0, sT1, sWq, sKh, sHb, sIt, sKm = [S.alloc() for _ in range(12)]
    vLane, vT0, vT1, vT2, vHf, vTok, vL16, vK, vV, vVinc = [V.alloc() for _ in range(10)]
    A(f"v_lshrrev_b32 {v(vT0)}, 6, v0")
    A(f"v_and_b32 {v(vLane)}, 63, v0")
    A(f"v_readfirstlane_b32 {s(sW)}, {v(vT0)}")
    A(f"s_and_b32 {s(sXcd)}, s2, 7")
    A(f"s_lshr_b32 {s(sJ)}, s2, 3")
    A(f"s_and_b32 {s(sT0)}, {s(sJ)}, 3")
    A(f"s_lshl_b32 {s(sHead)}, {s(sXcd)}, 2")
    A(f"s_add_u32 {s(sHead)}, {s(sHead)}, {s(sT0)}")
    A(f"s_lshr_b32 {s(sQb)}, {s(sJ)}, 2")
    if ks == 2:
        A(f"s_and_b32 {s(sWq)}, {s(sW)}, 3")
        A(f"s_lshr_b32 {s(sKh)}, {s(sW)}, 2")
    else:
        A(f"s_mov_b32 {s(sWq)}, {s(sW)}")
        A(f"s_mov_b32 {s(sKh)}, 0")
    A(f"s_lshl_b32 {s(sHb)}, {s(sHead)}, 16")
    A(f"v_lshlrev_b32 {v(vL16)}, 4, {v(vLane)}")
    A("s_waitcnt lgkmcnt(0)")
    srd(A, sO, sWs, WS_SIZE)
    Q = [V.alloc(4) for _ in range(nqb)]
    vKm = V.alloc()
    A(f"s_lshl_b32 {s(sT0)}, {s(sQb)}, 3")
    A(f"s_mul_i32 {s(sT1)}, {s(sWq)}, {nqb}")
    A(f"s_add_u32 {s(sT0)}, {s(sT0)}, {s(sT1)}")
    sQt = S.alloc()
    A(f"s_mov_b32 {s(sQt)}, {s(sT0)}")
    A(f"s_lshl_b32 {s(sT0)}, {s(sT0)}, 10")
    A(f"s_add_u32 {s(sT0)}, {s(sT0)}, {s(sHb)}")
    for b in range(nqb):
        A(f"buffer_load_dwordx4 {v(Q[b],4)}, {v(vL16)}, {s(sO,4)}, {s(sT0)} offen offset:{b*1024}")
    A(f"v_lshlrev_b32 {v(vT0)}, 2, {v(vLane)}")
    A(f"s_lshl_b32 {s(sT0)}, {s(sHead)}, 8")
    A(f"s_add_u32 {s(sT0)}, {s(sT0)}, {WS_KMAX}")
    A(f"buffer_load_dword {v(vKm)}, {v(vT0)}, {s(sO,4)}, {s(sT0)} offen")
    sL, sG = S.alloc(), S.alloc()
    for g in range(4):
        if ks == 2:
            A(f"s_lshl_b32 {s(sL)}, {s(sKh)}, 5")
            A(f"s_lshl_b32 {s(sT0)}, {s(sWq)}, 1")
            A(f"s_add_u32 {s(sL)}, {s(sL)}, {s(sT0)}")
            if g: A(f"s_add_u32 {s(sL)}, {s(sL)}, {8*g}")
        else:
            A(f"s_lshl_b32 {s(sL)}, {s(sW)}, 1")
            if g: A(f"s_add_u32 {s(sL)}, {s(sL)}, {16*g}")
        A(f"s_lshl_b32 {s(sT0)}, {s(sQb)}, 3")
        A(f"s_add_u32 {s(sG)}, {s(sL)}, {s(sT0)}")
        A(f"s_and_b32 {s(sG)}, {s(sG)}, 63")
        A(f"s_lshl_b32 {s(sG)}, {s(sG)}, 10")
        A(f"s_add_u32 {s(sG)}, {s(sG)}, {s(sHb)}")
        A(f"s_lshl_b32 {s(sL)}, {s(sL)}, 10")
        A(f"s_add_u32 m0, {s(sL)}, {KR}")
        A(f"s_add_u32 {s(sT0)}, {s(sG)}, {WS_KF}")
        A(f"buffer_load_dwordx4 {v(vL16)}, {s(sO,4)}, {s(sT0)} offen lds")
        A(f"buffer_load_dwordx4 {v(vL16)}, {s(sO,4)}, {s(sT0)} offen offset:1024 lds")
        A(f"s_add_u32 m0, {s(sL)}, {VR}")
        A(f"s_add_u32 {s(sT0)}, {s(sG)}, {WS_VF}")
        A(f"buffer_load_dwordx4 {v(vL16)}, {s(sO,4)}, {s(sT0)} offen lds")
        A(f"buffer_load_dwordx4 {v(vL16)}, {s(sO,4)}, {s(sT0)} offen offset:1024 lds")
    K.stamp()
    A(f"v_mov_b32 {v(vT1)}, 0x3f803f80")
    A(f"v_lshlrev_b32 {v(vT0)}, 2, v0")
    A(f"v_add_u32 {v(vT0)}, {ON}, {v(vT0)}")
    A(f"ds_write_b32 {v(vT0)}, {v(vT1)}")
    A(f"ds_write_b32 {v(vT0)}, {v(vT1)} offset:2048")
    A(f"v_cmp_gt_u32 vcc, 128, v0")
    sSave = S.alloc(2)
    A(f"s_and_saveexec_b64 {s(sSave,2)}, vcc")
    A(f"ds_write_b32 {v(vT0)}, {v(vT1)} offset:4096")
    A(f"s_mov_b64 exec, {s(sSave,2)}")
    A(f"v_lshrrev_b32 {v(vHf)}, 5, {v(vLane)}")
    A(f"v_and_b32 {v(vTok)}, 31, {v(vLane)}")
    A(f"s_lshl_b32 {s(sT0)}, {s(sKh)}, 15")
    A(f"v_add_u32 {v(vK)}, {s(sT0)}, {v(vL16)}")
    A(f"v_lshlrev_b32 {v(vT0)}, 8, {v(vHf)}")
    A(f"v_lshl_add_u32 {v(vT0)}, {v(vTok)}, 4, {v(vT0)}")
    A(f"s_add_u32 {s(sT0)}, {s(sT0)}, {VR}")
    A(f"v_add_u32 {v(vT0)}, {s(sT0)}, {v(vT0)}")
    A(f"v_subrev_u32 {v(vT1)}, 20, {v(vTok)}")
    A(f"v_cmp_gt_u32 vcc, 8, {v(vT1)}")
    A(f"v_mov_b32 {v(vT1)}, {ON}")
    A(f"v_mov_b32 {v(vT2)}, {ON+64}")
    A(f"v_cndmask_b32 {v(vT1)}, {v(vT1)}, {v(vT2)}, vcc")
    A(f"v_cmp_gt_u32 vcc, 16, {v(vTok)}")
    A(f"v_cndmask_b32 {v(vV)}, {v(vT1)}, {v(vT0)}, vcc")
    A(f"v_mov_b32 {v(vT1)}, 4096")
    A(f"v_cndmask_b32 {v(vVinc)}, 0, {v(vT1)}, vcc")
    Kf = [V.alloc(4) for _ in range(2)]; Vf0 = [V.alloc(4) for _ in range(2)]; Vf1 = [V.alloc(4) for _ in range(2)]
    QB = [dict(S=[V.alloc(16), V.alloc(16)], P=V.alloc(8), O=V.alloc(16), C=V.alloc(16)) for _ in range(nqb)]
    ngrp_after = 12
    A(f"s_waitcnt vmcnt(16)")
    wave_max64(A, vKm, sKm, sT0)
    bad = S.alloc(2)
    for b in range(nqb):
        un = QB[b]["S"][0]
        for i in range(4):
            A(f"v_lshlrev_b32 {v(un+2*i)}, 16, {v(Q[b]+i)}")
            A(f"v_and_b32 {v(un+2*i+1)}, 0xffff0000, {v(Q[b]+i)}")
        A(f"v_mul_f32 {v(vT0)}, {v(un)}, {v(un)}")
        for i in range(1, 8): A(f"v_fmac_f32 {v(vT0)}, {v(un+i)}, {v(un+i)}")
        swap_add(A, vT0, vT1)
        A(f"v_mul_f32 {v(vT0)}, {s(sKm)}, {v(vT0)}")
        A(f"v_sqrt_f32 {v(vT0)}, {v(vT0)}")
        A(f"v_mov_b32 {v(vT1)}, {f2u(0.01):#x}")
        A(f"v_fmac_f32 {v(vT1)}, {f2u(1.01):#x}, {v(vT0)}")
        A(f"v_mov_b32 {v(vT2)}, {f2u(40.0):#x}")
        A(f"v_cmp_nge_f32 vcc, {v(vT2)}, {v(vT1)}")
        if b == 0: A(f"s_mov_b64 {s(bad,2)}, vcc")
        else: A(f"s_or_b64 {s(bad,2)}, {s(bad,2)}, vcc")
        for r in range(16): A(f"v_sub_f32 {v(QB[b]['C']+r)}, 0, {v(vT1)}")
        for r in range(16): A(f"v_mov_b32 {v(QB[b]['O']+r)}, 0")
        for r in range(4, 8): A(f"v_mov_b32 {v(QB[b]['P']+r)}, 0")
    for r in range(4): A(f"v_mov_b32 {v(Vf1[1]+r)}, 0")
    A(f"s_waitcnt vmcnt({ngrp_after}) lgkmcnt(0)")
    A("s_barrier")
    K.stamp()
    A(f"s_cmp_lg_u64 {s(bad,2)}, 0")
    A(f"s_cbranch_scc1 K2_SLOW")
    NT = 64 // ks
    mf = "v_mfma_f32_32x32x16_bf16"
    A(f"ds_read_b128 {v(Kf[0],4)}, {v(vK)}")
    A(f"ds_read_b128 {v(Kf[1],4)}, {v(vK)} offset:1024")
    A(f"ds_read_b128 {v(Vf0[0],4)}, {v(vV)}")
    A("s_waitcnt lgkmcnt(2)")
    for b in range(nqb):
        A(f"{mf} {v(QB[b]['S'][0],16)}, {v(Kf[0],4)}, {v(Q[b],4)}, {v(QB[b]['C'],16)}")
    A(f"s_mov_b32 {s(sIt)}, 0")
    A.label("K2_LOOP")
    A(f"s_cmp_lg_u32 {s(sIt)}, 1")
    A(f"s_cbranch_scc1 K2_NOSYNC")
    A("s_waitcnt vmcnt(0)")
    A("s_barrier")
    A.label("K2_NOSYNC")
    for t in range(4):
        cur, nxt = t & 1, (t + 1) & 1
        A("s_waitcnt lgkmcnt(0)")
        for b in range(nqb):
            q = QB[b]; Sx = q["S"][cur]; Sn = q["S"][nxt]; P = q["P"]; O = q["O"]
            ex = [f"v_exp_f32 {v(Sx+i)}, {v(Sx+i)}" for i in range(16)]
            cv = [f"v_cvt_pk_bf16_f32 {v(P+i)}, {v(Sx+2*i)}, {v(Sx+2*i+1)}" for i in range(8)]
            A(f"{mf} {v(Sn,16)}, {v(Kf[nxt],4)}, {v(Q[b],4)}, {v(q['C'],16)}")
            for x in ex[0:4]: A(x)
            A(cv[0])
            for x in ex[4:6]: A(x)
            A(cv[1])
            A(f"{mf} {v(O,16)}, {v(Vf1[nxt],4)}, {v(P+4,4)}, {v(O,16)}")
            if b == 0:
                A(f"ds_read_b128 {v(Kf[cur],4)}, {v(vK)} offset:{(t+2)*1024}")
                A(f"ds_read_b128 {v(Vf0[nxt],4)}, {v(vV)} offset:{(t+1)*1024}")
                A(f"ds_read_b128 {v(Vf1[cur],4)}, {v(vV)} offset:{t*1024+512}")
            for x in ex[6:8]: A(x)
            A(cv[2])
            for x in ex[8:10]: A(x)
            A(cv[3])
            for x in ex[10:12]: A(x)
            A(cv[4])
            A(f"{mf} {v(O,16)}, {v(Vf0[cur],4)}, {v(P,4)}, {v(O,16)}")
            for x in ex[12:14]: A(x)
            A(cv[5])
            for x in ex[14:16]: A(x)
            A(cv[6])
            A(cv[7])
    A(f"v_add_u32 {v(vK)}, 4096, {v(vK)}")
    A(f"v_add_u32 {v(vV)}, {v(vVinc)}, {v(vV)}")
    A(f"s_add_u32 {s(sIt)}, {s(sIt)}, 1")
    A(f"s_cmp_lt_u32 {s(sIt)}, {NT//4}")
    A(f"s_cbranch_scc1 K2_LOOP")
    A("s_waitcnt lgkmcnt(0)")
    for b in range(nqb):
        A(f"{mf} {v(QB[b]['O'],16)}, {v(Vf1[1],4)}, {v(QB[b]['P']+4,4)}, {v(QB[b]['O'],16)}")
    A("s_branch K2_FIN")
    A.label("K2_SLOW")
    A("s_waitcnt vmcnt(0)")
    A("s_barrier")
    for b in range(nqb):
        A(f"v_mov_b32 {v(QB[b]['C'])}, {f2u(-3.0e38):#x}")
    A(f"s_mov_b32 {s(sIt)}, 0")
    A.label("K2_SLOOP")
    A(f"ds_read_b128 {v(Kf[0],4)}, {v(vK)}")
    A(f"ds_read_b128 {v(Vf0[0],4)}, {v(vV)}")
    A(f"ds_read_b128 {v(Vf1[0],4)}, {v(vV)} offset:512")
    A("s_waitcnt lgkmcnt(0)")
    for b in range(nqb):
        q = QB[b]; Sx = q["S"][0]; P = q["P"]; O = q["O"]; m = q["C"]; mn = q["C"] + 1; al = q["C"] + 2
        A(f"{mf} {v(Sx,16)}, {v(Kf[0],4)}, {v(Q[b],4)}, 0")
        A(f"v_max_f32 {v(mn)}, {v(Sx)}, {v(Sx+1)}")
        for i in range(2, 16): A(f"v_max_f32 {v(mn)}, {v(mn)}, {v(Sx+i)}")
        swap_add(A, mn, vT1, "v_max_f32")
        A(f"v_max_f32 {v(mn)}, {v(mn)}, {v(m)}")
        A(f"v_sub_f32 {v(al)}, {v(m)}, {v(mn)}")
        A(f"v_exp_f32 {v(al)}, {v(al)}")
        A(f"v_mov_b32 {v(m)}, {v(mn)}")
        for i in range(16): A(f"v_sub_f32 {v(Sx+i)}, {v(Sx+i)}, {v(mn)}")
        for i in range(16): A(f"v_exp_f32 {v(Sx+i)}, {v(Sx+i)}")
        for i in range(16): A(f"v_mul_f32 {v(O+i)}, {v(al)}, {v(O+i)}")
        for i in range(8): A(f"v_cvt_pk_bf16_f32 {v(P+i)}, {v(Sx+2*i)}, {v(Sx+2*i+1)}")
        A(f"{mf} {v(O,16)}, {v(Vf0[0],4)}, {v(P,4)}, {v(O,16)}")
        A(f"{mf} {v(O,16)}, {v(Vf1[0],4)}, {v(P+4,4)}, {v(O,16)}")
    A(f"v_add_u32 {v(vK)}, 1024, {v(vK)}")
    A(f"v_lshrrev_b32 {v(vT0)}, 2, {v(vVinc)}")
    A(f"v_add_u32 {v(vV)}, {v(vT0)}, {v(vV)}")
    A(f"s_add_u32 {s(sIt)}, {s(sIt)}, 1")
    A(f"s_cmp_lt_u32 {s(sIt)}, {NT}")
    A(f"s_cbranch_scc1 K2_SLOOP")
    A(f"s_mov_b32 {s(sIt)}, -1")
    A.label("K2_FIN")
    K.stamp()
    if ks == 2:
        vM = [V.alloc(), V.alloc()]
        for b in range(2):
            A(f"v_sub_f32 {v(vM[b])}, 0, {v(QB[b]['C'])}")
        A(f"s_cmp_lg_u32 {s(sIt)}, -1")
        A(f"s_cbranch_scc1 K2_F1")
        for b in range(2):
            A(f"v_mov_b32 {v(vM[b])}, {v(QB[b]['C'])}")
        A.label("K2_F1")
        snd = V.alloc(10); kp = V.alloc(10)
        A(f"s_cmp_eq_u32 {s(sKh)}, 0")
        A(f"s_cbranch_scc1 K2_F2")
        for r in range(9):
            A(f"v_mov_b32 {v(snd+r)}, {v(QB[0]['O']+r)}"); A(f"v_mov_b32 {v(kp+r)}, {v(QB[1]['O']+r)}")
        A(f"v_mov_b32 {v(snd+9)}, {v(vM[0])}"); A(f"v_mov_b32 {v(kp+9)}, {v(vM[1])}")
        A("s_branch K2_F3")
        A.label("K2_F2")
        for r in range(9):
            A(f"v_mov_b32 {v(snd+r)}, {v(QB[1]['O']+r)}"); A(f"v_mov_b32 {v(kp+r)}, {v(QB[0]['O']+r)}")
        A(f"v_mov_b32 {v(snd+9)}, {v(vM[1])}"); A(f"v_mov_b32 {v(kp+9)}, {v(vM[0])}")
        A.label("K2_F3")
        A("s_barrier")
        A(f"s_mul_i32 {s(sT0)}, {s(sW)}, 2560")
        A(f"v_lshlrev_b32 {v(vT0)}, 2, {v(vLane)}")
        A(f"v_add_u32 {v(vT0)}, {s(sT0)}, {v(vT0)}")
        for r in range(10): A(f"ds_write_b32 {v(vT0)}, {v(snd+r)} offset:{r*256}")
        A("s_waitcnt lgkmcnt(0)")
        A("s_barrier")
        A(f"s_xor_b32 {s(sT0)}, {s(sW)}, 4")
        A(f"s_mul_i32 {s(sT0)}, {s(sT0)}, 2560")
        A(f"v_lshlrev_b32 {v(vT0)}, 2, {v(vLane)}")
        A(f"v_add_u32 {v(vT0)}, {s(sT0)}, {v(vT0)}")
        for r in range(10): A(f"ds_read_b32 {v(snd+r)}, {v(vT0)} offset:{r*256}")
        A("s_waitcnt lgkmcnt(0)")
        A(f"v_max_f32 {v(vT0)}, {v(kp+9)}, {v(snd+9)}")
        A(f"v_sub_f32 {v(vT1)}, {v(kp+9)}, {v(vT0)}")
        A(f"v_sub_f32 {v(vT2)}, {v(snd+9)}, {v(vT0)}")
        A(f"v_exp_f32 {v(vT1)}, {v(vT1)}")
        A(f"v_exp_f32 {v(vT2)}, {v(vT2)}")
        for r in range(9): A(f"v_mul_f32 {v(kp+r)}, {v(vT1)}, {v(kp+r)}")
        for r in range(9): A(f"v_fmac_f32 {v(kp+r)}, {v(vT2)}, {v(snd+r)}")
        outs = [(kp, None)]
        A(f"s_add_u32 {s(sQt)}, {s(sQt)}, {s(sKh)}")
    else:
        outs = [(QB[0]["O"], None)]
    for (O, _) in outs:
        A(f"v_rcp_f32 {v(vT0)}, {v(O+8)}")
        for r in range(8): A(f"v_mul_f32 {v(O+r)}, {v(vT0)}, {v(O+r)}")
        pk = V.alloc(4)
        for i in range(4): A(f"v_cvt_pk_bf16_f32 {v(pk+i)}, {v(O+2*i)}, {v(O+2*i+1)}")
        A(f"s_lshl_b32 {s(sT0)}, {s(sQt)}, 15")
        A(f"s_lshl_b32 {s(sT1)}, {s(sHead)}, 10")
        A(f"s_add_u32 {s(sT0)}, {s(sT0)}, {s(sT1)}")
        A(f"s_add_u32 {s(sT0)}, {s(sT0)}, {WS_OF}")
        A(f"buffer_store_dwordx4 {v(pk,4)}, {v(vL16)}, {s(sO,4)}, {s(sT0)} offen")
    K.stamp_out(sO, 1, vT0, vT1)
    K.rt_end(sO, 1, vT0, vT1)
    A.label(END)
    A("s_endpgm")
    print("k2 vgprs", V.hi, "sgprs", S.hi, "lds", K.lds)
    return K

def wave_ids(K, sW8, sW, vLane, vT0):
    A = K.A
    A(f"v_lshrrev_b32 {v(vT0)}, 6, v0")
    A(f"v_and_b32 {v(vLane)}, 63, v0")
    A(f"v_readfirstlane_b32 {s(sW8)}, {v(vT0)}")
    A(f"s_and_b32 {s(sW)}, {s(sW8)}, 3")

def w_voff(A, vdst, vLane, pitch, t0, t1):
    A(f"v_bfe_u32 {v(t0)}, {v(vLane)}, 2, 3")
    A(f"v_mul_u32_u24 {v(t0)}, {pitch}, {v(t0)}")
    A(f"v_and_b32 {v(t1)}, 3, {v(vLane)}")
    A(f"v_lshl_add_u32 {v(t0)}, {v(t1)}, 4, {v(t0)}")
    A(f"v_lshrrev_b32 {v(t1)}, 5, {v(vLane)}")
    A(f"v_lshl_add_u32 {v(vdst)}, {v(t1)}, 6, {v(t0)}")

def tr_pi_base(A, vdst, vLane, vHf, t0, t1):
    A(f"v_and_b32 {v(t0)}, 15, {v(vLane)}")
    A(f"v_lshrrev_b32 {v(t1)}, 2, {v(t0)}")
    A(f"v_lshl_add_u32 {v(t1)}, {v(vHf)}, 2, {v(t1)}")
    A(f"v_lshlrev_b32 {v(t1)}, 6, {v(t1)}")
    A(f"v_and_b32 {v(t0)}, 3, {v(t0)}")
    A(f"v_lshl_add_u32 {v(t1)}, {v(t0)}, 3, {v(t1)}")
    A(f"v_bfe_u32 {v(t0)}, {v(vLane)}, 4, 1")
    A(f"v_lshl_add_u32 {v(vdst)}, {v(t0)}, 5, {v(t1)}")

def reduce4(K, acc, RED, sW, vL16, vT0, sT0, out):
    A = K.A
    A(f"s_lshl_b32 {s(sT0)}, {s(sW)}, 12")
    A(f"s_add_u32 {s(sT0)}, {s(sT0)}, {RED}")
    A(f"v_add_u32 {v(vT0)}, {s(sT0)}, {v(vL16)}")
    for t in range(4):
        for q in range(4):
            A(f"ds_write_b128 {v(vT0)}, {v(acc[t]+4*q,4)} offset:{t*16384 + q*1024}")
    A("s_waitcnt lgkmcnt(0)")
    A("s_barrier")
    A(f"s_lshl_b32 {s(sT0)}, {s(sW)}, 14")
    A(f"s_add_u32 {s(sT0)}, {s(sT0)}, {RED}")
    A(f"v_add_u32 {v(vT0)}, {s(sT0)}, {v(vL16)}")
    for p in range(4):
        for q in range(4):
            A(f"ds_read_b128 {v(acc[p]+4*q,4)}, {v(vT0)} offset:{p*4096 + q*1024}")
    A("s_waitcnt lgkmcnt(8)")
    for r in range(16): A(f"v_add_f32 {v(out+r)}, {v(acc[0]+r)}, {v(acc[1]+r)}")
    A("s_waitcnt lgkmcnt(0)")
    for r in range(16): A(f"v_add_f32 {v(acc[2]+r)}, {v(acc[2]+r)}, {v(acc[3]+r)}")
    for r in range(16): A(f"v_add_f32 {v(out+r)}, {v(out+r)}, {v(acc[2]+r)}")

def k3():
    WO = 0; XT = 65536; RED = XT + 8192
    K = Kern("k3_oproj_kernel", (256, 1, 1), (512, 1, 1), RED + 65536)
    A, V, S = K.A, K.V, K.S
    END = "K3_END"
    sP = S.alloc(4); sWs = S.alloc(2)
    A(f"s_load_dwordx2 {s(sP,2)}, s[0:1], 0")
    A(f"s_load_dwordx2 {s(sP+2,2)}, s[0:1], 16")
    A(f"s_load_dwordx2 {s(sWs,2)}, s[0:1], 80")
    A(f"s_cmp_ge_u32 s2, 256")
    A(f"s_cbranch_scc1 {END}")
    K.rt_begin()
    K.stamp()
    sX = S.alloc(4); sWo = S.alloc(4); sO = S.alloc(4)
    sW8, sW, sXcd, sJ, sRt, sCt, sT0, sT1, sB = [S.alloc() for _ in range(9)]
    vLane, vT0, vT1, vT2, vHf, vTok, vL16 = [V.alloc() for _ in range(7)]
    wave_ids(K, sW8, sW, vLane, vT0)
    A(f"s_and_b32 {s(sXcd)}, s2, 7")
    A(f"s_lshr_b32 {s(sJ)}, s2, 3")
    A(f"s_and_b32 {s(sT0)}, {s(sJ)}, 3")
    A(f"s_lshl_b32 {s(sRt)}, {s(sXcd)}, 2")
    A(f"s_add_u32 {s(sRt)}, {s(sRt)}, {s(sT0)}")
    A(f"s_lshr_b32 {s(sCt)}, {s(sJ)}, 2")
    A(f"s_cmp_lt_u32 {s(sW8)}, 4")
    A(f"s_cbranch_scc1 K3_COMPUTE")
    mk0 = V.mark()
    vWoff, vXoff = V.alloc(), V.alloc()
    w_voff(A, vWoff, vLane, 1024, vT0, vT1)
    A(f"s_and_b32 {s(sT0)}, {s(sW)}, 1")
    A(f"s_lshl_b32 {s(sT0)}, {s(sT0)}, 2")
    A(f"v_lshrrev_b32 {v(vT0)}, 4, {v(vLane)}")
    A(f"v_or_b32 {v(vT0)}, {s(sT0)}, {v(vT0)}")
    A(f"v_and_b32 {v(vT1)}, 7, {v(vLane)}")
    A(f"v_xor_b32 {v(vT0)}, {v(vT0)}, {v(vT1)}")
    A(f"v_lshlrev_b32 {v(vT0)}, 4, {v(vT0)}")
    A(f"v_lshrrev_b32 {v(vT1)}, 3, {v(vLane)}")
    A(f"v_lshlrev_b32 {v(vT1)}, 10, {v(vT1)}")
    A(f"v_add_u32 {v(vXoff)}, {v(vT0)}, {v(vT1)}")
    A("s_waitcnt lgkmcnt(0)")
    srd(A, sX, sP, 2048 * 512 * 2)
    srd(A, sWo, sP + 2, 512 * 512 * 2)
    A(f"s_lshl_b32 {s(sB)}, {s(sW)}, 17")
    A(f"s_lshl_b32 {s(sT0)}, {s(sCt)}, 7")
    A(f"s_add_u32 {s(sB)}, {s(sB)}, {s(sT0)}")
    A(f"s_lshl_b32 {s(sT1)}, {s(sW)}, 14")
    for g in range(16):
        A(f"s_add_u32 m0, {s(sT1)}, {WO + g*1024}")
        A(f"s_add_u32 {s(sT0)}, {s(sB)}, {g*8192}")
        A(f"buffer_load_dwordx4 {v(vWoff)}, {s(sWo,4)}, {s(sT0)} offen lds")
        if g == 7:
            pass
    A(f"s_lshl_b32 {s(sB)}, {s(sRt)}, 16")
    A(f"s_lshl_b32 {s(sT0)}, {s(sCt)}, 7")
    A(f"s_add_u32 {s(sB)}, {s(sB)}, {s(sT0)}")
    A(f"s_lshl_b32 {s(sT0)}, {s(sW)}, 13")
    A(f"s_add_u32 {s(sB)}, {s(sB)}, {s(sT0)}")
    A(f"s_lshl_b32 {s(sT1)}, {s(sW)}, 10")
    for n in range(2):
        A(f"s_add_u32 m0, {s(sT1)}, {XT + n*4096}")
        A(f"s_add_u32 {s(sT0)}, {s(sB)}, {n*32768}")
        A(f"buffer_load_dwordx4 {v(vXoff)}, {s(sX,4)}, {s(sT0)} offen lds")
    A("s_waitcnt vmcnt(10)")
    A("s_barrier")
    A("s_waitcnt vmcnt(0)")
    A("s_barrier")
    A("s_endpgm")
    V.release(mk0)
    A.label("K3_COMPUTE")
    Af = [[V.alloc(4) for _ in range(8)] for _ in range(2)]
    acc = [V.alloc(16) for _ in range(4)]
    Bf = [[V.alloc(4) for _ in range(2)] for _ in range(2)]
    vB = V.alloc()
    A(f"v_lshlrev_b32 {v(vL16)}, 4, {v(vLane)}")
    A(f"v_lshrrev_b32 {v(vHf)}, 5, {v(vLane)}")
    A(f"v_and_b32 {v(vTok)}, 31, {v(vLane)}")
    A("s_waitcnt lgkmcnt(0)")
    srd(A, sO, sWs, WS_SIZE)
    A(f"s_lshl_b32 {s(sB)}, {s(sRt)}, 16")
    A(f"s_lshl_b32 {s(sT0)}, {s(sW)}, 13")
    A(f"s_add_u32 {s(sB)}, {s(sB)}, {s(sT0)}")
    A(f"s_add_u32 {s(sB)}, {s(sB)}, {WS_OF}")
    for h in range(2):
        for r in range(2):
            A(f"s_add_u32 {s(sT0)}, {s(sB)}, {r*32768 + h*4096}")
            for i in range(4):
                A(f"buffer_load_dwordx4 {v(Af[r][4*h+i],4)}, {v(vL16)}, {s(sO,4)}, {s(sT0)} offen offset:{i*1024}")
    tr_pi_base(A, vB, vLane, vHf, vT0, vT1)
    A(f"s_lshl_b32 {s(sT0)}, {s(sW)}, 14")
    A(f"v_add_u32 {v(vB)}, {s(sT0)}, {v(vB)}")
    def rd(i):
        for b in range(2):
            A(f"ds_read_b64_tr_b16 {v(Bf[i&1][b],2)}, {v(vB)} offset:{WO + i*2048 + b*512}")
            A(f"ds_read_b64_tr_b16 {v(Bf[i&1][b]+2,2)}, {v(vB)} offset:{WO + i*2048 + b*512 + 1024}")
    K.stamp()
    A("s_barrier")
    K.stamp()
    rd(0)
    for i in range(8):
        if i == 3:
            A("s_barrier")
        if i + 1 < 8:
            rd(i + 1)
            A(f"s_waitcnt lgkmcnt(4)")
        else:
            A(f"s_waitcnt lgkmcnt(0)")
        if i == 0: A("s_waitcnt vmcnt(8)")
        if i == 4: A("s_waitcnt vmcnt(0)")
        for b in range(2):
            for r in range(2):
                t = 2 * b + r
                A(f"v_mfma_f32_32x32x16_bf16 {v(acc[t],16)}, {v(Bf[i&1][b],4)}, {v(Af[r][i],4)}, {'0' if i == 0 else v(acc[t],16)}")
    K.stamp()
    xr = V.alloc(8); out = V.alloc(16)
    sBb, sRr = S.alloc(), S.alloc()
    A(f"s_lshr_b32 {s(sBb)}, {s(sW)}, 1")
    A(f"s_and_b32 {s(sRr)}, {s(sW)}, 1")
    A(f"v_lshrrev_b32 {v(vT2)}, 1, {v(vTok)}")
    A(f"v_and_b32 {v(vT2)}, 7, {v(vT2)}")
    A(f"s_lshl_b32 {s(sT0)}, {s(sRr)}, 12")
    A(f"s_add_u32 {s(sT0)}, {s(sT0)}, {XT}")
    A(f"v_lshlrev_b32 {v(vT1)}, 7, {v(vTok)}")
    A(f"v_lshl_add_u32 {v(vT1)}, {v(vHf)}, 3, {v(vT1)}")
    A(f"v_add_u32 {v(vT1)}, {s(sT0)}, {v(vT1)}")
    A(f"s_lshl_b32 {s(sT1)}, {s(sBb)}, 2")
    for a_ in range(4):
        A(f"s_add_u32 {s(sT0)}, {s(sT1)}, {a_}")
        A(f"v_xor_b32 {v(vT0)}, {s(sT0)}, {v(vT2)}")
        A(f"v_lshl_add_u32 {v(vT0)}, {v(vT0)}, 4, {v(vT1)}")
        A(f"ds_read_b64 {v(xr+2*a_,2)}, {v(vT0)}")
    reduce4(K, acc, RED, sW, vL16, vT0, sT0, out)
    K.stamp()
    un = acc[0]
    for i in range(8):
        A(f"v_lshlrev_b32 {v(un+2*i)}, 16, {v(xr+i)}")
        A(f"v_and_b32 {v(un+2*i+1)}, 0xffff0000, {v(xr+i)}")
    for r in range(16): A(f"v_add_f32 {v(out+r)}, {v(out+r)}, {v(un+r)}")
    pk = acc[1]
    for i in range(8): A(f"v_cvt_pk_bf16_f32 {v(pk+i)}, {v(out+2*i)}, {v(out+2*i+1)}")
    A(f"s_lshl_b32 {s(sT0)}, {s(sRt)}, 1")
    A(f"s_add_u32 {s(sT0)}, {s(sT0)}, {s(sRr)}")
    A(f"s_lshl_b32 {s(sB)}, {s(sT0)}, 15")
    A(f"s_lshl_b32 {s(sT1)}, {s(sCt)}, 12")
    A(f"s_add_u32 {s(sB)}, {s(sB)}, {s(sT1)}")
    A(f"s_lshl_b32 {s(sT1)}, {s(sBb)}, 11")
    A(f"s_add_u32 {s(sB)}, {s(sB)}, {s(sT1)}")
    A(f"s_add_u32 {s(sB)}, {s(sB)}, {WS_HF}")
    A(f"buffer_store_dwordx4 {v(pk,4)}, {v(vL16)}, {s(sO,4)}, {s(sB)} offen")
    A(f"buffer_store_dwordx4 {v(pk+4,4)}, {v(vL16)}, {s(sO,4)}, {s(sB)} offen offset:1024")
    for i in range(8):
        A(f"v_lshlrev_b32 {v(un+2*i)}, 16, {v(pk+i)}")
        A(f"v_and_b32 {v(un+2*i+1)}, 0xffff0000, {v(pk+i)}")
    st = V.alloc(2)
    A(f"v_add_f32 {v(st)}, {v(un)}, {v(un+1)}")
    A(f"v_mul_f32 {v(st+1)}, {v(un)}, {v(un)}")
    A(f"v_fmac_f32 {v(st+1)}, {v(un+1)}, {v(un+1)}")
    for r in range(2, 16):
        A(f"v_add_f32 {v(st)}, {v(st)}, {v(un+r)}")
        A(f"v_fmac_f32 {v(st+1)}, {v(un+r)}, {v(un+r)}")
    swap_add(A, st, vT1)
    swap_add(A, st + 1, vT2)
    A(f"s_lshl_b32 {s(sT0)}, {s(sT0)}, 12")
    A(f"s_lshl_b32 {s(sT1)}, {s(sCt)}, 9")
    A(f"s_add_u32 {s(sT0)}, {s(sT0)}, {s(sT1)}")
    A(f"s_lshl_b32 {s(sT1)}, {s(sBb)}, 8")
    A(f"s_add_u32 {s(sT0)}, {s(sT0)}, {s(sT1)}")
    A(f"s_add_u32 {s(sT0)}, {s(sT0)}, {WS_HS}")
    A(f"v_lshlrev_b32 {v(vT0)}, 3, {v(vTok)}")
    A("s_mov_b32 exec_hi, 0")
    A(f"buffer_store_dwordx2 {v(st,2)}, {v(vT0)}, {s(sO,4)}, {s(sT0)} offen")
    K.stamp_out(sO, 2, vT0, vT1)
    K.rt_end(sO, 2, vT0, vT1)
    A.label(END)
    A("s_endpgm")
    print("k3 vgprs", V.hi, "sgprs", S.hi, "lds", K.lds)
    return K

def k4():
    W1 = 0; CS = 131072; BI = CS + 4 * 512 * 1;
    BI = CS + 2048
    K = Kern("k4_mlp1_kernel", (256, 1, 1), (512, 1, 1), BI + 512)
    A, V, S = K.A, K.V, K.S
    END = "K4_END"
    sP = S.alloc(4); sWs = S.alloc(2)
    A(f"s_load_dwordx4 {s(sP,4)}, s[0:1], 32")
    A(f"s_load_dwordx2 {s(sWs,2)}, s[0:1], 80")
    sW8, sW, sXcd, sJ, sRt, sCt, sT0, sT1, sB, sRot = [S.alloc() for _ in range(10)]
    A(f"s_and_b32 {s(sXcd)}, s2, 7")
    A(f"s_lshr_b32 {s(sJ)}, s2, 3")
    A(f"s_cmp_ge_u32 {s(sJ)}, 28")
    A(f"s_cbranch_scc1 {END}")
    K.rt_begin()
    K.stamp()
    sW1 = S.alloc(4); sO = S.alloc(4); sB1 = S.alloc(4)
    vLane, vT0, vT1, vT2, vHf, vTok, vL16 = [V.alloc() for _ in range(7)]
    wave_ids(K, sW8, sW, vLane, vT0)
    A(f"s_and_b32 {s(sT0)}, {s(sXcd)}, 3")
    A(f"s_lshl_b32 {s(sT0)}, {s(sT0)}, 2")
    A(f"s_and_b32 {s(sT1)}, {s(sJ)}, 3")
    A(f"s_add_u32 {s(sRt)}, {s(sT0)}, {s(sT1)}")
    A(f"s_lshr_b32 {s(sT0)}, {s(sXcd)}, 2")
    A(f"s_mul_i32 {s(sT0)}, {s(sT0)}, 7")
    A(f"s_lshr_b32 {s(sCt)}, {s(sJ)}, 2")
    A(f"s_add_u32 {s(sCt)}, {s(sCt)}, {s(sT0)}")
    A(f"s_cmp_lt_u32 {s(sW8)}, 4")
    A(f"s_cbranch_scc1 K4_COMPUTE")
    mk0 = V.mark()
    vWoff = V.alloc()
    w_voff(A, vWoff, vLane, 3584, vT0, vT1)
    A("s_waitcnt lgkmcnt(0)")
    srd(A, sW1, sP, 512 * 1792 * 2)
    A(f"s_mul_i32 {s(sB)}, {s(sW)}, {32*3584}")
    A(f"s_lshl_b32 {s(sT0)}, {s(sCt)}, 8")
    A(f"s_add_u32 {s(sB)}, {s(sB)}, {s(sT0)}")
    A(f"s_lshl_b32 {s(sT1)}, {s(sW)}, 12")
    def dma(p, c):
        for q in range(4):
            A(f"s_add_u32 m0, {s(sT1)}, {W1 + p*65536 + c*16384 + q*1024}")
            A(f"s_add_u32 {s(sT0)}, {s(sB)}, {(128*c + 8*q)*3584 + p*128}")
            A(f"buffer_load_dwordx4 {v(vWoff)}, {s(sW1,4)}, {s(sT0)} offen lds")
    seq = [(p, c) for p in range(2) for c in range(4)]
    dma(*seq[0]); dma(*seq[1])
    for n in range(8):
        if n + 2 < 8: dma(*seq[n + 2])
        rem = min(8, n + 3) - (n + 1)
        A(f"s_waitcnt vmcnt({4*rem})")
        A("s_barrier")
    A("s_endpgm")
    V.release(mk0)
    A.label("K4_COMPUTE")
    Af = [V.alloc(4) for _ in range(32)]
    acc = [V.alloc(16) for _ in range(4)]
    Bf = [[V.alloc(4) for _ in range(2)] for _ in range(2)]
    csa = [V.alloc(4) for _ in range(4)]; msk = V.alloc(4)
    vB = [V.alloc() for _ in range(4)]
    hs = acc[3]
    A(f"v_lshlrev_b32 {v(vL16)}, 4, {v(vLane)}")
    A(f"v_lshrrev_b32 {v(vHf)}, 5, {v(vLane)}")
    A(f"v_and_b32 {v(vTok)}, 31, {v(vLane)}")
    A("s_waitcnt lgkmcnt(0)")
    srd(A, sO, sWs, WS_SIZE)
    srd(A, sB1, sP + 2, 1792 * 2)
    sR32 = S.alloc()
    A(f"s_lshl_b32 {s(sR32)}, {s(sRt)}, 2")
    A(f"s_add_u32 {s(sR32)}, {s(sR32)}, {s(sW)}")
    A(f"s_lshl_b32 {s(sT0)}, {s(sR32)}, 12")
    A(f"s_add_u32 {s(sT0)}, {s(sT0)}, {WS_HS}")
    A(f"v_lshlrev_b32 {v(vT0)}, 3, {v(vTok)}")
    A(f"v_lshl_add_u32 {v(vT0)}, {v(vHf)}, 11, {v(vT0)}")
    for i in range(8):
        A(f"buffer_load_dwordx2 {v(hs+2*i,2)}, {v(vT0)}, {s(sO,4)}, {s(sT0)} offen offset:{i*256}")
    vb1 = V.alloc()
    A(f"v_lshlrev_b32 {v(vT1)}, 2, {v(vLane)}")
    A(f"s_lshl_b32 {s(sT1)}, {s(sCt)}, 8")
    A(f"buffer_load_dword {v(vb1)}, {v(vT1)}, {s(sB1,4)}, {s(sT1)} offen")
    A(f"s_lshl_b32 {s(sB)}, {s(sR32)}, 15")
    A(f"s_add_u32 {s(sB)}, {s(sB)}, {WS_HF}")
    sQ = [S.alloc() for _ in range(4)]
    for q in range(4):
        A(f"s_xor_b32 {s(sQ[q])}, {s(sW)}, {q}")
        A(f"s_lshl_b32 {s(sQ[q])}, {s(sQ[q])}, 10")
    for g in range(8):
        for q in range(4):
            A(f"s_add_u32 {s(sT0)}, {s(sB)}, {s(sQ[q])}")
            A(f"s_add_u32 {s(sT0)}, {s(sT0)}, {g*4096}") if g else None
            A(f"buffer_load_dwordx4 {v(Af[4*g+q],4)}, {v(vL16)}, {s(sO,4)}, {s(sT0)} offen")
    tr_pi_base(A, vB[0], vLane, vHf, vT0, vT1)
    for q in (3, 2, 1, 0):
        A(f"s_lshl_b32 {s(sT0)}, {s(sQ[q])}, 1")
        A(f"v_add_u32 {v(vB[q])}, {s(sT0)}, {v(vB[0])}")
    A(f"v_and_b32 {v(vT0)}, 15, {v(vLane)}")
    A(f"v_bfe_u32 {v(vT1)}, {v(vLane)}, 4, 1")
    A(f"v_cmp_eq_u32 vcc, {v(vT0)}, {v(vT1)}")
    A(f"v_mov_b32 {v(vT0)}, 0x3f803f80")
    for i in range(4): A(f"v_cndmask_b32 {v(msk+i)}, 0, {v(vT0)}, vcc")
    A("s_waitcnt vmcnt(32)")
    vMean, vRs, vMr = V.alloc(), V.alloc(), V.alloc()
    for st_ in (4, 2, 1):
        for i in range(st_):
            A(f"v_add_f32 {v(hs+2*i)}, {v(hs+2*i)}, {v(hs+2*(i+st_))}")
            A(f"v_add_f32 {v(hs+2*i+1)}, {v(hs+2*i+1)}, {v(hs+2*(i+st_)+1)}")
    swap_add(A, hs, vT1)
    swap_add(A, hs + 1, vT2)
    A(f"v_mul_f32 {v(vMean)}, {f2u(1/512.):#x}, {v(hs)}")
    A(f"v_mul_f32 {v(vT1)}, {v(vMean)}, {v(vMean)}")
    A(f"v_mov_b32 {v(vT2)}, {f2u(1/512.):#x}")
    A(f"v_fma_f32 {v(vT1)}, {v(hs+1)}, {v(vT2)}, -{v(vT1)}")
    A(f"v_max_f32 {v(vT1)}, 0, {v(vT1)}")
    A(f"v_add_f32 {v(vT2)}, {f2u(1e-5):#x}, {v(vT1)}")
    A(f"v_rcp_f32 {v(vT0)}, {v(vT2)}")
    A(f"v_rsq_f32 {v(vRs)}, {v(vT2)}")
    A(f"v_mul_f32 {v(vT1)}, {v(vT1)}, {v(vT0)}")
    A(f"v_add_f32 {v(vT1)}, {f2u(1e-5):#x}, {v(vT1)}")
    A(f"v_rsq_f32 {v(vT1)}, {v(vT1)}")
    A(f"v_mul_f32 {v(vRs)}, {v(vRs)}, {v(vT1)}")
    A(f"v_mul_f32 {v(vMr)}, {v(vMean)}, {v(vRs)}")
    A(f"v_lshlrev_b32 {v(hs)}, 16, {v(vb1)}")
    A(f"v_and_b32 {v(hs+1)}, 0xffff0000, {v(vb1)}")
    A(f"v_lshlrev_b32 {v(vT0)}, 3, {v(vLane)}")
    A(f"v_add_u32 {v(vT0)}, {BI}, {v(vT0)}")
    A(f"ds_write_b64 {v(vT0)}, {v(hs,2)}")
    def rd(n):
        p, pos = n >> 5, n & 31
        for b in range(2):
            o = (pos >> 2) * 8192 + b * 512
            base = vB[pos & 3]
            A(f"ds_read_b64_tr_b16 {v(Bf[n&1][b],2)}, {v(base)} offset:{o}")
            A(f"ds_read_b64_tr_b16 {v(Bf[n&1][b]+2,2)}, {v(base)} offset:{o+1024}")
    K.stamp()
    A("s_barrier")
    K.stamp()
    rd(0)
    for n in range(64):
        p, pos = n >> 5, n & 31
        if n + 1 < 64:
            if (n + 1) % 8 == 0:
                A("s_waitcnt lgkmcnt(0)")
                A("s_barrier")
                if n + 1 == 32:
                    K.stamp()
                    for q in range(4): A(f"v_add_u32 {v(vB[q])}, 65536, {v(vB[q])}")
            rd(n + 1)
            A("s_waitcnt lgkmcnt(4)")
        else:
            A("s_waitcnt lgkmcnt(0)")
        if p == 0 and pos % 4 == 0:
            A(f"s_waitcnt vmcnt({28 - pos})")
        for b in range(2):
            t = 2 * p + b
            A(f"v_mfma_f32_32x32x16_bf16 {v(acc[t],16)}, {v(Bf[n&1][b],4)}, {v(Af[pos],4)}, {'0' if pos == 0 else v(acc[t],16)}")
            if pos % 4 == 0:
                A(f"v_mfma_f32_16x16x32_bf16 {v(csa[t],4)}, {v(Bf[n&1][b],4)}, {v(msk,4)}, {'0' if pos == 0 else v(csa[t],4)}")
    K.stamp()
    sSave = S.alloc(2)
    A(f"v_and_b32 {v(vT0)}, 15, {v(vLane)}")
    A(f"v_lshrrev_b32 {v(vT1)}, 4, {v(vLane)}")
    A(f"v_lshlrev_b32 {v(vT1)}, 4, {v(vT1)}")
    A(f"v_lshl_add_u32 {v(vT1)}, {v(vT0)}, 6, {v(vT1)}")
    A(f"s_lshl_b32 {s(sT0)}, {s(sW)}, 9")
    A(f"s_add_u32 {s(sT0)}, {s(sT0)}, {CS}")
    A(f"v_add_u32 {v(vT1)}, {s(sT0)}, {v(vT1)}")
    A(f"v_cmp_gt_u32 vcc, 2, {v(vT0)}")
    A(f"s_and_saveexec_b64 {s(sSave,2)}, vcc")
    for t in range(4): A(f"ds_write_b128 {v(vT1)}, {v(csa[t],4)} offset:{t*128}")
    A(f"s_mov_b64 exec, {s(sSave,2)}")
    A("s_waitcnt lgkmcnt(0)")
    A("s_barrier")
    K.stamp()
    A(f"v_lshlrev_b32 {v(vT0)}, 4, {v(vHf)}")
    A(f"v_add_u32 {v(vT0)}, {CS}, {v(vT0)}")
    c1 = -2.0 * 0.7978845608028654 * LOG2E
    c2 = c1 * 0.044715
    vC1, vC2 = V.alloc(), V.alloc()
    A(f"v_mov_b32 {v(vC1)}, {f2u(c1):#x}")
    A(f"v_mov_b32 {v(vC2)}, {f2u(c2):#x}")
    tmp = Af[0]
    def R(i): return Af[0] + 16 * i
    A(f"s_lshl_b32 {s(sB)}, {s(sR32)}, 0")
    A(f"s_mul_i32 {s(sB)}, {s(sB)}, {112*1024}")
    A(f"s_lshl_b32 {s(sT0)}, {s(sCt)}, 13")
    A(f"s_add_u32 {s(sB)}, {s(sB)}, {s(sT0)}")
    A(f"s_add_u32 {s(sB)}, {s(sB)}, {WS_MF}")
    for t in range(4):
        for pw in range(4):
            for a_ in range(4):
                A(f"ds_read_b128 {v(R(pw)+4*a_,4)}, {v(vT0)} offset:{pw*512 + t*128 + a_*32}")
        for a_ in range(4):
            A(f"ds_read_b128 {v(R(4)+4*a_,4)}, {v(vT0)} offset:{2048 + t*128 + a_*32}")
        A("s_waitcnt lgkmcnt(12)")
        A("s_waitcnt lgkmcnt(4)")
        for r in range(16):
            A(f"v_add_f32 {v(R(0)+r)}, {v(R(0)+r)}, {v(R(1)+r)}")
            A(f"v_add_f32 {v(R(2)+r)}, {v(R(2)+r)}, {v(R(3)+r)}")
        for r in range(16): A(f"v_add_f32 {v(R(0)+r)}, {v(R(0)+r)}, {v(R(2)+r)}")
        A("s_waitcnt lgkmcnt(0)")
        for r in range(16): A(f"v_fma_f32 {v(R(4)+r)}, -{v(vMr)}, {v(R(0)+r)}, {v(R(4)+r)}")
        x = acc[t]
        for r in range(16): A(f"v_fma_f32 {v(x+r)}, {v(x+r)}, {v(vRs)}, {v(R(4)+r)}")
        for r in range(16): A(f"v_mul_f32 {v(R(0)+r)}, {v(x+r)}, {v(x+r)}")
        for r in range(16): A(f"v_fma_f32 {v(R(0)+r)}, {v(R(0)+r)}, {v(vC2)}, {v(vC1)}")
        for r in range(16): A(f"v_mul_f32 {v(R(0)+r)}, {v(R(0)+r)}, {v(x+r)}")
        for r in range(16): A(f"v_exp_f32 {v(R(0)+r)}, {v(R(0)+r)}")
        for r in range(16): A(f"v_add_f32 {v(R(0)+r)}, 1.0, {v(R(0)+r)}")
        for r in range(16): A(f"v_rcp_f32 {v(R(0)+r)}, {v(R(0)+r)}")
        for r in range(16): A(f"v_mul_f32 {v(x+r)}, {v(x+r)}, {v(R(0)+r)}")
        pk = R(5 + (t & 1))
        for i in range(8): A(f"v_cvt_pk_bf16_f32 {v(pk+i)}, {v(x+2*i)}, {v(x+2*i+1)}")
        A(f"buffer_store_dwordx4 {v(pk,4)}, {v(vL16)}, {s(sO,4)}, {s(sB)} offen offset:{t*2048}") if t < 2 else A(f"buffer_store_dwordx4 {v(pk,4)}, {v(vL16)}, {s(sO,4)}, {s(sT1)} offen offset:{(t-2)*2048}")
        A(f"buffer_store_dwordx4 {v(pk+4,4)}, {v(vL16)}, {s(sO,4)}, {s(sB)} offen offset:{t*2048+1024}") if t < 2 else A(f"buffer_store_dwordx4 {v(pk+4,4)}, {v(vL16)}, {s(sO,4)}, {s(sT1)} offen offset:{(t-2)*2048+1024}")
        if t == 1: A(f"s_add_u32 {s(sT1)}, {s(sB)}, 4096")
    K.stamp_out(sO, 3, vT0, vT1)
    K.rt_end(sO, 3, vT0, vT1)
    A.label(END)
    A("s_endpgm")
    print("k4 vgprs", V.hi, "sgprs", S.hi, "lds", K.lds)
    return K

def k5():
    W2 = 0; RED = 0
    K = Kern("k5_mlp2_kernel", (256, 1, 1), (512, 1, 1), 131072)
    A, V, S = K.A, K.V, K.S
    END = "K5_END"
    sP = S.alloc(4); sWs = S.alloc(2); sOut = S.alloc(2)
    A(f"s_load_dwordx4 {s(sP,4)}, s[0:1], 48")
    A(f"s_load_dwordx2 {s(sOut,2)}, s[0:1], 64")
    A(f"s_load_dwordx2 {s(sWs,2)}, s[0:1], 80")
    A(f"s_cmp_ge_u32 s2, 256")
    A(f"s_cbranch_scc1 {END}")
    K.rt_begin()
    K.stamp()
    sW2 = S.alloc(4); sO = S.alloc(4); sB2 = S.alloc(4); sOu = S.alloc(4)
    sW8, sW, sXcd, sJ, sRt, sCt, sT0, sT1, sB = [S.alloc() for _ in range(9)]
    vLane, vT0, vT1, vT2, vHf, vTok, vL16 = [V.alloc() for _ in range(7)]
    wave_ids(K, sW8, sW, vLane, vT0)
    A(f"s_and_b32 {s(sXcd)}, s2, 7")
    A(f"s_lshr_b32 {s(sJ)}, s2, 3")
    A(f"s_and_b32 {s(sT0)}, {s(sJ)}, 3")
    A(f"s_lshl_b32 {s(sRt)}, {s(sXcd)}, 2")
    A(f"s_add_u32 {s(sRt)}, {s(sRt)}, {s(sT0)}")
    A(f"s_lshr_b32 {s(sCt)}, {s(sJ)}, 2")
    A(f"s_cmp_lt_u32 {s(sW8)}, 4")
    A(f"s_cbranch_scc1 K5_COMPUTE")
    mk0 = V.mark()
    vWoff = V.alloc()
    w_voff(A, vWoff, vLane, 1024, vT0, vT1)
    A("s_waitcnt lgkmcnt(0)")
    srd(A, sW2, sP, 1792 * 512 * 2)
    A(f"s_mul_i32 {s(sB)}, {s(sW)}, {448*1024}")
    A(f"s_lshl_b32 {s(sT0)}, {s(sCt)}, 7")
    A(f"s_add_u32 {s(sB)}, {s(sB)}, {s(sT0)}")
    A(f"s_lshl_b32 {s(sT1)}, {s(sW)}, 15")
    def dma(c):
        for q in range(8):
            A(f"s_add_u32 m0, {s(sT1)}, {W2 + (c&3)*8192 + q*1024}")
            A(f"s_add_u32 {s(sT0)}, {s(sB)}, {(64*c + 8*q)*1024}")
            A(f"buffer_load_dwordx4 {v(vWoff)}, {s(sW2,4)}, {s(sT0)} offen lds")
    dma(0); dma(1)
    A("s_waitcnt vmcnt(8)")
    A("s_barrier")
    dma(2); dma(3)
    for sp in range(1, 7):
        issued = min(sp + 2, 6)
        A(f"s_waitcnt vmcnt({8*(issued - sp)})")
        A("s_barrier")
        if sp + 3 < 7: dma(sp + 3)
    A("s_endpgm")
    V.release(mk0)
    A.label("K5_COMPUTE")
    NW = 12
    Af = [[V.alloc(4) for _ in range(2)] for _ in range(NW)]
    acc = [V.alloc(16) for _ in range(4)]
    Bf = [[V.alloc(4) for _ in range(2)] for _ in range(2)]
    vB = V.alloc()
    hr = V.alloc(8); b2r = V.alloc(8)
    A(f"v_lshlrev_b32 {v(vL16)}, 4, {v(vLane)}")
    A(f"v_lshrrev_b32 {v(vHf)}, 5, {v(vLane)}")
    A(f"v_and_b32 {v(vTok)}, 31, {v(vLane)}")
    A("s_waitcnt lgkmcnt(0)")
    srd(A, sO, sWs, WS_SIZE)
    srd(A, sB2, sP + 2, 512 * 2)
    srd(A, sOu, sOut, 2048 * 512 * 2)
    sBb, sRr, sA0, sA1 = [S.alloc() for _ in range(4)]
    A(f"s_lshr_b32 {s(sBb)}, {s(sW)}, 1")
    A(f"s_and_b32 {s(sRr)}, {s(sW)}, 1")
    A(f"s_lshl_b32 {s(sT0)}, {s(sRt)}, 1")
    A(f"s_add_u32 {s(sT0)}, {s(sT0)}, {s(sRr)}")
    A(f"s_lshl_b32 {s(sB)}, {s(sT0)}, 15")
    A(f"s_lshl_b32 {s(sT1)}, {s(sCt)}, 12")
    A(f"s_add_u32 {s(sB)}, {s(sB)}, {s(sT1)}")
    A(f"s_lshl_b32 {s(sT1)}, {s(sBb)}, 11")
    A(f"s_add_u32 {s(sB)}, {s(sB)}, {s(sT1)}")
    A(f"s_add_u32 {s(sB)}, {s(sB)}, {WS_HF}")
    A(f"buffer_load_dwordx4 {v(hr,4)}, {v(vL16)}, {s(sO,4)}, {s(sB)} offen")
    A(f"buffer_load_dwordx4 {v(hr+4,4)}, {v(vL16)}, {s(sO,4)}, {s(sB)} offen offset:1024")
    A(f"s_lshl_b32 {s(sT0)}, {s(sCt)}, 7")
    A(f"s_lshl_b32 {s(sT1)}, {s(sBb)}, 6")
    A(f"s_add_u32 {s(sT0)}, {s(sT0)}, {s(sT1)}")
    A(f"v_lshlrev_b32 {v(vT0)}, 3, {v(vHf)}")
    for a_ in range(4):
        A(f"buffer_load_dwordx2 {v(b2r+2*a_,2)}, {v(vT0)}, {s(sB2,4)}, {s(sT0)} offen offset:{a_*16}")
    A(f"s_mul_i32 {s(sA0)}, {s(sRt)}, {2*112*1024}")
    A(f"s_mul_i32 {s(sT0)}, {s(sW)}, {28*1024}")
    A(f"s_add_u32 {s(sA0)}, {s(sA0)}, {s(sT0)}")
    A(f"s_add_u32 {s(sA0)}, {s(sA0)}, {WS_MF}")
    A(f"s_add_u32 {s(sA1)}, {s(sA0)}, {112*1024}")
    def lda(n):
        for r, sa in ((0, sA0), (1, sA1)):
            if n % 4 == 0 and n:
                A(f"s_add_u32 {s(sa)}, {s(sa)}, 4096")
            A(f"buffer_load_dwordx4 {v(Af[n % NW][r],4)}, {v(vL16)}, {s(sO,4)}, {s(sa)} offen offset:{(n&3)*1024}")
    for n in range(NW): lda(n)
    tr_pi_base(A, vB, vLane, vHf, vT0, vT1)
    A(f"s_lshl_b32 {s(sT0)}, {s(sW)}, 15")
    A(f"v_add_u32 {v(vB)}, {s(sT0)}, {v(vB)}")
    def rd(n):
        c, i = n >> 2, n & 3
        for b in range(2):
            o = W2 + (c & 3) * 8192 + i * 2048 + b * 512
            A(f"ds_read_b64_tr_b16 {v(Bf[n&1][b],2)}, {v(vB)} offset:{o}")
            A(f"ds_read_b64_tr_b16 {v(Bf[n&1][b]+2,2)}, {v(vB)} offset:{o+1024}")
    K.stamp()
    A("s_barrier")
    K.stamp()
    rd(0)
    for n in range(28):
        if n + 1 < 28:
            if (n + 1) % 4 == 0:
                A("s_waitcnt lgkmcnt(0)")
                A("s_barrier")
                if n + 1 == 12: K.stamp()
            rd(n + 1)
            A("s_waitcnt lgkmcnt(4)")
        else:
            A("s_waitcnt lgkmcnt(0)")
        later = min(n + NW - 1, 27) - n
        A(f"s_waitcnt vmcnt({2*later})")
        for b in range(2):
            for r in range(2):
                t = 2 * b + r
                A(f"v_mfma_f32_32x32x16_bf16 {v(acc[t],16)}, {v(Bf[n&1][b],4)}, {v(Af[n%NW][r],4)}, {'0' if n == 0 else v(acc[t],16)}")
        if n + NW < 28: lda(n + NW)
    K.stamp()
    A("s_barrier")
    out = Af[0][0]
    reduce4(K, acc, RED, sW, vL16, vT0, sT0, out)
    K.stamp()
    un = acc[0]
    for i in range(8):
        A(f"v_lshlrev_b32 {v(un+2*i)}, 16, {v(hr+i)}")
        A(f"v_and_b32 {v(un+2*i+1)}, 0xffff0000, {v(hr+i)}")
    for r in range(16): A(f"v_add_f32 {v(out+r)}, {v(out+r)}, {v(un+r)}")
    for i in range(8):
        A(f"v_lshlrev_b32 {v(un+2*i)}, 16, {v(b2r+i)}")
        A(f"v_and_b32 {v(un+2*i+1)}, 0xffff0000, {v(b2r+i)}")
    for r in range(16): A(f"v_add_f32 {v(out+r)}, {v(out+r)}, {v(un+r)}")
    pk = acc[1]
    for i in range(8): A(f"v_cvt_pk_bf16_f32 {v(pk+i)}, {v(out+2*i)}, {v(out+2*i+1)}")
    for base in (0, 4):
        A(f"v_permlane32_swap_b32 {v(pk+base)}, {v(pk+base+2)}")
        A(f"v_permlane32_swap_b32 {v(pk+base+1)}, {v(pk+base+3)}")
    A(f"s_lshl_b32 {s(sT0)}, {s(sRt)}, 16")
    A(f"s_lshl_b32 {s(sT1)}, {s(sRr)}, 15")
    A(f"s_add_u32 {s(sT0)}, {s(sT0)}, {s(sT1)}")
    A(f"s_lshl_b32 {s(sT1)}, {s(sCt)}, 7")
    A(f"s_add_u32 {s(sT0)}, {s(sT0)}, {s(sT1)}")
    A(f"s_lshl_b32 {s(sT1)}, {s(sBb)}, 6")
    A(f"s_add_u32 {s(sT0)}, {s(sT0)}, {s(sT1)}")
    A(f"v_lshlrev_b32 {v(vT0)}, 10, {v(vTok)}")
    A(f"v_lshl_add_u32 {v(vT0)}, {v(vHf)}, 4, {v(vT0)}")
    A(f"buffer_store_dwordx4 {v(pk,4)}, {v(vT0)}, {s(sOu,4)}, {s(sT0)} offen")
    A(f"buffer_store_dwordx4 {v(pk+4,4)}, {v(vT0)}, {s(sOu,4)}, {s(sT0)} offen offset:32")
    K.stamp_out(sO, 4, vT0, vT1)
    K.rt_end(sO, 4, vT0, vT1)
    A.label(END)
    A("s_endpgm")
    print("k5 vgprs", V.hi, "sgprs", S.hi, "lds", K.lds)
    return K

def build(kernels, path):
    hdr = open(f"cdna_kernels/{NAME}.s.ref").read().split("; Override launch")[0]
    out = hdr
    for K in kernels:
        out += f"; @launch kernel={K.name} grid=({K.grid[0]},{K.grid[1]},{K.grid[2]}) block=({K.block[0]},{K.block[1]},{K.block[2]}) lds={K.lds}\n"
    out += '.amdgcn_target "amdgcn-amd-amdhsa--gfx950"\n.text\n'
    kds = ""
    for K in kernels:
        t, kd = K.finish()
        out += t; kds += ".p2align 6\n" + kd
    out += '.section .rodata,"a"\n' + kds
    open(path, "w").write(out)

if __name__ == "__main__":
    if "stamp" in sys.argv: STAMP = True
    if "rt" in sys.argv: RT = True
    FLAGS = set(sys.argv[2:])
    ks = [k1(), k2(1 if 'q1' in FLAGS else 2), k3(), k4(), k5()]
    build(ks, sys.argv[1] if len(sys.argv) > 1 else "out.s")
```

```python
import sys
import gen as G
from gen import *
from dsl import *

WS_CNT = (21 << 20)
G.WS_CNT = WS_CNT
G.WS_HS = WS_HS = 20 << 20
WS_CSG = (20 << 20) + (512 << 10)
G.WS_STAMP = WS_STAMP = (21 << 20) + (512 << 10)

PRIO_IT = 13
NPOLL = 1
PSLEEP = 4
WIN5 = 8
def km(nqb=2, prio=True):
    ks = nqb
    LOCAL = 'local' in G.FLAGS
    LSC = '' if LOCAL else ' sc1'
    LLD = '' if (LOCAL and 'ldsc1' not in G.FLAGS) else ' sc1'
    KR = 0; VR = 65536; ON = 131072
    WO = 0; XT = 65536; RED = XT + 8192
    W1 = 0; CS = 139264; BI = CS + 512
    W2 = 0; RED5 = 0
    TKL = BI + 512 + 2048
    STP = BI + 512
    K = Kern("km_fused_kernel", (256, 1, 1), (512, 1, 1), BI + 512 + 2048 + 64)
    A, V, S = K.A, K.V, K.S
    END = "KM_END"
    sWs = S.alloc(2); sPx = S.alloc(2); sPwo = S.alloc(2); sP1 = S.alloc(4); sP2 = S.alloc(4); sPo = S.alloc(2)
    A(f"s_load_dwordx2 {s(sWs,2)}, s[0:1], 80")
    A(f"s_load_dwordx2 {s(sPx,2)}, s[0:1], 0")
    A(f"s_load_dwordx2 {s(sPwo,2)}, s[0:1], 16")
    A(f"s_load_dwordx4 {s(sP1,4)}, s[0:1], 32")
    A(f"s_load_dwordx4 {s(sP2,4)}, s[0:1], 48")
    A(f"s_load_dwordx2 {s(sPo,2)}, s[0:1], 64")
    A(f"s_cmp_ge_u32 s2, 256")
    A(f"s_cbranch_scc1 {END}")
    K.rt_begin()
    K.stamp()
    sO = S.alloc(4); sRa = S.alloc(4); sRb = S.alloc(4)
    sW8, sW, sXcd, sJ, sT0, sT1, sB, sJ3, sJ2, sCn = [S.alloc() for _ in range(10)]
    sSave = S.alloc(2)
    sXcP, sTkP = S.alloc(), S.alloc()
    vLane, vT0, vT1, vT2, vHf, vTok, vL16 = [V.alloc() for _ in range(7)]
    hpk = V.alloc(4)
    vPoll = V.alloc(4)
    wave_ids(K, sW8, sW, vLane, vT0)
    A(f"s_and_b32 {s(sXcd)}, s2, 7")
    A(f"s_lshr_b32 {s(sJ)}, s2, 3")
    A(f"s_and_b32 {s(sJ3)}, {s(sJ)}, 3")
    A(f"s_lshr_b32 {s(sJ2)}, {s(sJ)}, 2")
    A(f"v_lshlrev_b32 {v(vL16)}, 4, {v(vLane)}")
    A(f"v_lshrrev_b32 {v(vHf)}, 5, {v(vLane)}")
    A(f"v_and_b32 {v(vTok)}, 31, {v(vLane)}")
    def signal(off_sgpr, local=False):
        A(f"v_mov_b32 {v(vT0)}, 1")
        A(f"v_mov_b32 {v(vT1)}, 0")
        A(f"s_mov_b64 exec, 1")
        A(f"buffer_atomic_add {v(vT0)}, {v(vT1)}, {s(sO,4)}, {s(off_sgpr)} offen" + ("" if local else " sc1"))
        A(f"s_mov_b64 exec, -1")
    def poll(off_sgpr, target, tag):
        if NPOLL <= 1:
            A(f"v_mov_b32 {v(vT1)}, 0")
            A(f"s_mov_b32 {s(sT1)}, 3000000")
            A.label(f"KM_POLL_{tag}")
            A(f"buffer_load_dword {v(vT0)}, {v(vT1)}, {s(sO,4)}, {s(off_sgpr)} offen sc1")
            A("s_waitcnt vmcnt(0)")
            A(f"v_readfirstlane_b32 {s(sT0)}, {v(vT0)}")
            A(f"s_cmp_ge_u32 {s(sT0)}, {target}")
            A(f"s_cbranch_scc1 KM_PD_{tag}")
            A("s_sleep 1")
            A(f"s_sub_u32 {s(sT1)}, {s(sT1)}, 1")
            A(f"s_cmp_lg_u32 {s(sT1)}, 0")
            A(f"s_cbranch_scc1 KM_POLL_{tag}")
            A.label(f"KM_PD_{tag}")
            return
        P = vPoll
        A(f"v_mov_b32 {v(vT1)}, 0")
        A(f"s_mov_b32 {s(sT1)}, 1000000")
        for k in range(NPOLL - 1):
            A(f"buffer_load_dword {v(P+k)}, {v(vT1)}, {s(sO,4)}, {s(off_sgpr)} offen sc1")
            A(f"s_sleep {PSLEEP}")
        A.label(f"KM_POLL_{tag}")
        for k in range(NPOLL):
            A(f"buffer_load_dword {v(P+(k+NPOLL-1)%NPOLL)}, {v(vT1)}, {s(sO,4)}, {s(off_sgpr)} offen sc1")
            A(f"s_waitcnt vmcnt({NPOLL-1})")
            A(f"v_readfirstlane_b32 {s(sT0)}, {v(P+k)}")
            A(f"s_cmp_ge_u32 {s(sT0)}, {target}")
            A(f"s_cbranch_scc1 KM_PD_{tag}")
            A(f"s_sleep {PSLEEP}")
        A(f"s_sub_u32 {s(sT1)}, {s(sT1)}, 1")
        A(f"s_cmp_lg_u32 {s(sT1)}, 0")
        A(f"s_cbranch_scc1 KM_POLL_{tag}")
        A.label(f"KM_PD_{tag}")
    def only_wave0(tag, body):
        A(f"s_cmp_lg_u32 {s(sW8)}, 0")
        A(f"s_cbranch_scc1 KM_NW0_{tag}")
        body()
        A.label(f"KM_NW0_{tag}")
    def cnt_off(dst, base, idx_expr):
        idx_expr(dst)
        A(f"s_lshl_b32 {s(dst)}, {s(dst)}, 8")
        A(f"s_add_u32 {s(dst)}, {s(dst)}, {WS_CNT + base}")
    mkV = V.mark(); mkS = S.mark()
    sHead, sWq, sKh, sHb, sIt, sKm, sQt, sL, sG, sL0 = [S.alloc() for _ in range(10)]
    sQb = sJ2
    vK, vV, vVinc = [V.alloc() for _ in range(3)]
    A(f"s_lshl_b32 {s(sHead)}, {s(sXcd)}, 2")
    A(f"s_add_u32 {s(sHead)}, {s(sHead)}, {s(sJ3)}")
    if ks == 2:
        A(f"s_mov_b32 {s(sWq)}, {s(sW)}")
        A(f"s_lshr_b32 {s(sKh)}, {s(sW8)}, 2")
    else:
        A(f"s_mov_b32 {s(sWq)}, {s(sW8)}")
        A(f"s_mov_b32 {s(sKh)}, 0")
    A(f"s_lshl_b32 {s(sHb)}, {s(sHead)}, 16")
    Q = [V.alloc(4) for _ in range(nqb)]
    vKm = V.alloc()
    A(f"s_lshl_b32 {s(sT0)}, {s(sQb)}, 3")
    A(f"s_mul_i32 {s(sT1)}, {s(sWq)}, {nqb}")
    A(f"s_add_u32 {s(sQt)}, {s(sT0)}, {s(sT1)}")
    if ks == 2:
        A(f"s_lshl_b32 {s(sL0)}, {s(sKh)}, 5")
        A(f"s_lshl_b32 {s(sT0)}, {s(sWq)}, 1")
        A(f"s_add_u32 {s(sL0)}, {s(sL0)}, {s(sT0)}")
        gstep = 8
    else:
        A(f"s_lshl_b32 {s(sL0)}, {s(sW8)}, 1")
        gstep = 16
    A(f"s_lshl_b32 {s(sB)}, {s(sQt)}, 10")
    A(f"s_add_u32 {s(sB)}, {s(sB)}, {s(sHb)}")
    A(f"v_lshlrev_b32 {v(vT2)}, 2, {v(vLane)}")
    A("s_waitcnt lgkmcnt(0)")
    srd(A, sO, sWs, WS_SIZE)
    sXc, sTk = sXcP, sTkP
    vTk = V.alloc()
    if LOCAL:
        A(f"s_getreg_b32 {s(sXc)}, hwreg(HW_REG_XCC_ID)")
        A(f"s_and_b32 {s(sXc)}, {s(sXc)}, 7")
        A(f"s_cmp_lg_u32 {s(sW8)}, 0")
        A(f"s_cbranch_scc1 KM_NOTK")
        A(f"s_lshl_b32 {s(sT0)}, {s(sXc)}, 8")
        A(f"s_add_u32 {s(sT0)}, {s(sT0)}, {WS_CNT + 10240}")
        A(f"v_mov_b32 {v(vTk)}, 1")
        A(f"v_mov_b32 {v(vT0)}, 0")
        A(f"s_mov_b64 exec, 1")
        A(f"buffer_atomic_add {v(vTk)}, {v(vT0)}, {s(sO,4)}, {s(sT0)} offen sc0")
        A(f"s_mov_b64 exec, -1")
        A.label("KM_NOTK")
    else:
        A(f"s_mov_b32 {s(sXc)}, {s(sXcd)}")
        A(f"s_mov_b32 {s(sTk)}, {s(sJ)}")
    def kv_group(g):
        A(f"s_add_u32 {s(sL)}, {s(sL0)}, {gstep*g}")
        A(f"s_lshl_b32 {s(sT0)}, {s(sQb)}, 3")
        A(f"s_add_u32 {s(sG)}, {s(sL)}, {s(sT0)}")
        A(f"s_and_b32 {s(sG)}, {s(sG)}, 63")
        A(f"s_lshl_b32 {s(sG)}, {s(sG)}, 10")
        A(f"s_add_u32 {s(sG)}, {s(sG)}, {s(sHb)}")
        A(f"s_lshl_b32 {s(sL)}, {s(sL)}, 10")
        A(f"s_add_u32 m0, {s(sL)}, {KR}")
        A(f"s_add_u32 {s(sT0)}, {s(sG)}, {WS_KF}")
        A(f"buffer_load_dwordx4 {v(vL16)}, {s(sO,4)}, {s(sT0)} offen lds")
        A(f"buffer_load_dwordx4 {v(vL16)}, {s(sO,4)}, {s(sT0)} offen offset:1024 lds")
        A(f"s_add_u32 m0, {s(sL)}, {VR}")
        A(f"s_add_u32 {s(sT0)}, {s(sG)}, {WS_VF}")
        A(f"buffer_load_dwordx4 {v(vL16)}, {s(sO,4)}, {s(sT0)} offen lds")
        A(f"buffer_load_dwordx4 {v(vL16)}, {s(sO,4)}, {s(sT0)} offen offset:1024 lds")
    for b in range(nqb):
        A(f"buffer_load_dwordx4 {v(Q[b],4)}, {v(vL16)}, {s(sO,4)}, {s(sB)} offen offset:{b*1024}")
    A(f"s_lshl_b32 {s(sT0)}, {s(sHead)}, 8")
    A(f"s_add_u32 {s(sT0)}, {s(sT0)}, {WS_KMAX}")
    A(f"buffer_load_dword {v(vKm)}, {v(vT2)}, {s(sO,4)}, {s(sT0)} offen")
    kv_group(0)
    K.stamp()
    A(f"v_mov_b32 {v(vT1)}, 0x3f803f80")
    A(f"v_lshlrev_b32 {v(vT0)}, 2, v0")
    A(f"v_add_u32 {v(vT0)}, {ON}, {v(vT0)}")
    A(f"ds_write_b32 {v(vT0)}, {v(vT1)}")
    A(f"ds_write_b32 {v(vT0)}, {v(vT1)} offset:2048")
    A(f"v_cmp_gt_u32 vcc, 128, v0")
    A(f"s_and_saveexec_b64 {s(sSave,2)}, vcc")
    A(f"ds_write_b32 {v(vT0)}, {v(vT1)} offset:4096")
    A(f"s_mov_b64 exec, {s(sSave,2)}")
    A(f"s_lshl_b32 {s(sT0)}, {s(sKh)}, 15")
    A(f"v_add_u32 {v(vK)}, {s(sT0)}, {v(vL16)}")
    A(f"v_lshlrev_b32 {v(vT0)}, 8, {v(vHf)}")
    A(f"v_lshl_add_u32 {v(vT0)}, {v(vTok)}, 4, {v(vT0)}")
    A(f"s_add_u32 {s(sT0)}, {s(sT0)}, {VR}")
    A(f"v_add_u32 {v(vT0)}, {s(sT0)}, {v(vT0)}")
    A(f"v_subrev_u32 {v(vT1)}, 20, {v(vTok)}")
    A(f"v_cmp_gt_u32 vcc, 8, {v(vT1)}")
    A(f"v_mov_b32 {v(vT1)}, {ON}")
    A(f"v_mov_b32 {v(vT2)}, {ON+64}")
    A(f"v_cndmask_b32 {v(vT1)}, {v(vT1)}, {v(vT2)}, vcc")
    A(f"v_cmp_gt_u32 vcc, 16, {v(vTok)}")
    A(f"v_cndmask_b32 {v(vV)}, {v(vT1)}, {v(vT0)}, vcc")
    A(f"v_mov_b32 {v(vT1)}, 4096")
    A(f"v_cndmask_b32 {v(vVinc)}, 0, {v(vT1)}, vcc")
    Kf = [V.alloc(4) for _ in range(2)]; Vf0 = [V.alloc(4) for _ in range(2)]; Vf1 = [V.alloc(4) for _ in range(2)]
    QB = [dict(S=[V.alloc(16), V.alloc(16)], P=V.alloc(8), O=V.alloc(16), C=V.alloc(16)) for _ in range(nqb)]
    for b in range(nqb):
        for r in range(16): A(f"v_mov_b32 {v(QB[b]['O']+r)}, 0")
        for r in range(4, 8): A(f"v_mov_b32 {v(QB[b]['P']+r)}, 0")
    for r in range(4): A(f"v_mov_b32 {v(Vf1[1]+r)}, 0")
    A(f"s_waitcnt vmcnt(4)")
    wave_max64(A, vKm, sKm, sT0)
    bad = S.alloc(2)
    for b in range(nqb):
        un = QB[b]["S"][0]
        for i in range(4):
            A(f"v_lshlrev_b32 {v(un+2*i)}, 16, {v(Q[b]+i)}")
            A(f"v_and_b32 {v(un+2*i+1)}, 0xffff0000, {v(Q[b]+i)}")
        A(f"v_mul_f32 {v(vT0)}, {v(un)}, {v(un)}")
        for i in range(1, 8): A(f"v_fmac_f32 {v(vT0)}, {v(un+i)}, {v(un+i)}")
        swap_add(A, vT0, vT1)
        A(f"v_mul_f32 {v(vT0)}, {s(sKm)}, {v(vT0)}")
        A(f"v_sqrt_f32 {v(vT0)}, {v(vT0)}")
        A(f"v_mov_b32 {v(vT1)}, {f2u(0.01):#x}")
        A(f"v_fmac_f32 {v(vT1)}, {f2u(1.01):#x}, {v(vT0)}")
        A(f"v_mov_b32 {v(vT2)}, {f2u(40.0):#x}")
        A(f"v_cmp_nge_f32 vcc, {v(vT2)}, {v(vT1)}")
        if b == 0: A(f"s_mov_b64 {s(bad,2)}, vcc")
        else: A(f"s_or_b64 {s(bad,2)}, {s(bad,2)}, vcc")
        for r in range(16): A(f"v_sub_f32 {v(QB[b]['C']+r)}, 0, {v(vT1)}")
    if LOCAL:
        A(f"s_waitcnt vmcnt(0)")
        A(f"s_cmp_lg_u32 {s(sW8)}, 0")
        A(f"s_cbranch_scc1 KM_NOTK2")
        A(f"v_mov_b32 {v(vT0)}, {TKL}")
        A(f"s_mov_b64 exec, 1")
        A(f"ds_write_b32 {v(vT0)}, {v(vTk)}")
        A(f"s_mov_b64 exec, -1")
        A.label("KM_NOTK2")
    A(f"s_waitcnt vmcnt(0) lgkmcnt(0)")
    A("s_barrier")
    K.stamp()
    if LOCAL:
        A(f"v_mov_b32 {v(vT0)}, {TKL}")
        A(f"ds_read_b32 {v(vT1)}, {v(vT0)}")
        A(f"s_waitcnt lgkmcnt(0)")
        A(f"v_readfirstlane_b32 {s(sTk)}, {v(vT1)}")
    NT = 64 // ks
    mf = "v_mfma_f32_32x32x16_bf16"
    sPF = S.alloc(4); sPFo = S.alloc()
    A(f"s_lshl_b32 {s(sT0)}, {s(sJ)}, 2")
    A(f"s_add_u32 {s(sT0)}, {s(sT0)}, {s(sW)}")
    A(f"s_cmp_lt_u32 {s(sT0)}, 72")
    A(f"s_cselect_b32 {s(sPF)}, {s(sP1)}, {s(sP2)}")
    A(f"s_cselect_b32 {s(sPF+1)}, {s(sP1+1)}, {s(sP2+1)}")
    A(f"s_cselect_b32 {s(sT1)}, 16, 72")
    A(f"s_cmp_lt_u32 {s(sT0)}, 16")
    A(f"s_cselect_b32 {s(sPF)}, {s(sPwo)}, {s(sPF)}")
    A(f"s_cselect_b32 {s(sPF+1)}, {s(sPwo+1)}, {s(sPF+1)}")
    A(f"s_cselect_b32 {s(sT1)}, 0, {s(sT1)}")
    A(f"s_sub_u32 {s(sT0)}, {s(sT0)}, {s(sT1)}")
    A(f"s_lshl_b32 {s(sT0)}, {s(sT0)}, 15")
    A(f"s_add_u32 {s(sPF)}, {s(sPF)}, {s(sT0)}")
    A(f"s_addc_u32 {s(sPF+1)}, {s(sPF+1)}, 0")
    A(f"s_and_b32 {s(sPF+1)}, {s(sPF+1)}, 0xffff")
    A(f"s_mov_b32 {s(sPF+2)}, 32768")
    A(f"s_mov_b32 {s(sPF+3)}, 0x20000")
    A(f"s_mov_b32 {s(sPFo)}, 0")
    if "nopf" in G.FLAGS:
        A(f"s_mov_b32 {s(sPFo)}, 32768")
    if "pf2" in G.FLAGS:
        A(f"s_lshl_b32 {s(sT0)}, {s(sJ)}, 2")
        A(f"s_add_u32 {s(sT0)}, {s(sT0)}, {s(sW)}")
        A(f"s_cmp_lt_u32 {s(sT0)}, 72")
        A(f"s_cselect_b32 {s(sPFo)}, 0, 32768")
    vPF = V.alloc(4)
    A(f"s_cmp_lt_u32 {s(sW8)}, 4")
    A(f"s_cbranch_scc1 KM_OLD1")
    for g in range(1, 4):
        if ks == 2:
            A(f"s_lshr_b32 {s(sL)}, {s(sW)}, 1")
            A(f"s_lshl_b32 {s(sL)}, {s(sL)}, 5")
            A(f"s_and_b32 {s(sT0)}, {s(sW)}, 1")
            A(f"s_lshl_b32 {s(sT0)}, {s(sT0)}, 2")
            A(f"s_add_u32 {s(sL)}, {s(sL)}, {s(sT0)}")
            A(f"s_add_u32 {s(sL)}, {s(sL)}, {8*g}")
        else:
            A(f"s_lshl_b32 {s(sL)}, {s(sW)}, 2")
            A(f"s_add_u32 {s(sL)}, {s(sL)}, {16*g}")
        A(f"s_lshl_b32 {s(sT0)}, {s(sQb)}, 3")
        A(f"s_add_u32 {s(sG)}, {s(sL)}, {s(sT0)}")
        A(f"s_and_b32 {s(sG)}, {s(sG)}, 63")
        A(f"s_lshl_b32 {s(sG)}, {s(sG)}, 10")
        A(f"s_add_u32 {s(sG)}, {s(sG)}, {s(sHb)}")
        A(f"s_lshl_b32 {s(sL)}, {s(sL)}, 10")
        for reg, wsb in ((KR, WS_KF), (VR, WS_VF)):
            A(f"s_add_u32 m0, {s(sL)}, {reg}")
            A(f"s_add_u32 {s(sT0)}, {s(sG)}, {wsb}")
            for i in range(4):
                A(f"buffer_load_dwordx4 {v(vL16)}, {s(sO,4)}, {s(sT0)} offen offset:{i*1024} lds")
    A("s_waitcnt vmcnt(0)")
    A("s_barrier")
    if prio: A("s_setprio 1")
    A.label("KM_OLD1")
    A(f"s_cmp_lg_u64 {s(bad,2)}, 0")
    A(f"s_cbranch_scc1 KM_SLOW")
    A(f"ds_read_b128 {v(Kf[0],4)}, {v(vK)}")
    A(f"ds_read_b128 {v(Kf[1],4)}, {v(vK)} offset:1024")
    A(f"ds_read_b128 {v(Vf0[0],4)}, {v(vV)}")
    A("s_waitcnt lgkmcnt(2)")
    for b in range(nqb):
        A(f"{mf} {v(QB[b]['S'][0],16)}, {v(Kf[0],4)}, {v(Q[b],4)}, {v(QB[b]['C'],16)}")
    sA1i = S.alloc()
    a1it = 3 if ks == 1 else 1
    A(f"s_cmp_lt_u32 {s(sW8)}, 4")
    A(f"s_cselect_b32 {s(sA1i)}, {a1it}, -1")
    sPFl = S.alloc()
    A(f"s_cselect_b32 {s(sPFl)}, 0, 32768")
    A(f"s_mov_b32 {s(sIt)}, 0")
    A.label("KM_LOOP")
    A(f"s_cmp_lg_u32 {s(sIt)}, {s(sA1i)}")
    A(f"s_cbranch_scc1 KM_NOSYNC")
    A("s_barrier")
    A.label("KM_NOSYNC")
    if prio:
        A(f"s_cmp_lg_u32 {s(sIt)}, {PRIO_IT if ks == 1 else PRIO_IT // 2}")
        A(f"s_cbranch_scc1 KM_NP2")
        A("s_setprio 0")
        A.label("KM_NP2")
    npf = 3 if ks == 1 else 6
    A(f"s_cmp_ge_u32 {s(sPFo)}, {s(sPFl)}")
    A(f"s_cbranch_scc1 KM_NOPF")
    for i in range(npf):
        if i == 4: A(f"s_add_u32 {s(sT0)}, {s(sPFo)}, 4096")
        A(f"buffer_load_dwordx4 {v(vPF,4)}, {v(vL16)}, {s(sPF,4)}, {s(sPFo if i < 4 else sT0)} offen offset:{(i&3)*1024}")
    A(f"s_add_u32 {s(sPFo)}, {s(sPFo)}, {npf*1024}")
    A.label("KM_NOPF")
    for t in range(4):
        cur, nxt = t & 1, (t + 1) & 1
        A("s_waitcnt lgkmcnt(0)")
        for b in range(nqb):
            q = QB[b]; Sx = q["S"][cur]; Sn = q["S"][nxt]; P = q["P"]; O = q["O"]
            ex = [f"v_exp_f32 {v(Sx+i)}, {v(Sx+i)}" for i in range(16)]
            cv = [f"v_cvt_pk_bf16_f32 {v(P+i)}, {v(Sx+2*i)}, {v(Sx+2*i+1)}" for i in range(8)]
            A(f"{mf} {v(Sn,16)}, {v(Kf[nxt],4)}, {v(Q[b],4)}, {v(q['C'],16)}")
            for x in ex[0:4]: A(x)
            A(cv[0])
            for x in ex[4:6]: A(x)
            A(cv[1])
            A(f"{mf} {v(O,16)}, {v(Vf1[nxt],4)}, {v(P+4,4)}, {v(O,16)}")
            if b == 0:
                A(f"ds_read_b128 {v(Kf[cur],4)}, {v(vK)} offset:{(t+2)*1024}")
                A(f"ds_read_b128 {v(Vf0[nxt],4)}, {v(vV)} offset:{(t+1)*1024}")
                A(f"ds_read_b128 {v(Vf1[cur],4)}, {v(vV)} offset:{t*1024+512}")
            for x in ex[6:8]: A(x)
            A(cv[2])
            for x in ex[8:10]: A(x)
            A(cv[3])
            for x in ex[10:12]: A(x)
            A(cv[4])
            A(f"{mf} {v(O,16)}, {v(Vf0[cur],4)}, {v(P,4)}, {v(O,16)}")
            for x in ex[12:14]: A(x)
            A(cv[5])
            for x in ex[14:16]: A(x)
            A(cv[6])
            A(cv[7])
    A(f"v_add_u32 {v(vK)}, 4096, {v(vK)}")
    A(f"v_add_u32 {v(vV)}, {v(vVinc)}, {v(vV)}")
    A(f"s_add_u32 {s(sIt)}, {s(sIt)}, 1")
    A(f"s_cmp_lt_u32 {s(sIt)}, {NT//4}")
    A(f"s_cbranch_scc1 KM_LOOP")
    A("s_waitcnt lgkmcnt(0)")
    for b in range(nqb):
        A(f"{mf} {v(QB[b]['O'],16)}, {v(Vf1[1],4)}, {v(QB[b]['P']+4,4)}, {v(QB[b]['O'],16)}")
    A("s_branch KM_FIN")
    A.label("KM_SLOW")
    A(f"s_cmp_ge_u32 {s(sW8)}, 4")
    A(f"s_cbranch_scc1 KM_SLOW2")
    A("s_barrier")
    A.label("KM_SLOW2")
    for b in range(nqb):
        A(f"v_mov_b32 {v(QB[b]['C'])}, {f2u(-3.0e38):#x}")
    A(f"s_mov_b32 {s(sIt)}, 0")
    A.label("KM_SLOOP")
    A(f"ds_read_b128 {v(Kf[0],4)}, {v(vK)}")
    A(f"ds_read_b128 {v(Vf0[0],4)}, {v(vV)}")
    A(f"ds_read_b128 {v(Vf1[0],4)}, {v(vV)} offset:512")
    A("s_waitcnt lgkmcnt(0)")
    for b in range(nqb):
        q = QB[b]; Sx = q["S"][0]; P = q["P"]; O = q["O"]; m = q["C"]; mn = q["C"] + 1; al = q["C"] + 2
        A(f"{mf} {v(Sx,16)}, {v(Kf[0],4)}, {v(Q[b],4)}, 0")
        A(f"v_max_f32 {v(mn)}, {v(Sx)}, {v(Sx+1)}")
        for i in range(2, 16): A(f"v_max_f32 {v(mn)}, {v(mn)}, {v(Sx+i)}")
        swap_add(A, mn, vT1, "v_max_f32")
        A(f"v_max_f32 {v(mn)}, {v(mn)}, {v(m)}")
        A(f"v_sub_f32 {v(al)}, {v(m)}, {v(mn)}")
        A(f"v_exp_f32 {v(al)}, {v(al)}")
        A(f"v_mov_b32 {v(m)}, {v(mn)}")
        for i in range(16): A(f"v_sub_f32 {v(Sx+i)}, {v(Sx+i)}, {v(mn)}")
        for i in range(16): A(f"v_exp_f32 {v(Sx+i)}, {v(Sx+i)}")
        for i in range(16): A(f"v_mul_f32 {v(O+i)}, {v(al)}, {v(O+i)}")
        for i in range(8): A(f"v_cvt_pk_bf16_f32 {v(P+i)}, {v(Sx+2*i)}, {v(Sx+2*i+1)}")
        A(f"{mf} {v(O,16)}, {v(Vf0[0],4)}, {v(P,4)}, {v(O,16)}")
        A(f"{mf} {v(O,16)}, {v(Vf1[0],4)}, {v(P+4,4)}, {v(O,16)}")
    A(f"v_add_u32 {v(vK)}, 1024, {v(vK)}")
    A(f"v_lshrrev_b32 {v(vT0)}, 2, {v(vVinc)}")
    A(f"v_add_u32 {v(vV)}, {v(vT0)}, {v(vV)}")
    A(f"s_add_u32 {s(sIt)}, {s(sIt)}, 1")
    A(f"s_cmp_lt_u32 {s(sIt)}, {NT}")
    A(f"s_cbranch_scc1 KM_SLOOP")
    A(f"s_mov_b32 {s(sIt)}, -1")
    A.label("KM_FIN")
    if prio: A("s_setprio 0")
    K.stamp()
    if ks == 2:
        vM = [V.alloc(), V.alloc()]
        for b in range(2): A(f"v_sub_f32 {v(vM[b])}, 0, {v(QB[b]['C'])}")
        A(f"s_cmp_lg_u32 {s(sIt)}, -1")
        A(f"s_cbranch_scc1 KM_F1")
        for b in range(2): A(f"v_mov_b32 {v(vM[b])}, {v(QB[b]['C'])}")
        A.label("KM_F1")
        snd = QB[0]["S"][0]; kp = QB[0]["S"][1]
        A(f"s_cmp_eq_u32 {s(sKh)}, 0")
        A(f"s_cbranch_scc1 KM_F2")
        for r in range(9):
            A(f"v_mov_b32 {v(snd+r)}, {v(QB[0]['O']+r)}"); A(f"v_mov_b32 {v(kp+r)}, {v(QB[1]['O']+r)}")
        A(f"v_mov_b32 {v(snd+9)}, {v(vM[0])}"); A(f"v_mov_b32 {v(kp+9)}, {v(vM[1])}")
        A("s_branch KM_F3")
        A.label("KM_F2")
        for r in range(9):
            A(f"v_mov_b32 {v(snd+r)}, {v(QB[1]['O']+r)}"); A(f"v_mov_b32 {v(kp+r)}, {v(QB[0]['O']+r)}")
        A(f"v_mov_b32 {v(snd+9)}, {v(vM[1])}"); A(f"v_mov_b32 {v(kp+9)}, {v(vM[0])}")
        A.label("KM_F3")
        A("s_barrier")
        A(f"s_mul_i32 {s(sT0)}, {s(sW8)}, 2560")
        A(f"v_lshlrev_b32 {v(vT2)}, 2, {v(vLane)}")
        A(f"v_add_u32 {v(vT0)}, {s(sT0)}, {v(vT2)}")
        for r in range(10): A(f"ds_write_b32 {v(vT0)}, {v(snd+r)} offset:{r*256}")
        A("s_waitcnt lgkmcnt(0)")
        A("s_barrier")
        A(f"s_xor_b32 {s(sT0)}, {s(sW8)}, 4")
        A(f"s_mul_i32 {s(sT0)}, {s(sT0)}, 2560")
        A(f"v_add_u32 {v(vT0)}, {s(sT0)}, {v(vT2)}")
        for r in range(10): A(f"ds_read_b32 {v(snd+r)}, {v(vT0)} offset:{r*256}")
        A("s_waitcnt lgkmcnt(0)")
        A(f"v_max_f32 {v(vT0)}, {v(kp+9)}, {v(snd+9)}")
        A(f"v_sub_f32 {v(vT1)}, {v(kp+9)}, {v(vT0)}")
        A(f"v_sub_f32 {v(vT2)}, {v(snd+9)}, {v(vT0)}")
        A(f"v_exp_f32 {v(vT1)}, {v(vT1)}")
        A(f"v_exp_f32 {v(vT2)}, {v(vT2)}")
        for r in range(9): A(f"v_mul_f32 {v(kp+r)}, {v(vT1)}, {v(kp+r)}")
        for r in range(9): A(f"v_fmac_f32 {v(kp+r)}, {v(vT2)}, {v(snd+r)}")
        Of = kp
        A(f"s_add_u32 {s(sQt)}, {s(sQt)}, {s(sKh)}")
    else:
        Of = QB[0]["O"]
    A(f"v_rcp_f32 {v(vT0)}, {v(Of+8)}")
    for r in range(8): A(f"v_mul_f32 {v(Of+r)}, {v(vT0)}, {v(Of+r)}")
    pk = QB[0]["P"]
    for i in range(4): A(f"v_cvt_pk_bf16_f32 {v(pk+i)}, {v(Of+2*i)}, {v(Of+2*i+1)}")
    A(f"s_lshl_b32 {s(sT0)}, {s(sQt)}, 15")
    A(f"s_lshl_b32 {s(sT1)}, {s(sHead)}, 10")
    A(f"s_add_u32 {s(sT0)}, {s(sT0)}, {s(sT1)}")
    A(f"s_add_u32 {s(sT0)}, {s(sT0)}, {WS_OF}")
    A(f"buffer_store_dwordx4 {v(pk,4)}, {v(vL16)}, {s(sO,4)}, {s(sT0)} offen sc1")
    A("s_waitcnt vmcnt(0)")
    A("s_barrier")
    K.stamp()
    V.release(mkV); S.release(mkS)
    sRt, sCt, sR128, sCt4, sTb, sTr, sTi, sQbS = [S.alloc() for _ in range(8)]
    A(f"s_mov_b32 {s(sQbS)}, {s(sJ2)}")
    A(f"s_mov_b32 {s(sXcd)}, {s(sXc)}")
    A(f"s_and_b32 {s(sJ)}, {s(sTk)}, 31")
    A(f"s_and_b32 {s(sJ3)}, {s(sJ)}, 3")
    A(f"s_lshr_b32 {s(sJ2)}, {s(sJ)}, 2")
    A(f"s_lshl_b32 {s(sRt)}, {s(sXcd)}, 2")
    A(f"s_add_u32 {s(sRt)}, {s(sRt)}, {s(sJ3)}")
    A(f"s_mov_b32 {s(sCt)}, {s(sJ2)}")
    A(f"s_and_b32 {s(sTr)}, {s(sW8)}, 1")
    A(f"s_bfe_u32 {s(sTb)}, {s(sW8)}, 0x10001")
    A(f"s_lshr_b32 {s(sTi)}, {s(sW8)}, 2")
    A(f"s_lshl_b32 {s(sR128)}, {s(sXcd)}, 1")
    A(f"s_and_b32 {s(sT0)}, {s(sJ)}, 1")
    A(f"s_add_u32 {s(sR128)}, {s(sR128)}, {s(sT0)}")
    A(f"s_lshr_b32 {s(sCt4)}, {s(sJ)}, 1")
    vBl = V.alloc(); vWoff = V.alloc(); vW1off = V.alloc()
    tr_pi_base(A, vBl, vLane, vHf, vT0, vT1)
    sB1, sB2 = S.alloc(), S.alloc()
    sRw1 = S.alloc(4); sRw2 = S.alloc(4)
    def dma_w1(p):
        A(f"s_lshl_b32 {s(sT1)}, {s(sW)}, 12")
        for c in range(4):
            for q in range(4):
                A(f"s_add_u32 m0, {s(sT1)}, {W1 + p*65536 + c*16384 + q*1024}")
                A(f"s_add_u32 {s(sT0)}, {s(sB1)}, {(128*c + 8*q)*3584 + p*128}")
                A(f"buffer_load_dwordx4 {v(vW1off)}, {s(sRw1,4)}, {s(sT0)} offen lds")
    def dma_w2(c):
        A(f"s_lshl_b32 {s(sT1)}, {s(sW)}, 15")
        for q in range(8):
            A(f"s_add_u32 m0, {s(sT1)}, {W2 + (c&3)*8192 + q*1024}")
            A(f"s_add_u32 {s(sT0)}, {s(sB2)}, {(64*c + 8*q)*1024}")
            A(f"buffer_load_dwordx4 {v(vWoff)}, {s(sRw2,4)}, {s(sT0)} offen lds")
    def dma_w1_all8(p):
        A(f"s_lshl_b32 {s(sT1)}, {s(sW8)}, 13")
        A(f"s_mul_i32 {s(sB)}, {s(sW8)}, {64*3584}")
        A(f"s_lshl_b32 {s(sT0)}, {s(sCt4)}, 8")
        A(f"s_add_u32 {s(sB)}, {s(sB)}, {s(sT0)}")
        for q in range(8):
            A(f"s_add_u32 m0, {s(sT1)}, {W1 + p*65536 + q*1024}")
            A(f"s_add_u32 {s(sT0)}, {s(sB)}, {8*q*3584 + p*128}")
            A(f"buffer_load_dwordx4 {v(vW1off)}, {s(sRw1,4)}, {s(sT0)} offen lds")
    def dma_w2_lo8():
        A(f"s_lshr_b32 {s(sT1)}, {s(sW8)}, 2")
        A(f"s_mul_i32 {s(sB)}, {s(sT1)}, {448*1024}")
        A(f"s_lshl_b32 {s(sT0)}, {s(sCt)}, 7")
        A(f"s_add_u32 {s(sB)}, {s(sB)}, {s(sT0)}")
        A(f"s_lshl_b32 {s(sT0)}, {s(sW)}, 16")
        A(f"s_add_u32 {s(sB)}, {s(sB)}, {s(sT0)}")
        A(f"s_lshl_b32 {s(sT1)}, {s(sW8)}, 13")
        for q in range(8):
            A(f"s_add_u32 m0, {s(sT1)}, {W2 + q*1024}")
            A(f"s_add_u32 {s(sT0)}, {s(sB)}, {8*q*1024}")
            A(f"buffer_load_dwordx4 {v(vWoff)}, {s(sRw2,4)}, {s(sT0)} offen lds")
    def dma_w2_hi_upper():
        A(f"s_lshr_b32 {s(sT1)}, {s(sW)}, 1")
        A(f"s_add_u32 {s(sT1)}, {s(sT1)}, 2")
        A(f"s_mul_i32 {s(sB)}, {s(sT1)}, {448*1024}")
        A(f"s_lshl_b32 {s(sT0)}, {s(sCt)}, 7")
        A(f"s_add_u32 {s(sB)}, {s(sB)}, {s(sT0)}")
        A(f"s_and_b32 {s(sT0)}, {s(sW)}, 1")
        A(f"s_lshl_b32 {s(sT0)}, {s(sT0)}, 17")
        A(f"s_add_u32 {s(sB)}, {s(sB)}, {s(sT0)}")
        A(f"s_lshl_b32 {s(sT1)}, {s(sW)}, 14")
        for q in range(16):
            A(f"s_add_u32 m0, {s(sT1)}, {W2 + 65536 + q*1024}")
            A(f"s_add_u32 {s(sT0)}, {s(sB)}, {8*q*1024}")
            A(f"buffer_load_dwordx4 {v(vWoff)}, {s(sRw2,4)}, {s(sT0)} offen lds")
    sW2b, sW2l = S.alloc(), S.alloc()
    def w2_all16_setup():
        A(f"s_lshr_b32 {s(sT1)}, {s(sW8)}, 1")
        A(f"s_mul_i32 {s(sW2b)}, {s(sT1)}, {448*1024}")
        A(f"s_lshl_b32 {s(sT0)}, {s(sCt)}, 7")
        A(f"s_add_u32 {s(sW2b)}, {s(sW2b)}, {s(sT0)}")
        A(f"s_and_b32 {s(sT0)}, {s(sW8)}, 1")
        A(f"s_lshl_b32 {s(sT0)}, {s(sT0)}, 17")
        A(f"s_add_u32 {s(sW2b)}, {s(sW2b)}, {s(sT0)}")
        A(f"s_lshl_b32 {s(sW2l)}, {s(sW8)}, 14")
    def w2_piece(pc):
        A(f"s_add_u32 m0, {s(sW2l)}, {W2 + pc*1024}")
        A(f"s_add_u32 {s(sW2b)}, {s(sW2b)}, {8192 if pc else 0}")
        A(f"buffer_load_dwordx4 {v(vWoff)}, {s(sRw2,4)}, {s(sW2b)} offen lds")
    def if_upper(tag, body):
        A(f"s_cmp_lt_u32 {s(sW8)}, 4")
        A(f"s_cbranch_scc1 KM_NU_{tag}")
        body()
        A.label(f"KM_NU_{tag}")
    def dma_wo():
        mk = V.mark()
        vXoff = V.alloc()
        A(f"s_and_b32 {s(sT0)}, {s(sW)}, 1")
        A(f"s_lshl_b32 {s(sT0)}, {s(sT0)}, 2")
        A(f"v_lshrrev_b32 {v(vT0)}, 4, {v(vLane)}")
        A(f"v_or_b32 {v(vT0)}, {s(sT0)}, {v(vT0)}")
        A(f"v_and_b32 {v(vT1)}, 7, {v(vLane)}")
        A(f"v_xor_b32 {v(vT0)}, {v(vT0)}, {v(vT1)}")
        A(f"v_lshlrev_b32 {v(vT0)}, 4, {v(vT0)}")
        A(f"v_lshrrev_b32 {v(vT1)}, 3, {v(vLane)}")
        A(f"v_lshlrev_b32 {v(vT1)}, 10, {v(vT1)}")
        A(f"v_add_u32 {v(vXoff)}, {v(vT0)}, {v(vT1)}")
        srd(A, sRa, sPwo, 512 * 512 * 2)
        srd(A, sRb, sPx, 2048 * 512 * 2)
        A(f"s_lshl_b32 {s(sB)}, {s(sW)}, 17")
        A(f"s_lshl_b32 {s(sT0)}, {s(sCt)}, 7")
        A(f"s_add_u32 {s(sB)}, {s(sB)}, {s(sT0)}")
        A(f"s_lshl_b32 {s(sT1)}, {s(sW)}, 14")
        for g in range(16):
            A(f"s_add_u32 m0, {s(sT1)}, {WO + g*1024}")
            A(f"s_add_u32 {s(sT0)}, {s(sB)}, {g*8192}")
            A(f"buffer_load_dwordx4 {v(vWoff)}, {s(sRa,4)}, {s(sT0)} offen lds")
        A(f"s_lshl_b32 {s(sB)}, {s(sRt)}, 16")
        A(f"s_lshl_b32 {s(sT0)}, {s(sCt)}, 7")
        A(f"s_add_u32 {s(sB)}, {s(sB)}, {s(sT0)}")
        A(f"s_lshl_b32 {s(sT0)}, {s(sW)}, 13")
        A(f"s_add_u32 {s(sB)}, {s(sB)}, {s(sT0)}")
        A(f"s_lshl_b32 {s(sT1)}, {s(sW)}, 10")
        for n in range(2):
            A(f"s_add_u32 m0, {s(sT1)}, {XT + n*4096}")
            A(f"s_add_u32 {s(sT0)}, {s(sB)}, {n*32768}")
            A(f"buffer_load_dwordx4 {v(vXoff)}, {s(sRb,4)}, {s(sT0)} offen lds")
        A(f"s_mul_i32 {s(sB1)}, {s(sW)}, {32*3584}")
        A(f"s_lshl_b32 {s(sT0)}, {s(sCt4)}, 8")
        A(f"s_add_u32 {s(sB1)}, {s(sB1)}, {s(sT0)}")
        A(f"s_mul_i32 {s(sB2)}, {s(sW)}, {448*1024}")
        A(f"s_lshl_b32 {s(sT0)}, {s(sCt)}, 7")
        A(f"s_add_u32 {s(sB2)}, {s(sB2)}, {s(sT0)}")
        A("s_waitcnt vmcnt(0)")
        V.release(mk)
    w_voff(A, vWoff, vLane, 1024, vT0, vT1)
    w_voff(A, vW1off, vLane, 3584, vT0, vT1)
    srd(A, sRw1, sP1, 512 * 1792 * 2)
    srd(A, sRw2, sP2, 1792 * 512 * 2)
    if_upper("wo", dma_wo)
    def w0_sync2():
        cnt_off(sCn, 0, lambda d: A(f"s_mov_b32 {s(d)}, {s(sQbS)}"))
        signal(sCn)
        cnt_off(sCn, 0, lambda d: A(f"s_mov_b32 {s(d)}, {s(sXcd)}"))
        poll(sCn, 32, "2")
    hpk4 = hpk
    mkC = V.mark()
    Af = [V.alloc(4) for _ in range(8)]
    acc = [V.alloc(16) for _ in range(2)]
    Bf = [[V.alloc(4) for _ in range(2)] for _ in range(2)]
    vB = V.alloc(); xr = V.alloc(4)
    sKq = S.alloc()
    A(f"s_lshr_b32 {s(sKq)}, {s(sW8)}, 1")
    A(f"s_lshl_b32 {s(sT0)}, {s(sKq)}, 14")
    A(f"v_add_u32 {v(vB)}, {s(sT0)}, {v(vBl)}")
    A(f"s_lshl_b32 {s(sB)}, {s(sRt)}, 16")
    A(f"s_lshl_b32 {s(sT0)}, {s(sTr)}, 15")
    A(f"s_add_u32 {s(sB)}, {s(sB)}, {s(sT0)}")
    A(f"s_lshl_b32 {s(sT0)}, {s(sKq)}, 13")
    A(f"s_add_u32 {s(sB)}, {s(sB)}, {s(sT0)}")
    A(f"s_add_u32 {s(sB)}, {s(sB)}, {WS_OF}")
    sB4 = S.alloc()
    A(f"s_add_u32 {s(sB4)}, {s(sB)}, 4096")
    only_wave0("2", w0_sync2)
    A("s_barrier")
    K.stamp()
    for i in range(8):
        A(f"buffer_load_dwordx4 {v(Af[i],4)}, {v(vL16)}, {s(sO,4)}, {s(sB if i < 4 else sB4)} offen offset:{(i&3)*1024} sc1")
    def rd3(i):
        for b in range(2):
            A(f"ds_read_b64_tr_b16 {v(Bf[i&1][b],2)}, {v(vB)} offset:{WO + i*2048 + b*512}")
            A(f"ds_read_b64_tr_b16 {v(Bf[i&1][b]+2,2)}, {v(vB)} offset:{WO + i*2048 + b*512 + 1024}")
    rd3(0)
    A(f"v_lshrrev_b32 {v(vT2)}, 1, {v(vTok)}")
    A(f"v_and_b32 {v(vT2)}, 7, {v(vT2)}")
    A(f"s_lshl_b32 {s(sT0)}, {s(sTr)}, 12")
    A(f"s_add_u32 {s(sT0)}, {s(sT0)}, {XT}")
    A(f"v_lshlrev_b32 {v(vT1)}, 7, {v(vTok)}")
    A(f"v_lshl_add_u32 {v(vT1)}, {v(vHf)}, 3, {v(vT1)}")
    A(f"v_add_u32 {v(vT1)}, {s(sT0)}, {v(vT1)}")
    A(f"s_lshl_b32 {s(sT1)}, {s(sTb)}, 2")
    A(f"s_lshl_b32 {s(sT0)}, {s(sTi)}, 1")
    A(f"s_add_u32 {s(sT1)}, {s(sT1)}, {s(sT0)}")
    for a_ in range(2):
        A(f"s_add_u32 {s(sT0)}, {s(sT1)}, {a_}")
        A(f"v_xor_b32 {v(vT0)}, {s(sT0)}, {v(vT2)}")
        A(f"v_lshl_add_u32 {v(vT0)}, {v(vT0)}, 4, {v(vT1)}")
        A(f"ds_read_b64 {v(xr+2*a_,2)}, {v(vT0)}")
    for i in range(8):
        if i + 1 < 8:
            rd3(i + 1)
            A(f"s_waitcnt lgkmcnt(4)")
        else:
            A(f"s_waitcnt lgkmcnt(0)")
        A(f"s_waitcnt vmcnt({7-i})")
        for b in range(2):
            A(f"v_mfma_f32_32x32x16_bf16 {v(acc[b],16)}, {v(Bf[i&1][b],4)}, {v(Af[i],4)}, {'0' if i == 0 else v(acc[b],16)}")
    A(f"s_lshl_b32 {s(sT0)}, {s(sTr)}, 14")
    A(f"s_lshl_b32 {s(sT1)}, {s(sKq)}, 12")
    A(f"s_add_u32 {s(sT0)}, {s(sT0)}, {s(sT1)}")
    A(f"s_add_u32 {s(sT0)}, {s(sT0)}, {RED}")
    A(f"v_add_u32 {v(vT0)}, {s(sT0)}, {v(vL16)}")
    for b in range(2):
        for q in range(4):
            A(f"ds_write_b128 {v(vT0)}, {v(acc[b]+4*q,4)} offset:{b*32768 + q*1024}")
    A("s_waitcnt lgkmcnt(0)")
    A("s_barrier")
    K.stamp()
    def own_reduce(REDB, dst):
        A(f"s_lshl_b32 {s(sT0)}, {s(sW)}, 14")
        A(f"s_lshl_b32 {s(sT1)}, {s(sTi)}, 11")
        A(f"s_add_u32 {s(sT0)}, {s(sT0)}, {s(sT1)}")
        A(f"s_add_u32 {s(sT0)}, {s(sT0)}, {REDB}")
        A(f"v_add_u32 {v(vT0)}, {s(sT0)}, {v(vL16)}")
        for p in range(4):
            for q in range(2):
                A(f"ds_read_b128 {v(dst+8*p+4*q,4)}, {v(vT0)} offset:{p*4096 + q*1024}")
        A("s_waitcnt lgkmcnt(4)")
        for r in range(8): A(f"v_add_f32 {v(dst+r)}, {v(dst+r)}, {v(dst+8+r)}")
        A("s_waitcnt lgkmcnt(0)")
        for r in range(8): A(f"v_add_f32 {v(dst+16+r)}, {v(dst+16+r)}, {v(dst+24+r)}")
        for r in range(8): A(f"v_add_f32 {v(dst+r)}, {v(dst+r)}, {v(dst+16+r)}")
    def w1p0():
        A(f"s_cmp_ge_u32 {s(sJ)}, 28")
        A(f"s_cbranch_scc1 KM_NW1A")
        dma_w1(0)
        A.label("KM_NW1A")
    out = Af[0]
    own_reduce(RED, out)
    un = acc[0]
    for i in range(4):
        A(f"v_lshlrev_b32 {v(un+2*i)}, 16, {v(xr+i)}")
        A(f"v_and_b32 {v(un+2*i+1)}, 0xffff0000, {v(xr+i)}")
    for r in range(8): A(f"v_add_f32 {v(out+r)}, {v(out+r)}, {v(un+r)}")
    for i in range(4): A(f"v_cvt_pk_bf16_f32 {v(hpk4+i)}, {v(out+2*i)}, {v(out+2*i+1)}")
    sR32o, sKs = S.alloc(), S.alloc()
    A(f"s_lshl_b32 {s(sR32o)}, {s(sRt)}, 1")
    A(f"s_add_u32 {s(sR32o)}, {s(sR32o)}, {s(sTr)}")
    A(f"s_lshl_b32 {s(sKs)}, {s(sCt)}, 2")
    A(f"s_lshl_b32 {s(sT0)}, {s(sTb)}, 1")
    A(f"s_add_u32 {s(sKs)}, {s(sKs)}, {s(sT0)}")
    A(f"s_add_u32 {s(sKs)}, {s(sKs)}, {s(sTi)}")
    A(f"s_lshl_b32 {s(sB)}, {s(sR32o)}, 15")
    A(f"s_lshl_b32 {s(sT0)}, {s(sKs)}, 10")
    A(f"s_add_u32 {s(sB)}, {s(sB)}, {s(sT0)}")
    A(f"s_add_u32 {s(sB)}, {s(sB)}, {WS_HF}")
    A(f"buffer_store_dwordx4 {v(hpk4,4)}, {v(vL16)}, {s(sO,4)}, {s(sB)} offen" + LSC)
    for i in range(4):
        A(f"v_lshlrev_b32 {v(un+2*i)}, 16, {v(hpk4+i)}")
        A(f"v_and_b32 {v(un+2*i+1)}, 0xffff0000, {v(hpk4+i)}")
    st = acc[1]
    A(f"v_add_f32 {v(st)}, {v(un)}, {v(un+1)}")
    A(f"v_mul_f32 {v(st+1)}, {v(un)}, {v(un)}")
    A(f"v_fmac_f32 {v(st+1)}, {v(un+1)}, {v(un+1)}")
    for r in range(2, 8):
        A(f"v_add_f32 {v(st)}, {v(st)}, {v(un+r)}")
        A(f"v_fmac_f32 {v(st+1)}, {v(un+r)}, {v(un+r)}")
    swap_add(A, st, vT1)
    swap_add(A, st + 1, vT2)
    A(f"s_lshl_b32 {s(sT0)}, {s(sW8)}, 8")
    A(f"s_add_u32 {s(sT0)}, {s(sT0)}, {STP}")
    A(f"v_lshl_add_u32 {v(vT0)}, {v(vTok)}, 3, {s(sT0)}")
    A(f"ds_write_b64 {v(vT0)}, {v(st,2)}")
    A("s_waitcnt lgkmcnt(0)")
    A("s_barrier")
    A(f"s_cmp_ge_u32 {s(sW8)}, 2")
    A(f"s_cbranch_scc1 KM_NHS")
    for p in range(4): A(f"ds_read_b64 {v(st+2*p,2)}, {v(vT0)} offset:{p*512}")
    A("s_waitcnt lgkmcnt(0)")
    for c in range(2):
        A(f"v_add_f32 {v(st+c)}, {v(st+c)}, {v(st+2+c)}")
        A(f"v_add_f32 {v(st+4+c)}, {v(st+4+c)}, {v(st+6+c)}")
    for c in range(2): A(f"v_add_f32 {v(st+c)}, {v(st+c)}, {v(st+4+c)}")
    A(f"s_lshl_b32 {s(sT0)}, {s(sR32o)}, 11")
    A(f"s_lshl_b32 {s(sT1)}, {s(sCt)}, 8")
    A(f"s_add_u32 {s(sT0)}, {s(sT0)}, {s(sT1)}")
    A(f"s_add_u32 {s(sT0)}, {s(sT0)}, {WS_HS}")
    A(f"v_lshlrev_b32 {v(vT0)}, 3, {v(vTok)}")
    A("s_mov_b32 exec_hi, 0")
    A(f"buffer_store_dwordx2 {v(st,2)}, {v(vT0)}, {s(sO,4)}, {s(sT0)} offen" + LSC)
    A("s_mov_b64 exec, -1")
    A.label("KM_NHS")
    A(f"s_cmp_ge_u32 {s(sJ)}, 28")
    A(f"s_cbranch_scc1 KM_NW1A")
    dma_w1_all8(0)
    A("s_waitcnt vmcnt(8) lgkmcnt(0)")
    A("s_branch KM_NW1B")
    A.label("KM_NW1A")
    dma_w2_lo8()
    A("s_waitcnt vmcnt(8) lgkmcnt(0)")
    A.label("KM_NW1B")
    A("s_barrier")
    K.stamp()
    V.release(mkC)
    def sig3():
        def idx(d):
            A(f"s_lshl_b32 {s(d)}, {s(sXcd)}, 1")
            A(f"s_lshr_b32 {s(sT0)}, {s(sJ3)}, 1")
            A(f"s_add_u32 {s(d)}, {s(d)}, {s(sT0)}")
        cnt_off(sCn, 2048, idx)
        signal(sCn, LOCAL)
    only_wave0("3s", sig3)
    A(f"s_cmp_ge_u32 {s(sJ)}, 28")
    A(f"s_cbranch_scc1 KM_NOP4")
    if_upper("w1", lambda: dma_w1(1))
    A("s_waitcnt vmcnt(0)") if False else None
    def w0_sync3():
        cnt_off(sCn, 2048, lambda d: A(f"s_mov_b32 {s(d)}, {s(sR128)}"))
        poll(sCn, 16, "3")
    mk4 = V.mark()
    Af = [V.alloc(4) for _ in range(16)]
    acc = [V.alloc(16) for _ in range(4)]
    Bf = [[V.alloc(4) for _ in range(4)] for _ in range(2)]
    csa = [V.alloc(4)]; msk = V.alloc(4)
    vB = [V.alloc() for _ in range(4)]; vB2 = [V.alloc() for _ in range(4)]
    hs = V.alloc(8); vb1 = V.alloc()
    sR32 = S.alloc(); sQ = [S.alloc() for _ in range(4)]
    srd(A, sRa, sP1 + 2, 1792 * 2)
    A(f"s_lshl_b32 {s(sR32)}, {s(sR128)}, 2")
    A(f"s_add_u32 {s(sR32)}, {s(sR32)}, {s(sW)}")
    A(f"v_lshlrev_b32 {v(vT1)}, 2, {v(vLane)}")
    A(f"s_lshl_b32 {s(sT1)}, {s(sCt4)}, 8")
    A(f"buffer_load_dword {v(vb1)}, {v(vT1)}, {s(sRa,4)}, {s(sT1)} offen")
    for q in range(4):
        A(f"s_xor_b32 {s(sQ[q])}, {s(sW)}, {q}")
        A(f"s_lshl_b32 {s(sQ[q])}, {s(sQ[q])}, 10")
    A(f"s_lshl_b32 {s(sT1)}, {s(sTi)}, 15")
    for q in range(4):
        A(f"s_lshl_b32 {s(sT0)}, {s(sQ[q])}, 1")
        A(f"s_add_u32 {s(sT0)}, {s(sT0)}, {s(sT1)}")
        A(f"v_add_u32 {v(vB[q])}, {s(sT0)}, {v(vBl)}")
        A(f"v_add_u32 {v(vB2[q])}, 65536, {v(vB[q])}")
    A(f"s_cmp_lt_u32 {s(sW8)}, 2")
    A(f"s_cbranch_scc1 KM_NCS")
    A(f"s_cmp_ge_u32 {s(sW8)}, 4")
    A(f"s_cbranch_scc1 KM_NCS")
    A(f"s_and_b32 {s(sT0)}, {s(sW8)}, 1")
    A(f"s_lshl_b32 {s(sT0)}, {s(sT0)}, 8")
    A(f"v_lshlrev_b32 {v(vT1)}, 2, {v(vLane)}")
    A(f"v_add_u32 {v(vT1)}, {s(sT0)}, {v(vT1)}")
    A(f"s_lshl_b32 {s(sT0)}, {s(sCt4)}, 9")
    A(f"s_add_u32 {s(sT0)}, {s(sT0)}, {WS_CSG}")
    for kc in range(8):
        A(f"buffer_load_dword {v(hs+kc)}, {v(vT1)}, {s(sO,4)}, {s(sT0)} offen")
        if kc < 7: A(f"s_add_u32 {s(sT0)}, {s(sT0)}, 7168")
    A("s_waitcnt vmcnt(0)")
    for st_ in (4, 2, 1):
        for i in range(st_): A(f"v_add_f32 {v(hs+i)}, {v(hs+i)}, {v(hs+i+st_)}")
    A(f"v_add_u32 {v(vT1)}, {CS}, {v(vT1)}")
    A(f"ds_write_b32 {v(vT1)}, {v(hs)}")
    A.label("KM_NCS")
    A("s_waitcnt vmcnt(0)")
    A(f"v_lshlrev_b32 {v(hs+2)}, 16, {v(vb1)}")
    A(f"v_and_b32 {v(hs+3)}, 0xffff0000, {v(vb1)}")
    A(f"v_lshlrev_b32 {v(vT0)}, 3, {v(vLane)}")
    A(f"v_add_u32 {v(vT0)}, {BI}, {v(vT0)}")
    A(f"ds_write_b64 {v(vT0)}, {v(hs+2,2)}")
    A(f"s_lshl_b32 {s(sB)}, {s(sR32)}, 15")
    A(f"s_lshl_b32 {s(sT0)}, {s(sTi)}, 14")
    A(f"s_add_u32 {s(sB)}, {s(sB)}, {s(sT0)}")
    A(f"s_add_u32 {s(sB)}, {s(sB)}, {WS_HF}")
    sHs = S.alloc()
    A(f"s_lshl_b32 {s(sHs)}, {s(sR32)}, 11")
    A(f"s_add_u32 {s(sHs)}, {s(sHs)}, {WS_HS}")
    A(f"v_lshlrev_b32 {v(vT2)}, 3, {v(vTok)}")
    A(f"v_lshl_add_u32 {v(vT2)}, {v(vHf)}, 10, {v(vT2)}")
    for q in range(4): A(f"s_add_u32 {s(sQ[q])}, {s(sQ[q])}, {s(sB)}")
    A("s_waitcnt vmcnt(0) lgkmcnt(0)")
    only_wave0("3", w0_sync3)
    K.stamp(1)
    A("s_barrier")
    K.stamp()
    def lda4(g):
        for q in range(4):
            if g: A(f"s_add_u32 {s(sQ[q])}, {s(sQ[q])}, 4096")
            A(f"buffer_load_dwordx4 {v(Af[4*g+q],4)}, {v(vL16)}, {s(sO,4)}, {s(sQ[q])} offen" + LLD)
    lda4(0)
    for i in range(4):
        A(f"buffer_load_dwordx2 {v(hs+2*i,2)}, {v(vT2)}, {s(sO,4)}, {s(sHs)} offen offset:{i*256}" + LLD)
    lda4(1)
    def rd4(n):
        for t in range(4):
            p, b = t >> 1, t & 1
            o = (n >> 2) * 8192 + b * 512
            base = (vB if p == 0 else vB2)[n & 3]
            A(f"ds_read_b64_tr_b16 {v(Bf[n&1][t],2)}, {v(base)} offset:{o}")
            A(f"ds_read_b64_tr_b16 {v(Bf[n&1][t]+2,2)}, {v(base)} offset:{o+1024}")
    rd4(0)
    A(f"v_lshlrev_b32 {v(acc[0])}, 16, {v(vb1)}") if False else None
    for n in range(16):
        if n + 1 < 16:
            rd4(n + 1)
            A("s_waitcnt lgkmcnt(8)")
        else:
            A("s_waitcnt lgkmcnt(0)")
        if n % 4 == 0: A(f"s_waitcnt vmcnt({ {0: 8, 4: 8, 8: 4, 12: 0}[n] })")
        for t in range(4):
            A(f"v_mfma_f32_32x32x16_bf16 {v(acc[t],16)}, {v(Bf[n&1][t],4)}, {v(Af[n],4)}, {'0' if n == 0 else v(acc[t],16)}")
        if n in (0, 1): lda4(n + 2)
    K.stamp()
    for st_ in (2, 1):
        for i in range(st_):
            A(f"v_add_f32 {v(hs+2*i)}, {v(hs+2*i)}, {v(hs+2*(i+st_))}")
            A(f"v_add_f32 {v(hs+2*i+1)}, {v(hs+2*i+1)}, {v(hs+2*(i+st_)+1)}")
    swap_add(A, hs, vT1)
    swap_add(A, hs + 1, vT2)
    A("s_waitcnt lgkmcnt(0)")
    A("s_barrier")
    A(f"s_lshl_b32 {s(sT0)}, {s(sW8)}, 13")
    A(f"s_add_u32 {s(sT0)}, {s(sT0)}, 65536")
    A(f"v_add_u32 {v(vT0)}, {s(sT0)}, {v(vL16)}")
    A(f"s_cmp_eq_u32 {s(sTi)}, 0")
    A(f"s_cbranch_scc1 KM_E1")
    for t in range(2):
        for q in range(4): A(f"ds_write_b128 {v(vT0)}, {v(acc[t]+4*q,4)} offset:{t*4096 + q*1024}")
    for r in range(32): A(f"v_mov_b32 {v(acc[0]+r)}, {v(acc[2]+r)}")
    A("s_branch KM_E2")
    A.label("KM_E1")
    for t in range(2):
        for q in range(4): A(f"ds_write_b128 {v(vT0)}, {v(acc[2+t]+4*q,4)} offset:{t*4096 + q*1024}")
    A.label("KM_E2")
    A("s_waitcnt lgkmcnt(0)")
    A("s_barrier")
    K.stamp()
    A(f"s_xor_b32 {s(sT0)}, {s(sW8)}, 4")
    A(f"s_lshl_b32 {s(sT0)}, {s(sT0)}, 13")
    A(f"s_add_u32 {s(sT0)}, {s(sT0)}, 65536")
    A(f"v_add_u32 {v(vT0)}, {s(sT0)}, {v(vL16)}")
    for t in range(2):
        for q in range(4): A(f"ds_read_b128 {v(acc[2+t]+4*q,4)}, {v(vT0)} offset:{t*4096 + q*1024}")
    def R(i): return Af[0] + 16 * i
    A(f"s_lshl_b32 {s(sT0)}, {s(sTi)}, 8")
    A(f"s_add_u32 {s(sT0)}, {s(sT0)}, {CS}")
    A(f"v_lshl_add_u32 {v(vT2)}, {v(vHf)}, 4, {s(sT0)}")
    for t in range(2):
        for a_ in range(4): A(f"ds_read_b128 {v(R(t)+4*a_,4)}, {v(vT2)} offset:{t*128 + a_*32}")
    A("s_waitcnt lgkmcnt(8)")
    vMean, vRs, vMr = csa[0], csa[0] + 1, csa[0] + 2
    vC1, vC2 = msk, msk + 1
    c1 = -2.0 * 0.7978845608028654 * LOG2E
    c2 = c1 * 0.044715
    A(f"v_mul_f32 {v(vMean)}, {f2u(1/512.):#x}, {v(hs)}")
    A(f"v_mul_f32 {v(vT1)}, {v(vMean)}, {v(vMean)}")
    A(f"v_mov_b32 {v(vT0)}, {f2u(1/512.):#x}")
    A(f"v_fma_f32 {v(vT1)}, {v(hs+1)}, {v(vT0)}, -{v(vT1)}")
    A(f"v_max_f32 {v(vT1)}, 0, {v(vT1)}")
    A(f"v_add_f32 {v(hs+2)}, {f2u(1e-5):#x}, {v(vT1)}")
    A(f"v_rcp_f32 {v(vT0)}, {v(hs+2)}")
    A(f"v_rsq_f32 {v(vRs)}, {v(hs+2)}")
    A(f"v_mul_f32 {v(vT1)}, {v(vT1)}, {v(vT0)}")
    A(f"v_add_f32 {v(vT1)}, {f2u(1e-5):#x}, {v(vT1)}")
    A(f"v_rsq_f32 {v(vT1)}, {v(vT1)}")
    A(f"v_mov_b32 {v(vC1)}, {f2u(c1):#x}")
    A(f"v_mov_b32 {v(vC2)}, {f2u(c2):#x}")
    A(f"v_mul_f32 {v(vRs)}, {v(vRs)}, {v(vT1)}")
    A(f"v_mul_f32 {v(vMr)}, {v(vMean)}, {v(vRs)}")
    for t in range(2):
        for a_ in range(4): A(f"ds_read_b128 {v(R(2+t)+4*a_,4)}, {v(vT2)} offset:{512 + t*128 + a_*32}")
    for r in range(32): A(f"v_add_f32 {v(acc[0]+r)}, {v(acc[0]+r)}, {v(acc[2]+r)}")
    A(f"s_mul_i32 {s(sB)}, {s(sR32)}, {112*1024}")
    A(f"s_lshl_b32 {s(sT0)}, {s(sCt4)}, 13")
    A(f"s_add_u32 {s(sB)}, {s(sB)}, {s(sT0)}")
    A(f"s_lshl_b32 {s(sT0)}, {s(sTi)}, 12")
    A(f"s_add_u32 {s(sB)}, {s(sB)}, {s(sT0)}")
    A(f"s_add_u32 {s(sB)}, {s(sB)}, {WS_MF}")
    A("s_waitcnt lgkmcnt(0)")
    pcs = []
    def dm(): pass
    for t in range(2):
        x = acc[t]; T = R(2 + t); Z = acc[2 + t]
        for r in range(16): A(f"v_fma_f32 {v(T+r)}, -{v(vMr)}, {v(R(t)+r)}, {v(T+r)}")
        dm()
        for r in range(16): A(f"v_fma_f32 {v(x+r)}, {v(x+r)}, {v(vRs)}, {v(T+r)}")
        dm()
        for r in range(16): A(f"v_mul_f32 {v(Z+r)}, {v(x+r)}, {v(x+r)}")
        dm()
        for r in range(16): A(f"v_fma_f32 {v(Z+r)}, {v(Z+r)}, {v(vC2)}, {v(vC1)}")
        dm()
        for r in range(16): A(f"v_mul_f32 {v(Z+r)}, {v(Z+r)}, {v(x+r)}")
        dm()
        for r in range(16): A(f"v_exp_f32 {v(Z+r)}, {v(Z+r)}")
        dm()
        for r in range(16): A(f"v_add_f32 {v(Z+r)}, 1.0, {v(Z+r)}")
        dm()
        for r in range(16): A(f"v_rcp_f32 {v(Z+r)}, {v(Z+r)}")
        dm()
        for r in range(16): A(f"v_mul_f32 {v(x+r)}, {v(x+r)}, {v(Z+r)}")
        pk = R(t)
        for i in range(8): A(f"v_cvt_pk_bf16_f32 {v(pk+i)}, {v(x+2*i)}, {v(x+2*i+1)}")
        A(f"buffer_store_dwordx4 {v(pk,4)}, {v(vL16)}, {s(sO,4)}, {s(sB)} offen offset:{t*2048}" + LSC)
        A(f"buffer_store_dwordx4 {v(pk+4,4)}, {v(vL16)}, {s(sO,4)}, {s(sB)} offen offset:{t*2048+1024}" + LSC)
    assert not pcs
    dma_w2_lo8()
    A("s_waitcnt vmcnt(8)")
    A("s_barrier")
    K.stamp()
    def sig4():
        cnt_off(sCn, 6144, lambda d: A(f"s_mov_b32 {s(d)}, {s(sR128)}"))
        signal(sCn, LOCAL)
    only_wave0("4s", sig4)
    V.release(mk4)
    A.label("KM_NOP4")
    mkPR = V.mark()
    PR = V.alloc(96)
    V.release(mkPR)
    if_upper("w2", dma_w2_hi_upper)
    def w0_sync4():
        def idx(d):
            A(f"s_lshl_b32 {s(d)}, {s(sXcd)}, 1")
            A(f"s_lshr_b32 {s(sT0)}, {s(sJ3)}, 1")
            A(f"s_add_u32 {s(d)}, {s(d)}, {s(sT0)}")
        cnt_off(sCn, 6144, idx)
        poll(sCn, 14, "4")
    NW = 12
    Af = [[V.alloc(4) for _ in range(2)] for _ in range(NW)]
    acc = [V.alloc(16) for _ in range(4)]
    Bf = [[V.alloc(4) for _ in range(2)] for _ in range(2)]
    vB = V.alloc(); b2r = V.alloc(4)
    sA0, sA1 = S.alloc(), S.alloc()
    srd(A, sRa, sP2 + 2, 512 * 2)
    srd(A, sRb, sPo, 2048 * 512 * 2)
    A(f"s_lshl_b32 {s(sT0)}, {s(sCt)}, 7")
    A(f"s_lshl_b32 {s(sT1)}, {s(sTb)}, 6")
    A(f"s_add_u32 {s(sT0)}, {s(sT0)}, {s(sT1)}")
    A(f"s_lshl_b32 {s(sT1)}, {s(sTi)}, 5")
    A(f"s_add_u32 {s(sT0)}, {s(sT0)}, {s(sT1)}")
    A(f"v_lshlrev_b32 {v(vT0)}, 3, {v(vHf)}")
    for a_ in range(2):
        A(f"buffer_load_dwordx2 {v(b2r+2*a_,2)}, {v(vT0)}, {s(sRa,4)}, {s(sT0)} offen offset:{a_*16}")
    A(f"s_cmp_lt_u32 {s(sW8)}, 4")
    A(f"s_cbranch_scc1 KM_C5")
    A("s_waitcnt vmcnt(0)")
    A("s_barrier")
    for y in range(1, 7):
        if y >= 4: A(f"s_waitcnt vmcnt({8*(6-y)})")
        A("s_barrier")
        if y + 3 < 7: dma_w2(y + 3)
    A("s_barrier")
    A("s_branch KM_Z")
    A.label("KM_C5")
    A(f"s_mul_i32 {s(sA0)}, {s(sRt)}, {2*112*1024}")
    A(f"s_mul_i32 {s(sT0)}, {s(sW)}, {28*1024}")
    A(f"s_add_u32 {s(sA0)}, {s(sA0)}, {s(sT0)}")
    A(f"s_add_u32 {s(sA0)}, {s(sA0)}, {WS_MF}")
    A(f"s_add_u32 {s(sA1)}, {s(sA0)}, {112*1024}")
    A(f"s_lshl_b32 {s(sT0)}, {s(sW)}, 15")
    A(f"v_add_u32 {v(vB)}, {s(sT0)}, {v(vBl)}")
    def lda(n):
        for r, sa in ((0, sA0), (1, sA1)):
            if n % 4 == 0 and n: A(f"s_add_u32 {s(sa)}, {s(sa)}, 4096")
            A(f"buffer_load_dwordx4 {v(Af[n % NW][r],4)}, {v(vL16)}, {s(sO,4)}, {s(sa)} offen offset:{(n&3)*1024}" + LLD)
    def rd5(n):
        c, i = n >> 2, n & 3
        for b in range(2):
            o = W2 + (c & 3) * 8192 + i * 2048 + b * 512
            A(f"ds_read_b64_tr_b16 {v(Bf[n&1][b],2)}, {v(vB)} offset:{o}")
            A(f"ds_read_b64_tr_b16 {v(Bf[n&1][b]+2,2)}, {v(vB)} offset:{o+1024}")
    A("s_waitcnt vmcnt(0)")
    only_wave0("4", w0_sync4)
    K.stamp(2)
    A("s_barrier")
    K.stamp()
    issued = 3
    for n in range(issued): lda(n)
    rd5(0)
    for n in range(28):
        if n + 1 < 28:
            if (n + 1) % 4 == 0:
                A("s_waitcnt lgkmcnt(0)")
                A("s_barrier")
            rd5(n + 1)
            A("s_waitcnt lgkmcnt(4)")
        else:
            A("s_waitcnt lgkmcnt(0)")
        A(f"s_waitcnt vmcnt({2*(issued - 1 - n)})")
        for b in range(2):
            for r in range(2):
                t = 2 * b + r
                A(f"v_mfma_f32_32x32x16_bf16 {v(acc[t],16)}, {v(Bf[n&1][b],4)}, {v(Af[n%NW][r],4)}, {'0' if n == 0 else v(acc[t],16)}")
        tgt = min(28, n + 1 + WIN5, issued + 2)
        while issued < tgt:
            lda(issued); issued += 1
    K.stamp()
    A("s_barrier")
    A(f"s_lshl_b32 {s(sT0)}, {s(sW)}, 12")
    A(f"s_add_u32 {s(sT0)}, {s(sT0)}, {RED5}")
    A(f"v_add_u32 {v(vT0)}, {s(sT0)}, {v(vL16)}")
    for t in range(4):
        for q in range(4):
            A(f"ds_write_b128 {v(vT0)}, {v(acc[t]+4*q,4)} offset:{t*16384 + q*1024}")
    A("s_waitcnt lgkmcnt(0)")
    A.label("KM_Z")
    A("s_barrier")
    out = Af[0][0]
    own_reduce(RED5, out)
    un = acc[0]
    for i in range(4):
        A(f"v_lshlrev_b32 {v(un+2*i)}, 16, {v(hpk4+i)}")
        A(f"v_and_b32 {v(un+2*i+1)}, 0xffff0000, {v(hpk4+i)}")
    for r in range(8): A(f"v_add_f32 {v(out+r)}, {v(out+r)}, {v(un+r)}")
    A("s_waitcnt vmcnt(0)")
    for i in range(4):
        A(f"v_lshlrev_b32 {v(un+2*i)}, 16, {v(b2r+i)}")
        A(f"v_and_b32 {v(un+2*i+1)}, 0xffff0000, {v(b2r+i)}")
    for r in range(8): A(f"v_add_f32 {v(out+r)}, {v(out+r)}, {v(un+r)}")
    pk = acc[1]
    for i in range(4): A(f"v_cvt_pk_bf16_f32 {v(pk+i)}, {v(out+2*i)}, {v(out+2*i+1)}")
    A(f"v_permlane32_swap_b32 {v(pk)}, {v(pk+2)}")
    A(f"v_permlane32_swap_b32 {v(pk+1)}, {v(pk+3)}")
    A(f"s_lshl_b32 {s(sT0)}, {s(sRt)}, 16")
    A(f"s_lshl_b32 {s(sT1)}, {s(sTr)}, 15")
    A(f"s_add_u32 {s(sT0)}, {s(sT0)}, {s(sT1)}")
    A(f"s_lshl_b32 {s(sT1)}, {s(sCt)}, 7")
    A(f"s_add_u32 {s(sT0)}, {s(sT0)}, {s(sT1)}")
    A(f"s_lshl_b32 {s(sT1)}, {s(sTb)}, 6")
    A(f"s_add_u32 {s(sT0)}, {s(sT0)}, {s(sT1)}")
    A(f"s_lshl_b32 {s(sT1)}, {s(sTi)}, 5")
    A(f"s_add_u32 {s(sT0)}, {s(sT0)}, {s(sT1)}")
    A(f"v_lshlrev_b32 {v(vT0)}, 10, {v(vTok)}")
    A(f"v_lshl_add_u32 {v(vT0)}, {v(vHf)}, 4, {v(vT0)}")
    A(f"buffer_store_dwordx4 {v(pk,4)}, {v(vT0)}, {s(sRb,4)}, {s(sT0)} offen")
    K.stamp_out(sO, 1, vT0, vT1)
    K.rt_end(sO, 1, vT0, vT1)
    A.label(END)
    A("s_endpgm")
    print("km vgprs", V.hi, "sgprs", S.hi, "lds", K.lds)
    return K

def k1_hook(ev, K, L):
    A, V, S = K.A, K.V, K.S
    vT0, vT1, vLane, sW8, sWs = L["vT0"], L["vT1"], L["vLane"], L["sW8"], L["sWs"]
    H = K.__dict__.setdefault("_h", {})
    if ev == "start":
        H["R0"] = V.alloc(32); H["AC"] = V.alloc(8); H["UN"] = V.alloc(8); H["vo"] = V.alloc()
        H["srd"] = S.alloc(4); H["t"] = [S.alloc() for _ in range(4)]; H["p"] = S.alloc(2); H["flag"] = S.alloc()
        R0, vo, srd_, t, p, flag = H["R0"], H["vo"], H["srd"], H["t"], H["p"], H["flag"]
        A(f"s_mov_b32 {s(flag)}, 0")
        A(f"s_cmp_lg_u32 {s(sW8)}, 8")
        A(f"s_cbranch_scc1 K1_NOCS0")
        A("s_waitcnt lgkmcnt(0)")
        A(f"s_cmp_ge_u32 s2, 48")
        A(f"s_cbranch_scc1 K1_NOZ")
        srd(A, srd_, sWs, WS_SIZE)
        A(f"s_lshl_b32 {s(t[0])}, s2, 8")
        A(f"s_add_u32 {s(t[0])}, {s(t[0])}, {WS_CNT}")
        A(f"v_mov_b32 {v(vT0)}, 0")
        A(f"v_mov_b32 {v(vT1)}, 0")
        A(f"s_mov_b64 exec, 1")
        A(f"buffer_store_dword {v(vT0)}, {v(vT1)}, {s(srd_,4)}, {s(t[0])} offen")
        A(f"s_mov_b64 exec, -1")
        A.label("K1_NOZ")
        A(f"s_cmp_ge_u32 s2, 224")
        A(f"s_cbranch_scc1 K1_NOCS0")
        A(f"s_mov_b32 {s(flag)}, 1")
        A(f"s_load_dwordx2 {s(p,2)}, s[0:1], 32")
        A(f"s_mul_i32 {s(t[0])}, s2, 2341")
        A(f"s_lshr_b32 {s(t[0])}, {s(t[0])}, 16")
        A(f"s_mul_i32 {s(t[1])}, {s(t[0])}, 28")
        A(f"s_sub_u32 {s(t[1])}, s2, {s(t[1])}")
        A(f"v_lshrrev_b32 {v(vo)}, 3, {v(vLane)}")
        A(f"v_mul_u32_u24 {v(vo)}, 3584, {v(vo)}")
        A(f"v_and_b32 {v(vT0)}, 7, {v(vLane)}")
        A(f"v_lshl_add_u32 {v(vo)}, {v(vT0)}, 4, {v(vo)}")
        A(f"s_mul_i32 {s(t[2])}, {s(t[0])}, {64*3584}")
        A(f"s_lshl_b32 {s(t[3])}, {s(t[1])}, 7")
        A(f"s_add_u32 {s(t[2])}, {s(t[2])}, {s(t[3])}")
        A("s_waitcnt lgkmcnt(0)")
        srd(A, srd_, p, 512 * 1792 * 2)
        for n in range(8):
            A(f"buffer_load_dwordx4 {v(R0+4*n,4)}, {v(vo)}, {s(srd_,4)}, {s(t[2])} offen")
            A(f"s_add_u32 {s(t[2])}, {s(t[2])}, {8*3584}")
        A.label("K1_NOCS0")
        for i in range(8): A(f"v_mov_b32 {v(H['AC']+i)}, 0")
    elif ev == "end":
        R0, AC, UN, srd_, t, flag = H["R0"], H["AC"], H["UN"], H["srd"], H["t"], H["flag"]
        A(f"s_cmp_eq_u32 {s(flag)}, 0")
        A(f"s_cbranch_scc1 K1_NOCS1")
        A("s_waitcnt vmcnt(0)")
        for n in range(8):
            for i in range(4):
                A(f"v_lshlrev_b32 {v(UN+2*i)}, 16, {v(R0+4*n+i)}")
                A(f"v_and_b32 {v(UN+2*i+1)}, 0xffff0000, {v(R0+4*n+i)}")
            for i in range(8): A(f"v_add_f32 {v(AC+i)}, {v(AC+i)}, {v(UN+i)}")
        for i in range(8): A(f"v_add_f32_dpp {v(AC+i)}, {v(AC+i)}, {v(AC+i)} row_ror:8 row_mask:0xf bank_mask:0xf")
        for sw in ("v_permlane16_swap_b32", "v_permlane32_swap_b32"):
            for i in range(8): A(f"v_mov_b32 {v(UN+i)}, {v(AC+i)}")
            for i in range(8): A(f"{sw} {v(AC+i)}, {v(UN+i)}")
            for i in range(8): A(f"v_add_f32 {v(AC+i)}, {v(AC+i)}, {v(UN+i)}")
        srd(A, srd_, sWs, WS_SIZE)
        A(f"s_mul_i32 {s(t[2])}, {s(t[0])}, 7168")
        A(f"s_lshl_b32 {s(t[3])}, {s(t[1])}, 8")
        A(f"s_add_u32 {s(t[2])}, {s(t[2])}, {s(t[3])}")
        A(f"s_add_u32 {s(t[2])}, {s(t[2])}, {WS_CSG}")
        A(f"v_and_b32 {v(vT0)}, 7, {v(vLane)}")
        A(f"v_lshlrev_b32 {v(vT0)}, 5, {v(vT0)}")
        A(f"s_mov_b64 exec, 0xff")
        A(f"buffer_store_dwordx4 {v(AC,4)}, {v(vT0)}, {s(srd_,4)}, {s(t[2])} offen")
        A(f"buffer_store_dwordx4 {v(AC+4,4)}, {v(vT0)}, {s(srd_,4)}, {s(t[2])} offen offset:16")
        A.label("K1_NOCS1")

def k1z():
    G.HOOK = k1_hook
    return G.k1()

if __name__ == "__main__":
    if "stamp" in sys.argv: G.STAMP = True
    if "rt" in sys.argv: G.RT = True
    G.FLAGS = set(sys.argv[2:])
    for a_ in sys.argv[2:]:
        if a_.startswith("prioit="): PRIO_IT = int(a_.split("=")[1])
        if a_.startswith("npoll="): NPOLL = int(a_.split("=")[1])
        if a_.startswith("psleep="): PSLEEP = int(a_.split("=")[1])
    ks = [k1z(), km(1 if 'q1' in G.FLAGS else 2, prio=('noprio' not in G.FLAGS))]
    build(ks, sys.argv[1] if len(sys.argv) > 1 else "out.s")
```

```python
import sys, struct
from dsl import *

NAME = "sequential_preLN__mha_block__mixer_channel_mlp__prompt"
WS_QF = 0
WS_KF = 2 << 20
WS_VF = 4 << 20
WS_KMAX = 6 << 20
WS_OF = 8 << 20
WS_HF = 10 << 20
WS_MF = 12 << 20
WS_HS = (19 << 20) + (512 << 10)
WS_STAMP = 20 << 20
WS_STAMP2 = 22 << 20
WS_SIZE = 24 << 20
STAMP = False
RT = False
FLAGS = set()
def _flags():
    import gen as _g
    return _g.FLAGS | FLAGS
def f2u(x): return struct.unpack('<I', struct.pack('<f', x))[0]
LOG2E = 1.4426950408889634

class Kern:
    def __init__(self, name, grid, block, lds):
        self.name = name; self.grid = grid; self.block = block; self.lds = lds
        self.A = Asm()
        self.V = RegAlloc('v', 1, 256)
        self.S = RegAlloc('s', 3, 100)
        self.accum = None
        self.stamps = []
        import gen as _g; self.dostamp = _g.STAMP or STAMP
    def stamp(self, idx=None):
        if not self.dostamp: return
        if not hasattr(self, "vstamp"):
            self.vstamp = self.V.alloc(); self.nst = 0
            self.S.hi = max(self.S.hi, 100)
        if idx is None:
            idx = self.nst; self.nst += 1
        self.A("s_memtime s[98:99]")
        self.A("s_waitcnt lgkmcnt(0)")
        self.A(f"v_writelane_b32 {v(self.vstamp)}, s98, {idx}")
    def rt_begin(self):
        import gen as _g
        if not (RT or _g.RT): return
        self.rt0 = self.S.alloc(2)
        self.A(f"s_memrealtime {s(self.rt0,2)}")
        self.mt0 = self.S.alloc(2)
        self.A(f"s_memtime {s(self.mt0,2)}")
    def rt_end(self, sSrd, kidx, vt0, vt1):
        import gen as _g
        if not (RT or _g.RT): return
        A = self.A
        r1 = self.S.alloc(2); m1 = self.S.alloc(2); t = self.S.alloc(); w = self.S.alloc()
        A("s_waitcnt vmcnt(0)")
        A(f"s_memrealtime {s(r1,2)}")
        A(f"s_memtime {s(m1,2)}")
        A("s_mov_b64 exec, -1")
        A(f"v_lshrrev_b32 {v(vt0)}, 6, v0")
        A("s_nop 1")
        A(f"v_readfirstlane_b32 {s(w)}, {v(vt0)}")
        A(f"s_lshl_b32 {s(t)}, s2, 4")
        A(f"s_add_u32 {s(t)}, {s(t)}, {s(w)}")
        A(f"s_lshl_b32 {s(t)}, {s(t)}, 4")
        A(f"s_add_u32 {s(t)}, {s(t)}, {WS_STAMP + 0x40000 + kidx*0x10000}")
        A("s_waitcnt lgkmcnt(0)")
        A(f"s_sub_u32 {s(m1)}, {s(m1)}, {s(self.mt0)}")
        A("s_mov_b64 exec, 1")
        A(f"v_mov_b32 {v(vt1)}, 0")
        for i, r in enumerate((self.rt0, r1, m1)):
            A(f"v_mov_b32 {v(vt0)}, {s(r)}")
            A(f"buffer_store_dword {v(vt0)}, {v(vt1)}, {s(sSrd,4)}, {s(t)} offen offset:{4*i}")
    def stamp_out(self, sSrd, kidx, vt0, vt1, final=None):
        if not self.dostamp: return
        A = self.A
        self.stamp(final)
        A("s_mov_b64 exec, -1")
        A(f"v_lshrrev_b32 {v(vt0)}, 6, v0")
        A("s_nop 1")
        A(f"v_readfirstlane_b32 s97, {v(vt0)}")
        A(f"s_lshl_b32 s96, s2, 4")
        A(f"s_add_u32 s96, s96, s97")
        A(f"s_lshl_b32 s96, s96, 7")
        A(f"s_add_u32 s96, s96, {WS_STAMP2 + kidx*0x80000}")
        A(f"v_and_b32 {v(vt1)}, 63, v0")
        A(f"v_lshlrev_b32 {v(vt1)}, 2, {v(vt1)}")
        A("s_mov_b64 exec, 0xffffffff")
        A(f"buffer_store_dword {v(self.vstamp)}, {v(vt1)}, {s(sSrd,4)}, s96 offen")
    def finish(self, agprs=0):
        self.A.fix_hazards()
        nv = self.V.hi
        acc = (nv + 3) // 4 * 4
        tot = acc + agprs if agprs else nv
        assert acc <= 256 or agprs == 0 or True
        txt = f".globl {self.name}\n.p2align 8\n.type {self.name},@function\n{self.name}:\n" + self.A.text()
        kd = f""".amdhsa_kernel {self.name}
  .amdhsa_next_free_vgpr {tot}
  .amdhsa_next_free_sgpr {max(self.S.hi, 16)}
  .amdhsa_accum_offset {min(acc, 256)}
  .amdhsa_group_segment_fixed_size 0
  .amdhsa_kernarg_size 88
  .amdhsa_user_sgpr_count 2
  .amdhsa_user_sgpr_kernarg_segment_ptr 1
  .amdhsa_system_sgpr_workgroup_id_x 1
.end_amdhsa_kernel
"""
        return txt, kd

def srd(A, sd, sptr, nbytes):
    A(f"s_mov_b32 {s(sd)}, {s(sptr)}")
    A(f"s_and_b32 {s(sd+1)}, {s(sptr+1)}, 0xffff")
    A(f"s_mov_b32 {s(sd+2)}, {nbytes}")
    A(f"s_mov_b32 {s(sd+3)}, 0x20000")

def swap_add(A, x, t, op="v_add_f32"):
    A(f"v_mov_b32 {v(t)}, {v(x)}")
    A(f"v_permlane32_swap_b32 {v(x)}, {v(t)}")
    A(f"{op} {v(x)}, {v(x)}, {v(t)}")

def tr_base(A, vdst, vLane, vHf, t0, t1, hfmul_rows, add=0):
    A(f"v_and_b32 {v(t0)}, 15, {v(vLane)}")
    A(f"v_lshrrev_b32 {v(t1)}, 2, {v(t0)}")
    sh = {8: 3, 4: 2}[hfmul_rows]
    A(f"v_lshl_add_u32 {v(t1)}, {v(vHf)}, {sh}, {v(t1)}")
    A(f"v_lshlrev_b32 {v(t1)}, 6, {v(t1)}")
    A(f"v_and_b32 {v(t0)}, 3, {v(t0)}")
    A(f"v_lshl_add_u32 {v(t1)}, {v(t0)}, 3, {v(t1)}")
    A(f"v_bfe_u32 {v(t0)}, {v(vLane)}, 4, 1")
    A(f"v_lshl_add_u32 {v(vdst)}, {v(t0)}, 5, {v(t1)}")
    if add: A(f"v_add_u32 {v(vdst)}, {add}, {v(vdst)}")

HOOK = None
def k1():
    import gen as _g
    K1SC = ' sc1' if 'k1sc1' in _flags() else (' nt' if 'k1nt' in _flags() else '')
    HOOK = _g.HOOK
    XR = 0; WR = 32768; CS = WR + 4 * 24576; ST = CS + 1536
    K = Kern("k1_qkv_kernel", (256, 1, 1), (768, 1, 1), ST + 2048)
    A, V, S = K.A, K.V, K.S
    END = "K1_END"
    sP = S.alloc(4); sWs = S.alloc(2)
    K.sWs = sWs
    A(f"s_load_dwordx4 {s(sP,4)}, s[0:1], 0")
    A(f"s_load_dwordx2 {s(sWs,2)}, s[0:1], 80")
    A(f"s_cmp_ge_u32 s2, 256")
    A(f"s_cbranch_scc1 {END}")
    K.rt_begin()
    K.stamp()
    sX = S.alloc(4); sWq = S.alloc(4); sO = S.alloc(4)
    sW8, sW, sXcd, sJ, sRt, sHq, sRot, sT0, sT1, sXb, sWb, sLx, sLw, sx, sw, sTt, sCh = [S.alloc() for _ in range(17)]
    vLane, vT0, vT1, vT2, vHf, vTok = [V.alloc() for _ in range(6)]
    K.vT = (vT0, vT1); K.sW8 = sW8
    A(f"v_lshrrev_b32 {v(vT0)}, 6, v0")
    A(f"v_and_b32 {v(vLane)}, 63, v0")
    A(f"v_readfirstlane_b32 {s(sW8)}, {v(vT0)}")
    A(f"s_and_b32 {s(sXcd)}, s2, 7")
    A(f"s_lshr_b32 {s(sJ)}, s2, 3")
    A(f"s_and_b32 {s(sW)}, {s(sW8)}, 3")
    A(f"s_and_b32 {s(sT0)}, {s(sXcd)}, 3")
    A(f"s_lshl_b32 {s(sT0)}, {s(sT0)}, 3")
    A(f"s_and_b32 {s(sT1)}, {s(sJ)}, 7")
    A(f"s_add_u32 {s(sRt)}, {s(sT0)}, {s(sT1)}")
    A(f"s_lshr_b32 {s(sT0)}, {s(sXcd)}, 2")
    A(f"s_lshl_b32 {s(sT0)}, {s(sT0)}, 2")
    A(f"s_lshr_b32 {s(sHq)}, {s(sJ)}, 3")
    A(f"s_lshl_b32 {s(sRot)}, {s(sHq)}, 1")
    A(f"s_add_u32 {s(sRot)}, {s(sRot)}, {s(sT1)}")
    A(f"s_add_u32 {s(sRot)}, {s(sRot)}, {s(sXcd)}")
    A(f"s_add_u32 {s(sHq)}, {s(sHq)}, {s(sT0)}")
    A(f"s_and_b32 {s(sTt)}, {s(sW)}, 1")
    A(f"s_lshr_b32 {s(sCh)}, {s(sW)}, 1")
    A(f"s_cmp_lt_u32 {s(sW8)}, 4")
    A(f"s_cbranch_scc1 K1_COMPUTE")
    A(f"s_cmp_ge_u32 {s(sW8)}, 8")
    A(f"s_cbranch_scc1 K1_STATS")
    m0_ = V.mark()
    vWoff = V.alloc()
    A(f"s_mul_i32 {s(sWb)}, {s(sW)}, {8*3072}")
    A(f"s_lshl_b32 {s(sT0)}, {s(sHq)}, 7")
    A(f"s_add_u32 {s(sWb)}, {s(sWb)}, {s(sT0)}")
    A(f"s_lshl_b32 {s(sLx)}, {s(sW)}, 10")
    A(f"s_add_u32 {s(sLw)}, {s(sLx)}, {WR}")
    A(f"v_bfe_u32 {v(vT0)}, {v(vLane)}, 2, 3")
    A(f"v_mul_u32_u24 {v(vT0)}, 3072, {v(vT0)}")
    A(f"v_and_b32 {v(vT1)}, 3, {v(vLane)}")
    A(f"v_lshl_add_u32 {v(vT0)}, {v(vT1)}, 4, {v(vT0)}")
    A(f"v_lshrrev_b32 {v(vT1)}, 5, {v(vLane)}")
    A(f"v_lshl_add_u32 {v(vWoff)}, {v(vT1)}, 6, {v(vT0)}")
    A("s_waitcnt lgkmcnt(0)")
    srd(A, sWq, sP + 2, 512 * 1536 * 2)
    def dma_w(st):
        slot = st & 3
        A(f"s_add_u32 {s(sT0)}, {s(sRot)}, {st}")
        A(f"s_and_b32 {s(sT0)}, {s(sT0)}, 7")
        A(f"s_mul_i32 {s(sw)}, {s(sT0)}, {64*3072}")
        A(f"s_add_u32 {s(sw)}, {s(sw)}, {s(sWb)}")
        for b in range(3):
            for n in range(2):
                A(f"s_add_u32 m0, {s(sLw)}, {slot*24576 + b*8192 + n*4096}")
                A(f"s_add_u32 {s(sT1)}, {s(sw)}, {b*1024 + n*32*3072}")
                A(f"buffer_load_dwordx4 {v(vWoff)}, {s(sWq,4)}, {s(sT1)} offen lds")
    vXoffL = V.alloc()
    A(f"s_lshl_b32 {s(sXb)}, {s(sRt)}, 16")
    A(f"s_lshl_b32 {s(sT0)}, {s(sW)}, 13")
    A(f"s_add_u32 {s(sXb)}, {s(sXb)}, {s(sT0)}")
    A(f"s_lshl_b32 {s(sT0)}, {s(sTt)}, 2")
    A(f"v_lshrrev_b32 {v(vT0)}, 4, {v(vLane)}")
    A(f"v_or_b32 {v(vT0)}, {s(sT0)}, {v(vT0)}")
    A(f"v_and_b32 {v(vT1)}, 7, {v(vLane)}")
    A(f"v_xor_b32 {v(vT0)}, {v(vT0)}, {v(vT1)}")
    A(f"v_lshlrev_b32 {v(vT0)}, 4, {v(vT0)}")
    A(f"v_lshrrev_b32 {v(vT1)}, 3, {v(vLane)}")
    A(f"v_lshlrev_b32 {v(vT1)}, 10, {v(vT1)}")
    A(f"v_add_u32 {v(vXoffL)}, {v(vT0)}, {v(vT1)}")
    srd(A, sX, sP, 2048 * 512 * 2)
    def dma_xl(st):
        slot = st & 3
        A(f"s_add_u32 {s(sT0)}, {s(sRot)}, {st}")
        A(f"s_and_b32 {s(sT0)}, {s(sT0)}, 7")
        A(f"s_lshl_b32 {s(sx)}, {s(sT0)}, 7")
        A(f"s_add_u32 {s(sx)}, {s(sx)}, {s(sXb)}")
        for n in range(2):
            A(f"s_add_u32 m0, {s(sLx)}, {XR + slot*8192 + n*4096}")
            A(f"s_add_u32 {s(sT1)}, {s(sx)}, {n*32768}")
            A(f"buffer_load_dwordx4 {v(vXoffL)}, {s(sX,4)}, {s(sT1)} offen lds")
    def dma_stage(st): dma_xl(st); dma_w(st)
    dma_stage(0); dma_stage(1)
    A("s_waitcnt vmcnt(8)")
    A("s_barrier")
    dma_stage(2); dma_stage(3)
    for sp in range(1, 8):
        vm = {1: 16, 2: 16, 3: 16, 4: 16, 5: 16, 6: 8, 7: 0}[sp]
        A(f"s_waitcnt vmcnt({vm})")
        A("s_barrier")
        if sp + 3 < 8: dma_stage(sp + 3)
    A("s_endpgm")
    V.release(m0_)
    def x_addrs(vXA):
        A(f"v_lshrrev_b32 {v(vHf)}, 5, {v(vLane)}")
        A(f"v_and_b32 {v(vTok)}, 31, {v(vLane)}")
        A(f"v_lshrrev_b32 {v(vT2)}, 1, {v(vTok)}")
        A(f"v_and_b32 {v(vT2)}, 7, {v(vT2)}")
        A(f"s_lshl_b32 {s(sT1)}, {s(sTt)}, 12")
        for i in range(4):
            A(f"v_add_u32 {v(vT0)}, {2*i}, {v(vHf)}")
            A(f"v_xor_b32 {v(vT0)}, {v(vT0)}, {v(vT2)}")
            A(f"v_lshlrev_b32 {v(vT0)}, 4, {v(vT0)}")
            A(f"v_lshl_add_u32 {v(vT0)}, {v(vTok)}, 7, {v(vT0)}")
            A(f"v_add_u32 {v(vXA[i])}, {s(sT1)}, {v(vT0)}")
    def w_addr(vWA):
        A(f"v_and_b32 {v(vT0)}, 15, {v(vLane)}")
        A(f"v_lshrrev_b32 {v(vT1)}, 2, {v(vT0)}")
        A(f"v_lshlrev_b32 {v(vT1)}, 6, {v(vT1)}")
        A(f"v_lshl_add_u32 {v(vT1)}, {v(vHf)}, 10, {v(vT1)}")
        A(f"v_and_b32 {v(vT0)}, 3, {v(vT0)}")
        A(f"v_lshl_add_u32 {v(vT1)}, {v(vT0)}, 3, {v(vT1)}")
        A(f"v_bfe_u32 {v(vT0)}, {v(vLane)}, 4, 1")
        A(f"v_lshl_add_u32 {v(vT1)}, {v(vT0)}, 5, {v(vT1)}")
        A(f"v_add_u32 {v(vWA)}, {WR}, {v(vT1)}")
    A.label("K1_STATS")
    vXA = [V.alloc() for _ in range(2)]
    Xf = [V.alloc(4) for _ in range(2)]
    un = V.alloc(8); sq = V.alloc(8); sm = V.alloc(8); vMask = V.alloc()
    A(f"v_lshrrev_b32 {v(vHf)}, 5, {v(vLane)}")
    A(f"v_and_b32 {v(vTok)}, 31, {v(vLane)}")
    A(f"v_lshrrev_b32 {v(vT2)}, 1, {v(vTok)}")
    A(f"v_and_b32 {v(vT2)}, 7, {v(vT2)}")
    A(f"s_lshl_b32 {s(sT1)}, {s(sTt)}, 12")
    for jx in range(2):
        A(f"s_lshl_b32 {s(sT0)}, {s(sCh)}, 1")
        A(f"s_add_u32 {s(sT0)}, {s(sT0)}, {4*jx}")
        A(f"v_add_u32 {v(vT0)}, {s(sT0)}, {v(vHf)}")
        A(f"v_xor_b32 {v(vT0)}, {v(vT0)}, {v(vT2)}")
        A(f"v_lshlrev_b32 {v(vT0)}, 4, {v(vT0)}")
        A(f"v_lshl_add_u32 {v(vT0)}, {v(vTok)}, 7, {v(vT0)}")
        A(f"v_add_u32 {v(vXA[jx])}, {s(sT1)}, {v(vT0)}")
    A(f"v_mov_b32 {v(vMask)}, 0xffff0000")
    for i in range(8):
        A(f"v_mov_b32 {v(sq+i)}, 0"); A(f"v_mov_b32 {v(sm+i)}, 0")
    XH = 0
    if HOOK: HOOK("start", K, locals())
    def sstage(st):
        if "nos" in _flags(): return
        slot = st & 3
        for jx in range(2):
            A(f"ds_read_b128 {v(Xf[jx],4)}, {v(vXA[jx])} offset:{XR + slot*8192}")
        for jx in range(2):
            A(f"s_waitcnt lgkmcnt({1-jx})")
            for i in range(4):
                A(f"v_lshlrev_b32 {v(un+2*i)}, 16, {v(Xf[jx]+i)}")
                A(f"v_and_b32 {v(un+2*i+1)}, {v(vMask)}, {v(Xf[jx]+i)}")
            for i in range(8):
                A(f"v_fmac_f32 {v(sq+i)}, {v(un+i)}, {v(un+i)}")
                A(f"v_add_f32 {v(sm+i)}, {v(un+i)}, {v(sm+i)}")
    for st in range(8):
        A("s_barrier")
        sstage(st)
    for L in (sq, sm):
        for st in (4, 2, 1):
            for i in range(st): A(f"v_add_f32 {v(L+i)}, {v(L+i)}, {v(L+i+st)}")
    swap_add(A, sm, vT1)
    swap_add(A, sq, vT2)
    A(f"s_lshl_b32 {s(sT0)}, {s(sW)}, 8")
    A(f"s_add_u32 {s(sT0)}, {s(sT0)}, {ST}")
    A(f"v_lshl_add_u32 {v(vT0)}, {v(vTok)}, 2, {s(sT0)}")
    A(f"ds_write_b32 {v(vT0)}, {v(sm)}")
    A(f"ds_write_b32 {v(vT0)}, {v(sq)} offset:128")
    A("s_waitcnt lgkmcnt(0)")
    A("s_barrier")
    if HOOK: HOOK("end", K, locals())
    A("s_endpgm")
    V.release(m0_)
    A.label("K1_COMPUTE")
    vXA = [V.alloc() for _ in range(4)]; vWA = [V.alloc() for _ in range(4)]
    acc = [V.alloc(16) for _ in range(3)]
    mk = V.mark()
    csa = [V.alloc(4) for _ in range(3)]; msk = V.alloc(4)
    Xf = [V.alloc(4) for _ in range(2)]
    Wf = [[V.alloc(4) for _ in range(3)] for _ in range(2)]
    A(f"v_lshrrev_b32 {v(vHf)}, 5, {v(vLane)}")
    A(f"v_and_b32 {v(vTok)}, 31, {v(vLane)}")
    A(f"v_lshrrev_b32 {v(vT2)}, 1, {v(vTok)}")
    A(f"v_and_b32 {v(vT2)}, 7, {v(vT2)}")
    A(f"s_lshl_b32 {s(sT1)}, {s(sTt)}, 12")
    for pos in range(4):
        A(f"s_xor_b32 {s(sT0)}, {s(sTt)}, {pos}")
        A(f"s_lshl_b32 {s(sT0)}, {s(sT0)}, 1")
        A(f"v_add_u32 {v(vT0)}, {s(sT0)}, {v(vHf)}")
        A(f"v_xor_b32 {v(vT0)}, {v(vT0)}, {v(vT2)}")
        A(f"v_lshlrev_b32 {v(vT0)}, 4, {v(vT0)}")
        A(f"v_lshl_add_u32 {v(vT0)}, {v(vTok)}, 7, {v(vT0)}")
        A(f"v_add_u32 {v(vXA[pos])}, {s(sT1)}, {v(vT0)}")
    w_addr(vWA[0])
    A(f"s_lshl_b32 {s(sw)}, {s(sCh)}, 9")
    A(f"s_lshl_b32 {s(sT0)}, {s(sTt)}, 11")
    A(f"s_sub_u32 {s(sT1)}, {s(sw)}, {s(sT0)}")
    A(f"s_add_u32 {s(sw)}, {s(sw)}, {s(sT0)}")
    A(f"v_add_u32 {v(vWA[1])}, {s(sT1)}, {v(vWA[0])}")
    A(f"v_add_u32 {v(vWA[0])}, {s(sw)}, {v(vWA[0])}")
    A(f"v_add_u32 {v(vWA[2])}, {2*24576}, {v(vWA[0])}")
    A(f"v_add_u32 {v(vWA[3])}, {2*24576}, {v(vWA[1])}")
    A(f"v_and_b32 {v(vT0)}, 15, {v(vLane)}")
    A(f"v_bfe_u32 {v(vT1)}, {v(vLane)}, 4, 1")
    A(f"v_cmp_eq_u32 vcc, {v(vT0)}, {v(vT1)}")
    A(f"v_mov_b32 {v(vT0)}, 0x3f803f80")
    for i in range(4): A(f"v_cndmask_b32 {v(msk+i)}, 0, {v(vT0)}, vcc")
    def reads(n):
        if "noc" in _flags() or "noread" in _flags(): return
        slot = (n >> 2) & 3; pos = n & 3; bf = n & 1
        A(f"ds_read_b128 {v(Xf[bf],4)}, {v(vXA[pos])} offset:{XR + slot*8192}")
        wa = vWA[(pos & 1) + (2 if slot >= 2 else 0)]
        for b in range(3):
            o = (slot & 1) * 24576 + b * 8192 + pos * 2048
            A(f"ds_read_b64_tr_b16 {v(Wf[bf][b],2)}, {v(wa)} offset:{o}")
            A(f"ds_read_b64_tr_b16 {v(Wf[bf][b]+2,2)}, {v(wa)} offset:{o+256}")
    def compute(n):
        if "noc" in _flags(): return
        bf = n & 1
        c = lambda b: "0" if n == 0 else v(acc[b], 16)
        cs_ = (n & 1) == 0
        def mc(b):
            if cs_: A(f"v_mfma_f32_16x16x32_bf16 {v(csa[b],4)}, {v(Wf[bf][b],4)}, {v(msk,4)}, {'0' if n == 0 else v(csa[b],4)}")
        A(f"v_mfma_f32_32x32x16_bf16 {v(acc[0],16)}, {v(Wf[bf][0],4)}, {v(Xf[bf],4)}, {c(0)}")
        mc(0)
        A(f"v_mfma_f32_32x32x16_bf16 {v(acc[1],16)}, {v(Wf[bf][1],4)}, {v(Xf[bf],4)}, {c(1)}")
        mc(1)
        A(f"v_mfma_f32_32x32x16_bf16 {v(acc[2],16)}, {v(Xf[bf],4)}, {v(Wf[bf][2],4)}, {c(2)}")
        mc(2)
    A("s_waitcnt lgkmcnt(0)")
    srd(A, sO, sWs, WS_SIZE)
    sTile, sHp, sQo, sKo, sVo = [S.alloc() for _ in range(5)]
    sSave = S.alloc(2)
    A(f"s_lshl_b32 {s(sTile)}, {s(sRt)}, 1")
    A(f"s_add_u32 {s(sTile)}, {s(sTile)}, {s(sTt)}")
    A(f"s_lshl_b32 {s(sHp)}, {s(sHq)}, 1")
    A(f"s_add_u32 {s(sHp)}, {s(sHp)}, {s(sCh)}")
    A(f"s_lshl_b32 {s(sT0)}, {s(sHp)}, 17")
    A(f"s_lshl_b32 {s(sT1)}, {s(sTile)}, 10")
    A(f"s_add_u32 {s(sQo)}, {s(sT0)}, {s(sT1)}")
    A(f"s_add_u32 {s(sKo)}, {s(sQo)}, {WS_KF}")
    A(f"s_add_u32 {s(sVo)}, {s(sQo)}, {WS_VF}")
    K.stamp()
    A("s_barrier")
    K.stamp()
    reads(0)
    for n in range(32):
        if n + 1 < 32:
            if (n + 1) % 4 == 0:
                sp = (n + 1) // 4
                A(f"s_waitcnt lgkmcnt(0)")
                A("s_barrier")
                if sp in (2, 4, 6): K.stamp()
            reads(n + 1)
            A("s_waitcnt lgkmcnt(7)")
        else:
            A("s_waitcnt lgkmcnt(0)")
        compute(n)
    K.stamp()
    A(f"v_and_b32 {v(vT0)}, 15, {v(vLane)}")
    A(f"v_lshrrev_b32 {v(vT1)}, 4, {v(vLane)}")
    A(f"v_lshlrev_b32 {v(vT1)}, 4, {v(vT1)}")
    A(f"v_lshl_add_u32 {v(vT1)}, {v(vT0)}, 6, {v(vT1)}")
    A(f"s_mul_i32 {s(sx)}, {s(sTt)}, 768")
    A(f"s_lshl_b32 {s(sw)}, {s(sCh)}, 7")
    A(f"s_add_u32 {s(sx)}, {s(sx)}, {s(sw)}")
    A(f"s_add_u32 {s(sx)}, {s(sx)}, {CS}")
    A(f"v_add_u32 {v(vT1)}, {s(sx)}, {v(vT1)}")
    A(f"v_cmp_gt_u32 vcc, 2, {v(vT0)}")
    A(f"s_and_saveexec_b64 {s(sSave,2)}, vcc")
    for b in range(3): A(f"ds_write_b128 {v(vT1)}, {v(csa[b],4)} offset:{b*256}")
    A(f"s_mov_b64 exec, {s(sSave,2)}")
    A("s_waitcnt lgkmcnt(0)")
    A("s_barrier")
    K.stamp()
    V.release(mk)
    csr = V.alloc(16); csr2 = V.alloc(16); st1 = V.alloc(16); st2 = V.alloc(16)
    vCv, vMean, vRstd, vL16, vRq = [V.alloc() for _ in range(5)]
    A(f"s_lshl_b32 {s(sx)}, {s(sTt)}, 8")
    A(f"s_add_u32 {s(sx)}, {s(sx)}, {ST}")
    A(f"v_lshl_add_u32 {v(vT1)}, {v(vTok)}, 2, {s(sx)}")
    p4 = V.alloc(4)
    A(f"ds_read_b32 {v(p4)}, {v(vT1)}")
    A(f"ds_read_b32 {v(p4+1)}, {v(vT1)} offset:512")
    A(f"ds_read_b32 {v(p4+2)}, {v(vT1)} offset:128")
    A(f"ds_read_b32 {v(p4+3)}, {v(vT1)} offset:640")
    A(f"s_lshl_b32 {s(sw)}, {s(sCh)}, 7")
    A(f"s_add_u32 {s(sw)}, {s(sw)}, {CS}")
    A(f"v_lshl_add_u32 {v(vT0)}, {v(vHf)}, 4, {s(sw)}")
    for a_ in range(4):
        A(f"ds_read_b128 {v(csr+4*a_,4)}, {v(vT0)} offset:{a_*32}")
    for a_ in range(4):
        A(f"ds_read_b128 {v(st1+4*a_,4)}, {v(vT0)} offset:{768+a_*32}")
    A("s_waitcnt lgkmcnt(4)")
    for a_ in range(4):
        A(f"ds_read_b128 {v(csr2+4*a_,4)}, {v(vT0)} offset:{256+a_*32}")
    for a_ in range(4):
        A(f"ds_read_b128 {v(st2+4*a_,4)}, {v(vT0)} offset:{768+256+a_*32}")
    A(f"v_lshl_add_u32 {v(vT1)}, {v(vTok)}, 2, {s(sw)}")
    vCv2 = V.alloc()
    A(f"ds_read_b32 {v(vCv)}, {v(vT1)} offset:512")
    A(f"ds_read_b32 {v(vCv2)}, {v(vT1)} offset:{768+512}")
    A("s_waitcnt lgkmcnt(10)")
    for r in range(16): A(f"v_add_f32 {v(csr+r)}, {v(csr+r)}, {v(st1+r)}")
    A("s_waitcnt lgkmcnt(0)")
    for r in range(16): A(f"v_add_f32 {v(csr2+r)}, {v(csr2+r)}, {v(st2+r)}")
    A(f"v_add_f32 {v(vCv)}, {v(vCv)}, {v(vCv2)}")
    A(f"v_lshlrev_b32 {v(vL16)}, 4, {v(vLane)}")
    pk = V.alloc(8); pk2 = V.alloc(8); pk3 = pk
    vMr = p4 + 1
    A(f"v_add_f32 {v(p4)}, {v(p4)}, {v(p4+1)}")
    A(f"v_add_f32 {v(p4+2)}, {v(p4+2)}, {v(p4+3)}")
    A(f"v_mul_f32 {v(vMean)}, {f2u(1/512.):#x}, {v(p4)}")
    A(f"v_mul_f32 {v(vT1)}, {v(vMean)}, {v(vMean)}")
    A(f"v_mov_b32 {v(vT2)}, {f2u(1/512.):#x}")
    A(f"v_fma_f32 {v(vT1)}, {v(p4+2)}, {v(vT2)}, -{v(vT1)}")
    A(f"v_max_f32 {v(vT1)}, 0, {v(vT1)}")
    A(f"v_add_f32 {v(vT1)}, {f2u(1e-5):#x}, {v(vT1)}")
    A(f"v_rsq_f32 {v(vRstd)}, {v(vT1)}")
    A(f"v_mul_f32 {v(vMr)}, {v(vMean)}, {v(vRstd)}")
    A(f"s_lshl_b32 {s(sx)}, {s(sW)}, 8")
    A(f"s_add_u32 {s(sx)}, {s(sx)}, {ST + 1024}")
    A(f"v_lshl_add_u32 {v(vT1)}, {v(vTok)}, 2, {s(sx)}")
    A(f"ds_write_b32 {v(vT1)}, {v(vMr)}")
    A(f"ds_write_b32 {v(vT1)}, {v(vRstd)} offset:128")
    A(f"v_lshl_add_u32 {v(vT0)}, {v(vHf)}, 4, {s(sx)}")
    A(f"v_mul_f32 {v(vRq)}, {f2u(LOG2E*0.25):#x}, {v(vRstd)}")
    A("s_waitcnt lgkmcnt(0)")
    for a_ in range(4):
        A(f"ds_read_b128 {v(st1+4*a_,4)}, {v(vT0)} offset:{a_*32}")
    for a_ in range(4):
        A(f"ds_read_b128 {v(st2+4*a_,4)}, {v(vT0)} offset:{128+a_*32}")
    for r in range(16):
        A(f"v_fma_f32 {v(acc[0]+r)}, -{v(vMean)}, {v(csr+r)}, {v(acc[0]+r)}")
    for r in range(16):
        A(f"v_mul_f32 {v(acc[0]+r)}, {v(vRq)}, {v(acc[0]+r)}")
    for i in range(8):
        A(f"v_cvt_pk_bf16_f32 {v(pk+i)}, {v(acc[0]+2*i)}, {v(acc[0]+2*i+1)}")
    A(f"buffer_store_dwordx4 {v(pk,4)}, {v(vL16)}, {s(sO,4)}, {s(sQo)} offen" + K1SC)
    A(f"s_add_u32 {s(sT0)}, {s(sQo)}, 65536")
    A(f"buffer_store_dwordx4 {v(pk+4,4)}, {v(vL16)}, {s(sO,4)}, {s(sT0)} offen" + K1SC)
    for r in range(16):
        A(f"v_fma_f32 {v(acc[1]+r)}, -{v(vMean)}, {v(csr2+r)}, {v(acc[1]+r)}")
    for r in range(16):
        A(f"v_mul_f32 {v(acc[1]+r)}, {v(vRstd)}, {v(acc[1]+r)}")
    for i in range(8):
        A(f"v_cvt_pk_bf16_f32 {v(pk2+i)}, {v(acc[1]+2*i)}, {v(acc[1]+2*i+1)}")
    A(f"buffer_store_dwordx4 {v(pk2,4)}, {v(vL16)}, {s(sO,4)}, {s(sKo)} offen" + K1SC)
    A(f"s_add_u32 {s(sT0)}, {s(sKo)}, 65536")
    A(f"buffer_store_dwordx4 {v(pk2+4,4)}, {v(vL16)}, {s(sO,4)}, {s(sT0)} offen" + K1SC)
    A("s_waitcnt lgkmcnt(0)")
    for r in range(16):
        A(f"v_mul_f32 {v(st1+r)}, {v(vCv)}, {v(st1+r)}")
    for r in range(16):
        A(f"v_fma_f32 {v(acc[2]+r)}, {v(acc[2]+r)}, {v(st2+r)}, -{v(st1+r)}")
    for i in range(8):
        A(f"v_cvt_pk_bf16_f32 {v(pk3+i)}, {v(acc[2]+2*i)}, {v(acc[2]+2*i+1)}")
    A(f"v_lshrrev_b32 {v(vT0)}, 4, {v(vTok)}")
    A(f"v_lshlrev_b32 {v(vT0)}, 16, {v(vT0)}")
    A(f"v_lshl_add_u32 {v(vT0)}, {v(vHf)}, 8, {v(vT0)}")
    A(f"v_and_b32 {v(vT1)}, 15, {v(vTok)}")
    A(f"v_lshl_add_u32 {v(vT0)}, {v(vT1)}, 4, {v(vT0)}")
    A(f"buffer_store_dwordx4 {v(pk3,4)}, {v(vT0)}, {s(sO,4)}, {s(sVo)} offen" + K1SC)
    A(f"buffer_store_dwordx4 {v(pk3+4,4)}, {v(vT0)}, {s(sO,4)}, {s(sVo)} offen offset:512" + K1SC)
    K.stamp()
    vN = [V.alloc(), V.alloc()]
    for e in range(2):
        for i in range(4):
            A(f"v_lshlrev_b32 {v(csr+2*i)}, 16, {v(pk2+4*e+i)}")
            A(f"v_and_b32 {v(csr+2*i+1)}, 0xffff0000, {v(pk2+4*e+i)}")
        A(f"v_mul_f32 {v(vN[e])}, {v(csr)}, {v(csr)}")
        for i in range(1, 8): A(f"v_fmac_f32 {v(vN[e])}, {v(csr+i)}, {v(csr+i)}")
    swap_add(A, vN[0], vT2)
    swap_add(A, vN[1], vT1)
    for sh in (8, 4, 2, 1):
        for e in range(2):
            A(f"v_max_f32_dpp {v(vN[e])}, {v(vN[e])}, {v(vN[e])} row_ror:{sh} row_mask:0xf bank_mask:0xf")
    sN = [S.alloc() for _ in range(4)]
    for e in range(2):
        A(f"v_readlane_b32 {s(sN[2*e])}, {v(vN[e])}, 0")
        A(f"v_readlane_b32 {s(sN[2*e+1])}, {v(vN[e])}, 16")
    for e in range(2):
        A(f"s_max_u32 {s(sN[2*e])}, {s(sN[2*e])}, {s(sN[2*e+1])}")
    A(f"s_lshl_b32 {s(sT0)}, {s(sHp)}, 9")
    A(f"s_lshl_b32 {s(sT1)}, {s(sTile)}, 2")
    A(f"s_add_u32 {s(sT0)}, {s(sT0)}, {s(sT1)}")
    A(f"s_add_u32 {s(sT0)}, {s(sT0)}, {WS_KMAX}")
    A(f"v_mov_b32 {v(vN[0])}, {s(sN[0])}")
    A(f"v_mov_b32 {v(vN[1])}, {s(sN[2])}")
    A(f"v_mov_b32 {v(vT1)}, 0")
    A("s_mov_b64 exec, 1")
    A(f"buffer_store_dword {v(vN[0])}, {v(vT1)}, {s(sO,4)}, {s(sT0)} offen")
    A(f"buffer_store_dword {v(vN[1])}, {v(vT1)}, {s(sO,4)}, {s(sT0)} offen offset:256")
    K.stamp_out(sO, 0, vT0, vT1)
    K.rt_end(sO, 0, vT0, vT1)
    A.label(END)
    A("s_endpgm")
    print("k1 vgprs", V.hi, "sgprs", S.hi, "lds", K.lds)
    return K

def wave_max64(A, x, sdst, stmp):
    for sh in (8, 4, 2, 1):
        A(f"v_max_f32_dpp {v(x)}, {v(x)}, {v(x)} row_ror:{sh} row_mask:0xf bank_mask:0xf")
    A(f"v_readlane_b32 {s(sdst)}, {v(x)}, 0")
    for ln in (16, 32, 48):
        A(f"v_readlane_b32 {s(stmp)}, {v(x)}, {ln}")
        A(f"s_max_u32 {s(sdst)}, {s(sdst)}, {s(stmp)}")

def k2(nqb=2):
    ks = nqb
    KR = 0; VR = 65536; ON = 131072; EX = ON + 4608
    K = Kern("k2_attn_kernel", (256, 1, 1), (512, 1, 1), EX)
    A, V, S = K.A, K.V, K.S
    END = "K2_END"
    sWs = S.alloc(2)
    A(f"s_load_dwordx2 {s(sWs,2)}, s[0:1], 80")
    A(f"s_cmp_ge_u32 s2, 256")
    A(f"s_cbranch_scc1 {END}")
    K.rt_begin()
    K.stamp()
    sO = S.alloc(4)
    sW, sXcd, sJ, sHead, sQb, sT0, sT1, sWq, sKh, sHb, sIt, sKm = [S.alloc() for _ in range(12)]
    vLane, vT0, vT1, vT2, vHf, vTok, vL16, vK, vV, vVinc = [V.alloc() for _ in range(10)]
    A(f"v_lshrrev_b32 {v(vT0)}, 6, v0")
    A(f"v_and_b32 {v(vLane)}, 63, v0")
    A(f"v_readfirstlane_b32 {s(sW)}, {v(vT0)}")
    A(f"s_and_b32 {s(sXcd)}, s2, 7")
    A(f"s_lshr_b32 {s(sJ)}, s2, 3")
    A(f"s_and_b32 {s(sT0)}, {s(sJ)}, 3")
    A(f"s_lshl_b32 {s(sHead)}, {s(sXcd)}, 2")
    A(f"s_add_u32 {s(sHead)}, {s(sHead)}, {s(sT0)}")
    A(f"s_lshr_b32 {s(sQb)}, {s(sJ)}, 2")
    if ks == 2:
        A(f"s_and_b32 {s(sWq)}, {s(sW)}, 3")
        A(f"s_lshr_b32 {s(sKh)}, {s(sW)}, 2")
    else:
        A(f"s_mov_b32 {s(sWq)}, {s(sW)}")
        A(f"s_mov_b32 {s(sKh)}, 0")
    A(f"s_lshl_b32 {s(sHb)}, {s(sHead)}, 16")
    A(f"v_lshlrev_b32 {v(vL16)}, 4, {v(vLane)}")
    A("s_waitcnt lgkmcnt(0)")
    srd(A, sO, sWs, WS_SIZE)
    Q = [V.alloc(4) for _ in range(nqb)]
    vKm = V.alloc()
    A(f"s_lshl_b32 {s(sT0)}, {s(sQb)}, 3")
    A(f"s_mul_i32 {s(sT1)}, {s(sWq)}, {nqb}")
    A(f"s_add_u32 {s(sT0)}, {s(sT0)}, {s(sT1)}")
    sQt = S.alloc()
    A(f"s_mov_b32 {s(sQt)}, {s(sT0)}")
    A(f"s_lshl_b32 {s(sT0)}, {s(sT0)}, 10")
    A(f"s_add_u32 {s(sT0)}, {s(sT0)}, {s(sHb)}")
    for b in range(nqb):
        A(f"buffer_load_dwordx4 {v(Q[b],4)}, {v(vL16)}, {s(sO,4)}, {s(sT0)} offen offset:{b*1024}")
    A(f"v_lshlrev_b32 {v(vT0)}, 2, {v(vLane)}")
    A(f"s_lshl_b32 {s(sT0)}, {s(sHead)}, 8")
    A(f"s_add_u32 {s(sT0)}, {s(sT0)}, {WS_KMAX}")
    A(f"buffer_load_dword {v(vKm)}, {v(vT0)}, {s(sO,4)}, {s(sT0)} offen")
    sL, sG = S.alloc(), S.alloc()
    for g in range(4):
        if ks == 2:
            A(f"s_lshl_b32 {s(sL)}, {s(sKh)}, 5")
            A(f"s_lshl_b32 {s(sT0)}, {s(sWq)}, 1")
            A(f"s_add_u32 {s(sL)}, {s(sL)}, {s(sT0)}")
            if g: A(f"s_add_u32 {s(sL)}, {s(sL)}, {8*g}")
        else:
            A(f"s_lshl_b32 {s(sL)}, {s(sW)}, 1")
            if g: A(f"s_add_u32 {s(sL)}, {s(sL)}, {16*g}")
        A(f"s_lshl_b32 {s(sT0)}, {s(sQb)}, 3")
        A(f"s_add_u32 {s(sG)}, {s(sL)}, {s(sT0)}")
        A(f"s_and_b32 {s(sG)}, {s(sG)}, 63")
        A(f"s_lshl_b32 {s(sG)}, {s(sG)}, 10")
        A(f"s_add_u32 {s(sG)}, {s(sG)}, {s(sHb)}")
        A(f"s_lshl_b32 {s(sL)}, {s(sL)}, 10")
        A(f"s_add_u32 m0, {s(sL)}, {KR}")
        A(f"s_add_u32 {s(sT0)}, {s(sG)}, {WS_KF}")
        A(f"buffer_load_dwordx4 {v(vL16)}, {s(sO,4)}, {s(sT0)} offen lds")
        A(f"buffer_load_dwordx4 {v(vL16)}, {s(sO,4)}, {s(sT0)} offen offset:1024 lds")
        A(f"s_add_u32 m0, {s(sL)}, {VR}")
        A(f"s_add_u32 {s(sT0)}, {s(sG)}, {WS_VF}")
        A(f"buffer_load_dwordx4 {v(vL16)}, {s(sO,4)}, {s(sT0)} offen lds")
        A(f"buffer_load_dwordx4 {v(vL16)}, {s(sO,4)}, {s(sT0)} offen offset:1024 lds")
    K.stamp()
    A(f"v_mov_b32 {v(vT1)}, 0x3f803f80")
    A(f"v_lshlrev_b32 {v(vT0)}, 2, v0")
    A(f"v_add_u32 {v(vT0)}, {ON}, {v(vT0)}")
    A(f"ds_write_b32 {v(vT0)}, {v(vT1)}")
    A(f"ds_write_b32 {v(vT0)}, {v(vT1)} offset:2048")
    A(f"v_cmp_gt_u32 vcc, 128, v0")
    sSave = S.alloc(2)
    A(f"s_and_saveexec_b64 {s(sSave,2)}, vcc")
    A(f"ds_write_b32 {v(vT0)}, {v(vT1)} offset:4096")
    A(f"s_mov_b64 exec, {s(sSave,2)}")
    A(f"v_lshrrev_b32 {v(vHf)}, 5, {v(vLane)}")
    A(f"v_and_b32 {v(vTok)}, 31, {v(vLane)}")
    A(f"s_lshl_b32 {s(sT0)}, {s(sKh)}, 15")
    A(f"v_add_u32 {v(vK)}, {s(sT0)}, {v(vL16)}")
    A(f"v_lshlrev_b32 {v(vT0)}, 8, {v(vHf)}")
    A(f"v_lshl_add_u32 {v(vT0)}, {v(vTok)}, 4, {v(vT0)}")
    A(f"s_add_u32 {s(sT0)}, {s(sT0)}, {VR}")
    A(f"v_add_u32 {v(vT0)}, {s(sT0)}, {v(vT0)}")
    A(f"v_subrev_u32 {v(vT1)}, 20, {v(vTok)}")
    A(f"v_cmp_gt_u32 vcc, 8, {v(vT1)}")
    A(f"v_mov_b32 {v(vT1)}, {ON}")
    A(f"v_mov_b32 {v(vT2)}, {ON+64}")
    A(f"v_cndmask_b32 {v(vT1)}, {v(vT1)}, {v(vT2)}, vcc")
    A(f"v_cmp_gt_u32 vcc, 16, {v(vTok)}")
    A(f"v_cndmask_b32 {v(vV)}, {v(vT1)}, {v(vT0)}, vcc")
    A(f"v_mov_b32 {v(vT1)}, 4096")
    A(f"v_cndmask_b32 {v(vVinc)}, 0, {v(vT1)}, vcc")
    Kf = [V.alloc(4) for _ in range(2)]; Vf0 = [V.alloc(4) for _ in range(2)]; Vf1 = [V.alloc(4) for _ in range(2)]
    QB = [dict(S=[V.alloc(16), V.alloc(16)], P=V.alloc(8), O=V.alloc(16), C=V.alloc(16)) for _ in range(nqb)]
    ngrp_after = 12
    A(f"s_waitcnt vmcnt(16)")
    wave_max64(A, vKm, sKm, sT0)
    bad = S.alloc(2)
    for b in range(nqb):
        un = QB[b]["S"][0]
        for i in range(4):
            A(f"v_lshlrev_b32 {v(un+2*i)}, 16, {v(Q[b]+i)}")
            A(f"v_and_b32 {v(un+2*i+1)}, 0xffff0000, {v(Q[b]+i)}")
        A(f"v_mul_f32 {v(vT0)}, {v(un)}, {v(un)}")
        for i in range(1, 8): A(f"v_fmac_f32 {v(vT0)}, {v(un+i)}, {v(un+i)}")
        swap_add(A, vT0, vT1)
        A(f"v_mul_f32 {v(vT0)}, {s(sKm)}, {v(vT0)}")
        A(f"v_sqrt_f32 {v(vT0)}, {v(vT0)}")
        A(f"v_mov_b32 {v(vT1)}, {f2u(0.01):#x}")
        A(f"v_fmac_f32 {v(vT1)}, {f2u(1.01):#x}, {v(vT0)}")
        A(f"v_mov_b32 {v(vT2)}, {f2u(40.0):#x}")
        A(f"v_cmp_nge_f32 vcc, {v(vT2)}, {v(vT1)}")
        if b == 0: A(f"s_mov_b64 {s(bad,2)}, vcc")
        else: A(f"s_or_b64 {s(bad,2)}, {s(bad,2)}, vcc")
        for r in range(16): A(f"v_sub_f32 {v(QB[b]['C']+r)}, 0, {v(vT1)}")
        for r in range(16): A(f"v_mov_b32 {v(QB[b]['O']+r)}, 0")
        for r in range(4, 8): A(f"v_mov_b32 {v(QB[b]['P']+r)}, 0")
    for r in range(4): A(f"v_mov_b32 {v(Vf1[1]+r)}, 0")
    A(f"s_waitcnt vmcnt({ngrp_after}) lgkmcnt(0)")
    A("s_barrier")
    K.stamp()
    A(f"s_cmp_lg_u64 {s(bad,2)}, 0")
    A(f"s_cbranch_scc1 K2_SLOW")
    NT = 64 // ks
    mf = "v_mfma_f32_32x32x16_bf16"
    A(f"ds_read_b128 {v(Kf[0],4)}, {v(vK)}")
    A(f"ds_read_b128 {v(Kf[1],4)}, {v(vK)} offset:1024")
    A(f"ds_read_b128 {v(Vf0[0],4)}, {v(vV)}")
    A("s_waitcnt lgkmcnt(2)")
    for b in range(nqb):
        A(f"{mf} {v(QB[b]['S'][0],16)}, {v(Kf[0],4)}, {v(Q[b],4)}, {v(QB[b]['C'],16)}")
    A(f"s_mov_b32 {s(sIt)}, 0")
    A.label("K2_LOOP")
    A(f"s_cmp_lg_u32 {s(sIt)}, 1")
    A(f"s_cbranch_scc1 K2_NOSYNC")
    A("s_waitcnt vmcnt(0)")
    A("s_barrier")
    A.label("K2_NOSYNC")
    for t in range(4):
        cur, nxt = t & 1, (t + 1) & 1
        A("s_waitcnt lgkmcnt(0)")
        for b in range(nqb):
            q = QB[b]; Sx = q["S"][cur]; Sn = q["S"][nxt]; P = q["P"]; O = q["O"]
            ex = [f"v_exp_f32 {v(Sx+i)}, {v(Sx+i)}" for i in range(16)]
            cv = [f"v_cvt_pk_bf16_f32 {v(P+i)}, {v(Sx+2*i)}, {v(Sx+2*i+1)}" for i in range(8)]
            A(f"{mf} {v(Sn,16)}, {v(Kf[nxt],4)}, {v(Q[b],4)}, {v(q['C'],16)}")
            for x in ex[0:4]: A(x)
            A(cv[0])
            for x in ex[4:6]: A(x)
            A(cv[1])
            A(f"{mf} {v(O,16)}, {v(Vf1[nxt],4)}, {v(P+4,4)}, {v(O,16)}")
            if b == 0:
                A(f"ds_read_b128 {v(Kf[cur],4)}, {v(vK)} offset:{(t+2)*1024}")
                A(f"ds_read_b128 {v(Vf0[nxt],4)}, {v(vV)} offset:{(t+1)*1024}")
                A(f"ds_read_b128 {v(Vf1[cur],4)}, {v(vV)} offset:{t*1024+512}")
            for x in ex[6:8]: A(x)
            A(cv[2])
            for x in ex[8:10]: A(x)
            A(cv[3])
            for x in ex[10:12]: A(x)
            A(cv[4])
            A(f"{mf} {v(O,16)}, {v(Vf0[cur],4)}, {v(P,4)}, {v(O,16)}")
            for x in ex[12:14]: A(x)
            A(cv[5])
            for x in ex[14:16]: A(x)
            A(cv[6])
            A(cv[7])
    A(f"v_add_u32 {v(vK)}, 4096, {v(vK)}")
    A(f"v_add_u32 {v(vV)}, {v(vVinc)}, {v(vV)}")
    A(f"s_add_u32 {s(sIt)}, {s(sIt)}, 1")
    A(f"s_cmp_lt_u32 {s(sIt)}, {NT//4}")
    A(f"s_cbranch_scc1 K2_LOOP")
    A("s_waitcnt lgkmcnt(0)")
    for b in range(nqb):
        A(f"{mf} {v(QB[b]['O'],16)}, {v(Vf1[1],4)}, {v(QB[b]['P']+4,4)}, {v(QB[b]['O'],16)}")
    A("s_branch K2_FIN")
    A.label("K2_SLOW")
    A("s_waitcnt vmcnt(0)")
    A("s_barrier")
    for b in range(nqb):
        A(f"v_mov_b32 {v(QB[b]['C'])}, {f2u(-3.0e38):#x}")
    A(f"s_mov_b32 {s(sIt)}, 0")
    A.label("K2_SLOOP")
    A(f"ds_read_b128 {v(Kf[0],4)}, {v(vK)}")
    A(f"ds_read_b128 {v(Vf0[0],4)}, {v(vV)}")
    A(f"ds_read_b128 {v(Vf1[0],4)}, {v(vV)} offset:512")
    A("s_waitcnt lgkmcnt(0)")
    for b in range(nqb):
        q = QB[b]; Sx = q["S"][0]; P = q["P"]; O = q["O"]; m = q["C"]; mn = q["C"] + 1; al = q["C"] + 2
        A(f"{mf} {v(Sx,16)}, {v(Kf[0],4)}, {v(Q[b],4)}, 0")
        A(f"v_max_f32 {v(mn)}, {v(Sx)}, {v(Sx+1)}")
        for i in range(2, 16): A(f"v_max_f32 {v(mn)}, {v(mn)}, {v(Sx+i)}")
        swap_add(A, mn, vT1, "v_max_f32")
        A(f"v_max_f32 {v(mn)}, {v(mn)}, {v(m)}")
        A(f"v_sub_f32 {v(al)}, {v(m)}, {v(mn)}")
        A(f"v_exp_f32 {v(al)}, {v(al)}")
        A(f"v_mov_b32 {v(m)}, {v(mn)}")
        for i in range(16): A(f"v_sub_f32 {v(Sx+i)}, {v(Sx+i)}, {v(mn)}")
        for i in range(16): A(f"v_exp_f32 {v(Sx+i)}, {v(Sx+i)}")
        for i in range(16): A(f"v_mul_f32 {v(O+i)}, {v(al)}, {v(O+i)}")
        for i in range(8): A(f"v_cvt_pk_bf16_f32 {v(P+i)}, {v(Sx+2*i)}, {v(Sx+2*i+1)}")
        A(f"{mf} {v(O,16)}, {v(Vf0[0],4)}, {v(P,4)}, {v(O,16)}")
        A(f"{mf} {v(O,16)}, {v(Vf1[0],4)}, {v(P+4,4)}, {v(O,16)}")
    A(f"v_add_u32 {v(vK)}, 1024, {v(vK)}")
    A(f"v_lshrrev_b32 {v(vT0)}, 2, {v(vVinc)}")
    A(f"v_add_u32 {v(vV)}, {v(vT0)}, {v(vV)}")
    A(f"s_add_u32 {s(sIt)}, {s(sIt)}, 1")
    A(f"s_cmp_lt_u32 {s(sIt)}, {NT}")
    A(f"s_cbranch_scc1 K2_SLOOP")
    A(f"s_mov_b32 {s(sIt)}, -1")
    A.label("K2_FIN")
    K.stamp()
    if ks == 2:
        vM = [V.alloc(), V.alloc()]
        for b in range(2):
            A(f"v_sub_f32 {v(vM[b])}, 0, {v(QB[b]['C'])}")
        A(f"s_cmp_lg_u32 {s(sIt)}, -1")
        A(f"s_cbranch_scc1 K2_F1")
        for b in range(2):
            A(f"v_mov_b32 {v(vM[b])}, {v(QB[b]['C'])}")
        A.label("K2_F1")
        snd = V.alloc(10); kp = V.alloc(10)
        A(f"s_cmp_eq_u32 {s(sKh)}, 0")
        A(f"s_cbranch_scc1 K2_F2")
        for r in range(9):
            A(f"v_mov_b32 {v(snd+r)}, {v(QB[0]['O']+r)}"); A(f"v_mov_b32 {v(kp+r)}, {v(QB[1]['O']+r)}")
        A(f"v_mov_b32 {v(snd+9)}, {v(vM[0])}"); A(f"v_mov_b32 {v(kp+9)}, {v(vM[1])}")
        A("s_branch K2_F3")
        A.label("K2_F2")
        for r in range(9):
            A(f"v_mov_b32 {v(snd+r)}, {v(QB[1]['O']+r)}"); A(f"v_mov_b32 {v(kp+r)}, {v(QB[0]['O']+r)}")
        A(f"v_mov_b32 {v(snd+9)}, {v(vM[1])}"); A(f"v_mov_b32 {v(kp+9)}, {v(vM[0])}")
        A.label("K2_F3")
        A("s_barrier")
        A(f"s_mul_i32 {s(sT0)}, {s(sW)}, 2560")
        A(f"v_lshlrev_b32 {v(vT0)}, 2, {v(vLane)}")
        A(f"v_add_u32 {v(vT0)}, {s(sT0)}, {v(vT0)}")
        for r in range(10): A(f"ds_write_b32 {v(vT0)}, {v(snd+r)} offset:{r*256}")
        A("s_waitcnt lgkmcnt(0)")
        A("s_barrier")
        A(f"s_xor_b32 {s(sT0)}, {s(sW)}, 4")
        A(f"s_mul_i32 {s(sT0)}, {s(sT0)}, 2560")
        A(f"v_lshlrev_b32 {v(vT0)}, 2, {v(vLane)}")
        A(f"v_add_u32 {v(vT0)}, {s(sT0)}, {v(vT0)}")
        for r in range(10): A(f"ds_read_b32 {v(snd+r)}, {v(vT0)} offset:{r*256}")
        A("s_waitcnt lgkmcnt(0)")
        A(f"v_max_f32 {v(vT0)}, {v(kp+9)}, {v(snd+9)}")
        A(f"v_sub_f32 {v(vT1)}, {v(kp+9)}, {v(vT0)}")
        A(f"v_sub_f32 {v(vT2)}, {v(snd+9)}, {v(vT0)}")
        A(f"v_exp_f32 {v(vT1)}, {v(vT1)}")
        A(f"v_exp_f32 {v(vT2)}, {v(vT2)}")
        for r in range(9): A(f"v_mul_f32 {v(kp+r)}, {v(vT1)}, {v(kp+r)}")
        for r in range(9): A(f"v_fmac_f32 {v(kp+r)}, {v(vT2)}, {v(snd+r)}")
        outs = [(kp, None)]
        A(f"s_add_u32 {s(sQt)}, {s(sQt)}, {s(sKh)}")
    else:
        outs = [(QB[0]["O"], None)]
    for (O, _) in outs:
        A(f"v_rcp_f32 {v(vT0)}, {v(O+8)}")
        for r in range(8): A(f"v_mul_f32 {v(O+r)}, {v(vT0)}, {v(O+r)}")
        pk = V.alloc(4)
        for i in range(4): A(f"v_cvt_pk_bf16_f32 {v(pk+i)}, {v(O+2*i)}, {v(O+2*i+1)}")
        A(f"s_lshl_b32 {s(sT0)}, {s(sQt)}, 15")
        A(f"s_lshl_b32 {s(sT1)}, {s(sHead)}, 10")
        A(f"s_add_u32 {s(sT0)}, {s(sT0)}, {s(sT1)}")
        A(f"s_add_u32 {s(sT0)}, {s(sT0)}, {WS_OF}")
        A(f"buffer_store_dwordx4 {v(pk,4)}, {v(vL16)}, {s(sO,4)}, {s(sT0)} offen")
    K.stamp_out(sO, 1, vT0, vT1)
    K.rt_end(sO, 1, vT0, vT1)
    A.label(END)
    A("s_endpgm")
    print("k2 vgprs", V.hi, "sgprs", S.hi, "lds", K.lds)
    return K

def wave_ids(K, sW8, sW, vLane, vT0):
    A = K.A
    A(f"v_lshrrev_b32 {v(vT0)}, 6, v0")
    A(f"v_and_b32 {v(vLane)}, 63, v0")
    A(f"v_readfirstlane_b32 {s(sW8)}, {v(vT0)}")
    A(f"s_and_b32 {s(sW)}, {s(sW8)}, 3")

def w_voff(A, vdst, vLane, pitch, t0, t1):
    A(f"v_bfe_u32 {v(t0)}, {v(vLane)}, 2, 3")
    A(f"v_mul_u32_u24 {v(t0)}, {pitch}, {v(t0)}")
    A(f"v_and_b32 {v(t1)}, 3, {v(vLane)}")
    A(f"v_lshl_add_u32 {v(t0)}, {v(t1)}, 4, {v(t0)}")
    A(f"v_lshrrev_b32 {v(t1)}, 5, {v(vLane)}")
    A(f"v_lshl_add_u32 {v(vdst)}, {v(t1)}, 6, {v(t0)}")

def tr_pi_base(A, vdst, vLane, vHf, t0, t1):
    A(f"v_and_b32 {v(t0)}, 15, {v(vLane)}")
    A(f"v_lshrrev_b32 {v(t1)}, 2, {v(t0)}")
    A(f"v_lshl_add_u32 {v(t1)}, {v(vHf)}, 2, {v(t1)}")
    A(f"v_lshlrev_b32 {v(t1)}, 6, {v(t1)}")
    A(f"v_and_b32 {v(t0)}, 3, {v(t0)}")
    A(f"v_lshl_add_u32 {v(t1)}, {v(t0)}, 3, {v(t1)}")
    A(f"v_bfe_u32 {v(t0)}, {v(vLane)}, 4, 1")
    A(f"v_lshl_add_u32 {v(vdst)}, {v(t0)}, 5, {v(t1)}")

def reduce4(K, acc, RED, sW, vL16, vT0, sT0, out):
    A = K.A
    A(f"s_lshl_b32 {s(sT0)}, {s(sW)}, 12")
    A(f"s_add_u32 {s(sT0)}, {s(sT0)}, {RED}")
    A(f"v_add_u32 {v(vT0)}, {s(sT0)}, {v(vL16)}")
    for t in range(4):
        for q in range(4):
            A(f"ds_write_b128 {v(vT0)}, {v(acc[t]+4*q,4)} offset:{t*16384 + q*1024}")
    A("s_waitcnt lgkmcnt(0)")
    A("s_barrier")
    A(f"s_lshl_b32 {s(sT0)}, {s(sW)}, 14")
    A(f"s_add_u32 {s(sT0)}, {s(sT0)}, {RED}")
    A(f"v_add_u32 {v(vT0)}, {s(sT0)}, {v(vL16)}")
    for p in range(4):
        for q in range(4):
            A(f"ds_read_b128 {v(acc[p]+4*q,4)}, {v(vT0)} offset:{p*4096 + q*1024}")
    A("s_waitcnt lgkmcnt(8)")
    for r in range(16): A(f"v_add_f32 {v(out+r)}, {v(acc[0]+r)}, {v(acc[1]+r)}")
    A("s_waitcnt lgkmcnt(0)")
    for r in range(16): A(f"v_add_f32 {v(acc[2]+r)}, {v(acc[2]+r)}, {v(acc[3]+r)}")
    for r in range(16): A(f"v_add_f32 {v(out+r)}, {v(out+r)}, {v(acc[2]+r)}")

def k3():
    WO = 0; XT = 65536; RED = XT + 8192
    K = Kern("k3_oproj_kernel", (256, 1, 1), (512, 1, 1), RED + 65536)
    A, V, S = K.A, K.V, K.S
    END = "K3_END"
    sP = S.alloc(4); sWs = S.alloc(2)
    A(f"s_load_dwordx2 {s(sP,2)}, s[0:1], 0")
    A(f"s_load_dwordx2 {s(sP+2,2)}, s[0:1], 16")
    A(f"s_load_dwordx2 {s(sWs,2)}, s[0:1], 80")
    A(f"s_cmp_ge_u32 s2, 256")
    A(f"s_cbranch_scc1 {END}")
    K.rt_begin()
    K.stamp()
    sX = S.alloc(4); sWo = S.alloc(4); sO = S.alloc(4)
    sW8, sW, sXcd, sJ, sRt, sCt, sT0, sT1, sB = [S.alloc() for _ in range(9)]
    vLane, vT0, vT1, vT2, vHf, vTok, vL16 = [V.alloc() for _ in range(7)]
    wave_ids(K, sW8, sW, vLane, vT0)
    A(f"s_and_b32 {s(sXcd)}, s2, 7")
    A(f"s_lshr_b32 {s(sJ)}, s2, 3")
    A(f"s_and_b32 {s(sT0)}, {s(sJ)}, 3")
    A(f"s_lshl_b32 {s(sRt)}, {s(sXcd)}, 2")
    A(f"s_add_u32 {s(sRt)}, {s(sRt)}, {s(sT0)}")
    A(f"s_lshr_b32 {s(sCt)}, {s(sJ)}, 2")
    A(f"s_cmp_lt_u32 {s(sW8)}, 4")
    A(f"s_cbranch_scc1 K3_COMPUTE")
    mk0 = V.mark()
    vWoff, vXoff = V.alloc(), V.alloc()
    w_voff(A, vWoff, vLane, 1024, vT0, vT1)
    A(f"s_and_b32 {s(sT0)}, {s(sW)}, 1")
    A(f"s_lshl_b32 {s(sT0)}, {s(sT0)}, 2")
    A(f"v_lshrrev_b32 {v(vT0)}, 4, {v(vLane)}")
    A(f"v_or_b32 {v(vT0)}, {s(sT0)}, {v(vT0)}")
    A(f"v_and_b32 {v(vT1)}, 7, {v(vLane)}")
    A(f"v_xor_b32 {v(vT0)}, {v(vT0)}, {v(vT1)}")
    A(f"v_lshlrev_b32 {v(vT0)}, 4, {v(vT0)}")
    A(f"v_lshrrev_b32 {v(vT1)}, 3, {v(vLane)}")
    A(f"v_lshlrev_b32 {v(vT1)}, 10, {v(vT1)}")
    A(f"v_add_u32 {v(vXoff)}, {v(vT0)}, {v(vT1)}")
    A("s_waitcnt lgkmcnt(0)")
    srd(A, sX, sP, 2048 * 512 * 2)
    srd(A, sWo, sP + 2, 512 * 512 * 2)
    A(f"s_lshl_b32 {s(sB)}, {s(sW)}, 17")
    A(f"s_lshl_b32 {s(sT0)}, {s(sCt)}, 7")
    A(f"s_add_u32 {s(sB)}, {s(sB)}, {s(sT0)}")
    A(f"s_lshl_b32 {s(sT1)}, {s(sW)}, 14")
    for g in range(16):
        A(f"s_add_u32 m0, {s(sT1)}, {WO + g*1024}")
        A(f"s_add_u32 {s(sT0)}, {s(sB)}, {g*8192}")
        A(f"buffer_load_dwordx4 {v(vWoff)}, {s(sWo,4)}, {s(sT0)} offen lds")
        if g == 7:
            pass
    A(f"s_lshl_b32 {s(sB)}, {s(sRt)}, 16")
    A(f"s_lshl_b32 {s(sT0)}, {s(sCt)}, 7")
    A(f"s_add_u32 {s(sB)}, {s(sB)}, {s(sT0)}")
    A(f"s_lshl_b32 {s(sT0)}, {s(sW)}, 13")
    A(f"s_add_u32 {s(sB)}, {s(sB)}, {s(sT0)}")
    A(f"s_lshl_b32 {s(sT1)}, {s(sW)}, 10")
    for n in range(2):
        A(f"s_add_u32 m0, {s(sT1)}, {XT + n*4096}")
        A(f"s_add_u32 {s(sT0)}, {s(sB)}, {n*32768}")
        A(f"buffer_load_dwordx4 {v(vXoff)}, {s(sX,4)}, {s(sT0)} offen lds")
    A("s_waitcnt vmcnt(10)")
    A("s_barrier")
    A("s_waitcnt vmcnt(0)")
    A("s_barrier")
    A("s_endpgm")
    V.release(mk0)
    A.label("K3_COMPUTE")
    Af = [[V.alloc(4) for _ in range(8)] for _ in range(2)]
    acc = [V.alloc(16) for _ in range(4)]
    Bf = [[V.alloc(4) for _ in range(2)] for _ in range(2)]
    vB = V.alloc()
    A(f"v_lshlrev_b32 {v(vL16)}, 4, {v(vLane)}")
    A(f"v_lshrrev_b32 {v(vHf)}, 5, {v(vLane)}")
    A(f"v_and_b32 {v(vTok)}, 31, {v(vLane)}")
    A("s_waitcnt lgkmcnt(0)")
    srd(A, sO, sWs, WS_SIZE)
    A(f"s_lshl_b32 {s(sB)}, {s(sRt)}, 16")
    A(f"s_lshl_b32 {s(sT0)}, {s(sW)}, 13")
    A(f"s_add_u32 {s(sB)}, {s(sB)}, {s(sT0)}")
    A(f"s_add_u32 {s(sB)}, {s(sB)}, {WS_OF}")
    for h in range(2):
        for r in range(2):
            A(f"s_add_u32 {s(sT0)}, {s(sB)}, {r*32768 + h*4096}")
            for i in range(4):
                A(f"buffer_load_dwordx4 {v(Af[r][4*h+i],4)}, {v(vL16)}, {s(sO,4)}, {s(sT0)} offen offset:{i*1024}")
    tr_pi_base(A, vB, vLane, vHf, vT0, vT1)
    A(f"s_lshl_b32 {s(sT0)}, {s(sW)}, 14")
    A(f"v_add_u32 {v(vB)}, {s(sT0)}, {v(vB)}")
    def rd(i):
        for b in range(2):
            A(f"ds_read_b64_tr_b16 {v(Bf[i&1][b],2)}, {v(vB)} offset:{WO + i*2048 + b*512}")
            A(f"ds_read_b64_tr_b16 {v(Bf[i&1][b]+2,2)}, {v(vB)} offset:{WO + i*2048 + b*512 + 1024}")
    K.stamp()
    A("s_barrier")
    K.stamp()
    rd(0)
    for i in range(8):
        if i == 3:
            A("s_barrier")
        if i + 1 < 8:
            rd(i + 1)
            A(f"s_waitcnt lgkmcnt(4)")
        else:
            A(f"s_waitcnt lgkmcnt(0)")
        if i == 0: A("s_waitcnt vmcnt(8)")
        if i == 4: A("s_waitcnt vmcnt(0)")
        for b in range(2):
            for r in range(2):
                t = 2 * b + r
                A(f"v_mfma_f32_32x32x16_bf16 {v(acc[t],16)}, {v(Bf[i&1][b],4)}, {v(Af[r][i],4)}, {'0' if i == 0 else v(acc[t],16)}")
    K.stamp()
    xr = V.alloc(8); out = V.alloc(16)
    sBb, sRr = S.alloc(), S.alloc()
    A(f"s_lshr_b32 {s(sBb)}, {s(sW)}, 1")
    A(f"s_and_b32 {s(sRr)}, {s(sW)}, 1")
    A(f"v_lshrrev_b32 {v(vT2)}, 1, {v(vTok)}")
    A(f"v_and_b32 {v(vT2)}, 7, {v(vT2)}")
    A(f"s_lshl_b32 {s(sT0)}, {s(sRr)}, 12")
    A(f"s_add_u32 {s(sT0)}, {s(sT0)}, {XT}")
    A(f"v_lshlrev_b32 {v(vT1)}, 7, {v(vTok)}")
    A(f"v_lshl_add_u32 {v(vT1)}, {v(vHf)}, 3, {v(vT1)}")
    A(f"v_add_u32 {v(vT1)}, {s(sT0)}, {v(vT1)}")
    A(f"s_lshl_b32 {s(sT1)}, {s(sBb)}, 2")
    for a_ in range(4):
        A(f"s_add_u32 {s(sT0)}, {s(sT1)}, {a_}")
        A(f"v_xor_b32 {v(vT0)}, {s(sT0)}, {v(vT2)}")
        A(f"v_lshl_add_u32 {v(vT0)}, {v(vT0)}, 4, {v(vT1)}")
        A(f"ds_read_b64 {v(xr+2*a_,2)}, {v(vT0)}")
    reduce4(K, acc, RED, sW, vL16, vT0, sT0, out)
    K.stamp()
    un = acc[0]
    for i in range(8):
        A(f"v_lshlrev_b32 {v(un+2*i)}, 16, {v(xr+i)}")
        A(f"v_and_b32 {v(un+2*i+1)}, 0xffff0000, {v(xr+i)}")
    for r in range(16): A(f"v_add_f32 {v(out+r)}, {v(out+r)}, {v(un+r)}")
    pk = acc[1]
    for i in range(8): A(f"v_cvt_pk_bf16_f32 {v(pk+i)}, {v(out+2*i)}, {v(out+2*i+1)}")
    A(f"s_lshl_b32 {s(sT0)}, {s(sRt)}, 1")
    A(f"s_add_u32 {s(sT0)}, {s(sT0)}, {s(sRr)}")
    A(f"s_lshl_b32 {s(sB)}, {s(sT0)}, 15")
    A(f"s_lshl_b32 {s(sT1)}, {s(sCt)}, 12")
    A(f"s_add_u32 {s(sB)}, {s(sB)}, {s(sT1)}")
    A(f"s_lshl_b32 {s(sT1)}, {s(sBb)}, 11")
    A(f"s_add_u32 {s(sB)}, {s(sB)}, {s(sT1)}")
    A(f"s_add_u32 {s(sB)}, {s(sB)}, {WS_HF}")
    A(f"buffer_store_dwordx4 {v(pk,4)}, {v(vL16)}, {s(sO,4)}, {s(sB)} offen")
    A(f"buffer_store_dwordx4 {v(pk+4,4)}, {v(vL16)}, {s(sO,4)}, {s(sB)} offen offset:1024")
    for i in range(8):
        A(f"v_lshlrev_b32 {v(un+2*i)}, 16, {v(pk+i)}")
        A(f"v_and_b32 {v(un+2*i+1)}, 0xffff0000, {v(pk+i)}")
    st = V.alloc(2)
    A(f"v_add_f32 {v(st)}, {v(un)}, {v(un+1)}")
    A(f"v_mul_f32 {v(st+1)}, {v(un)}, {v(un)}")
    A(f"v_fmac_f32 {v(st+1)}, {v(un+1)}, {v(un+1)}")
    for r in range(2, 16):
        A(f"v_add_f32 {v(st)}, {v(st)}, {v(un+r)}")
        A(f"v_fmac_f32 {v(st+1)}, {v(un+r)}, {v(un+r)}")
    swap_add(A, st, vT1)
    swap_add(A, st + 1, vT2)
    A(f"s_lshl_b32 {s(sT0)}, {s(sT0)}, 12")
    A(f"s_lshl_b32 {s(sT1)}, {s(sCt)}, 9")
    A(f"s_add_u32 {s(sT0)}, {s(sT0)}, {s(sT1)}")
    A(f"s_lshl_b32 {s(sT1)}, {s(sBb)}, 8")
    A(f"s_add_u32 {s(sT0)}, {s(sT0)}, {s(sT1)}")
    A(f"s_add_u32 {s(sT0)}, {s(sT0)}, {WS_HS}")
    A(f"v_lshlrev_b32 {v(vT0)}, 3, {v(vTok)}")
    A("s_mov_b32 exec_hi, 0")
    A(f"buffer_store_dwordx2 {v(st,2)}, {v(vT0)}, {s(sO,4)}, {s(sT0)} offen")
    K.stamp_out(sO, 2, vT0, vT1)
    K.rt_end(sO, 2, vT0, vT1)
    A.label(END)
    A("s_endpgm")
    print("k3 vgprs", V.hi, "sgprs", S.hi, "lds", K.lds)
    return K

def k4():
    W1 = 0; CS = 131072; BI = CS + 4 * 512 * 1;
    BI = CS + 2048
    K = Kern("k4_mlp1_kernel", (256, 1, 1), (512, 1, 1), BI + 512)
    A, V, S = K.A, K.V, K.S
    END = "K4_END"
    sP = S.alloc(4); sWs = S.alloc(2)
    A(f"s_load_dwordx4 {s(sP,4)}, s[0:1], 32")
    A(f"s_load_dwordx2 {s(sWs,2)}, s[0:1], 80")
    sW8, sW, sXcd, sJ, sRt, sCt, sT0, sT1, sB, sRot = [S.alloc() for _ in range(10)]
    A(f"s_and_b32 {s(sXcd)}, s2, 7")
    A(f"s_lshr_b32 {s(sJ)}, s2, 3")
    A(f"s_cmp_ge_u32 {s(sJ)}, 28")
    A(f"s_cbranch_scc1 {END}")
    K.rt_begin()
    K.stamp()
    sW1 = S.alloc(4); sO = S.alloc(4); sB1 = S.alloc(4)
    vLane, vT0, vT1, vT2, vHf, vTok, vL16 = [V.alloc() for _ in range(7)]
    wave_ids(K, sW8, sW, vLane, vT0)
    A(f"s_and_b32 {s(sT0)}, {s(sXcd)}, 3")
    A(f"s_lshl_b32 {s(sT0)}, {s(sT0)}, 2")
    A(f"s_and_b32 {s(sT1)}, {s(sJ)}, 3")
    A(f"s_add_u32 {s(sRt)}, {s(sT0)}, {s(sT1)}")
    A(f"s_lshr_b32 {s(sT0)}, {s(sXcd)}, 2")
    A(f"s_mul_i32 {s(sT0)}, {s(sT0)}, 7")
    A(f"s_lshr_b32 {s(sCt)}, {s(sJ)}, 2")
    A(f"s_add_u32 {s(sCt)}, {s(sCt)}, {s(sT0)}")
    A(f"s_cmp_lt_u32 {s(sW8)}, 4")
    A(f"s_cbranch_scc1 K4_COMPUTE")
    mk0 = V.mark()
    vWoff = V.alloc()
    w_voff(A, vWoff, vLane, 3584, vT0, vT1)
    A("s_waitcnt lgkmcnt(0)")
    srd(A, sW1, sP, 512 * 1792 * 2)
    A(f"s_mul_i32 {s(sB)}, {s(sW)}, {32*3584}")
    A(f"s_lshl_b32 {s(sT0)}, {s(sCt)}, 8")
    A(f"s_add_u32 {s(sB)}, {s(sB)}, {s(sT0)}")
    A(f"s_lshl_b32 {s(sT1)}, {s(sW)}, 12")
    def dma(p, c):
        for q in range(4):
            A(f"s_add_u32 m0, {s(sT1)}, {W1 + p*65536 + c*16384 + q*1024}")
            A(f"s_add_u32 {s(sT0)}, {s(sB)}, {(128*c + 8*q)*3584 + p*128}")
            A(f"buffer_load_dwordx4 {v(vWoff)}, {s(sW1,4)}, {s(sT0)} offen lds")
    seq = [(p, c) for p in range(2) for c in range(4)]
    dma(*seq[0]); dma(*seq[1])
    for n in range(8):
        if n + 2 < 8: dma(*seq[n + 2])
        rem = min(8, n + 3) - (n + 1)
        A(f"s_waitcnt vmcnt({4*rem})")
        A("s_barrier")
    A("s_endpgm")
    V.release(mk0)
    A.label("K4_COMPUTE")
    Af = [V.alloc(4) for _ in range(32)]
    acc = [V.alloc(16) for _ in range(4)]
    Bf = [[V.alloc(4) for _ in range(2)] for _ in range(2)]
    csa = [V.alloc(4) for _ in range(4)]; msk = V.alloc(4)
    vB = [V.alloc() for _ in range(4)]
    hs = acc[3]
    A(f"v_lshlrev_b32 {v(vL16)}, 4, {v(vLane)}")
    A(f"v_lshrrev_b32 {v(vHf)}, 5, {v(vLane)}")
    A(f"v_and_b32 {v(vTok)}, 31, {v(vLane)}")
    A("s_waitcnt lgkmcnt(0)")
    srd(A, sO, sWs, WS_SIZE)
    srd(A, sB1, sP + 2, 1792 * 2)
    sR32 = S.alloc()
    A(f"s_lshl_b32 {s(sR32)}, {s(sRt)}, 2")
    A(f"s_add_u32 {s(sR32)}, {s(sR32)}, {s(sW)}")
    A(f"s_lshl_b32 {s(sT0)}, {s(sR32)}, 12")
    A(f"s_add_u32 {s(sT0)}, {s(sT0)}, {WS_HS}")
    A(f"v_lshlrev_b32 {v(vT0)}, 3, {v(vTok)}")
    A(f"v_lshl_add_u32 {v(vT0)}, {v(vHf)}, 11, {v(vT0)}")
    for i in range(8):
        A(f"buffer_load_dwordx2 {v(hs+2*i,2)}, {v(vT0)}, {s(sO,4)}, {s(sT0)} offen offset:{i*256}")
    vb1 = V.alloc()
    A(f"v_lshlrev_b32 {v(vT1)}, 2, {v(vLane)}")
    A(f"s_lshl_b32 {s(sT1)}, {s(sCt)}, 8")
    A(f"buffer_load_dword {v(vb1)}, {v(vT1)}, {s(sB1,4)}, {s(sT1)} offen")
    A(f"s_lshl_b32 {s(sB)}, {s(sR32)}, 15")
    A(f"s_add_u32 {s(sB)}, {s(sB)}, {WS_HF}")
    sQ = [S.alloc() for _ in range(4)]
    for q in range(4):
        A(f"s_xor_b32 {s(sQ[q])}, {s(sW)}, {q}")
        A(f"s_lshl_b32 {s(sQ[q])}, {s(sQ[q])}, 10")
    for g in range(8):
        for q in range(4):
            A(f"s_add_u32 {s(sT0)}, {s(sB)}, {s(sQ[q])}")
            A(f"s_add_u32 {s(sT0)}, {s(sT0)}, {g*4096}") if g else None
            A(f"buffer_load_dwordx4 {v(Af[4*g+q],4)}, {v(vL16)}, {s(sO,4)}, {s(sT0)} offen")
    tr_pi_base(A, vB[0], vLane, vHf, vT0, vT1)
    for q in (3, 2, 1, 0):
        A(f"s_lshl_b32 {s(sT0)}, {s(sQ[q])}, 1")
        A(f"v_add_u32 {v(vB[q])}, {s(sT0)}, {v(vB[0])}")
    A(f"v_and_b32 {v(vT0)}, 15, {v(vLane)}")
    A(f"v_bfe_u32 {v(vT1)}, {v(vLane)}, 4, 1")
    A(f"v_cmp_eq_u32 vcc, {v(vT0)}, {v(vT1)}")
    A(f"v_mov_b32 {v(vT0)}, 0x3f803f80")
    for i in range(4): A(f"v_cndmask_b32 {v(msk+i)}, 0, {v(vT0)}, vcc")
    A("s_waitcnt vmcnt(32)")
    vMean, vRs, vMr = V.alloc(), V.alloc(), V.alloc()
    for st_ in (4, 2, 1):
        for i in range(st_):
            A(f"v_add_f32 {v(hs+2*i)}, {v(hs+2*i)}, {v(hs+2*(i+st_))}")
            A(f"v_add_f32 {v(hs+2*i+1)}, {v(hs+2*i+1)}, {v(hs+2*(i+st_)+1)}")
    swap_add(A, hs, vT1)
    swap_add(A, hs + 1, vT2)
    A(f"v_mul_f32 {v(vMean)}, {f2u(1/512.):#x}, {v(hs)}")
    A(f"v_mul_f32 {v(vT1)}, {v(vMean)}, {v(vMean)}")
    A(f"v_mov_b32 {v(vT2)}, {f2u(1/512.):#x}")
    A(f"v_fma_f32 {v(vT1)}, {v(hs+1)}, {v(vT2)}, -{v(vT1)}")
    A(f"v_max_f32 {v(vT1)}, 0, {v(vT1)}")
    A(f"v_add_f32 {v(vT2)}, {f2u(1e-5):#x}, {v(vT1)}")
    A(f"v_rcp_f32 {v(vT0)}, {v(vT2)}")
    A(f"v_rsq_f32 {v(vRs)}, {v(vT2)}")
    A(f"v_mul_f32 {v(vT1)}, {v(vT1)}, {v(vT0)}")
    A(f"v_add_f32 {v(vT1)}, {f2u(1e-5):#x}, {v(vT1)}")
    A(f"v_rsq_f32 {v(vT1)}, {v(vT1)}")
    A(f"v_mul_f32 {v(vRs)}, {v(vRs)}, {v(vT1)}")
    A(f"v_mul_f32 {v(vMr)}, {v(vMean)}, {v(vRs)}")
    A(f"v_lshlrev_b32 {v(hs)}, 16, {v(vb1)}")
    A(f"v_and_b32 {v(hs+1)}, 0xffff0000, {v(vb1)}")
    A(f"v_lshlrev_b32 {v(vT0)}, 3, {v(vLane)}")
    A(f"v_add_u32 {v(vT0)}, {BI}, {v(vT0)}")
    A(f"ds_write_b64 {v(vT0)}, {v(hs,2)}")
    def rd(n):
        p, pos = n >> 5, n & 31
        for b in range(2):
            o = (pos >> 2) * 8192 + b * 512
            base = vB[pos & 3]
            A(f"ds_read_b64_tr_b16 {v(Bf[n&1][b],2)}, {v(base)} offset:{o}")
            A(f"ds_read_b64_tr_b16 {v(Bf[n&1][b]+2,2)}, {v(base)} offset:{o+1024}")
    K.stamp()
    A("s_barrier")
    K.stamp()
    rd(0)
    for n in range(64):
        p, pos = n >> 5, n & 31
        if n + 1 < 64:
            if (n + 1) % 8 == 0:
                A("s_waitcnt lgkmcnt(0)")
                A("s_barrier")
                if n + 1 == 32:
                    K.stamp()
                    for q in range(4): A(f"v_add_u32 {v(vB[q])}, 65536, {v(vB[q])}")
            rd(n + 1)
            A("s_waitcnt lgkmcnt(4)")
        else:
            A("s_waitcnt lgkmcnt(0)")
        if p == 0 and pos % 4 == 0:
            A(f"s_waitcnt vmcnt({28 - pos})")
        for b in range(2):
            t = 2 * p + b
            A(f"v_mfma_f32_32x32x16_bf16 {v(acc[t],16)}, {v(Bf[n&1][b],4)}, {v(Af[pos],4)}, {'0' if pos == 0 else v(acc[t],16)}")
            if pos % 4 == 0:
                A(f"v_mfma_f32_16x16x32_bf16 {v(csa[t],4)}, {v(Bf[n&1][b],4)}, {v(msk,4)}, {'0' if pos == 0 else v(csa[t],4)}")
    K.stamp()
    sSave = S.alloc(2)
    A(f"v_and_b32 {v(vT0)}, 15, {v(vLane)}")
    A(f"v_lshrrev_b32 {v(vT1)}, 4, {v(vLane)}")
    A(f"v_lshlrev_b32 {v(vT1)}, 4, {v(vT1)}")
    A(f"v_lshl_add_u32 {v(vT1)}, {v(vT0)}, 6, {v(vT1)}")
    A(f"s_lshl_b32 {s(sT0)}, {s(sW)}, 9")
    A(f"s_add_u32 {s(sT0)}, {s(sT0)}, {CS}")
    A(f"v_add_u32 {v(vT1)}, {s(sT0)}, {v(vT1)}")
    A(f"v_cmp_gt_u32 vcc, 2, {v(vT0)}")
    A(f"s_and_saveexec_b64 {s(sSave,2)}, vcc")
    for t in range(4): A(f"ds_write_b128 {v(vT1)}, {v(csa[t],4)} offset:{t*128}")
    A(f"s_mov_b64 exec, {s(sSave,2)}")
    A("s_waitcnt lgkmcnt(0)")
    A("s_barrier")
    K.stamp()
    A(f"v_lshlrev_b32 {v(vT0)}, 4, {v(vHf)}")
    A(f"v_add_u32 {v(vT0)}, {CS}, {v(vT0)}")
    c1 = -2.0 * 0.7978845608028654 * LOG2E
    c2 = c1 * 0.044715
    vC1, vC2 = V.alloc(), V.alloc()
    A(f"v_mov_b32 {v(vC1)}, {f2u(c1):#x}")
    A(f"v_mov_b32 {v(vC2)}, {f2u(c2):#x}")
    tmp = Af[0]
    def R(i): return Af[0] + 16 * i
    A(f"s_lshl_b32 {s(sB)}, {s(sR32)}, 0")
    A(f"s_mul_i32 {s(sB)}, {s(sB)}, {112*1024}")
    A(f"s_lshl_b32 {s(sT0)}, {s(sCt)}, 13")
    A(f"s_add_u32 {s(sB)}, {s(sB)}, {s(sT0)}")
    A(f"s_add_u32 {s(sB)}, {s(sB)}, {WS_MF}")
    for t in range(4):
        for pw in range(4):
            for a_ in range(4):
                A(f"ds_read_b128 {v(R(pw)+4*a_,4)}, {v(vT0)} offset:{pw*512 + t*128 + a_*32}")
        for a_ in range(4):
            A(f"ds_read_b128 {v(R(4)+4*a_,4)}, {v(vT0)} offset:{2048 + t*128 + a_*32}")
        A("s_waitcnt lgkmcnt(12)")
        A("s_waitcnt lgkmcnt(4)")
        for r in range(16):
            A(f"v_add_f32 {v(R(0)+r)}, {v(R(0)+r)}, {v(R(1)+r)}")
            A(f"v_add_f32 {v(R(2)+r)}, {v(R(2)+r)}, {v(R(3)+r)}")
        for r in range(16): A(f"v_add_f32 {v(R(0)+r)}, {v(R(0)+r)}, {v(R(2)+r)}")
        A("s_waitcnt lgkmcnt(0)")
        for r in range(16): A(f"v_fma_f32 {v(R(4)+r)}, -{v(vMr)}, {v(R(0)+r)}, {v(R(4)+r)}")
        x = acc[t]
        for r in range(16): A(f"v_fma_f32 {v(x+r)}, {v(x+r)}, {v(vRs)}, {v(R(4)+r)}")
        for r in range(16): A(f"v_mul_f32 {v(R(0)+r)}, {v(x+r)}, {v(x+r)}")
        for r in range(16): A(f"v_fma_f32 {v(R(0)+r)}, {v(R(0)+r)}, {v(vC2)}, {v(vC1)}")
        for r in range(16): A(f"v_mul_f32 {v(R(0)+r)}, {v(R(0)+r)}, {v(x+r)}")
        for r in range(16): A(f"v_exp_f32 {v(R(0)+r)}, {v(R(0)+r)}")
        for r in range(16): A(f"v_add_f32 {v(R(0)+r)}, 1.0, {v(R(0)+r)}")
        for r in range(16): A(f"v_rcp_f32 {v(R(0)+r)}, {v(R(0)+r)}")
        for r in range(16): A(f"v_mul_f32 {v(x+r)}, {v(x+r)}, {v(R(0)+r)}")
        pk = R(5 + (t & 1))
        for i in range(8): A(f"v_cvt_pk_bf16_f32 {v(pk+i)}, {v(x+2*i)}, {v(x+2*i+1)}")
        A(f"buffer_store_dwordx4 {v(pk,4)}, {v(vL16)}, {s(sO,4)}, {s(sB)} offen offset:{t*2048}") if t < 2 else A(f"buffer_store_dwordx4 {v(pk,4)}, {v(vL16)}, {s(sO,4)}, {s(sT1)} offen offset:{(t-2)*2048}")
        A(f"buffer_store_dwordx4 {v(pk+4,4)}, {v(vL16)}, {s(sO,4)}, {s(sB)} offen offset:{t*2048+1024}") if t < 2 else A(f"buffer_store_dwordx4 {v(pk+4,4)}, {v(vL16)}, {s(sO,4)}, {s(sT1)} offen offset:{(t-2)*2048+1024}")
        if t == 1: A(f"s_add_u32 {s(sT1)}, {s(sB)}, 4096")
    K.stamp_out(sO, 3, vT0, vT1)
    K.rt_end(sO, 3, vT0, vT1)
    A.label(END)
    A("s_endpgm")
    print("k4 vgprs", V.hi, "sgprs", S.hi, "lds", K.lds)
    return K

def k5():
    W2 = 0; RED = 0
    K = Kern("k5_mlp2_kernel", (256, 1, 1), (512, 1, 1), 131072)
    A, V, S = K.A, K.V, K.S
    END = "K5_END"
    sP = S.alloc(4); sWs = S.alloc(2); sOut = S.alloc(2)
    A(f"s_load_dwordx4 {s(sP,4)}, s[0:1], 48")
    A(f"s_load_dwordx2 {s(sOut,2)}, s[0:1], 64")
    A(f"s_load_dwordx2 {s(sWs,2)}, s[0:1], 80")
    A(f"s_cmp_ge_u32 s2, 256")
    A(f"s_cbranch_scc1 {END}")
    K.rt_begin()
    K.stamp()
    sW2 = S.alloc(4); sO = S.alloc(4); sB2 = S.alloc(4); sOu = S.alloc(4)
    sW8, sW, sXcd, sJ, sRt, sCt, sT0, sT1, sB = [S.alloc() for _ in range(9)]
    vLane, vT0, vT1, vT2, vHf, vTok, vL16 = [V.alloc() for _ in range(7)]
    wave_ids(K, sW8, sW, vLane, vT0)
    A(f"s_and_b32 {s(sXcd)}, s2, 7")
    A(f"s_lshr_b32 {s(sJ)}, s2, 3")
    A(f"s_and_b32 {s(sT0)}, {s(sJ)}, 3")
    A(f"s_lshl_b32 {s(sRt)}, {s(sXcd)}, 2")
    A(f"s_add_u32 {s(sRt)}, {s(sRt)}, {s(sT0)}")
    A(f"s_lshr_b32 {s(sCt)}, {s(sJ)}, 2")
    A(f"s_cmp_lt_u32 {s(sW8)}, 4")
    A(f"s_cbranch_scc1 K5_COMPUTE")
    mk0 = V.mark()
    vWoff = V.alloc()
    w_voff(A, vWoff, vLane, 1024, vT0, vT1)
    A("s_waitcnt lgkmcnt(0)")
    srd(A, sW2, sP, 1792 * 512 * 2)
    A(f"s_mul_i32 {s(sB)}, {s(sW)}, {448*1024}")
    A(f"s_lshl_b32 {s(sT0)}, {s(sCt)}, 7")
    A(f"s_add_u32 {s(sB)}, {s(sB)}, {s(sT0)}")
    A(f"s_lshl_b32 {s(sT1)}, {s(sW)}, 15")
    def dma(c):
        for q in range(8):
            A(f"s_add_u32 m0, {s(sT1)}, {W2 + (c&3)*8192 + q*1024}")
            A(f"s_add_u32 {s(sT0)}, {s(sB)}, {(64*c + 8*q)*1024}")
            A(f"buffer_load_dwordx4 {v(vWoff)}, {s(sW2,4)}, {s(sT0)} offen lds")
    dma(0); dma(1)
    A("s_waitcnt vmcnt(8)")
    A("s_barrier")
    dma(2); dma(3)
    for sp in range(1, 7):
        issued = min(sp + 2, 6)
        A(f"s_waitcnt vmcnt({8*(issued - sp)})")
        A("s_barrier")
        if sp + 3 < 7: dma(sp + 3)
    A("s_endpgm")
    V.release(mk0)
    A.label("K5_COMPUTE")
    NW = 12
    Af = [[V.alloc(4) for _ in range(2)] for _ in range(NW)]
    acc = [V.alloc(16) for _ in range(4)]
    Bf = [[V.alloc(4) for _ in range(2)] for _ in range(2)]
    vB = V.alloc()
    hr = V.alloc(8); b2r = V.alloc(8)
    A(f"v_lshlrev_b32 {v(vL16)}, 4, {v(vLane)}")
    A(f"v_lshrrev_b32 {v(vHf)}, 5, {v(vLane)}")
    A(f"v_and_b32 {v(vTok)}, 31, {v(vLane)}")
    A("s_waitcnt lgkmcnt(0)")
    srd(A, sO, sWs, WS_SIZE)
    srd(A, sB2, sP + 2, 512 * 2)
    srd(A, sOu, sOut, 2048 * 512 * 2)
    sBb, sRr, sA0, sA1 = [S.alloc() for _ in range(4)]
    A(f"s_lshr_b32 {s(sBb)}, {s(sW)}, 1")
    A(f"s_and_b32 {s(sRr)}, {s(sW)}, 1")
    A(f"s_lshl_b32 {s(sT0)}, {s(sRt)}, 1")
    A(f"s_add_u32 {s(sT0)}, {s(sT0)}, {s(sRr)}")
    A(f"s_lshl_b32 {s(sB)}, {s(sT0)}, 15")
    A(f"s_lshl_b32 {s(sT1)}, {s(sCt)}, 12")
    A(f"s_add_u32 {s(sB)}, {s(sB)}, {s(sT1)}")
    A(f"s_lshl_b32 {s(sT1)}, {s(sBb)}, 11")
    A(f"s_add_u32 {s(sB)}, {s(sB)}, {s(sT1)}")
    A(f"s_add_u32 {s(sB)}, {s(sB)}, {WS_HF}")
    A(f"buffer_load_dwordx4 {v(hr,4)}, {v(vL16)}, {s(sO,4)}, {s(sB)} offen")
    A(f"buffer_load_dwordx4 {v(hr+4,4)}, {v(vL16)}, {s(sO,4)}, {s(sB)} offen offset:1024")
    A(f"s_lshl_b32 {s(sT0)}, {s(sCt)}, 7")
    A(f"s_lshl_b32 {s(sT1)}, {s(sBb)}, 6")
    A(f"s_add_u32 {s(sT0)}, {s(sT0)}, {s(sT1)}")
    A(f"v_lshlrev_b32 {v(vT0)}, 3, {v(vHf)}")
    for a_ in range(4):
        A(f"buffer_load_dwordx2 {v(b2r+2*a_,2)}, {v(vT0)}, {s(sB2,4)}, {s(sT0)} offen offset:{a_*16}")
    A(f"s_mul_i32 {s(sA0)}, {s(sRt)}, {2*112*1024}")
    A(f"s_mul_i32 {s(sT0)}, {s(sW)}, {28*1024}")
    A(f"s_add_u32 {s(sA0)}, {s(sA0)}, {s(sT0)}")
    A(f"s_add_u32 {s(sA0)}, {s(sA0)}, {WS_MF}")
    A(f"s_add_u32 {s(sA1)}, {s(sA0)}, {112*1024}")
    def lda(n):
        for r, sa in ((0, sA0), (1, sA1)):
            if n % 4 == 0 and n:
                A(f"s_add_u32 {s(sa)}, {s(sa)}, 4096")
            A(f"buffer_load_dwordx4 {v(Af[n % NW][r],4)}, {v(vL16)}, {s(sO,4)}, {s(sa)} offen offset:{(n&3)*1024}")
    for n in range(NW): lda(n)
    tr_pi_base(A, vB, vLane, vHf, vT0, vT1)
    A(f"s_lshl_b32 {s(sT0)}, {s(sW)}, 15")
    A(f"v_add_u32 {v(vB)}, {s(sT0)}, {v(vB)}")
    def rd(n):
        c, i = n >> 2, n & 3
        for b in range(2):
            o = W2 + (c & 3) * 8192 + i * 2048 + b * 512
            A(f"ds_read_b64_tr_b16 {v(Bf[n&1][b],2)}, {v(vB)} offset:{o}")
            A(f"ds_read_b64_tr_b16 {v(Bf[n&1][b]+2,2)}, {v(vB)} offset:{o+1024}")
    K.stamp()
    A("s_barrier")
    K.stamp()
    rd(0)
    for n in range(28):
        if n + 1 < 28:
            if (n + 1) % 4 == 0:
                A("s_waitcnt lgkmcnt(0)")
                A("s_barrier")
                if n + 1 == 12: K.stamp()
            rd(n + 1)
            A("s_waitcnt lgkmcnt(4)")
        else:
            A("s_waitcnt lgkmcnt(0)")
        later = min(n + NW - 1, 27) - n
        A(f"s_waitcnt vmcnt({2*later})")
        for b in range(2):
            for r in range(2):
                t = 2 * b + r
                A(f"v_mfma_f32_32x32x16_bf16 {v(acc[t],16)}, {v(Bf[n&1][b],4)}, {v(Af[n%NW][r],4)}, {'0' if n == 0 else v(acc[t],16)}")
        if n + NW < 28: lda(n + NW)
    K.stamp()
    A("s_barrier")
    out = Af[0][0]
    reduce4(K, acc, RED, sW, vL16, vT0, sT0, out)
    K.stamp()
    un = acc[0]
    for i in range(8):
        A(f"v_lshlrev_b32 {v(un+2*i)}, 16, {v(hr+i)}")
        A(f"v_and_b32 {v(un+2*i+1)}, 0xffff0000, {v(hr+i)}")
    for r in range(16): A(f"v_add_f32 {v(out+r)}, {v(out+r)}, {v(un+r)}")
    for i in range(8):
        A(f"v_lshlrev_b32 {v(un+2*i)}, 16, {v(b2r+i)}")
        A(f"v_and_b32 {v(un+2*i+1)}, 0xffff0000, {v(b2r+i)}")
    for r in range(16): A(f"v_add_f32 {v(out+r)}, {v(out+r)}, {v(un+r)}")
    pk = acc[1]
    for i in range(8): A(f"v_cvt_pk_bf16_f32 {v(pk+i)}, {v(out+2*i)}, {v(out+2*i+1)}")
    for base in (0, 4):
        A(f"v_permlane32_swap_b32 {v(pk+base)}, {v(pk+base+2)}")
        A(f"v_permlane32_swap_b32 {v(pk+base+1)}, {v(pk+base+3)}")
    A(f"s_lshl_b32 {s(sT0)}, {s(sRt)}, 16")
    A(f"s_lshl_b32 {s(sT1)}, {s(sRr)}, 15")
    A(f"s_add_u32 {s(sT0)}, {s(sT0)}, {s(sT1)}")
    A(f"s_lshl_b32 {s(sT1)}, {s(sCt)}, 7")
    A(f"s_add_u32 {s(sT0)}, {s(sT0)}, {s(sT1)}")
    A(f"s_lshl_b32 {s(sT1)}, {s(sBb)}, 6")
    A(f"s_add_u32 {s(sT0)}, {s(sT0)}, {s(sT1)}")
    A(f"v_lshlrev_b32 {v(vT0)}, 10, {v(vTok)}")
    A(f"v_lshl_add_u32 {v(vT0)}, {v(vHf)}, 4, {v(vT0)}")
    A(f"buffer_store_dwordx4 {v(pk,4)}, {v(vT0)}, {s(sOu,4)}, {s(sT0)} offen")
    A(f"buffer_store_dwordx4 {v(pk+4,4)}, {v(vT0)}, {s(sOu,4)}, {s(sT0)} offen offset:32")
    K.stamp_out(sO, 4, vT0, vT1)
    K.rt_end(sO, 4, vT0, vT1)
    A.label(END)
    A("s_endpgm")
    print("k5 vgprs", V.hi, "sgprs", S.hi, "lds", K.lds)
    return K

def build(kernels, path):
    hdr = open(f"cdna_kernels/{NAME}.s.ref").read().split("; Override launch")[0]
    out = hdr
    for K in kernels:
        if len(kernels) == 1 and K.name == NAME + "_kernel":
            out += f"; @launch grid=({K.grid[0]},{K.grid[1]},{K.grid[2]}) block=({K.block[0]},{K.block[1]},{K.block[2]}) lds={K.lds}\n"
            continue
        out += f"; @launch kernel={K.name} grid=({K.grid[0]},{K.grid[1]},{K.grid[2]}) block=({K.block[0]},{K.block[1]},{K.block[2]}) lds={K.lds}\n"
    out += '.amdgcn_target "amdgcn-amd-amdhsa--gfx950"\n.text\n'
    kds = ""
    for K in kernels:
        t, kd = K.finish()
        out += t; kds += ".p2align 6\n" + kd
    out += '.section .rodata,"a"\n' + kds
    open(path, "w").write(out)

if __name__ == "__main__":
    if "stamp" in sys.argv: STAMP = True
    if "rt" in sys.argv: RT = True
    FLAGS = set(sys.argv[2:])
    ks = [k1(), k2(1 if 'q1' in FLAGS else 2), k3(), k4(), k5()]
    build(ks, sys.argv[1] if len(sys.argv) > 1 else "out.s")
```

```python
import sys
import gen as G
from gen import *
from dsl import *

WS_CNT = (21 << 20)
G.WS_CNT = WS_CNT
G.WS_HS = WS_HS = 20 << 20
WS_CSG = (20 << 20) + (512 << 10)
G.WS_STAMP = WS_STAMP = (21 << 20) + (512 << 10)

PRIO_IT = 13
NPOLL = 1
PSLEEP = 4
WIN5 = 8
def km(nqb=2, prio=True):
    ks = nqb
    LOCAL = 'local' in G.FLAGS
    LSC = '' if LOCAL else ' sc1'
    LLD = '' if (LOCAL and 'ldsc1' not in G.FLAGS) else ' sc1'
    KR = 0; VR = 65536; ON = 131072
    WO = 0; XT = 65536; RED = XT + 8192
    W1 = 0; CS = 139264; BI = CS + 512
    W2 = 0; RED5 = 0
    TKL = BI + 512 + 2048
    STP = BI + 512
    K = Kern(NAME + "_kernel", (256, 1, 1), (512, 1, 1), BI + 512 + 2048 + 64)
    A, V, S = K.A, K.V, K.S
    END = "KM_END"
    sWs = S.alloc(2); sPx = S.alloc(2); sPwo = S.alloc(2); sP1 = S.alloc(4); sP2 = S.alloc(4); sPo = S.alloc(2)
    sPq = S.alloc(2); sDbg = S.alloc(2)
    A(f"s_load_dwordx2 {s(sPx,2)}, s[0:1], 0")
    A(f"s_load_dwordx2 {s(sPq,2)}, s[0:1], 8")
    A(f"s_load_dwordx2 {s(sWs,2)}, s[0:1], 80")
    A(f"s_load_dwordx2 {s(sPwo,2)}, s[0:1], 16")
    A(f"s_load_dwordx2 {s(sDbg,2)}, s[0:1], 72")
    A(f"s_load_dwordx4 {s(sP1,4)}, s[0:1], 32")
    A(f"s_load_dwordx4 {s(sP2,4)}, s[0:1], 48")
    A(f"s_load_dwordx2 {s(sPo,2)}, s[0:1], 64")
    A(f"s_cmp_ge_u32 s2, 256")
    A(f"s_cbranch_scc1 {END}")
    K.rt_begin()
    K.stamp()
    if "dbgt" in G.FLAGS:
        sDT = S.alloc(4)
        A(f"s_memrealtime {s(sDT,2)}")
        A(f"s_memtime {s(sDT+2,2)}")
    sO = S.alloc(4); sRa = S.alloc(4); sRb = S.alloc(4)
    sW8, sW, sXcd, sJ, sT0, sT1, sB, sJ3, sJ2, sCn = [S.alloc() for _ in range(10)]
    sSave = S.alloc(2)
    sXcP, sTkP, sHqP, sCsF = S.alloc(), S.alloc(), S.alloc(), S.alloc()
    vLane, vT0, vT1, vT2, vHf, vTok, vL16 = [V.alloc() for _ in range(7)]
    hpk = V.alloc(4)
    vPoll = V.alloc(4)
    wave_ids(K, sW8, sW, vLane, vT0)
    A(f"s_and_b32 {s(sXcd)}, s2, 7")
    A(f"s_lshr_b32 {s(sJ)}, s2, 3")
    A(f"s_and_b32 {s(sJ3)}, {s(sJ)}, 3")
    A(f"s_lshr_b32 {s(sJ2)}, {s(sJ)}, 2")
    A(f"v_lshlrev_b32 {v(vL16)}, 4, {v(vLane)}")
    A(f"v_lshrrev_b32 {v(vHf)}, 5, {v(vLane)}")
    A(f"v_and_b32 {v(vTok)}, 31, {v(vLane)}")
    def signal(off_sgpr, local=False):
        A(f"v_mov_b32 {v(vT0)}, 1")
        A(f"v_mov_b32 {v(vT1)}, 0")
        A(f"s_mov_b64 exec, 1")
        A(f"buffer_atomic_add {v(vT0)}, {v(vT1)}, {s(sO,4)}, {s(off_sgpr)} offen" + ("" if local else " sc1"))
        A(f"s_mov_b64 exec, -1")
    def poll(off_sgpr, target, tag):
        if NPOLL <= 1:
            A(f"v_mov_b32 {v(vT1)}, 0")
            A(f"s_mov_b32 {s(sT1)}, 3000000")
            A.label(f"KM_POLL_{tag}")
            A(f"buffer_load_dword {v(vT0)}, {v(vT1)}, {s(sO,4)}, {s(off_sgpr)} offen sc1")
            A("s_waitcnt vmcnt(0)")
            A(f"v_readfirstlane_b32 {s(sT0)}, {v(vT0)}")
            A(f"s_cmp_ge_u32 {s(sT0)}, {target}")
            A(f"s_cbranch_scc1 KM_PD_{tag}")
            A("s_sleep 1")
            A(f"s_sub_u32 {s(sT1)}, {s(sT1)}, 1")
            A(f"s_cmp_lg_u32 {s(sT1)}, 0")
            A(f"s_cbranch_scc1 KM_POLL_{tag}")
            A.label(f"KM_PD_{tag}")
            return
        P = vPoll
        A(f"v_mov_b32 {v(vT1)}, 0")
        A(f"s_mov_b32 {s(sT1)}, 1000000")
        for k in range(NPOLL - 1):
            A(f"buffer_load_dword {v(P+k)}, {v(vT1)}, {s(sO,4)}, {s(off_sgpr)} offen sc1")
            A(f"s_sleep {PSLEEP}")
        A.label(f"KM_POLL_{tag}")
        for k in range(NPOLL):
            A(f"buffer_load_dword {v(P+(k+NPOLL-1)%NPOLL)}, {v(vT1)}, {s(sO,4)}, {s(off_sgpr)} offen sc1")
            A(f"s_waitcnt vmcnt({NPOLL-1})")
            A(f"v_readfirstlane_b32 {s(sT0)}, {v(P+k)}")
            A(f"s_cmp_ge_u32 {s(sT0)}, {target}")
            A(f"s_cbranch_scc1 KM_PD_{tag}")
            A(f"s_sleep {PSLEEP}")
        A(f"s_sub_u32 {s(sT1)}, {s(sT1)}, 1")
        A(f"s_cmp_lg_u32 {s(sT1)}, 0")
        A(f"s_cbranch_scc1 KM_POLL_{tag}")
        A.label(f"KM_PD_{tag}")
    def only_wave0(tag, body):
        A(f"s_cmp_lg_u32 {s(sW8)}, 0")
        A(f"s_cbranch_scc1 KM_NW0_{tag}")
        body()
        A.label(f"KM_NW0_{tag}")
    def cnt_off(dst, base, idx_expr):
        idx_expr(dst)
        A(f"s_lshl_b32 {s(dst)}, {s(dst)}, 8")
        A(f"s_add_u32 {s(dst)}, {s(dst)}, {WS_CNT + base}")
    XR = 0; WR = 32768; CS1 = WR + 4 * 24576; ST1 = CS1 + 1536
    mkV1 = V.mark(); mkS1 = S.mark()
    sRt1, sHq, sRot, sXb, sWb, sLx, sLw, sx, sw, sTt, sCh = [S.alloc() for _ in range(11)]
    A(f"s_and_b32 {s(sT0)}, {s(sXcd)}, 3")
    A(f"s_lshl_b32 {s(sT0)}, {s(sT0)}, 3")
    A(f"s_and_b32 {s(sT1)}, {s(sJ)}, 7")
    A(f"s_add_u32 {s(sRt1)}, {s(sT0)}, {s(sT1)}")
    A(f"s_lshr_b32 {s(sT0)}, {s(sXcd)}, 2")
    A(f"s_lshl_b32 {s(sT0)}, {s(sT0)}, 2")
    A(f"s_lshr_b32 {s(sHq)}, {s(sJ)}, 3")
    A(f"s_lshl_b32 {s(sRot)}, {s(sHq)}, 1")
    A(f"s_add_u32 {s(sRot)}, {s(sRot)}, {s(sT1)}")
    A(f"s_add_u32 {s(sRot)}, {s(sRot)}, {s(sXcd)}")
    A(f"s_add_u32 {s(sHq)}, {s(sHq)}, {s(sT0)}")
    A(f"s_and_b32 {s(sTt)}, {s(sW)}, 1")
    A(f"s_lshr_b32 {s(sCh)}, {s(sW)}, 1")
    A(f"s_cmp_lt_u32 {s(sW8)}, 4")
    A(f"s_cbranch_scc1 KM_P1C")
    mkL1 = V.mark()
    vWoff1, vXoff1 = V.alloc(), V.alloc()
    R0 = V.alloc(32); AC = V.alloc(8); UN = V.alloc(8); vo = V.alloc()
    sKc, sCt28, sFl = S.alloc(), S.alloc(), S.alloc()
    sPFt = S.alloc(4)
    A(f"s_mul_i32 {s(sWb)}, {s(sW)}, {8*3072}")
    A(f"s_lshl_b32 {s(sT0)}, {s(sHq)}, 7")
    A(f"s_add_u32 {s(sWb)}, {s(sWb)}, {s(sT0)}")
    A(f"s_lshl_b32 {s(sLx)}, {s(sW)}, 10")
    A(f"s_add_u32 {s(sLw)}, {s(sLx)}, {WR}")
    w_voff(A, vWoff1, vLane, 3072, vT0, vT1)
    A(f"s_lshl_b32 {s(sXb)}, {s(sRt1)}, 16")
    A(f"s_lshl_b32 {s(sT0)}, {s(sW)}, 13")
    A(f"s_add_u32 {s(sXb)}, {s(sXb)}, {s(sT0)}")
    A(f"s_lshl_b32 {s(sT0)}, {s(sTt)}, 2")
    A(f"v_lshrrev_b32 {v(vT0)}, 4, {v(vLane)}")
    A(f"v_or_b32 {v(vT0)}, {s(sT0)}, {v(vT0)}")
    A(f"v_and_b32 {v(vT1)}, 7, {v(vLane)}")
    A(f"v_xor_b32 {v(vT0)}, {v(vT0)}, {v(vT1)}")
    A(f"v_lshlrev_b32 {v(vT0)}, 4, {v(vT0)}")
    A(f"v_lshrrev_b32 {v(vT1)}, 3, {v(vLane)}")
    A(f"v_lshlrev_b32 {v(vT1)}, 10, {v(vT1)}")
    A(f"v_add_u32 {v(vXoff1)}, {v(vT0)}, {v(vT1)}")
    A("s_waitcnt lgkmcnt(0)")
    srd(A, sRa, sPq, 512 * 1536 * 2)
    srd(A, sRb, sPx, 2048 * 512 * 2)
    srd(A, sO, sWs, WS_SIZE)
    def dma_stage1(st):
        slot = st & 3
        A(f"s_add_u32 {s(sT0)}, {s(sRot)}, {st}")
        A(f"s_and_b32 {s(sT0)}, {s(sT0)}, 7")
        A(f"s_lshl_b32 {s(sx)}, {s(sT0)}, 7")
        A(f"s_add_u32 {s(sx)}, {s(sx)}, {s(sXb)}")
        A(f"s_mul_i32 {s(sw)}, {s(sT0)}, {64*3072}")
        A(f"s_add_u32 {s(sw)}, {s(sw)}, {s(sWb)}")
        for n in range(2):
            A(f"s_add_u32 m0, {s(sLx)}, {XR + slot*8192 + n*4096}")
            A(f"s_add_u32 {s(sT1)}, {s(sx)}, {n*32768}")
            A(f"buffer_load_dwordx4 {v(vXoff1)}, {s(sRb,4)}, {s(sT1)} offen lds")
        for b in range(3):
            for n in range(2):
                A(f"s_add_u32 m0, {s(sLw)}, {slot*24576 + b*8192 + n*4096}")
                A(f"s_add_u32 {s(sT1)}, {s(sw)}, {b*1024 + n*32*3072}")
                A(f"buffer_load_dwordx4 {v(vWoff1)}, {s(sRa,4)}, {s(sT1)} offen lds")
    A(f"s_mov_b32 {s(sFl)}, 0")
    A(f"s_or_b32 {s(sT0)}, s2, {s(sW8)}")
    A(f"s_cmp_lg_u32 {s(sT0)}, 5")
    A(f"s_cbranch_scc1 KM_NOZ")
    A(f"s_cmp_lg_u32 s2, 0")
    A(f"s_cbranch_scc1 KM_NOZ")
    A(f"s_mov_b32 {s(sFl)}, 1")
    A(f"v_lshlrev_b32 {v(vT0)}, 8, {v(vLane)}")
    A(f"v_mov_b32 {v(vT1)}, 0")
    A(f"s_mov_b32 {s(sT0)}, {WS_CNT}")
    A(f"s_mov_b32 exec_hi, 0x01ffffff")
    A(f"buffer_store_dword {v(vT1)}, {v(vT0)}, {s(sO,4)}, {s(sT0)} offen sc1")
    A(f"s_mov_b64 exec, -1")
    A.label("KM_NOZ")
    dma_stage1(0); dma_stage1(1)
    A("s_waitcnt vmcnt(8)")
    A("s_barrier")
    A(f"s_cmp_eq_u32 {s(sFl)}, 0")
    A(f"s_cbranch_scc1 KM_NOZ2")
    A(f"v_mov_b32 {v(vT0)}, 0")
    A(f"v_mov_b32 {v(vT1)}, 1")
    A(f"s_mov_b64 exec, 1")
    A(f"global_store_dword {v(vT0)}, {v(vT1)}, {s(sDbg,2)} sc1")
    A(f"s_mov_b64 exec, -1")
    A.label("KM_NOZ2")
    dma_stage1(2); dma_stage1(3)
    for sp in range(1, 8):
        vm = {1: 16, 2: 16, 3: 16, 4: 16, 5: 16, 6: 8, 7: 0}[sp]
        A(f"s_waitcnt vmcnt({vm})")
        A("s_barrier")
        if sp + 3 < 8: dma_stage1(sp + 3)
    A(f"s_mov_b32 {s(sFl)}, 0")
    A(f"s_cmp_lg_u32 {s(sW8)}, 4")
    A(f"s_cbranch_scc1 KM_NOCS0")
    A(f"s_cmp_ge_u32 s2, 224")
    A(f"s_cbranch_scc1 KM_NOCS0")
    A(f"s_mov_b32 {s(sFl)}, 1")
    A(f"s_mul_i32 {s(sKc)}, s2, 2341")
    A(f"s_lshr_b32 {s(sKc)}, {s(sKc)}, 16")
    A(f"s_mul_i32 {s(sCt28)}, {s(sKc)}, 28")
    A(f"s_sub_u32 {s(sCt28)}, s2, {s(sCt28)}")
    A(f"v_lshrrev_b32 {v(vo)}, 3, {v(vLane)}")
    A(f"v_mul_u32_u24 {v(vo)}, 3584, {v(vo)}")
    A(f"v_and_b32 {v(vT0)}, 7, {v(vLane)}")
    A(f"v_lshl_add_u32 {v(vo)}, {v(vT0)}, 4, {v(vo)}")
    A(f"s_mul_i32 {s(sT0)}, {s(sKc)}, {64*3584}")
    A(f"s_lshl_b32 {s(sT1)}, {s(sCt28)}, 7")
    A(f"s_add_u32 {s(sT0)}, {s(sT0)}, {s(sT1)}")
    A(f"s_mov_b32 {s(sPFt)}, {s(sP1)}")
    A(f"s_and_b32 {s(sPFt+1)}, {s(sP1+1)}, 0xffff")
    A(f"s_mov_b32 {s(sPFt+2)}, {512*1792*2}")
    A(f"s_mov_b32 {s(sPFt+3)}, 0x20000")
    for n in range(8):
        A(f"buffer_load_dwordx4 {v(R0+4*n,4)}, {v(vo)}, {s(sPFt,4)}, {s(sT0)} offen")
        A(f"s_add_u32 {s(sT0)}, {s(sT0)}, {8*3584}")
    A.label("KM_NOCS0")
    A("s_barrier")
    A(f"s_cmp_lg_u32 {s(sW8)}, 6")
    A(f"s_cbranch_scc1 KM_P1W")
    A(f"v_mov_b32 {v(vT1)}, 0")
    A(f"s_mov_b32 {s(sT1)}, 3000000")
    A.label("KM_POLL_Z")
    A(f"global_load_dword {v(vT0)}, {v(vT1)}, {s(sDbg,2)} sc1")
    A("s_waitcnt vmcnt(0)")
    A(f"v_readfirstlane_b32 {s(sT0)}, {v(vT0)}")
    A(f"s_cmp_lg_u32 {s(sT0)}, 0")
    A(f"s_cbranch_scc1 KM_P1W")
    A("s_sleep 1")
    A(f"s_sub_u32 {s(sT1)}, {s(sT1)}, 1")
    A(f"s_cmp_lg_u32 {s(sT1)}, 0")
    A(f"s_cbranch_scc1 KM_POLL_Z")
    A.label("KM_P1W")
    A("s_waitcnt vmcnt(0)")
    A("s_branch KM_P1E")
    V.release(mkL1)
    A.label("KM_P1C")
    vXA = [V.alloc() for _ in range(4)]; vWA = [V.alloc() for _ in range(8)]
    acc = [V.alloc(16) for _ in range(3)]
    sq = V.alloc(8); sm = V.alloc(8)
    mk = V.mark()
    csa = [V.alloc(4) for _ in range(3)]; msk = V.alloc(4)
    Xf = [V.alloc(4) for _ in range(2)]
    Wf = [[V.alloc(4) for _ in range(3)] for _ in range(2)]
    un = V.alloc(8); vMask = V.alloc()
    A(f"v_lshrrev_b32 {v(vT2)}, 1, {v(vTok)}")
    A(f"v_and_b32 {v(vT2)}, 7, {v(vT2)}")
    A(f"s_lshl_b32 {s(sT1)}, {s(sTt)}, 12")
    for pos in range(4):
        A(f"s_xor_b32 {s(sT0)}, {s(sW)}, {pos}")
        A(f"s_lshl_b32 {s(sT0)}, {s(sT0)}, 1")
        A(f"v_add_u32 {v(vT0)}, {s(sT0)}, {v(vHf)}")
        A(f"v_xor_b32 {v(vT0)}, {v(vT0)}, {v(vT2)}")
        A(f"v_lshlrev_b32 {v(vT0)}, 4, {v(vT0)}")
        A(f"v_lshl_add_u32 {v(vT0)}, {v(vTok)}, 7, {v(vT0)}")
        A(f"v_add_u32 {v(vXA[pos])}, {s(sT1)}, {v(vT0)}")
    A(f"v_and_b32 {v(vT0)}, 15, {v(vLane)}")
    A(f"v_lshrrev_b32 {v(vT1)}, 2, {v(vT0)}")
    A(f"v_lshlrev_b32 {v(vT1)}, 6, {v(vT1)}")
    A(f"v_lshl_add_u32 {v(vT1)}, {v(vHf)}, 10, {v(vT1)}")
    A(f"v_and_b32 {v(vT0)}, 3, {v(vT0)}")
    A(f"v_lshl_add_u32 {v(vT1)}, {v(vT0)}, 3, {v(vT1)}")
    A(f"v_bfe_u32 {v(vT0)}, {v(vLane)}, 4, 1")
    A(f"v_lshl_add_u32 {v(vT1)}, {v(vT0)}, 5, {v(vT1)}")
    A(f"s_lshl_b32 {s(sw)}, {s(sCh)}, 9")
    A(f"s_add_u32 {s(sw)}, {s(sw)}, {WR}")
    for pos in range(4):
        A(f"s_xor_b32 {s(sT0)}, {s(sW)}, {pos}")
        A(f"s_lshl_b32 {s(sT0)}, {s(sT0)}, 11")
        A(f"s_add_u32 {s(sT0)}, {s(sT0)}, {s(sw)}")
        A(f"v_add_u32 {v(vWA[pos])}, {s(sT0)}, {v(vT1)}")
        A(f"v_add_u32 {v(vWA[4+pos])}, {2*24576}, {v(vWA[pos])}")
    A(f"v_and_b32 {v(vT0)}, 15, {v(vLane)}")
    A(f"v_bfe_u32 {v(vT1)}, {v(vLane)}, 4, 1")
    A(f"v_cmp_eq_u32 vcc, {v(vT0)}, {v(vT1)}")
    A(f"v_mov_b32 {v(vT0)}, 0x3f803f80")
    for i in range(4): A(f"v_cndmask_b32 {v(msk+i)}, 0, {v(vT0)}, vcc")
    A(f"v_mov_b32 {v(vMask)}, 0xffff0000")
    for i in range(8):
        A(f"v_mov_b32 {v(sq+i)}, 0"); A(f"v_mov_b32 {v(sm+i)}, 0")
    def reads1(n):
        slot = (n >> 2) & 3; pos = n & 3; bf = n & 1
        A(f"ds_read_b128 {v(Xf[bf],4)}, {v(vXA[pos])} offset:{XR + slot*8192}")
        wa = vWA[pos + (4 if slot >= 2 else 0)]
        for b in range(3):
            o = (slot & 1) * 24576 + b * 8192
            A(f"ds_read_b64_tr_b16 {v(Wf[bf][b],2)}, {v(wa)} offset:{o}")
            A(f"ds_read_b64_tr_b16 {v(Wf[bf][b]+2,2)}, {v(wa)} offset:{o+256}")
    def compute1(n):
        bf = n & 1; pos = n & 3
        c = lambda b: "0" if n == 0 else v(acc[b], 16)
        cs_ = pos in (0, 2); st_ = pos in (0, 1)
        def mc(b):
            if cs_: A(f"v_mfma_f32_16x16x32_bf16 {v(csa[b],4)}, {v(Wf[bf][b],4)}, {v(msk,4)}, {'0' if n == 0 else v(csa[b],4)}")
        A(f"v_mfma_f32_32x32x16_bf16 {v(acc[0],16)}, {v(Wf[bf][0],4)}, {v(Xf[bf],4)}, {c(0)}")
        if st_:
            for i in range(4):
                A(f"v_lshlrev_b32 {v(un+2*i)}, 16, {v(Xf[bf]+i)}")
                A(f"v_and_b32 {v(un+2*i+1)}, {v(vMask)}, {v(Xf[bf]+i)}")
        mc(0)
        A(f"v_mfma_f32_32x32x16_bf16 {v(acc[1],16)}, {v(Wf[bf][1],4)}, {v(Xf[bf],4)}, {c(1)}")
        if st_:
            for i in range(8): A(f"v_fmac_f32 {v(sq+i)}, {v(un+i)}, {v(un+i)}")
        mc(1)
        A(f"v_mfma_f32_32x32x16_bf16 {v(acc[2],16)}, {v(Xf[bf],4)}, {v(Wf[bf][2],4)}, {c(2)}")
        if st_:
            for i in range(8): A(f"v_add_f32 {v(sm+i)}, {v(un+i)}, {v(sm+i)}")
        mc(2)
    A("s_waitcnt lgkmcnt(0)")
    srd(A, sO, sWs, WS_SIZE)
    sTile, sHp, sQo, sKo, sVo = [S.alloc() for _ in range(5)]
    A(f"s_lshl_b32 {s(sTile)}, {s(sRt1)}, 1")
    A(f"s_add_u32 {s(sTile)}, {s(sTile)}, {s(sTt)}")
    A(f"s_lshl_b32 {s(sHp)}, {s(sHq)}, 1")
    A(f"s_add_u32 {s(sHp)}, {s(sHp)}, {s(sCh)}")
    A(f"s_lshl_b32 {s(sT0)}, {s(sHp)}, 17")
    A(f"s_lshl_b32 {s(sT1)}, {s(sTile)}, 10")
    A(f"s_add_u32 {s(sQo)}, {s(sT0)}, {s(sT1)}")
    A(f"s_add_u32 {s(sKo)}, {s(sQo)}, {WS_KF}")
    A(f"s_add_u32 {s(sVo)}, {s(sQo)}, {WS_VF}")
    A("s_barrier")
    K.stamp()
    reads1(0)
    for n in range(32):
        if n + 1 < 32:
            if (n + 1) % 4 == 0:
                A(f"s_waitcnt lgkmcnt(0)")
                A("s_barrier")
            reads1(n + 1)
            A("s_waitcnt lgkmcnt(7)")
        else:
            A("s_waitcnt lgkmcnt(0)")
        compute1(n)
    K.stamp()
    for L in (sq, sm):
        for st in (4, 2, 1):
            for i in range(st): A(f"v_add_f32 {v(L+i)}, {v(L+i)}, {v(L+i+st)}")
    swap_add(A, sm, vT1)
    swap_add(A, sq, vT2)
    A(f"s_lshl_b32 {s(sT0)}, {s(sW)}, 8")
    A(f"s_add_u32 {s(sT0)}, {s(sT0)}, {ST1}")
    A(f"v_lshl_add_u32 {v(vT0)}, {v(vTok)}, 2, {s(sT0)}")
    A(f"ds_write_b32 {v(vT0)}, {v(sm)}")
    A(f"ds_write_b32 {v(vT0)}, {v(sq)} offset:128")
    A(f"v_and_b32 {v(vT0)}, 15, {v(vLane)}")
    A(f"v_lshrrev_b32 {v(vT1)}, 4, {v(vLane)}")
    A(f"v_lshlrev_b32 {v(vT1)}, 4, {v(vT1)}")
    A(f"v_lshl_add_u32 {v(vT1)}, {v(vT0)}, 6, {v(vT1)}")
    A(f"s_mul_i32 {s(sx)}, {s(sTt)}, 768")
    A(f"s_lshl_b32 {s(sw)}, {s(sCh)}, 7")
    A(f"s_add_u32 {s(sx)}, {s(sx)}, {s(sw)}")
    A(f"s_add_u32 {s(sx)}, {s(sx)}, {CS1}")
    A(f"v_add_u32 {v(vT1)}, {s(sx)}, {v(vT1)}")
    A(f"v_cmp_gt_u32 vcc, 2, {v(vT0)}")
    A(f"s_and_saveexec_b64 {s(sSave,2)}, vcc")
    for b in range(3): A(f"ds_write_b128 {v(vT1)}, {v(csa[b],4)} offset:{b*256}")
    A(f"s_mov_b64 exec, {s(sSave,2)}")
    A("s_waitcnt lgkmcnt(0)")
    A("s_barrier")
    V.release(mk)
    csr = V.alloc(16); csr2 = V.alloc(16); st1 = V.alloc(16); st2 = V.alloc(16)
    vCv, vMean, vRstd, vRq = [V.alloc() for _ in range(4)]
    A(f"s_lshl_b32 {s(sx)}, {s(sTt)}, 8")
    A(f"s_add_u32 {s(sx)}, {s(sx)}, {ST1}")
    A(f"v_lshl_add_u32 {v(vT1)}, {v(vTok)}, 2, {s(sx)}")
    p4 = V.alloc(4)
    A(f"ds_read_b32 {v(p4)}, {v(vT1)}")
    A(f"ds_read_b32 {v(p4+1)}, {v(vT1)} offset:512")
    A(f"ds_read_b32 {v(p4+2)}, {v(vT1)} offset:128")
    A(f"ds_read_b32 {v(p4+3)}, {v(vT1)} offset:640")
    A(f"s_lshl_b32 {s(sw)}, {s(sCh)}, 7")
    A(f"s_add_u32 {s(sw)}, {s(sw)}, {CS1}")
    A(f"v_lshl_add_u32 {v(vT0)}, {v(vHf)}, 4, {s(sw)}")
    for a_ in range(4): A(f"ds_read_b128 {v(csr+4*a_,4)}, {v(vT0)} offset:{a_*32}")
    for a_ in range(4): A(f"ds_read_b128 {v(st1+4*a_,4)}, {v(vT0)} offset:{768+a_*32}")
    A("s_waitcnt lgkmcnt(4)")
    for a_ in range(4): A(f"ds_read_b128 {v(csr2+4*a_,4)}, {v(vT0)} offset:{256+a_*32}")
    for a_ in range(4): A(f"ds_read_b128 {v(st2+4*a_,4)}, {v(vT0)} offset:{768+256+a_*32}")
    A(f"v_lshl_add_u32 {v(vT1)}, {v(vTok)}, 2, {s(sw)}")
    vCv2 = V.alloc()
    A(f"ds_read_b32 {v(vCv)}, {v(vT1)} offset:512")
    A(f"ds_read_b32 {v(vCv2)}, {v(vT1)} offset:{768+512}")
    A("s_waitcnt lgkmcnt(10)")
    for r in range(16): A(f"v_add_f32 {v(csr+r)}, {v(csr+r)}, {v(st1+r)}")
    A("s_waitcnt lgkmcnt(0)")
    for r in range(16): A(f"v_add_f32 {v(csr2+r)}, {v(csr2+r)}, {v(st2+r)}")
    A(f"v_add_f32 {v(vCv)}, {v(vCv)}, {v(vCv2)}")
    pk = V.alloc(8); pk2 = V.alloc(8); pk3 = pk
    vMr = p4 + 1
    A(f"v_add_f32 {v(p4)}, {v(p4)}, {v(p4+1)}")
    A(f"v_add_f32 {v(p4+2)}, {v(p4+2)}, {v(p4+3)}")
    A(f"v_mul_f32 {v(vMean)}, {f2u(1/512.):#x}, {v(p4)}")
    A(f"v_mul_f32 {v(vT1)}, {v(vMean)}, {v(vMean)}")
    A(f"v_mov_b32 {v(vT2)}, {f2u(1/512.):#x}")
    A(f"v_fma_f32 {v(vT1)}, {v(p4+2)}, {v(vT2)}, -{v(vT1)}")
    A(f"v_max_f32 {v(vT1)}, 0, {v(vT1)}")
    A(f"v_add_f32 {v(vT1)}, {f2u(1e-5):#x}, {v(vT1)}")
    A(f"v_rsq_f32 {v(vRstd)}, {v(vT1)}")
    A(f"v_mul_f32 {v(vMr)}, {v(vMean)}, {v(vRstd)}")
    A(f"s_lshl_b32 {s(sx)}, {s(sW)}, 8")
    A(f"s_add_u32 {s(sx)}, {s(sx)}, {ST1 + 1024}")
    A(f"v_lshl_add_u32 {v(vT1)}, {v(vTok)}, 2, {s(sx)}")
    A(f"ds_write_b32 {v(vT1)}, {v(vMr)}")
    A(f"ds_write_b32 {v(vT1)}, {v(vRstd)} offset:128")
    A(f"v_lshl_add_u32 {v(vT0)}, {v(vHf)}, 4, {s(sx)}")
    A(f"v_mul_f32 {v(vRq)}, {f2u(LOG2E*0.25):#x}, {v(vRstd)}")
    A("s_waitcnt lgkmcnt(0)")
    for a_ in range(4): A(f"ds_read_b128 {v(st1+4*a_,4)}, {v(vT0)} offset:{a_*32}")
    for a_ in range(4): A(f"ds_read_b128 {v(st2+4*a_,4)}, {v(vT0)} offset:{128+a_*32}")
    for r in range(16): A(f"v_fma_f32 {v(acc[1]+r)}, -{v(vMean)}, {v(csr2+r)}, {v(acc[1]+r)}")
    for r in range(16): A(f"v_mul_f32 {v(acc[1]+r)}, {v(vRstd)}, {v(acc[1]+r)}")
    for i in range(8): A(f"v_cvt_pk_bf16_f32 {v(pk2+i)}, {v(acc[1]+2*i)}, {v(acc[1]+2*i+1)}")
    A(f"buffer_store_dwordx4 {v(pk2,4)}, {v(vL16)}, {s(sO,4)}, {s(sKo)} offen sc1")
    A(f"s_add_u32 {s(sT0)}, {s(sKo)}, 65536")
    A(f"buffer_store_dwordx4 {v(pk2+4,4)}, {v(vL16)}, {s(sO,4)}, {s(sT0)} offen sc1")
    for r in range(16): A(f"v_fma_f32 {v(acc[0]+r)}, -{v(vMean)}, {v(csr+r)}, {v(acc[0]+r)}")
    for r in range(16): A(f"v_mul_f32 {v(acc[0]+r)}, {v(vRq)}, {v(acc[0]+r)}")
    for i in range(8): A(f"v_cvt_pk_bf16_f32 {v(pk+i)}, {v(acc[0]+2*i)}, {v(acc[0]+2*i+1)}")
    A(f"buffer_store_dwordx4 {v(pk,4)}, {v(vL16)}, {s(sO,4)}, {s(sQo)} offen sc1")
    A(f"s_add_u32 {s(sT0)}, {s(sQo)}, 65536")
    A(f"buffer_store_dwordx4 {v(pk+4,4)}, {v(vL16)}, {s(sO,4)}, {s(sT0)} offen sc1")
    A("s_waitcnt lgkmcnt(0)")
    for r in range(16): A(f"v_mul_f32 {v(st1+r)}, {v(vCv)}, {v(st1+r)}")
    for r in range(16): A(f"v_fma_f32 {v(acc[2]+r)}, {v(acc[2]+r)}, {v(st2+r)}, -{v(st1+r)}")
    pk3 = csr
    for i in range(8): A(f"v_cvt_pk_bf16_f32 {v(pk3+i)}, {v(acc[2]+2*i)}, {v(acc[2]+2*i+1)}")
    A(f"v_lshrrev_b32 {v(vT0)}, 4, {v(vTok)}")
    A(f"v_lshlrev_b32 {v(vT0)}, 16, {v(vT0)}")
    A(f"v_lshl_add_u32 {v(vT0)}, {v(vHf)}, 8, {v(vT0)}")
    A(f"v_and_b32 {v(vT1)}, 15, {v(vTok)}")
    A(f"v_lshl_add_u32 {v(vT0)}, {v(vT1)}, 4, {v(vT0)}")
    A(f"buffer_store_dwordx4 {v(pk3,4)}, {v(vT0)}, {s(sO,4)}, {s(sVo)} offen sc1")
    A(f"buffer_store_dwordx4 {v(pk3+4,4)}, {v(vT0)}, {s(sO,4)}, {s(sVo)} offen offset:512 sc1")
    vN = [V.alloc(), V.alloc()]
    for e in range(2):
        for i in range(4):
            A(f"v_lshlrev_b32 {v(csr2+2*i)}, 16, {v(pk2+4*e+i)}")
            A(f"v_and_b32 {v(csr2+2*i+1)}, 0xffff0000, {v(pk2+4*e+i)}")
        A(f"v_mul_f32 {v(vN[e])}, {v(csr2)}, {v(csr2)}")
        for i in range(1, 8): A(f"v_fmac_f32 {v(vN[e])}, {v(csr2+i)}, {v(csr2+i)}")
    swap_add(A, vN[0], vT2)
    swap_add(A, vN[1], vT1)
    for sh in (8, 4, 2, 1):
        for e in range(2):
            A(f"v_max_f32_dpp {v(vN[e])}, {v(vN[e])}, {v(vN[e])} row_ror:{sh} row_mask:0xf bank_mask:0xf")
    sN = [S.alloc() for _ in range(4)]
    for e in range(2):
        A(f"v_readlane_b32 {s(sN[2*e])}, {v(vN[e])}, 0")
        A(f"v_readlane_b32 {s(sN[2*e+1])}, {v(vN[e])}, 16")
    for e in range(2): A(f"s_max_u32 {s(sN[2*e])}, {s(sN[2*e])}, {s(sN[2*e+1])}")
    A(f"s_lshl_b32 {s(sT0)}, {s(sHp)}, 9")
    A(f"s_lshl_b32 {s(sT1)}, {s(sTile)}, 2")
    A(f"s_add_u32 {s(sT0)}, {s(sT0)}, {s(sT1)}")
    A(f"s_add_u32 {s(sT0)}, {s(sT0)}, {WS_KMAX}")
    A(f"v_mov_b32 {v(vN[0])}, {s(sN[0])}")
    A(f"v_mov_b32 {v(vN[1])}, {s(sN[2])}")
    A(f"v_mov_b32 {v(vT1)}, 0")
    A("s_mov_b64 exec, 1")
    A(f"buffer_store_dword {v(vN[0])}, {v(vT1)}, {s(sO,4)}, {s(sT0)} offen sc1")
    A(f"buffer_store_dword {v(vN[1])}, {v(vT1)}, {s(sO,4)}, {s(sT0)} offen offset:256 sc1")
    A("s_mov_b64 exec, -1")
    A("s_waitcnt vmcnt(0)")
    A.label("KM_P1E")
    A("s_barrier")
    K.stamp()
    A(f"s_cmp_lg_u32 {s(sW8)}, 4")
    A(f"s_cbranch_scc1 KM_NOCS1")
    A(f"s_cmp_eq_u32 {s(sFl)}, 0")
    A(f"s_cbranch_scc1 KM_NOCS1")
    for i in range(8): A(f"v_mov_b32 {v(AC+i)}, 0")
    for n in range(8):
        for i in range(4):
            A(f"v_lshlrev_b32 {v(UN+2*i)}, 16, {v(R0+4*n+i)}")
            A(f"v_and_b32 {v(UN+2*i+1)}, 0xffff0000, {v(R0+4*n+i)}")
        for i in range(8): A(f"v_add_f32 {v(AC+i)}, {v(AC+i)}, {v(UN+i)}")
    for i in range(8): A(f"v_add_f32_dpp {v(AC+i)}, {v(AC+i)}, {v(AC+i)} row_ror:8 row_mask:0xf bank_mask:0xf")
    for sw_ in ("v_permlane16_swap_b32", "v_permlane32_swap_b32"):
        for i in range(8): A(f"v_mov_b32 {v(UN+i)}, {v(AC+i)}")
        for i in range(8): A(f"{sw_} {v(AC+i)}, {v(UN+i)}")
        for i in range(8): A(f"v_add_f32 {v(AC+i)}, {v(AC+i)}, {v(UN+i)}")
    A(f"s_mul_i32 {s(sT0)}, {s(sKc)}, 7168")
    A(f"s_lshl_b32 {s(sT1)}, {s(sCt28)}, 8")
    A(f"s_add_u32 {s(sT0)}, {s(sT0)}, {s(sT1)}")
    A(f"s_add_u32 {s(sT0)}, {s(sT0)}, {WS_CSG}")
    A(f"v_and_b32 {v(vT0)}, 7, {v(vLane)}")
    A(f"v_lshlrev_b32 {v(vT0)}, 5, {v(vT0)}")
    A(f"s_mov_b64 exec, 0xff")
    A(f"buffer_store_dwordx4 {v(AC,4)}, {v(vT0)}, {s(sO,4)}, {s(sT0)} offen sc1")
    A(f"buffer_store_dwordx4 {v(AC+4,4)}, {v(vT0)}, {s(sO,4)}, {s(sT0)} offen offset:16 sc1")
    A(f"s_mov_b64 exec, -1")
    A.label("KM_NOCS1")
    A(f"s_cmp_lg_u32 {s(sW8)}, 4")
    A(f"s_cselect_b32 {s(sCsF)}, 0, {s(sFl)}")
    sHqS = sHqP
    A(f"s_mov_b32 {s(sHqS)}, {s(sHq)}")
    V.release(mkV1); S.release(mkS1)
    mkV = V.mark(); mkS = S.mark()
    sHead, sWq, sKh, sHb, sIt, sKm, sQt, sL, sG, sL0 = [S.alloc() for _ in range(10)]
    sQb = sJ2
    vK, vV, vVinc = [V.alloc() for _ in range(3)]
    A(f"s_lshl_b32 {s(sHead)}, {s(sXcd)}, 2")
    A(f"s_add_u32 {s(sHead)}, {s(sHead)}, {s(sJ3)}")
    if ks == 2:
        A(f"s_mov_b32 {s(sWq)}, {s(sW)}")
        A(f"s_lshr_b32 {s(sKh)}, {s(sW8)}, 2")
    else:
        A(f"s_mov_b32 {s(sWq)}, {s(sW8)}")
        A(f"s_mov_b32 {s(sKh)}, 0")
    A(f"s_lshl_b32 {s(sHb)}, {s(sHead)}, 16")
    Q = [V.alloc(4) for _ in range(nqb)]
    vKm = V.alloc()
    A(f"s_lshl_b32 {s(sT0)}, {s(sQb)}, 3")
    A(f"s_mul_i32 {s(sT1)}, {s(sWq)}, {nqb}")
    A(f"s_add_u32 {s(sQt)}, {s(sT0)}, {s(sT1)}")
    if ks == 2:
        A(f"s_lshl_b32 {s(sL0)}, {s(sKh)}, 5")
        A(f"s_lshl_b32 {s(sT0)}, {s(sWq)}, 1")
        A(f"s_add_u32 {s(sL0)}, {s(sL0)}, {s(sT0)}")
        gstep = 8
    else:
        A(f"s_lshl_b32 {s(sL0)}, {s(sW8)}, 1")
        gstep = 16
    A(f"s_lshl_b32 {s(sB)}, {s(sQt)}, 10")
    A(f"s_add_u32 {s(sB)}, {s(sB)}, {s(sHb)}")
    def w0_sync1():
        cnt_off(sCn, 12288, lambda d: A(f"s_mov_b32 {s(d)}, {s(sHqP)}"))
        signal(sCn)
        cnt_off(sCn, 12288, lambda d: A(f"s_mov_b32 {s(d)}, {s(sXcd)}"))
        poll(sCn, 32, "1")
    only_wave0("1", w0_sync1)
    A(f"v_lshlrev_b32 {v(vT2)}, 2, {v(vLane)}")
    A("s_barrier")
    K.stamp()
    sXc, sTk = sXcP, sTkP
    vTk = V.alloc()
    if LOCAL:
        A(f"s_getreg_b32 {s(sXc)}, hwreg(HW_REG_XCC_ID)")
        A(f"s_and_b32 {s(sXc)}, {s(sXc)}, 7")
        A(f"s_cmp_lg_u32 {s(sW8)}, 0")
        A(f"s_cbranch_scc1 KM_NOTK")
        A(f"s_lshl_b32 {s(sT0)}, {s(sXc)}, 8")
        A(f"s_add_u32 {s(sT0)}, {s(sT0)}, {WS_CNT + 10240}")
        A(f"v_mov_b32 {v(vTk)}, 1")
        A(f"v_mov_b32 {v(vT0)}, 0")
        A(f"s_mov_b64 exec, 1")
        A(f"buffer_atomic_add {v(vTk)}, {v(vT0)}, {s(sO,4)}, {s(sT0)} offen sc0")
        A(f"s_mov_b64 exec, -1")
        A.label("KM_NOTK")
    else:
        A(f"s_mov_b32 {s(sXc)}, {s(sXcd)}")
        A(f"s_mov_b32 {s(sTk)}, {s(sJ)}")
    def kv_group(g):
        A(f"s_add_u32 {s(sL)}, {s(sL0)}, {gstep*g}")
        A(f"s_lshl_b32 {s(sT0)}, {s(sQb)}, 3")
        A(f"s_add_u32 {s(sG)}, {s(sL)}, {s(sT0)}")
        A(f"s_and_b32 {s(sG)}, {s(sG)}, 63")
        A(f"s_lshl_b32 {s(sG)}, {s(sG)}, 10")
        A(f"s_add_u32 {s(sG)}, {s(sG)}, {s(sHb)}")
        A(f"s_lshl_b32 {s(sL)}, {s(sL)}, 10")
        A(f"s_add_u32 m0, {s(sL)}, {KR}")
        A(f"s_add_u32 {s(sT0)}, {s(sG)}, {WS_KF}")
        A(f"buffer_load_dwordx4 {v(vL16)}, {s(sO,4)}, {s(sT0)} offen lds")
        A(f"buffer_load_dwordx4 {v(vL16)}, {s(sO,4)}, {s(sT0)} offen offset:1024 lds")
        A(f"s_add_u32 m0, {s(sL)}, {VR}")
        A(f"s_add_u32 {s(sT0)}, {s(sG)}, {WS_VF}")
        A(f"buffer_load_dwordx4 {v(vL16)}, {s(sO,4)}, {s(sT0)} offen lds")
        A(f"buffer_load_dwordx4 {v(vL16)}, {s(sO,4)}, {s(sT0)} offen offset:1024 lds")
    for b in range(nqb):
        A(f"buffer_load_dwordx4 {v(Q[b],4)}, {v(vL16)}, {s(sO,4)}, {s(sB)} offen offset:{b*1024}")
    A(f"s_lshl_b32 {s(sT0)}, {s(sHead)}, 8")
    A(f"s_add_u32 {s(sT0)}, {s(sT0)}, {WS_KMAX}")
    A(f"buffer_load_dword {v(vKm)}, {v(vT2)}, {s(sO,4)}, {s(sT0)} offen")
    kv_group(0)
    K.stamp()
    A(f"v_mov_b32 {v(vT1)}, 0x3f803f80")
    A(f"v_lshlrev_b32 {v(vT0)}, 2, v0")
    A(f"v_add_u32 {v(vT0)}, {ON}, {v(vT0)}")
    A(f"ds_write_b32 {v(vT0)}, {v(vT1)}")
    A(f"ds_write_b32 {v(vT0)}, {v(vT1)} offset:2048")
    A(f"v_cmp_gt_u32 vcc, 128, v0")
    A(f"s_and_saveexec_b64 {s(sSave,2)}, vcc")
    A(f"ds_write_b32 {v(vT0)}, {v(vT1)} offset:4096")
    A(f"s_mov_b64 exec, {s(sSave,2)}")
    A(f"s_lshl_b32 {s(sT0)}, {s(sKh)}, 15")
    A(f"v_add_u32 {v(vK)}, {s(sT0)}, {v(vL16)}")
    A(f"v_lshlrev_b32 {v(vT0)}, 8, {v(vHf)}")
    A(f"v_lshl_add_u32 {v(vT0)}, {v(vTok)}, 4, {v(vT0)}")
    A(f"s_add_u32 {s(sT0)}, {s(sT0)}, {VR}")
    A(f"v_add_u32 {v(vT0)}, {s(sT0)}, {v(vT0)}")
    A(f"v_subrev_u32 {v(vT1)}, 20, {v(vTok)}")
    A(f"v_cmp_gt_u32 vcc, 8, {v(vT1)}")
    A(f"v_mov_b32 {v(vT1)}, {ON}")
    A(f"v_mov_b32 {v(vT2)}, {ON+64}")
    A(f"v_cndmask_b32 {v(vT1)}, {v(vT1)}, {v(vT2)}, vcc")
    A(f"v_cmp_gt_u32 vcc, 16, {v(vTok)}")
    A(f"v_cndmask_b32 {v(vV)}, {v(vT1)}, {v(vT0)}, vcc")
    A(f"v_mov_b32 {v(vT1)}, 4096")
    A(f"v_cndmask_b32 {v(vVinc)}, 0, {v(vT1)}, vcc")
    Kf = [V.alloc(4) for _ in range(2)]; Vf0 = [V.alloc(4) for _ in range(2)]; Vf1 = [V.alloc(4) for _ in range(2)]
    QB = [dict(S=[V.alloc(16), V.alloc(16)], P=V.alloc(8), O=V.alloc(16), C=V.alloc(16)) for _ in range(nqb)]
    for b in range(nqb):
        for r in range(16): A(f"v_mov_b32 {v(QB[b]['O']+r)}, 0")
        for r in range(4, 8): A(f"v_mov_b32 {v(QB[b]['P']+r)}, 0")
    for r in range(4): A(f"v_mov_b32 {v(Vf1[1]+r)}, 0")
    A(f"s_waitcnt vmcnt(4)")
    wave_max64(A, vKm, sKm, sT0)
    bad = S.alloc(2)
    for b in range(nqb):
        un = QB[b]["S"][0]
        for i in range(4):
            A(f"v_lshlrev_b32 {v(un+2*i)}, 16, {v(Q[b]+i)}")
            A(f"v_and_b32 {v(un+2*i+1)}, 0xffff0000, {v(Q[b]+i)}")
        A(f"v_mul_f32 {v(vT0)}, {v(un)}, {v(un)}")
        for i in range(1, 8): A(f"v_fmac_f32 {v(vT0)}, {v(un+i)}, {v(un+i)}")
        swap_add(A, vT0, vT1)
        A(f"v_mul_f32 {v(vT0)}, {s(sKm)}, {v(vT0)}")
        A(f"v_sqrt_f32 {v(vT0)}, {v(vT0)}")
        A(f"v_mov_b32 {v(vT1)}, {f2u(0.01):#x}")
        A(f"v_fmac_f32 {v(vT1)}, {f2u(1.01):#x}, {v(vT0)}")
        A(f"v_mov_b32 {v(vT2)}, {f2u(40.0):#x}")
        A(f"v_cmp_nge_f32 vcc, {v(vT2)}, {v(vT1)}")
        if b == 0: A(f"s_mov_b64 {s(bad,2)}, vcc")
        else: A(f"s_or_b64 {s(bad,2)}, {s(bad,2)}, vcc")
        for r in range(16): A(f"v_sub_f32 {v(QB[b]['C']+r)}, 0, {v(vT1)}")
    if LOCAL:
        A(f"s_waitcnt vmcnt(0)")
        A(f"s_cmp_lg_u32 {s(sW8)}, 0")
        A(f"s_cbranch_scc1 KM_NOTK2")
        A(f"v_mov_b32 {v(vT0)}, {TKL}")
        A(f"s_mov_b64 exec, 1")
        A(f"ds_write_b32 {v(vT0)}, {v(vTk)}")
        A(f"s_mov_b64 exec, -1")
        A.label("KM_NOTK2")
    A(f"s_waitcnt vmcnt(0) lgkmcnt(0)")
    A("s_barrier")
    K.stamp()
    A(f"s_cmp_eq_u32 {s(sCsF)}, 0")
    A(f"s_cbranch_scc1 KM_NOS5")
    A(f"s_mov_b32 {s(sCn)}, {WS_CNT + 14336}")
    signal(sCn)
    A.label("KM_NOS5")
    if LOCAL:
        A(f"v_mov_b32 {v(vT0)}, {TKL}")
        A(f"ds_read_b32 {v(vT1)}, {v(vT0)}")
        A(f"s_waitcnt lgkmcnt(0)")
        A(f"v_readfirstlane_b32 {s(sTk)}, {v(vT1)}")
    NT = 64 // ks
    mf = "v_mfma_f32_32x32x16_bf16"
    sPF = S.alloc(4); sPFo = S.alloc()
    A(f"s_lshl_b32 {s(sT0)}, {s(sJ)}, 2")
    A(f"s_add_u32 {s(sT0)}, {s(sT0)}, {s(sW)}")
    A(f"s_cmp_lt_u32 {s(sT0)}, 72")
    A(f"s_cselect_b32 {s(sPF)}, {s(sP1)}, {s(sP2)}")
    A(f"s_cselect_b32 {s(sPF+1)}, {s(sP1+1)}, {s(sP2+1)}")
    A(f"s_cselect_b32 {s(sT1)}, 16, 72")
    A(f"s_cmp_lt_u32 {s(sT0)}, 16")
    A(f"s_cselect_b32 {s(sPF)}, {s(sPwo)}, {s(sPF)}")
    A(f"s_cselect_b32 {s(sPF+1)}, {s(sPwo+1)}, {s(sPF+1)}")
    A(f"s_cselect_b32 {s(sT1)}, 0, {s(sT1)}")
    A(f"s_sub_u32 {s(sT0)}, {s(sT0)}, {s(sT1)}")
    A(f"s_lshl_b32 {s(sT0)}, {s(sT0)}, 15")
    A(f"s_add_u32 {s(sPF)}, {s(sPF)}, {s(sT0)}")
    A(f"s_addc_u32 {s(sPF+1)}, {s(sPF+1)}, 0")
    A(f"s_and_b32 {s(sPF+1)}, {s(sPF+1)}, 0xffff")
    A(f"s_mov_b32 {s(sPF+2)}, 32768")
    A(f"s_mov_b32 {s(sPF+3)}, 0x20000")
    A(f"s_mov_b32 {s(sPFo)}, 0")
    if "nopf" in G.FLAGS:
        A(f"s_mov_b32 {s(sPFo)}, 32768")
    if "pf2" in G.FLAGS:
        A(f"s_lshl_b32 {s(sT0)}, {s(sJ)}, 2")
        A(f"s_add_u32 {s(sT0)}, {s(sT0)}, {s(sW)}")
        A(f"s_cmp_lt_u32 {s(sT0)}, 72")
        A(f"s_cselect_b32 {s(sPFo)}, 0, 32768")
    vPF = V.alloc(4)
    A(f"s_cmp_lt_u32 {s(sW8)}, 4")
    A(f"s_cbranch_scc1 KM_OLD1")
    for g in range(1, 4):
        if ks == 2:
            A(f"s_lshr_b32 {s(sL)}, {s(sW)}, 1")
            A(f"s_lshl_b32 {s(sL)}, {s(sL)}, 5")
            A(f"s_and_b32 {s(sT0)}, {s(sW)}, 1")
            A(f"s_lshl_b32 {s(sT0)}, {s(sT0)}, 2")
            A(f"s_add_u32 {s(sL)}, {s(sL)}, {s(sT0)}")
            A(f"s_add_u32 {s(sL)}, {s(sL)}, {8*g}")
        else:
            A(f"s_lshl_b32 {s(sL)}, {s(sW)}, 2")
            A(f"s_add_u32 {s(sL)}, {s(sL)}, {16*g}")
        A(f"s_lshl_b32 {s(sT0)}, {s(sQb)}, 3")
        A(f"s_add_u32 {s(sG)}, {s(sL)}, {s(sT0)}")
        A(f"s_and_b32 {s(sG)}, {s(sG)}, 63")
        A(f"s_lshl_b32 {s(sG)}, {s(sG)}, 10")
        A(f"s_add_u32 {s(sG)}, {s(sG)}, {s(sHb)}")
        A(f"s_lshl_b32 {s(sL)}, {s(sL)}, 10")
        for reg, wsb in ((KR, WS_KF), (VR, WS_VF)):
            A(f"s_add_u32 m0, {s(sL)}, {reg}")
            A(f"s_add_u32 {s(sT0)}, {s(sG)}, {wsb}")
            for i in range(4):
                A(f"buffer_load_dwordx4 {v(vL16)}, {s(sO,4)}, {s(sT0)} offen offset:{i*1024} lds")
    A("s_waitcnt vmcnt(0)")
    A("s_barrier")
    if prio: A("s_setprio 1")
    A.label("KM_OLD1")
    A(f"s_cmp_lg_u64 {s(bad,2)}, 0")
    A(f"s_cbranch_scc1 KM_SLOW")
    A(f"ds_read_b128 {v(Kf[0],4)}, {v(vK)}")
    A(f"ds_read_b128 {v(Kf[1],4)}, {v(vK)} offset:1024")
    A(f"ds_read_b128 {v(Vf0[0],4)}, {v(vV)}")
    A("s_waitcnt lgkmcnt(2)")
    for b in range(nqb):
        A(f"{mf} {v(QB[b]['S'][0],16)}, {v(Kf[0],4)}, {v(Q[b],4)}, {v(QB[b]['C'],16)}")
    sA1i = S.alloc()
    a1it = 3 if ks == 1 else 1
    A(f"s_cmp_lt_u32 {s(sW8)}, 4")
    A(f"s_cselect_b32 {s(sA1i)}, {a1it}, -1")
    sPFl = S.alloc()
    A(f"s_cselect_b32 {s(sPFl)}, 0, 32768")
    A(f"s_mov_b32 {s(sIt)}, 0")
    A.label("KM_LOOP")
    A(f"s_cmp_lg_u32 {s(sIt)}, {s(sA1i)}")
    A(f"s_cbranch_scc1 KM_NOSYNC")
    A("s_barrier")
    A.label("KM_NOSYNC")
    if prio:
        A(f"s_cmp_lg_u32 {s(sIt)}, {PRIO_IT if ks == 1 else PRIO_IT // 2}")
        A(f"s_cbranch_scc1 KM_NP2")
        A("s_setprio 0")
        A.label("KM_NP2")
    npf = 3 if ks == 1 else 6
    A(f"s_cmp_ge_u32 {s(sPFo)}, {s(sPFl)}")
    A(f"s_cbranch_scc1 KM_NOPF")
    for i in range(npf):
        if i == 4: A(f"s_add_u32 {s(sT0)}, {s(sPFo)}, 4096")
        A(f"buffer_load_dwordx4 {v(vPF,4)}, {v(vL16)}, {s(sPF,4)}, {s(sPFo if i < 4 else sT0)} offen offset:{(i&3)*1024}")
    A(f"s_add_u32 {s(sPFo)}, {s(sPFo)}, {npf*1024}")
    A.label("KM_NOPF")
    for t in range(4):
        cur, nxt = t & 1, (t + 1) & 1
        A("s_waitcnt lgkmcnt(0)")
        for b in range(nqb):
            q = QB[b]; Sx = q["S"][cur]; Sn = q["S"][nxt]; P = q["P"]; O = q["O"]
            ex = [f"v_exp_f32 {v(Sx+i)}, {v(Sx+i)}" for i in range(16)]
            cv = [f"v_cvt_pk_bf16_f32 {v(P+i)}, {v(Sx+2*i)}, {v(Sx+2*i+1)}" for i in range(8)]
            A(f"{mf} {v(Sn,16)}, {v(Kf[nxt],4)}, {v(Q[b],4)}, {v(q['C'],16)}")
            for x in ex[0:4]: A(x)
            A(cv[0])
            for x in ex[4:6]: A(x)
            A(cv[1])
            A(f"{mf} {v(O,16)}, {v(Vf1[nxt],4)}, {v(P+4,4)}, {v(O,16)}")
            if b == 0:
                A(f"ds_read_b128 {v(Kf[cur],4)}, {v(vK)} offset:{(t+2)*1024}")
                A(f"ds_read_b128 {v(Vf0[nxt],4)}, {v(vV)} offset:{(t+1)*1024}")
                A(f"ds_read_b128 {v(Vf1[cur],4)}, {v(vV)} offset:{t*1024+512}")
            for x in ex[6:8]: A(x)
            A(cv[2])
            for x in ex[8:10]: A(x)
            A(cv[3])
            for x in ex[10:12]: A(x)
            A(cv[4])
            A(f"{mf} {v(O,16)}, {v(Vf0[cur],4)}, {v(P,4)}, {v(O,16)}")
            for x in ex[12:14]: A(x)
            A(cv[5])
            for x in ex[14:16]: A(x)
            A(cv[6])
            A(cv[7])
    A(f"v_add_u32 {v(vK)}, 4096, {v(vK)}")
    A(f"v_add_u32 {v(vV)}, {v(vVinc)}, {v(vV)}")
    A(f"s_add_u32 {s(sIt)}, {s(sIt)}, 1")
    A(f"s_cmp_lt_u32 {s(sIt)}, {NT//4}")
    A(f"s_cbranch_scc1 KM_LOOP")
    A("s_waitcnt lgkmcnt(0)")
    for b in range(nqb):
        A(f"{mf} {v(QB[b]['O'],16)}, {v(Vf1[1],4)}, {v(QB[b]['P']+4,4)}, {v(QB[b]['O'],16)}")
    A("s_branch KM_FIN")
    A.label("KM_SLOW")
    A(f"s_cmp_ge_u32 {s(sW8)}, 4")
    A(f"s_cbranch_scc1 KM_SLOW2")
    A("s_barrier")
    A.label("KM_SLOW2")
    for b in range(nqb):
        A(f"v_mov_b32 {v(QB[b]['C'])}, {f2u(-3.0e38):#x}")
    A(f"s_mov_b32 {s(sIt)}, 0")
    A.label("KM_SLOOP")
    A(f"ds_read_b128 {v(Kf[0],4)}, {v(vK)}")
    A(f"ds_read_b128 {v(Vf0[0],4)}, {v(vV)}")
    A(f"ds_read_b128 {v(Vf1[0],4)}, {v(vV)} offset:512")
    A("s_waitcnt lgkmcnt(0)")
    for b in range(nqb):
        q = QB[b]; Sx = q["S"][0]; P = q["P"]; O = q["O"]; m = q["C"]; mn = q["C"] + 1; al = q["C"] + 2
        A(f"{mf} {v(Sx,16)}, {v(Kf[0],4)}, {v(Q[b],4)}, 0")
        A(f"v_max_f32 {v(mn)}, {v(Sx)}, {v(Sx+1)}")
        for i in range(2, 16): A(f"v_max_f32 {v(mn)}, {v(mn)}, {v(Sx+i)}")
        swap_add(A, mn, vT1, "v_max_f32")
        A(f"v_max_f32 {v(mn)}, {v(mn)}, {v(m)}")
        A(f"v_sub_f32 {v(al)}, {v(m)}, {v(mn)}")
        A(f"v_exp_f32 {v(al)}, {v(al)}")
        A(f"v_mov_b32 {v(m)}, {v(mn)}")
        for i in range(16): A(f"v_sub_f32 {v(Sx+i)}, {v(Sx+i)}, {v(mn)}")
        for i in range(16): A(f"v_exp_f32 {v(Sx+i)}, {v(Sx+i)}")
        for i in range(16): A(f"v_mul_f32 {v(O+i)}, {v(al)}, {v(O+i)}")
        for i in range(8): A(f"v_cvt_pk_bf16_f32 {v(P+i)}, {v(Sx+2*i)}, {v(Sx+2*i+1)}")
        A(f"{mf} {v(O,16)}, {v(Vf0[0],4)}, {v(P,4)}, {v(O,16)}")
        A(f"{mf} {v(O,16)}, {v(Vf1[0],4)}, {v(P+4,4)}, {v(O,16)}")
    A(f"v_add_u32 {v(vK)}, 1024, {v(vK)}")
    A(f"v_lshrrev_b32 {v(vT0)}, 2, {v(vVinc)}")
    A(f"v_add_u32 {v(vV)}, {v(vT0)}, {v(vV)}")
    A(f"s_add_u32 {s(sIt)}, {s(sIt)}, 1")
    A(f"s_cmp_lt_u32 {s(sIt)}, {NT}")
    A(f"s_cbranch_scc1 KM_SLOOP")
    A(f"s_mov_b32 {s(sIt)}, -1")
    A.label("KM_FIN")
    if prio: A("s_setprio 0")
    K.stamp()
    if ks == 2:
        vM = [V.alloc(), V.alloc()]
        for b in range(2): A(f"v_sub_f32 {v(vM[b])}, 0, {v(QB[b]['C'])}")
        A(f"s_cmp_lg_u32 {s(sIt)}, -1")
        A(f"s_cbranch_scc1 KM_F1")
        for b in range(2): A(f"v_mov_b32 {v(vM[b])}, {v(QB[b]['C'])}")
        A.label("KM_F1")
        snd = QB[0]["S"][0]; kp = QB[0]["S"][1]
        A(f"s_cmp_eq_u32 {s(sKh)}, 0")
        A(f"s_cbranch_scc1 KM_F2")
        for r in range(9):
            A(f"v_mov_b32 {v(snd+r)}, {v(QB[0]['O']+r)}"); A(f"v_mov_b32 {v(kp+r)}, {v(QB[1]['O']+r)}")
        A(f"v_mov_b32 {v(snd+9)}, {v(vM[0])}"); A(f"v_mov_b32 {v(kp+9)}, {v(vM[1])}")
        A("s_branch KM_F3")
        A.label("KM_F2")
        for r in range(9):
            A(f"v_mov_b32 {v(snd+r)}, {v(QB[1]['O']+r)}"); A(f"v_mov_b32 {v(kp+r)}, {v(QB[0]['O']+r)}")
        A(f"v_mov_b32 {v(snd+9)}, {v(vM[1])}"); A(f"v_mov_b32 {v(kp+9)}, {v(vM[0])}")
        A.label("KM_F3")
        A("s_barrier")
        A(f"s_mul_i32 {s(sT0)}, {s(sW8)}, 2560")
        A(f"v_lshlrev_b32 {v(vT2)}, 2, {v(vLane)}")
        A(f"v_add_u32 {v(vT0)}, {s(sT0)}, {v(vT2)}")
        for r in range(10): A(f"ds_write_b32 {v(vT0)}, {v(snd+r)} offset:{r*256}")
        A("s_waitcnt lgkmcnt(0)")
        A("s_barrier")
        A(f"s_xor_b32 {s(sT0)}, {s(sW8)}, 4")
        A(f"s_mul_i32 {s(sT0)}, {s(sT0)}, 2560")
        A(f"v_add_u32 {v(vT0)}, {s(sT0)}, {v(vT2)}")
        for r in range(10): A(f"ds_read_b32 {v(snd+r)}, {v(vT0)} offset:{r*256}")
        A("s_waitcnt lgkmcnt(0)")
        A(f"v_max_f32 {v(vT0)}, {v(kp+9)}, {v(snd+9)}")
        A(f"v_sub_f32 {v(vT1)}, {v(kp+9)}, {v(vT0)}")
        A(f"v_sub_f32 {v(vT2)}, {v(snd+9)}, {v(vT0)}")
        A(f"v_exp_f32 {v(vT1)}, {v(vT1)}")
        A(f"v_exp_f32 {v(vT2)}, {v(vT2)}")
        for r in range(9): A(f"v_mul_f32 {v(kp+r)}, {v(vT1)}, {v(kp+r)}")
        for r in range(9): A(f"v_fmac_f32 {v(kp+r)}, {v(vT2)}, {v(snd+r)}")
        Of = kp
        A(f"s_add_u32 {s(sQt)}, {s(sQt)}, {s(sKh)}")
    else:
        Of = QB[0]["O"]
    A(f"v_rcp_f32 {v(vT0)}, {v(Of+8)}")
    for r in range(8): A(f"v_mul_f32 {v(Of+r)}, {v(vT0)}, {v(Of+r)}")
    pk = QB[0]["P"]
    for i in range(4): A(f"v_cvt_pk_bf16_f32 {v(pk+i)}, {v(Of+2*i)}, {v(Of+2*i+1)}")
    A(f"s_lshl_b32 {s(sT0)}, {s(sQt)}, 15")
    A(f"s_lshl_b32 {s(sT1)}, {s(sHead)}, 10")
    A(f"s_add_u32 {s(sT0)}, {s(sT0)}, {s(sT1)}")
    A(f"s_add_u32 {s(sT0)}, {s(sT0)}, {WS_OF}")
    A(f"buffer_store_dwordx4 {v(pk,4)}, {v(vL16)}, {s(sO,4)}, {s(sT0)} offen sc1")
    A("s_waitcnt vmcnt(0)")
    A("s_barrier")
    K.stamp()
    V.release(mkV); S.release(mkS)
    sRt, sCt, sR128, sCt4, sTb, sTr, sTi, sQbS = [S.alloc() for _ in range(8)]
    A(f"s_mov_b32 {s(sQbS)}, {s(sJ2)}")
    A(f"s_mov_b32 {s(sXcd)}, {s(sXc)}")
    A(f"s_and_b32 {s(sJ)}, {s(sTk)}, 31")
    A(f"s_and_b32 {s(sJ3)}, {s(sJ)}, 3")
    A(f"s_lshr_b32 {s(sJ2)}, {s(sJ)}, 2")
    A(f"s_lshl_b32 {s(sRt)}, {s(sXcd)}, 2")
    A(f"s_add_u32 {s(sRt)}, {s(sRt)}, {s(sJ3)}")
    A(f"s_mov_b32 {s(sCt)}, {s(sJ2)}")
    A(f"s_and_b32 {s(sTr)}, {s(sW8)}, 1")
    A(f"s_bfe_u32 {s(sTb)}, {s(sW8)}, 0x10001")
    A(f"s_lshr_b32 {s(sTi)}, {s(sW8)}, 2")
    A(f"s_lshl_b32 {s(sR128)}, {s(sXcd)}, 1")
    A(f"s_and_b32 {s(sT0)}, {s(sJ)}, 1")
    A(f"s_add_u32 {s(sR128)}, {s(sR128)}, {s(sT0)}")
    A(f"s_lshr_b32 {s(sCt4)}, {s(sJ)}, 1")
    vBl = V.alloc(); vWoff = V.alloc(); vW1off = V.alloc()
    tr_pi_base(A, vBl, vLane, vHf, vT0, vT1)
    sB1, sB2 = S.alloc(), S.alloc()
    sRw1 = S.alloc(4); sRw2 = S.alloc(4)
    def dma_w1(p):
        A(f"s_lshl_b32 {s(sT1)}, {s(sW)}, 12")
        for c in range(4):
            for q in range(4):
                A(f"s_add_u32 m0, {s(sT1)}, {W1 + p*65536 + c*16384 + q*1024}")
                A(f"s_add_u32 {s(sT0)}, {s(sB1)}, {(128*c + 8*q)*3584 + p*128}")
                A(f"buffer_load_dwordx4 {v(vW1off)}, {s(sRw1,4)}, {s(sT0)} offen lds")
    def dma_w2(c):
        A(f"s_lshl_b32 {s(sT1)}, {s(sW)}, 15")
        for q in range(8):
            A(f"s_add_u32 m0, {s(sT1)}, {W2 + (c&3)*8192 + q*1024}")
            A(f"s_add_u32 {s(sT0)}, {s(sB2)}, {(64*c + 8*q)*1024}")
            A(f"buffer_load_dwordx4 {v(vWoff)}, {s(sRw2,4)}, {s(sT0)} offen lds")
    def dma_w1_all8(p):
        A(f"s_lshl_b32 {s(sT1)}, {s(sW8)}, 13")
        A(f"s_mul_i32 {s(sB)}, {s(sW8)}, {64*3584}")
        A(f"s_lshl_b32 {s(sT0)}, {s(sCt4)}, 8")
        A(f"s_add_u32 {s(sB)}, {s(sB)}, {s(sT0)}")
        for q in range(8):
            A(f"s_add_u32 m0, {s(sT1)}, {W1 + p*65536 + q*1024}")
            A(f"s_add_u32 {s(sT0)}, {s(sB)}, {8*q*3584 + p*128}")
            A(f"buffer_load_dwordx4 {v(vW1off)}, {s(sRw1,4)}, {s(sT0)} offen lds")
    def dma_w2_lo8():
        A(f"s_lshr_b32 {s(sT1)}, {s(sW8)}, 2")
        A(f"s_mul_i32 {s(sB)}, {s(sT1)}, {448*1024}")
        A(f"s_lshl_b32 {s(sT0)}, {s(sCt)}, 7")
        A(f"s_add_u32 {s(sB)}, {s(sB)}, {s(sT0)}")
        A(f"s_lshl_b32 {s(sT0)}, {s(sW)}, 16")
        A(f"s_add_u32 {s(sB)}, {s(sB)}, {s(sT0)}")
        A(f"s_lshl_b32 {s(sT1)}, {s(sW8)}, 13")
        for q in range(8):
            A(f"s_add_u32 m0, {s(sT1)}, {W2 + q*1024}")
            A(f"s_add_u32 {s(sT0)}, {s(sB)}, {8*q*1024}")
            A(f"buffer_load_dwordx4 {v(vWoff)}, {s(sRw2,4)}, {s(sT0)} offen lds")
    def dma_w2_hi_upper():
        A(f"s_lshr_b32 {s(sT1)}, {s(sW)}, 1")
        A(f"s_add_u32 {s(sT1)}, {s(sT1)}, 2")
        A(f"s_mul_i32 {s(sB)}, {s(sT1)}, {448*1024}")
        A(f"s_lshl_b32 {s(sT0)}, {s(sCt)}, 7")
        A(f"s_add_u32 {s(sB)}, {s(sB)}, {s(sT0)}")
        A(f"s_and_b32 {s(sT0)}, {s(sW)}, 1")
        A(f"s_lshl_b32 {s(sT0)}, {s(sT0)}, 17")
        A(f"s_add_u32 {s(sB)}, {s(sB)}, {s(sT0)}")
        A(f"s_lshl_b32 {s(sT1)}, {s(sW)}, 14")
        for q in range(16):
            A(f"s_add_u32 m0, {s(sT1)}, {W2 + 65536 + q*1024}")
            A(f"s_add_u32 {s(sT0)}, {s(sB)}, {8*q*1024}")
            A(f"buffer_load_dwordx4 {v(vWoff)}, {s(sRw2,4)}, {s(sT0)} offen lds")
    sW2b, sW2l = S.alloc(), S.alloc()
    def w2_all16_setup():
        A(f"s_lshr_b32 {s(sT1)}, {s(sW8)}, 1")
        A(f"s_mul_i32 {s(sW2b)}, {s(sT1)}, {448*1024}")
        A(f"s_lshl_b32 {s(sT0)}, {s(sCt)}, 7")
        A(f"s_add_u32 {s(sW2b)}, {s(sW2b)}, {s(sT0)}")
        A(f"s_and_b32 {s(sT0)}, {s(sW8)}, 1")
        A(f"s_lshl_b32 {s(sT0)}, {s(sT0)}, 17")
        A(f"s_add_u32 {s(sW2b)}, {s(sW2b)}, {s(sT0)}")
        A(f"s_lshl_b32 {s(sW2l)}, {s(sW8)}, 14")
    def w2_piece(pc):
        A(f"s_add_u32 m0, {s(sW2l)}, {W2 + pc*1024}")
        A(f"s_add_u32 {s(sW2b)}, {s(sW2b)}, {8192 if pc else 0}")
        A(f"buffer_load_dwordx4 {v(vWoff)}, {s(sRw2,4)}, {s(sW2b)} offen lds")
    def if_upper(tag, body):
        A(f"s_cmp_lt_u32 {s(sW8)}, 4")
        A(f"s_cbranch_scc1 KM_NU_{tag}")
        body()
        A.label(f"KM_NU_{tag}")
    def dma_wo():
        mk = V.mark()
        vXoff = V.alloc()
        A(f"s_and_b32 {s(sT0)}, {s(sW)}, 1")
        A(f"s_lshl_b32 {s(sT0)}, {s(sT0)}, 2")
        A(f"v_lshrrev_b32 {v(vT0)}, 4, {v(vLane)}")
        A(f"v_or_b32 {v(vT0)}, {s(sT0)}, {v(vT0)}")
        A(f"v_and_b32 {v(vT1)}, 7, {v(vLane)}")
        A(f"v_xor_b32 {v(vT0)}, {v(vT0)}, {v(vT1)}")
        A(f"v_lshlrev_b32 {v(vT0)}, 4, {v(vT0)}")
        A(f"v_lshrrev_b32 {v(vT1)}, 3, {v(vLane)}")
        A(f"v_lshlrev_b32 {v(vT1)}, 10, {v(vT1)}")
        A(f"v_add_u32 {v(vXoff)}, {v(vT0)}, {v(vT1)}")
        srd(A, sRa, sPwo, 512 * 512 * 2)
        srd(A, sRb, sPx, 2048 * 512 * 2)
        A(f"s_lshl_b32 {s(sB)}, {s(sW)}, 17")
        A(f"s_lshl_b32 {s(sT0)}, {s(sCt)}, 7")
        A(f"s_add_u32 {s(sB)}, {s(sB)}, {s(sT0)}")
        A(f"s_lshl_b32 {s(sT1)}, {s(sW)}, 14")
        for g in range(16):
            A(f"s_add_u32 m0, {s(sT1)}, {WO + g*1024}")
            A(f"s_add_u32 {s(sT0)}, {s(sB)}, {g*8192}")
            A(f"buffer_load_dwordx4 {v(vWoff)}, {s(sRa,4)}, {s(sT0)} offen lds")
        A(f"s_lshl_b32 {s(sB)}, {s(sRt)}, 16")
        A(f"s_lshl_b32 {s(sT0)}, {s(sCt)}, 7")
        A(f"s_add_u32 {s(sB)}, {s(sB)}, {s(sT0)}")
        A(f"s_lshl_b32 {s(sT0)}, {s(sW)}, 13")
        A(f"s_add_u32 {s(sB)}, {s(sB)}, {s(sT0)}")
        A(f"s_lshl_b32 {s(sT1)}, {s(sW)}, 10")
        for n in range(2):
            A(f"s_add_u32 m0, {s(sT1)}, {XT + n*4096}")
            A(f"s_add_u32 {s(sT0)}, {s(sB)}, {n*32768}")
            A(f"buffer_load_dwordx4 {v(vXoff)}, {s(sRb,4)}, {s(sT0)} offen lds")
        A(f"s_mul_i32 {s(sB1)}, {s(sW)}, {32*3584}")
        A(f"s_lshl_b32 {s(sT0)}, {s(sCt4)}, 8")
        A(f"s_add_u32 {s(sB1)}, {s(sB1)}, {s(sT0)}")
        A(f"s_mul_i32 {s(sB2)}, {s(sW)}, {448*1024}")
        A(f"s_lshl_b32 {s(sT0)}, {s(sCt)}, 7")
        A(f"s_add_u32 {s(sB2)}, {s(sB2)}, {s(sT0)}")
        A("s_waitcnt vmcnt(0)")
        V.release(mk)
    w_voff(A, vWoff, vLane, 1024, vT0, vT1)
    w_voff(A, vW1off, vLane, 3584, vT0, vT1)
    srd(A, sRw1, sP1, 512 * 1792 * 2)
    srd(A, sRw2, sP2, 1792 * 512 * 2)
    if_upper("wo", dma_wo)
    def w0_sync2():
        cnt_off(sCn, 0, lambda d: A(f"s_mov_b32 {s(d)}, {s(sQbS)}"))
        signal(sCn)
        cnt_off(sCn, 0, lambda d: A(f"s_mov_b32 {s(d)}, {s(sXcd)}"))
        poll(sCn, 32, "2")
    hpk4 = hpk
    mkC = V.mark()
    Af = [V.alloc(4) for _ in range(8)]
    acc = [V.alloc(16) for _ in range(2)]
    Bf = [[V.alloc(4) for _ in range(2)] for _ in range(2)]
    vB = V.alloc(); xr = V.alloc(4)
    sKq = S.alloc()
    A(f"s_lshr_b32 {s(sKq)}, {s(sW8)}, 1")
    A(f"s_lshl_b32 {s(sT0)}, {s(sKq)}, 14")
    A(f"v_add_u32 {v(vB)}, {s(sT0)}, {v(vBl)}")
    A(f"s_lshl_b32 {s(sB)}, {s(sRt)}, 16")
    A(f"s_lshl_b32 {s(sT0)}, {s(sTr)}, 15")
    A(f"s_add_u32 {s(sB)}, {s(sB)}, {s(sT0)}")
    A(f"s_lshl_b32 {s(sT0)}, {s(sKq)}, 13")
    A(f"s_add_u32 {s(sB)}, {s(sB)}, {s(sT0)}")
    A(f"s_add_u32 {s(sB)}, {s(sB)}, {WS_OF}")
    sB4 = S.alloc()
    A(f"s_add_u32 {s(sB4)}, {s(sB)}, 4096")
    only_wave0("2", w0_sync2)
    A("s_barrier")
    K.stamp()
    for i in range(8):
        A(f"buffer_load_dwordx4 {v(Af[i],4)}, {v(vL16)}, {s(sO,4)}, {s(sB if i < 4 else sB4)} offen offset:{(i&3)*1024} sc1")
    def rd3(i):
        for b in range(2):
            A(f"ds_read_b64_tr_b16 {v(Bf[i&1][b],2)}, {v(vB)} offset:{WO + i*2048 + b*512}")
            A(f"ds_read_b64_tr_b16 {v(Bf[i&1][b]+2,2)}, {v(vB)} offset:{WO + i*2048 + b*512 + 1024}")
    rd3(0)
    A(f"v_lshrrev_b32 {v(vT2)}, 1, {v(vTok)}")
    A(f"v_and_b32 {v(vT2)}, 7, {v(vT2)}")
    A(f"s_lshl_b32 {s(sT0)}, {s(sTr)}, 12")
    A(f"s_add_u32 {s(sT0)}, {s(sT0)}, {XT}")
    A(f"v_lshlrev_b32 {v(vT1)}, 7, {v(vTok)}")
    A(f"v_lshl_add_u32 {v(vT1)}, {v(vHf)}, 3, {v(vT1)}")
    A(f"v_add_u32 {v(vT1)}, {s(sT0)}, {v(vT1)}")
    A(f"s_lshl_b32 {s(sT1)}, {s(sTb)}, 2")
    A(f"s_lshl_b32 {s(sT0)}, {s(sTi)}, 1")
    A(f"s_add_u32 {s(sT1)}, {s(sT1)}, {s(sT0)}")
    for a_ in range(2):
        A(f"s_add_u32 {s(sT0)}, {s(sT1)}, {a_}")
        A(f"v_xor_b32 {v(vT0)}, {s(sT0)}, {v(vT2)}")
        A(f"v_lshl_add_u32 {v(vT0)}, {v(vT0)}, 4, {v(vT1)}")
        A(f"ds_read_b64 {v(xr+2*a_,2)}, {v(vT0)}")
    for i in range(8):
        if i + 1 < 8:
            rd3(i + 1)
            A(f"s_waitcnt lgkmcnt(4)")
        else:
            A(f"s_waitcnt lgkmcnt(0)")
        A(f"s_waitcnt vmcnt({7-i})")
        for b in range(2):
            A(f"v_mfma_f32_32x32x16_bf16 {v(acc[b],16)}, {v(Bf[i&1][b],4)}, {v(Af[i],4)}, {'0' if i == 0 else v(acc[b],16)}")
    A(f"s_lshl_b32 {s(sT0)}, {s(sTr)}, 14")
    A(f"s_lshl_b32 {s(sT1)}, {s(sKq)}, 12")
    A(f"s_add_u32 {s(sT0)}, {s(sT0)}, {s(sT1)}")
    A(f"s_add_u32 {s(sT0)}, {s(sT0)}, {RED}")
    A(f"v_add_u32 {v(vT0)}, {s(sT0)}, {v(vL16)}")
    for b in range(2):
        for q in range(4):
            A(f"ds_write_b128 {v(vT0)}, {v(acc[b]+4*q,4)} offset:{b*32768 + q*1024}")
    A("s_waitcnt lgkmcnt(0)")
    A("s_barrier")
    K.stamp()
    def own_reduce(REDB, dst):
        A(f"s_lshl_b32 {s(sT0)}, {s(sW)}, 14")
        A(f"s_lshl_b32 {s(sT1)}, {s(sTi)}, 11")
        A(f"s_add_u32 {s(sT0)}, {s(sT0)}, {s(sT1)}")
        A(f"s_add_u32 {s(sT0)}, {s(sT0)}, {REDB}")
        A(f"v_add_u32 {v(vT0)}, {s(sT0)}, {v(vL16)}")
        for p in range(4):
            for q in range(2):
                A(f"ds_read_b128 {v(dst+8*p+4*q,4)}, {v(vT0)} offset:{p*4096 + q*1024}")
        A("s_waitcnt lgkmcnt(4)")
        for r in range(8): A(f"v_add_f32 {v(dst+r)}, {v(dst+r)}, {v(dst+8+r)}")
        A("s_waitcnt lgkmcnt(0)")
        for r in range(8): A(f"v_add_f32 {v(dst+16+r)}, {v(dst+16+r)}, {v(dst+24+r)}")
        for r in range(8): A(f"v_add_f32 {v(dst+r)}, {v(dst+r)}, {v(dst+16+r)}")
    def w1p0():
        A(f"s_cmp_ge_u32 {s(sJ)}, 28")
        A(f"s_cbranch_scc1 KM_NW1A")
        dma_w1(0)
        A.label("KM_NW1A")
    out = Af[0]
    own_reduce(RED, out)
    un = acc[0]
    for i in range(4):
        A(f"v_lshlrev_b32 {v(un+2*i)}, 16, {v(xr+i)}")
        A(f"v_and_b32 {v(un+2*i+1)}, 0xffff0000, {v(xr+i)}")
    for r in range(8): A(f"v_add_f32 {v(out+r)}, {v(out+r)}, {v(un+r)}")
    for i in range(4): A(f"v_cvt_pk_bf16_f32 {v(hpk4+i)}, {v(out+2*i)}, {v(out+2*i+1)}")
    sR32o, sKs = S.alloc(), S.alloc()
    A(f"s_lshl_b32 {s(sR32o)}, {s(sRt)}, 1")
    A(f"s_add_u32 {s(sR32o)}, {s(sR32o)}, {s(sTr)}")
    A(f"s_lshl_b32 {s(sKs)}, {s(sCt)}, 2")
    A(f"s_lshl_b32 {s(sT0)}, {s(sTb)}, 1")
    A(f"s_add_u32 {s(sKs)}, {s(sKs)}, {s(sT0)}")
    A(f"s_add_u32 {s(sKs)}, {s(sKs)}, {s(sTi)}")
    A(f"s_lshl_b32 {s(sB)}, {s(sR32o)}, 15")
    A(f"s_lshl_b32 {s(sT0)}, {s(sKs)}, 10")
    A(f"s_add_u32 {s(sB)}, {s(sB)}, {s(sT0)}")
    A(f"s_add_u32 {s(sB)}, {s(sB)}, {WS_HF}")
    A(f"buffer_store_dwordx4 {v(hpk4,4)}, {v(vL16)}, {s(sO,4)}, {s(sB)} offen" + LSC)
    for i in range(4):
        A(f"v_lshlrev_b32 {v(un+2*i)}, 16, {v(hpk4+i)}")
        A(f"v_and_b32 {v(un+2*i+1)}, 0xffff0000, {v(hpk4+i)}")
    st = acc[1]
    A(f"v_add_f32 {v(st)}, {v(un)}, {v(un+1)}")
    A(f"v_mul_f32 {v(st+1)}, {v(un)}, {v(un)}")
    A(f"v_fmac_f32 {v(st+1)}, {v(un+1)}, {v(un+1)}")
    for r in range(2, 8):
        A(f"v_add_f32 {v(st)}, {v(st)}, {v(un+r)}")
        A(f"v_fmac_f32 {v(st+1)}, {v(un+r)}, {v(un+r)}")
    swap_add(A, st, vT1)
    swap_add(A, st + 1, vT2)
    A(f"s_lshl_b32 {s(sT0)}, {s(sW8)}, 8")
    A(f"s_add_u32 {s(sT0)}, {s(sT0)}, {STP}")
    A(f"v_lshl_add_u32 {v(vT0)}, {v(vTok)}, 3, {s(sT0)}")
    A(f"ds_write_b64 {v(vT0)}, {v(st,2)}")
    A("s_waitcnt lgkmcnt(0)")
    A("s_barrier")
    A(f"s_cmp_ge_u32 {s(sW8)}, 2")
    A(f"s_cbranch_scc1 KM_NHS")
    for p in range(4): A(f"ds_read_b64 {v(st+2*p,2)}, {v(vT0)} offset:{p*512}")
    A("s_waitcnt lgkmcnt(0)")
    for c in range(2):
        A(f"v_add_f32 {v(st+c)}, {v(st+c)}, {v(st+2+c)}")
        A(f"v_add_f32 {v(st+4+c)}, {v(st+4+c)}, {v(st+6+c)}")
    for c in range(2): A(f"v_add_f32 {v(st+c)}, {v(st+c)}, {v(st+4+c)}")
    A(f"s_lshl_b32 {s(sT0)}, {s(sR32o)}, 11")
    A(f"s_lshl_b32 {s(sT1)}, {s(sCt)}, 8")
    A(f"s_add_u32 {s(sT0)}, {s(sT0)}, {s(sT1)}")
    A(f"s_add_u32 {s(sT0)}, {s(sT0)}, {WS_HS}")
    A(f"v_lshlrev_b32 {v(vT0)}, 3, {v(vTok)}")
    A("s_mov_b32 exec_hi, 0")
    A(f"buffer_store_dwordx2 {v(st,2)}, {v(vT0)}, {s(sO,4)}, {s(sT0)} offen" + LSC)
    A("s_mov_b64 exec, -1")
    A.label("KM_NHS")
    A(f"s_cmp_ge_u32 {s(sJ)}, 28")
    A(f"s_cbranch_scc1 KM_NW1A")
    dma_w1_all8(0)
    A("s_waitcnt vmcnt(8) lgkmcnt(0)")
    A("s_branch KM_NW1B")
    A.label("KM_NW1A")
    dma_w2_lo8()
    A("s_waitcnt vmcnt(8) lgkmcnt(0)")
    A.label("KM_NW1B")
    A("s_barrier")
    K.stamp()
    V.release(mkC)
    def sig3():
        def idx(d):
            A(f"s_lshl_b32 {s(d)}, {s(sXcd)}, 1")
            A(f"s_lshr_b32 {s(sT0)}, {s(sJ3)}, 1")
            A(f"s_add_u32 {s(d)}, {s(d)}, {s(sT0)}")
        cnt_off(sCn, 2048, idx)
        signal(sCn, LOCAL)
    only_wave0("3s", sig3)
    A(f"s_cmp_ge_u32 {s(sJ)}, 28")
    A(f"s_cbranch_scc1 KM_NOP4")
    if_upper("w1", lambda: dma_w1(1))
    A("s_waitcnt vmcnt(0)") if False else None
    def w0_sync3():
        cnt_off(sCn, 2048, lambda d: A(f"s_mov_b32 {s(d)}, {s(sR128)}"))
        poll(sCn, 16, "3")
    mk4 = V.mark()
    Af = [V.alloc(4) for _ in range(16)]
    acc = [V.alloc(16) for _ in range(4)]
    Bf = [[V.alloc(4) for _ in range(4)] for _ in range(2)]
    csa = [V.alloc(4)]; msk = V.alloc(4)
    vB = [V.alloc() for _ in range(4)]; vB2 = [V.alloc() for _ in range(4)]
    hs = V.alloc(8); vb1 = V.alloc()
    sR32 = S.alloc(); sQ = [S.alloc() for _ in range(4)]
    srd(A, sRa, sP1 + 2, 1792 * 2)
    A(f"s_lshl_b32 {s(sR32)}, {s(sR128)}, 2")
    A(f"s_add_u32 {s(sR32)}, {s(sR32)}, {s(sW)}")
    A(f"v_lshlrev_b32 {v(vT1)}, 2, {v(vLane)}")
    A(f"s_lshl_b32 {s(sT1)}, {s(sCt4)}, 8")
    A(f"buffer_load_dword {v(vb1)}, {v(vT1)}, {s(sRa,4)}, {s(sT1)} offen")
    for q in range(4):
        A(f"s_xor_b32 {s(sQ[q])}, {s(sW)}, {q}")
        A(f"s_lshl_b32 {s(sQ[q])}, {s(sQ[q])}, 10")
    A(f"s_lshl_b32 {s(sT1)}, {s(sTi)}, 15")
    for q in range(4):
        A(f"s_lshl_b32 {s(sT0)}, {s(sQ[q])}, 1")
        A(f"s_add_u32 {s(sT0)}, {s(sT0)}, {s(sT1)}")
        A(f"v_add_u32 {v(vB[q])}, {s(sT0)}, {v(vBl)}")
        A(f"v_add_u32 {v(vB2[q])}, 65536, {v(vB[q])}")
    A(f"s_cmp_lt_u32 {s(sW8)}, 2")
    A(f"s_cbranch_scc1 KM_NCS")
    A(f"s_cmp_ge_u32 {s(sW8)}, 4")
    A(f"s_cbranch_scc1 KM_NCS")
    A(f"s_mov_b32 {s(sCn)}, {WS_CNT + 14336}")
    poll(sCn, 224, "5")
    A(f"s_and_b32 {s(sT0)}, {s(sW8)}, 1")
    A(f"s_lshl_b32 {s(sT0)}, {s(sT0)}, 8")
    A(f"v_lshlrev_b32 {v(vT1)}, 2, {v(vLane)}")
    A(f"v_add_u32 {v(vT1)}, {s(sT0)}, {v(vT1)}")
    A(f"s_lshl_b32 {s(sT0)}, {s(sCt4)}, 9")
    A(f"s_add_u32 {s(sT0)}, {s(sT0)}, {WS_CSG}")
    for kc in range(8):
        A(f"buffer_load_dword {v(hs+kc)}, {v(vT1)}, {s(sO,4)}, {s(sT0)} offen")
        if kc < 7: A(f"s_add_u32 {s(sT0)}, {s(sT0)}, 7168")
    A("s_waitcnt vmcnt(0)")
    for st_ in (4, 2, 1):
        for i in range(st_): A(f"v_add_f32 {v(hs+i)}, {v(hs+i)}, {v(hs+i+st_)}")
    A(f"v_add_u32 {v(vT1)}, {CS}, {v(vT1)}")
    A(f"ds_write_b32 {v(vT1)}, {v(hs)}")
    A.label("KM_NCS")
    A("s_waitcnt vmcnt(0)")
    A(f"v_lshlrev_b32 {v(hs+2)}, 16, {v(vb1)}")
    A(f"v_and_b32 {v(hs+3)}, 0xffff0000, {v(vb1)}")
    A(f"v_lshlrev_b32 {v(vT0)}, 3, {v(vLane)}")
    A(f"v_add_u32 {v(vT0)}, {BI}, {v(vT0)}")
    A(f"ds_write_b64 {v(vT0)}, {v(hs+2,2)}")
    A(f"s_lshl_b32 {s(sB)}, {s(sR32)}, 15")
    A(f"s_lshl_b32 {s(sT0)}, {s(sTi)}, 14")
    A(f"s_add_u32 {s(sB)}, {s(sB)}, {s(sT0)}")
    A(f"s_add_u32 {s(sB)}, {s(sB)}, {WS_HF}")
    sHs = S.alloc()
    A(f"s_lshl_b32 {s(sHs)}, {s(sR32)}, 11")
    A(f"s_add_u32 {s(sHs)}, {s(sHs)}, {WS_HS}")
    A(f"v_lshlrev_b32 {v(vT2)}, 3, {v(vTok)}")
    A(f"v_lshl_add_u32 {v(vT2)}, {v(vHf)}, 10, {v(vT2)}")
    for q in range(4): A(f"s_add_u32 {s(sQ[q])}, {s(sQ[q])}, {s(sB)}")
    A("s_waitcnt vmcnt(0) lgkmcnt(0)")
    only_wave0("3", w0_sync3)
    A("s_barrier")
    K.stamp()
    def lda4(g):
        for q in range(4):
            if g: A(f"s_add_u32 {s(sQ[q])}, {s(sQ[q])}, 4096")
            A(f"buffer_load_dwordx4 {v(Af[4*g+q],4)}, {v(vL16)}, {s(sO,4)}, {s(sQ[q])} offen" + LLD)
    lda4(0)
    for i in range(4):
        A(f"buffer_load_dwordx2 {v(hs+2*i,2)}, {v(vT2)}, {s(sO,4)}, {s(sHs)} offen offset:{i*256}" + LLD)
    lda4(1)
    def rd4(n):
        for t in range(4):
            p, b = t >> 1, t & 1
            o = (n >> 2) * 8192 + b * 512
            base = (vB if p == 0 else vB2)[n & 3]
            A(f"ds_read_b64_tr_b16 {v(Bf[n&1][t],2)}, {v(base)} offset:{o}")
            A(f"ds_read_b64_tr_b16 {v(Bf[n&1][t]+2,2)}, {v(base)} offset:{o+1024}")
    rd4(0)
    A(f"v_lshlrev_b32 {v(acc[0])}, 16, {v(vb1)}") if False else None
    for n in range(16):
        if n + 1 < 16:
            rd4(n + 1)
            A("s_waitcnt lgkmcnt(8)")
        else:
            A("s_waitcnt lgkmcnt(0)")
        if n % 4 == 0: A(f"s_waitcnt vmcnt({ {0: 8, 4: 8, 8: 4, 12: 0}[n] })")
        for t in range(4):
            A(f"v_mfma_f32_32x32x16_bf16 {v(acc[t],16)}, {v(Bf[n&1][t],4)}, {v(Af[n],4)}, {'0' if n == 0 else v(acc[t],16)}")
        if n in (0, 1): lda4(n + 2)
    K.stamp()
    for st_ in (2, 1):
        for i in range(st_):
            A(f"v_add_f32 {v(hs+2*i)}, {v(hs+2*i)}, {v(hs+2*(i+st_))}")
            A(f"v_add_f32 {v(hs+2*i+1)}, {v(hs+2*i+1)}, {v(hs+2*(i+st_)+1)}")
    swap_add(A, hs, vT1)
    swap_add(A, hs + 1, vT2)
    A("s_waitcnt lgkmcnt(0)")
    A("s_barrier")
    A(f"s_lshl_b32 {s(sT0)}, {s(sW8)}, 13")
    A(f"s_add_u32 {s(sT0)}, {s(sT0)}, 65536")
    A(f"v_add_u32 {v(vT0)}, {s(sT0)}, {v(vL16)}")
    A(f"s_cmp_eq_u32 {s(sTi)}, 0")
    A(f"s_cbranch_scc1 KM_E1")
    for t in range(2):
        for q in range(4): A(f"ds_write_b128 {v(vT0)}, {v(acc[t]+4*q,4)} offset:{t*4096 + q*1024}")
    for r in range(32): A(f"v_mov_b32 {v(acc[0]+r)}, {v(acc[2]+r)}")
    A("s_branch KM_E2")
    A.label("KM_E1")
    for t in range(2):
        for q in range(4): A(f"ds_write_b128 {v(vT0)}, {v(acc[2+t]+4*q,4)} offset:{t*4096 + q*1024}")
    A.label("KM_E2")
    A("s_waitcnt lgkmcnt(0)")
    A("s_barrier")
    K.stamp()
    A(f"s_xor_b32 {s(sT0)}, {s(sW8)}, 4")
    A(f"s_lshl_b32 {s(sT0)}, {s(sT0)}, 13")
    A(f"s_add_u32 {s(sT0)}, {s(sT0)}, 65536")
    A(f"v_add_u32 {v(vT0)}, {s(sT0)}, {v(vL16)}")
    for t in range(2):
        for q in range(4): A(f"ds_read_b128 {v(acc[2+t]+4*q,4)}, {v(vT0)} offset:{t*4096 + q*1024}")
    def R(i): return Af[0] + 16 * i
    A(f"s_lshl_b32 {s(sT0)}, {s(sTi)}, 8")
    A(f"s_add_u32 {s(sT0)}, {s(sT0)}, {CS}")
    A(f"v_lshl_add_u32 {v(vT2)}, {v(vHf)}, 4, {s(sT0)}")
    for t in range(2):
        for a_ in range(4): A(f"ds_read_b128 {v(R(t)+4*a_,4)}, {v(vT2)} offset:{t*128 + a_*32}")
    A("s_waitcnt lgkmcnt(8)")
    vMean, vRs, vMr = csa[0], csa[0] + 1, csa[0] + 2
    vC1, vC2 = msk, msk + 1
    c1 = -2.0 * 0.7978845608028654 * LOG2E
    c2 = c1 * 0.044715
    A(f"v_mul_f32 {v(vMean)}, {f2u(1/512.):#x}, {v(hs)}")
    A(f"v_mul_f32 {v(vT1)}, {v(vMean)}, {v(vMean)}")
    A(f"v_mov_b32 {v(vT0)}, {f2u(1/512.):#x}")
    A(f"v_fma_f32 {v(vT1)}, {v(hs+1)}, {v(vT0)}, -{v(vT1)}")
    A(f"v_max_f32 {v(vT1)}, 0, {v(vT1)}")
    A(f"v_add_f32 {v(hs+2)}, {f2u(1e-5):#x}, {v(vT1)}")
    A(f"v_rcp_f32 {v(vT0)}, {v(hs+2)}")
    A(f"v_rsq_f32 {v(vRs)}, {v(hs+2)}")
    A(f"v_mul_f32 {v(vT1)}, {v(vT1)}, {v(vT0)}")
    A(f"v_add_f32 {v(vT1)}, {f2u(1e-5):#x}, {v(vT1)}")
    A(f"v_rsq_f32 {v(vT1)}, {v(vT1)}")
    A(f"v_mov_b32 {v(vC1)}, {f2u(c1):#x}")
    A(f"v_mov_b32 {v(vC2)}, {f2u(c2):#x}")
    A(f"v_mul_f32 {v(vRs)}, {v(vRs)}, {v(vT1)}")
    A(f"v_mul_f32 {v(vMr)}, {v(vMean)}, {v(vRs)}")
    for t in range(2):
        for a_ in range(4): A(f"ds_read_b128 {v(R(2+t)+4*a_,4)}, {v(vT2)} offset:{512 + t*128 + a_*32}")
    for r in range(32): A(f"v_add_f32 {v(acc[0]+r)}, {v(acc[0]+r)}, {v(acc[2]+r)}")
    A(f"s_mul_i32 {s(sB)}, {s(sR32)}, {112*1024}")
    A(f"s_lshl_b32 {s(sT0)}, {s(sCt4)}, 13")
    A(f"s_add_u32 {s(sB)}, {s(sB)}, {s(sT0)}")
    A(f"s_lshl_b32 {s(sT0)}, {s(sTi)}, 12")
    A(f"s_add_u32 {s(sB)}, {s(sB)}, {s(sT0)}")
    A(f"s_add_u32 {s(sB)}, {s(sB)}, {WS_MF}")
    A("s_waitcnt lgkmcnt(0)")
    pcs = []
    def dm(): pass
    for t in range(2):
        x = acc[t]; T = R(2 + t); Z = acc[2 + t]
        for r in range(16): A(f"v_fma_f32 {v(T+r)}, -{v(vMr)}, {v(R(t)+r)}, {v(T+r)}")
        dm()
        for r in range(16): A(f"v_fma_f32 {v(x+r)}, {v(x+r)}, {v(vRs)}, {v(T+r)}")
        dm()
        for r in range(16): A(f"v_mul_f32 {v(Z+r)}, {v(x+r)}, {v(x+r)}")
        dm()
        for r in range(16): A(f"v_fma_f32 {v(Z+r)}, {v(Z+r)}, {v(vC2)}, {v(vC1)}")
        dm()
        for r in range(16): A(f"v_mul_f32 {v(Z+r)}, {v(Z+r)}, {v(x+r)}")
        dm()
        for r in range(16): A(f"v_exp_f32 {v(Z+r)}, {v(Z+r)}")
        dm()
        for r in range(16): A(f"v_add_f32 {v(Z+r)}, 1.0, {v(Z+r)}")
        dm()
        for r in range(16): A(f"v_rcp_f32 {v(Z+r)}, {v(Z+r)}")
        dm()
        for r in range(16): A(f"v_mul_f32 {v(x+r)}, {v(x+r)}, {v(Z+r)}")
        pk = R(t)
        for i in range(8): A(f"v_cvt_pk_bf16_f32 {v(pk+i)}, {v(x+2*i)}, {v(x+2*i+1)}")
        A(f"buffer_store_dwordx4 {v(pk,4)}, {v(vL16)}, {s(sO,4)}, {s(sB)} offen offset:{t*2048}" + LSC)
        A(f"buffer_store_dwordx4 {v(pk+4,4)}, {v(vL16)}, {s(sO,4)}, {s(sB)} offen offset:{t*2048+1024}" + LSC)
    assert not pcs
    dma_w2_lo8()
    A("s_waitcnt vmcnt(8)")
    A("s_barrier")
    K.stamp()
    def sig4():
        cnt_off(sCn, 6144, lambda d: A(f"s_mov_b32 {s(d)}, {s(sR128)}"))
        signal(sCn, LOCAL)
    only_wave0("4s", sig4)
    V.release(mk4)
    A.label("KM_NOP4")
    mkPR = V.mark()
    PR = V.alloc(96)
    V.release(mkPR)
    if_upper("w2", dma_w2_hi_upper)
    def w0_sync4():
        def idx(d):
            A(f"s_lshl_b32 {s(d)}, {s(sXcd)}, 1")
            A(f"s_lshr_b32 {s(sT0)}, {s(sJ3)}, 1")
            A(f"s_add_u32 {s(d)}, {s(d)}, {s(sT0)}")
        cnt_off(sCn, 6144, idx)
        poll(sCn, 14, "4")
    NW = 12
    Af = [[V.alloc(4) for _ in range(2)] for _ in range(NW)]
    acc = [V.alloc(16) for _ in range(4)]
    Bf = [[V.alloc(4) for _ in range(2)] for _ in range(2)]
    vB = V.alloc(); b2r = V.alloc(4)
    sA0, sA1 = S.alloc(), S.alloc()
    srd(A, sRa, sP2 + 2, 512 * 2)
    srd(A, sRb, sPo, 2048 * 512 * 2)
    A(f"s_lshl_b32 {s(sT0)}, {s(sCt)}, 7")
    A(f"s_lshl_b32 {s(sT1)}, {s(sTb)}, 6")
    A(f"s_add_u32 {s(sT0)}, {s(sT0)}, {s(sT1)}")
    A(f"s_lshl_b32 {s(sT1)}, {s(sTi)}, 5")
    A(f"s_add_u32 {s(sT0)}, {s(sT0)}, {s(sT1)}")
    A(f"v_lshlrev_b32 {v(vT0)}, 3, {v(vHf)}")
    for a_ in range(2):
        A(f"buffer_load_dwordx2 {v(b2r+2*a_,2)}, {v(vT0)}, {s(sRa,4)}, {s(sT0)} offen offset:{a_*16}")
    A(f"s_cmp_lt_u32 {s(sW8)}, 4")
    A(f"s_cbranch_scc1 KM_C5")
    A("s_waitcnt vmcnt(0)")
    A("s_barrier")
    for y in range(1, 7):
        if y >= 4: A(f"s_waitcnt vmcnt({8*(6-y)})")
        A("s_barrier")
        if y + 3 < 7: dma_w2(y + 3)
    A("s_barrier")
    A("s_branch KM_Z")
    A.label("KM_C5")
    A(f"s_mul_i32 {s(sA0)}, {s(sRt)}, {2*112*1024}")
    A(f"s_mul_i32 {s(sT0)}, {s(sW)}, {28*1024}")
    A(f"s_add_u32 {s(sA0)}, {s(sA0)}, {s(sT0)}")
    A(f"s_add_u32 {s(sA0)}, {s(sA0)}, {WS_MF}")
    A(f"s_add_u32 {s(sA1)}, {s(sA0)}, {112*1024}")
    A(f"s_lshl_b32 {s(sT0)}, {s(sW)}, 15")
    A(f"v_add_u32 {v(vB)}, {s(sT0)}, {v(vBl)}")
    def lda(n):
        for r, sa in ((0, sA0), (1, sA1)):
            if n % 4 == 0 and n: A(f"s_add_u32 {s(sa)}, {s(sa)}, 4096")
            A(f"buffer_load_dwordx4 {v(Af[n % NW][r],4)}, {v(vL16)}, {s(sO,4)}, {s(sa)} offen offset:{(n&3)*1024}" + LLD)
    def rd5(n):
        c, i = n >> 2, n & 3
        for b in range(2):
            o = W2 + (c & 3) * 8192 + i * 2048 + b * 512
            A(f"ds_read_b64_tr_b16 {v(Bf[n&1][b],2)}, {v(vB)} offset:{o}")
            A(f"ds_read_b64_tr_b16 {v(Bf[n&1][b]+2,2)}, {v(vB)} offset:{o+1024}")
    A("s_waitcnt vmcnt(0)")
    only_wave0("4", w0_sync4)
    A("s_barrier")
    K.stamp()
    issued = 3
    for n in range(issued): lda(n)
    rd5(0)
    for n in range(28):
        if n + 1 < 28:
            if (n + 1) % 4 == 0:
                A("s_waitcnt lgkmcnt(0)")
                A("s_barrier")
            rd5(n + 1)
            A("s_waitcnt lgkmcnt(4)")
        else:
            A("s_waitcnt lgkmcnt(0)")
        A(f"s_waitcnt vmcnt({2*(issued - 1 - n)})")
        for b in range(2):
            for r in range(2):
                t = 2 * b + r
                A(f"v_mfma_f32_32x32x16_bf16 {v(acc[t],16)}, {v(Bf[n&1][b],4)}, {v(Af[n%NW][r],4)}, {'0' if n == 0 else v(acc[t],16)}")
        tgt = min(28, n + 1 + WIN5, issued + 2)
        while issued < tgt:
            lda(issued); issued += 1
    K.stamp()
    A("s_barrier")
    A(f"s_lshl_b32 {s(sT0)}, {s(sW)}, 12")
    A(f"s_add_u32 {s(sT0)}, {s(sT0)}, {RED5}")
    A(f"v_add_u32 {v(vT0)}, {s(sT0)}, {v(vL16)}")
    for t in range(4):
        for q in range(4):
            A(f"ds_write_b128 {v(vT0)}, {v(acc[t]+4*q,4)} offset:{t*16384 + q*1024}")
    A("s_waitcnt lgkmcnt(0)")
    A.label("KM_Z")
    A("s_barrier")
    out = Af[0][0]
    own_reduce(RED5, out)
    un = acc[0]
    for i in range(4):
        A(f"v_lshlrev_b32 {v(un+2*i)}, 16, {v(hpk4+i)}")
        A(f"v_and_b32 {v(un+2*i+1)}, 0xffff0000, {v(hpk4+i)}")
    for r in range(8): A(f"v_add_f32 {v(out+r)}, {v(out+r)}, {v(un+r)}")
    A("s_waitcnt vmcnt(0)")
    for i in range(4):
        A(f"v_lshlrev_b32 {v(un+2*i)}, 16, {v(b2r+i)}")
        A(f"v_and_b32 {v(un+2*i+1)}, 0xffff0000, {v(b2r+i)}")
    for r in range(8): A(f"v_add_f32 {v(out+r)}, {v(out+r)}, {v(un+r)}")
    pk = acc[1]
    for i in range(4): A(f"v_cvt_pk_bf16_f32 {v(pk+i)}, {v(out+2*i)}, {v(out+2*i+1)}")
    A(f"v_permlane32_swap_b32 {v(pk)}, {v(pk+2)}")
    A(f"v_permlane32_swap_b32 {v(pk+1)}, {v(pk+3)}")
    A(f"s_lshl_b32 {s(sT0)}, {s(sRt)}, 16")
    A(f"s_lshl_b32 {s(sT1)}, {s(sTr)}, 15")
    A(f"s_add_u32 {s(sT0)}, {s(sT0)}, {s(sT1)}")
    A(f"s_lshl_b32 {s(sT1)}, {s(sCt)}, 7")
    A(f"s_add_u32 {s(sT0)}, {s(sT0)}, {s(sT1)}")
    A(f"s_lshl_b32 {s(sT1)}, {s(sTb)}, 6")
    A(f"s_add_u32 {s(sT0)}, {s(sT0)}, {s(sT1)}")
    A(f"s_lshl_b32 {s(sT1)}, {s(sTi)}, 5")
    A(f"s_add_u32 {s(sT0)}, {s(sT0)}, {s(sT1)}")
    A(f"v_lshlrev_b32 {v(vT0)}, 10, {v(vTok)}")
    A(f"v_lshl_add_u32 {v(vT0)}, {v(vHf)}, 4, {v(vT0)}")
    A(f"buffer_store_dwordx4 {v(pk,4)}, {v(vT0)}, {s(sRb,4)}, {s(sT0)} offen")
    if "dbgt" in G.FLAGS:
        A("s_waitcnt vmcnt(0)")
        A(f"s_memrealtime s[96:97]")
        A(f"s_memtime s[98:99]")
        A("s_waitcnt lgkmcnt(0)")
        A(f"s_not_b32 {s(sDT)}, {s(sDT)}")
        A(f"s_sub_u32 s98, s98, {s(sDT+2)}")
        A(f"v_mov_b32 {v(vT0)}, 0")
        A(f"v_mov_b32 {v(vT1)}, s96")
        A(f"s_mov_b64 exec, 1")
        A(f"global_atomic_umax {v(vT0)}, {v(vT1)}, {s(sDbg,2)} offset:8")
        A(f"v_mov_b32 {v(vT1)}, {s(sDT)}")
        A(f"global_atomic_umax {v(vT0)}, {v(vT1)}, {s(sDbg,2)} offset:12")
        A(f"v_mov_b32 {v(vT1)}, s98")
        A(f"global_atomic_umax {v(vT0)}, {v(vT1)}, {s(sDbg,2)} offset:16")
        K.S.hi = 100
    K.stamp_out(sO, 0, vT0, vT1)
    K.rt_end(sO, 0, vT0, vT1)
    A.label(END)
    A("s_endpgm")
    print("km vgprs", V.hi, "sgprs", S.hi, "lds", K.lds)
    return K

def k1_hook(ev, K, L):
    A, V, S = K.A, K.V, K.S
    vT0, vT1, vLane, sW8, sWs = L["vT0"], L["vT1"], L["vLane"], L["sW8"], L["sWs"]
    H = K.__dict__.setdefault("_h", {})
    if ev == "start":
        H["R0"] = V.alloc(32); H["AC"] = V.alloc(8); H["UN"] = V.alloc(8); H["vo"] = V.alloc()
        H["srd"] = S.alloc(4); H["t"] = [S.alloc() for _ in range(4)]; H["p"] = S.alloc(2); H["flag"] = S.alloc()
        R0, vo, srd_, t, p, flag = H["R0"], H["vo"], H["srd"], H["t"], H["p"], H["flag"]
        A(f"s_mov_b32 {s(flag)}, 0")
        A(f"s_cmp_lg_u32 {s(sW8)}, 8")
        A(f"s_cbranch_scc1 K1_NOCS0")
        A("s_waitcnt lgkmcnt(0)")
        A(f"s_cmp_ge_u32 s2, 48")
        A(f"s_cbranch_scc1 K1_NOZ")
        srd(A, srd_, sWs, WS_SIZE)
        A(f"s_lshl_b32 {s(t[0])}, s2, 8")
        A(f"s_add_u32 {s(t[0])}, {s(t[0])}, {WS_CNT}")
        A(f"v_mov_b32 {v(vT0)}, 0")
        A(f"v_mov_b32 {v(vT1)}, 0")
        A(f"s_mov_b64 exec, 1")
        A(f"buffer_store_dword {v(vT0)}, {v(vT1)}, {s(srd_,4)}, {s(t[0])} offen")
        A(f"s_mov_b64 exec, -1")
        A.label("K1_NOZ")
        A(f"s_cmp_ge_u32 s2, 224")
        A(f"s_cbranch_scc1 K1_NOCS0")
        A(f"s_mov_b32 {s(flag)}, 1")
        A(f"s_load_dwordx2 {s(p,2)}, s[0:1], 32")
        A(f"s_mul_i32 {s(t[0])}, s2, 2341")
        A(f"s_lshr_b32 {s(t[0])}, {s(t[0])}, 16")
        A(f"s_mul_i32 {s(t[1])}, {s(t[0])}, 28")
        A(f"s_sub_u32 {s(t[1])}, s2, {s(t[1])}")
        A(f"v_lshrrev_b32 {v(vo)}, 3, {v(vLane)}")
        A(f"v_mul_u32_u24 {v(vo)}, 3584, {v(vo)}")
        A(f"v_and_b32 {v(vT0)}, 7, {v(vLane)}")
        A(f"v_lshl_add_u32 {v(vo)}, {v(vT0)}, 4, {v(vo)}")
        A(f"s_mul_i32 {s(t[2])}, {s(t[0])}, {64*3584}")
        A(f"s_lshl_b32 {s(t[3])}, {s(t[1])}, 7")
        A(f"s_add_u32 {s(t[2])}, {s(t[2])}, {s(t[3])}")
        A("s_waitcnt lgkmcnt(0)")
        srd(A, srd_, p, 512 * 1792 * 2)
        for n in range(8):
            A(f"buffer_load_dwordx4 {v(R0+4*n,4)}, {v(vo)}, {s(srd_,4)}, {s(t[2])} offen")
            A(f"s_add_u32 {s(t[2])}, {s(t[2])}, {8*3584}")
        A.label("K1_NOCS0")
        for i in range(8): A(f"v_mov_b32 {v(H['AC']+i)}, 0")
    elif ev == "end":
        R0, AC, UN, srd_, t, flag = H["R0"], H["AC"], H["UN"], H["srd"], H["t"], H["flag"]
        A(f"s_cmp_eq_u32 {s(flag)}, 0")
        A(f"s_cbranch_scc1 K1_NOCS1")
        A("s_waitcnt vmcnt(0)")
        for n in range(8):
            for i in range(4):
                A(f"v_lshlrev_b32 {v(UN+2*i)}, 16, {v(R0+4*n+i)}")
                A(f"v_and_b32 {v(UN+2*i+1)}, 0xffff0000, {v(R0+4*n+i)}")
            for i in range(8): A(f"v_add_f32 {v(AC+i)}, {v(AC+i)}, {v(UN+i)}")
        for i in range(8): A(f"v_add_f32_dpp {v(AC+i)}, {v(AC+i)}, {v(AC+i)} row_ror:8 row_mask:0xf bank_mask:0xf")
        for sw in ("v_permlane16_swap_b32", "v_permlane32_swap_b32"):
            for i in range(8): A(f"v_mov_b32 {v(UN+i)}, {v(AC+i)}")
            for i in range(8): A(f"{sw} {v(AC+i)}, {v(UN+i)}")
            for i in range(8): A(f"v_add_f32 {v(AC+i)}, {v(AC+i)}, {v(UN+i)}")
        srd(A, srd_, sWs, WS_SIZE)
        A(f"s_mul_i32 {s(t[2])}, {s(t[0])}, 7168")
        A(f"s_lshl_b32 {s(t[3])}, {s(t[1])}, 8")
        A(f"s_add_u32 {s(t[2])}, {s(t[2])}, {s(t[3])}")
        A(f"s_add_u32 {s(t[2])}, {s(t[2])}, {WS_CSG}")
        A(f"v_and_b32 {v(vT0)}, 7, {v(vLane)}")
        A(f"v_lshlrev_b32 {v(vT0)}, 5, {v(vT0)}")
        A(f"s_mov_b64 exec, 0xff")
        A(f"buffer_store_dwordx4 {v(AC,4)}, {v(vT0)}, {s(srd_,4)}, {s(t[2])} offen")
        A(f"buffer_store_dwordx4 {v(AC+4,4)}, {v(vT0)}, {s(srd_,4)}, {s(t[2])} offen offset:16")
        A.label("K1_NOCS1")

def k1z():
    G.HOOK = k1_hook
    return G.k1()

if __name__ == "__main__":
    if "stamp" in sys.argv: G.STAMP = True
    if "rt" in sys.argv: G.RT = True
    G.FLAGS = set(sys.argv[2:])
    for a_ in sys.argv[2:]:
        if a_.startswith("prioit="): PRIO_IT = int(a_.split("=")[1])
        if a_.startswith("npoll="): NPOLL = int(a_.split("=")[1])
        if a_.startswith("psleep="): PSLEEP = int(a_.split("=")[1])
    ks = [km(1 if 'q1' in G.FLAGS else 2, prio=('noprio' not in G.FLAGS))]
    build(ks, sys.argv[1] if len(sys.argv) > 1 else "out.s")
```

```python
import sys
import gen as G
from gen import *
from dsl import *

WS_CNT = (21 << 20)
G.WS_CNT = WS_CNT
G.WS_HS = WS_HS = 20 << 20
WS_CSG = (20 << 20) + (512 << 10)
G.WS_STAMP = WS_STAMP = (21 << 20) + (512 << 10)

PRIO_IT = 13
NPOLL = 1
TLB_IT = 6
PSLEEP = 4
WIN5 = 8
def km(nqb=2, prio=True):
    ks = nqb
    LOCAL = 'local' in G.FLAGS
    LSC = '' if LOCAL else ' sc1'
    LLD = '' if (LOCAL and 'ldsc1' not in G.FLAGS) else ' sc1'
    KR = 0; VR = 65536; ON = 131072
    WO = 0; XT = 65536; RED = XT + 8192
    W1 = 0; CS = 139264; BI = CS + 512
    W2 = 0; RED5 = 0
    TKL = BI + 512 + 2048
    STP = BI + 512
    K = Kern("km_fused_kernel", (256, 1, 1), (512, 1, 1), BI + 512 + 2048 + 64)
    A, V, S = K.A, K.V, K.S
    END = "KM_END"
    sWs = S.alloc(2); sPx = S.alloc(2); sPwo = S.alloc(2); sP1 = S.alloc(4); sP2 = S.alloc(4); sPo = S.alloc(2)
    A(f"s_load_dwordx2 {s(sWs,2)}, s[0:1], 80")
    A(f"s_load_dwordx2 {s(sPx,2)}, s[0:1], 0")
    A(f"s_load_dwordx2 {s(sPwo,2)}, s[0:1], 16")
    A(f"s_load_dwordx4 {s(sP1,4)}, s[0:1], 32")
    A(f"s_load_dwordx4 {s(sP2,4)}, s[0:1], 48")
    A(f"s_load_dwordx2 {s(sPo,2)}, s[0:1], 64")
    A(f"s_cmp_ge_u32 s2, 256")
    A(f"s_cbranch_scc1 {END}")
    K.rt_begin()
    K.stamp()
    sO = S.alloc(4); sRa = S.alloc(4); sRb = S.alloc(4)
    sW8, sW, sXcd, sJ, sT0, sT1, sB, sJ3, sJ2, sCn = [S.alloc() for _ in range(10)]
    sSave = S.alloc(2)
    sXcP, sTkP = S.alloc(), S.alloc()
    vLane, vT0, vT1, vT2, vHf, vTok, vL16 = [V.alloc() for _ in range(7)]
    hpk = V.alloc(4)
    vPoll = V.alloc(4)
    wave_ids(K, sW8, sW, vLane, vT0)
    A(f"s_and_b32 {s(sXcd)}, s2, 7")
    A(f"s_lshr_b32 {s(sJ)}, s2, 3")
    A(f"s_and_b32 {s(sJ3)}, {s(sJ)}, 3")
    A(f"s_lshr_b32 {s(sJ2)}, {s(sJ)}, 2")
    A(f"v_lshlrev_b32 {v(vL16)}, 4, {v(vLane)}")
    A(f"v_lshrrev_b32 {v(vHf)}, 5, {v(vLane)}")
    A(f"v_and_b32 {v(vTok)}, 31, {v(vLane)}")
    def signal(off_sgpr, local=False):
        A(f"v_mov_b32 {v(vT0)}, 1")
        A(f"v_mov_b32 {v(vT1)}, 0")
        A(f"s_mov_b64 exec, 1")
        A(f"buffer_atomic_add {v(vT0)}, {v(vT1)}, {s(sO,4)}, {s(off_sgpr)} offen" + ("" if local else " sc1"))
        A(f"s_mov_b64 exec, -1")
    def poll(off_sgpr, target, tag):
        if NPOLL <= 1:
            A(f"v_mov_b32 {v(vT1)}, 0")
            A(f"s_mov_b32 {s(sT1)}, 3000000")
            A.label(f"KM_POLL_{tag}")
            A(f"buffer_load_dword {v(vT0)}, {v(vT1)}, {s(sO,4)}, {s(off_sgpr)} offen sc1")
            A("s_waitcnt vmcnt(0)")
            A(f"v_readfirstlane_b32 {s(sT0)}, {v(vT0)}")
            A(f"s_cmp_ge_u32 {s(sT0)}, {target}")
            A(f"s_cbranch_scc1 KM_PD_{tag}")
            A("s_sleep 1")
            A(f"s_sub_u32 {s(sT1)}, {s(sT1)}, 1")
            A(f"s_cmp_lg_u32 {s(sT1)}, 0")
            A(f"s_cbranch_scc1 KM_POLL_{tag}")
            A.label(f"KM_PD_{tag}")
            return
        P = vPoll
        A(f"v_mov_b32 {v(vT1)}, 0")
        A(f"s_mov_b32 {s(sT1)}, 1000000")
        for k in range(NPOLL - 1):
            A(f"buffer_load_dword {v(P+k)}, {v(vT1)}, {s(sO,4)}, {s(off_sgpr)} offen sc1")
            A(f"s_sleep {PSLEEP}")
        A.label(f"KM_POLL_{tag}")
        for k in range(NPOLL):
            A(f"buffer_load_dword {v(P+(k+NPOLL-1)%NPOLL)}, {v(vT1)}, {s(sO,4)}, {s(off_sgpr)} offen sc1")
            A(f"s_waitcnt vmcnt({NPOLL-1})")
            A(f"v_readfirstlane_b32 {s(sT0)}, {v(P+k)}")
            A(f"s_cmp_ge_u32 {s(sT0)}, {target}")
            A(f"s_cbranch_scc1 KM_PD_{tag}")
            A(f"s_sleep {PSLEEP}")
        A(f"s_sub_u32 {s(sT1)}, {s(sT1)}, 1")
        A(f"s_cmp_lg_u32 {s(sT1)}, 0")
        A(f"s_cbranch_scc1 KM_POLL_{tag}")
        A.label(f"KM_PD_{tag}")
    def only_wave0(tag, body):
        A(f"s_cmp_lg_u32 {s(sW8)}, 0")
        A(f"s_cbranch_scc1 KM_NW0_{tag}")
        body()
        A.label(f"KM_NW0_{tag}")
    def cnt_off(dst, base, idx_expr):
        idx_expr(dst)
        A(f"s_lshl_b32 {s(dst)}, {s(dst)}, 8")
        A(f"s_add_u32 {s(dst)}, {s(dst)}, {WS_CNT + base}")
    mkV = V.mark(); mkS = S.mark()
    sHead, sWq, sKh, sHb, sIt, sKm, sQt, sL, sG, sL0 = [S.alloc() for _ in range(10)]
    sQb = sJ2
    vK, vV, vVinc = [V.alloc() for _ in range(3)]
    A(f"s_lshl_b32 {s(sHead)}, {s(sXcd)}, 2")
    A(f"s_add_u32 {s(sHead)}, {s(sHead)}, {s(sJ3)}")
    if ks == 2:
        A(f"s_mov_b32 {s(sWq)}, {s(sW)}")
        A(f"s_lshr_b32 {s(sKh)}, {s(sW8)}, 2")
    else:
        A(f"s_mov_b32 {s(sWq)}, {s(sW8)}")
        A(f"s_mov_b32 {s(sKh)}, 0")
    A(f"s_lshl_b32 {s(sHb)}, {s(sHead)}, 16")
    Q = [V.alloc(4) for _ in range(nqb)]
    vKm = V.alloc()
    A(f"s_lshl_b32 {s(sT0)}, {s(sQb)}, 3")
    A(f"s_mul_i32 {s(sT1)}, {s(sWq)}, {nqb}")
    A(f"s_add_u32 {s(sQt)}, {s(sT0)}, {s(sT1)}")
    if ks == 2:
        A(f"s_lshl_b32 {s(sL0)}, {s(sKh)}, 5")
        A(f"s_lshl_b32 {s(sT0)}, {s(sWq)}, 1")
        A(f"s_add_u32 {s(sL0)}, {s(sL0)}, {s(sT0)}")
        gstep = 8
    else:
        A(f"s_lshl_b32 {s(sL0)}, {s(sW8)}, 1")
        gstep = 16
    A(f"s_lshl_b32 {s(sB)}, {s(sQt)}, 10")
    A(f"s_add_u32 {s(sB)}, {s(sB)}, {s(sHb)}")
    A(f"v_lshlrev_b32 {v(vT2)}, 2, {v(vLane)}")
    A("s_waitcnt lgkmcnt(0)")
    srd(A, sO, sWs, WS_SIZE)
    sXc, sTk = sXcP, sTkP
    vTk = V.alloc()
    if LOCAL:
        A(f"s_getreg_b32 {s(sXc)}, hwreg(HW_REG_XCC_ID)")
        A(f"s_and_b32 {s(sXc)}, {s(sXc)}, 7")
        A(f"s_cmp_lg_u32 {s(sW8)}, 0")
        A(f"s_cbranch_scc1 KM_NOTK")
        A(f"s_lshl_b32 {s(sT0)}, {s(sXc)}, 8")
        A(f"s_add_u32 {s(sT0)}, {s(sT0)}, {WS_CNT + 10240}")
        A(f"v_mov_b32 {v(vTk)}, 1")
        A(f"v_mov_b32 {v(vT0)}, 0")
        A(f"s_mov_b64 exec, 1")
        A(f"buffer_atomic_add {v(vTk)}, {v(vT0)}, {s(sO,4)}, {s(sT0)} offen sc0")
        A(f"s_mov_b64 exec, -1")
        A.label("KM_NOTK")
    else:
        A(f"s_mov_b32 {s(sXc)}, {s(sXcd)}")
        A(f"s_mov_b32 {s(sTk)}, {s(sJ)}")
    def kv_group(g):
        A(f"s_add_u32 {s(sL)}, {s(sL0)}, {gstep*g}")
        A(f"s_lshl_b32 {s(sT0)}, {s(sQb)}, 3")
        A(f"s_add_u32 {s(sG)}, {s(sL)}, {s(sT0)}")
        A(f"s_and_b32 {s(sG)}, {s(sG)}, 63")
        A(f"s_lshl_b32 {s(sG)}, {s(sG)}, 10")
        A(f"s_add_u32 {s(sG)}, {s(sG)}, {s(sHb)}")
        A(f"s_lshl_b32 {s(sL)}, {s(sL)}, 10")
        A(f"s_add_u32 m0, {s(sL)}, {KR}")
        A(f"s_add_u32 {s(sT0)}, {s(sG)}, {WS_KF}")
        A(f"buffer_load_dwordx4 {v(vL16)}, {s(sO,4)}, {s(sT0)} offen lds")
        A(f"buffer_load_dwordx4 {v(vL16)}, {s(sO,4)}, {s(sT0)} offen offset:1024 lds")
        A(f"s_add_u32 m0, {s(sL)}, {VR}")
        A(f"s_add_u32 {s(sT0)}, {s(sG)}, {WS_VF}")
        A(f"buffer_load_dwordx4 {v(vL16)}, {s(sO,4)}, {s(sT0)} offen lds")
        A(f"buffer_load_dwordx4 {v(vL16)}, {s(sO,4)}, {s(sT0)} offen offset:1024 lds")
    for b in range(nqb):
        A(f"buffer_load_dwordx4 {v(Q[b],4)}, {v(vL16)}, {s(sO,4)}, {s(sB)} offen offset:{b*1024}")
    A(f"s_lshl_b32 {s(sT0)}, {s(sHead)}, 8")
    A(f"s_add_u32 {s(sT0)}, {s(sT0)}, {WS_KMAX}")
    A(f"buffer_load_dword {v(vKm)}, {v(vT2)}, {s(sO,4)}, {s(sT0)} offen")
    kv_group(0)
    K.stamp()
    ZROW = "zrow" in G.FLAGS
    ZR = ON + 4608
    A(f"v_mov_b32 {v(vT1)}, 0x3f803f80")
    A(f"v_lshlrev_b32 {v(vT0)}, 2, v0")
    A(f"v_add_u32 {v(vT0)}, {ON}, {v(vT0)}")
    A(f"ds_write_b32 {v(vT0)}, {v(vT1)}")
    A(f"ds_write_b32 {v(vT0)}, {v(vT1)} offset:2048")
    if ZROW:
        A(f"v_mov_b32 {v(vT2)}, 0")
        A(f"ds_write_b32 {v(vT0)}, {v(vT2)} offset:4608")
        A(f"ds_write_b32 {v(vT0)}, {v(vT2)} offset:{4608+2048}")
    A(f"v_cmp_gt_u32 vcc, 128, v0")
    A(f"s_and_saveexec_b64 {s(sSave,2)}, vcc")
    A(f"ds_write_b32 {v(vT0)}, {v(vT1)} offset:4096")
    if ZROW: A(f"ds_write_b32 {v(vT0)}, {v(vT2)} offset:{4608+4096}")
    A(f"s_mov_b64 exec, {s(sSave,2)}")
    A(f"s_lshl_b32 {s(sT0)}, {s(sKh)}, 15")
    A(f"v_add_u32 {v(vK)}, {s(sT0)}, {v(vL16)}")
    A(f"v_lshlrev_b32 {v(vT0)}, 8, {v(vHf)}")
    A(f"v_lshl_add_u32 {v(vT0)}, {v(vTok)}, 4, {v(vT0)}")
    A(f"s_add_u32 {s(sT0)}, {s(sT0)}, {VR}")
    A(f"v_add_u32 {v(vT0)}, {s(sT0)}, {v(vT0)}")
    A(f"v_subrev_u32 {v(vT1)}, 20, {v(vTok)}")
    A(f"v_cmp_gt_u32 vcc, 8, {v(vT1)}")
    if ZROW:
        A(f"v_mov_b32 {v(vT1)}, {ZR+192}")
        A(f"v_mov_b32 {v(vT2)}, {ZR+64}")
        A(f"v_cndmask_b32 {v(vT1)}, {v(vT1)}, {v(vT2)}, vcc")
        A(f"v_mov_b32 {v(vT2)}, {ON}")
        A(f"v_cmp_eq_u32 vcc, 16, {v(vTok)}")
        A(f"v_cndmask_b32 {v(vT1)}, {v(vT1)}, {v(vT2)}, vcc")
    else:
        A(f"v_mov_b32 {v(vT1)}, {ON}")
        A(f"v_mov_b32 {v(vT2)}, {ON+64}")
        A(f"v_cndmask_b32 {v(vT1)}, {v(vT1)}, {v(vT2)}, vcc")
    A(f"v_cmp_gt_u32 vcc, 16, {v(vTok)}")
    A(f"v_cndmask_b32 {v(vV)}, {v(vT1)}, {v(vT0)}, vcc")
    A(f"v_mov_b32 {v(vT1)}, 4096")
    A(f"v_cndmask_b32 {v(vVinc)}, 0, {v(vT1)}, vcc")
    Kf = [V.alloc(4) for _ in range(2)]; Vf0 = [V.alloc(4) for _ in range(2)]; Vf1 = [V.alloc(4) for _ in range(2)]
    QB = [dict(S=[V.alloc(16), V.alloc(16)], P=V.alloc(8), O=V.alloc(16), C=V.alloc(16)) for _ in range(nqb)]
    for b in range(nqb):
        for r in range(16): A(f"v_mov_b32 {v(QB[b]['O']+r)}, 0")
        for r in range(4, 8): A(f"v_mov_b32 {v(QB[b]['P']+r)}, 0")
    for r in range(4): A(f"v_mov_b32 {v(Vf1[1]+r)}, 0")
    A(f"s_waitcnt vmcnt(4)")
    wave_max64(A, vKm, sKm, sT0)
    bad = S.alloc(2)
    for b in range(nqb):
        un = QB[b]["S"][0]
        for i in range(4):
            A(f"v_lshlrev_b32 {v(un+2*i)}, 16, {v(Q[b]+i)}")
            A(f"v_and_b32 {v(un+2*i+1)}, 0xffff0000, {v(Q[b]+i)}")
        A(f"v_mul_f32 {v(vT0)}, {v(un)}, {v(un)}")
        for i in range(1, 8): A(f"v_fmac_f32 {v(vT0)}, {v(un+i)}, {v(un+i)}")
        swap_add(A, vT0, vT1)
        A(f"v_mul_f32 {v(vT0)}, {s(sKm)}, {v(vT0)}")
        A(f"v_sqrt_f32 {v(vT0)}, {v(vT0)}")
        A(f"v_mov_b32 {v(vT1)}, {f2u(0.01):#x}")
        A(f"v_fmac_f32 {v(vT1)}, {f2u(1.01):#x}, {v(vT0)}")
        A(f"v_mov_b32 {v(vT2)}, {f2u(40.0):#x}")
        A(f"v_cmp_nge_f32 vcc, {v(vT2)}, {v(vT1)}")
        if b == 0: A(f"s_mov_b64 {s(bad,2)}, vcc")
        else: A(f"s_or_b64 {s(bad,2)}, {s(bad,2)}, vcc")
        for r in range(16): A(f"v_sub_f32 {v(QB[b]['C']+r)}, 0, {v(vT1)}")
    if LOCAL:
        A(f"s_waitcnt vmcnt(0)")
        A(f"s_cmp_lg_u32 {s(sW8)}, 0")
        A(f"s_cbranch_scc1 KM_NOTK2")
        A(f"v_mov_b32 {v(vT0)}, {TKL}")
        A(f"s_mov_b64 exec, 1")
        A(f"ds_write_b32 {v(vT0)}, {v(vTk)}")
        A(f"s_mov_b64 exec, -1")
        A.label("KM_NOTK2")
    A(f"s_waitcnt vmcnt(0) lgkmcnt(0)")
    A("s_barrier")
    K.stamp()
    if LOCAL:
        A(f"v_mov_b32 {v(vT0)}, {TKL}")
        A(f"ds_read_b32 {v(vT1)}, {v(vT0)}")
        A(f"s_waitcnt lgkmcnt(0)")
        A(f"v_readfirstlane_b32 {s(sTk)}, {v(vT1)}")
    NT = 64 // ks
    mf = "v_mfma_f32_32x32x16_bf16"
    sPF = S.alloc(4); sPFo = S.alloc()
    A(f"s_lshl_b32 {s(sT0)}, {s(sJ)}, 2")
    A(f"s_add_u32 {s(sT0)}, {s(sT0)}, {s(sW)}")
    A(f"s_cmp_lt_u32 {s(sT0)}, 72")
    A(f"s_cselect_b32 {s(sPF)}, {s(sP1)}, {s(sP2)}")
    A(f"s_cselect_b32 {s(sPF+1)}, {s(sP1+1)}, {s(sP2+1)}")
    A(f"s_cselect_b32 {s(sT1)}, 16, 72")
    A(f"s_cmp_lt_u32 {s(sT0)}, 16")
    A(f"s_cselect_b32 {s(sPF)}, {s(sPwo)}, {s(sPF)}")
    A(f"s_cselect_b32 {s(sPF+1)}, {s(sPwo+1)}, {s(sPF+1)}")
    A(f"s_cselect_b32 {s(sT1)}, 0, {s(sT1)}")
    A(f"s_sub_u32 {s(sT0)}, {s(sT0)}, {s(sT1)}")
    A(f"s_lshl_b32 {s(sT0)}, {s(sT0)}, 15")
    A(f"s_add_u32 {s(sPF)}, {s(sPF)}, {s(sT0)}")
    A(f"s_addc_u32 {s(sPF+1)}, {s(sPF+1)}, 0")
    A(f"s_and_b32 {s(sPF+1)}, {s(sPF+1)}, 0xffff")
    A(f"s_mov_b32 {s(sPF+2)}, 32768")
    A(f"s_mov_b32 {s(sPF+3)}, 0x20000")
    A(f"s_mov_b32 {s(sPFo)}, 0")
    if "nopf" in G.FLAGS:
        A(f"s_mov_b32 {s(sPFo)}, 32768")
    if "pf2" in G.FLAGS:
        A(f"s_lshl_b32 {s(sT0)}, {s(sJ)}, 2")
        A(f"s_add_u32 {s(sT0)}, {s(sT0)}, {s(sW)}")
        A(f"s_cmp_lt_u32 {s(sT0)}, 72")
        A(f"s_cselect_b32 {s(sPFo)}, 0, 32768")
    vPF = V.alloc(4)
    A(f"s_cmp_lt_u32 {s(sW8)}, 4")
    A(f"s_cbranch_scc1 KM_OLD1")
    for g in range(1, 4):
        if ks == 2:
            A(f"s_lshr_b32 {s(sL)}, {s(sW)}, 1")
            A(f"s_lshl_b32 {s(sL)}, {s(sL)}, 5")
            A(f"s_and_b32 {s(sT0)}, {s(sW)}, 1")
            A(f"s_lshl_b32 {s(sT0)}, {s(sT0)}, 2")
            A(f"s_add_u32 {s(sL)}, {s(sL)}, {s(sT0)}")
            A(f"s_add_u32 {s(sL)}, {s(sL)}, {8*g}")
        else:
            A(f"s_lshl_b32 {s(sL)}, {s(sW)}, 2")
            A(f"s_add_u32 {s(sL)}, {s(sL)}, {16*g}")
        A(f"s_lshl_b32 {s(sT0)}, {s(sQb)}, 3")
        A(f"s_add_u32 {s(sG)}, {s(sL)}, {s(sT0)}")
        A(f"s_and_b32 {s(sG)}, {s(sG)}, 63")
        A(f"s_lshl_b32 {s(sG)}, {s(sG)}, 10")
        A(f"s_add_u32 {s(sG)}, {s(sG)}, {s(sHb)}")
        A(f"s_lshl_b32 {s(sL)}, {s(sL)}, 10")
        for reg, wsb in ((KR, WS_KF), (VR, WS_VF)):
            A(f"s_add_u32 m0, {s(sL)}, {reg}")
            A(f"s_add_u32 {s(sT0)}, {s(sG)}, {wsb}")
            for i in range(4):
                A(f"buffer_load_dwordx4 {v(vL16)}, {s(sO,4)}, {s(sT0)} offen offset:{i*1024} lds")
    A("s_waitcnt vmcnt(0)")
    A("s_barrier")
    if prio: A("s_setprio 1")
    A.label("KM_OLD1")
    A(f"s_cmp_lg_u64 {s(bad,2)}, 0")
    A(f"s_cbranch_scc1 KM_SLOW")
    A(f"ds_read_b128 {v(Kf[0],4)}, {v(vK)}")
    A(f"ds_read_b128 {v(Kf[1],4)}, {v(vK)} offset:1024")
    A(f"ds_read_b128 {v(Vf0[0],4)}, {v(vV)}")
    A("s_waitcnt lgkmcnt(2)")
    for b in range(nqb):
        A(f"{mf} {v(QB[b]['S'][0],16)}, {v(Kf[0],4)}, {v(Q[b],4)}, {v(QB[b]['C'],16)}")
    sA1i = S.alloc()
    a1it = 3 if ks == 1 else 1
    A(f"s_cmp_lt_u32 {s(sW8)}, 4")
    A(f"s_cselect_b32 {s(sA1i)}, {a1it}, -1")
    sPFl = S.alloc()
    A(f"s_cselect_b32 {s(sPFl)}, 0, 32768")
    A(f"s_mov_b32 {s(sIt)}, 0")
    A.label("KM_LOOP")
    A(f"s_cmp_lg_u32 {s(sIt)}, {s(sA1i)}")
    A(f"s_cbranch_scc1 KM_NOSYNC")
    A("s_barrier")
    A.label("KM_NOSYNC")
    if prio:
        A(f"s_cmp_lg_u32 {s(sIt)}, {PRIO_IT if ks == 1 else PRIO_IT // 2}")
        A(f"s_cbranch_scc1 KM_NP2")
        A("s_setprio 0")
        A.label("KM_NP2")
    npf = 3 if ks == 1 else 6
    A(f"s_cmp_ge_u32 {s(sPFo)}, {s(sPFl)}")
    A(f"s_cbranch_scc1 KM_NOPF")
    for i in range(npf):
        if i == 4: A(f"s_add_u32 {s(sT0)}, {s(sPFo)}, 4096")
        A(f"buffer_load_dwordx4 {v(vPF,4)}, {v(vL16)}, {s(sPF,4)}, {s(sPFo if i < 4 else sT0)} offen offset:{(i&3)*1024}")
    A(f"s_add_u32 {s(sPFo)}, {s(sPFo)}, {npf*1024}")
    A.label("KM_NOPF")
    if "tlb" in G.FLAGS:
        A(f"s_cmp_lg_u32 {s(sIt)}, {TLB_IT}")
        A(f"s_cbranch_scc1 KM_NOTLB")
        A(f"s_cmp_lt_u32 {s(sW8)}, 4")
        A(f"s_cbranch_scc1 KM_NOTLB")
        A(f"v_and_b32 {v(vT0)}, 7, {v(vLane)}")
        A(f"v_lshlrev_b32 {v(vT0)}, 21, {v(vT0)}")
        A(f"s_lshl_b32 {s(sT0)}, {s(sJ)}, 12")
        A(f"s_add_u32 {s(sT0)}, {s(sT0)}, {(8 << 20) + 0x100000}")
        A(f"s_mov_b64 exec, 0x7f")
        A(f"buffer_load_dword {v(vPF)}, {v(vT0)}, {s(sO,4)}, {s(sT0)} offen")
        A(f"s_mov_b64 exec, 1")
        A(f"v_mov_b32 {v(vT0)}, 0")
        A(f"global_load_dword {v(vPF+1)}, {v(vT0)}, {s(sPo,2)}")
        A(f"global_load_dword {v(vPF+2)}, {v(vT0)}, {s(sP1+2,2)}")
        A(f"global_load_dword {v(vPF+3)}, {v(vT0)}, {s(sP2+2,2)}")
        A(f"s_mov_b64 exec, -1")
        A.label("KM_NOTLB")
    for t in range(4):
        cur, nxt = t & 1, (t + 1) & 1
        A("s_waitcnt lgkmcnt(0)")
        for b in range(nqb):
            q = QB[b]; Sx = q["S"][cur]; Sn = q["S"][nxt]; P = q["P"]; O = q["O"]
            ex = [f"v_exp_f32 {v(Sx+i)}, {v(Sx+i)}" for i in range(16)]
            cv = [f"v_cvt_pk_bf16_f32 {v(P+i)}, {v(Sx+2*i)}, {v(Sx+2*i+1)}" for i in range(8)]
            A(f"{mf} {v(Sn,16)}, {v(Kf[nxt],4)}, {v(Q[b],4)}, {v(q['C'],16)}")
            for x in ex[0:4]: A(x)
            A(cv[0])
            for x in ex[4:6]: A(x)
            A(cv[1])
            A(f"{mf} {v(O,16)}, {v(Vf1[nxt],4)}, {v(P+4,4)}, {v(O,16)}")
            if b == 0:
                A(f"ds_read_b128 {v(Kf[cur],4)}, {v(vK)} offset:{(t+2)*1024}")
                A(f"ds_read_b128 {v(Vf0[nxt],4)}, {v(vV)} offset:{(t+1)*1024}")
                A(f"ds_read_b128 {v(Vf1[cur],4)}, {v(vV)} offset:{t*1024+512}")
            for x in ex[6:8]: A(x)
            A(cv[2])
            for x in ex[8:10]: A(x)
            A(cv[3])
            for x in ex[10:12]: A(x)
            A(cv[4])
            A(f"{mf} {v(O,16)}, {v(Vf0[cur],4)}, {v(P,4)}, {v(O,16)}")
            for x in ex[12:14]: A(x)
            A(cv[5])
            for x in ex[14:16]: A(x)
            A(cv[6])
            A(cv[7])
    A(f"v_add_u32 {v(vK)}, 4096, {v(vK)}")
    A(f"v_add_u32 {v(vV)}, {v(vVinc)}, {v(vV)}")
    A(f"s_add_u32 {s(sIt)}, {s(sIt)}, 1")
    A(f"s_cmp_lt_u32 {s(sIt)}, {NT//4}")
    A(f"s_cbranch_scc1 KM_LOOP")
    A("s_waitcnt lgkmcnt(0)")
    for b in range(nqb):
        A(f"{mf} {v(QB[b]['O'],16)}, {v(Vf1[1],4)}, {v(QB[b]['P']+4,4)}, {v(QB[b]['O'],16)}")
    A("s_branch KM_FIN")
    A.label("KM_SLOW")
    A(f"s_cmp_ge_u32 {s(sW8)}, 4")
    A(f"s_cbranch_scc1 KM_SLOW2")
    A("s_barrier")
    A.label("KM_SLOW2")
    for b in range(nqb):
        A(f"v_mov_b32 {v(QB[b]['C'])}, {f2u(-3.0e38):#x}")
    A(f"s_mov_b32 {s(sIt)}, 0")
    A.label("KM_SLOOP")
    A(f"ds_read_b128 {v(Kf[0],4)}, {v(vK)}")
    A(f"ds_read_b128 {v(Vf0[0],4)}, {v(vV)}")
    A(f"ds_read_b128 {v(Vf1[0],4)}, {v(vV)} offset:512")
    A("s_waitcnt lgkmcnt(0)")
    for b in range(nqb):
        q = QB[b]; Sx = q["S"][0]; P = q["P"]; O = q["O"]; m = q["C"]; mn = q["C"] + 1; al = q["C"] + 2
        A(f"{mf} {v(Sx,16)}, {v(Kf[0],4)}, {v(Q[b],4)}, 0")
        A(f"v_max_f32 {v(mn)}, {v(Sx)}, {v(Sx+1)}")
        for i in range(2, 16): A(f"v_max_f32 {v(mn)}, {v(mn)}, {v(Sx+i)}")
        swap_add(A, mn, vT1, "v_max_f32")
        A(f"v_max_f32 {v(mn)}, {v(mn)}, {v(m)}")
        A(f"v_sub_f32 {v(al)}, {v(m)}, {v(mn)}")
        A(f"v_exp_f32 {v(al)}, {v(al)}")
        A(f"v_mov_b32 {v(m)}, {v(mn)}")
        for i in range(16): A(f"v_sub_f32 {v(Sx+i)}, {v(Sx+i)}, {v(mn)}")
        for i in range(16): A(f"v_exp_f32 {v(Sx+i)}, {v(Sx+i)}")
        for i in range(16): A(f"v_mul_f32 {v(O+i)}, {v(al)}, {v(O+i)}")
        for i in range(8): A(f"v_cvt_pk_bf16_f32 {v(P+i)}, {v(Sx+2*i)}, {v(Sx+2*i+1)}")
        A(f"{mf} {v(O,16)}, {v(Vf0[0],4)}, {v(P,4)}, {v(O,16)}")
        A(f"{mf} {v(O,16)}, {v(Vf1[0],4)}, {v(P+4,4)}, {v(O,16)}")
    A(f"v_add_u32 {v(vK)}, 1024, {v(vK)}")
    A(f"v_lshrrev_b32 {v(vT0)}, 2, {v(vVinc)}")
    A(f"v_add_u32 {v(vV)}, {v(vT0)}, {v(vV)}")
    A(f"s_add_u32 {s(sIt)}, {s(sIt)}, 1")
    A(f"s_cmp_lt_u32 {s(sIt)}, {NT}")
    A(f"s_cbranch_scc1 KM_SLOOP")
    A(f"s_mov_b32 {s(sIt)}, -1")
    A.label("KM_FIN")
    if prio: A("s_setprio 0")
    K.stamp()
    if ks == 2:
        vM = [V.alloc(), V.alloc()]
        for b in range(2): A(f"v_sub_f32 {v(vM[b])}, 0, {v(QB[b]['C'])}")
        A(f"s_cmp_lg_u32 {s(sIt)}, -1")
        A(f"s_cbranch_scc1 KM_F1")
        for b in range(2): A(f"v_mov_b32 {v(vM[b])}, {v(QB[b]['C'])}")
        A.label("KM_F1")
        snd = QB[0]["S"][0]; kp = QB[0]["S"][1]
        A(f"s_cmp_eq_u32 {s(sKh)}, 0")
        A(f"s_cbranch_scc1 KM_F2")
        for r in range(9):
            A(f"v_mov_b32 {v(snd+r)}, {v(QB[0]['O']+r)}"); A(f"v_mov_b32 {v(kp+r)}, {v(QB[1]['O']+r)}")
        A(f"v_mov_b32 {v(snd+9)}, {v(vM[0])}"); A(f"v_mov_b32 {v(kp+9)}, {v(vM[1])}")
        A("s_branch KM_F3")
        A.label("KM_F2")
        for r in range(9):
            A(f"v_mov_b32 {v(snd+r)}, {v(QB[1]['O']+r)}"); A(f"v_mov_b32 {v(kp+r)}, {v(QB[0]['O']+r)}")
        A(f"v_mov_b32 {v(snd+9)}, {v(vM[1])}"); A(f"v_mov_b32 {v(kp+9)}, {v(vM[0])}")
        A.label("KM_F3")
        A("s_barrier")
        A(f"s_mul_i32 {s(sT0)}, {s(sW8)}, 2560")
        A(f"v_lshlrev_b32 {v(vT2)}, 2, {v(vLane)}")
        A(f"v_add_u32 {v(vT0)}, {s(sT0)}, {v(vT2)}")
        for r in range(10): A(f"ds_write_b32 {v(vT0)}, {v(snd+r)} offset:{r*256}")
        A("s_waitcnt lgkmcnt(0)")
        A("s_barrier")
        A(f"s_xor_b32 {s(sT0)}, {s(sW8)}, 4")
        A(f"s_mul_i32 {s(sT0)}, {s(sT0)}, 2560")
        A(f"v_add_u32 {v(vT0)}, {s(sT0)}, {v(vT2)}")
        for r in range(10): A(f"ds_read_b32 {v(snd+r)}, {v(vT0)} offset:{r*256}")
        A("s_waitcnt lgkmcnt(0)")
        A(f"v_max_f32 {v(vT0)}, {v(kp+9)}, {v(snd+9)}")
        A(f"v_sub_f32 {v(vT1)}, {v(kp+9)}, {v(vT0)}")
        A(f"v_sub_f32 {v(vT2)}, {v(snd+9)}, {v(vT0)}")
        A(f"v_exp_f32 {v(vT1)}, {v(vT1)}")
        A(f"v_exp_f32 {v(vT2)}, {v(vT2)}")
        for r in range(9): A(f"v_mul_f32 {v(kp+r)}, {v(vT1)}, {v(kp+r)}")
        for r in range(9): A(f"v_fmac_f32 {v(kp+r)}, {v(vT2)}, {v(snd+r)}")
        Of = kp
        A(f"s_add_u32 {s(sQt)}, {s(sQt)}, {s(sKh)}")
    else:
        Of = QB[0]["O"]
    if ZROW: swap_add(A, Of + 8, vT1)
    A(f"v_rcp_f32 {v(vT0)}, {v(Of+8)}")
    for r in range(8): A(f"v_mul_f32 {v(Of+r)}, {v(vT0)}, {v(Of+r)}")
    pk = QB[0]["P"]
    for i in range(4): A(f"v_cvt_pk_bf16_f32 {v(pk+i)}, {v(Of+2*i)}, {v(Of+2*i+1)}")
    A(f"s_lshl_b32 {s(sT0)}, {s(sQt)}, 15")
    A(f"s_lshl_b32 {s(sT1)}, {s(sHead)}, 10")
    A(f"s_add_u32 {s(sT0)}, {s(sT0)}, {s(sT1)}")
    A(f"s_add_u32 {s(sT0)}, {s(sT0)}, {WS_OF}")
    A(f"buffer_store_dwordx4 {v(pk,4)}, {v(vL16)}, {s(sO,4)}, {s(sT0)} offen sc1")
    A("s_waitcnt vmcnt(0)")
    A("s_barrier")
    K.stamp()
    V.release(mkV); S.release(mkS)
    sRt, sCt, sR128, sCt4, sTb, sTr, sTi, sQbS = [S.alloc() for _ in range(8)]
    A(f"s_mov_b32 {s(sQbS)}, {s(sJ2)}")
    A(f"s_mov_b32 {s(sXcd)}, {s(sXc)}")
    A(f"s_and_b32 {s(sJ)}, {s(sTk)}, 31")
    A(f"s_and_b32 {s(sJ3)}, {s(sJ)}, 3")
    A(f"s_lshr_b32 {s(sJ2)}, {s(sJ)}, 2")
    A(f"s_lshl_b32 {s(sRt)}, {s(sXcd)}, 2")
    A(f"s_add_u32 {s(sRt)}, {s(sRt)}, {s(sJ3)}")
    A(f"s_mov_b32 {s(sCt)}, {s(sJ2)}")
    A(f"s_and_b32 {s(sTr)}, {s(sW8)}, 1")
    A(f"s_bfe_u32 {s(sTb)}, {s(sW8)}, 0x10001")
    A(f"s_lshr_b32 {s(sTi)}, {s(sW8)}, 2")
    A(f"s_lshl_b32 {s(sR128)}, {s(sXcd)}, 1")
    A(f"s_and_b32 {s(sT0)}, {s(sJ)}, 1")
    A(f"s_add_u32 {s(sR128)}, {s(sR128)}, {s(sT0)}")
    A(f"s_lshr_b32 {s(sCt4)}, {s(sJ)}, 1")
    vBl = V.alloc(); vWoff = V.alloc(); vW1off = V.alloc()
    tr_pi_base(A, vBl, vLane, vHf, vT0, vT1)
    sB1, sB2 = S.alloc(), S.alloc()
    sRw1 = S.alloc(4); sRw2 = S.alloc(4)
    def dma_w1(p):
        A(f"s_lshl_b32 {s(sT1)}, {s(sW)}, 12")
        for c in range(4):
            for q in range(4):
                A(f"s_add_u32 m0, {s(sT1)}, {W1 + p*65536 + c*16384 + q*1024}")
                A(f"s_add_u32 {s(sT0)}, {s(sB1)}, {(128*c + 8*q)*3584 + p*128}")
                A(f"buffer_load_dwordx4 {v(vW1off)}, {s(sRw1,4)}, {s(sT0)} offen lds")
    def dma_w2(c):
        A(f"s_lshl_b32 {s(sT1)}, {s(sW)}, 15")
        for q in range(8):
            A(f"s_add_u32 m0, {s(sT1)}, {W2 + (c&3)*8192 + q*1024}")
            A(f"s_add_u32 {s(sT0)}, {s(sB2)}, {(64*c + 8*q)*1024}")
            A(f"buffer_load_dwordx4 {v(vWoff)}, {s(sRw2,4)}, {s(sT0)} offen lds")
    def dma_w1_all8(p):
        A(f"s_lshl_b32 {s(sT1)}, {s(sW8)}, 13")
        A(f"s_mul_i32 {s(sB)}, {s(sW8)}, {64*3584}")
        A(f"s_lshl_b32 {s(sT0)}, {s(sCt4)}, 8")
        A(f"s_add_u32 {s(sB)}, {s(sB)}, {s(sT0)}")
        for q in range(8):
            A(f"s_add_u32 m0, {s(sT1)}, {W1 + p*65536 + q*1024}")
            A(f"s_add_u32 {s(sT0)}, {s(sB)}, {8*q*3584 + p*128}")
            A(f"buffer_load_dwordx4 {v(vW1off)}, {s(sRw1,4)}, {s(sT0)} offen lds")
    def dma_w2_lo8():
        A(f"s_lshr_b32 {s(sT1)}, {s(sW8)}, 2")
        A(f"s_mul_i32 {s(sB)}, {s(sT1)}, {448*1024}")
        A(f"s_lshl_b32 {s(sT0)}, {s(sCt)}, 7")
        A(f"s_add_u32 {s(sB)}, {s(sB)}, {s(sT0)}")
        A(f"s_lshl_b32 {s(sT0)}, {s(sW)}, 16")
        A(f"s_add_u32 {s(sB)}, {s(sB)}, {s(sT0)}")
        A(f"s_lshl_b32 {s(sT1)}, {s(sW8)}, 13")
        for q in range(8):
            A(f"s_add_u32 m0, {s(sT1)}, {W2 + q*1024}")
            A(f"s_add_u32 {s(sT0)}, {s(sB)}, {8*q*1024}")
            A(f"buffer_load_dwordx4 {v(vWoff)}, {s(sRw2,4)}, {s(sT0)} offen lds")
    def dma_w2_hi_upper():
        A(f"s_lshr_b32 {s(sT1)}, {s(sW)}, 1")
        A(f"s_add_u32 {s(sT1)}, {s(sT1)}, 2")
        A(f"s_mul_i32 {s(sB)}, {s(sT1)}, {448*1024}")
        A(f"s_lshl_b32 {s(sT0)}, {s(sCt)}, 7")
        A(f"s_add_u32 {s(sB)}, {s(sB)}, {s(sT0)}")
        A(f"s_and_b32 {s(sT0)}, {s(sW)}, 1")
        A(f"s_lshl_b32 {s(sT0)}, {s(sT0)}, 17")
        A(f"s_add_u32 {s(sB)}, {s(sB)}, {s(sT0)}")
        A(f"s_lshl_b32 {s(sT1)}, {s(sW)}, 14")
        for q in range(16):
            A(f"s_add_u32 m0, {s(sT1)}, {W2 + 65536 + q*1024}")
            A(f"s_add_u32 {s(sT0)}, {s(sB)}, {8*q*1024}")
            A(f"buffer_load_dwordx4 {v(vWoff)}, {s(sRw2,4)}, {s(sT0)} offen lds")
    sW2b, sW2l = S.alloc(), S.alloc()
    def w2_all16_setup():
        A(f"s_lshr_b32 {s(sT1)}, {s(sW8)}, 1")
        A(f"s_mul_i32 {s(sW2b)}, {s(sT1)}, {448*1024}")
        A(f"s_lshl_b32 {s(sT0)}, {s(sCt)}, 7")
        A(f"s_add_u32 {s(sW2b)}, {s(sW2b)}, {s(sT0)}")
        A(f"s_and_b32 {s(sT0)}, {s(sW8)}, 1")
        A(f"s_lshl_b32 {s(sT0)}, {s(sT0)}, 17")
        A(f"s_add_u32 {s(sW2b)}, {s(sW2b)}, {s(sT0)}")
        A(f"s_lshl_b32 {s(sW2l)}, {s(sW8)}, 14")
    def w2_piece(pc):
        A(f"s_add_u32 m0, {s(sW2l)}, {W2 + pc*1024}")
        A(f"s_add_u32 {s(sW2b)}, {s(sW2b)}, {8192 if pc else 0}")
        A(f"buffer_load_dwordx4 {v(vWoff)}, {s(sRw2,4)}, {s(sW2b)} offen lds")
    def if_upper(tag, body):
        A(f"s_cmp_lt_u32 {s(sW8)}, 4")
        A(f"s_cbranch_scc1 KM_NU_{tag}")
        body()
        A.label(f"KM_NU_{tag}")
    def dma_wo():
        mk = V.mark()
        vXoff = V.alloc()
        A(f"s_and_b32 {s(sT0)}, {s(sW)}, 1")
        A(f"s_lshl_b32 {s(sT0)}, {s(sT0)}, 2")
        A(f"v_lshrrev_b32 {v(vT0)}, 4, {v(vLane)}")
        A(f"v_or_b32 {v(vT0)}, {s(sT0)}, {v(vT0)}")
        A(f"v_and_b32 {v(vT1)}, 7, {v(vLane)}")
        A(f"v_xor_b32 {v(vT0)}, {v(vT0)}, {v(vT1)}")
        A(f"v_lshlrev_b32 {v(vT0)}, 4, {v(vT0)}")
        A(f"v_lshrrev_b32 {v(vT1)}, 3, {v(vLane)}")
        A(f"v_lshlrev_b32 {v(vT1)}, 10, {v(vT1)}")
        A(f"v_add_u32 {v(vXoff)}, {v(vT0)}, {v(vT1)}")
        srd(A, sRa, sPwo, 512 * 512 * 2)
        srd(A, sRb, sPx, 2048 * 512 * 2)
        A(f"s_lshl_b32 {s(sB)}, {s(sW)}, 17")
        A(f"s_lshl_b32 {s(sT0)}, {s(sCt)}, 7")
        A(f"s_add_u32 {s(sB)}, {s(sB)}, {s(sT0)}")
        A(f"s_lshl_b32 {s(sT1)}, {s(sW)}, 14")
        for g in range(16):
            A(f"s_add_u32 m0, {s(sT1)}, {WO + g*1024}")
            A(f"s_add_u32 {s(sT0)}, {s(sB)}, {g*8192}")
            A(f"buffer_load_dwordx4 {v(vWoff)}, {s(sRa,4)}, {s(sT0)} offen lds")
        A(f"s_lshl_b32 {s(sB)}, {s(sRt)}, 16")
        A(f"s_lshl_b32 {s(sT0)}, {s(sCt)}, 7")
        A(f"s_add_u32 {s(sB)}, {s(sB)}, {s(sT0)}")
        A(f"s_lshl_b32 {s(sT0)}, {s(sW)}, 13")
        A(f"s_add_u32 {s(sB)}, {s(sB)}, {s(sT0)}")
        A(f"s_lshl_b32 {s(sT1)}, {s(sW)}, 10")
        for n in range(2):
            A(f"s_add_u32 m0, {s(sT1)}, {XT + n*4096}")
            A(f"s_add_u32 {s(sT0)}, {s(sB)}, {n*32768}")
            A(f"buffer_load_dwordx4 {v(vXoff)}, {s(sRb,4)}, {s(sT0)} offen lds")
        A(f"s_mul_i32 {s(sB1)}, {s(sW)}, {32*3584}")
        A(f"s_lshl_b32 {s(sT0)}, {s(sCt4)}, 8")
        A(f"s_add_u32 {s(sB1)}, {s(sB1)}, {s(sT0)}")
        A(f"s_mul_i32 {s(sB2)}, {s(sW)}, {448*1024}")
        A(f"s_lshl_b32 {s(sT0)}, {s(sCt)}, 7")
        A(f"s_add_u32 {s(sB2)}, {s(sB2)}, {s(sT0)}")
        A("s_waitcnt vmcnt(0)")
        V.release(mk)
    w_voff(A, vWoff, vLane, 1024, vT0, vT1)
    w_voff(A, vW1off, vLane, 3584, vT0, vT1)
    srd(A, sRw1, sP1, 512 * 1792 * 2)
    srd(A, sRw2, sP2, 1792 * 512 * 2)
    if_upper("wo", dma_wo)
    def w0_sync2():
        cnt_off(sCn, 0, lambda d: A(f"s_mov_b32 {s(d)}, {s(sQbS)}"))
        signal(sCn)
        cnt_off(sCn, 0, lambda d: A(f"s_mov_b32 {s(d)}, {s(sXcd)}"))
        poll(sCn, 32, "2")
    hpk4 = hpk
    mkC = V.mark()
    Af = [V.alloc(4) for _ in range(8)]
    acc = [V.alloc(16) for _ in range(2)]
    Bf = [[V.alloc(4) for _ in range(2)] for _ in range(2)]
    vB = V.alloc(); xr = V.alloc(4)
    sKq = S.alloc()
    A(f"s_lshr_b32 {s(sKq)}, {s(sW8)}, 1")
    A(f"s_lshl_b32 {s(sT0)}, {s(sKq)}, 14")
    A(f"v_add_u32 {v(vB)}, {s(sT0)}, {v(vBl)}")
    A(f"s_lshl_b32 {s(sB)}, {s(sRt)}, 16")
    A(f"s_lshl_b32 {s(sT0)}, {s(sTr)}, 15")
    A(f"s_add_u32 {s(sB)}, {s(sB)}, {s(sT0)}")
    A(f"s_lshl_b32 {s(sT0)}, {s(sKq)}, 13")
    A(f"s_add_u32 {s(sB)}, {s(sB)}, {s(sT0)}")
    A(f"s_add_u32 {s(sB)}, {s(sB)}, {WS_OF}")
    sB4 = S.alloc()
    A(f"s_add_u32 {s(sB4)}, {s(sB)}, 4096")
    only_wave0("2", w0_sync2)
    A("s_barrier")
    K.stamp()
    for i in range(8):
        A(f"buffer_load_dwordx4 {v(Af[i],4)}, {v(vL16)}, {s(sO,4)}, {s(sB if i < 4 else sB4)} offen offset:{(i&3)*1024} sc1")
    def rd3(i):
        for b in range(2):
            A(f"ds_read_b64_tr_b16 {v(Bf[i&1][b],2)}, {v(vB)} offset:{WO + i*2048 + b*512}")
            A(f"ds_read_b64_tr_b16 {v(Bf[i&1][b]+2,2)}, {v(vB)} offset:{WO + i*2048 + b*512 + 1024}")
    rd3(0)
    A(f"v_lshrrev_b32 {v(vT2)}, 1, {v(vTok)}")
    A(f"v_and_b32 {v(vT2)}, 7, {v(vT2)}")
    A(f"s_lshl_b32 {s(sT0)}, {s(sTr)}, 12")
    A(f"s_add_u32 {s(sT0)}, {s(sT0)}, {XT}")
    A(f"v_lshlrev_b32 {v(vT1)}, 7, {v(vTok)}")
    A(f"v_lshl_add_u32 {v(vT1)}, {v(vHf)}, 3, {v(vT1)}")
    A(f"v_add_u32 {v(vT1)}, {s(sT0)}, {v(vT1)}")
    A(f"s_lshl_b32 {s(sT1)}, {s(sTb)}, 2")
    A(f"s_lshl_b32 {s(sT0)}, {s(sTi)}, 1")
    A(f"s_add_u32 {s(sT1)}, {s(sT1)}, {s(sT0)}")
    for a_ in range(2):
        A(f"s_add_u32 {s(sT0)}, {s(sT1)}, {a_}")
        A(f"v_xor_b32 {v(vT0)}, {s(sT0)}, {v(vT2)}")
        A(f"v_lshl_add_u32 {v(vT0)}, {v(vT0)}, 4, {v(vT1)}")
        A(f"ds_read_b64 {v(xr+2*a_,2)}, {v(vT0)}")
    for i in range(8):
        if i + 1 < 8:
            rd3(i + 1)
            A(f"s_waitcnt lgkmcnt(4)")
        else:
            A(f"s_waitcnt lgkmcnt(0)")
        A(f"s_waitcnt vmcnt({7-i})")
        for b in range(2):
            A(f"v_mfma_f32_32x32x16_bf16 {v(acc[b],16)}, {v(Bf[i&1][b],4)}, {v(Af[i],4)}, {'0' if i == 0 else v(acc[b],16)}")
    A(f"s_lshl_b32 {s(sT0)}, {s(sTr)}, 14")
    A(f"s_lshl_b32 {s(sT1)}, {s(sKq)}, 12")
    A(f"s_add_u32 {s(sT0)}, {s(sT0)}, {s(sT1)}")
    A(f"s_add_u32 {s(sT0)}, {s(sT0)}, {RED}")
    A(f"v_add_u32 {v(vT0)}, {s(sT0)}, {v(vL16)}")
    for b in range(2):
        for q in range(4):
            A(f"ds_write_b128 {v(vT0)}, {v(acc[b]+4*q,4)} offset:{b*32768 + q*1024}")
    A("s_waitcnt lgkmcnt(0)")
    A("s_barrier")
    K.stamp()
    def own_reduce(REDB, dst):
        A(f"s_lshl_b32 {s(sT0)}, {s(sW)}, 14")
        A(f"s_lshl_b32 {s(sT1)}, {s(sTi)}, 11")
        A(f"s_add_u32 {s(sT0)}, {s(sT0)}, {s(sT1)}")
        A(f"s_add_u32 {s(sT0)}, {s(sT0)}, {REDB}")
        A(f"v_add_u32 {v(vT0)}, {s(sT0)}, {v(vL16)}")
        for p in range(4):
            for q in range(2):
                A(f"ds_read_b128 {v(dst+8*p+4*q,4)}, {v(vT0)} offset:{p*4096 + q*1024}")
        A("s_waitcnt lgkmcnt(4)")
        for r in range(8): A(f"v_add_f32 {v(dst+r)}, {v(dst+r)}, {v(dst+8+r)}")
        A("s_waitcnt lgkmcnt(0)")
        for r in range(8): A(f"v_add_f32 {v(dst+16+r)}, {v(dst+16+r)}, {v(dst+24+r)}")
        for r in range(8): A(f"v_add_f32 {v(dst+r)}, {v(dst+r)}, {v(dst+16+r)}")
    def w1p0():
        A(f"s_cmp_ge_u32 {s(sJ)}, 28")
        A(f"s_cbranch_scc1 KM_NW1A")
        dma_w1(0)
        A.label("KM_NW1A")
    out = Af[0]
    own_reduce(RED, out)
    un = acc[0]
    for i in range(4):
        A(f"v_lshlrev_b32 {v(un+2*i)}, 16, {v(xr+i)}")
        A(f"v_and_b32 {v(un+2*i+1)}, 0xffff0000, {v(xr+i)}")
    for r in range(8): A(f"v_add_f32 {v(out+r)}, {v(out+r)}, {v(un+r)}")
    for i in range(4): A(f"v_cvt_pk_bf16_f32 {v(hpk4+i)}, {v(out+2*i)}, {v(out+2*i+1)}")
    sR32o, sKs = S.alloc(), S.alloc()
    A(f"s_lshl_b32 {s(sR32o)}, {s(sRt)}, 1")
    A(f"s_add_u32 {s(sR32o)}, {s(sR32o)}, {s(sTr)}")
    A(f"s_lshl_b32 {s(sKs)}, {s(sCt)}, 2")
    A(f"s_lshl_b32 {s(sT0)}, {s(sTb)}, 1")
    A(f"s_add_u32 {s(sKs)}, {s(sKs)}, {s(sT0)}")
    A(f"s_add_u32 {s(sKs)}, {s(sKs)}, {s(sTi)}")
    A(f"s_lshl_b32 {s(sB)}, {s(sR32o)}, 15")
    A(f"s_lshl_b32 {s(sT0)}, {s(sKs)}, 10")
    A(f"s_add_u32 {s(sB)}, {s(sB)}, {s(sT0)}")
    A(f"s_add_u32 {s(sB)}, {s(sB)}, {WS_HF}")
    A(f"buffer_store_dwordx4 {v(hpk4,4)}, {v(vL16)}, {s(sO,4)}, {s(sB)} offen" + LSC)
    for i in range(4):
        A(f"v_lshlrev_b32 {v(un+2*i)}, 16, {v(hpk4+i)}")
        A(f"v_and_b32 {v(un+2*i+1)}, 0xffff0000, {v(hpk4+i)}")
    st = acc[1]
    A(f"v_add_f32 {v(st)}, {v(un)}, {v(un+1)}")
    A(f"v_mul_f32 {v(st+1)}, {v(un)}, {v(un)}")
    A(f"v_fmac_f32 {v(st+1)}, {v(un+1)}, {v(un+1)}")
    for r in range(2, 8):
        A(f"v_add_f32 {v(st)}, {v(st)}, {v(un+r)}")
        A(f"v_fmac_f32 {v(st+1)}, {v(un+r)}, {v(un+r)}")
    swap_add(A, st, vT1)
    swap_add(A, st + 1, vT2)
    A(f"s_lshl_b32 {s(sT0)}, {s(sW8)}, 8")
    A(f"s_add_u32 {s(sT0)}, {s(sT0)}, {STP}")
    A(f"v_lshl_add_u32 {v(vT0)}, {v(vTok)}, 3, {s(sT0)}")
    A(f"ds_write_b64 {v(vT0)}, {v(st,2)}")
    A("s_waitcnt lgkmcnt(0)")
    A("s_barrier")
    A(f"s_cmp_ge_u32 {s(sW8)}, 2")
    A(f"s_cbranch_scc1 KM_NHS")
    for p in range(4): A(f"ds_read_b64 {v(st+2*p,2)}, {v(vT0)} offset:{p*512}")
    A("s_waitcnt lgkmcnt(0)")
    for c in range(2):
        A(f"v_add_f32 {v(st+c)}, {v(st+c)}, {v(st+2+c)}")
        A(f"v_add_f32 {v(st+4+c)}, {v(st+4+c)}, {v(st+6+c)}")
    for c in range(2): A(f"v_add_f32 {v(st+c)}, {v(st+c)}, {v(st+4+c)}")
    A(f"s_lshl_b32 {s(sT0)}, {s(sR32o)}, 11")
    A(f"s_lshl_b32 {s(sT1)}, {s(sCt)}, 8")
    A(f"s_add_u32 {s(sT0)}, {s(sT0)}, {s(sT1)}")
    A(f"s_add_u32 {s(sT0)}, {s(sT0)}, {WS_HS}")
    A(f"v_lshlrev_b32 {v(vT0)}, 3, {v(vTok)}")
    A("s_mov_b32 exec_hi, 0")
    A(f"buffer_store_dwordx2 {v(st,2)}, {v(vT0)}, {s(sO,4)}, {s(sT0)} offen" + LSC)
    A("s_mov_b64 exec, -1")
    A.label("KM_NHS")
    A(f"s_cmp_ge_u32 {s(sJ)}, 28")
    A(f"s_cbranch_scc1 KM_NW1A")
    dma_w1_all8(0)
    A("s_waitcnt vmcnt(8) lgkmcnt(0)")
    A("s_branch KM_NW1B")
    A.label("KM_NW1A")
    dma_w2_lo8()
    A("s_waitcnt vmcnt(8) lgkmcnt(0)")
    A.label("KM_NW1B")
    A("s_barrier")
    K.stamp()
    V.release(mkC)
    def sig3():
        def idx(d):
            A(f"s_lshl_b32 {s(d)}, {s(sXcd)}, 1")
            A(f"s_lshr_b32 {s(sT0)}, {s(sJ3)}, 1")
            A(f"s_add_u32 {s(d)}, {s(d)}, {s(sT0)}")
        cnt_off(sCn, 2048, idx)
        signal(sCn, LOCAL)
    only_wave0("3s", sig3)
    A(f"s_cmp_ge_u32 {s(sJ)}, 28")
    A(f"s_cbranch_scc1 KM_NOP4")
    if_upper("w1", lambda: dma_w1(1))
    A("s_waitcnt vmcnt(0)") if False else None
    def w0_sync3():
        cnt_off(sCn, 2048, lambda d: A(f"s_mov_b32 {s(d)}, {s(sR128)}"))
        poll(sCn, 16, "3")
    mk4 = V.mark()
    Af = [V.alloc(4) for _ in range(16)]
    acc = [V.alloc(16) for _ in range(4)]
    Bf = [[V.alloc(4) for _ in range(4)] for _ in range(2)]
    csa = [V.alloc(4)]; msk = V.alloc(4)
    vB = [V.alloc() for _ in range(4)]; vB2 = [V.alloc() for _ in range(4)]
    hs = V.alloc(8); vb1 = V.alloc()
    sR32 = S.alloc(); sQ = [S.alloc() for _ in range(4)]
    srd(A, sRa, sP1 + 2, 1792 * 2)
    A(f"s_lshl_b32 {s(sR32)}, {s(sR128)}, 2")
    A(f"s_add_u32 {s(sR32)}, {s(sR32)}, {s(sW)}")
    A(f"v_lshlrev_b32 {v(vT1)}, 2, {v(vLane)}")
    A(f"s_lshl_b32 {s(sT1)}, {s(sCt4)}, 8")
    A(f"buffer_load_dword {v(vb1)}, {v(vT1)}, {s(sRa,4)}, {s(sT1)} offen")
    for q in range(4):
        A(f"s_xor_b32 {s(sQ[q])}, {s(sW)}, {q}")
        A(f"s_lshl_b32 {s(sQ[q])}, {s(sQ[q])}, 10")
    A(f"s_lshl_b32 {s(sT1)}, {s(sTi)}, 15")
    for q in range(4):
        A(f"s_lshl_b32 {s(sT0)}, {s(sQ[q])}, 1")
        A(f"s_add_u32 {s(sT0)}, {s(sT0)}, {s(sT1)}")
        A(f"v_add_u32 {v(vB[q])}, {s(sT0)}, {v(vBl)}")
        A(f"v_add_u32 {v(vB2[q])}, 65536, {v(vB[q])}")
    A(f"s_cmp_lt_u32 {s(sW8)}, 2")
    A(f"s_cbranch_scc1 KM_NCS")
    A(f"s_cmp_ge_u32 {s(sW8)}, 4")
    A(f"s_cbranch_scc1 KM_NCS")
    A(f"s_and_b32 {s(sT0)}, {s(sW8)}, 1")
    A(f"s_lshl_b32 {s(sT0)}, {s(sT0)}, 8")
    A(f"v_lshlrev_b32 {v(vT1)}, 2, {v(vLane)}")
    A(f"v_add_u32 {v(vT1)}, {s(sT0)}, {v(vT1)}")
    A(f"s_lshl_b32 {s(sT0)}, {s(sCt4)}, 9")
    A(f"s_add_u32 {s(sT0)}, {s(sT0)}, {WS_CSG}")
    for kc in range(8):
        A(f"buffer_load_dword {v(hs+kc)}, {v(vT1)}, {s(sO,4)}, {s(sT0)} offen")
        if kc < 7: A(f"s_add_u32 {s(sT0)}, {s(sT0)}, 7168")
    A("s_waitcnt vmcnt(0)")
    for st_ in (4, 2, 1):
        for i in range(st_): A(f"v_add_f32 {v(hs+i)}, {v(hs+i)}, {v(hs+i+st_)}")
    A(f"v_add_u32 {v(vT1)}, {CS}, {v(vT1)}")
    A(f"ds_write_b32 {v(vT1)}, {v(hs)}")
    A.label("KM_NCS")
    A("s_waitcnt vmcnt(0)")
    A(f"v_lshlrev_b32 {v(hs+2)}, 16, {v(vb1)}")
    A(f"v_and_b32 {v(hs+3)}, 0xffff0000, {v(vb1)}")
    A(f"v_lshlrev_b32 {v(vT0)}, 3, {v(vLane)}")
    A(f"v_add_u32 {v(vT0)}, {BI}, {v(vT0)}")
    A(f"ds_write_b64 {v(vT0)}, {v(hs+2,2)}")
    A(f"s_lshl_b32 {s(sB)}, {s(sR32)}, 15")
    A(f"s_lshl_b32 {s(sT0)}, {s(sTi)}, 14")
    A(f"s_add_u32 {s(sB)}, {s(sB)}, {s(sT0)}")
    A(f"s_add_u32 {s(sB)}, {s(sB)}, {WS_HF}")
    sHs = S.alloc()
    A(f"s_lshl_b32 {s(sHs)}, {s(sR32)}, 11")
    A(f"s_add_u32 {s(sHs)}, {s(sHs)}, {WS_HS}")
    A(f"v_lshlrev_b32 {v(vT2)}, 3, {v(vTok)}")
    A(f"v_lshl_add_u32 {v(vT2)}, {v(vHf)}, 10, {v(vT2)}")
    for q in range(4): A(f"s_add_u32 {s(sQ[q])}, {s(sQ[q])}, {s(sB)}")
    A("s_waitcnt vmcnt(0) lgkmcnt(0)")
    only_wave0("3", w0_sync3)
    K.stamp(1)
    A("s_barrier")
    K.stamp()
    def lda4(g):
        for q in range(4):
            if g: A(f"s_add_u32 {s(sQ[q])}, {s(sQ[q])}, 4096")
            A(f"buffer_load_dwordx4 {v(Af[4*g+q],4)}, {v(vL16)}, {s(sO,4)}, {s(sQ[q])} offen" + LLD)
    lda4(0)
    for i in range(4):
        A(f"buffer_load_dwordx2 {v(hs+2*i,2)}, {v(vT2)}, {s(sO,4)}, {s(sHs)} offen offset:{i*256}" + LLD)
    lda4(1)
    def rd4(n):
        for t in range(4):
            p, b = t >> 1, t & 1
            o = (n >> 2) * 8192 + b * 512
            base = (vB if p == 0 else vB2)[n & 3]
            A(f"ds_read_b64_tr_b16 {v(Bf[n&1][t],2)}, {v(base)} offset:{o}")
            A(f"ds_read_b64_tr_b16 {v(Bf[n&1][t]+2,2)}, {v(base)} offset:{o+1024}")
    rd4(0)
    A(f"v_lshlrev_b32 {v(acc[0])}, 16, {v(vb1)}") if False else None
    for n in range(16):
        if n + 1 < 16:
            rd4(n + 1)
            A("s_waitcnt lgkmcnt(8)")
        else:
            A("s_waitcnt lgkmcnt(0)")
        if n % 4 == 0: A(f"s_waitcnt vmcnt({ {0: 8, 4: 8, 8: 4, 12: 0}[n] })")
        for t in range(4):
            A(f"v_mfma_f32_32x32x16_bf16 {v(acc[t],16)}, {v(Bf[n&1][t],4)}, {v(Af[n],4)}, {'0' if n == 0 else v(acc[t],16)}")
        if n in (0, 1): lda4(n + 2)
    K.stamp()
    for st_ in (2, 1):
        for i in range(st_):
            A(f"v_add_f32 {v(hs+2*i)}, {v(hs+2*i)}, {v(hs+2*(i+st_))}")
            A(f"v_add_f32 {v(hs+2*i+1)}, {v(hs+2*i+1)}, {v(hs+2*(i+st_)+1)}")
    swap_add(A, hs, vT1)
    swap_add(A, hs + 1, vT2)
    A("s_waitcnt lgkmcnt(0)")
    A("s_barrier")
    A(f"s_lshl_b32 {s(sT0)}, {s(sW8)}, 13")
    A(f"s_add_u32 {s(sT0)}, {s(sT0)}, 65536")
    A(f"v_add_u32 {v(vT0)}, {s(sT0)}, {v(vL16)}")
    A(f"s_cmp_eq_u32 {s(sTi)}, 0")
    A(f"s_cbranch_scc1 KM_E1")
    for t in range(2):
        for q in range(4): A(f"ds_write_b128 {v(vT0)}, {v(acc[t]+4*q,4)} offset:{t*4096 + q*1024}")
    for r in range(32): A(f"v_mov_b32 {v(acc[0]+r)}, {v(acc[2]+r)}")
    A("s_branch KM_E2")
    A.label("KM_E1")
    for t in range(2):
        for q in range(4): A(f"ds_write_b128 {v(vT0)}, {v(acc[2+t]+4*q,4)} offset:{t*4096 + q*1024}")
    A.label("KM_E2")
    A("s_waitcnt lgkmcnt(0)")
    A("s_barrier")
    K.stamp()
    A(f"s_xor_b32 {s(sT0)}, {s(sW8)}, 4")
    A(f"s_lshl_b32 {s(sT0)}, {s(sT0)}, 13")
    A(f"s_add_u32 {s(sT0)}, {s(sT0)}, 65536")
    A(f"v_add_u32 {v(vT0)}, {s(sT0)}, {v(vL16)}")
    for t in range(2):
        for q in range(4): A(f"ds_read_b128 {v(acc[2+t]+4*q,4)}, {v(vT0)} offset:{t*4096 + q*1024}")
    def R(i): return Af[0] + 16 * i
    A(f"s_lshl_b32 {s(sT0)}, {s(sTi)}, 8")
    A(f"s_add_u32 {s(sT0)}, {s(sT0)}, {CS}")
    A(f"v_lshl_add_u32 {v(vT2)}, {v(vHf)}, 4, {s(sT0)}")
    for t in range(2):
        for a_ in range(4): A(f"ds_read_b128 {v(R(t)+4*a_,4)}, {v(vT2)} offset:{t*128 + a_*32}")
    A("s_waitcnt lgkmcnt(8)")
    vMean, vRs, vMr = csa[0], csa[0] + 1, csa[0] + 2
    vC1, vC2 = msk, msk + 1
    c1 = -2.0 * 0.7978845608028654 * LOG2E
    c2 = c1 * 0.044715
    A(f"v_mul_f32 {v(vMean)}, {f2u(1/512.):#x}, {v(hs)}")
    A(f"v_mul_f32 {v(vT1)}, {v(vMean)}, {v(vMean)}")
    A(f"v_mov_b32 {v(vT0)}, {f2u(1/512.):#x}")
    A(f"v_fma_f32 {v(vT1)}, {v(hs+1)}, {v(vT0)}, -{v(vT1)}")
    A(f"v_max_f32 {v(vT1)}, 0, {v(vT1)}")
    A(f"v_add_f32 {v(hs+2)}, {f2u(1e-5):#x}, {v(vT1)}")
    A(f"v_rcp_f32 {v(vT0)}, {v(hs+2)}")
    A(f"v_rsq_f32 {v(vRs)}, {v(hs+2)}")
    A(f"v_mul_f32 {v(vT1)}, {v(vT1)}, {v(vT0)}")
    A(f"v_add_f32 {v(vT1)}, {f2u(1e-5):#x}, {v(vT1)}")
    A(f"v_rsq_f32 {v(vT1)}, {v(vT1)}")
    A(f"v_mov_b32 {v(vC1)}, {f2u(c1):#x}")
    A(f"v_mov_b32 {v(vC2)}, {f2u(c2):#x}")
    A(f"v_mul_f32 {v(vRs)}, {v(vRs)}, {v(vT1)}")
    A(f"v_mul_f32 {v(vMr)}, {v(vMean)}, {v(vRs)}")
    for t in range(2):
        for a_ in range(4): A(f"ds_read_b128 {v(R(2+t)+4*a_,4)}, {v(vT2)} offset:{512 + t*128 + a_*32}")
    for r in range(32): A(f"v_add_f32 {v(acc[0]+r)}, {v(acc[0]+r)}, {v(acc[2]+r)}")
    A(f"s_mul_i32 {s(sB)}, {s(sR32)}, {112*1024}")
    A(f"s_lshl_b32 {s(sT0)}, {s(sCt4)}, 13")
    A(f"s_add_u32 {s(sB)}, {s(sB)}, {s(sT0)}")
    A(f"s_lshl_b32 {s(sT0)}, {s(sTi)}, 12")
    A(f"s_add_u32 {s(sB)}, {s(sB)}, {s(sT0)}")
    A(f"s_add_u32 {s(sB)}, {s(sB)}, {WS_MF}")
    A("s_waitcnt lgkmcnt(0)")
    pcs = []
    def dm(): pass
    for t in range(2):
        x = acc[t]; T = R(2 + t); Z = acc[2 + t]
        for r in range(16): A(f"v_fma_f32 {v(T+r)}, -{v(vMr)}, {v(R(t)+r)}, {v(T+r)}")
        dm()
        for r in range(16): A(f"v_fma_f32 {v(x+r)}, {v(x+r)}, {v(vRs)}, {v(T+r)}")
        dm()
        for r in range(16): A(f"v_mul_f32 {v(Z+r)}, {v(x+r)}, {v(x+r)}")
        dm()
        for r in range(16): A(f"v_fma_f32 {v(Z+r)}, {v(Z+r)}, {v(vC2)}, {v(vC1)}")
        dm()
        for r in range(16): A(f"v_mul_f32 {v(Z+r)}, {v(Z+r)}, {v(x+r)}")
        dm()
        for r in range(16): A(f"v_exp_f32 {v(Z+r)}, {v(Z+r)}")
        dm()
        for r in range(16): A(f"v_add_f32 {v(Z+r)}, 1.0, {v(Z+r)}")
        dm()
        for r in range(16): A(f"v_rcp_f32 {v(Z+r)}, {v(Z+r)}")
        dm()
        for r in range(16): A(f"v_mul_f32 {v(x+r)}, {v(x+r)}, {v(Z+r)}")
        pk = R(t)
        for i in range(8): A(f"v_cvt_pk_bf16_f32 {v(pk+i)}, {v(x+2*i)}, {v(x+2*i+1)}")
        A(f"buffer_store_dwordx4 {v(pk,4)}, {v(vL16)}, {s(sO,4)}, {s(sB)} offen offset:{t*2048}" + LSC)
        A(f"buffer_store_dwordx4 {v(pk+4,4)}, {v(vL16)}, {s(sO,4)}, {s(sB)} offen offset:{t*2048+1024}" + LSC)
    assert not pcs
    dma_w2_lo8()
    A("s_waitcnt vmcnt(8)")
    A("s_barrier")
    K.stamp()
    def sig4():
        cnt_off(sCn, 6144, lambda d: A(f"s_mov_b32 {s(d)}, {s(sR128)}"))
        signal(sCn, LOCAL)
    only_wave0("4s", sig4)
    V.release(mk4)
    A.label("KM_NOP4")
    mkPR = V.mark()
    PR = V.alloc(96)
    V.release(mkPR)
    if_upper("w2", dma_w2_hi_upper)
    def w0_sync4():
        def idx(d):
            A(f"s_lshl_b32 {s(d)}, {s(sXcd)}, 1")
            A(f"s_lshr_b32 {s(sT0)}, {s(sJ3)}, 1")
            A(f"s_add_u32 {s(d)}, {s(d)}, {s(sT0)}")
        cnt_off(sCn, 6144, idx)
        poll(sCn, 14, "4")
    NW = 12
    Af = [[V.alloc(4) for _ in range(2)] for _ in range(NW)]
    acc = [V.alloc(16) for _ in range(4)]
    Bf = [[V.alloc(4) for _ in range(2)] for _ in range(2)]
    vB = V.alloc(); b2r = V.alloc(4)
    sA0, sA1 = S.alloc(), S.alloc()
    srd(A, sRa, sP2 + 2, 512 * 2)
    srd(A, sRb, sPo, 2048 * 512 * 2)
    A(f"s_lshl_b32 {s(sT0)}, {s(sCt)}, 7")
    A(f"s_lshl_b32 {s(sT1)}, {s(sTb)}, 6")
    A(f"s_add_u32 {s(sT0)}, {s(sT0)}, {s(sT1)}")
    A(f"s_lshl_b32 {s(sT1)}, {s(sTi)}, 5")
    A(f"s_add_u32 {s(sT0)}, {s(sT0)}, {s(sT1)}")
    A(f"v_lshlrev_b32 {v(vT0)}, 3, {v(vHf)}")
    for a_ in range(2):
        A(f"buffer_load_dwordx2 {v(b2r+2*a_,2)}, {v(vT0)}, {s(sRa,4)}, {s(sT0)} offen offset:{a_*16}")
    A(f"s_cmp_lt_u32 {s(sW8)}, 4")
    A(f"s_cbranch_scc1 KM_C5")
    A("s_waitcnt vmcnt(0)")
    A("s_barrier")
    for y in range(1, 7):
        if y >= 4: A(f"s_waitcnt vmcnt({8*(6-y)})")
        A("s_barrier")
        if y + 3 < 7: dma_w2(y + 3)
    A("s_barrier")
    A("s_branch KM_Z")
    A.label("KM_C5")
    A(f"s_mul_i32 {s(sA0)}, {s(sRt)}, {2*112*1024}")
    A(f"s_mul_i32 {s(sT0)}, {s(sW)}, {28*1024}")
    A(f"s_add_u32 {s(sA0)}, {s(sA0)}, {s(sT0)}")
    A(f"s_add_u32 {s(sA0)}, {s(sA0)}, {WS_MF}")
    A(f"s_add_u32 {s(sA1)}, {s(sA0)}, {112*1024}")
    A(f"s_lshl_b32 {s(sT0)}, {s(sW)}, 15")
    A(f"v_add_u32 {v(vB)}, {s(sT0)}, {v(vBl)}")
    def lda(n):
        for r, sa in ((0, sA0), (1, sA1)):
            if n % 4 == 0 and n: A(f"s_add_u32 {s(sa)}, {s(sa)}, 4096")
            A(f"buffer_load_dwordx4 {v(Af[n % NW][r],4)}, {v(vL16)}, {s(sO,4)}, {s(sa)} offen offset:{(n&3)*1024}" + LLD)
    def rd5(n):
        c, i = n >> 2, n & 3
        for b in range(2):
            o = W2 + (c & 3) * 8192 + i * 2048 + b * 512
            A(f"ds_read_b64_tr_b16 {v(Bf[n&1][b],2)}, {v(vB)} offset:{o}")
            A(f"ds_read_b64_tr_b16 {v(Bf[n&1][b]+2,2)}, {v(vB)} offset:{o+1024}")
    A("s_waitcnt vmcnt(0)")
    only_wave0("4", w0_sync4)
    K.stamp(2)
    A("s_barrier")
    K.stamp()
    issued = 3
    for n in range(issued): lda(n)
    rd5(0)
    for n in range(28):
        if n + 1 < 28:
            if (n + 1) % 4 == 0:
                A("s_waitcnt lgkmcnt(0)")
                A("s_barrier")
            rd5(n + 1)
            A("s_waitcnt lgkmcnt(4)")
        else:
            A("s_waitcnt lgkmcnt(0)")
        A(f"s_waitcnt vmcnt({2*(issued - 1 - n)})")
        for b in range(2):
            for r in range(2):
                t = 2 * b + r
                A(f"v_mfma_f32_32x32x16_bf16 {v(acc[t],16)}, {v(Bf[n&1][b],4)}, {v(Af[n%NW][r],4)}, {'0' if n == 0 else v(acc[t],16)}")
        tgt = min(28, n + 1 + WIN5, issued + 2)
        while issued < tgt:
            lda(issued); issued += 1
    K.stamp()
    A("s_barrier")
    A(f"s_lshl_b32 {s(sT0)}, {s(sW)}, 12")
    A(f"s_add_u32 {s(sT0)}, {s(sT0)}, {RED5}")
    A(f"v_add_u32 {v(vT0)}, {s(sT0)}, {v(vL16)}")
    for t in range(4):
        for q in range(4):
            A(f"ds_write_b128 {v(vT0)}, {v(acc[t]+4*q,4)} offset:{t*16384 + q*1024}")
    A("s_waitcnt lgkmcnt(0)")
    A.label("KM_Z")
    A("s_barrier")
    out = Af[0][0]
    own_reduce(RED5, out)
    un = acc[0]
    for i in range(4):
        A(f"v_lshlrev_b32 {v(un+2*i)}, 16, {v(hpk4+i)}")
        A(f"v_and_b32 {v(un+2*i+1)}, 0xffff0000, {v(hpk4+i)}")
    for r in range(8): A(f"v_add_f32 {v(out+r)}, {v(out+r)}, {v(un+r)}")
    A("s_waitcnt vmcnt(0)")
    for i in range(4):
        A(f"v_lshlrev_b32 {v(un+2*i)}, 16, {v(b2r+i)}")
        A(f"v_and_b32 {v(un+2*i+1)}, 0xffff0000, {v(b2r+i)}")
    for r in range(8): A(f"v_add_f32 {v(out+r)}, {v(out+r)}, {v(un+r)}")
    pk = acc[1]
    for i in range(4): A(f"v_cvt_pk_bf16_f32 {v(pk+i)}, {v(out+2*i)}, {v(out+2*i+1)}")
    A(f"v_permlane32_swap_b32 {v(pk)}, {v(pk+2)}")
    A(f"v_permlane32_swap_b32 {v(pk+1)}, {v(pk+3)}")
    A(f"s_lshl_b32 {s(sT0)}, {s(sRt)}, 16")
    A(f"s_lshl_b32 {s(sT1)}, {s(sTr)}, 15")
    A(f"s_add_u32 {s(sT0)}, {s(sT0)}, {s(sT1)}")
    A(f"s_lshl_b32 {s(sT1)}, {s(sCt)}, 7")
    A(f"s_add_u32 {s(sT0)}, {s(sT0)}, {s(sT1)}")
    A(f"s_lshl_b32 {s(sT1)}, {s(sTb)}, 6")
    A(f"s_add_u32 {s(sT0)}, {s(sT0)}, {s(sT1)}")
    A(f"s_lshl_b32 {s(sT1)}, {s(sTi)}, 5")
    A(f"s_add_u32 {s(sT0)}, {s(sT0)}, {s(sT1)}")
    A(f"v_lshlrev_b32 {v(vT0)}, 10, {v(vTok)}")
    A(f"v_lshl_add_u32 {v(vT0)}, {v(vHf)}, 4, {v(vT0)}")
    A(f"buffer_store_dwordx4 {v(pk,4)}, {v(vT0)}, {s(sRb,4)}, {s(sT0)} offen")
    K.stamp_out(sO, 1, vT0, vT1)
    K.rt_end(sO, 1, vT0, vT1)
    A.label(END)
    A("s_endpgm")
    print("km vgprs", V.hi, "sgprs", S.hi, "lds", K.lds)
    return K

def k1_hook(ev, K, L):
    A, V, S = K.A, K.V, K.S
    vT0, vT1, vLane, sW8, sWs = L["vT0"], L["vT1"], L["vLane"], L["sW8"], L["sWs"]
    H = K.__dict__.setdefault("_h", {})
    if ev == "start":
        H["R0"] = V.alloc(32); H["AC"] = V.alloc(8); H["UN"] = V.alloc(8); H["vo"] = V.alloc()
        H["srd"] = S.alloc(4); H["t"] = [S.alloc() for _ in range(4)]; H["p"] = S.alloc(2); H["flag"] = S.alloc()
        R0, vo, srd_, t, p, flag = H["R0"], H["vo"], H["srd"], H["t"], H["p"], H["flag"]
        A(f"s_mov_b32 {s(flag)}, 0")
        A(f"s_cmp_lg_u32 {s(sW8)}, 8")
        A(f"s_cbranch_scc1 K1_NOCS0")
        A("s_waitcnt lgkmcnt(0)")
        A(f"s_cmp_ge_u32 s2, 48")
        A(f"s_cbranch_scc1 K1_NOZ")
        srd(A, srd_, sWs, WS_SIZE)
        A(f"s_lshl_b32 {s(t[0])}, s2, 8")
        A(f"s_add_u32 {s(t[0])}, {s(t[0])}, {WS_CNT}")
        A(f"v_mov_b32 {v(vT0)}, 0")
        A(f"v_mov_b32 {v(vT1)}, 0")
        A(f"s_mov_b64 exec, 1")
        A(f"buffer_store_dword {v(vT0)}, {v(vT1)}, {s(srd_,4)}, {s(t[0])} offen")
        A(f"s_mov_b64 exec, -1")
        A.label("K1_NOZ")
        A(f"s_cmp_ge_u32 s2, 224")
        A(f"s_cbranch_scc1 K1_NOCS0")
        A(f"s_mov_b32 {s(flag)}, 1")
        A(f"s_load_dwordx2 {s(p,2)}, s[0:1], 32")
        A(f"s_mul_i32 {s(t[0])}, s2, 2341")
        A(f"s_lshr_b32 {s(t[0])}, {s(t[0])}, 16")
        A(f"s_mul_i32 {s(t[1])}, {s(t[0])}, 28")
        A(f"s_sub_u32 {s(t[1])}, s2, {s(t[1])}")
        A(f"v_lshrrev_b32 {v(vo)}, 3, {v(vLane)}")
        A(f"v_mul_u32_u24 {v(vo)}, 3584, {v(vo)}")
        A(f"v_and_b32 {v(vT0)}, 7, {v(vLane)}")
        A(f"v_lshl_add_u32 {v(vo)}, {v(vT0)}, 4, {v(vo)}")
        A(f"s_mul_i32 {s(t[2])}, {s(t[0])}, {64*3584}")
        A(f"s_lshl_b32 {s(t[3])}, {s(t[1])}, 7")
        A(f"s_add_u32 {s(t[2])}, {s(t[2])}, {s(t[3])}")
        A("s_waitcnt lgkmcnt(0)")
        srd(A, srd_, p, 512 * 1792 * 2)
        for n in range(8):
            A(f"buffer_load_dwordx4 {v(R0+4*n,4)}, {v(vo)}, {s(srd_,4)}, {s(t[2])} offen")
            A(f"s_add_u32 {s(t[2])}, {s(t[2])}, {8*3584}")
        A.label("K1_NOCS0")
        for i in range(8): A(f"v_mov_b32 {v(H['AC']+i)}, 0")
    elif ev == "end":
        R0, AC, UN, srd_, t, flag = H["R0"], H["AC"], H["UN"], H["srd"], H["t"], H["flag"]
        A(f"s_cmp_eq_u32 {s(flag)}, 0")
        A(f"s_cbranch_scc1 K1_NOCS1")
        A("s_waitcnt vmcnt(0)")
        for n in range(8):
            for i in range(4):
                A(f"v_lshlrev_b32 {v(UN+2*i)}, 16, {v(R0+4*n+i)}")
                A(f"v_and_b32 {v(UN+2*i+1)}, 0xffff0000, {v(R0+4*n+i)}")
            for i in range(8): A(f"v_add_f32 {v(AC+i)}, {v(AC+i)}, {v(UN+i)}")
        for i in range(8): A(f"v_add_f32_dpp {v(AC+i)}, {v(AC+i)}, {v(AC+i)} row_ror:8 row_mask:0xf bank_mask:0xf")
        for sw in ("v_permlane16_swap_b32", "v_permlane32_swap_b32"):
            for i in range(8): A(f"v_mov_b32 {v(UN+i)}, {v(AC+i)}")
            for i in range(8): A(f"{sw} {v(AC+i)}, {v(UN+i)}")
            for i in range(8): A(f"v_add_f32 {v(AC+i)}, {v(AC+i)}, {v(UN+i)}")
        srd(A, srd_, sWs, WS_SIZE)
        A(f"s_mul_i32 {s(t[2])}, {s(t[0])}, 7168")
        A(f"s_lshl_b32 {s(t[3])}, {s(t[1])}, 8")
        A(f"s_add_u32 {s(t[2])}, {s(t[2])}, {s(t[3])}")
        A(f"s_add_u32 {s(t[2])}, {s(t[2])}, {WS_CSG}")
        A(f"v_and_b32 {v(vT0)}, 7, {v(vLane)}")
        A(f"v_lshlrev_b32 {v(vT0)}, 5, {v(vT0)}")
        A(f"s_mov_b64 exec, 0xff")
        A(f"buffer_store_dwordx4 {v(AC,4)}, {v(vT0)}, {s(srd_,4)}, {s(t[2])} offen")
        A(f"buffer_store_dwordx4 {v(AC+4,4)}, {v(vT0)}, {s(srd_,4)}, {s(t[2])} offen offset:16")
        A.label("K1_NOCS1")

def k1z():
    G.HOOK = k1_hook
    return G.k1()

if __name__ == "__main__":
    if "stamp" in sys.argv: G.STAMP = True
    if "rt" in sys.argv: G.RT = True
    G.FLAGS = set(sys.argv[2:])
    for a_ in sys.argv[2:]:
        if a_.startswith("prioit="): PRIO_IT = int(a_.split("=")[1])
        if a_.startswith("npoll="): NPOLL = int(a_.split("=")[1])
        if a_.startswith("psleep="): PSLEEP = int(a_.split("=")[1])
    ks = [k1z(), km(1 if 'q1' in G.FLAGS else 2, prio=('noprio' not in G.FLAGS))]
    build(ks, sys.argv[1] if len(sys.argv) > 1 else "out.s")
```

```python
import sys
import gen as G
from gen import *
from dsl import *

WS_CNT = (21 << 20)
G.WS_CNT = WS_CNT
G.WS_HS = WS_HS = 20 << 20
WS_CSG = (20 << 20) + (512 << 10)
G.WS_STAMP = WS_STAMP = (21 << 20) + (512 << 10)

PRIO_IT = 13
NPOLL = 1
TLB_IT = 6
PSLEEP = 4
WIN5 = 5
def km(nqb=2, prio=True):
    ks = nqb
    LOCAL = 'local' in G.FLAGS
    W2R = 'w2r' in G.FLAGS
    LSC = '' if LOCAL else ' sc1'
    LLD = '' if (LOCAL and 'ldsc1' not in G.FLAGS) else ' sc1'
    KR = 0; VR = 65536; ON = 131072
    WO = 0; XT = 65536; RED = XT + 8192
    W1 = 0; CS = 139264; BI = CS + 512
    W2 = 0; RED5 = 0
    TKL = BI + 512 + 2048
    STP = BI + 512
    K = Kern("km_fused_kernel", (256, 1, 1), (512, 1, 1), BI + 512 + 2048 + 64)
    A, V, S = K.A, K.V, K.S
    END = "KM_END"
    sWs = S.alloc(2); sPx = S.alloc(2); sPwo = S.alloc(2); sP1 = S.alloc(4); sP2 = S.alloc(4); sPo = S.alloc(2)
    A(f"s_load_dwordx2 {s(sWs,2)}, s[0:1], 80")
    A(f"s_load_dwordx2 {s(sPx,2)}, s[0:1], 0")
    A(f"s_load_dwordx2 {s(sPwo,2)}, s[0:1], 16")
    A(f"s_load_dwordx4 {s(sP1,4)}, s[0:1], 32")
    A(f"s_load_dwordx4 {s(sP2,4)}, s[0:1], 48")
    A(f"s_load_dwordx2 {s(sPo,2)}, s[0:1], 64")
    A(f"s_cmp_ge_u32 s2, 256")
    A(f"s_cbranch_scc1 {END}")
    K.rt_begin()
    K.stamp()
    sO = S.alloc(4); sRa = S.alloc(4); sRb = S.alloc(4)
    sW8, sW, sXcd, sJ, sT0, sT1, sB, sJ3, sJ2, sCn = [S.alloc() for _ in range(10)]
    sSave = S.alloc(2)
    sXcP, sTkP = S.alloc(), S.alloc()
    vLane, vT0, vT1, vT2, vHf, vTok, vL16 = [V.alloc() for _ in range(7)]
    hpk = V.alloc(4)
    vPoll = V.alloc(4)
    wave_ids(K, sW8, sW, vLane, vT0)
    A(f"s_and_b32 {s(sXcd)}, s2, 7")
    A(f"s_lshr_b32 {s(sJ)}, s2, 3")
    A(f"s_and_b32 {s(sJ3)}, {s(sJ)}, 3")
    A(f"s_lshr_b32 {s(sJ2)}, {s(sJ)}, 2")
    A(f"v_lshlrev_b32 {v(vL16)}, 4, {v(vLane)}")
    A(f"v_lshrrev_b32 {v(vHf)}, 5, {v(vLane)}")
    A(f"v_and_b32 {v(vTok)}, 31, {v(vLane)}")
    FLG = "flg" in G.FLAGS
    def signal(off_sgpr, local=False, slot=None):
        if FLG:
            slot()
            A(f"s_lshl_b32 {s(sT0)}, {s(sT0)}, 2")
            A(f"v_mov_b32 {v(vT1)}, {s(sT0)}")
            A(f"v_mov_b32 {v(vT0)}, 1")
            A(f"s_mov_b64 exec, 1")
            A(f"buffer_store_dword {v(vT0)}, {v(vT1)}, {s(sO,4)}, {s(off_sgpr)} offen sc1")
            A(f"s_mov_b64 exec, -1")
            return
        A(f"v_mov_b32 {v(vT0)}, 1")
        A(f"v_mov_b32 {v(vT1)}, 0")
        A(f"s_mov_b64 exec, 1")
        A(f"buffer_atomic_add {v(vT0)}, {v(vT1)}, {s(sO,4)}, {s(off_sgpr)} offen" + ("" if local else " sc1"))
        A(f"s_mov_b64 exec, -1")
    def poll(off_sgpr, target, tag):
        if FLG:
            A(f"v_lshlrev_b32 {v(vT1)}, 2, {v(vLane)}")
            A(f"s_mov_b32 {s(sT1)}, 3000000")
            A(f"s_mov_b32 exec_lo, {(1 << target) - 1:#x}")
            A(f"s_mov_b32 exec_hi, 0")
            A.label(f"KM_POLL_{tag}")
            A(f"buffer_load_dword {v(vT0)}, {v(vT1)}, {s(sO,4)}, {s(off_sgpr)} offen sc1")
            A("s_waitcnt vmcnt(0)")
            A(f"v_cmp_eq_u32 vcc, 0, {v(vT0)}")
            A("s_nop 1")
            A(f"s_cmp_eq_u64 vcc, 0")
            A(f"s_cbranch_scc1 KM_PD_{tag}")
            A("s_sleep 1")
            A(f"s_sub_u32 {s(sT1)}, {s(sT1)}, 1")
            A(f"s_cmp_lg_u32 {s(sT1)}, 0")
            A(f"s_cbranch_scc1 KM_POLL_{tag}")
            A.label(f"KM_PD_{tag}")
            A(f"s_mov_b64 exec, -1")
            return
        if NPOLL <= 1:
            A(f"v_mov_b32 {v(vT1)}, 0")
            A(f"s_mov_b32 {s(sT1)}, 3000000")
            A.label(f"KM_POLL_{tag}")
            A(f"buffer_load_dword {v(vT0)}, {v(vT1)}, {s(sO,4)}, {s(off_sgpr)} offen sc1")
            A("s_waitcnt vmcnt(0)")
            A(f"v_readfirstlane_b32 {s(sT0)}, {v(vT0)}")
            A(f"s_cmp_ge_u32 {s(sT0)}, {target}")
            A(f"s_cbranch_scc1 KM_PD_{tag}")
            A("s_sleep 1")
            A(f"s_sub_u32 {s(sT1)}, {s(sT1)}, 1")
            A(f"s_cmp_lg_u32 {s(sT1)}, 0")
            A(f"s_cbranch_scc1 KM_POLL_{tag}")
            A.label(f"KM_PD_{tag}")
            return
        P = vPoll
        A(f"v_mov_b32 {v(vT1)}, 0")
        A(f"s_mov_b32 {s(sT1)}, 1000000")
        for k in range(NPOLL - 1):
            A(f"buffer_load_dword {v(P+k)}, {v(vT1)}, {s(sO,4)}, {s(off_sgpr)} offen sc1")
            A(f"s_sleep {PSLEEP}")
        A.label(f"KM_POLL_{tag}")
        for k in range(NPOLL):
            A(f"buffer_load_dword {v(P+(k+NPOLL-1)%NPOLL)}, {v(vT1)}, {s(sO,4)}, {s(off_sgpr)} offen sc1")
            A(f"s_waitcnt vmcnt({NPOLL-1})")
            A(f"v_readfirstlane_b32 {s(sT0)}, {v(P+k)}")
            A(f"s_cmp_ge_u32 {s(sT0)}, {target}")
            A(f"s_cbranch_scc1 KM_PD_{tag}")
            A(f"s_sleep {PSLEEP}")
        A(f"s_sub_u32 {s(sT1)}, {s(sT1)}, 1")
        A(f"s_cmp_lg_u32 {s(sT1)}, 0")
        A(f"s_cbranch_scc1 KM_POLL_{tag}")
        A.label(f"KM_PD_{tag}")
    def only_wave0(tag, body):
        A(f"s_cmp_lg_u32 {s(sW8)}, 0")
        A(f"s_cbranch_scc1 KM_NW0_{tag}")
        body()
        A.label(f"KM_NW0_{tag}")
    def cnt_off(dst, base, idx_expr):
        idx_expr(dst)
        A(f"s_lshl_b32 {s(dst)}, {s(dst)}, 8")
        A(f"s_add_u32 {s(dst)}, {s(dst)}, {WS_CNT + base}")
    mkV = V.mark(); mkS = S.mark()
    sHead, sWq, sKh, sHb, sIt, sKm, sQt, sL, sG, sL0 = [S.alloc() for _ in range(10)]
    sQb = sJ2
    vK, vV, vVinc = [V.alloc() for _ in range(3)]
    A(f"s_lshl_b32 {s(sHead)}, {s(sXcd)}, 2")
    A(f"s_add_u32 {s(sHead)}, {s(sHead)}, {s(sJ3)}")
    if ks == 2:
        A(f"s_mov_b32 {s(sWq)}, {s(sW)}")
        A(f"s_lshr_b32 {s(sKh)}, {s(sW8)}, 2")
    else:
        A(f"s_mov_b32 {s(sWq)}, {s(sW8)}")
        A(f"s_mov_b32 {s(sKh)}, 0")
    A(f"s_lshl_b32 {s(sHb)}, {s(sHead)}, 16")
    Q = [V.alloc(4) for _ in range(nqb)]
    vKm = V.alloc()
    A(f"s_lshl_b32 {s(sT0)}, {s(sQb)}, 3")
    A(f"s_mul_i32 {s(sT1)}, {s(sWq)}, {nqb}")
    A(f"s_add_u32 {s(sQt)}, {s(sT0)}, {s(sT1)}")
    if ks == 2:
        A(f"s_lshl_b32 {s(sL0)}, {s(sKh)}, 5")
        A(f"s_lshl_b32 {s(sT0)}, {s(sWq)}, 1")
        A(f"s_add_u32 {s(sL0)}, {s(sL0)}, {s(sT0)}")
        gstep = 8
    else:
        A(f"s_lshl_b32 {s(sL0)}, {s(sW8)}, 1")
        gstep = 16
    A(f"s_lshl_b32 {s(sB)}, {s(sQt)}, 10")
    A(f"s_add_u32 {s(sB)}, {s(sB)}, {s(sHb)}")
    A(f"v_lshlrev_b32 {v(vT2)}, 2, {v(vLane)}")
    A("s_waitcnt lgkmcnt(0)")
    srd(A, sO, sWs, WS_SIZE)
    sXc, sTk = sXcP, sTkP
    vTk = V.alloc()
    if LOCAL:
        A(f"s_getreg_b32 {s(sXc)}, hwreg(HW_REG_XCC_ID)")
        A(f"s_and_b32 {s(sXc)}, {s(sXc)}, 7")
        A(f"s_cmp_lg_u32 {s(sW8)}, 0")
        A(f"s_cbranch_scc1 KM_NOTK")
        A(f"s_lshl_b32 {s(sT0)}, {s(sXc)}, 8")
        A(f"s_add_u32 {s(sT0)}, {s(sT0)}, {WS_CNT + 10240}")
        A(f"v_mov_b32 {v(vTk)}, 1")
        A(f"v_mov_b32 {v(vT0)}, 0")
        A(f"s_mov_b64 exec, 1")
        A(f"buffer_atomic_add {v(vTk)}, {v(vT0)}, {s(sO,4)}, {s(sT0)} offen sc0")
        A(f"s_mov_b64 exec, -1")
        A.label("KM_NOTK")
    else:
        A(f"s_mov_b32 {s(sXc)}, {s(sXcd)}")
        A(f"s_mov_b32 {s(sTk)}, {s(sJ)}")
    def kv_group(g):
        A(f"s_add_u32 {s(sL)}, {s(sL0)}, {gstep*g}")
        A(f"s_lshl_b32 {s(sT0)}, {s(sQb)}, 3")
        A(f"s_add_u32 {s(sG)}, {s(sL)}, {s(sT0)}")
        A(f"s_and_b32 {s(sG)}, {s(sG)}, 63")
        A(f"s_lshl_b32 {s(sG)}, {s(sG)}, 10")
        A(f"s_add_u32 {s(sG)}, {s(sG)}, {s(sHb)}")
        A(f"s_lshl_b32 {s(sL)}, {s(sL)}, 10")
        A(f"s_add_u32 m0, {s(sL)}, {KR}")
        A(f"s_add_u32 {s(sT0)}, {s(sG)}, {WS_KF}")
        A(f"buffer_load_dwordx4 {v(vL16)}, {s(sO,4)}, {s(sT0)} offen lds")
        A(f"buffer_load_dwordx4 {v(vL16)}, {s(sO,4)}, {s(sT0)} offen offset:1024 lds")
        A(f"s_add_u32 m0, {s(sL)}, {VR}")
        A(f"s_add_u32 {s(sT0)}, {s(sG)}, {WS_VF}")
        A(f"buffer_load_dwordx4 {v(vL16)}, {s(sO,4)}, {s(sT0)} offen lds")
        A(f"buffer_load_dwordx4 {v(vL16)}, {s(sO,4)}, {s(sT0)} offen offset:1024 lds")
    for b in range(nqb):
        A(f"buffer_load_dwordx4 {v(Q[b],4)}, {v(vL16)}, {s(sO,4)}, {s(sB)} offen offset:{b*1024}")
    A(f"s_lshl_b32 {s(sT0)}, {s(sHead)}, 8")
    A(f"s_add_u32 {s(sT0)}, {s(sT0)}, {WS_KMAX}")
    A(f"buffer_load_dword {v(vKm)}, {v(vT2)}, {s(sO,4)}, {s(sT0)} offen")
    kv_group(0)
    K.stamp()
    ZROW = "zrow" in G.FLAGS
    ZR = ON + 4608
    A(f"v_mov_b32 {v(vT1)}, 0x3f803f80")
    A(f"v_lshlrev_b32 {v(vT0)}, 2, v0")
    A(f"v_add_u32 {v(vT0)}, {ON}, {v(vT0)}")
    A(f"ds_write_b32 {v(vT0)}, {v(vT1)}")
    A(f"ds_write_b32 {v(vT0)}, {v(vT1)} offset:2048")
    if ZROW:
        A(f"v_mov_b32 {v(vT2)}, 0")
        A(f"ds_write_b32 {v(vT0)}, {v(vT2)} offset:4608")
        A(f"ds_write_b32 {v(vT0)}, {v(vT2)} offset:{4608+2048}")
    A(f"v_cmp_gt_u32 vcc, 128, v0")
    A(f"s_and_saveexec_b64 {s(sSave,2)}, vcc")
    A(f"ds_write_b32 {v(vT0)}, {v(vT1)} offset:4096")
    if ZROW: A(f"ds_write_b32 {v(vT0)}, {v(vT2)} offset:{4608+4096}")
    A(f"s_mov_b64 exec, {s(sSave,2)}")
    A(f"s_lshl_b32 {s(sT0)}, {s(sKh)}, 15")
    A(f"v_add_u32 {v(vK)}, {s(sT0)}, {v(vL16)}")
    A(f"v_lshlrev_b32 {v(vT0)}, 8, {v(vHf)}")
    A(f"v_lshl_add_u32 {v(vT0)}, {v(vTok)}, 4, {v(vT0)}")
    A(f"s_add_u32 {s(sT0)}, {s(sT0)}, {VR}")
    A(f"v_add_u32 {v(vT0)}, {s(sT0)}, {v(vT0)}")
    A(f"v_subrev_u32 {v(vT1)}, 20, {v(vTok)}")
    A(f"v_cmp_gt_u32 vcc, 8, {v(vT1)}")
    if ZROW:
        A(f"v_mov_b32 {v(vT1)}, {ZR+192}")
        A(f"v_mov_b32 {v(vT2)}, {ZR+64}")
        A(f"v_cndmask_b32 {v(vT1)}, {v(vT1)}, {v(vT2)}, vcc")
        A(f"v_mov_b32 {v(vT2)}, {ON}")
        A(f"v_cmp_eq_u32 vcc, 16, {v(vTok)}")
        A(f"v_cndmask_b32 {v(vT1)}, {v(vT1)}, {v(vT2)}, vcc")
    else:
        A(f"v_mov_b32 {v(vT1)}, {ON}")
        A(f"v_mov_b32 {v(vT2)}, {ON+64}")
        A(f"v_cndmask_b32 {v(vT1)}, {v(vT1)}, {v(vT2)}, vcc")
    A(f"v_cmp_gt_u32 vcc, 16, {v(vTok)}")
    A(f"v_cndmask_b32 {v(vV)}, {v(vT1)}, {v(vT0)}, vcc")
    A(f"v_mov_b32 {v(vT1)}, 4096")
    A(f"v_cndmask_b32 {v(vVinc)}, 0, {v(vT1)}, vcc")
    Kf = [V.alloc(4) for _ in range(2)]; Vf0 = [V.alloc(4) for _ in range(2)]; Vf1 = [V.alloc(4) for _ in range(2)]
    QB = [dict(S=[V.alloc(16), V.alloc(16)], P=V.alloc(8), O=V.alloc(16), C=V.alloc(16)) for _ in range(nqb)]
    for b in range(nqb):
        for r in range(16): A(f"v_mov_b32 {v(QB[b]['O']+r)}, 0")
        for r in range(4, 8): A(f"v_mov_b32 {v(QB[b]['P']+r)}, 0")
    for r in range(4): A(f"v_mov_b32 {v(Vf1[1]+r)}, 0")
    A(f"s_waitcnt vmcnt(4)")
    wave_max64(A, vKm, sKm, sT0)
    bad = S.alloc(2)
    for b in range(nqb):
        un = QB[b]["S"][0]
        for i in range(4):
            A(f"v_lshlrev_b32 {v(un+2*i)}, 16, {v(Q[b]+i)}")
            A(f"v_and_b32 {v(un+2*i+1)}, 0xffff0000, {v(Q[b]+i)}")
        A(f"v_mul_f32 {v(vT0)}, {v(un)}, {v(un)}")
        for i in range(1, 8): A(f"v_fmac_f32 {v(vT0)}, {v(un+i)}, {v(un+i)}")
        swap_add(A, vT0, vT1)
        A(f"v_mul_f32 {v(vT0)}, {s(sKm)}, {v(vT0)}")
        A(f"v_sqrt_f32 {v(vT0)}, {v(vT0)}")
        A(f"v_mov_b32 {v(vT1)}, {f2u(0.01):#x}")
        A(f"v_fmac_f32 {v(vT1)}, {f2u(1.01):#x}, {v(vT0)}")
        A(f"v_mov_b32 {v(vT2)}, {f2u(40.0):#x}")
        A(f"v_cmp_nge_f32 vcc, {v(vT2)}, {v(vT1)}")
        if b == 0: A(f"s_mov_b64 {s(bad,2)}, vcc")
        else: A(f"s_or_b64 {s(bad,2)}, {s(bad,2)}, vcc")
        for r in range(16): A(f"v_sub_f32 {v(QB[b]['C']+r)}, 0, {v(vT1)}")
    if LOCAL:
        A(f"s_waitcnt vmcnt(0)")
        A(f"s_cmp_lg_u32 {s(sW8)}, 0")
        A(f"s_cbranch_scc1 KM_NOTK2")
        A(f"v_mov_b32 {v(vT0)}, {TKL}")
        A(f"s_mov_b64 exec, 1")
        A(f"ds_write_b32 {v(vT0)}, {v(vTk)}")
        A(f"s_mov_b64 exec, -1")
        A.label("KM_NOTK2")
    A(f"s_waitcnt vmcnt(0) lgkmcnt(0)")
    A("s_barrier")
    K.stamp()
    if LOCAL:
        A(f"v_mov_b32 {v(vT0)}, {TKL}")
        A(f"ds_read_b32 {v(vT1)}, {v(vT0)}")
        A(f"s_waitcnt lgkmcnt(0)")
        A(f"v_readfirstlane_b32 {s(sTk)}, {v(vT1)}")
    NT = 64 // ks
    mf = "v_mfma_f32_32x32x16_bf16"
    sPF = S.alloc(4); sPFo = S.alloc()
    A(f"s_lshl_b32 {s(sT0)}, {s(sJ)}, 2")
    A(f"s_add_u32 {s(sT0)}, {s(sT0)}, {s(sW)}")
    A(f"s_cmp_lt_u32 {s(sT0)}, 72")
    A(f"s_cselect_b32 {s(sPF)}, {s(sP1)}, {s(sP2)}")
    A(f"s_cselect_b32 {s(sPF+1)}, {s(sP1+1)}, {s(sP2+1)}")
    A(f"s_cselect_b32 {s(sT1)}, 16, 72")
    A(f"s_cmp_lt_u32 {s(sT0)}, 16")
    A(f"s_cselect_b32 {s(sPF)}, {s(sPwo)}, {s(sPF)}")
    A(f"s_cselect_b32 {s(sPF+1)}, {s(sPwo+1)}, {s(sPF+1)}")
    A(f"s_cselect_b32 {s(sT1)}, 0, {s(sT1)}")
    A(f"s_sub_u32 {s(sT0)}, {s(sT0)}, {s(sT1)}")
    A(f"s_lshl_b32 {s(sT0)}, {s(sT0)}, 15")
    A(f"s_add_u32 {s(sPF)}, {s(sPF)}, {s(sT0)}")
    A(f"s_addc_u32 {s(sPF+1)}, {s(sPF+1)}, 0")
    A(f"s_and_b32 {s(sPF+1)}, {s(sPF+1)}, 0xffff")
    A(f"s_mov_b32 {s(sPF+2)}, 32768")
    A(f"s_mov_b32 {s(sPF+3)}, 0x20000")
    A(f"s_mov_b32 {s(sPFo)}, 0")
    if "nopf" in G.FLAGS:
        A(f"s_mov_b32 {s(sPFo)}, 32768")
    if "pf2" in G.FLAGS:
        A(f"s_lshl_b32 {s(sT0)}, {s(sJ)}, 2")
        A(f"s_add_u32 {s(sT0)}, {s(sT0)}, {s(sW)}")
        A(f"s_cmp_lt_u32 {s(sT0)}, 72")
        A(f"s_cselect_b32 {s(sPFo)}, 0, 32768")
    vPF = V.alloc(4)
    A(f"s_cmp_lt_u32 {s(sW8)}, 4")
    A(f"s_cbranch_scc1 KM_OLD1")
    for g in range(1, 4):
        if ks == 2:
            A(f"s_lshr_b32 {s(sL)}, {s(sW)}, 1")
            A(f"s_lshl_b32 {s(sL)}, {s(sL)}, 5")
            A(f"s_and_b32 {s(sT0)}, {s(sW)}, 1")
            A(f"s_lshl_b32 {s(sT0)}, {s(sT0)}, 2")
            A(f"s_add_u32 {s(sL)}, {s(sL)}, {s(sT0)}")
            A(f"s_add_u32 {s(sL)}, {s(sL)}, {8*g}")
        else:
            A(f"s_lshl_b32 {s(sL)}, {s(sW)}, 2")
            A(f"s_add_u32 {s(sL)}, {s(sL)}, {16*g}")
        A(f"s_lshl_b32 {s(sT0)}, {s(sQb)}, 3")
        A(f"s_add_u32 {s(sG)}, {s(sL)}, {s(sT0)}")
        A(f"s_and_b32 {s(sG)}, {s(sG)}, 63")
        A(f"s_lshl_b32 {s(sG)}, {s(sG)}, 10")
        A(f"s_add_u32 {s(sG)}, {s(sG)}, {s(sHb)}")
        A(f"s_lshl_b32 {s(sL)}, {s(sL)}, 10")
        for reg, wsb in ((KR, WS_KF), (VR, WS_VF)):
            A(f"s_add_u32 m0, {s(sL)}, {reg}")
            A(f"s_add_u32 {s(sT0)}, {s(sG)}, {wsb}")
            for i in range(4):
                A(f"buffer_load_dwordx4 {v(vL16)}, {s(sO,4)}, {s(sT0)} offen offset:{i*1024} lds")
    A("s_waitcnt vmcnt(0)")
    A("s_barrier")
    if prio: A("s_setprio 1")
    A.label("KM_OLD1")
    A(f"s_cmp_lg_u64 {s(bad,2)}, 0")
    A(f"s_cbranch_scc1 KM_SLOW")
    A(f"ds_read_b128 {v(Kf[0],4)}, {v(vK)}")
    A(f"ds_read_b128 {v(Kf[1],4)}, {v(vK)} offset:1024")
    A(f"ds_read_b128 {v(Vf0[0],4)}, {v(vV)}")
    A("s_waitcnt lgkmcnt(2)")
    for b in range(nqb):
        A(f"{mf} {v(QB[b]['S'][0],16)}, {v(Kf[0],4)}, {v(Q[b],4)}, {v(QB[b]['C'],16)}")
    sA1i = S.alloc()
    a1it = 3 if ks == 1 else 1
    A(f"s_cmp_lt_u32 {s(sW8)}, 4")
    A(f"s_cselect_b32 {s(sA1i)}, {a1it}, -1")
    sPFl = S.alloc()
    A(f"s_cselect_b32 {s(sPFl)}, 0, 32768")
    A(f"s_mov_b32 {s(sIt)}, 0")
    A.label("KM_LOOP")
    A(f"s_cmp_lg_u32 {s(sIt)}, {s(sA1i)}")
    A(f"s_cbranch_scc1 KM_NOSYNC")
    A("s_barrier")
    A.label("KM_NOSYNC")
    if prio:
        A(f"s_cmp_lg_u32 {s(sIt)}, {PRIO_IT if ks == 1 else PRIO_IT // 2}")
        A(f"s_cbranch_scc1 KM_NP2")
        A("s_setprio 0")
        A.label("KM_NP2")
    npf = 3 if ks == 1 else 6
    A(f"s_cmp_ge_u32 {s(sPFo)}, {s(sPFl)}")
    A(f"s_cbranch_scc1 KM_NOPF")
    for i in range(npf):
        if i == 4: A(f"s_add_u32 {s(sT0)}, {s(sPFo)}, 4096")
        A(f"buffer_load_dwordx4 {v(vPF,4)}, {v(vL16)}, {s(sPF,4)}, {s(sPFo if i < 4 else sT0)} offen offset:{(i&3)*1024}")
    A(f"s_add_u32 {s(sPFo)}, {s(sPFo)}, {npf*1024}")
    A.label("KM_NOPF")
    if "tlb" in G.FLAGS:
        A(f"s_cmp_lg_u32 {s(sIt)}, {TLB_IT}")
        A(f"s_cbranch_scc1 KM_NOTLB")
        A(f"s_cmp_lt_u32 {s(sW8)}, 4")
        A(f"s_cbranch_scc1 KM_NOTLB")
        A(f"v_and_b32 {v(vT0)}, 7, {v(vLane)}")
        A(f"v_lshlrev_b32 {v(vT0)}, 21, {v(vT0)}")
        A(f"s_lshl_b32 {s(sT0)}, {s(sJ)}, 12")
        A(f"s_add_u32 {s(sT0)}, {s(sT0)}, {(8 << 20) + 0x100000}")
        A(f"s_mov_b64 exec, 0x7f")
        A(f"buffer_load_dword {v(vPF)}, {v(vT0)}, {s(sO,4)}, {s(sT0)} offen")
        A(f"s_mov_b64 exec, 1")
        A(f"v_mov_b32 {v(vT0)}, 0")
        A(f"global_load_dword {v(vPF+1)}, {v(vT0)}, {s(sPo,2)}")
        A(f"global_load_dword {v(vPF+2)}, {v(vT0)}, {s(sP1+2,2)}")
        A(f"global_load_dword {v(vPF+3)}, {v(vT0)}, {s(sP2+2,2)}")
        A(f"s_mov_b64 exec, -1")
        A.label("KM_NOTLB")
    for t in range(4):
        cur, nxt = t & 1, (t + 1) & 1
        A("s_waitcnt lgkmcnt(0)")
        for b in range(nqb):
            q = QB[b]; Sx = q["S"][cur]; Sn = q["S"][nxt]; P = q["P"]; O = q["O"]
            ex = [f"v_exp_f32 {v(Sx+i)}, {v(Sx+i)}" for i in range(16)]
            cv = [f"v_cvt_pk_bf16_f32 {v(P+i)}, {v(Sx+2*i)}, {v(Sx+2*i+1)}" for i in range(8)]
            A(f"{mf} {v(Sn,16)}, {v(Kf[nxt],4)}, {v(Q[b],4)}, {v(q['C'],16)}")
            for x in ex[0:4]: A(x)
            A(cv[0])
            for x in ex[4:6]: A(x)
            A(cv[1])
            A(f"{mf} {v(O,16)}, {v(Vf1[nxt],4)}, {v(P+4,4)}, {v(O,16)}")
            if b == 0:
                A(f"ds_read_b128 {v(Kf[cur],4)}, {v(vK)} offset:{(t+2)*1024}")
                A(f"ds_read_b128 {v(Vf0[nxt],4)}, {v(vV)} offset:{(t+1)*1024}")
                A(f"ds_read_b128 {v(Vf1[cur],4)}, {v(vV)} offset:{t*1024+512}")
            for x in ex[6:8]: A(x)
            A(cv[2])
            for x in ex[8:10]: A(x)
            A(cv[3])
            for x in ex[10:12]: A(x)
            A(cv[4])
            A(f"{mf} {v(O,16)}, {v(Vf0[cur],4)}, {v(P,4)}, {v(O,16)}")
            for x in ex[12:14]: A(x)
            A(cv[5])
            for x in ex[14:16]: A(x)
            A(cv[6])
            A(cv[7])
    A(f"v_add_u32 {v(vK)}, 4096, {v(vK)}")
    A(f"v_add_u32 {v(vV)}, {v(vVinc)}, {v(vV)}")
    A(f"s_add_u32 {s(sIt)}, {s(sIt)}, 1")
    A(f"s_cmp_lt_u32 {s(sIt)}, {NT//4}")
    A(f"s_cbranch_scc1 KM_LOOP")
    A("s_waitcnt lgkmcnt(0)")
    for b in range(nqb):
        A(f"{mf} {v(QB[b]['O'],16)}, {v(Vf1[1],4)}, {v(QB[b]['P']+4,4)}, {v(QB[b]['O'],16)}")
    A("s_branch KM_FIN")
    A.label("KM_SLOW")
    A(f"s_cmp_ge_u32 {s(sW8)}, 4")
    A(f"s_cbranch_scc1 KM_SLOW2")
    A("s_barrier")
    A.label("KM_SLOW2")
    for b in range(nqb):
        A(f"v_mov_b32 {v(QB[b]['C'])}, {f2u(-3.0e38):#x}")
    A(f"s_mov_b32 {s(sIt)}, 0")
    A.label("KM_SLOOP")
    A(f"ds_read_b128 {v(Kf[0],4)}, {v(vK)}")
    A(f"ds_read_b128 {v(Vf0[0],4)}, {v(vV)}")
    A(f"ds_read_b128 {v(Vf1[0],4)}, {v(vV)} offset:512")
    A("s_waitcnt lgkmcnt(0)")
    for b in range(nqb):
        q = QB[b]; Sx = q["S"][0]; P = q["P"]; O = q["O"]; m = q["C"]; mn = q["C"] + 1; al = q["C"] + 2
        A(f"{mf} {v(Sx,16)}, {v(Kf[0],4)}, {v(Q[b],4)}, 0")
        A(f"v_max_f32 {v(mn)}, {v(Sx)}, {v(Sx+1)}")
        for i in range(2, 16): A(f"v_max_f32 {v(mn)}, {v(mn)}, {v(Sx+i)}")
        swap_add(A, mn, vT1, "v_max_f32")
        A(f"v_max_f32 {v(mn)}, {v(mn)}, {v(m)}")
        A(f"v_sub_f32 {v(al)}, {v(m)}, {v(mn)}")
        A(f"v_exp_f32 {v(al)}, {v(al)}")
        A(f"v_mov_b32 {v(m)}, {v(mn)}")
        for i in range(16): A(f"v_sub_f32 {v(Sx+i)}, {v(Sx+i)}, {v(mn)}")
        for i in range(16): A(f"v_exp_f32 {v(Sx+i)}, {v(Sx+i)}")
        for i in range(16): A(f"v_mul_f32 {v(O+i)}, {v(al)}, {v(O+i)}")
        for i in range(8): A(f"v_cvt_pk_bf16_f32 {v(P+i)}, {v(Sx+2*i)}, {v(Sx+2*i+1)}")
        A(f"{mf} {v(O,16)}, {v(Vf0[0],4)}, {v(P,4)}, {v(O,16)}")
        A(f"{mf} {v(O,16)}, {v(Vf1[0],4)}, {v(P+4,4)}, {v(O,16)}")
    A(f"v_add_u32 {v(vK)}, 1024, {v(vK)}")
    A(f"v_lshrrev_b32 {v(vT0)}, 2, {v(vVinc)}")
    A(f"v_add_u32 {v(vV)}, {v(vT0)}, {v(vV)}")
    A(f"s_add_u32 {s(sIt)}, {s(sIt)}, 1")
    A(f"s_cmp_lt_u32 {s(sIt)}, {NT}")
    A(f"s_cbranch_scc1 KM_SLOOP")
    A(f"s_mov_b32 {s(sIt)}, -1")
    A.label("KM_FIN")
    if prio: A("s_setprio 0")
    K.stamp()
    if ks == 2:
        vM = [V.alloc(), V.alloc()]
        for b in range(2): A(f"v_sub_f32 {v(vM[b])}, 0, {v(QB[b]['C'])}")
        A(f"s_cmp_lg_u32 {s(sIt)}, -1")
        A(f"s_cbranch_scc1 KM_F1")
        for b in range(2): A(f"v_mov_b32 {v(vM[b])}, {v(QB[b]['C'])}")
        A.label("KM_F1")
        snd = QB[0]["S"][0]; kp = QB[0]["S"][1]
        A(f"s_cmp_eq_u32 {s(sKh)}, 0")
        A(f"s_cbranch_scc1 KM_F2")
        for r in range(9):
            A(f"v_mov_b32 {v(snd+r)}, {v(QB[0]['O']+r)}"); A(f"v_mov_b32 {v(kp+r)}, {v(QB[1]['O']+r)}")
        A(f"v_mov_b32 {v(snd+9)}, {v(vM[0])}"); A(f"v_mov_b32 {v(kp+9)}, {v(vM[1])}")
        A("s_branch KM_F3")
        A.label("KM_F2")
        for r in range(9):
            A(f"v_mov_b32 {v(snd+r)}, {v(QB[1]['O']+r)}"); A(f"v_mov_b32 {v(kp+r)}, {v(QB[0]['O']+r)}")
        A(f"v_mov_b32 {v(snd+9)}, {v(vM[1])}"); A(f"v_mov_b32 {v(kp+9)}, {v(vM[0])}")
        A.label("KM_F3")
        A("s_barrier")
        A(f"s_mul_i32 {s(sT0)}, {s(sW8)}, 2560")
        A(f"v_lshlrev_b32 {v(vT2)}, 2, {v(vLane)}")
        A(f"v_add_u32 {v(vT0)}, {s(sT0)}, {v(vT2)}")
        for r in range(10): A(f"ds_write_b32 {v(vT0)}, {v(snd+r)} offset:{r*256}")
        A("s_waitcnt lgkmcnt(0)")
        A("s_barrier")
        A(f"s_xor_b32 {s(sT0)}, {s(sW8)}, 4")
        A(f"s_mul_i32 {s(sT0)}, {s(sT0)}, 2560")
        A(f"v_add_u32 {v(vT0)}, {s(sT0)}, {v(vT2)}")
        for r in range(10): A(f"ds_read_b32 {v(snd+r)}, {v(vT0)} offset:{r*256}")
        A("s_waitcnt lgkmcnt(0)")
        A(f"v_max_f32 {v(vT0)}, {v(kp+9)}, {v(snd+9)}")
        A(f"v_sub_f32 {v(vT1)}, {v(kp+9)}, {v(vT0)}")
        A(f"v_sub_f32 {v(vT2)}, {v(snd+9)}, {v(vT0)}")
        A(f"v_exp_f32 {v(vT1)}, {v(vT1)}")
        A(f"v_exp_f32 {v(vT2)}, {v(vT2)}")
        for r in range(9): A(f"v_mul_f32 {v(kp+r)}, {v(vT1)}, {v(kp+r)}")
        for r in range(9): A(f"v_fmac_f32 {v(kp+r)}, {v(vT2)}, {v(snd+r)}")
        Of = kp
        A(f"s_add_u32 {s(sQt)}, {s(sQt)}, {s(sKh)}")
    else:
        Of = QB[0]["O"]
    if ZROW: swap_add(A, Of + 8, vT1)
    A(f"v_rcp_f32 {v(vT0)}, {v(Of+8)}")
    for r in range(8): A(f"v_mul_f32 {v(Of+r)}, {v(vT0)}, {v(Of+r)}")
    pk = QB[0]["P"]
    for i in range(4): A(f"v_cvt_pk_bf16_f32 {v(pk+i)}, {v(Of+2*i)}, {v(Of+2*i+1)}")
    A(f"s_lshl_b32 {s(sT0)}, {s(sQt)}, 15")
    A(f"s_lshl_b32 {s(sT1)}, {s(sHead)}, 10")
    A(f"s_add_u32 {s(sT0)}, {s(sT0)}, {s(sT1)}")
    A(f"s_add_u32 {s(sT0)}, {s(sT0)}, {WS_OF}")
    A(f"buffer_store_dwordx4 {v(pk,4)}, {v(vL16)}, {s(sO,4)}, {s(sT0)} offen sc1")
    A("s_waitcnt vmcnt(0)")
    A("s_barrier")
    K.stamp()
    V.release(mkV); S.release(mkS)
    sRt, sCt, sR128, sCt4, sTb, sTr, sTi, sQbS = [S.alloc() for _ in range(8)]
    A(f"s_mov_b32 {s(sQbS)}, {s(sJ2)}")
    A(f"s_mov_b32 {s(sXcd)}, {s(sXc)}")
    A(f"s_and_b32 {s(sJ)}, {s(sTk)}, 31")
    A(f"s_and_b32 {s(sJ3)}, {s(sJ)}, 3")
    A(f"s_lshr_b32 {s(sJ2)}, {s(sJ)}, 2")
    A(f"s_lshl_b32 {s(sRt)}, {s(sXcd)}, 2")
    A(f"s_add_u32 {s(sRt)}, {s(sRt)}, {s(sJ3)}")
    A(f"s_mov_b32 {s(sCt)}, {s(sJ2)}")
    A(f"s_and_b32 {s(sTr)}, {s(sW8)}, 1")
    A(f"s_bfe_u32 {s(sTb)}, {s(sW8)}, 0x10001")
    A(f"s_lshr_b32 {s(sTi)}, {s(sW8)}, 2")
    A(f"s_lshl_b32 {s(sR128)}, {s(sXcd)}, 1")
    A(f"s_and_b32 {s(sT0)}, {s(sJ)}, 1")
    A(f"s_add_u32 {s(sR128)}, {s(sR128)}, {s(sT0)}")
    A(f"s_lshr_b32 {s(sCt4)}, {s(sJ)}, 1")
    vBl = V.alloc(); vWoff = V.alloc(); vW1off = V.alloc()
    tr_pi_base(A, vBl, vLane, vHf, vT0, vT1)
    sB1, sB2 = S.alloc(), S.alloc()
    sRw1 = S.alloc(4); sRw2 = S.alloc(4)
    def dma_w1(p):
        A(f"s_lshl_b32 {s(sT1)}, {s(sW)}, 12")
        for c in range(4):
            for q in range(4):
                A(f"s_add_u32 m0, {s(sT1)}, {W1 + p*65536 + c*16384 + q*1024}")
                A(f"s_add_u32 {s(sT0)}, {s(sB1)}, {(128*c + 8*q)*3584 + p*128}")
                A(f"buffer_load_dwordx4 {v(vW1off)}, {s(sRw1,4)}, {s(sT0)} offen lds")
    def dma_w2(c):
        A(f"s_lshl_b32 {s(sT1)}, {s(sW)}, 15")
        for q in range(8):
            A(f"s_add_u32 m0, {s(sT1)}, {W2 + (c&3)*8192 + q*1024}")
            A(f"s_add_u32 {s(sT0)}, {s(sB2)}, {(64*c + 8*q)*1024}")
            A(f"buffer_load_dwordx4 {v(vWoff)}, {s(sRw2,4)}, {s(sT0)} offen lds")
    def dma_w1_all8(p):
        A(f"s_lshl_b32 {s(sT1)}, {s(sW8)}, 13")
        A(f"s_mul_i32 {s(sB)}, {s(sW8)}, {64*3584}")
        A(f"s_lshl_b32 {s(sT0)}, {s(sCt4)}, 8")
        A(f"s_add_u32 {s(sB)}, {s(sB)}, {s(sT0)}")
        for q in range(8):
            A(f"s_add_u32 m0, {s(sT1)}, {W1 + p*65536 + q*1024}")
            A(f"s_add_u32 {s(sT0)}, {s(sB)}, {8*q*3584 + p*128}")
            A(f"buffer_load_dwordx4 {v(vW1off)}, {s(sRw1,4)}, {s(sT0)} offen lds")
    def dma_w2_lo8():
        A(f"s_lshr_b32 {s(sT1)}, {s(sW8)}, 2")
        A(f"s_mul_i32 {s(sB)}, {s(sT1)}, {448*1024}")
        A(f"s_lshl_b32 {s(sT0)}, {s(sCt)}, 7")
        A(f"s_add_u32 {s(sB)}, {s(sB)}, {s(sT0)}")
        A(f"s_lshl_b32 {s(sT0)}, {s(sW)}, 16")
        A(f"s_add_u32 {s(sB)}, {s(sB)}, {s(sT0)}")
        A(f"s_lshl_b32 {s(sT1)}, {s(sW8)}, 13")
        for q in range(8):
            A(f"s_add_u32 m0, {s(sT1)}, {W2 + q*1024}")
            A(f"s_add_u32 {s(sT0)}, {s(sB)}, {8*q*1024}")
            A(f"buffer_load_dwordx4 {v(vWoff)}, {s(sRw2,4)}, {s(sT0)} offen lds")
    def dma_w2_hi_upper():
        A(f"s_lshr_b32 {s(sT1)}, {s(sW)}, 1")
        A(f"s_add_u32 {s(sT1)}, {s(sT1)}, 2")
        A(f"s_mul_i32 {s(sB)}, {s(sT1)}, {448*1024}")
        A(f"s_lshl_b32 {s(sT0)}, {s(sCt)}, 7")
        A(f"s_add_u32 {s(sB)}, {s(sB)}, {s(sT0)}")
        A(f"s_and_b32 {s(sT0)}, {s(sW)}, 1")
        A(f"s_lshl_b32 {s(sT0)}, {s(sT0)}, 17")
        A(f"s_add_u32 {s(sB)}, {s(sB)}, {s(sT0)}")
        A(f"s_lshl_b32 {s(sT1)}, {s(sW)}, 14")
        for q in range(16):
            A(f"s_add_u32 m0, {s(sT1)}, {W2 + 65536 + q*1024}")
            A(f"s_add_u32 {s(sT0)}, {s(sB)}, {8*q*1024}")
            A(f"buffer_load_dwordx4 {v(vWoff)}, {s(sRw2,4)}, {s(sT0)} offen lds")
    sW2b, sW2l = S.alloc(), S.alloc()
    def w2_all16_setup():
        A(f"s_lshr_b32 {s(sT1)}, {s(sW8)}, 1")
        A(f"s_mul_i32 {s(sW2b)}, {s(sT1)}, {448*1024}")
        A(f"s_lshl_b32 {s(sT0)}, {s(sCt)}, 7")
        A(f"s_add_u32 {s(sW2b)}, {s(sW2b)}, {s(sT0)}")
        A(f"s_and_b32 {s(sT0)}, {s(sW8)}, 1")
        A(f"s_lshl_b32 {s(sT0)}, {s(sT0)}, 17")
        A(f"s_add_u32 {s(sW2b)}, {s(sW2b)}, {s(sT0)}")
        A(f"s_lshl_b32 {s(sW2l)}, {s(sW8)}, 14")
    def w2_piece(pc):
        A(f"s_add_u32 m0, {s(sW2l)}, {W2 + pc*1024}")
        A(f"s_add_u32 {s(sW2b)}, {s(sW2b)}, {8192 if pc else 0}")
        A(f"buffer_load_dwordx4 {v(vWoff)}, {s(sRw2,4)}, {s(sW2b)} offen lds")
    def if_upper(tag, body):
        A(f"s_cmp_lt_u32 {s(sW8)}, 4")
        A(f"s_cbranch_scc1 KM_NU_{tag}")
        body()
        A.label(f"KM_NU_{tag}")
    def dma_wo():
        mk = V.mark()
        vXoff = V.alloc()
        A(f"s_and_b32 {s(sT0)}, {s(sW)}, 1")
        A(f"s_lshl_b32 {s(sT0)}, {s(sT0)}, 2")
        A(f"v_lshrrev_b32 {v(vT0)}, 4, {v(vLane)}")
        A(f"v_or_b32 {v(vT0)}, {s(sT0)}, {v(vT0)}")
        A(f"v_and_b32 {v(vT1)}, 7, {v(vLane)}")
        A(f"v_xor_b32 {v(vT0)}, {v(vT0)}, {v(vT1)}")
        A(f"v_lshlrev_b32 {v(vT0)}, 4, {v(vT0)}")
        A(f"v_lshrrev_b32 {v(vT1)}, 3, {v(vLane)}")
        A(f"v_lshlrev_b32 {v(vT1)}, 10, {v(vT1)}")
        A(f"v_add_u32 {v(vXoff)}, {v(vT0)}, {v(vT1)}")
        srd(A, sRa, sPwo, 512 * 512 * 2)
        srd(A, sRb, sPx, 2048 * 512 * 2)
        A(f"s_lshl_b32 {s(sB)}, {s(sW)}, 17")
        A(f"s_lshl_b32 {s(sT0)}, {s(sCt)}, 7")
        A(f"s_add_u32 {s(sB)}, {s(sB)}, {s(sT0)}")
        A(f"s_lshl_b32 {s(sT1)}, {s(sW)}, 14")
        for g in range(16):
            A(f"s_add_u32 m0, {s(sT1)}, {WO + g*1024}")
            A(f"s_add_u32 {s(sT0)}, {s(sB)}, {g*8192}")
            A(f"buffer_load_dwordx4 {v(vWoff)}, {s(sRa,4)}, {s(sT0)} offen lds")
        A(f"s_lshl_b32 {s(sB)}, {s(sRt)}, 16")
        A(f"s_lshl_b32 {s(sT0)}, {s(sCt)}, 7")
        A(f"s_add_u32 {s(sB)}, {s(sB)}, {s(sT0)}")
        A(f"s_lshl_b32 {s(sT0)}, {s(sW)}, 13")
        A(f"s_add_u32 {s(sB)}, {s(sB)}, {s(sT0)}")
        A(f"s_lshl_b32 {s(sT1)}, {s(sW)}, 10")
        for n in range(2):
            A(f"s_add_u32 m0, {s(sT1)}, {XT + n*4096}")
            A(f"s_add_u32 {s(sT0)}, {s(sB)}, {n*32768}")
            A(f"buffer_load_dwordx4 {v(vXoff)}, {s(sRb,4)}, {s(sT0)} offen lds")
        A(f"s_mul_i32 {s(sB1)}, {s(sW)}, {32*3584}")
        A(f"s_lshl_b32 {s(sT0)}, {s(sCt4)}, 8")
        A(f"s_add_u32 {s(sB1)}, {s(sB1)}, {s(sT0)}")
        A(f"s_mul_i32 {s(sB2)}, {s(sW)}, {448*1024}")
        A(f"s_lshl_b32 {s(sT0)}, {s(sCt)}, 7")
        A(f"s_add_u32 {s(sB2)}, {s(sB2)}, {s(sT0)}")
        A("s_waitcnt vmcnt(0)")
        V.release(mk)
    w_voff(A, vWoff, vLane, 1024, vT0, vT1)
    w_voff(A, vW1off, vLane, 3584, vT0, vT1)
    srd(A, sRw1, sP1, 512 * 1792 * 2)
    srd(A, sRw2, sP2, 1792 * 512 * 2)
    if_upper("wo", dma_wo)
    def w0_sync2():
        cnt_off(sCn, 0, lambda d: A(f"s_mov_b32 {s(d)}, {s(sQbS)}"))
        def slot2():
            A(f"s_and_b32 {s(sT0)}, s2, 7")
            A(f"s_lshl_b32 {s(sT0)}, {s(sT0)}, 2")
            A(f"s_bfe_u32 {s(sT1)}, s2, 0x20003")
            A(f"s_add_u32 {s(sT0)}, {s(sT0)}, {s(sT1)}")
        signal(sCn, slot=slot2)
        cnt_off(sCn, 0, lambda d: A(f"s_mov_b32 {s(d)}, {s(sXcd)}"))
        poll(sCn, 32, "2")
    hpk4 = hpk
    mkC = V.mark()
    Af = [V.alloc(4) for _ in range(8)]
    acc = [V.alloc(16) for _ in range(2)]
    Bf = [[V.alloc(4) for _ in range(2)] for _ in range(2)]
    vB = V.alloc(); xr = V.alloc(4)
    sKq = S.alloc()
    A(f"s_lshr_b32 {s(sKq)}, {s(sW8)}, 1")
    A(f"s_lshl_b32 {s(sT0)}, {s(sKq)}, 14")
    A(f"v_add_u32 {v(vB)}, {s(sT0)}, {v(vBl)}")
    A(f"s_lshl_b32 {s(sB)}, {s(sRt)}, 16")
    A(f"s_lshl_b32 {s(sT0)}, {s(sTr)}, 15")
    A(f"s_add_u32 {s(sB)}, {s(sB)}, {s(sT0)}")
    A(f"s_lshl_b32 {s(sT0)}, {s(sKq)}, 13")
    A(f"s_add_u32 {s(sB)}, {s(sB)}, {s(sT0)}")
    A(f"s_add_u32 {s(sB)}, {s(sB)}, {WS_OF}")
    sB4 = S.alloc()
    A(f"s_add_u32 {s(sB4)}, {s(sB)}, 4096")
    only_wave0("2", w0_sync2)
    A("s_barrier")
    K.stamp()
    for i in range(8):
        A(f"buffer_load_dwordx4 {v(Af[i],4)}, {v(vL16)}, {s(sO,4)}, {s(sB if i < 4 else sB4)} offen offset:{(i&3)*1024} sc1")
    def rd3(i):
        for b in range(2):
            A(f"ds_read_b64_tr_b16 {v(Bf[i&1][b],2)}, {v(vB)} offset:{WO + i*2048 + b*512}")
            A(f"ds_read_b64_tr_b16 {v(Bf[i&1][b]+2,2)}, {v(vB)} offset:{WO + i*2048 + b*512 + 1024}")
    rd3(0)
    A(f"v_lshrrev_b32 {v(vT2)}, 1, {v(vTok)}")
    A(f"v_and_b32 {v(vT2)}, 7, {v(vT2)}")
    A(f"s_lshl_b32 {s(sT0)}, {s(sTr)}, 12")
    A(f"s_add_u32 {s(sT0)}, {s(sT0)}, {XT}")
    A(f"v_lshlrev_b32 {v(vT1)}, 7, {v(vTok)}")
    A(f"v_lshl_add_u32 {v(vT1)}, {v(vHf)}, 3, {v(vT1)}")
    A(f"v_add_u32 {v(vT1)}, {s(sT0)}, {v(vT1)}")
    A(f"s_lshl_b32 {s(sT1)}, {s(sTb)}, 2")
    A(f"s_lshl_b32 {s(sT0)}, {s(sTi)}, 1")
    A(f"s_add_u32 {s(sT1)}, {s(sT1)}, {s(sT0)}")
    for a_ in range(2):
        A(f"s_add_u32 {s(sT0)}, {s(sT1)}, {a_}")
        A(f"v_xor_b32 {v(vT0)}, {s(sT0)}, {v(vT2)}")
        A(f"v_lshl_add_u32 {v(vT0)}, {v(vT0)}, 4, {v(vT1)}")
        A(f"ds_read_b64 {v(xr+2*a_,2)}, {v(vT0)}")
    for i in range(8):
        if i + 1 < 8:
            rd3(i + 1)
            A(f"s_waitcnt lgkmcnt(4)")
        else:
            A(f"s_waitcnt lgkmcnt(0)")
        A(f"s_waitcnt vmcnt({7-i})")
        for b in range(2):
            A(f"v_mfma_f32_32x32x16_bf16 {v(acc[b],16)}, {v(Bf[i&1][b],4)}, {v(Af[i],4)}, {'0' if i == 0 else v(acc[b],16)}")
    A(f"s_lshl_b32 {s(sT0)}, {s(sTr)}, 14")
    A(f"s_lshl_b32 {s(sT1)}, {s(sKq)}, 12")
    A(f"s_add_u32 {s(sT0)}, {s(sT0)}, {s(sT1)}")
    A(f"s_add_u32 {s(sT0)}, {s(sT0)}, {RED}")
    A(f"v_add_u32 {v(vT0)}, {s(sT0)}, {v(vL16)}")
    for b in range(2):
        for q in range(4):
            A(f"ds_write_b128 {v(vT0)}, {v(acc[b]+4*q,4)} offset:{b*32768 + q*1024}")
    A("s_waitcnt lgkmcnt(0)")
    A("s_barrier")
    K.stamp()
    def own_reduce(REDB, dst):
        A(f"s_lshl_b32 {s(sT0)}, {s(sW)}, 14")
        A(f"s_lshl_b32 {s(sT1)}, {s(sTi)}, 11")
        A(f"s_add_u32 {s(sT0)}, {s(sT0)}, {s(sT1)}")
        A(f"s_add_u32 {s(sT0)}, {s(sT0)}, {REDB}")
        A(f"v_add_u32 {v(vT0)}, {s(sT0)}, {v(vL16)}")
        for p in range(4):
            for q in range(2):
                A(f"ds_read_b128 {v(dst+8*p+4*q,4)}, {v(vT0)} offset:{p*4096 + q*1024}")
        A("s_waitcnt lgkmcnt(4)")
        for r in range(8): A(f"v_add_f32 {v(dst+r)}, {v(dst+r)}, {v(dst+8+r)}")
        A("s_waitcnt lgkmcnt(0)")
        for r in range(8): A(f"v_add_f32 {v(dst+16+r)}, {v(dst+16+r)}, {v(dst+24+r)}")
        for r in range(8): A(f"v_add_f32 {v(dst+r)}, {v(dst+r)}, {v(dst+16+r)}")
    def w1p0():
        A(f"s_cmp_ge_u32 {s(sJ)}, 28")
        A(f"s_cbranch_scc1 KM_NW1A")
        dma_w1(0)
        A.label("KM_NW1A")
    out = Af[0]
    own_reduce(RED, out)
    un = acc[0]
    for i in range(4):
        A(f"v_lshlrev_b32 {v(un+2*i)}, 16, {v(xr+i)}")
        A(f"v_and_b32 {v(un+2*i+1)}, 0xffff0000, {v(xr+i)}")
    for r in range(8): A(f"v_add_f32 {v(out+r)}, {v(out+r)}, {v(un+r)}")
    for i in range(4): A(f"v_cvt_pk_bf16_f32 {v(hpk4+i)}, {v(out+2*i)}, {v(out+2*i+1)}")
    sR32o, sKs = S.alloc(), S.alloc()
    A(f"s_lshl_b32 {s(sR32o)}, {s(sRt)}, 1")
    A(f"s_add_u32 {s(sR32o)}, {s(sR32o)}, {s(sTr)}")
    A(f"s_lshl_b32 {s(sKs)}, {s(sCt)}, 2")
    A(f"s_lshl_b32 {s(sT0)}, {s(sTb)}, 1")
    A(f"s_add_u32 {s(sKs)}, {s(sKs)}, {s(sT0)}")
    A(f"s_add_u32 {s(sKs)}, {s(sKs)}, {s(sTi)}")
    A(f"s_lshl_b32 {s(sB)}, {s(sR32o)}, 15")
    A(f"s_lshl_b32 {s(sT0)}, {s(sKs)}, 10")
    A(f"s_add_u32 {s(sB)}, {s(sB)}, {s(sT0)}")
    A(f"s_add_u32 {s(sB)}, {s(sB)}, {WS_HF}")
    A(f"buffer_store_dwordx4 {v(hpk4,4)}, {v(vL16)}, {s(sO,4)}, {s(sB)} offen" + LSC)
    for i in range(4):
        A(f"v_lshlrev_b32 {v(un+2*i)}, 16, {v(hpk4+i)}")
        A(f"v_and_b32 {v(un+2*i+1)}, 0xffff0000, {v(hpk4+i)}")
    st = acc[1]
    A(f"v_add_f32 {v(st)}, {v(un)}, {v(un+1)}")
    A(f"v_mul_f32 {v(st+1)}, {v(un)}, {v(un)}")
    A(f"v_fmac_f32 {v(st+1)}, {v(un+1)}, {v(un+1)}")
    for r in range(2, 8):
        A(f"v_add_f32 {v(st)}, {v(st)}, {v(un+r)}")
        A(f"v_fmac_f32 {v(st+1)}, {v(un+r)}, {v(un+r)}")
    swap_add(A, st, vT1)
    swap_add(A, st + 1, vT2)
    A(f"s_lshl_b32 {s(sT0)}, {s(sW8)}, 8")
    A(f"s_add_u32 {s(sT0)}, {s(sT0)}, {STP}")
    A(f"v_lshl_add_u32 {v(vT0)}, {v(vTok)}, 3, {s(sT0)}")
    A(f"ds_write_b64 {v(vT0)}, {v(st,2)}")
    A("s_waitcnt lgkmcnt(0)")
    A("s_barrier")
    A(f"s_cmp_ge_u32 {s(sW8)}, 2")
    A(f"s_cbranch_scc1 KM_NHS")
    for p in range(4): A(f"ds_read_b64 {v(st+2*p,2)}, {v(vT0)} offset:{p*512}")
    A("s_waitcnt lgkmcnt(0)")
    for c in range(2):
        A(f"v_add_f32 {v(st+c)}, {v(st+c)}, {v(st+2+c)}")
        A(f"v_add_f32 {v(st+4+c)}, {v(st+4+c)}, {v(st+6+c)}")
    for c in range(2): A(f"v_add_f32 {v(st+c)}, {v(st+c)}, {v(st+4+c)}")
    A(f"s_lshl_b32 {s(sT0)}, {s(sR32o)}, 11")
    A(f"s_lshl_b32 {s(sT1)}, {s(sCt)}, 8")
    A(f"s_add_u32 {s(sT0)}, {s(sT0)}, {s(sT1)}")
    A(f"s_add_u32 {s(sT0)}, {s(sT0)}, {WS_HS}")
    A(f"v_lshlrev_b32 {v(vT0)}, 3, {v(vTok)}")
    A("s_mov_b32 exec_hi, 0")
    A(f"buffer_store_dwordx2 {v(st,2)}, {v(vT0)}, {s(sO,4)}, {s(sT0)} offen" + LSC)
    A("s_mov_b64 exec, -1")
    A.label("KM_NHS")
    A(f"s_cmp_ge_u32 {s(sJ)}, 28")
    A(f"s_cbranch_scc1 KM_NW1A")
    dma_w1_all8(0)
    A("s_waitcnt vmcnt(8) lgkmcnt(0)")
    A("s_branch KM_NW1B")
    A.label("KM_NW1A")
    if W2R:
        A("s_waitcnt vmcnt(0) lgkmcnt(0)")
    else:
        dma_w2_lo8()
        A("s_waitcnt vmcnt(8) lgkmcnt(0)")
    A.label("KM_NW1B")
    A("s_barrier")
    K.stamp()
    V.release(mkC)
    def sig3():
        def idx(d):
            A(f"s_lshl_b32 {s(d)}, {s(sXcd)}, 1")
            A(f"s_lshr_b32 {s(sT0)}, {s(sJ3)}, 1")
            A(f"s_add_u32 {s(d)}, {s(d)}, {s(sT0)}")
        cnt_off(sCn, 2048, idx)
        def slot3():
            A(f"s_and_b32 {s(sT0)}, {s(sJ3)}, 1")
            A(f"s_lshl_b32 {s(sT0)}, {s(sT0)}, 3")
            A(f"s_add_u32 {s(sT0)}, {s(sT0)}, {s(sJ2)}")
        signal(sCn, LOCAL, slot=slot3)
    only_wave0("3s", sig3)
    A(f"s_cmp_ge_u32 {s(sJ)}, 28")
    A(f"s_cbranch_scc1 KM_NOP4")
    if_upper("w1", lambda: dma_w1(1))
    A("s_waitcnt vmcnt(0)") if False else None
    def w0_sync3():
        cnt_off(sCn, 2048, lambda d: A(f"s_mov_b32 {s(d)}, {s(sR128)}"))
        poll(sCn, 16, "3")
    mk4 = V.mark()
    Af = [V.alloc(4) for _ in range(16)]
    acc = [V.alloc(16) for _ in range(4)]
    Bf = [[V.alloc(4) for _ in range(4)] for _ in range(2)]
    csa = [V.alloc(4)]; msk = V.alloc(4)
    vB = [V.alloc() for _ in range(4)]; vB2 = [V.alloc() for _ in range(4)]
    hs = V.alloc(8); vb1 = V.alloc()
    sR32 = S.alloc(); sQ = [S.alloc() for _ in range(4)]
    srd(A, sRa, sP1 + 2, 1792 * 2)
    A(f"s_lshl_b32 {s(sR32)}, {s(sR128)}, 2")
    A(f"s_add_u32 {s(sR32)}, {s(sR32)}, {s(sW)}")
    A(f"v_lshlrev_b32 {v(vT1)}, 2, {v(vLane)}")
    A(f"s_lshl_b32 {s(sT1)}, {s(sCt4)}, 8")
    A(f"buffer_load_dword {v(vb1)}, {v(vT1)}, {s(sRa,4)}, {s(sT1)} offen")
    for q in range(4):
        A(f"s_xor_b32 {s(sQ[q])}, {s(sW)}, {q}")
        A(f"s_lshl_b32 {s(sQ[q])}, {s(sQ[q])}, 10")
    A(f"s_lshl_b32 {s(sT1)}, {s(sTi)}, 15")
    for q in range(4):
        A(f"s_lshl_b32 {s(sT0)}, {s(sQ[q])}, 1")
        A(f"s_add_u32 {s(sT0)}, {s(sT0)}, {s(sT1)}")
        A(f"v_add_u32 {v(vB[q])}, {s(sT0)}, {v(vBl)}")
        A(f"v_add_u32 {v(vB2[q])}, 65536, {v(vB[q])}")
    A(f"s_cmp_lt_u32 {s(sW8)}, 2")
    A(f"s_cbranch_scc1 KM_NCS")
    A(f"s_cmp_ge_u32 {s(sW8)}, 4")
    A(f"s_cbranch_scc1 KM_NCS")
    A(f"s_and_b32 {s(sT0)}, {s(sW8)}, 1")
    A(f"s_lshl_b32 {s(sT0)}, {s(sT0)}, 8")
    A(f"v_lshlrev_b32 {v(vT1)}, 2, {v(vLane)}")
    A(f"v_add_u32 {v(vT1)}, {s(sT0)}, {v(vT1)}")
    A(f"s_lshl_b32 {s(sT0)}, {s(sCt4)}, 9")
    A(f"s_add_u32 {s(sT0)}, {s(sT0)}, {WS_CSG}")
    for kc in range(8):
        A(f"buffer_load_dword {v(hs+kc)}, {v(vT1)}, {s(sO,4)}, {s(sT0)} offen")
        if kc < 7: A(f"s_add_u32 {s(sT0)}, {s(sT0)}, 7168")
    A("s_waitcnt vmcnt(0)")
    for st_ in (4, 2, 1):
        for i in range(st_): A(f"v_add_f32 {v(hs+i)}, {v(hs+i)}, {v(hs+i+st_)}")
    A(f"v_add_u32 {v(vT1)}, {CS}, {v(vT1)}")
    A(f"ds_write_b32 {v(vT1)}, {v(hs)}")
    A.label("KM_NCS")
    A("s_waitcnt vmcnt(0)")
    A(f"v_lshlrev_b32 {v(hs+2)}, 16, {v(vb1)}")
    A(f"v_and_b32 {v(hs+3)}, 0xffff0000, {v(vb1)}")
    A(f"v_lshlrev_b32 {v(vT0)}, 3, {v(vLane)}")
    A(f"v_add_u32 {v(vT0)}, {BI}, {v(vT0)}")
    A(f"ds_write_b64 {v(vT0)}, {v(hs+2,2)}")
    A(f"s_lshl_b32 {s(sB)}, {s(sR32)}, 15")
    A(f"s_lshl_b32 {s(sT0)}, {s(sTi)}, 14")
    A(f"s_add_u32 {s(sB)}, {s(sB)}, {s(sT0)}")
    A(f"s_add_u32 {s(sB)}, {s(sB)}, {WS_HF}")
    sHs = S.alloc()
    A(f"s_lshl_b32 {s(sHs)}, {s(sR32)}, 11")
    A(f"s_add_u32 {s(sHs)}, {s(sHs)}, {WS_HS}")
    A(f"v_lshlrev_b32 {v(vT2)}, 3, {v(vTok)}")
    A(f"v_lshl_add_u32 {v(vT2)}, {v(vHf)}, 10, {v(vT2)}")
    for q in range(4): A(f"s_add_u32 {s(sQ[q])}, {s(sQ[q])}, {s(sB)}")
    A("s_waitcnt vmcnt(0) lgkmcnt(0)")
    only_wave0("3", w0_sync3)
    K.stamp(1)
    A("s_barrier")
    K.stamp()
    def lda4(g):
        for q in range(4):
            if g: A(f"s_add_u32 {s(sQ[q])}, {s(sQ[q])}, 4096")
            A(f"buffer_load_dwordx4 {v(Af[4*g+q],4)}, {v(vL16)}, {s(sO,4)}, {s(sQ[q])} offen" + LLD)
    lda4(0)
    for i in range(4):
        A(f"buffer_load_dwordx2 {v(hs+2*i,2)}, {v(vT2)}, {s(sO,4)}, {s(sHs)} offen offset:{i*256}" + LLD)
    lda4(1)
    def rd4(n):
        for t in range(4):
            p, b = t >> 1, t & 1
            o = (n >> 2) * 8192 + b * 512
            base = (vB if p == 0 else vB2)[n & 3]
            A(f"ds_read_b64_tr_b16 {v(Bf[n&1][t],2)}, {v(base)} offset:{o}")
            A(f"ds_read_b64_tr_b16 {v(Bf[n&1][t]+2,2)}, {v(base)} offset:{o+1024}")
    rd4(0)
    A(f"v_lshlrev_b32 {v(acc[0])}, 16, {v(vb1)}") if False else None
    for n in range(16):
        if n + 1 < 16:
            rd4(n + 1)
            A("s_waitcnt lgkmcnt(8)")
        else:
            A("s_waitcnt lgkmcnt(0)")
        if n % 4 == 0: A(f"s_waitcnt vmcnt({ {0: 8, 4: 8, 8: 4, 12: 0}[n] })")
        for t in range(4):
            A(f"v_mfma_f32_32x32x16_bf16 {v(acc[t],16)}, {v(Bf[n&1][t],4)}, {v(Af[n],4)}, {'0' if n == 0 else v(acc[t],16)}")
        if n in (0, 1): lda4(n + 2)
    K.stamp()
    for st_ in (2, 1):
        for i in range(st_):
            A(f"v_add_f32 {v(hs+2*i)}, {v(hs+2*i)}, {v(hs+2*(i+st_))}")
            A(f"v_add_f32 {v(hs+2*i+1)}, {v(hs+2*i+1)}, {v(hs+2*(i+st_)+1)}")
    swap_add(A, hs, vT1)
    swap_add(A, hs + 1, vT2)
    A("s_waitcnt lgkmcnt(0)")
    A("s_barrier")
    A(f"s_lshl_b32 {s(sT0)}, {s(sW8)}, 13")
    A(f"s_add_u32 {s(sT0)}, {s(sT0)}, 65536")
    A(f"v_add_u32 {v(vT0)}, {s(sT0)}, {v(vL16)}")
    A(f"s_cmp_eq_u32 {s(sTi)}, 0")
    A(f"s_cbranch_scc1 KM_E1")
    for t in range(2):
        for q in range(4): A(f"ds_write_b128 {v(vT0)}, {v(acc[t]+4*q,4)} offset:{t*4096 + q*1024}")
    for r in range(32): A(f"v_mov_b32 {v(acc[0]+r)}, {v(acc[2]+r)}")
    A("s_branch KM_E2")
    A.label("KM_E1")
    for t in range(2):
        for q in range(4): A(f"ds_write_b128 {v(vT0)}, {v(acc[2+t]+4*q,4)} offset:{t*4096 + q*1024}")
    A.label("KM_E2")
    A("s_waitcnt lgkmcnt(0)")
    A("s_barrier")
    K.stamp()
    A(f"s_xor_b32 {s(sT0)}, {s(sW8)}, 4")
    A(f"s_lshl_b32 {s(sT0)}, {s(sT0)}, 13")
    A(f"s_add_u32 {s(sT0)}, {s(sT0)}, 65536")
    A(f"v_add_u32 {v(vT0)}, {s(sT0)}, {v(vL16)}")
    for t in range(2):
        for q in range(4): A(f"ds_read_b128 {v(acc[2+t]+4*q,4)}, {v(vT0)} offset:{t*4096 + q*1024}")
    def R(i): return Af[0] + 16 * i
    A(f"s_lshl_b32 {s(sT0)}, {s(sTi)}, 8")
    A(f"s_add_u32 {s(sT0)}, {s(sT0)}, {CS}")
    A(f"v_lshl_add_u32 {v(vT2)}, {v(vHf)}, 4, {s(sT0)}")
    for t in range(2):
        for a_ in range(4): A(f"ds_read_b128 {v(R(t)+4*a_,4)}, {v(vT2)} offset:{t*128 + a_*32}")
    A("s_waitcnt lgkmcnt(8)")
    vMean, vRs, vMr = csa[0], csa[0] + 1, csa[0] + 2
    vC1, vC2 = msk, msk + 1
    c1 = -2.0 * 0.7978845608028654 * LOG2E
    c2 = c1 * 0.044715
    A(f"v_mul_f32 {v(vMean)}, {f2u(1/512.):#x}, {v(hs)}")
    A(f"v_mul_f32 {v(vT1)}, {v(vMean)}, {v(vMean)}")
    A(f"v_mov_b32 {v(vT0)}, {f2u(1/512.):#x}")
    A(f"v_fma_f32 {v(vT1)}, {v(hs+1)}, {v(vT0)}, -{v(vT1)}")
    A(f"v_max_f32 {v(vT1)}, 0, {v(vT1)}")
    A(f"v_add_f32 {v(hs+2)}, {f2u(1e-5):#x}, {v(vT1)}")
    A(f"v_rcp_f32 {v(vT0)}, {v(hs+2)}")
    A(f"v_rsq_f32 {v(vRs)}, {v(hs+2)}")
    A(f"v_mul_f32 {v(vT1)}, {v(vT1)}, {v(vT0)}")
    A(f"v_add_f32 {v(vT1)}, {f2u(1e-5):#x}, {v(vT1)}")
    A(f"v_rsq_f32 {v(vT1)}, {v(vT1)}")
    A(f"v_mov_b32 {v(vC1)}, {f2u(c1):#x}")
    A(f"v_mov_b32 {v(vC2)}, {f2u(c2):#x}")
    A(f"v_mul_f32 {v(vRs)}, {v(vRs)}, {v(vT1)}")
    A(f"v_mul_f32 {v(vMr)}, {v(vMean)}, {v(vRs)}")
    for t in range(2):
        for a_ in range(4): A(f"ds_read_b128 {v(R(2+t)+4*a_,4)}, {v(vT2)} offset:{512 + t*128 + a_*32}")
    if W2R:
        A("s_waitcnt lgkmcnt(8)")
        A("s_barrier")
        w2_all16_setup()
    for r in range(32): A(f"v_add_f32 {v(acc[0]+r)}, {v(acc[0]+r)}, {v(acc[2]+r)}")
    A(f"s_mul_i32 {s(sB)}, {s(sR32)}, {112*1024}")
    A(f"s_lshl_b32 {s(sT0)}, {s(sCt4)}, 13")
    A(f"s_add_u32 {s(sB)}, {s(sB)}, {s(sT0)}")
    A(f"s_lshl_b32 {s(sT0)}, {s(sTi)}, 12")
    A(f"s_add_u32 {s(sB)}, {s(sB)}, {s(sT0)}")
    A(f"s_add_u32 {s(sB)}, {s(sB)}, {WS_MF}")
    A("s_waitcnt lgkmcnt(0)")
    pcs = list(range(16)) if W2R else []
    def dm():
        for _ in range(2):
            if pcs: w2_piece(pcs.pop(0))
    for t in range(2):
        x = acc[t]; T = R(2 + t); Z = acc[2 + t]
        for r in range(16): A(f"v_fma_f32 {v(T+r)}, -{v(vMr)}, {v(R(t)+r)}, {v(T+r)}")
        dm()
        for r in range(16): A(f"v_fma_f32 {v(x+r)}, {v(x+r)}, {v(vRs)}, {v(T+r)}")
        dm()
        for r in range(16): A(f"v_mul_f32 {v(Z+r)}, {v(x+r)}, {v(x+r)}")
        dm()
        for r in range(16): A(f"v_fma_f32 {v(Z+r)}, {v(Z+r)}, {v(vC2)}, {v(vC1)}")
        dm()
        for r in range(16): A(f"v_mul_f32 {v(Z+r)}, {v(Z+r)}, {v(x+r)}")
        dm()
        for r in range(16): A(f"v_exp_f32 {v(Z+r)}, {v(Z+r)}")
        dm()
        for r in range(16): A(f"v_add_f32 {v(Z+r)}, 1.0, {v(Z+r)}")
        dm()
        for r in range(16): A(f"v_rcp_f32 {v(Z+r)}, {v(Z+r)}")
        dm()
        for r in range(16): A(f"v_mul_f32 {v(x+r)}, {v(x+r)}, {v(Z+r)}")
        pk = R(t)
        for i in range(8): A(f"v_cvt_pk_bf16_f32 {v(pk+i)}, {v(x+2*i)}, {v(x+2*i+1)}")
        A(f"buffer_store_dwordx4 {v(pk,4)}, {v(vL16)}, {s(sO,4)}, {s(sB)} offen offset:{t*2048}" + LSC)
        A(f"buffer_store_dwordx4 {v(pk+4,4)}, {v(vL16)}, {s(sO,4)}, {s(sB)} offen offset:{t*2048+1024}" + LSC)
    assert not pcs
    if W2R:
        A("s_waitcnt vmcnt(0)")
    else:
        dma_w2_lo8()
        A("s_waitcnt vmcnt(8)")
    A("s_barrier")
    K.stamp()
    def sig4():
        cnt_off(sCn, 6144, lambda d: A(f"s_mov_b32 {s(d)}, {s(sR128)}"))
        signal(sCn, LOCAL, slot=lambda: A(f"s_mov_b32 {s(sT0)}, {s(sCt4)}"))
    only_wave0("4s", sig4)
    V.release(mk4)
    if W2R:
        A("s_branch KM_P5")
        A.label("KM_NOP4")
        w2_all16_setup()
        for pc in range(16): w2_piece(pc)
        A.label("KM_P5")
    else:
        A.label("KM_NOP4")
    mkPR = V.mark()
    PR = V.alloc(96)
    V.release(mkPR)
    def w2_regs():
        for pc in range(24):
            A(f"s_add_u32 {s(sT0)}, {s(sB2)}, {(256 + 8*pc)*1024}")
            A(f"buffer_load_dwordx4 {v(PR+4*pc,4)}, {v(vWoff)}, {s(sRw2,4)}, {s(sT0)} offen")
    if_upper("w2", w2_regs if W2R else dma_w2_hi_upper)
    def w0_sync4():
        def idx(d):
            A(f"s_lshl_b32 {s(d)}, {s(sXcd)}, 1")
            A(f"s_lshr_b32 {s(sT0)}, {s(sJ3)}, 1")
            A(f"s_add_u32 {s(d)}, {s(d)}, {s(sT0)}")
        cnt_off(sCn, 6144, idx)
        poll(sCn, 14, "4")
    NW = 12
    Af = [[V.alloc(4) for _ in range(2)] for _ in range(NW)]
    acc = [V.alloc(16) for _ in range(4)]
    Bf = [[V.alloc(4) for _ in range(2)] for _ in range(2)]
    vB = V.alloc(); b2r = V.alloc(4)
    sA0, sA1 = S.alloc(), S.alloc()
    srd(A, sRa, sP2 + 2, 512 * 2)
    srd(A, sRb, sPo, 2048 * 512 * 2)
    A(f"s_lshl_b32 {s(sT0)}, {s(sCt)}, 7")
    A(f"s_lshl_b32 {s(sT1)}, {s(sTb)}, 6")
    A(f"s_add_u32 {s(sT0)}, {s(sT0)}, {s(sT1)}")
    A(f"s_lshl_b32 {s(sT1)}, {s(sTi)}, 5")
    A(f"s_add_u32 {s(sT0)}, {s(sT0)}, {s(sT1)}")
    A(f"v_lshlrev_b32 {v(vT0)}, 3, {v(vHf)}")
    for a_ in range(2):
        A(f"buffer_load_dwordx2 {v(b2r+2*a_,2)}, {v(vT0)}, {s(sRa,4)}, {s(sT0)} offen offset:{a_*16}")
    A(f"s_cmp_lt_u32 {s(sW8)}, 4")
    A(f"s_cbranch_scc1 KM_C5")
    A("s_waitcnt vmcnt(0)")
    A("s_barrier")
    if W2R:
        A(f"s_lshl_b32 {s(sT0)}, {s(sW)}, 15")
        A(f"v_add_u32 {v(vT0)}, {s(sT0)}, {v(vL16)}")
    for y in range(1, 7):
        if y >= 4: A(f"s_waitcnt lgkmcnt(0)" if W2R else f"s_waitcnt vmcnt({8*(6-y)})")
        A("s_barrier")
        if y + 3 < 7:
            if W2R:
                c = y + 3
                for q in range(8):
                    A(f"ds_write_b128 {v(vT0)}, {v(PR+4*(8*(c-4)+q),4)} offset:{W2 + (c&3)*8192 + q*1024}")
            else:
                dma_w2(y + 3)
    A("s_barrier")
    A("s_branch KM_Z")
    A.label("KM_C5")
    A(f"s_mul_i32 {s(sA0)}, {s(sRt)}, {2*112*1024}")
    A(f"s_mul_i32 {s(sT0)}, {s(sW)}, {28*1024}")
    A(f"s_add_u32 {s(sA0)}, {s(sA0)}, {s(sT0)}")
    A(f"s_add_u32 {s(sA0)}, {s(sA0)}, {WS_MF}")
    A(f"s_add_u32 {s(sA1)}, {s(sA0)}, {112*1024}")
    A(f"s_lshl_b32 {s(sT0)}, {s(sW)}, 15")
    A(f"v_add_u32 {v(vB)}, {s(sT0)}, {v(vBl)}")
    def lda(n):
        for r, sa in ((0, sA0), (1, sA1)):
            if n % 4 == 0 and n: A(f"s_add_u32 {s(sa)}, {s(sa)}, 4096")
            A(f"buffer_load_dwordx4 {v(Af[n % NW][r],4)}, {v(vL16)}, {s(sO,4)}, {s(sa)} offen offset:{(n&3)*1024}" + LLD)
    def rd5(n):
        c, i = n >> 2, n & 3
        for b in range(2):
            o = W2 + (c & 3) * 8192 + i * 2048 + b * 512
            A(f"ds_read_b64_tr_b16 {v(Bf[n&1][b],2)}, {v(vB)} offset:{o}")
            A(f"ds_read_b64_tr_b16 {v(Bf[n&1][b]+2,2)}, {v(vB)} offset:{o+1024}")
    A("s_waitcnt vmcnt(0)")
    only_wave0("4", w0_sync4)
    K.stamp(2)
    A("s_barrier")
    K.stamp()
    issued = 3
    for n in range(issued): lda(n)
    rd5(0)
    for n in range(28):
        if n + 1 < 28:
            if (n + 1) % 4 == 0:
                A("s_waitcnt lgkmcnt(0)")
                A("s_barrier")
            rd5(n + 1)
            A("s_waitcnt lgkmcnt(4)")
        else:
            A("s_waitcnt lgkmcnt(0)")
        A(f"s_waitcnt vmcnt({2*(issued - 1 - n)})")
        for b in range(2):
            for r in range(2):
                t = 2 * b + r
                A(f"v_mfma_f32_32x32x16_bf16 {v(acc[t],16)}, {v(Bf[n&1][b],4)}, {v(Af[n%NW][r],4)}, {'0' if n == 0 else v(acc[t],16)}")
        tgt = min(28, n + 1 + WIN5, issued + 2)
        while issued < tgt:
            lda(issued); issued += 1
    K.stamp()
    A("s_barrier")
    A(f"s_lshl_b32 {s(sT0)}, {s(sW)}, 12")
    A(f"s_add_u32 {s(sT0)}, {s(sT0)}, {RED5}")
    A(f"v_add_u32 {v(vT0)}, {s(sT0)}, {v(vL16)}")
    for t in range(4):
        for q in range(4):
            A(f"ds_write_b128 {v(vT0)}, {v(acc[t]+4*q,4)} offset:{t*16384 + q*1024}")
    A("s_waitcnt lgkmcnt(0)")
    A.label("KM_Z")
    A("s_barrier")
    out = Af[0][0]
    own_reduce(RED5, out)
    un = acc[0]
    for i in range(4):
        A(f"v_lshlrev_b32 {v(un+2*i)}, 16, {v(hpk4+i)}")
        A(f"v_and_b32 {v(un+2*i+1)}, 0xffff0000, {v(hpk4+i)}")
    for r in range(8): A(f"v_add_f32 {v(out+r)}, {v(out+r)}, {v(un+r)}")
    A("s_waitcnt vmcnt(0)")
    for i in range(4):
        A(f"v_lshlrev_b32 {v(un+2*i)}, 16, {v(b2r+i)}")
        A(f"v_and_b32 {v(un+2*i+1)}, 0xffff0000, {v(b2r+i)}")
    for r in range(8): A(f"v_add_f32 {v(out+r)}, {v(out+r)}, {v(un+r)}")
    pk = acc[1]
    for i in range(4): A(f"v_cvt_pk_bf16_f32 {v(pk+i)}, {v(out+2*i)}, {v(out+2*i+1)}")
    A(f"v_permlane32_swap_b32 {v(pk)}, {v(pk+2)}")
    A(f"v_permlane32_swap_b32 {v(pk+1)}, {v(pk+3)}")
    A(f"s_lshl_b32 {s(sT0)}, {s(sRt)}, 16")
    A(f"s_lshl_b32 {s(sT1)}, {s(sTr)}, 15")
    A(f"s_add_u32 {s(sT0)}, {s(sT0)}, {s(sT1)}")
    A(f"s_lshl_b32 {s(sT1)}, {s(sCt)}, 7")
    A(f"s_add_u32 {s(sT0)}, {s(sT0)}, {s(sT1)}")
    A(f"s_lshl_b32 {s(sT1)}, {s(sTb)}, 6")
    A(f"s_add_u32 {s(sT0)}, {s(sT0)}, {s(sT1)}")
    A(f"s_lshl_b32 {s(sT1)}, {s(sTi)}, 5")
    A(f"s_add_u32 {s(sT0)}, {s(sT0)}, {s(sT1)}")
    A(f"v_lshlrev_b32 {v(vT0)}, 10, {v(vTok)}")
    A(f"v_lshl_add_u32 {v(vT0)}, {v(vHf)}, 4, {v(vT0)}")
    A(f"buffer_store_dwordx4 {v(pk,4)}, {v(vT0)}, {s(sRb,4)}, {s(sT0)} offen")
    K.stamp_out(sO, 1, vT0, vT1)
    K.rt_end(sO, 1, vT0, vT1)
    A.label(END)
    A("s_endpgm")
    print("km vgprs", V.hi, "sgprs", S.hi, "lds", K.lds)
    return K

def k1b():
    K = Kern("k1_qkv_kernel", (256, 1, 1), (512, 1, 1), 134656)
    A, V, S = K.A, K.V, K.S
    END = "K1_END"
    sWs = S.alloc(2); sPx = S.alloc(2); sPq = S.alloc(2); sP1 = S.alloc(4)
    A(f"s_load_dwordx4 {s(sPx if sPx % 4 == 0 else sPx,2)}, s[0:1], 0") if False else None
    A(f"s_load_dwordx2 {s(sPx,2)}, s[0:1], 0")
    A(f"s_load_dwordx2 {s(sPq,2)}, s[0:1], 8")
    A(f"s_load_dwordx2 {s(sWs,2)}, s[0:1], 80")
    A(f"s_load_dwordx4 {s(sP1,4)}, s[0:1], 32")
    A(f"s_cmp_ge_u32 s2, 256")
    A(f"s_cbranch_scc1 {END}")
    K.rt_begin()
    K.stamp()
    sO = S.alloc(4); sRa = S.alloc(4); sRb = S.alloc(4)
    sW8, sW, sXcd, sJ, sT0, sT1, sB, sJ3, sJ2, sCn = [S.alloc() for _ in range(10)]
    sSave = S.alloc(2)
    vLane, vT0, vT1, vT2, vHf, vTok, vL16 = [V.alloc() for _ in range(7)]
    wave_ids(K, sW8, sW, vLane, vT0)
    A(f"s_and_b32 {s(sXcd)}, s2, 7")
    A(f"s_lshr_b32 {s(sJ)}, s2, 3")
    A(f"v_lshlrev_b32 {v(vL16)}, 4, {v(vLane)}")
    A(f"v_lshrrev_b32 {v(vHf)}, 5, {v(vLane)}")
    A(f"v_and_b32 {v(vTok)}, 31, {v(vLane)}")
    K1SC = ' sc1' if 'k1sc1' in G.FLAGS else ''
    XR = 0; WR = 32768; CS1 = WR + 4 * 24576; ST1 = CS1 + 1536
    mkV1 = V.mark(); mkS1 = S.mark()
    sRt1, sHq, sRot, sXb, sWb, sLx, sLw, sx, sw, sTt, sCh = [S.alloc() for _ in range(11)]
    A(f"s_and_b32 {s(sT0)}, {s(sXcd)}, 3")
    A(f"s_lshl_b32 {s(sT0)}, {s(sT0)}, 3")
    A(f"s_and_b32 {s(sT1)}, {s(sJ)}, 7")
    A(f"s_add_u32 {s(sRt1)}, {s(sT0)}, {s(sT1)}")
    A(f"s_lshr_b32 {s(sT0)}, {s(sXcd)}, 2")
    A(f"s_lshl_b32 {s(sT0)}, {s(sT0)}, 2")
    A(f"s_lshr_b32 {s(sHq)}, {s(sJ)}, 3")
    A(f"s_lshl_b32 {s(sRot)}, {s(sHq)}, 1")
    A(f"s_add_u32 {s(sRot)}, {s(sRot)}, {s(sT1)}")
    A(f"s_add_u32 {s(sRot)}, {s(sRot)}, {s(sXcd)}")
    A(f"s_add_u32 {s(sHq)}, {s(sHq)}, {s(sT0)}")
    A(f"s_and_b32 {s(sTt)}, {s(sW)}, 1")
    A(f"s_lshr_b32 {s(sCh)}, {s(sW)}, 1")
    A(f"s_cmp_lt_u32 {s(sW8)}, 4")
    A(f"s_cbranch_scc1 K1B_P1C")
    mkL1 = V.mark()
    vWoff1, vXoff1 = V.alloc(), V.alloc()
    R0 = V.alloc(32); AC = V.alloc(8); UN = V.alloc(8); vo = V.alloc()
    sKc, sCt28, sFl = S.alloc(), S.alloc(), S.alloc()
    sPFt = S.alloc(4)
    A(f"s_mul_i32 {s(sWb)}, {s(sW)}, {8*3072}")
    A(f"s_lshl_b32 {s(sT0)}, {s(sHq)}, 7")
    A(f"s_add_u32 {s(sWb)}, {s(sWb)}, {s(sT0)}")
    A(f"s_lshl_b32 {s(sLx)}, {s(sW)}, 10")
    A(f"s_add_u32 {s(sLw)}, {s(sLx)}, {WR}")
    w_voff(A, vWoff1, vLane, 3072, vT0, vT1)
    A(f"s_lshl_b32 {s(sXb)}, {s(sRt1)}, 16")
    A(f"s_lshl_b32 {s(sT0)}, {s(sW)}, 13")
    A(f"s_add_u32 {s(sXb)}, {s(sXb)}, {s(sT0)}")
    A(f"s_lshl_b32 {s(sT0)}, {s(sTt)}, 2")
    A(f"v_lshrrev_b32 {v(vT0)}, 4, {v(vLane)}")
    A(f"v_or_b32 {v(vT0)}, {s(sT0)}, {v(vT0)}")
    A(f"v_and_b32 {v(vT1)}, 7, {v(vLane)}")
    A(f"v_xor_b32 {v(vT0)}, {v(vT0)}, {v(vT1)}")
    A(f"v_lshlrev_b32 {v(vT0)}, 4, {v(vT0)}")
    A(f"v_lshrrev_b32 {v(vT1)}, 3, {v(vLane)}")
    A(f"v_lshlrev_b32 {v(vT1)}, 10, {v(vT1)}")
    A(f"v_add_u32 {v(vXoff1)}, {v(vT0)}, {v(vT1)}")
    A("s_waitcnt lgkmcnt(0)")
    srd(A, sRa, sPq, 512 * 1536 * 2)
    srd(A, sRb, sPx, 2048 * 512 * 2)
    srd(A, sO, sWs, WS_SIZE)
    def dma_stage1(st):
        slot = st & 3
        A(f"s_add_u32 {s(sT0)}, {s(sRot)}, {st}")
        A(f"s_and_b32 {s(sT0)}, {s(sT0)}, 7")
        A(f"s_lshl_b32 {s(sx)}, {s(sT0)}, 7")
        A(f"s_add_u32 {s(sx)}, {s(sx)}, {s(sXb)}")
        A(f"s_mul_i32 {s(sw)}, {s(sT0)}, {64*3072}")
        A(f"s_add_u32 {s(sw)}, {s(sw)}, {s(sWb)}")
        for n in range(2):
            A(f"s_add_u32 m0, {s(sLx)}, {XR + slot*8192 + n*4096}")
            A(f"s_add_u32 {s(sT1)}, {s(sx)}, {n*32768}")
            A(f"buffer_load_dwordx4 {v(vXoff1)}, {s(sRb,4)}, {s(sT1)} offen lds")
        for b in range(3):
            for n in range(2):
                A(f"s_add_u32 m0, {s(sLw)}, {slot*24576 + b*8192 + n*4096}")
                A(f"s_add_u32 {s(sT1)}, {s(sw)}, {b*1024 + n*32*3072}")
                A(f"buffer_load_dwordx4 {v(vWoff1)}, {s(sRa,4)}, {s(sT1)} offen lds")
    A(f"s_cmp_lg_u32 {s(sW8)}, 5")
    A(f"s_cbranch_scc1 K1B_NOZ")
    A(f"s_cmp_ge_u32 s2, 57")
    A(f"s_cbranch_scc1 K1B_NOZ")
    A(f"s_lshl_b32 {s(sT0)}, s2, 8")
    A(f"s_add_u32 {s(sT0)}, {s(sT0)}, {WS_CNT}")
    A(f"v_mov_b32 {v(vT0)}, 0")
    A(f"v_mov_b32 {v(vT1)}, 0")
    A(f"s_mov_b64 exec, 1")
    A(f"buffer_store_dword {v(vT1)}, {v(vT0)}, {s(sO,4)}, {s(sT0)} offen")
    A(f"s_mov_b64 exec, -1")
    A.label("K1B_NOZ")
    dma_stage1(0); dma_stage1(1)
    A("s_waitcnt vmcnt(8)")
    A("s_barrier")
    dma_stage1(2); dma_stage1(3)
    for sp in range(1, 8):
        vm = {1: 16, 2: 16, 3: 16, 4: 16, 5: 16, 6: 8, 7: 0}[sp]
        A(f"s_waitcnt vmcnt({vm})")
        A("s_barrier")
        if sp + 3 < 8: dma_stage1(sp + 3)
    A(f"s_mov_b32 {s(sFl)}, 0")
    A(f"s_cmp_lg_u32 {s(sW8)}, 4")
    A(f"s_cbranch_scc1 K1B_NOCS0")
    A(f"s_cmp_ge_u32 s2, 224")
    A(f"s_cbranch_scc1 K1B_NOCS0")
    A(f"s_mov_b32 {s(sFl)}, 1")
    A(f"s_mul_i32 {s(sKc)}, s2, 2341")
    A(f"s_lshr_b32 {s(sKc)}, {s(sKc)}, 16")
    A(f"s_mul_i32 {s(sCt28)}, {s(sKc)}, 28")
    A(f"s_sub_u32 {s(sCt28)}, s2, {s(sCt28)}")
    A(f"v_lshrrev_b32 {v(vo)}, 3, {v(vLane)}")
    A(f"v_mul_u32_u24 {v(vo)}, 3584, {v(vo)}")
    A(f"v_and_b32 {v(vT0)}, 7, {v(vLane)}")
    A(f"v_lshl_add_u32 {v(vo)}, {v(vT0)}, 4, {v(vo)}")
    A(f"s_mul_i32 {s(sT0)}, {s(sKc)}, {64*3584}")
    A(f"s_lshl_b32 {s(sT1)}, {s(sCt28)}, 7")
    A(f"s_add_u32 {s(sT0)}, {s(sT0)}, {s(sT1)}")
    A(f"s_mov_b32 {s(sPFt)}, {s(sP1)}")
    A(f"s_and_b32 {s(sPFt+1)}, {s(sP1+1)}, 0xffff")
    A(f"s_mov_b32 {s(sPFt+2)}, {512*1792*2}")
    A(f"s_mov_b32 {s(sPFt+3)}, 0x20000")
    for n in range(8):
        A(f"buffer_load_dwordx4 {v(R0+4*n,4)}, {v(vo)}, {s(sPFt,4)}, {s(sT0)} offen")
        A(f"s_add_u32 {s(sT0)}, {s(sT0)}, {8*3584}")
    A.label("K1B_NOCS0")
    A("s_barrier")
    A(f"s_cmp_lg_u32 {s(sW8)}, 4")
    A(f"s_cbranch_scc1 K1B_NOCS1")
    A(f"s_cmp_eq_u32 {s(sFl)}, 0")
    A(f"s_cbranch_scc1 K1B_NOCS1")
    A("s_waitcnt vmcnt(0)")
    for i in range(8): A(f"v_mov_b32 {v(AC+i)}, 0")
    for n in range(8):
        for i in range(4):
            A(f"v_lshlrev_b32 {v(UN+2*i)}, 16, {v(R0+4*n+i)}")
            A(f"v_and_b32 {v(UN+2*i+1)}, 0xffff0000, {v(R0+4*n+i)}")
        for i in range(8): A(f"v_add_f32 {v(AC+i)}, {v(AC+i)}, {v(UN+i)}")
    for i in range(8): A(f"v_add_f32_dpp {v(AC+i)}, {v(AC+i)}, {v(AC+i)} row_ror:8 row_mask:0xf bank_mask:0xf")
    for sw_ in ("v_permlane16_swap_b32", "v_permlane32_swap_b32"):
        for i in range(8): A(f"v_mov_b32 {v(UN+i)}, {v(AC+i)}")
        for i in range(8): A(f"{sw_} {v(AC+i)}, {v(UN+i)}")
        for i in range(8): A(f"v_add_f32 {v(AC+i)}, {v(AC+i)}, {v(UN+i)}")
    A(f"s_mul_i32 {s(sT0)}, {s(sKc)}, 7168")
    A(f"s_lshl_b32 {s(sT1)}, {s(sCt28)}, 8")
    A(f"s_add_u32 {s(sT0)}, {s(sT0)}, {s(sT1)}")
    A(f"s_add_u32 {s(sT0)}, {s(sT0)}, {WS_CSG}")
    A(f"v_and_b32 {v(vT0)}, 7, {v(vLane)}")
    A(f"v_lshlrev_b32 {v(vT0)}, 5, {v(vT0)}")
    A(f"s_mov_b64 exec, 0xff")
    A(f"buffer_store_dwordx4 {v(AC,4)}, {v(vT0)}, {s(sO,4)}, {s(sT0)} offen")
    A(f"buffer_store_dwordx4 {v(AC+4,4)}, {v(vT0)}, {s(sO,4)}, {s(sT0)} offen offset:16")
    A(f"s_mov_b64 exec, -1")
    A.label("K1B_NOCS1")
    A("s_endpgm")
    V.release(mkL1)
    A.label("K1B_P1C")
    vXA = [V.alloc() for _ in range(4)]; vWA = [V.alloc() for _ in range(8)]
    acc = [V.alloc(16) for _ in range(3)]
    sq = V.alloc(8); sm = V.alloc(8)
    mk = V.mark()
    csa = [V.alloc(4) for _ in range(3)]; msk = V.alloc(4)
    Xf = [V.alloc(4) for _ in range(2)]
    Wf = [[V.alloc(4) for _ in range(3)] for _ in range(2)]
    un = V.alloc(8); vMask = V.alloc()
    A(f"v_lshrrev_b32 {v(vT2)}, 1, {v(vTok)}")
    A(f"v_and_b32 {v(vT2)}, 7, {v(vT2)}")
    A(f"s_lshl_b32 {s(sT1)}, {s(sTt)}, 12")
    for pos in range(4):
        A(f"s_xor_b32 {s(sT0)}, {s(sW)}, {pos}")
        A(f"s_lshl_b32 {s(sT0)}, {s(sT0)}, 1")
        A(f"v_add_u32 {v(vT0)}, {s(sT0)}, {v(vHf)}")
        A(f"v_xor_b32 {v(vT0)}, {v(vT0)}, {v(vT2)}")
        A(f"v_lshlrev_b32 {v(vT0)}, 4, {v(vT0)}")
        A(f"v_lshl_add_u32 {v(vT0)}, {v(vTok)}, 7, {v(vT0)}")
        A(f"v_add_u32 {v(vXA[pos])}, {s(sT1)}, {v(vT0)}")
    A(f"v_and_b32 {v(vT0)}, 15, {v(vLane)}")
    A(f"v_lshrrev_b32 {v(vT1)}, 2, {v(vT0)}")
    A(f"v_lshlrev_b32 {v(vT1)}, 6, {v(vT1)}")
    A(f"v_lshl_add_u32 {v(vT1)}, {v(vHf)}, 10, {v(vT1)}")
    A(f"v_and_b32 {v(vT0)}, 3, {v(vT0)}")
    A(f"v_lshl_add_u32 {v(vT1)}, {v(vT0)}, 3, {v(vT1)}")
    A(f"v_bfe_u32 {v(vT0)}, {v(vLane)}, 4, 1")
    A(f"v_lshl_add_u32 {v(vT1)}, {v(vT0)}, 5, {v(vT1)}")
    A(f"s_lshl_b32 {s(sw)}, {s(sCh)}, 9")
    A(f"s_add_u32 {s(sw)}, {s(sw)}, {WR}")
    for pos in range(4):
        A(f"s_xor_b32 {s(sT0)}, {s(sW)}, {pos}")
        A(f"s_lshl_b32 {s(sT0)}, {s(sT0)}, 11")
        A(f"s_add_u32 {s(sT0)}, {s(sT0)}, {s(sw)}")
        A(f"v_add_u32 {v(vWA[pos])}, {s(sT0)}, {v(vT1)}")
        A(f"v_add_u32 {v(vWA[4+pos])}, {2*24576}, {v(vWA[pos])}")
    A(f"v_and_b32 {v(vT0)}, 15, {v(vLane)}")
    A(f"v_bfe_u32 {v(vT1)}, {v(vLane)}, 4, 1")
    A(f"v_cmp_eq_u32 vcc, {v(vT0)}, {v(vT1)}")
    A(f"v_mov_b32 {v(vT0)}, 0x3f803f80")
    for i in range(4): A(f"v_cndmask_b32 {v(msk+i)}, 0, {v(vT0)}, vcc")
    A(f"v_mov_b32 {v(vMask)}, 0xffff0000")
    for i in range(8):
        A(f"v_mov_b32 {v(sq+i)}, 0"); A(f"v_mov_b32 {v(sm+i)}, 0")
    def reads1(n):
        slot = (n >> 2) & 3; pos = n & 3; bf = n & 1
        A(f"ds_read_b128 {v(Xf[bf],4)}, {v(vXA[pos])} offset:{XR + slot*8192}")
        wa = vWA[pos + (4 if slot >= 2 else 0)]
        for b in range(3):
            o = (slot & 1) * 24576 + b * 8192
            A(f"ds_read_b64_tr_b16 {v(Wf[bf][b],2)}, {v(wa)} offset:{o}")
            A(f"ds_read_b64_tr_b16 {v(Wf[bf][b]+2,2)}, {v(wa)} offset:{o+256}")
    def compute1(n):
        bf = n & 1; pos = n & 3
        c = lambda b: "0" if n == 0 else v(acc[b], 16)
        cs_ = pos in (0, 2); st_ = pos in (0, 1)
        def mc(b):
            if cs_: A(f"v_mfma_f32_16x16x32_bf16 {v(csa[b],4)}, {v(Wf[bf][b],4)}, {v(msk,4)}, {'0' if n == 0 else v(csa[b],4)}")
        A(f"v_mfma_f32_32x32x16_bf16 {v(acc[0],16)}, {v(Wf[bf][0],4)}, {v(Xf[bf],4)}, {c(0)}")
        if st_:
            for i in range(4):
                A(f"v_lshlrev_b32 {v(un+2*i)}, 16, {v(Xf[bf]+i)}")
                A(f"v_and_b32 {v(un+2*i+1)}, {v(vMask)}, {v(Xf[bf]+i)}")
        mc(0)
        A(f"v_mfma_f32_32x32x16_bf16 {v(acc[1],16)}, {v(Wf[bf][1],4)}, {v(Xf[bf],4)}, {c(1)}")
        if st_:
            for i in range(8): A(f"v_fmac_f32 {v(sq+i)}, {v(un+i)}, {v(un+i)}")
        mc(1)
        A(f"v_mfma_f32_32x32x16_bf16 {v(acc[2],16)}, {v(Xf[bf],4)}, {v(Wf[bf][2],4)}, {c(2)}")
        if st_:
            for i in range(8): A(f"v_add_f32 {v(sm+i)}, {v(un+i)}, {v(sm+i)}")
        mc(2)
    A("s_waitcnt lgkmcnt(0)")
    srd(A, sO, sWs, WS_SIZE)
    sTile, sHp, sQo, sKo, sVo = [S.alloc() for _ in range(5)]
    A(f"s_lshl_b32 {s(sTile)}, {s(sRt1)}, 1")
    A(f"s_add_u32 {s(sTile)}, {s(sTile)}, {s(sTt)}")
    A(f"s_lshl_b32 {s(sHp)}, {s(sHq)}, 1")
    A(f"s_add_u32 {s(sHp)}, {s(sHp)}, {s(sCh)}")
    A(f"s_lshl_b32 {s(sT0)}, {s(sHp)}, 17")
    A(f"s_lshl_b32 {s(sT1)}, {s(sTile)}, 10")
    A(f"s_add_u32 {s(sQo)}, {s(sT0)}, {s(sT1)}")
    A(f"s_add_u32 {s(sKo)}, {s(sQo)}, {WS_KF}")
    A(f"s_add_u32 {s(sVo)}, {s(sQo)}, {WS_VF}")
    A("s_barrier")
    K.stamp()
    reads1(0)
    for n in range(32):
        if n + 1 < 32:
            if (n + 1) % 4 == 0:
                A(f"s_waitcnt lgkmcnt(0)")
                A("s_barrier")
            reads1(n + 1)
            A("s_waitcnt lgkmcnt(7)")
        else:
            A("s_waitcnt lgkmcnt(0)")
        compute1(n)
    K.stamp()
    for L in (sq, sm):
        for st in (4, 2, 1):
            for i in range(st): A(f"v_add_f32 {v(L+i)}, {v(L+i)}, {v(L+i+st)}")
    swap_add(A, sm, vT1)
    swap_add(A, sq, vT2)
    A(f"s_lshl_b32 {s(sT0)}, {s(sW)}, 8")
    A(f"s_add_u32 {s(sT0)}, {s(sT0)}, {ST1}")
    A(f"v_lshl_add_u32 {v(vT0)}, {v(vTok)}, 2, {s(sT0)}")
    A(f"ds_write_b32 {v(vT0)}, {v(sm)}")
    A(f"ds_write_b32 {v(vT0)}, {v(sq)} offset:128")
    A(f"v_and_b32 {v(vT0)}, 15, {v(vLane)}")
    A(f"v_lshrrev_b32 {v(vT1)}, 4, {v(vLane)}")
    A(f"v_lshlrev_b32 {v(vT1)}, 4, {v(vT1)}")
    A(f"v_lshl_add_u32 {v(vT1)}, {v(vT0)}, 6, {v(vT1)}")
    A(f"s_mul_i32 {s(sx)}, {s(sTt)}, 768")
    A(f"s_lshl_b32 {s(sw)}, {s(sCh)}, 7")
    A(f"s_add_u32 {s(sx)}, {s(sx)}, {s(sw)}")
    A(f"s_add_u32 {s(sx)}, {s(sx)}, {CS1}")
    A(f"v_add_u32 {v(vT1)}, {s(sx)}, {v(vT1)}")
    A(f"v_cmp_gt_u32 vcc, 2, {v(vT0)}")
    A(f"s_and_saveexec_b64 {s(sSave,2)}, vcc")
    for b in range(3): A(f"ds_write_b128 {v(vT1)}, {v(csa[b],4)} offset:{b*256}")
    A(f"s_mov_b64 exec, {s(sSave,2)}")
    A("s_waitcnt lgkmcnt(0)")
    A("s_barrier")
    V.release(mk)
    csr = V.alloc(16); csr2 = V.alloc(16); st1 = V.alloc(16); st2 = V.alloc(16)
    vCv, vMean, vRstd, vRq = [V.alloc() for _ in range(4)]
    A(f"s_lshl_b32 {s(sx)}, {s(sTt)}, 8")
    A(f"s_add_u32 {s(sx)}, {s(sx)}, {ST1}")
    A(f"v_lshl_add_u32 {v(vT1)}, {v(vTok)}, 2, {s(sx)}")
    p4 = V.alloc(4)
    A(f"ds_read_b32 {v(p4)}, {v(vT1)}")
    A(f"ds_read_b32 {v(p4+1)}, {v(vT1)} offset:512")
    A(f"ds_read_b32 {v(p4+2)}, {v(vT1)} offset:128")
    A(f"ds_read_b32 {v(p4+3)}, {v(vT1)} offset:640")
    A(f"s_lshl_b32 {s(sw)}, {s(sCh)}, 7")
    A(f"s_add_u32 {s(sw)}, {s(sw)}, {CS1}")
    A(f"v_lshl_add_u32 {v(vT0)}, {v(vHf)}, 4, {s(sw)}")
    for a_ in range(4): A(f"ds_read_b128 {v(csr+4*a_,4)}, {v(vT0)} offset:{a_*32}")
    for a_ in range(4): A(f"ds_read_b128 {v(st1+4*a_,4)}, {v(vT0)} offset:{768+a_*32}")
    A("s_waitcnt lgkmcnt(4)")
    for a_ in range(4): A(f"ds_read_b128 {v(csr2+4*a_,4)}, {v(vT0)} offset:{256+a_*32}")
    for a_ in range(4): A(f"ds_read_b128 {v(st2+4*a_,4)}, {v(vT0)} offset:{768+256+a_*32}")
    A(f"v_lshl_add_u32 {v(vT1)}, {v(vTok)}, 2, {s(sw)}")
    vCv2 = V.alloc()
    A(f"ds_read_b32 {v(vCv)}, {v(vT1)} offset:512")
    A(f"ds_read_b32 {v(vCv2)}, {v(vT1)} offset:{768+512}")
    A("s_waitcnt lgkmcnt(10)")
    for r in range(16): A(f"v_add_f32 {v(csr+r)}, {v(csr+r)}, {v(st1+r)}")
    A("s_waitcnt lgkmcnt(0)")
    for r in range(16): A(f"v_add_f32 {v(csr2+r)}, {v(csr2+r)}, {v(st2+r)}")
    A(f"v_add_f32 {v(vCv)}, {v(vCv)}, {v(vCv2)}")
    pk = V.alloc(8); pk2 = V.alloc(8); pk3 = pk
    vMr = p4 + 1
    A(f"v_add_f32 {v(p4)}, {v(p4)}, {v(p4+1)}")
    A(f"v_add_f32 {v(p4+2)}, {v(p4+2)}, {v(p4+3)}")
    A(f"v_mul_f32 {v(vMean)}, {f2u(1/512.):#x}, {v(p4)}")
    A(f"v_mul_f32 {v(vT1)}, {v(vMean)}, {v(vMean)}")
    A(f"v_mov_b32 {v(vT2)}, {f2u(1/512.):#x}")
    A(f"v_fma_f32 {v(vT1)}, {v(p4+2)}, {v(vT2)}, -{v(vT1)}")
    A(f"v_max_f32 {v(vT1)}, 0, {v(vT1)}")
    A(f"v_add_f32 {v(vT1)}, {f2u(1e-5):#x}, {v(vT1)}")
    A(f"v_rsq_f32 {v(vRstd)}, {v(vT1)}")
    A(f"v_mul_f32 {v(vMr)}, {v(vMean)}, {v(vRstd)}")
    A(f"s_lshl_b32 {s(sx)}, {s(sW)}, 8")
    A(f"s_add_u32 {s(sx)}, {s(sx)}, {ST1 + 1024}")
    A(f"v_lshl_add_u32 {v(vT1)}, {v(vTok)}, 2, {s(sx)}")
    A(f"ds_write_b32 {v(vT1)}, {v(vMr)}")
    A(f"ds_write_b32 {v(vT1)}, {v(vRstd)} offset:128")
    A(f"v_lshl_add_u32 {v(vT0)}, {v(vHf)}, 4, {s(sx)}")
    A(f"v_mul_f32 {v(vRq)}, {f2u(LOG2E*0.25):#x}, {v(vRstd)}")
    A("s_waitcnt lgkmcnt(0)")
    for a_ in range(4): A(f"ds_read_b128 {v(st1+4*a_,4)}, {v(vT0)} offset:{a_*32}")
    for a_ in range(4): A(f"ds_read_b128 {v(st2+4*a_,4)}, {v(vT0)} offset:{128+a_*32}")
    for r in range(16): A(f"v_fma_f32 {v(acc[1]+r)}, -{v(vMean)}, {v(csr2+r)}, {v(acc[1]+r)}")
    for r in range(16): A(f"v_mul_f32 {v(acc[1]+r)}, {v(vRstd)}, {v(acc[1]+r)}")
    for i in range(8): A(f"v_cvt_pk_bf16_f32 {v(pk2+i)}, {v(acc[1]+2*i)}, {v(acc[1]+2*i+1)}")
    A(f"buffer_store_dwordx4 {v(pk2,4)}, {v(vL16)}, {s(sO,4)}, {s(sKo)} offen" + K1SC)
    A(f"s_add_u32 {s(sT0)}, {s(sKo)}, 65536")
    A(f"buffer_store_dwordx4 {v(pk2+4,4)}, {v(vL16)}, {s(sO,4)}, {s(sT0)} offen" + K1SC)
    for r in range(16): A(f"v_fma_f32 {v(acc[0]+r)}, -{v(vMean)}, {v(csr+r)}, {v(acc[0]+r)}")
    for r in range(16): A(f"v_mul_f32 {v(acc[0]+r)}, {v(vRq)}, {v(acc[0]+r)}")
    for i in range(8): A(f"v_cvt_pk_bf16_f32 {v(pk+i)}, {v(acc[0]+2*i)}, {v(acc[0]+2*i+1)}")
    A(f"buffer_store_dwordx4 {v(pk,4)}, {v(vL16)}, {s(sO,4)}, {s(sQo)} offen" + K1SC)
    A(f"s_add_u32 {s(sT0)}, {s(sQo)}, 65536")
    A(f"buffer_store_dwordx4 {v(pk+4,4)}, {v(vL16)}, {s(sO,4)}, {s(sT0)} offen" + K1SC)
    A("s_waitcnt lgkmcnt(0)")
    for r in range(16): A(f"v_mul_f32 {v(st1+r)}, {v(vCv)}, {v(st1+r)}")
    for r in range(16): A(f"v_fma_f32 {v(acc[2]+r)}, {v(acc[2]+r)}, {v(st2+r)}, -{v(st1+r)}")
    pk3 = csr
    for i in range(8): A(f"v_cvt_pk_bf16_f32 {v(pk3+i)}, {v(acc[2]+2*i)}, {v(acc[2]+2*i+1)}")
    A(f"v_lshrrev_b32 {v(vT0)}, 4, {v(vTok)}")
    A(f"v_lshlrev_b32 {v(vT0)}, 16, {v(vT0)}")
    A(f"v_lshl_add_u32 {v(vT0)}, {v(vHf)}, 8, {v(vT0)}")
    A(f"v_and_b32 {v(vT1)}, 15, {v(vTok)}")
    A(f"v_lshl_add_u32 {v(vT0)}, {v(vT1)}, 4, {v(vT0)}")
    A(f"buffer_store_dwordx4 {v(pk3,4)}, {v(vT0)}, {s(sO,4)}, {s(sVo)} offen" + K1SC)
    A(f"buffer_store_dwordx4 {v(pk3+4,4)}, {v(vT0)}, {s(sO,4)}, {s(sVo)} offen offset:512" + K1SC)
    vN = [V.alloc(), V.alloc()]
    for e in range(2):
        for i in range(4):
            A(f"v_lshlrev_b32 {v(csr2+2*i)}, 16, {v(pk2+4*e+i)}")
            A(f"v_and_b32 {v(csr2+2*i+1)}, 0xffff0000, {v(pk2+4*e+i)}")
        A(f"v_mul_f32 {v(vN[e])}, {v(csr2)}, {v(csr2)}")
        for i in range(1, 8): A(f"v_fmac_f32 {v(vN[e])}, {v(csr2+i)}, {v(csr2+i)}")
    swap_add(A, vN[0], vT2)
    swap_add(A, vN[1], vT1)
    for sh in (8, 4, 2, 1):
        for e in range(2):
            A(f"v_max_f32_dpp {v(vN[e])}, {v(vN[e])}, {v(vN[e])} row_ror:{sh} row_mask:0xf bank_mask:0xf")
    sN = [S.alloc() for _ in range(4)]
    for e in range(2):
        A(f"v_readlane_b32 {s(sN[2*e])}, {v(vN[e])}, 0")
        A(f"v_readlane_b32 {s(sN[2*e+1])}, {v(vN[e])}, 16")
    for e in range(2): A(f"s_max_u32 {s(sN[2*e])}, {s(sN[2*e])}, {s(sN[2*e+1])}")
    A(f"s_lshl_b32 {s(sT0)}, {s(sHp)}, 9")
    A(f"s_lshl_b32 {s(sT1)}, {s(sTile)}, 2")
    A(f"s_add_u32 {s(sT0)}, {s(sT0)}, {s(sT1)}")
    A(f"s_add_u32 {s(sT0)}, {s(sT0)}, {WS_KMAX}")
    A(f"v_mov_b32 {v(vN[0])}, {s(sN[0])}")
    A(f"v_mov_b32 {v(vN[1])}, {s(sN[2])}")
    A(f"v_mov_b32 {v(vT1)}, 0")
    A("s_mov_b64 exec, 1")
    A(f"buffer_store_dword {v(vN[0])}, {v(vT1)}, {s(sO,4)}, {s(sT0)} offen" + K1SC)
    A(f"buffer_store_dword {v(vN[1])}, {v(vT1)}, {s(sO,4)}, {s(sT0)} offen offset:256" + K1SC)
    A("s_mov_b64 exec, -1")
    K.stamp_out(sO, 0, vT0, vT1)
    K.rt_end(sO, 0, vT0, vT1)
    A.label(END)
    A("s_endpgm")
    print("k1b vgprs", V.hi, "sgprs", S.hi, "lds", K.lds)
    return K

def k1_hook(ev, K, L):
    A, V, S = K.A, K.V, K.S
    vT0, vT1, vLane, sW8, sWs = L["vT0"], L["vT1"], L["vLane"], L["sW8"], L["sWs"]
    H = K.__dict__.setdefault("_h", {})
    if ev == "start":
        H["R0"] = V.alloc(32); H["AC"] = V.alloc(8); H["UN"] = V.alloc(8); H["vo"] = V.alloc()
        H["srd"] = S.alloc(4); H["t"] = [S.alloc() for _ in range(4)]; H["p"] = S.alloc(2); H["flag"] = S.alloc()
        R0, vo, srd_, t, p, flag = H["R0"], H["vo"], H["srd"], H["t"], H["p"], H["flag"]
        A(f"s_mov_b32 {s(flag)}, 0")
        A(f"s_cmp_lg_u32 {s(sW8)}, 8")
        A(f"s_cbranch_scc1 K1_NOCS0")
        A("s_waitcnt lgkmcnt(0)")
        A(f"s_cmp_ge_u32 s2, 48")
        A(f"s_cbranch_scc1 K1_NOZ")
        srd(A, srd_, sWs, WS_SIZE)
        A(f"s_lshl_b32 {s(t[0])}, s2, 8")
        A(f"s_add_u32 {s(t[0])}, {s(t[0])}, {WS_CNT}")
        A(f"v_mov_b32 {v(vT0)}, 0")
        A(f"v_lshlrev_b32 {v(vT1)}, 2, {v(vLane)}")
        A(f"s_mov_b32 exec_hi, 0")
        A(f"buffer_store_dword {v(vT0)}, {v(vT1)}, {s(srd_,4)}, {s(t[0])} offen")
        A(f"s_mov_b64 exec, -1")
        A.label("K1_NOZ")
        A(f"s_cmp_ge_u32 s2, 224")
        A(f"s_cbranch_scc1 K1_NOCS0")
        A(f"s_mov_b32 {s(flag)}, 1")
        A(f"s_load_dwordx2 {s(p,2)}, s[0:1], 32")
        A(f"s_mul_i32 {s(t[0])}, s2, 2341")
        A(f"s_lshr_b32 {s(t[0])}, {s(t[0])}, 16")
        A(f"s_mul_i32 {s(t[1])}, {s(t[0])}, 28")
        A(f"s_sub_u32 {s(t[1])}, s2, {s(t[1])}")
        A(f"v_lshrrev_b32 {v(vo)}, 3, {v(vLane)}")
        A(f"v_mul_u32_u24 {v(vo)}, 3584, {v(vo)}")
        A(f"v_and_b32 {v(vT0)}, 7, {v(vLane)}")
        A(f"v_lshl_add_u32 {v(vo)}, {v(vT0)}, 4, {v(vo)}")
        A(f"s_mul_i32 {s(t[2])}, {s(t[0])}, {64*3584}")
        A(f"s_lshl_b32 {s(t[3])}, {s(t[1])}, 7")
        A(f"s_add_u32 {s(t[2])}, {s(t[2])}, {s(t[3])}")
        A("s_waitcnt lgkmcnt(0)")
        srd(A, srd_, p, 512 * 1792 * 2)
        for n in range(8):
            A(f"buffer_load_dwordx4 {v(R0+4*n,4)}, {v(vo)}, {s(srd_,4)}, {s(t[2])} offen")
            A(f"s_add_u32 {s(t[2])}, {s(t[2])}, {8*3584}")
        A.label("K1_NOCS0")
        for i in range(8): A(f"v_mov_b32 {v(H['AC']+i)}, 0")
    elif ev == "end":
        R0, AC, UN, srd_, t, flag = H["R0"], H["AC"], H["UN"], H["srd"], H["t"], H["flag"]
        A(f"s_cmp_eq_u32 {s(flag)}, 0")
        A(f"s_cbranch_scc1 K1_NOCS1")
        A("s_waitcnt vmcnt(0)")
        for n in range(8):
            for i in range(4):
                A(f"v_lshlrev_b32 {v(UN+2*i)}, 16, {v(R0+4*n+i)}")
                A(f"v_and_b32 {v(UN+2*i+1)}, 0xffff0000, {v(R0+4*n+i)}")
            for i in range(8): A(f"v_add_f32 {v(AC+i)}, {v(AC+i)}, {v(UN+i)}")
        for i in range(8): A(f"v_add_f32_dpp {v(AC+i)}, {v(AC+i)}, {v(AC+i)} row_ror:8 row_mask:0xf bank_mask:0xf")
        for sw in ("v_permlane16_swap_b32", "v_permlane32_swap_b32"):
            for i in range(8): A(f"v_mov_b32 {v(UN+i)}, {v(AC+i)}")
            for i in range(8): A(f"{sw} {v(AC+i)}, {v(UN+i)}")
            for i in range(8): A(f"v_add_f32 {v(AC+i)}, {v(AC+i)}, {v(UN+i)}")
        srd(A, srd_, sWs, WS_SIZE)
        A(f"s_mul_i32 {s(t[2])}, {s(t[0])}, 7168")
        A(f"s_lshl_b32 {s(t[3])}, {s(t[1])}, 8")
        A(f"s_add_u32 {s(t[2])}, {s(t[2])}, {s(t[3])}")
        A(f"s_add_u32 {s(t[2])}, {s(t[2])}, {WS_CSG}")
        A(f"v_and_b32 {v(vT0)}, 7, {v(vLane)}")
        A(f"v_lshlrev_b32 {v(vT0)}, 5, {v(vT0)}")
        A(f"s_mov_b64 exec, 0xff")
        A(f"buffer_store_dwordx4 {v(AC,4)}, {v(vT0)}, {s(srd_,4)}, {s(t[2])} offen")
        A(f"buffer_store_dwordx4 {v(AC+4,4)}, {v(vT0)}, {s(srd_,4)}, {s(t[2])} offen offset:16")
        A.label("K1_NOCS1")

def k1z():
    G.HOOK = k1_hook
    return G.k1()

if __name__ == "__main__":
    if "stamp" in sys.argv: G.STAMP = True
    if "rt" in sys.argv: G.RT = True
    G.FLAGS = set(sys.argv[2:])
    for a_ in sys.argv[2:]:
        if a_.startswith("prioit="): PRIO_IT = int(a_.split("=")[1])
        if a_.startswith("npoll="): NPOLL = int(a_.split("=")[1])
        if a_.startswith("win5="): WIN5 = int(a_.split("=")[1])
        if a_.startswith("psleep="): PSLEEP = int(a_.split("=")[1])
    ks = [k1b() if 'k1b' in G.FLAGS else k1z(), km(1 if 'q1' in G.FLAGS else 2, prio=('noprio' not in G.FLAGS))]
    build(ks, sys.argv[1] if len(sys.argv) > 1 else "out.s")
```

```python
import sys
import gen as G
from gen import *
from dsl import *

WS_CNT = (21 << 20)
G.WS_CNT = WS_CNT
G.WS_HS = WS_HS = 20 << 20
WS_CSG = (20 << 20) + (512 << 10)
G.WS_STAMP = WS_STAMP = (21 << 20) + (512 << 10)

PRIO_IT = 13
NPOLL = 1
TLB_IT = 6
PSLEEP = 4
WIN5 = 5
def km(nqb=2, prio=True):
    ks = nqb
    LOCAL = 'local' in G.FLAGS
    W2R = 'w2r' in G.FLAGS
    LSC = '' if LOCAL else ' sc1'
    LLD = '' if (LOCAL and 'ldsc1' not in G.FLAGS) else ' sc1'
    KR = 0; VR = 65536; ON = 131072
    WO = 0; XT = 65536; RED = XT + 8192
    W1 = 0; CS = 139264; BI = CS + 512
    W2 = 0; RED5 = 0
    TKL = BI + 512 + 2048
    STP = BI + 512
    K = Kern("km_fused_kernel", (256, 1, 1), (512, 1, 1), BI + 512 + 2048 + 64)
    A, V, S = K.A, K.V, K.S
    END = "KM_END"
    sWs = S.alloc(2); sPx = S.alloc(2); sPwo = S.alloc(2); sP1 = S.alloc(4); sP2 = S.alloc(4); sPo = S.alloc(2)
    A(f"s_load_dwordx2 {s(sWs,2)}, s[0:1], 80")
    A(f"s_load_dwordx2 {s(sPx,2)}, s[0:1], 0")
    A(f"s_load_dwordx2 {s(sPwo,2)}, s[0:1], 16")
    A(f"s_load_dwordx4 {s(sP1,4)}, s[0:1], 32")
    A(f"s_load_dwordx4 {s(sP2,4)}, s[0:1], 48")
    A(f"s_load_dwordx2 {s(sPo,2)}, s[0:1], 64")
    A(f"s_cmp_ge_u32 s2, 256")
    A(f"s_cbranch_scc1 {END}")
    K.rt_begin()
    K.stamp()
    sO = S.alloc(4); sRa = S.alloc(4); sRb = S.alloc(4)
    sW8, sW, sXcd, sJ, sT0, sT1, sB, sJ3, sJ2, sCn = [S.alloc() for _ in range(10)]
    sSave = S.alloc(2)
    sXcP, sTkP = S.alloc(), S.alloc()
    vLane, vT0, vT1, vT2, vHf, vTok, vL16 = [V.alloc() for _ in range(7)]
    hpk = V.alloc(4)
    vPoll = V.alloc(4)
    wave_ids(K, sW8, sW, vLane, vT0)
    A(f"s_and_b32 {s(sXcd)}, s2, 7")
    A(f"s_lshr_b32 {s(sJ)}, s2, 3")
    A(f"s_and_b32 {s(sJ3)}, {s(sJ)}, 3")
    A(f"s_lshr_b32 {s(sJ2)}, {s(sJ)}, 2")
    A(f"v_lshlrev_b32 {v(vL16)}, 4, {v(vLane)}")
    A(f"v_lshrrev_b32 {v(vHf)}, 5, {v(vLane)}")
    A(f"v_and_b32 {v(vTok)}, 31, {v(vLane)}")
    FLG = "flg" in G.FLAGS
    def signal(off_sgpr, local=False, slot=None):
        if FLG:
            slot()
            A(f"s_lshl_b32 {s(sT0)}, {s(sT0)}, 2")
            A(f"v_mov_b32 {v(vT1)}, {s(sT0)}")
            A(f"v_mov_b32 {v(vT0)}, 1")
            A(f"s_mov_b64 exec, 1")
            A(f"buffer_store_dword {v(vT0)}, {v(vT1)}, {s(sO,4)}, {s(off_sgpr)} offen sc1")
            A(f"s_mov_b64 exec, -1")
            return
        A(f"v_mov_b32 {v(vT0)}, 1")
        A(f"v_mov_b32 {v(vT1)}, 0")
        A(f"s_mov_b64 exec, 1")
        A(f"buffer_atomic_add {v(vT0)}, {v(vT1)}, {s(sO,4)}, {s(off_sgpr)} offen" + ("" if local else " sc1"))
        A(f"s_mov_b64 exec, -1")
    def poll(off_sgpr, target, tag):
        if FLG:
            A(f"v_lshlrev_b32 {v(vT1)}, 2, {v(vLane)}")
            A(f"s_mov_b32 {s(sT1)}, 3000000")
            A(f"s_mov_b32 exec_lo, {(1 << target) - 1:#x}")
            A(f"s_mov_b32 exec_hi, 0")
            A.label(f"KM_POLL_{tag}")
            A(f"buffer_load_dword {v(vT0)}, {v(vT1)}, {s(sO,4)}, {s(off_sgpr)} offen sc1")
            A("s_waitcnt vmcnt(0)")
            A(f"v_cmp_eq_u32 vcc, 0, {v(vT0)}")
            A("s_nop 1")
            A(f"s_cmp_eq_u64 vcc, 0")
            A(f"s_cbranch_scc1 KM_PD_{tag}")
            A("s_sleep 1")
            A(f"s_sub_u32 {s(sT1)}, {s(sT1)}, 1")
            A(f"s_cmp_lg_u32 {s(sT1)}, 0")
            A(f"s_cbranch_scc1 KM_POLL_{tag}")
            A.label(f"KM_PD_{tag}")
            A(f"s_mov_b64 exec, -1")
            return
        if NPOLL <= 1:
            A(f"v_mov_b32 {v(vT1)}, 0")
            A(f"s_mov_b32 {s(sT1)}, 3000000")
            A.label(f"KM_POLL_{tag}")
            A(f"buffer_load_dword {v(vT0)}, {v(vT1)}, {s(sO,4)}, {s(off_sgpr)} offen sc1")
            A("s_waitcnt vmcnt(0)")
            A(f"v_readfirstlane_b32 {s(sT0)}, {v(vT0)}")
            A(f"s_cmp_ge_u32 {s(sT0)}, {target}")
            A(f"s_cbranch_scc1 KM_PD_{tag}")
            A("s_sleep 1")
            A(f"s_sub_u32 {s(sT1)}, {s(sT1)}, 1")
            A(f"s_cmp_lg_u32 {s(sT1)}, 0")
            A(f"s_cbranch_scc1 KM_POLL_{tag}")
            A.label(f"KM_PD_{tag}")
            return
        P = vPoll
        A(f"v_mov_b32 {v(vT1)}, 0")
        A(f"s_mov_b32 {s(sT1)}, 1000000")
        for k in range(NPOLL - 1):
            A(f"buffer_load_dword {v(P+k)}, {v(vT1)}, {s(sO,4)}, {s(off_sgpr)} offen sc1")
            A(f"s_sleep {PSLEEP}")
        A.label(f"KM_POLL_{tag}")
        for k in range(NPOLL):
            A(f"buffer_load_dword {v(P+(k+NPOLL-1)%NPOLL)}, {v(vT1)}, {s(sO,4)}, {s(off_sgpr)} offen sc1")
            A(f"s_waitcnt vmcnt({NPOLL-1})")
            A(f"v_readfirstlane_b32 {s(sT0)}, {v(P+k)}")
            A(f"s_cmp_ge_u32 {s(sT0)}, {target}")
            A(f"s_cbranch_scc1 KM_PD_{tag}")
            A(f"s_sleep {PSLEEP}")
        A(f"s_sub_u32 {s(sT1)}, {s(sT1)}, 1")
        A(f"s_cmp_lg_u32 {s(sT1)}, 0")
        A(f"s_cbranch_scc1 KM_POLL_{tag}")
        A.label(f"KM_PD_{tag}")
    def only_wave0(tag, body):
        A(f"s_cmp_lg_u32 {s(sW8)}, 0")
        A(f"s_cbranch_scc1 KM_NW0_{tag}")
        body()
        A.label(f"KM_NW0_{tag}")
    def cnt_off(dst, base, idx_expr):
        idx_expr(dst)
        A(f"s_lshl_b32 {s(dst)}, {s(dst)}, 8")
        A(f"s_add_u32 {s(dst)}, {s(dst)}, {WS_CNT + base}")
    mkV = V.mark(); mkS = S.mark()
    sHead, sWq, sKh, sHb, sIt, sKm, sQt, sL, sG, sL0 = [S.alloc() for _ in range(10)]
    sQb = sJ2
    vK, vV, vVinc = [V.alloc() for _ in range(3)]
    A(f"s_lshl_b32 {s(sHead)}, {s(sXcd)}, 2")
    A(f"s_add_u32 {s(sHead)}, {s(sHead)}, {s(sJ3)}")
    if ks == 2:
        A(f"s_mov_b32 {s(sWq)}, {s(sW)}")
        A(f"s_lshr_b32 {s(sKh)}, {s(sW8)}, 2")
    else:
        A(f"s_mov_b32 {s(sWq)}, {s(sW8)}")
        A(f"s_mov_b32 {s(sKh)}, 0")
    A(f"s_lshl_b32 {s(sHb)}, {s(sHead)}, 16")
    Q = [V.alloc(4) for _ in range(nqb)]
    vKm = V.alloc()
    A(f"s_lshl_b32 {s(sT0)}, {s(sQb)}, 3")
    A(f"s_mul_i32 {s(sT1)}, {s(sWq)}, {nqb}")
    A(f"s_add_u32 {s(sQt)}, {s(sT0)}, {s(sT1)}")
    if ks == 2:
        A(f"s_lshl_b32 {s(sL0)}, {s(sKh)}, 5")
        A(f"s_lshl_b32 {s(sT0)}, {s(sWq)}, 1")
        A(f"s_add_u32 {s(sL0)}, {s(sL0)}, {s(sT0)}")
        gstep = 8
    else:
        A(f"s_lshl_b32 {s(sL0)}, {s(sW8)}, 1")
        gstep = 16
    A(f"s_lshl_b32 {s(sB)}, {s(sQt)}, 10")
    A(f"s_add_u32 {s(sB)}, {s(sB)}, {s(sHb)}")
    A(f"v_lshlrev_b32 {v(vT2)}, 2, {v(vLane)}")
    A("s_waitcnt lgkmcnt(0)")
    srd(A, sO, sWs, WS_SIZE)
    sXc, sTk = sXcP, sTkP
    vTk = V.alloc()
    if LOCAL:
        A(f"s_getreg_b32 {s(sXc)}, hwreg(HW_REG_XCC_ID)")
        A(f"s_and_b32 {s(sXc)}, {s(sXc)}, 7")
        A(f"s_cmp_lg_u32 {s(sW8)}, 0")
        A(f"s_cbranch_scc1 KM_NOTK")
        A(f"s_lshl_b32 {s(sT0)}, {s(sXc)}, 8")
        A(f"s_add_u32 {s(sT0)}, {s(sT0)}, {WS_CNT + 10240}")
        A(f"v_mov_b32 {v(vTk)}, 1")
        A(f"v_mov_b32 {v(vT0)}, 0")
        A(f"s_mov_b64 exec, 1")
        A(f"buffer_atomic_add {v(vTk)}, {v(vT0)}, {s(sO,4)}, {s(sT0)} offen sc0")
        A(f"s_mov_b64 exec, -1")
        A.label("KM_NOTK")
    else:
        A(f"s_mov_b32 {s(sXc)}, {s(sXcd)}")
        A(f"s_mov_b32 {s(sTk)}, {s(sJ)}")
    def kv_group(g):
        A(f"s_add_u32 {s(sL)}, {s(sL0)}, {gstep*g}")
        A(f"s_lshl_b32 {s(sT0)}, {s(sQb)}, 3")
        A(f"s_add_u32 {s(sG)}, {s(sL)}, {s(sT0)}")
        A(f"s_and_b32 {s(sG)}, {s(sG)}, 63")
        A(f"s_lshl_b32 {s(sG)}, {s(sG)}, 10")
        A(f"s_add_u32 {s(sG)}, {s(sG)}, {s(sHb)}")
        A(f"s_lshl_b32 {s(sL)}, {s(sL)}, 10")
        A(f"s_add_u32 m0, {s(sL)}, {KR}")
        A(f"s_add_u32 {s(sT0)}, {s(sG)}, {WS_KF}")
        A(f"buffer_load_dwordx4 {v(vL16)}, {s(sO,4)}, {s(sT0)} offen lds")
        A(f"buffer_load_dwordx4 {v(vL16)}, {s(sO,4)}, {s(sT0)} offen offset:1024 lds")
        A(f"s_add_u32 m0, {s(sL)}, {VR}")
        A(f"s_add_u32 {s(sT0)}, {s(sG)}, {WS_VF}")
        A(f"buffer_load_dwordx4 {v(vL16)}, {s(sO,4)}, {s(sT0)} offen lds")
        A(f"buffer_load_dwordx4 {v(vL16)}, {s(sO,4)}, {s(sT0)} offen offset:1024 lds")
    for b in range(nqb):
        A(f"buffer_load_dwordx4 {v(Q[b],4)}, {v(vL16)}, {s(sO,4)}, {s(sB)} offen offset:{b*1024}")
    A(f"s_lshl_b32 {s(sT0)}, {s(sHead)}, 8")
    A(f"s_add_u32 {s(sT0)}, {s(sT0)}, {WS_KMAX}")
    A(f"buffer_load_dword {v(vKm)}, {v(vT2)}, {s(sO,4)}, {s(sT0)} offen")
    kv_group(0)
    K.stamp()
    ZROW = "zrow" in G.FLAGS
    ZR = ON + 4608
    A(f"v_mov_b32 {v(vT1)}, 0x3f803f80")
    A(f"v_lshlrev_b32 {v(vT0)}, 2, v0")
    A(f"v_add_u32 {v(vT0)}, {ON}, {v(vT0)}")
    A(f"ds_write_b32 {v(vT0)}, {v(vT1)}")
    A(f"ds_write_b32 {v(vT0)}, {v(vT1)} offset:2048")
    if ZROW:
        A(f"v_mov_b32 {v(vT2)}, 0")
        A(f"ds_write_b32 {v(vT0)}, {v(vT2)} offset:4608")
        A(f"ds_write_b32 {v(vT0)}, {v(vT2)} offset:{4608+2048}")
    A(f"v_cmp_gt_u32 vcc, 128, v0")
    A(f"s_and_saveexec_b64 {s(sSave,2)}, vcc")
    A(f"ds_write_b32 {v(vT0)}, {v(vT1)} offset:4096")
    if ZROW: A(f"ds_write_b32 {v(vT0)}, {v(vT2)} offset:{4608+4096}")
    A(f"s_mov_b64 exec, {s(sSave,2)}")
    A(f"s_lshl_b32 {s(sT0)}, {s(sKh)}, 15")
    A(f"v_add_u32 {v(vK)}, {s(sT0)}, {v(vL16)}")
    A(f"v_lshlrev_b32 {v(vT0)}, 8, {v(vHf)}")
    A(f"v_lshl_add_u32 {v(vT0)}, {v(vTok)}, 4, {v(vT0)}")
    A(f"s_add_u32 {s(sT0)}, {s(sT0)}, {VR}")
    A(f"v_add_u32 {v(vT0)}, {s(sT0)}, {v(vT0)}")
    A(f"v_subrev_u32 {v(vT1)}, 20, {v(vTok)}")
    A(f"v_cmp_gt_u32 vcc, 8, {v(vT1)}")
    if ZROW:
        A(f"v_mov_b32 {v(vT1)}, {ZR+192}")
        A(f"v_mov_b32 {v(vT2)}, {ZR+64}")
        A(f"v_cndmask_b32 {v(vT1)}, {v(vT1)}, {v(vT2)}, vcc")
        A(f"v_mov_b32 {v(vT2)}, {ON}")
        A(f"v_cmp_eq_u32 vcc, 16, {v(vTok)}")
        A(f"v_cndmask_b32 {v(vT1)}, {v(vT1)}, {v(vT2)}, vcc")
    else:
        A(f"v_mov_b32 {v(vT1)}, {ON}")
        A(f"v_mov_b32 {v(vT2)}, {ON+64}")
        A(f"v_cndmask_b32 {v(vT1)}, {v(vT1)}, {v(vT2)}, vcc")
    A(f"v_cmp_gt_u32 vcc, 16, {v(vTok)}")
    A(f"v_cndmask_b32 {v(vV)}, {v(vT1)}, {v(vT0)}, vcc")
    A(f"v_mov_b32 {v(vT1)}, 4096")
    A(f"v_cndmask_b32 {v(vVinc)}, 0, {v(vT1)}, vcc")
    Kf = [V.alloc(4) for _ in range(2)]; Vf0 = [V.alloc(4) for _ in range(2)]; Vf1 = [V.alloc(4) for _ in range(2)]
    QB = [dict(S=[V.alloc(16), V.alloc(16)], P=V.alloc(8), O=V.alloc(16), C=V.alloc(16)) for _ in range(nqb)]
    for b in range(nqb):
        for r in range(16): A(f"v_mov_b32 {v(QB[b]['O']+r)}, 0")
        for r in range(4, 8): A(f"v_mov_b32 {v(QB[b]['P']+r)}, 0")
    for r in range(4): A(f"v_mov_b32 {v(Vf1[1]+r)}, 0")
    A(f"s_waitcnt vmcnt(4)")
    wave_max64(A, vKm, sKm, sT0)
    bad = S.alloc(2)
    for b in range(nqb):
        un = QB[b]["S"][0]
        for i in range(4):
            A(f"v_lshlrev_b32 {v(un+2*i)}, 16, {v(Q[b]+i)}")
            A(f"v_and_b32 {v(un+2*i+1)}, 0xffff0000, {v(Q[b]+i)}")
        A(f"v_mul_f32 {v(vT0)}, {v(un)}, {v(un)}")
        for i in range(1, 8): A(f"v_fmac_f32 {v(vT0)}, {v(un+i)}, {v(un+i)}")
        swap_add(A, vT0, vT1)
        A(f"v_mul_f32 {v(vT0)}, {s(sKm)}, {v(vT0)}")
        A(f"v_sqrt_f32 {v(vT0)}, {v(vT0)}")
        A(f"v_mov_b32 {v(vT1)}, {f2u(0.01):#x}")
        A(f"v_fmac_f32 {v(vT1)}, {f2u(1.01):#x}, {v(vT0)}")
        A(f"v_mov_b32 {v(vT2)}, {f2u(40.0):#x}")
        A(f"v_cmp_nge_f32 vcc, {v(vT2)}, {v(vT1)}")
        if b == 0: A(f"s_mov_b64 {s(bad,2)}, vcc")
        else: A(f"s_or_b64 {s(bad,2)}, {s(bad,2)}, vcc")
        for r in range(16): A(f"v_sub_f32 {v(QB[b]['C']+r)}, 0, {v(vT1)}")
    if LOCAL:
        A(f"s_waitcnt vmcnt(0)")
        A(f"s_cmp_lg_u32 {s(sW8)}, 0")
        A(f"s_cbranch_scc1 KM_NOTK2")
        A(f"v_mov_b32 {v(vT0)}, {TKL}")
        A(f"s_mov_b64 exec, 1")
        A(f"ds_write_b32 {v(vT0)}, {v(vTk)}")
        A(f"s_mov_b64 exec, -1")
        A.label("KM_NOTK2")
    A(f"s_waitcnt vmcnt(0) lgkmcnt(0)")
    A("s_barrier")
    K.stamp()
    if LOCAL:
        A(f"v_mov_b32 {v(vT0)}, {TKL}")
        A(f"ds_read_b32 {v(vT1)}, {v(vT0)}")
        A(f"s_waitcnt lgkmcnt(0)")
        A(f"v_readfirstlane_b32 {s(sTk)}, {v(vT1)}")
    NT = 64 // ks
    mf = "v_mfma_f32_32x32x16_bf16"
    sPF = S.alloc(4); sPFo = S.alloc()
    A(f"s_lshl_b32 {s(sT0)}, {s(sJ)}, 2")
    A(f"s_add_u32 {s(sT0)}, {s(sT0)}, {s(sW)}")
    A(f"s_cmp_lt_u32 {s(sT0)}, 72")
    A(f"s_cselect_b32 {s(sPF)}, {s(sP1)}, {s(sP2)}")
    A(f"s_cselect_b32 {s(sPF+1)}, {s(sP1+1)}, {s(sP2+1)}")
    A(f"s_cselect_b32 {s(sT1)}, 16, 72")
    A(f"s_cmp_lt_u32 {s(sT0)}, 16")
    A(f"s_cselect_b32 {s(sPF)}, {s(sPwo)}, {s(sPF)}")
    A(f"s_cselect_b32 {s(sPF+1)}, {s(sPwo+1)}, {s(sPF+1)}")
    A(f"s_cselect_b32 {s(sT1)}, 0, {s(sT1)}")
    A(f"s_sub_u32 {s(sT0)}, {s(sT0)}, {s(sT1)}")
    A(f"s_lshl_b32 {s(sT0)}, {s(sT0)}, 15")
    A(f"s_add_u32 {s(sPF)}, {s(sPF)}, {s(sT0)}")
    A(f"s_addc_u32 {s(sPF+1)}, {s(sPF+1)}, 0")
    A(f"s_and_b32 {s(sPF+1)}, {s(sPF+1)}, 0xffff")
    A(f"s_mov_b32 {s(sPF+2)}, 32768")
    A(f"s_mov_b32 {s(sPF+3)}, 0x20000")
    A(f"s_mov_b32 {s(sPFo)}, 0")
    if "nopf" in G.FLAGS:
        A(f"s_mov_b32 {s(sPFo)}, 32768")
    if "pf2" in G.FLAGS:
        A(f"s_lshl_b32 {s(sT0)}, {s(sJ)}, 2")
        A(f"s_add_u32 {s(sT0)}, {s(sT0)}, {s(sW)}")
        A(f"s_cmp_lt_u32 {s(sT0)}, 72")
        A(f"s_cselect_b32 {s(sPFo)}, 0, 32768")
    vPF = V.alloc(4)
    A(f"s_cmp_lt_u32 {s(sW8)}, 4")
    A(f"s_cbranch_scc1 KM_OLD1")
    for g in range(1, 4):
        if ks == 2:
            A(f"s_lshr_b32 {s(sL)}, {s(sW)}, 1")
            A(f"s_lshl_b32 {s(sL)}, {s(sL)}, 5")
            A(f"s_and_b32 {s(sT0)}, {s(sW)}, 1")
            A(f"s_lshl_b32 {s(sT0)}, {s(sT0)}, 2")
            A(f"s_add_u32 {s(sL)}, {s(sL)}, {s(sT0)}")
            A(f"s_add_u32 {s(sL)}, {s(sL)}, {8*g}")
        else:
            A(f"s_lshl_b32 {s(sL)}, {s(sW)}, 2")
            A(f"s_add_u32 {s(sL)}, {s(sL)}, {16*g}")
        A(f"s_lshl_b32 {s(sT0)}, {s(sQb)}, 3")
        A(f"s_add_u32 {s(sG)}, {s(sL)}, {s(sT0)}")
        A(f"s_and_b32 {s(sG)}, {s(sG)}, 63")
        A(f"s_lshl_b32 {s(sG)}, {s(sG)}, 10")
        A(f"s_add_u32 {s(sG)}, {s(sG)}, {s(sHb)}")
        A(f"s_lshl_b32 {s(sL)}, {s(sL)}, 10")
        for reg, wsb in ((KR, WS_KF), (VR, WS_VF)):
            A(f"s_add_u32 m0, {s(sL)}, {reg}")
            A(f"s_add_u32 {s(sT0)}, {s(sG)}, {wsb}")
            for i in range(4):
                A(f"buffer_load_dwordx4 {v(vL16)}, {s(sO,4)}, {s(sT0)} offen offset:{i*1024} lds")
    A("s_waitcnt vmcnt(0)")
    A("s_barrier")
    if "cpf" in G.FLAGS:
        sPC = S.alloc(2)
        A(f"s_getpc_b64 {s(sPC,2)}")
        A.label("KM_PCREF")
        A(f"s_add_u32 {s(sPC)}, {s(sPC)}, KM_FIN-KM_PCREF")
        A(f"s_addc_u32 {s(sPC+1)}, {s(sPC+1)}, 0")
        A(f"s_mul_i32 {s(sT0)}, {s(sW)}, 3072")
        A(f"v_add_u32 {v(vT0)}, {s(sT0)}, {v(vL16)}")
        for i in range(3):
            A(f"global_load_dwordx4 {v(vPF,4)}, {v(vT0)}, {s(sPC,2)} offset:{i*1024}")
    if prio: A("s_setprio 1")
    A.label("KM_OLD1")
    A(f"s_cmp_lg_u64 {s(bad,2)}, 0")
    A(f"s_cbranch_scc1 KM_SLOW")
    A(f"ds_read_b128 {v(Kf[0],4)}, {v(vK)}")
    A(f"ds_read_b128 {v(Kf[1],4)}, {v(vK)} offset:1024")
    A(f"ds_read_b128 {v(Vf0[0],4)}, {v(vV)}")
    A("s_waitcnt lgkmcnt(2)")
    for b in range(nqb):
        A(f"{mf} {v(QB[b]['S'][0],16)}, {v(Kf[0],4)}, {v(Q[b],4)}, {v(QB[b]['C'],16)}")
    sA1i = S.alloc()
    a1it = 3 if ks == 1 else 1
    A(f"s_cmp_lt_u32 {s(sW8)}, 4")
    A(f"s_cselect_b32 {s(sA1i)}, {a1it}, -1")
    sPFl = S.alloc()
    A(f"s_cselect_b32 {s(sPFl)}, 0, 32768")
    A(f"s_mov_b32 {s(sIt)}, 0")
    A.label("KM_LOOP")
    A(f"s_cmp_lg_u32 {s(sIt)}, {s(sA1i)}")
    A(f"s_cbranch_scc1 KM_NOSYNC")
    A("s_barrier")
    A.label("KM_NOSYNC")
    if prio:
        A(f"s_cmp_lg_u32 {s(sIt)}, {PRIO_IT if ks == 1 else PRIO_IT // 2}")
        A(f"s_cbranch_scc1 KM_NP2")
        A("s_setprio 0")
        A.label("KM_NP2")
    npf = 3 if ks == 1 else 6
    A(f"s_cmp_ge_u32 {s(sPFo)}, {s(sPFl)}")
    A(f"s_cbranch_scc1 KM_NOPF")
    for i in range(npf):
        if i == 4: A(f"s_add_u32 {s(sT0)}, {s(sPFo)}, 4096")
        A(f"buffer_load_dwordx4 {v(vPF,4)}, {v(vL16)}, {s(sPF,4)}, {s(sPFo if i < 4 else sT0)} offen offset:{(i&3)*1024}")
    A(f"s_add_u32 {s(sPFo)}, {s(sPFo)}, {npf*1024}")
    A.label("KM_NOPF")
    if "tlb" in G.FLAGS:
        A(f"s_cmp_lg_u32 {s(sIt)}, {TLB_IT}")
        A(f"s_cbranch_scc1 KM_NOTLB")
        A(f"s_cmp_lt_u32 {s(sW8)}, 4")
        A(f"s_cbranch_scc1 KM_NOTLB")
        A(f"v_and_b32 {v(vT0)}, 7, {v(vLane)}")
        A(f"v_lshlrev_b32 {v(vT0)}, 21, {v(vT0)}")
        A(f"s_lshl_b32 {s(sT0)}, {s(sJ)}, 12")
        A(f"s_add_u32 {s(sT0)}, {s(sT0)}, {(8 << 20) + 0x100000}")
        A(f"s_mov_b64 exec, 0x7f")
        A(f"buffer_load_dword {v(vPF)}, {v(vT0)}, {s(sO,4)}, {s(sT0)} offen")
        A(f"s_mov_b64 exec, 1")
        A(f"v_mov_b32 {v(vT0)}, 0")
        A(f"global_load_dword {v(vPF+1)}, {v(vT0)}, {s(sPo,2)}")
        A(f"global_load_dword {v(vPF+2)}, {v(vT0)}, {s(sP1+2,2)}")
        A(f"global_load_dword {v(vPF+3)}, {v(vT0)}, {s(sP2+2,2)}")
        A(f"s_mov_b64 exec, -1")
        A.label("KM_NOTLB")
    for t in range(4):
        cur, nxt = t & 1, (t + 1) & 1
        A("s_waitcnt lgkmcnt(0)")
        for b in range(nqb):
            q = QB[b]; Sx = q["S"][cur]; Sn = q["S"][nxt]; P = q["P"]; O = q["O"]
            ex = [f"v_exp_f32 {v(Sx+i)}, {v(Sx+i)}" for i in range(16)]
            cv = [f"v_cvt_pk_bf16_f32 {v(P+i)}, {v(Sx+2*i)}, {v(Sx+2*i+1)}" for i in range(8)]
            A(f"{mf} {v(Sn,16)}, {v(Kf[nxt],4)}, {v(Q[b],4)}, {v(q['C'],16)}")
            for x in ex[0:4]: A(x)
            A(cv[0])
            for x in ex[4:6]: A(x)
            A(cv[1])
            A(f"{mf} {v(O,16)}, {v(Vf1[nxt],4)}, {v(P+4,4)}, {v(O,16)}")
            if b == 0:
                A(f"ds_read_b128 {v(Kf[cur],4)}, {v(vK)} offset:{(t+2)*1024}")
                A(f"ds_read_b128 {v(Vf0[nxt],4)}, {v(vV)} offset:{(t+1)*1024}")
                A(f"ds_read_b128 {v(Vf1[cur],4)}, {v(vV)} offset:{t*1024+512}")
            for x in ex[6:8]: A(x)
            A(cv[2])
            for x in ex[8:10]: A(x)
            A(cv[3])
            for x in ex[10:12]: A(x)
            A(cv[4])
            A(f"{mf} {v(O,16)}, {v(Vf0[cur],4)}, {v(P,4)}, {v(O,16)}")
            for x in ex[12:14]: A(x)
            A(cv[5])
            for x in ex[14:16]: A(x)
            A(cv[6])
            A(cv[7])
    A(f"v_add_u32 {v(vK)}, 4096, {v(vK)}")
    A(f"v_add_u32 {v(vV)}, {v(vVinc)}, {v(vV)}")
    A(f"s_add_u32 {s(sIt)}, {s(sIt)}, 1")
    A(f"s_cmp_lt_u32 {s(sIt)}, {NT//4}")
    A(f"s_cbranch_scc1 KM_LOOP")
    A("s_waitcnt lgkmcnt(0)")
    for b in range(nqb):
        A(f"{mf} {v(QB[b]['O'],16)}, {v(Vf1[1],4)}, {v(QB[b]['P']+4,4)}, {v(QB[b]['O'],16)}")
    A("s_branch KM_FIN")
    A.label("KM_SLOW")
    A(f"s_cmp_ge_u32 {s(sW8)}, 4")
    A(f"s_cbranch_scc1 KM_SLOW2")
    A("s_barrier")
    A.label("KM_SLOW2")
    for b in range(nqb):
        A(f"v_mov_b32 {v(QB[b]['C'])}, {f2u(-3.0e38):#x}")
    A(f"s_mov_b32 {s(sIt)}, 0")
    A.label("KM_SLOOP")
    A(f"ds_read_b128 {v(Kf[0],4)}, {v(vK)}")
    A(f"ds_read_b128 {v(Vf0[0],4)}, {v(vV)}")
    A(f"ds_read_b128 {v(Vf1[0],4)}, {v(vV)} offset:512")
    A("s_waitcnt lgkmcnt(0)")
    for b in range(nqb):
        q = QB[b]; Sx = q["S"][0]; P = q["P"]; O = q["O"]; m = q["C"]; mn = q["C"] + 1; al = q["C"] + 2
        A(f"{mf} {v(Sx,16)}, {v(Kf[0],4)}, {v(Q[b],4)}, 0")
        A(f"v_max_f32 {v(mn)}, {v(Sx)}, {v(Sx+1)}")
        for i in range(2, 16): A(f"v_max_f32 {v(mn)}, {v(mn)}, {v(Sx+i)}")
        swap_add(A, mn, vT1, "v_max_f32")
        A(f"v_max_f32 {v(mn)}, {v(mn)}, {v(m)}")
        A(f"v_sub_f32 {v(al)}, {v(m)}, {v(mn)}")
        A(f"v_exp_f32 {v(al)}, {v(al)}")
        A(f"v_mov_b32 {v(m)}, {v(mn)}")
        for i in range(16): A(f"v_sub_f32 {v(Sx+i)}, {v(Sx+i)}, {v(mn)}")
        for i in range(16): A(f"v_exp_f32 {v(Sx+i)}, {v(Sx+i)}")
        for i in range(16): A(f"v_mul_f32 {v(O+i)}, {v(al)}, {v(O+i)}")
        for i in range(8): A(f"v_cvt_pk_bf16_f32 {v(P+i)}, {v(Sx+2*i)}, {v(Sx+2*i+1)}")
        A(f"{mf} {v(O,16)}, {v(Vf0[0],4)}, {v(P,4)}, {v(O,16)}")
        A(f"{mf} {v(O,16)}, {v(Vf1[0],4)}, {v(P+4,4)}, {v(O,16)}")
    A(f"v_add_u32 {v(vK)}, 1024, {v(vK)}")
    A(f"v_lshrrev_b32 {v(vT0)}, 2, {v(vVinc)}")
    A(f"v_add_u32 {v(vV)}, {v(vT0)}, {v(vV)}")
    A(f"s_add_u32 {s(sIt)}, {s(sIt)}, 1")
    A(f"s_cmp_lt_u32 {s(sIt)}, {NT}")
    A(f"s_cbranch_scc1 KM_SLOOP")
    A(f"s_mov_b32 {s(sIt)}, -1")
    A.label("KM_FIN")
    if prio: A("s_setprio 0")
    K.stamp()
    if ks == 2:
        vM = [V.alloc(), V.alloc()]
        for b in range(2): A(f"v_sub_f32 {v(vM[b])}, 0, {v(QB[b]['C'])}")
        A(f"s_cmp_lg_u32 {s(sIt)}, -1")
        A(f"s_cbranch_scc1 KM_F1")
        for b in range(2): A(f"v_mov_b32 {v(vM[b])}, {v(QB[b]['C'])}")
        A.label("KM_F1")
        snd = QB[0]["S"][0]; kp = QB[0]["S"][1]
        A(f"s_cmp_eq_u32 {s(sKh)}, 0")
        A(f"s_cbranch_scc1 KM_F2")
        for r in range(9):
            A(f"v_mov_b32 {v(snd+r)}, {v(QB[0]['O']+r)}"); A(f"v_mov_b32 {v(kp+r)}, {v(QB[1]['O']+r)}")
        A(f"v_mov_b32 {v(snd+9)}, {v(vM[0])}"); A(f"v_mov_b32 {v(kp+9)}, {v(vM[1])}")
        A("s_branch KM_F3")
        A.label("KM_F2")
        for r in range(9):
            A(f"v_mov_b32 {v(snd+r)}, {v(QB[1]['O']+r)}"); A(f"v_mov_b32 {v(kp+r)}, {v(QB[0]['O']+r)}")
        A(f"v_mov_b32 {v(snd+9)}, {v(vM[1])}"); A(f"v_mov_b32 {v(kp+9)}, {v(vM[0])}")
        A.label("KM_F3")
        A("s_barrier")
        A(f"s_mul_i32 {s(sT0)}, {s(sW8)}, 2560")
        A(f"v_lshlrev_b32 {v(vT2)}, 2, {v(vLane)}")
        A(f"v_add_u32 {v(vT0)}, {s(sT0)}, {v(vT2)}")
        for r in range(10): A(f"ds_write_b32 {v(vT0)}, {v(snd+r)} offset:{r*256}")
        A("s_waitcnt lgkmcnt(0)")
        A("s_barrier")
        A(f"s_xor_b32 {s(sT0)}, {s(sW8)}, 4")
        A(f"s_mul_i32 {s(sT0)}, {s(sT0)}, 2560")
        A(f"v_add_u32 {v(vT0)}, {s(sT0)}, {v(vT2)}")
        for r in range(10): A(f"ds_read_b32 {v(snd+r)}, {v(vT0)} offset:{r*256}")
        A("s_waitcnt lgkmcnt(0)")
        A(f"v_max_f32 {v(vT0)}, {v(kp+9)}, {v(snd+9)}")
        A(f"v_sub_f32 {v(vT1)}, {v(kp+9)}, {v(vT0)}")
        A(f"v_sub_f32 {v(vT2)}, {v(snd+9)}, {v(vT0)}")
        A(f"v_exp_f32 {v(vT1)}, {v(vT1)}")
        A(f"v_exp_f32 {v(vT2)}, {v(vT2)}")
        for r in range(9): A(f"v_mul_f32 {v(kp+r)}, {v(vT1)}, {v(kp+r)}")
        for r in range(9): A(f"v_fmac_f32 {v(kp+r)}, {v(vT2)}, {v(snd+r)}")
        Of = kp
        A(f"s_add_u32 {s(sQt)}, {s(sQt)}, {s(sKh)}")
    else:
        Of = QB[0]["O"]
    if ZROW: swap_add(A, Of + 8, vT1)
    A(f"v_rcp_f32 {v(vT0)}, {v(Of+8)}")
    for r in range(8): A(f"v_mul_f32 {v(Of+r)}, {v(vT0)}, {v(Of+r)}")
    pk = QB[0]["P"]
    for i in range(4): A(f"v_cvt_pk_bf16_f32 {v(pk+i)}, {v(Of+2*i)}, {v(Of+2*i+1)}")
    A(f"s_lshl_b32 {s(sT0)}, {s(sQt)}, 15")
    A(f"s_lshl_b32 {s(sT1)}, {s(sHead)}, 10")
    A(f"s_add_u32 {s(sT0)}, {s(sT0)}, {s(sT1)}")
    A(f"s_add_u32 {s(sT0)}, {s(sT0)}, {WS_OF}")
    A(f"buffer_store_dwordx4 {v(pk,4)}, {v(vL16)}, {s(sO,4)}, {s(sT0)} offen sc1")
    A("s_waitcnt vmcnt(0)")
    A("s_barrier")
    K.stamp()
    V.release(mkV); S.release(mkS)
    sRt, sCt, sR128, sCt4, sTb, sTr, sTi, sQbS = [S.alloc() for _ in range(8)]
    A(f"s_mov_b32 {s(sQbS)}, {s(sJ2)}")
    A(f"s_mov_b32 {s(sXcd)}, {s(sXc)}")
    A(f"s_and_b32 {s(sJ)}, {s(sTk)}, 31")
    A(f"s_and_b32 {s(sJ3)}, {s(sJ)}, 3")
    A(f"s_lshr_b32 {s(sJ2)}, {s(sJ)}, 2")
    A(f"s_lshl_b32 {s(sRt)}, {s(sXcd)}, 2")
    A(f"s_add_u32 {s(sRt)}, {s(sRt)}, {s(sJ3)}")
    A(f"s_mov_b32 {s(sCt)}, {s(sJ2)}")
    A(f"s_and_b32 {s(sTr)}, {s(sW8)}, 1")
    A(f"s_bfe_u32 {s(sTb)}, {s(sW8)}, 0x10001")
    A(f"s_lshr_b32 {s(sTi)}, {s(sW8)}, 2")
    A(f"s_lshl_b32 {s(sR128)}, {s(sXcd)}, 1")
    A(f"s_and_b32 {s(sT0)}, {s(sJ)}, 1")
    A(f"s_add_u32 {s(sR128)}, {s(sR128)}, {s(sT0)}")
    A(f"s_lshr_b32 {s(sCt4)}, {s(sJ)}, 1")
    vBl = V.alloc(); vWoff = V.alloc(); vW1off = V.alloc()
    tr_pi_base(A, vBl, vLane, vHf, vT0, vT1)
    sB1, sB2 = S.alloc(), S.alloc()
    sRw1 = S.alloc(4); sRw2 = S.alloc(4)
    def dma_w1(p):
        A(f"s_lshl_b32 {s(sT1)}, {s(sW)}, 12")
        for c in range(4):
            for q in range(4):
                A(f"s_add_u32 m0, {s(sT1)}, {W1 + p*65536 + c*16384 + q*1024}")
                A(f"s_add_u32 {s(sT0)}, {s(sB1)}, {(128*c + 8*q)*3584 + p*128}")
                A(f"buffer_load_dwordx4 {v(vW1off)}, {s(sRw1,4)}, {s(sT0)} offen lds")
    def dma_w2(c):
        A(f"s_lshl_b32 {s(sT1)}, {s(sW)}, 15")
        for q in range(8):
            A(f"s_add_u32 m0, {s(sT1)}, {W2 + (c&3)*8192 + q*1024}")
            A(f"s_add_u32 {s(sT0)}, {s(sB2)}, {(64*c + 8*q)*1024}")
            A(f"buffer_load_dwordx4 {v(vWoff)}, {s(sRw2,4)}, {s(sT0)} offen lds")
    def dma_w1_all8(p):
        A(f"s_lshl_b32 {s(sT1)}, {s(sW8)}, 13")
        A(f"s_mul_i32 {s(sB)}, {s(sW8)}, {64*3584}")
        A(f"s_lshl_b32 {s(sT0)}, {s(sCt4)}, 8")
        A(f"s_add_u32 {s(sB)}, {s(sB)}, {s(sT0)}")
        for q in range(8):
            A(f"s_add_u32 m0, {s(sT1)}, {W1 + p*65536 + q*1024}")
            A(f"s_add_u32 {s(sT0)}, {s(sB)}, {8*q*3584 + p*128}")
            A(f"buffer_load_dwordx4 {v(vW1off)}, {s(sRw1,4)}, {s(sT0)} offen lds")
    def dma_w2_lo8():
        A(f"s_lshr_b32 {s(sT1)}, {s(sW8)}, 2")
        A(f"s_mul_i32 {s(sB)}, {s(sT1)}, {448*1024}")
        A(f"s_lshl_b32 {s(sT0)}, {s(sCt)}, 7")
        A(f"s_add_u32 {s(sB)}, {s(sB)}, {s(sT0)}")
        A(f"s_lshl_b32 {s(sT0)}, {s(sW)}, 16")
        A(f"s_add_u32 {s(sB)}, {s(sB)}, {s(sT0)}")
        A(f"s_lshl_b32 {s(sT1)}, {s(sW8)}, 13")
        for q in range(8):
            A(f"s_add_u32 m0, {s(sT1)}, {W2 + q*1024}")
            A(f"s_add_u32 {s(sT0)}, {s(sB)}, {8*q*1024}")
            A(f"buffer_load_dwordx4 {v(vWoff)}, {s(sRw2,4)}, {s(sT0)} offen lds")
    def dma_w2_hi_upper():
        A(f"s_lshr_b32 {s(sT1)}, {s(sW)}, 1")
        A(f"s_add_u32 {s(sT1)}, {s(sT1)}, 2")
        A(f"s_mul_i32 {s(sB)}, {s(sT1)}, {448*1024}")
        A(f"s_lshl_b32 {s(sT0)}, {s(sCt)}, 7")
        A(f"s_add_u32 {s(sB)}, {s(sB)}, {s(sT0)}")
        A(f"s_and_b32 {s(sT0)}, {s(sW)}, 1")
        A(f"s_lshl_b32 {s(sT0)}, {s(sT0)}, 17")
        A(f"s_add_u32 {s(sB)}, {s(sB)}, {s(sT0)}")
        A(f"s_lshl_b32 {s(sT1)}, {s(sW)}, 14")
        for q in range(16):
            A(f"s_add_u32 m0, {s(sT1)}, {W2 + 65536 + q*1024}")
            A(f"s_add_u32 {s(sT0)}, {s(sB)}, {8*q*1024}")
            A(f"buffer_load_dwordx4 {v(vWoff)}, {s(sRw2,4)}, {s(sT0)} offen lds")
    sW2b, sW2l = S.alloc(), S.alloc()
    def w2_all16_setup():
        A(f"s_lshr_b32 {s(sT1)}, {s(sW8)}, 1")
        A(f"s_mul_i32 {s(sW2b)}, {s(sT1)}, {448*1024}")
        A(f"s_lshl_b32 {s(sT0)}, {s(sCt)}, 7")
        A(f"s_add_u32 {s(sW2b)}, {s(sW2b)}, {s(sT0)}")
        A(f"s_and_b32 {s(sT0)}, {s(sW8)}, 1")
        A(f"s_lshl_b32 {s(sT0)}, {s(sT0)}, 17")
        A(f"s_add_u32 {s(sW2b)}, {s(sW2b)}, {s(sT0)}")
        A(f"s_lshl_b32 {s(sW2l)}, {s(sW8)}, 14")
    def w2_piece(pc):
        A(f"s_add_u32 m0, {s(sW2l)}, {W2 + pc*1024}")
        A(f"s_add_u32 {s(sW2b)}, {s(sW2b)}, {8192 if pc else 0}")
        A(f"buffer_load_dwordx4 {v(vWoff)}, {s(sRw2,4)}, {s(sW2b)} offen lds")
    def if_upper(tag, body):
        A(f"s_cmp_lt_u32 {s(sW8)}, 4")
        A(f"s_cbranch_scc1 KM_NU_{tag}")
        body()
        A.label(f"KM_NU_{tag}")
    def dma_wo():
        mk = V.mark()
        vXoff = V.alloc()
        A(f"s_and_b32 {s(sT0)}, {s(sW)}, 1")
        A(f"s_lshl_b32 {s(sT0)}, {s(sT0)}, 2")
        A(f"v_lshrrev_b32 {v(vT0)}, 4, {v(vLane)}")
        A(f"v_or_b32 {v(vT0)}, {s(sT0)}, {v(vT0)}")
        A(f"v_and_b32 {v(vT1)}, 7, {v(vLane)}")
        A(f"v_xor_b32 {v(vT0)}, {v(vT0)}, {v(vT1)}")
        A(f"v_lshlrev_b32 {v(vT0)}, 4, {v(vT0)}")
        A(f"v_lshrrev_b32 {v(vT1)}, 3, {v(vLane)}")
        A(f"v_lshlrev_b32 {v(vT1)}, 10, {v(vT1)}")
        A(f"v_add_u32 {v(vXoff)}, {v(vT0)}, {v(vT1)}")
        srd(A, sRa, sPwo, 512 * 512 * 2)
        srd(A, sRb, sPx, 2048 * 512 * 2)
        A(f"s_lshl_b32 {s(sB)}, {s(sW)}, 17")
        A(f"s_lshl_b32 {s(sT0)}, {s(sCt)}, 7")
        A(f"s_add_u32 {s(sB)}, {s(sB)}, {s(sT0)}")
        A(f"s_lshl_b32 {s(sT1)}, {s(sW)}, 14")
        for g in range(16):
            A(f"s_add_u32 m0, {s(sT1)}, {WO + g*1024}")
            A(f"s_add_u32 {s(sT0)}, {s(sB)}, {g*8192}")
            A(f"buffer_load_dwordx4 {v(vWoff)}, {s(sRa,4)}, {s(sT0)} offen lds")
        A(f"s_lshl_b32 {s(sB)}, {s(sRt)}, 16")
        A(f"s_lshl_b32 {s(sT0)}, {s(sCt)}, 7")
        A(f"s_add_u32 {s(sB)}, {s(sB)}, {s(sT0)}")
        A(f"s_lshl_b32 {s(sT0)}, {s(sW)}, 13")
        A(f"s_add_u32 {s(sB)}, {s(sB)}, {s(sT0)}")
        A(f"s_lshl_b32 {s(sT1)}, {s(sW)}, 10")
        for n in range(2):
            A(f"s_add_u32 m0, {s(sT1)}, {XT + n*4096}")
            A(f"s_add_u32 {s(sT0)}, {s(sB)}, {n*32768}")
            A(f"buffer_load_dwordx4 {v(vXoff)}, {s(sRb,4)}, {s(sT0)} offen lds")
        A(f"s_mul_i32 {s(sB1)}, {s(sW)}, {32*3584}")
        A(f"s_lshl_b32 {s(sT0)}, {s(sCt4)}, 8")
        A(f"s_add_u32 {s(sB1)}, {s(sB1)}, {s(sT0)}")
        A(f"s_mul_i32 {s(sB2)}, {s(sW)}, {448*1024}")
        A(f"s_lshl_b32 {s(sT0)}, {s(sCt)}, 7")
        A(f"s_add_u32 {s(sB2)}, {s(sB2)}, {s(sT0)}")
        A("s_waitcnt vmcnt(0)")
        V.release(mk)
    w_voff(A, vWoff, vLane, 1024, vT0, vT1)
    w_voff(A, vW1off, vLane, 3584, vT0, vT1)
    srd(A, sRw1, sP1, 512 * 1792 * 2)
    srd(A, sRw2, sP2, 1792 * 512 * 2)
    if_upper("wo", dma_wo)
    def w0_sync2():
        cnt_off(sCn, 0, lambda d: A(f"s_mov_b32 {s(d)}, {s(sQbS)}"))
        def slot2():
            A(f"s_and_b32 {s(sT0)}, s2, 7")
            A(f"s_lshl_b32 {s(sT0)}, {s(sT0)}, 2")
            A(f"s_bfe_u32 {s(sT1)}, s2, 0x20003")
            A(f"s_add_u32 {s(sT0)}, {s(sT0)}, {s(sT1)}")
        signal(sCn, slot=slot2)
        cnt_off(sCn, 0, lambda d: A(f"s_mov_b32 {s(d)}, {s(sXcd)}"))
        poll(sCn, 32, "2")
    hpk4 = hpk
    mkC = V.mark()
    Af = [V.alloc(4) for _ in range(8)]
    acc = [V.alloc(16) for _ in range(2)]
    Bf = [[V.alloc(4) for _ in range(2)] for _ in range(2)]
    vB = V.alloc(); xr = V.alloc(4)
    sKq = S.alloc()
    A(f"s_lshr_b32 {s(sKq)}, {s(sW8)}, 1")
    A(f"s_lshl_b32 {s(sT0)}, {s(sKq)}, 14")
    A(f"v_add_u32 {v(vB)}, {s(sT0)}, {v(vBl)}")
    A(f"s_lshl_b32 {s(sB)}, {s(sRt)}, 16")
    A(f"s_lshl_b32 {s(sT0)}, {s(sTr)}, 15")
    A(f"s_add_u32 {s(sB)}, {s(sB)}, {s(sT0)}")
    A(f"s_lshl_b32 {s(sT0)}, {s(sKq)}, 13")
    A(f"s_add_u32 {s(sB)}, {s(sB)}, {s(sT0)}")
    A(f"s_add_u32 {s(sB)}, {s(sB)}, {WS_OF}")
    sB4 = S.alloc()
    A(f"s_add_u32 {s(sB4)}, {s(sB)}, 4096")
    only_wave0("2", w0_sync2)
    A("s_barrier")
    K.stamp()
    for i in range(8):
        A(f"buffer_load_dwordx4 {v(Af[i],4)}, {v(vL16)}, {s(sO,4)}, {s(sB if i < 4 else sB4)} offen offset:{(i&3)*1024} sc1")
    def rd3(i):
        for b in range(2):
            A(f"ds_read_b64_tr_b16 {v(Bf[i&1][b],2)}, {v(vB)} offset:{WO + i*2048 + b*512}")
            A(f"ds_read_b64_tr_b16 {v(Bf[i&1][b]+2,2)}, {v(vB)} offset:{WO + i*2048 + b*512 + 1024}")
    rd3(0)
    A(f"v_lshrrev_b32 {v(vT2)}, 1, {v(vTok)}")
    A(f"v_and_b32 {v(vT2)}, 7, {v(vT2)}")
    A(f"s_lshl_b32 {s(sT0)}, {s(sTr)}, 12")
    A(f"s_add_u32 {s(sT0)}, {s(sT0)}, {XT}")
    A(f"v_lshlrev_b32 {v(vT1)}, 7, {v(vTok)}")
    A(f"v_lshl_add_u32 {v(vT1)}, {v(vHf)}, 3, {v(vT1)}")
    A(f"v_add_u32 {v(vT1)}, {s(sT0)}, {v(vT1)}")
    A(f"s_lshl_b32 {s(sT1)}, {s(sTb)}, 2")
    A(f"s_lshl_b32 {s(sT0)}, {s(sTi)}, 1")
    A(f"s_add_u32 {s(sT1)}, {s(sT1)}, {s(sT0)}")
    for a_ in range(2):
        A(f"s_add_u32 {s(sT0)}, {s(sT1)}, {a_}")
        A(f"v_xor_b32 {v(vT0)}, {s(sT0)}, {v(vT2)}")
        A(f"v_lshl_add_u32 {v(vT0)}, {v(vT0)}, 4, {v(vT1)}")
        A(f"ds_read_b64 {v(xr+2*a_,2)}, {v(vT0)}")
    for i in range(8):
        if i + 1 < 8:
            rd3(i + 1)
            A(f"s_waitcnt lgkmcnt(4)")
        else:
            A(f"s_waitcnt lgkmcnt(0)")
        A(f"s_waitcnt vmcnt({7-i})")
        for b in range(2):
            A(f"v_mfma_f32_32x32x16_bf16 {v(acc[b],16)}, {v(Bf[i&1][b],4)}, {v(Af[i],4)}, {'0' if i == 0 else v(acc[b],16)}")
    A(f"s_lshl_b32 {s(sT0)}, {s(sTr)}, 14")
    A(f"s_lshl_b32 {s(sT1)}, {s(sKq)}, 12")
    A(f"s_add_u32 {s(sT0)}, {s(sT0)}, {s(sT1)}")
    A(f"s_add_u32 {s(sT0)}, {s(sT0)}, {RED}")
    A(f"v_add_u32 {v(vT0)}, {s(sT0)}, {v(vL16)}")
    for b in range(2):
        for q in range(4):
            A(f"ds_write_b128 {v(vT0)}, {v(acc[b]+4*q,4)} offset:{b*32768 + q*1024}")
    A("s_waitcnt lgkmcnt(0)")
    A("s_barrier")
    K.stamp()
    def own_reduce(REDB, dst):
        A(f"s_lshl_b32 {s(sT0)}, {s(sW)}, 14")
        A(f"s_lshl_b32 {s(sT1)}, {s(sTi)}, 11")
        A(f"s_add_u32 {s(sT0)}, {s(sT0)}, {s(sT1)}")
        A(f"s_add_u32 {s(sT0)}, {s(sT0)}, {REDB}")
        A(f"v_add_u32 {v(vT0)}, {s(sT0)}, {v(vL16)}")
        for p in range(4):
            for q in range(2):
                A(f"ds_read_b128 {v(dst+8*p+4*q,4)}, {v(vT0)} offset:{p*4096 + q*1024}")
        A("s_waitcnt lgkmcnt(4)")
        for r in range(8): A(f"v_add_f32 {v(dst+r)}, {v(dst+r)}, {v(dst+8+r)}")
        A("s_waitcnt lgkmcnt(0)")
        for r in range(8): A(f"v_add_f32 {v(dst+16+r)}, {v(dst+16+r)}, {v(dst+24+r)}")
        for r in range(8): A(f"v_add_f32 {v(dst+r)}, {v(dst+r)}, {v(dst+16+r)}")
    def w1p0():
        A(f"s_cmp_ge_u32 {s(sJ)}, 28")
        A(f"s_cbranch_scc1 KM_NW1A")
        dma_w1(0)
        A.label("KM_NW1A")
    out = Af[0]
    own_reduce(RED, out)
    un = acc[0]
    for i in range(4):
        A(f"v_lshlrev_b32 {v(un+2*i)}, 16, {v(xr+i)}")
        A(f"v_and_b32 {v(un+2*i+1)}, 0xffff0000, {v(xr+i)}")
    for r in range(8): A(f"v_add_f32 {v(out+r)}, {v(out+r)}, {v(un+r)}")
    for i in range(4): A(f"v_cvt_pk_bf16_f32 {v(hpk4+i)}, {v(out+2*i)}, {v(out+2*i+1)}")
    sR32o, sKs = S.alloc(), S.alloc()
    A(f"s_lshl_b32 {s(sR32o)}, {s(sRt)}, 1")
    A(f"s_add_u32 {s(sR32o)}, {s(sR32o)}, {s(sTr)}")
    A(f"s_lshl_b32 {s(sKs)}, {s(sCt)}, 2")
    A(f"s_lshl_b32 {s(sT0)}, {s(sTb)}, 1")
    A(f"s_add_u32 {s(sKs)}, {s(sKs)}, {s(sT0)}")
    A(f"s_add_u32 {s(sKs)}, {s(sKs)}, {s(sTi)}")
    A(f"s_lshl_b32 {s(sB)}, {s(sR32o)}, 15")
    A(f"s_lshl_b32 {s(sT0)}, {s(sKs)}, 10")
    A(f"s_add_u32 {s(sB)}, {s(sB)}, {s(sT0)}")
    A(f"s_add_u32 {s(sB)}, {s(sB)}, {WS_HF}")
    A(f"buffer_store_dwordx4 {v(hpk4,4)}, {v(vL16)}, {s(sO,4)}, {s(sB)} offen" + LSC)
    for i in range(4):
        A(f"v_lshlrev_b32 {v(un+2*i)}, 16, {v(hpk4+i)}")
        A(f"v_and_b32 {v(un+2*i+1)}, 0xffff0000, {v(hpk4+i)}")
    st = acc[1]
    A(f"v_add_f32 {v(st)}, {v(un)}, {v(un+1)}")
    A(f"v_mul_f32 {v(st+1)}, {v(un)}, {v(un)}")
    A(f"v_fmac_f32 {v(st+1)}, {v(un+1)}, {v(un+1)}")
    for r in range(2, 8):
        A(f"v_add_f32 {v(st)}, {v(st)}, {v(un+r)}")
        A(f"v_fmac_f32 {v(st+1)}, {v(un+r)}, {v(un+r)}")
    swap_add(A, st, vT1)
    swap_add(A, st + 1, vT2)
    A(f"s_lshl_b32 {s(sT0)}, {s(sW8)}, 8")
    A(f"s_add_u32 {s(sT0)}, {s(sT0)}, {STP}")
    A(f"v_lshl_add_u32 {v(vT0)}, {v(vTok)}, 3, {s(sT0)}")
    A(f"ds_write_b64 {v(vT0)}, {v(st,2)}")
    A("s_waitcnt lgkmcnt(0)")
    A("s_barrier")
    A(f"s_cmp_ge_u32 {s(sW8)}, 2")
    A(f"s_cbranch_scc1 KM_NHS")
    for p in range(4): A(f"ds_read_b64 {v(st+2*p,2)}, {v(vT0)} offset:{p*512}")
    A("s_waitcnt lgkmcnt(0)")
    for c in range(2):
        A(f"v_add_f32 {v(st+c)}, {v(st+c)}, {v(st+2+c)}")
        A(f"v_add_f32 {v(st+4+c)}, {v(st+4+c)}, {v(st+6+c)}")
    for c in range(2): A(f"v_add_f32 {v(st+c)}, {v(st+c)}, {v(st+4+c)}")
    A(f"s_lshl_b32 {s(sT0)}, {s(sR32o)}, 11")
    A(f"s_lshl_b32 {s(sT1)}, {s(sCt)}, 8")
    A(f"s_add_u32 {s(sT0)}, {s(sT0)}, {s(sT1)}")
    A(f"s_add_u32 {s(sT0)}, {s(sT0)}, {WS_HS}")
    A(f"v_lshlrev_b32 {v(vT0)}, 3, {v(vTok)}")
    A("s_mov_b32 exec_hi, 0")
    A(f"buffer_store_dwordx2 {v(st,2)}, {v(vT0)}, {s(sO,4)}, {s(sT0)} offen" + LSC)
    A("s_mov_b64 exec, -1")
    A.label("KM_NHS")
    A(f"s_cmp_ge_u32 {s(sJ)}, 28")
    A(f"s_cbranch_scc1 KM_NW1A")
    dma_w1_all8(0)
    A("s_waitcnt vmcnt(8) lgkmcnt(0)")
    A("s_branch KM_NW1B")
    A.label("KM_NW1A")
    if W2R:
        A("s_waitcnt vmcnt(0) lgkmcnt(0)")
    else:
        dma_w2_lo8()
        A("s_waitcnt vmcnt(8) lgkmcnt(0)")
    A.label("KM_NW1B")
    A("s_barrier")
    K.stamp()
    V.release(mkC)
    def sig3():
        def idx(d):
            A(f"s_lshl_b32 {s(d)}, {s(sXcd)}, 1")
            A(f"s_lshr_b32 {s(sT0)}, {s(sJ3)}, 1")
            A(f"s_add_u32 {s(d)}, {s(d)}, {s(sT0)}")
        cnt_off(sCn, 2048, idx)
        def slot3():
            A(f"s_and_b32 {s(sT0)}, {s(sJ3)}, 1")
            A(f"s_lshl_b32 {s(sT0)}, {s(sT0)}, 3")
            A(f"s_add_u32 {s(sT0)}, {s(sT0)}, {s(sJ2)}")
        signal(sCn, LOCAL, slot=slot3)
    only_wave0("3s", sig3)
    A(f"s_cmp_ge_u32 {s(sJ)}, 28")
    A(f"s_cbranch_scc1 KM_NOP4")
    if_upper("w1", lambda: dma_w1(1))
    A("s_waitcnt vmcnt(0)") if False else None
    def w0_sync3():
        cnt_off(sCn, 2048, lambda d: A(f"s_mov_b32 {s(d)}, {s(sR128)}"))
        poll(sCn, 16, "3")
    mk4 = V.mark()
    Af = [V.alloc(4) for _ in range(16)]
    acc = [V.alloc(16) for _ in range(4)]
    Bf = [[V.alloc(4) for _ in range(4)] for _ in range(2)]
    csa = [V.alloc(4)]; msk = V.alloc(4)
    vB = [V.alloc() for _ in range(4)]; vB2 = [V.alloc() for _ in range(4)]
    hs = V.alloc(8); vb1 = V.alloc()
    sR32 = S.alloc(); sQ = [S.alloc() for _ in range(4)]
    srd(A, sRa, sP1 + 2, 1792 * 2)
    A(f"s_lshl_b32 {s(sR32)}, {s(sR128)}, 2")
    A(f"s_add_u32 {s(sR32)}, {s(sR32)}, {s(sW)}")
    A(f"v_lshlrev_b32 {v(vT1)}, 2, {v(vLane)}")
    A(f"s_lshl_b32 {s(sT1)}, {s(sCt4)}, 8")
    A(f"buffer_load_dword {v(vb1)}, {v(vT1)}, {s(sRa,4)}, {s(sT1)} offen")
    for q in range(4):
        A(f"s_xor_b32 {s(sQ[q])}, {s(sW)}, {q}")
        A(f"s_lshl_b32 {s(sQ[q])}, {s(sQ[q])}, 10")
    A(f"s_lshl_b32 {s(sT1)}, {s(sTi)}, 15")
    for q in range(4):
        A(f"s_lshl_b32 {s(sT0)}, {s(sQ[q])}, 1")
        A(f"s_add_u32 {s(sT0)}, {s(sT0)}, {s(sT1)}")
        A(f"v_add_u32 {v(vB[q])}, {s(sT0)}, {v(vBl)}")
        A(f"v_add_u32 {v(vB2[q])}, 65536, {v(vB[q])}")
    A(f"s_cmp_lt_u32 {s(sW8)}, 2")
    A(f"s_cbranch_scc1 KM_NCS")
    A(f"s_cmp_ge_u32 {s(sW8)}, 4")
    A(f"s_cbranch_scc1 KM_NCS")
    A(f"s_and_b32 {s(sT0)}, {s(sW8)}, 1")
    A(f"s_lshl_b32 {s(sT0)}, {s(sT0)}, 8")
    A(f"v_lshlrev_b32 {v(vT1)}, 2, {v(vLane)}")
    A(f"v_add_u32 {v(vT1)}, {s(sT0)}, {v(vT1)}")
    A(f"s_lshl_b32 {s(sT0)}, {s(sCt4)}, 9")
    A(f"s_add_u32 {s(sT0)}, {s(sT0)}, {WS_CSG}")
    for kc in range(8):
        A(f"buffer_load_dword {v(hs+kc)}, {v(vT1)}, {s(sO,4)}, {s(sT0)} offen")
        if kc < 7: A(f"s_add_u32 {s(sT0)}, {s(sT0)}, 7168")
    A("s_waitcnt vmcnt(0)")
    for st_ in (4, 2, 1):
        for i in range(st_): A(f"v_add_f32 {v(hs+i)}, {v(hs+i)}, {v(hs+i+st_)}")
    A(f"v_add_u32 {v(vT1)}, {CS}, {v(vT1)}")
    A(f"ds_write_b32 {v(vT1)}, {v(hs)}")
    A.label("KM_NCS")
    A("s_waitcnt vmcnt(0)")
    A(f"v_lshlrev_b32 {v(hs+2)}, 16, {v(vb1)}")
    A(f"v_and_b32 {v(hs+3)}, 0xffff0000, {v(vb1)}")
    A(f"v_lshlrev_b32 {v(vT0)}, 3, {v(vLane)}")
    A(f"v_add_u32 {v(vT0)}, {BI}, {v(vT0)}")
    A(f"ds_write_b64 {v(vT0)}, {v(hs+2,2)}")
    A(f"s_lshl_b32 {s(sB)}, {s(sR32)}, 15")
    A(f"s_lshl_b32 {s(sT0)}, {s(sTi)}, 14")
    A(f"s_add_u32 {s(sB)}, {s(sB)}, {s(sT0)}")
    A(f"s_add_u32 {s(sB)}, {s(sB)}, {WS_HF}")
    sHs = S.alloc()
    A(f"s_lshl_b32 {s(sHs)}, {s(sR32)}, 11")
    A(f"s_add_u32 {s(sHs)}, {s(sHs)}, {WS_HS}")
    A(f"v_lshlrev_b32 {v(vT2)}, 3, {v(vTok)}")
    A(f"v_lshl_add_u32 {v(vT2)}, {v(vHf)}, 10, {v(vT2)}")
    for q in range(4): A(f"s_add_u32 {s(sQ[q])}, {s(sQ[q])}, {s(sB)}")
    A("s_waitcnt vmcnt(0) lgkmcnt(0)")
    only_wave0("3", w0_sync3)
    K.stamp(1)
    A("s_barrier")
    K.stamp()
    def lda4(g):
        for q in range(4):
            if g: A(f"s_add_u32 {s(sQ[q])}, {s(sQ[q])}, 4096")
            A(f"buffer_load_dwordx4 {v(Af[4*g+q],4)}, {v(vL16)}, {s(sO,4)}, {s(sQ[q])} offen" + LLD)
    lda4(0)
    for i in range(4):
        A(f"buffer_load_dwordx2 {v(hs+2*i,2)}, {v(vT2)}, {s(sO,4)}, {s(sHs)} offen offset:{i*256}" + LLD)
    lda4(1)
    def rd4(n):
        for t in range(4):
            p, b = t >> 1, t & 1
            o = (n >> 2) * 8192 + b * 512
            base = (vB if p == 0 else vB2)[n & 3]
            A(f"ds_read_b64_tr_b16 {v(Bf[n&1][t],2)}, {v(base)} offset:{o}")
            A(f"ds_read_b64_tr_b16 {v(Bf[n&1][t]+2,2)}, {v(base)} offset:{o+1024}")
    rd4(0)
    A(f"v_lshlrev_b32 {v(acc[0])}, 16, {v(vb1)}") if False else None
    for n in range(16):
        if n + 1 < 16:
            rd4(n + 1)
            A("s_waitcnt lgkmcnt(8)")
        else:
            A("s_waitcnt lgkmcnt(0)")
        if n % 4 == 0: A(f"s_waitcnt vmcnt({ {0: 8, 4: 8, 8: 4, 12: 0}[n] })")
        for t in range(4):
            A(f"v_mfma_f32_32x32x16_bf16 {v(acc[t],16)}, {v(Bf[n&1][t],4)}, {v(Af[n],4)}, {'0' if n == 0 else v(acc[t],16)}")
        if n in (0, 1): lda4(n + 2)
    K.stamp()
    for st_ in (2, 1):
        for i in range(st_):
            A(f"v_add_f32 {v(hs+2*i)}, {v(hs+2*i)}, {v(hs+2*(i+st_))}")
            A(f"v_add_f32 {v(hs+2*i+1)}, {v(hs+2*i+1)}, {v(hs+2*(i+st_)+1)}")
    swap_add(A, hs, vT1)
    swap_add(A, hs + 1, vT2)
    A("s_waitcnt lgkmcnt(0)")
    A("s_barrier")
    A(f"s_lshl_b32 {s(sT0)}, {s(sW8)}, 13")
    A(f"s_add_u32 {s(sT0)}, {s(sT0)}, 65536")
    A(f"v_add_u32 {v(vT0)}, {s(sT0)}, {v(vL16)}")
    A(f"s_cmp_eq_u32 {s(sTi)}, 0")
    A(f"s_cbranch_scc1 KM_E1")
    for t in range(2):
        for q in range(4): A(f"ds_write_b128 {v(vT0)}, {v(acc[t]+4*q,4)} offset:{t*4096 + q*1024}")
    for r in range(32): A(f"v_mov_b32 {v(acc[0]+r)}, {v(acc[2]+r)}")
    A("s_branch KM_E2")
    A.label("KM_E1")
    for t in range(2):
        for q in range(4): A(f"ds_write_b128 {v(vT0)}, {v(acc[2+t]+4*q,4)} offset:{t*4096 + q*1024}")
    A.label("KM_E2")
    A("s_waitcnt lgkmcnt(0)")
    A("s_barrier")
    K.stamp()
    A(f"s_xor_b32 {s(sT0)}, {s(sW8)}, 4")
    A(f"s_lshl_b32 {s(sT0)}, {s(sT0)}, 13")
    A(f"s_add_u32 {s(sT0)}, {s(sT0)}, 65536")
    A(f"v_add_u32 {v(vT0)}, {s(sT0)}, {v(vL16)}")
    for t in range(2):
        for q in range(4): A(f"ds_read_b128 {v(acc[2+t]+4*q,4)}, {v(vT0)} offset:{t*4096 + q*1024}")
    def R(i): return Af[0] + 16 * i
    A(f"s_lshl_b32 {s(sT0)}, {s(sTi)}, 8")
    A(f"s_add_u32 {s(sT0)}, {s(sT0)}, {CS}")
    A(f"v_lshl_add_u32 {v(vT2)}, {v(vHf)}, 4, {s(sT0)}")
    for t in range(2):
        for a_ in range(4): A(f"ds_read_b128 {v(R(t)+4*a_,4)}, {v(vT2)} offset:{t*128 + a_*32}")
    A("s_waitcnt lgkmcnt(8)")
    vMean, vRs, vMr = csa[0], csa[0] + 1, csa[0] + 2
    vC1, vC2 = msk, msk + 1
    c1 = -2.0 * 0.7978845608028654 * LOG2E
    c2 = c1 * 0.044715
    A(f"v_mul_f32 {v(vMean)}, {f2u(1/512.):#x}, {v(hs)}")
    A(f"v_mul_f32 {v(vT1)}, {v(vMean)}, {v(vMean)}")
    A(f"v_mov_b32 {v(vT0)}, {f2u(1/512.):#x}")
    A(f"v_fma_f32 {v(vT1)}, {v(hs+1)}, {v(vT0)}, -{v(vT1)}")
    A(f"v_max_f32 {v(vT1)}, 0, {v(vT1)}")
    A(f"v_add_f32 {v(hs+2)}, {f2u(1e-5):#x}, {v(vT1)}")
    A(f"v_rcp_f32 {v(vT0)}, {v(hs+2)}")
    A(f"v_rsq_f32 {v(vRs)}, {v(hs+2)}")
    A(f"v_mul_f32 {v(vT1)}, {v(vT1)}, {v(vT0)}")
    A(f"v_add_f32 {v(vT1)}, {f2u(1e-5):#x}, {v(vT1)}")
    A(f"v_rsq_f32 {v(vT1)}, {v(vT1)}")
    A(f"v_mov_b32 {v(vC1)}, {f2u(c1):#x}")
    A(f"v_mov_b32 {v(vC2)}, {f2u(c2):#x}")
    A(f"v_mul_f32 {v(vRs)}, {v(vRs)}, {v(vT1)}")
    A(f"v_mul_f32 {v(vMr)}, {v(vMean)}, {v(vRs)}")
    for t in range(2):
        for a_ in range(4): A(f"ds_read_b128 {v(R(2+t)+4*a_,4)}, {v(vT2)} offset:{512 + t*128 + a_*32}")
    if W2R:
        A("s_waitcnt lgkmcnt(8)")
        A("s_barrier")
        w2_all16_setup()
    for r in range(32): A(f"v_add_f32 {v(acc[0]+r)}, {v(acc[0]+r)}, {v(acc[2]+r)}")
    A(f"s_mul_i32 {s(sB)}, {s(sR32)}, {112*1024}")
    A(f"s_lshl_b32 {s(sT0)}, {s(sCt4)}, 13")
    A(f"s_add_u32 {s(sB)}, {s(sB)}, {s(sT0)}")
    A(f"s_lshl_b32 {s(sT0)}, {s(sTi)}, 12")
    A(f"s_add_u32 {s(sB)}, {s(sB)}, {s(sT0)}")
    A(f"s_add_u32 {s(sB)}, {s(sB)}, {WS_MF}")
    A("s_waitcnt lgkmcnt(0)")
    pcs = list(range(16)) if W2R else []
    def dm():
        for _ in range(2):
            if pcs: w2_piece(pcs.pop(0))
    for t in range(2):
        x = acc[t]; T = R(2 + t); Z = acc[2 + t]
        for r in range(16): A(f"v_fma_f32 {v(T+r)}, -{v(vMr)}, {v(R(t)+r)}, {v(T+r)}")
        dm()
        for r in range(16): A(f"v_fma_f32 {v(x+r)}, {v(x+r)}, {v(vRs)}, {v(T+r)}")
        dm()
        for r in range(16): A(f"v_mul_f32 {v(Z+r)}, {v(x+r)}, {v(x+r)}")
        dm()
        for r in range(16): A(f"v_fma_f32 {v(Z+r)}, {v(Z+r)}, {v(vC2)}, {v(vC1)}")
        dm()
        for r in range(16): A(f"v_mul_f32 {v(Z+r)}, {v(Z+r)}, {v(x+r)}")
        dm()
        for r in range(16): A(f"v_exp_f32 {v(Z+r)}, {v(Z+r)}")
        dm()
        for r in range(16): A(f"v_add_f32 {v(Z+r)}, 1.0, {v(Z+r)}")
        dm()
        for r in range(16): A(f"v_rcp_f32 {v(Z+r)}, {v(Z+r)}")
        dm()
        for r in range(16): A(f"v_mul_f32 {v(x+r)}, {v(x+r)}, {v(Z+r)}")
        pk = R(t)
        for i in range(8): A(f"v_cvt_pk_bf16_f32 {v(pk+i)}, {v(x+2*i)}, {v(x+2*i+1)}")
        A(f"buffer_store_dwordx4 {v(pk,4)}, {v(vL16)}, {s(sO,4)}, {s(sB)} offen offset:{t*2048}" + LSC)
        A(f"buffer_store_dwordx4 {v(pk+4,4)}, {v(vL16)}, {s(sO,4)}, {s(sB)} offen offset:{t*2048+1024}" + LSC)
    assert not pcs
    if W2R:
        A("s_waitcnt vmcnt(0)")
    else:
        dma_w2_lo8()
        A("s_waitcnt vmcnt(8)")
    A("s_barrier")
    K.stamp()
    def sig4():
        cnt_off(sCn, 6144, lambda d: A(f"s_mov_b32 {s(d)}, {s(sR128)}"))
        signal(sCn, LOCAL, slot=lambda: A(f"s_mov_b32 {s(sT0)}, {s(sCt4)}"))
    only_wave0("4s", sig4)
    V.release(mk4)
    if W2R:
        A("s_branch KM_P5")
        A.label("KM_NOP4")
        w2_all16_setup()
        for pc in range(16): w2_piece(pc)
        A.label("KM_P5")
    else:
        A.label("KM_NOP4")
    mkPR = V.mark()
    PR = V.alloc(96)
    V.release(mkPR)
    def w2_regs():
        for pc in range(24):
            A(f"s_add_u32 {s(sT0)}, {s(sB2)}, {(256 + 8*pc)*1024}")
            A(f"buffer_load_dwordx4 {v(PR+4*pc,4)}, {v(vWoff)}, {s(sRw2,4)}, {s(sT0)} offen")
    if_upper("w2", w2_regs if W2R else dma_w2_hi_upper)
    def w0_sync4():
        def idx(d):
            A(f"s_lshl_b32 {s(d)}, {s(sXcd)}, 1")
            A(f"s_lshr_b32 {s(sT0)}, {s(sJ3)}, 1")
            A(f"s_add_u32 {s(d)}, {s(d)}, {s(sT0)}")
        cnt_off(sCn, 6144, idx)
        poll(sCn, 14, "4")
    NW = 12
    Af = [[V.alloc(4) for _ in range(2)] for _ in range(NW)]
    acc = [V.alloc(16) for _ in range(4)]
    Bf = [[V.alloc(4) for _ in range(2)] for _ in range(2)]
    vB = V.alloc(); b2r = V.alloc(4)
    sA0, sA1 = S.alloc(), S.alloc()
    srd(A, sRa, sP2 + 2, 512 * 2)
    srd(A, sRb, sPo, 2048 * 512 * 2)
    A(f"s_lshl_b32 {s(sT0)}, {s(sCt)}, 7")
    A(f"s_lshl_b32 {s(sT1)}, {s(sTb)}, 6")
    A(f"s_add_u32 {s(sT0)}, {s(sT0)}, {s(sT1)}")
    A(f"s_lshl_b32 {s(sT1)}, {s(sTi)}, 5")
    A(f"s_add_u32 {s(sT0)}, {s(sT0)}, {s(sT1)}")
    A(f"v_lshlrev_b32 {v(vT0)}, 3, {v(vHf)}")
    for a_ in range(2):
        A(f"buffer_load_dwordx2 {v(b2r+2*a_,2)}, {v(vT0)}, {s(sRa,4)}, {s(sT0)} offen offset:{a_*16}")
    A(f"s_cmp_lt_u32 {s(sW8)}, 4")
    A(f"s_cbranch_scc1 KM_C5")
    A("s_waitcnt vmcnt(0)")
    A("s_barrier")
    if W2R:
        A(f"s_lshl_b32 {s(sT0)}, {s(sW)}, 15")
        A(f"v_add_u32 {v(vT0)}, {s(sT0)}, {v(vL16)}")
    for y in range(1, 7):
        if y >= 4: A(f"s_waitcnt lgkmcnt(0)" if W2R else f"s_waitcnt vmcnt({8*(6-y)})")
        A("s_barrier")
        if y + 3 < 7:
            if W2R:
                c = y + 3
                for q in range(8):
                    A(f"ds_write_b128 {v(vT0)}, {v(PR+4*(8*(c-4)+q),4)} offset:{W2 + (c&3)*8192 + q*1024}")
            else:
                dma_w2(y + 3)
    A("s_barrier")
    A("s_branch KM_Z")
    A.label("KM_C5")
    A(f"s_mul_i32 {s(sA0)}, {s(sRt)}, {2*112*1024}")
    A(f"s_mul_i32 {s(sT0)}, {s(sW)}, {28*1024}")
    A(f"s_add_u32 {s(sA0)}, {s(sA0)}, {s(sT0)}")
    A(f"s_add_u32 {s(sA0)}, {s(sA0)}, {WS_MF}")
    A(f"s_add_u32 {s(sA1)}, {s(sA0)}, {112*1024}")
    A(f"s_lshl_b32 {s(sT0)}, {s(sW)}, 15")
    A(f"v_add_u32 {v(vB)}, {s(sT0)}, {v(vBl)}")
    def lda(n):
        for r, sa in ((0, sA0), (1, sA1)):
            if n % 4 == 0 and n: A(f"s_add_u32 {s(sa)}, {s(sa)}, 4096")
            A(f"buffer_load_dwordx4 {v(Af[n % NW][r],4)}, {v(vL16)}, {s(sO,4)}, {s(sa)} offen offset:{(n&3)*1024}" + LLD)
    def rd5(n):
        c, i = n >> 2, n & 3
        for b in range(2):
            o = W2 + (c & 3) * 8192 + i * 2048 + b * 512
            A(f"ds_read_b64_tr_b16 {v(Bf[n&1][b],2)}, {v(vB)} offset:{o}")
            A(f"ds_read_b64_tr_b16 {v(Bf[n&1][b]+2,2)}, {v(vB)} offset:{o+1024}")
    A("s_waitcnt vmcnt(0)")
    only_wave0("4", w0_sync4)
    K.stamp(2)
    A("s_barrier")
    K.stamp()
    issued = 3
    for n in range(issued): lda(n)
    rd5(0)
    for n in range(28):
        if n + 1 < 28:
            if (n + 1) % 4 == 0:
                A("s_waitcnt lgkmcnt(0)")
                A("s_barrier")
            rd5(n + 1)
            A("s_waitcnt lgkmcnt(4)")
        else:
            A("s_waitcnt lgkmcnt(0)")
        A(f"s_waitcnt vmcnt({2*(issued - 1 - n)})")
        for b in range(2):
            for r in range(2):
                t = 2 * b + r
                A(f"v_mfma_f32_32x32x16_bf16 {v(acc[t],16)}, {v(Bf[n&1][b],4)}, {v(Af[n%NW][r],4)}, {'0' if n == 0 else v(acc[t],16)}")
        tgt = min(28, n + 1 + WIN5, issued + 2)
        while issued < tgt:
            lda(issued); issued += 1
    K.stamp()
    A("s_barrier")
    A(f"s_lshl_b32 {s(sT0)}, {s(sW)}, 12")
    A(f"s_add_u32 {s(sT0)}, {s(sT0)}, {RED5}")
    A(f"v_add_u32 {v(vT0)}, {s(sT0)}, {v(vL16)}")
    for t in range(4):
        for q in range(4):
            A(f"ds_write_b128 {v(vT0)}, {v(acc[t]+4*q,4)} offset:{t*16384 + q*1024}")
    A("s_waitcnt lgkmcnt(0)")
    A.label("KM_Z")
    A("s_barrier")
    out = Af[0][0]
    own_reduce(RED5, out)
    un = acc[0]
    for i in range(4):
        A(f"v_lshlrev_b32 {v(un+2*i)}, 16, {v(hpk4+i)}")
        A(f"v_and_b32 {v(un+2*i+1)}, 0xffff0000, {v(hpk4+i)}")
    for r in range(8): A(f"v_add_f32 {v(out+r)}, {v(out+r)}, {v(un+r)}")
    A("s_waitcnt vmcnt(0)")
    for i in range(4):
        A(f"v_lshlrev_b32 {v(un+2*i)}, 16, {v(b2r+i)}")
        A(f"v_and_b32 {v(un+2*i+1)}, 0xffff0000, {v(b2r+i)}")
    for r in range(8): A(f"v_add_f32 {v(out+r)}, {v(out+r)}, {v(un+r)}")
    pk = acc[1]
    for i in range(4): A(f"v_cvt_pk_bf16_f32 {v(pk+i)}, {v(out+2*i)}, {v(out+2*i+1)}")
    A(f"v_permlane32_swap_b32 {v(pk)}, {v(pk+2)}")
    A(f"v_permlane32_swap_b32 {v(pk+1)}, {v(pk+3)}")
    A(f"s_lshl_b32 {s(sT0)}, {s(sRt)}, 16")
    A(f"s_lshl_b32 {s(sT1)}, {s(sTr)}, 15")
    A(f"s_add_u32 {s(sT0)}, {s(sT0)}, {s(sT1)}")
    A(f"s_lshl_b32 {s(sT1)}, {s(sCt)}, 7")
    A(f"s_add_u32 {s(sT0)}, {s(sT0)}, {s(sT1)}")
    A(f"s_lshl_b32 {s(sT1)}, {s(sTb)}, 6")
    A(f"s_add_u32 {s(sT0)}, {s(sT0)}, {s(sT1)}")
    A(f"s_lshl_b32 {s(sT1)}, {s(sTi)}, 5")
    A(f"s_add_u32 {s(sT0)}, {s(sT0)}, {s(sT1)}")
    A(f"v_lshlrev_b32 {v(vT0)}, 10, {v(vTok)}")
    A(f"v_lshl_add_u32 {v(vT0)}, {v(vHf)}, 4, {v(vT0)}")
    A(f"buffer_store_dwordx4 {v(pk,4)}, {v(vT0)}, {s(sRb,4)}, {s(sT0)} offen")
    K.stamp_out(sO, 1, vT0, vT1)
    K.rt_end(sO, 1, vT0, vT1)
    A.label(END)
    A("s_endpgm")
    print("km vgprs", V.hi, "sgprs", S.hi, "lds", K.lds)
    return K

def k1b():
    K = Kern("k1_qkv_kernel", (256, 1, 1), (512, 1, 1), 134656)
    A, V, S = K.A, K.V, K.S
    END = "K1_END"
    sWs = S.alloc(2); sPx = S.alloc(2); sPq = S.alloc(2); sP1 = S.alloc(4)
    A(f"s_load_dwordx4 {s(sPx if sPx % 4 == 0 else sPx,2)}, s[0:1], 0") if False else None
    A(f"s_load_dwordx2 {s(sPx,2)}, s[0:1], 0")
    A(f"s_load_dwordx2 {s(sPq,2)}, s[0:1], 8")
    A(f"s_load_dwordx2 {s(sWs,2)}, s[0:1], 80")
    A(f"s_load_dwordx4 {s(sP1,4)}, s[0:1], 32")
    A(f"s_cmp_ge_u32 s2, 256")
    A(f"s_cbranch_scc1 {END}")
    K.rt_begin()
    K.stamp()
    sO = S.alloc(4); sRa = S.alloc(4); sRb = S.alloc(4)
    sW8, sW, sXcd, sJ, sT0, sT1, sB, sJ3, sJ2, sCn = [S.alloc() for _ in range(10)]
    sSave = S.alloc(2)
    vLane, vT0, vT1, vT2, vHf, vTok, vL16 = [V.alloc() for _ in range(7)]
    wave_ids(K, sW8, sW, vLane, vT0)
    A(f"s_and_b32 {s(sXcd)}, s2, 7")
    A(f"s_lshr_b32 {s(sJ)}, s2, 3")
    A(f"v_lshlrev_b32 {v(vL16)}, 4, {v(vLane)}")
    A(f"v_lshrrev_b32 {v(vHf)}, 5, {v(vLane)}")
    A(f"v_and_b32 {v(vTok)}, 31, {v(vLane)}")
    K1SC = ' sc1' if 'k1sc1' in G.FLAGS else ''
    XR = 0; WR = 32768; CS1 = WR + 4 * 24576; ST1 = CS1 + 1536
    mkV1 = V.mark(); mkS1 = S.mark()
    sRt1, sHq, sRot, sXb, sWb, sLx, sLw, sx, sw, sTt, sCh = [S.alloc() for _ in range(11)]
    A(f"s_and_b32 {s(sT0)}, {s(sXcd)}, 3")
    A(f"s_lshl_b32 {s(sT0)}, {s(sT0)}, 3")
    A(f"s_and_b32 {s(sT1)}, {s(sJ)}, 7")
    A(f"s_add_u32 {s(sRt1)}, {s(sT0)}, {s(sT1)}")
    A(f"s_lshr_b32 {s(sT0)}, {s(sXcd)}, 2")
    A(f"s_lshl_b32 {s(sT0)}, {s(sT0)}, 2")
    A(f"s_lshr_b32 {s(sHq)}, {s(sJ)}, 3")
    A(f"s_lshl_b32 {s(sRot)}, {s(sHq)}, 1")
    A(f"s_add_u32 {s(sRot)}, {s(sRot)}, {s(sT1)}")
    A(f"s_add_u32 {s(sRot)}, {s(sRot)}, {s(sXcd)}")
    A(f"s_add_u32 {s(sHq)}, {s(sHq)}, {s(sT0)}")
    A(f"s_and_b32 {s(sTt)}, {s(sW)}, 1")
    A(f"s_lshr_b32 {s(sCh)}, {s(sW)}, 1")
    A(f"s_cmp_lt_u32 {s(sW8)}, 4")
    A(f"s_cbranch_scc1 K1B_P1C")
    mkL1 = V.mark()
    vWoff1, vXoff1 = V.alloc(), V.alloc()
    R0 = V.alloc(32); AC = V.alloc(8); UN = V.alloc(8); vo = V.alloc()
    sKc, sCt28, sFl = S.alloc(), S.alloc(), S.alloc()
    sPFt = S.alloc(4)
    A(f"s_mul_i32 {s(sWb)}, {s(sW)}, {8*3072}")
    A(f"s_lshl_b32 {s(sT0)}, {s(sHq)}, 7")
    A(f"s_add_u32 {s(sWb)}, {s(sWb)}, {s(sT0)}")
    A(f"s_lshl_b32 {s(sLx)}, {s(sW)}, 10")
    A(f"s_add_u32 {s(sLw)}, {s(sLx)}, {WR}")
    w_voff(A, vWoff1, vLane, 3072, vT0, vT1)
    A(f"s_lshl_b32 {s(sXb)}, {s(sRt1)}, 16")
    A(f"s_lshl_b32 {s(sT0)}, {s(sW)}, 13")
    A(f"s_add_u32 {s(sXb)}, {s(sXb)}, {s(sT0)}")
    A(f"s_lshl_b32 {s(sT0)}, {s(sTt)}, 2")
    A(f"v_lshrrev_b32 {v(vT0)}, 4, {v(vLane)}")
    A(f"v_or_b32 {v(vT0)}, {s(sT0)}, {v(vT0)}")
    A(f"v_and_b32 {v(vT1)}, 7, {v(vLane)}")
    A(f"v_xor_b32 {v(vT0)}, {v(vT0)}, {v(vT1)}")
    A(f"v_lshlrev_b32 {v(vT0)}, 4, {v(vT0)}")
    A(f"v_lshrrev_b32 {v(vT1)}, 3, {v(vLane)}")
    A(f"v_lshlrev_b32 {v(vT1)}, 10, {v(vT1)}")
    A(f"v_add_u32 {v(vXoff1)}, {v(vT0)}, {v(vT1)}")
    A("s_waitcnt lgkmcnt(0)")
    srd(A, sRa, sPq, 512 * 1536 * 2)
    srd(A, sRb, sPx, 2048 * 512 * 2)
    srd(A, sO, sWs, WS_SIZE)
    def dma_stage1(st):
        slot = st & 3
        A(f"s_add_u32 {s(sT0)}, {s(sRot)}, {st}")
        A(f"s_and_b32 {s(sT0)}, {s(sT0)}, 7")
        A(f"s_lshl_b32 {s(sx)}, {s(sT0)}, 7")
        A(f"s_add_u32 {s(sx)}, {s(sx)}, {s(sXb)}")
        A(f"s_mul_i32 {s(sw)}, {s(sT0)}, {64*3072}")
        A(f"s_add_u32 {s(sw)}, {s(sw)}, {s(sWb)}")
        for n in range(2):
            A(f"s_add_u32 m0, {s(sLx)}, {XR + slot*8192 + n*4096}")
            A(f"s_add_u32 {s(sT1)}, {s(sx)}, {n*32768}")
            A(f"buffer_load_dwordx4 {v(vXoff1)}, {s(sRb,4)}, {s(sT1)} offen lds")
        for b in range(3):
            for n in range(2):
                A(f"s_add_u32 m0, {s(sLw)}, {slot*24576 + b*8192 + n*4096}")
                A(f"s_add_u32 {s(sT1)}, {s(sw)}, {b*1024 + n*32*3072}")
                A(f"buffer_load_dwordx4 {v(vWoff1)}, {s(sRa,4)}, {s(sT1)} offen lds")
    A(f"s_cmp_lg_u32 {s(sW8)}, 5")
    A(f"s_cbranch_scc1 K1B_NOZ")
    A(f"s_cmp_ge_u32 s2, 57")
    A(f"s_cbranch_scc1 K1B_NOZ")
    A(f"s_lshl_b32 {s(sT0)}, s2, 8")
    A(f"s_add_u32 {s(sT0)}, {s(sT0)}, {WS_CNT}")
    A(f"v_mov_b32 {v(vT0)}, 0")
    A(f"v_mov_b32 {v(vT1)}, 0")
    A(f"s_mov_b64 exec, 1")
    A(f"buffer_store_dword {v(vT1)}, {v(vT0)}, {s(sO,4)}, {s(sT0)} offen")
    A(f"s_mov_b64 exec, -1")
    A.label("K1B_NOZ")
    dma_stage1(0); dma_stage1(1)
    A("s_waitcnt vmcnt(8)")
    A("s_barrier")
    dma_stage1(2); dma_stage1(3)
    for sp in range(1, 8):
        vm = {1: 16, 2: 16, 3: 16, 4: 16, 5: 16, 6: 8, 7: 0}[sp]
        A(f"s_waitcnt vmcnt({vm})")
        A("s_barrier")
        if sp + 3 < 8: dma_stage1(sp + 3)
    A(f"s_mov_b32 {s(sFl)}, 0")
    A(f"s_cmp_lg_u32 {s(sW8)}, 4")
    A(f"s_cbranch_scc1 K1B_NOCS0")
    A(f"s_cmp_ge_u32 s2, 224")
    A(f"s_cbranch_scc1 K1B_NOCS0")
    A(f"s_mov_b32 {s(sFl)}, 1")
    A(f"s_mul_i32 {s(sKc)}, s2, 2341")
    A(f"s_lshr_b32 {s(sKc)}, {s(sKc)}, 16")
    A(f"s_mul_i32 {s(sCt28)}, {s(sKc)}, 28")
    A(f"s_sub_u32 {s(sCt28)}, s2, {s(sCt28)}")
    A(f"v_lshrrev_b32 {v(vo)}, 3, {v(vLane)}")
    A(f"v_mul_u32_u24 {v(vo)}, 3584, {v(vo)}")
    A(f"v_and_b32 {v(vT0)}, 7, {v(vLane)}")
    A(f"v_lshl_add_u32 {v(vo)}, {v(vT0)}, 4, {v(vo)}")
    A(f"s_mul_i32 {s(sT0)}, {s(sKc)}, {64*3584}")
    A(f"s_lshl_b32 {s(sT1)}, {s(sCt28)}, 7")
    A(f"s_add_u32 {s(sT0)}, {s(sT0)}, {s(sT1)}")
    A(f"s_mov_b32 {s(sPFt)}, {s(sP1)}")
    A(f"s_and_b32 {s(sPFt+1)}, {s(sP1+1)}, 0xffff")
    A(f"s_mov_b32 {s(sPFt+2)}, {512*1792*2}")
    A(f"s_mov_b32 {s(sPFt+3)}, 0x20000")
    for n in range(8):
        A(f"buffer_load_dwordx4 {v(R0+4*n,4)}, {v(vo)}, {s(sPFt,4)}, {s(sT0)} offen")
        A(f"s_add_u32 {s(sT0)}, {s(sT0)}, {8*3584}")
    A.label("K1B_NOCS0")
    A("s_barrier")
    A(f"s_cmp_lg_u32 {s(sW8)}, 4")
    A(f"s_cbranch_scc1 K1B_NOCS1")
    A(f"s_cmp_eq_u32 {s(sFl)}, 0")
    A(f"s_cbranch_scc1 K1B_NOCS1")
    A("s_waitcnt vmcnt(0)")
    for i in range(8): A(f"v_mov_b32 {v(AC+i)}, 0")
    for n in range(8):
        for i in range(4):
            A(f"v_lshlrev_b32 {v(UN+2*i)}, 16, {v(R0+4*n+i)}")
            A(f"v_and_b32 {v(UN+2*i+1)}, 0xffff0000, {v(R0+4*n+i)}")
        for i in range(8): A(f"v_add_f32 {v(AC+i)}, {v(AC+i)}, {v(UN+i)}")
    for i in range(8): A(f"v_add_f32_dpp {v(AC+i)}, {v(AC+i)}, {v(AC+i)} row_ror:8 row_mask:0xf bank_mask:0xf")
    for sw_ in ("v_permlane16_swap_b32", "v_permlane32_swap_b32"):
        for i in range(8): A(f"v_mov_b32 {v(UN+i)}, {v(AC+i)}")
        for i in range(8): A(f"{sw_} {v(AC+i)}, {v(UN+i)}")
        for i in range(8): A(f"v_add_f32 {v(AC+i)}, {v(AC+i)}, {v(UN+i)}")
    A(f"s_mul_i32 {s(sT0)}, {s(sKc)}, 7168")
    A(f"s_lshl_b32 {s(sT1)}, {s(sCt28)}, 8")
    A(f"s_add_u32 {s(sT0)}, {s(sT0)}, {s(sT1)}")
    A(f"s_add_u32 {s(sT0)}, {s(sT0)}, {WS_CSG}")
    A(f"v_and_b32 {v(vT0)}, 7, {v(vLane)}")
    A(f"v_lshlrev_b32 {v(vT0)}, 5, {v(vT0)}")
    A(f"s_mov_b64 exec, 0xff")
    A(f"buffer_store_dwordx4 {v(AC,4)}, {v(vT0)}, {s(sO,4)}, {s(sT0)} offen")
    A(f"buffer_store_dwordx4 {v(AC+4,4)}, {v(vT0)}, {s(sO,4)}, {s(sT0)} offen offset:16")
    A(f"s_mov_b64 exec, -1")
    A.label("K1B_NOCS1")
    A("s_endpgm")
    V.release(mkL1)
    A.label("K1B_P1C")
    vXA = [V.alloc() for _ in range(4)]; vWA = [V.alloc() for _ in range(8)]
    acc = [V.alloc(16) for _ in range(3)]
    sq = V.alloc(8); sm = V.alloc(8)
    mk = V.mark()
    csa = [V.alloc(4) for _ in range(3)]; msk = V.alloc(4)
    Xf = [V.alloc(4) for _ in range(2)]
    Wf = [[V.alloc(4) for _ in range(3)] for _ in range(2)]
    un = V.alloc(8); vMask = V.alloc()
    A(f"v_lshrrev_b32 {v(vT2)}, 1, {v(vTok)}")
    A(f"v_and_b32 {v(vT2)}, 7, {v(vT2)}")
    A(f"s_lshl_b32 {s(sT1)}, {s(sTt)}, 12")
    for pos in range(4):
        A(f"s_xor_b32 {s(sT0)}, {s(sW)}, {pos}")
        A(f"s_lshl_b32 {s(sT0)}, {s(sT0)}, 1")
        A(f"v_add_u32 {v(vT0)}, {s(sT0)}, {v(vHf)}")
        A(f"v_xor_b32 {v(vT0)}, {v(vT0)}, {v(vT2)}")
        A(f"v_lshlrev_b32 {v(vT0)}, 4, {v(vT0)}")
        A(f"v_lshl_add_u32 {v(vT0)}, {v(vTok)}, 7, {v(vT0)}")
        A(f"v_add_u32 {v(vXA[pos])}, {s(sT1)}, {v(vT0)}")
    A(f"v_and_b32 {v(vT0)}, 15, {v(vLane)}")
    A(f"v_lshrrev_b32 {v(vT1)}, 2, {v(vT0)}")
    A(f"v_lshlrev_b32 {v(vT1)}, 6, {v(vT1)}")
    A(f"v_lshl_add_u32 {v(vT1)}, {v(vHf)}, 10, {v(vT1)}")
    A(f"v_and_b32 {v(vT0)}, 3, {v(vT0)}")
    A(f"v_lshl_add_u32 {v(vT1)}, {v(vT0)}, 3, {v(vT1)}")
    A(f"v_bfe_u32 {v(vT0)}, {v(vLane)}, 4, 1")
    A(f"v_lshl_add_u32 {v(vT1)}, {v(vT0)}, 5, {v(vT1)}")
    A(f"s_lshl_b32 {s(sw)}, {s(sCh)}, 9")
    A(f"s_add_u32 {s(sw)}, {s(sw)}, {WR}")
    for pos in range(4):
        A(f"s_xor_b32 {s(sT0)}, {s(sW)}, {pos}")
        A(f"s_lshl_b32 {s(sT0)}, {s(sT0)}, 11")
        A(f"s_add_u32 {s(sT0)}, {s(sT0)}, {s(sw)}")
        A(f"v_add_u32 {v(vWA[pos])}, {s(sT0)}, {v(vT1)}")
        A(f"v_add_u32 {v(vWA[4+pos])}, {2*24576}, {v(vWA[pos])}")
    A(f"v_and_b32 {v(vT0)}, 15, {v(vLane)}")
    A(f"v_bfe_u32 {v(vT1)}, {v(vLane)}, 4, 1")
    A(f"v_cmp_eq_u32 vcc, {v(vT0)}, {v(vT1)}")
    A(f"v_mov_b32 {v(vT0)}, 0x3f803f80")
    for i in range(4): A(f"v_cndmask_b32 {v(msk+i)}, 0, {v(vT0)}, vcc")
    A(f"v_mov_b32 {v(vMask)}, 0xffff0000")
    for i in range(8):
        A(f"v_mov_b32 {v(sq+i)}, 0"); A(f"v_mov_b32 {v(sm+i)}, 0")
    def reads1(n):
        slot = (n >> 2) & 3; pos = n & 3; bf = n & 1
        A(f"ds_read_b128 {v(Xf[bf],4)}, {v(vXA[pos])} offset:{XR + slot*8192}")
        wa = vWA[pos + (4 if slot >= 2 else 0)]
        for b in range(3):
            o = (slot & 1) * 24576 + b * 8192
            A(f"ds_read_b64_tr_b16 {v(Wf[bf][b],2)}, {v(wa)} offset:{o}")
            A(f"ds_read_b64_tr_b16 {v(Wf[bf][b]+2,2)}, {v(wa)} offset:{o+256}")
    def compute1(n):
        bf = n & 1; pos = n & 3
        c = lambda b: "0" if n == 0 else v(acc[b], 16)
        cs_ = pos in (0, 2); st_ = pos in (0, 1)
        def mc(b):
            if cs_: A(f"v_mfma_f32_16x16x32_bf16 {v(csa[b],4)}, {v(Wf[bf][b],4)}, {v(msk,4)}, {'0' if n == 0 else v(csa[b],4)}")
        A(f"v_mfma_f32_32x32x16_bf16 {v(acc[0],16)}, {v(Wf[bf][0],4)}, {v(Xf[bf],4)}, {c(0)}")
        if st_:
            for i in range(4):
                A(f"v_lshlrev_b32 {v(un+2*i)}, 16, {v(Xf[bf]+i)}")
                A(f"v_and_b32 {v(un+2*i+1)}, {v(vMask)}, {v(Xf[bf]+i)}")
        mc(0)
        A(f"v_mfma_f32_32x32x16_bf16 {v(acc[1],16)}, {v(Wf[bf][1],4)}, {v(Xf[bf],4)}, {c(1)}")
        if st_:
            for i in range(8): A(f"v_fmac_f32 {v(sq+i)}, {v(un+i)}, {v(un+i)}")
        mc(1)
        A(f"v_mfma_f32_32x32x16_bf16 {v(acc[2],16)}, {v(Xf[bf],4)}, {v(Wf[bf][2],4)}, {c(2)}")
        if st_:
            for i in range(8): A(f"v_add_f32 {v(sm+i)}, {v(un+i)}, {v(sm+i)}")
        mc(2)
    A("s_waitcnt lgkmcnt(0)")
    srd(A, sO, sWs, WS_SIZE)
    sTile, sHp, sQo, sKo, sVo = [S.alloc() for _ in range(5)]
    A(f"s_lshl_b32 {s(sTile)}, {s(sRt1)}, 1")
    A(f"s_add_u32 {s(sTile)}, {s(sTile)}, {s(sTt)}")
    A(f"s_lshl_b32 {s(sHp)}, {s(sHq)}, 1")
    A(f"s_add_u32 {s(sHp)}, {s(sHp)}, {s(sCh)}")
    A(f"s_lshl_b32 {s(sT0)}, {s(sHp)}, 17")
    A(f"s_lshl_b32 {s(sT1)}, {s(sTile)}, 10")
    A(f"s_add_u32 {s(sQo)}, {s(sT0)}, {s(sT1)}")
    A(f"s_add_u32 {s(sKo)}, {s(sQo)}, {WS_KF}")
    A(f"s_add_u32 {s(sVo)}, {s(sQo)}, {WS_VF}")
    A("s_barrier")
    K.stamp()
    reads1(0)
    for n in range(32):
        if n + 1 < 32:
            if (n + 1) % 4 == 0:
                A(f"s_waitcnt lgkmcnt(0)")
                A("s_barrier")
            reads1(n + 1)
            A("s_waitcnt lgkmcnt(7)")
        else:
            A("s_waitcnt lgkmcnt(0)")
        compute1(n)
    K.stamp()
    for L in (sq, sm):
        for st in (4, 2, 1):
            for i in range(st): A(f"v_add_f32 {v(L+i)}, {v(L+i)}, {v(L+i+st)}")
    swap_add(A, sm, vT1)
    swap_add(A, sq, vT2)
    A(f"s_lshl_b32 {s(sT0)}, {s(sW)}, 8")
    A(f"s_add_u32 {s(sT0)}, {s(sT0)}, {ST1}")
    A(f"v_lshl_add_u32 {v(vT0)}, {v(vTok)}, 2, {s(sT0)}")
    A(f"ds_write_b32 {v(vT0)}, {v(sm)}")
    A(f"ds_write_b32 {v(vT0)}, {v(sq)} offset:128")
    A(f"v_and_b32 {v(vT0)}, 15, {v(vLane)}")
    A(f"v_lshrrev_b32 {v(vT1)}, 4, {v(vLane)}")
    A(f"v_lshlrev_b32 {v(vT1)}, 4, {v(vT1)}")
    A(f"v_lshl_add_u32 {v(vT1)}, {v(vT0)}, 6, {v(vT1)}")
    A(f"s_mul_i32 {s(sx)}, {s(sTt)}, 768")
    A(f"s_lshl_b32 {s(sw)}, {s(sCh)}, 7")
    A(f"s_add_u32 {s(sx)}, {s(sx)}, {s(sw)}")
    A(f"s_add_u32 {s(sx)}, {s(sx)}, {CS1}")
    A(f"v_add_u32 {v(vT1)}, {s(sx)}, {v(vT1)}")
    A(f"v_cmp_gt_u32 vcc, 2, {v(vT0)}")
    A(f"s_and_saveexec_b64 {s(sSave,2)}, vcc")
    for b in range(3): A(f"ds_write_b128 {v(vT1)}, {v(csa[b],4)} offset:{b*256}")
    A(f"s_mov_b64 exec, {s(sSave,2)}")
    A("s_waitcnt lgkmcnt(0)")
    A("s_barrier")
    V.release(mk)
    csr = V.alloc(16); csr2 = V.alloc(16); st1 = V.alloc(16); st2 = V.alloc(16)
    vCv, vMean, vRstd, vRq = [V.alloc() for _ in range(4)]
    A(f"s_lshl_b32 {s(sx)}, {s(sTt)}, 8")
    A(f"s_add_u32 {s(sx)}, {s(sx)}, {ST1}")
    A(f"v_lshl_add_u32 {v(vT1)}, {v(vTok)}, 2, {s(sx)}")
    p4 = V.alloc(4)
    A(f"ds_read_b32 {v(p4)}, {v(vT1)}")
    A(f"ds_read_b32 {v(p4+1)}, {v(vT1)} offset:512")
    A(f"ds_read_b32 {v(p4+2)}, {v(vT1)} offset:128")
    A(f"ds_read_b32 {v(p4+3)}, {v(vT1)} offset:640")
    A(f"s_lshl_b32 {s(sw)}, {s(sCh)}, 7")
    A(f"s_add_u32 {s(sw)}, {s(sw)}, {CS1}")
    A(f"v_lshl_add_u32 {v(vT0)}, {v(vHf)}, 4, {s(sw)}")
    for a_ in range(4): A(f"ds_read_b128 {v(csr+4*a_,4)}, {v(vT0)} offset:{a_*32}")
    for a_ in range(4): A(f"ds_read_b128 {v(st1+4*a_,4)}, {v(vT0)} offset:{768+a_*32}")
    A("s_waitcnt lgkmcnt(4)")
    for a_ in range(4): A(f"ds_read_b128 {v(csr2+4*a_,4)}, {v(vT0)} offset:{256+a_*32}")
    for a_ in range(4): A(f"ds_read_b128 {v(st2+4*a_,4)}, {v(vT0)} offset:{768+256+a_*32}")
    A(f"v_lshl_add_u32 {v(vT1)}, {v(vTok)}, 2, {s(sw)}")
    vCv2 = V.alloc()
    A(f"ds_read_b32 {v(vCv)}, {v(vT1)} offset:512")
    A(f"ds_read_b32 {v(vCv2)}, {v(vT1)} offset:{768+512}")
    A("s_waitcnt lgkmcnt(10)")
    for r in range(16): A(f"v_add_f32 {v(csr+r)}, {v(csr+r)}, {v(st1+r)}")
    A("s_waitcnt lgkmcnt(0)")
    for r in range(16): A(f"v_add_f32 {v(csr2+r)}, {v(csr2+r)}, {v(st2+r)}")
    A(f"v_add_f32 {v(vCv)}, {v(vCv)}, {v(vCv2)}")
    pk = V.alloc(8); pk2 = V.alloc(8); pk3 = pk
    vMr = p4 + 1
    A(f"v_add_f32 {v(p4)}, {v(p4)}, {v(p4+1)}")
    A(f"v_add_f32 {v(p4+2)}, {v(p4+2)}, {v(p4+3)}")
    A(f"v_mul_f32 {v(vMean)}, {f2u(1/512.):#x}, {v(p4)}")
    A(f"v_mul_f32 {v(vT1)}, {v(vMean)}, {v(vMean)}")
    A(f"v_mov_b32 {v(vT2)}, {f2u(1/512.):#x}")
    A(f"v_fma_f32 {v(vT1)}, {v(p4+2)}, {v(vT2)}, -{v(vT1)}")
    A(f"v_max_f32 {v(vT1)}, 0, {v(vT1)}")
    A(f"v_add_f32 {v(vT1)}, {f2u(1e-5):#x}, {v(vT1)}")
    A(f"v_rsq_f32 {v(vRstd)}, {v(vT1)}")
    A(f"v_mul_f32 {v(vMr)}, {v(vMean)}, {v(vRstd)}")
    A(f"s_lshl_b32 {s(sx)}, {s(sW)}, 8")
    A(f"s_add_u32 {s(sx)}, {s(sx)}, {ST1 + 1024}")
    A(f"v_lshl_add_u32 {v(vT1)}, {v(vTok)}, 2, {s(sx)}")
    A(f"ds_write_b32 {v(vT1)}, {v(vMr)}")
    A(f"ds_write_b32 {v(vT1)}, {v(vRstd)} offset:128")
    A(f"v_lshl_add_u32 {v(vT0)}, {v(vHf)}, 4, {s(sx)}")
    A(f"v_mul_f32 {v(vRq)}, {f2u(LOG2E*0.25):#x}, {v(vRstd)}")
    A("s_waitcnt lgkmcnt(0)")
    for a_ in range(4): A(f"ds_read_b128 {v(st1+4*a_,4)}, {v(vT0)} offset:{a_*32}")
    for a_ in range(4): A(f"ds_read_b128 {v(st2+4*a_,4)}, {v(vT0)} offset:{128+a_*32}")
    for r in range(16): A(f"v_fma_f32 {v(acc[1]+r)}, -{v(vMean)}, {v(csr2+r)}, {v(acc[1]+r)}")
    for r in range(16): A(f"v_mul_f32 {v(acc[1]+r)}, {v(vRstd)}, {v(acc[1]+r)}")
    for i in range(8): A(f"v_cvt_pk_bf16_f32 {v(pk2+i)}, {v(acc[1]+2*i)}, {v(acc[1]+2*i+1)}")
    A(f"buffer_store_dwordx4 {v(pk2,4)}, {v(vL16)}, {s(sO,4)}, {s(sKo)} offen" + K1SC)
    A(f"s_add_u32 {s(sT0)}, {s(sKo)}, 65536")
    A(f"buffer_store_dwordx4 {v(pk2+4,4)}, {v(vL16)}, {s(sO,4)}, {s(sT0)} offen" + K1SC)
    for r in range(16): A(f"v_fma_f32 {v(acc[0]+r)}, -{v(vMean)}, {v(csr+r)}, {v(acc[0]+r)}")
    for r in range(16): A(f"v_mul_f32 {v(acc[0]+r)}, {v(vRq)}, {v(acc[0]+r)}")
    for i in range(8): A(f"v_cvt_pk_bf16_f32 {v(pk+i)}, {v(acc[0]+2*i)}, {v(acc[0]+2*i+1)}")
    A(f"buffer_store_dwordx4 {v(pk,4)}, {v(vL16)}, {s(sO,4)}, {s(sQo)} offen" + K1SC)
    A(f"s_add_u32 {s(sT0)}, {s(sQo)}, 65536")
    A(f"buffer_store_dwordx4 {v(pk+4,4)}, {v(vL16)}, {s(sO,4)}, {s(sT0)} offen" + K1SC)
    A("s_waitcnt lgkmcnt(0)")
    for r in range(16): A(f"v_mul_f32 {v(st1+r)}, {v(vCv)}, {v(st1+r)}")
    for r in range(16): A(f"v_fma_f32 {v(acc[2]+r)}, {v(acc[2]+r)}, {v(st2+r)}, -{v(st1+r)}")
    pk3 = csr
    for i in range(8): A(f"v_cvt_pk_bf16_f32 {v(pk3+i)}, {v(acc[2]+2*i)}, {v(acc[2]+2*i+1)}")
    A(f"v_lshrrev_b32 {v(vT0)}, 4, {v(vTok)}")
    A(f"v_lshlrev_b32 {v(vT0)}, 16, {v(vT0)}")
    A(f"v_lshl_add_u32 {v(vT0)}, {v(vHf)}, 8, {v(vT0)}")
    A(f"v_and_b32 {v(vT1)}, 15, {v(vTok)}")
    A(f"v_lshl_add_u32 {v(vT0)}, {v(vT1)}, 4, {v(vT0)}")
    A(f"buffer_store_dwordx4 {v(pk3,4)}, {v(vT0)}, {s(sO,4)}, {s(sVo)} offen" + K1SC)
    A(f"buffer_store_dwordx4 {v(pk3+4,4)}, {v(vT0)}, {s(sO,4)}, {s(sVo)} offen offset:512" + K1SC)
    vN = [V.alloc(), V.alloc()]
    for e in range(2):
        for i in range(4):
            A(f"v_lshlrev_b32 {v(csr2+2*i)}, 16, {v(pk2+4*e+i)}")
            A(f"v_and_b32 {v(csr2+2*i+1)}, 0xffff0000, {v(pk2+4*e+i)}")
        A(f"v_mul_f32 {v(vN[e])}, {v(csr2)}, {v(csr2)}")
        for i in range(1, 8): A(f"v_fmac_f32 {v(vN[e])}, {v(csr2+i)}, {v(csr2+i)}")
    swap_add(A, vN[0], vT2)
    swap_add(A, vN[1], vT1)
    for sh in (8, 4, 2, 1):
        for e in range(2):
            A(f"v_max_f32_dpp {v(vN[e])}, {v(vN[e])}, {v(vN[e])} row_ror:{sh} row_mask:0xf bank_mask:0xf")
    sN = [S.alloc() for _ in range(4)]
    for e in range(2):
        A(f"v_readlane_b32 {s(sN[2*e])}, {v(vN[e])}, 0")
        A(f"v_readlane_b32 {s(sN[2*e+1])}, {v(vN[e])}, 16")
    for e in range(2): A(f"s_max_u32 {s(sN[2*e])}, {s(sN[2*e])}, {s(sN[2*e+1])}")
    A(f"s_lshl_b32 {s(sT0)}, {s(sHp)}, 9")
    A(f"s_lshl_b32 {s(sT1)}, {s(sTile)}, 2")
    A(f"s_add_u32 {s(sT0)}, {s(sT0)}, {s(sT1)}")
    A(f"s_add_u32 {s(sT0)}, {s(sT0)}, {WS_KMAX}")
    A(f"v_mov_b32 {v(vN[0])}, {s(sN[0])}")
    A(f"v_mov_b32 {v(vN[1])}, {s(sN[2])}")
    A(f"v_mov_b32 {v(vT1)}, 0")
    A("s_mov_b64 exec, 1")
    A(f"buffer_store_dword {v(vN[0])}, {v(vT1)}, {s(sO,4)}, {s(sT0)} offen" + K1SC)
    A(f"buffer_store_dword {v(vN[1])}, {v(vT1)}, {s(sO,4)}, {s(sT0)} offen offset:256" + K1SC)
    A("s_mov_b64 exec, -1")
    K.stamp_out(sO, 0, vT0, vT1)
    K.rt_end(sO, 0, vT0, vT1)
    A.label(END)
    A("s_endpgm")
    print("k1b vgprs", V.hi, "sgprs", S.hi, "lds", K.lds)
    return K

def k1_hook(ev, K, L):
    A, V, S = K.A, K.V, K.S
    vT0, vT1, vLane, sW8, sWs = L["vT0"], L["vT1"], L["vLane"], L["sW8"], L["sWs"]
    H = K.__dict__.setdefault("_h", {})
    if ev == "start":
        H["R0"] = V.alloc(32); H["AC"] = V.alloc(8); H["UN"] = V.alloc(8); H["vo"] = V.alloc()
        H["srd"] = S.alloc(4); H["t"] = [S.alloc() for _ in range(4)]; H["p"] = S.alloc(2); H["flag"] = S.alloc()
        R0, vo, srd_, t, p, flag = H["R0"], H["vo"], H["srd"], H["t"], H["p"], H["flag"]
        A(f"s_mov_b32 {s(flag)}, 0")
        A(f"s_cmp_lg_u32 {s(sW8)}, 8")
        A(f"s_cbranch_scc1 K1_NOCS0")
        A("s_waitcnt lgkmcnt(0)")
        A(f"s_cmp_ge_u32 s2, 48")
        A(f"s_cbranch_scc1 K1_NOZ")
        srd(A, srd_, sWs, WS_SIZE)
        A(f"s_lshl_b32 {s(t[0])}, s2, 8")
        A(f"s_add_u32 {s(t[0])}, {s(t[0])}, {WS_CNT}")
        A(f"v_mov_b32 {v(vT0)}, 0")
        A(f"v_lshlrev_b32 {v(vT1)}, 2, {v(vLane)}")
        A(f"s_mov_b32 exec_hi, 0")
        A(f"buffer_store_dword {v(vT0)}, {v(vT1)}, {s(srd_,4)}, {s(t[0])} offen")
        A(f"s_mov_b64 exec, -1")
        A.label("K1_NOZ")
        A(f"s_cmp_ge_u32 s2, 224")
        A(f"s_cbranch_scc1 K1_NOCS0")
        A(f"s_mov_b32 {s(flag)}, 1")
        A(f"s_load_dwordx2 {s(p,2)}, s[0:1], 32")
        A(f"s_mul_i32 {s(t[0])}, s2, 2341")
        A(f"s_lshr_b32 {s(t[0])}, {s(t[0])}, 16")
        A(f"s_mul_i32 {s(t[1])}, {s(t[0])}, 28")
        A(f"s_sub_u32 {s(t[1])}, s2, {s(t[1])}")
        A(f"v_lshrrev_b32 {v(vo)}, 3, {v(vLane)}")
        A(f"v_mul_u32_u24 {v(vo)}, 3584, {v(vo)}")
        A(f"v_and_b32 {v(vT0)}, 7, {v(vLane)}")
        A(f"v_lshl_add_u32 {v(vo)}, {v(vT0)}, 4, {v(vo)}")
        A(f"s_mul_i32 {s(t[2])}, {s(t[0])}, {64*3584}")
        A(f"s_lshl_b32 {s(t[3])}, {s(t[1])}, 7")
        A(f"s_add_u32 {s(t[2])}, {s(t[2])}, {s(t[3])}")
        A("s_waitcnt lgkmcnt(0)")
        srd(A, srd_, p, 512 * 1792 * 2)
        for n in range(8):
            A(f"buffer_load_dwordx4 {v(R0+4*n,4)}, {v(vo)}, {s(srd_,4)}, {s(t[2])} offen")
            A(f"s_add_u32 {s(t[2])}, {s(t[2])}, {8*3584}")
        A.label("K1_NOCS0")
        for i in range(8): A(f"v_mov_b32 {v(H['AC']+i)}, 0")
    elif ev == "end":
        R0, AC, UN, srd_, t, flag = H["R0"], H["AC"], H["UN"], H["srd"], H["t"], H["flag"]
        A(f"s_cmp_eq_u32 {s(flag)}, 0")
        A(f"s_cbranch_scc1 K1_NOCS1")
        A("s_waitcnt vmcnt(0)")
        for n in range(8):
            for i in range(4):
                A(f"v_lshlrev_b32 {v(UN+2*i)}, 16, {v(R0+4*n+i)}")
                A(f"v_and_b32 {v(UN+2*i+1)}, 0xffff0000, {v(R0+4*n+i)}")
            for i in range(8): A(f"v_add_f32 {v(AC+i)}, {v(AC+i)}, {v(UN+i)}")
        for i in range(8): A(f"v_add_f32_dpp {v(AC+i)}, {v(AC+i)}, {v(AC+i)} row_ror:8 row_mask:0xf bank_mask:0xf")
        for sw in ("v_permlane16_swap_b32", "v_permlane32_swap_b32"):
            for i in range(8): A(f"v_mov_b32 {v(UN+i)}, {v(AC+i)}")
            for i in range(8): A(f"{sw} {v(AC+i)}, {v(UN+i)}")
            for i in range(8): A(f"v_add_f32 {v(AC+i)}, {v(AC+i)}, {v(UN+i)}")
        srd(A, srd_, sWs, WS_SIZE)
        A(f"s_mul_i32 {s(t[2])}, {s(t[0])}, 7168")
        A(f"s_lshl_b32 {s(t[3])}, {s(t[1])}, 8")
        A(f"s_add_u32 {s(t[2])}, {s(t[2])}, {s(t[3])}")
        A(f"s_add_u32 {s(t[2])}, {s(t[2])}, {WS_CSG}")
        A(f"v_and_b32 {v(vT0)}, 7, {v(vLane)}")
        A(f"v_lshlrev_b32 {v(vT0)}, 5, {v(vT0)}")
        A(f"s_mov_b64 exec, 0xff")
        A(f"buffer_store_dwordx4 {v(AC,4)}, {v(vT0)}, {s(srd_,4)}, {s(t[2])} offen")
        A(f"buffer_store_dwordx4 {v(AC+4,4)}, {v(vT0)}, {s(srd_,4)}, {s(t[2])} offen offset:16")
        A.label("K1_NOCS1")

def k1z():
    G.HOOK = k1_hook
    return G.k1()

if __name__ == "__main__":
    if "stamp" in sys.argv: G.STAMP = True
    if "rt" in sys.argv: G.RT = True
    G.FLAGS = set(sys.argv[2:])
    for a_ in sys.argv[2:]:
        if a_.startswith("prioit="): PRIO_IT = int(a_.split("=")[1])
        if a_.startswith("npoll="): NPOLL = int(a_.split("=")[1])
        if a_.startswith("win5="): WIN5 = int(a_.split("=")[1])
        if a_.startswith("psleep="): PSLEEP = int(a_.split("=")[1])
    ks = [k1b() if 'k1b' in G.FLAGS else k1z(), km(1 if 'q1' in G.FLAGS else 2, prio=('noprio' not in G.FLAGS))]
    build(ks, sys.argv[1] if len(sys.argv) > 1 else "out.s")
```

```python
import sys
import gen as G
from gen import *
from dsl import *

WS_CNT = (21 << 20)
G.WS_CNT = WS_CNT
G.WS_HS = WS_HS = 20 << 20
WS_CSG = (20 << 20) + (512 << 10)
G.WS_STAMP = WS_STAMP = (21 << 20) + (512 << 10)

PRIO_IT = 13
NPOLL = 1
CPF1_KB = 13
TLB_IT = 6
PSLEEP = 4
WIN5 = 5
def km(nqb=2, prio=True):
    ks = nqb
    LOCAL = 'local' in G.FLAGS
    W2R = 'w2r' in G.FLAGS
    LSC = '' if LOCAL else ' sc1'
    LLD = '' if (LOCAL and 'ldsc1' not in G.FLAGS) else ' sc1'
    KR = 0; VR = 65536; ON = 131072
    WO = 0; XT = 65536; RED = XT + 8192
    W1 = 0; CS = 139264; BI = CS + 512
    W2 = 0; RED5 = 0
    TKL = BI + 512 + 2048
    STP = BI + 512
    K = Kern("km_fused_kernel", (256, 1, 1), (512, 1, 1), BI + 512 + 2048 + 64)
    A, V, S = K.A, K.V, K.S
    END = "KM_END"
    sWs = S.alloc(2); sPx = S.alloc(2); sPwo = S.alloc(2); sP1 = S.alloc(4); sP2 = S.alloc(4); sPo = S.alloc(2)
    A(f"s_load_dwordx2 {s(sWs,2)}, s[0:1], 80")
    A(f"s_load_dwordx2 {s(sPx,2)}, s[0:1], 0")
    A(f"s_load_dwordx2 {s(sPwo,2)}, s[0:1], 16")
    A(f"s_load_dwordx4 {s(sP1,4)}, s[0:1], 32")
    A(f"s_load_dwordx4 {s(sP2,4)}, s[0:1], 48")
    A(f"s_load_dwordx2 {s(sPo,2)}, s[0:1], 64")
    A(f"s_cmp_ge_u32 s2, 256")
    A(f"s_cbranch_scc1 {END}")
    K.rt_begin()
    K.stamp()
    sO = S.alloc(4); sRa = S.alloc(4); sRb = S.alloc(4)
    sW8, sW, sXcd, sJ, sT0, sT1, sB, sJ3, sJ2, sCn = [S.alloc() for _ in range(10)]
    sSave = S.alloc(2)
    sXcP, sTkP = S.alloc(), S.alloc()
    vLane, vT0, vT1, vT2, vHf, vTok, vL16 = [V.alloc() for _ in range(7)]
    hpk = V.alloc(4)
    vPoll = V.alloc(4)
    wave_ids(K, sW8, sW, vLane, vT0)
    A(f"s_and_b32 {s(sXcd)}, s2, 7")
    A(f"s_lshr_b32 {s(sJ)}, s2, 3")
    A(f"s_and_b32 {s(sJ3)}, {s(sJ)}, 3")
    A(f"s_lshr_b32 {s(sJ2)}, {s(sJ)}, 2")
    A(f"v_lshlrev_b32 {v(vL16)}, 4, {v(vLane)}")
    A(f"v_lshrrev_b32 {v(vHf)}, 5, {v(vLane)}")
    A(f"v_and_b32 {v(vTok)}, 31, {v(vLane)}")
    FLG = "flg" in G.FLAGS
    def signal(off_sgpr, local=False, slot=None):
        if FLG:
            slot()
            A(f"s_lshl_b32 {s(sT0)}, {s(sT0)}, 2")
            A(f"v_mov_b32 {v(vT1)}, {s(sT0)}")
            A(f"v_mov_b32 {v(vT0)}, 1")
            A(f"s_mov_b64 exec, 1")
            A(f"buffer_store_dword {v(vT0)}, {v(vT1)}, {s(sO,4)}, {s(off_sgpr)} offen sc1")
            A(f"s_mov_b64 exec, -1")
            return
        A(f"v_mov_b32 {v(vT0)}, 1")
        A(f"v_mov_b32 {v(vT1)}, 0")
        A(f"s_mov_b64 exec, 1")
        A(f"buffer_atomic_add {v(vT0)}, {v(vT1)}, {s(sO,4)}, {s(off_sgpr)} offen" + ("" if local else " sc1"))
        A(f"s_mov_b64 exec, -1")
    def poll(off_sgpr, target, tag):
        if FLG:
            A(f"v_lshlrev_b32 {v(vT1)}, 2, {v(vLane)}")
            A(f"s_mov_b32 {s(sT1)}, 3000000")
            A(f"s_mov_b32 exec_lo, {(1 << target) - 1:#x}")
            A(f"s_mov_b32 exec_hi, 0")
            A.label(f"KM_POLL_{tag}")
            A(f"buffer_load_dword {v(vT0)}, {v(vT1)}, {s(sO,4)}, {s(off_sgpr)} offen sc1")
            A("s_waitcnt vmcnt(0)")
            A(f"v_cmp_eq_u32 vcc, 0, {v(vT0)}")
            A("s_nop 1")
            A(f"s_cmp_eq_u64 vcc, 0")
            A(f"s_cbranch_scc1 KM_PD_{tag}")
            A("s_sleep 1")
            A(f"s_sub_u32 {s(sT1)}, {s(sT1)}, 1")
            A(f"s_cmp_lg_u32 {s(sT1)}, 0")
            A(f"s_cbranch_scc1 KM_POLL_{tag}")
            A.label(f"KM_PD_{tag}")
            A(f"s_mov_b64 exec, -1")
            return
        if NPOLL <= 1:
            A(f"v_mov_b32 {v(vT1)}, 0")
            A(f"s_mov_b32 {s(sT1)}, 3000000")
            A.label(f"KM_POLL_{tag}")
            A(f"buffer_load_dword {v(vT0)}, {v(vT1)}, {s(sO,4)}, {s(off_sgpr)} offen sc1")
            A("s_waitcnt vmcnt(0)")
            A(f"v_readfirstlane_b32 {s(sT0)}, {v(vT0)}")
            A(f"s_cmp_ge_u32 {s(sT0)}, {target}")
            A(f"s_cbranch_scc1 KM_PD_{tag}")
            A("s_sleep 1")
            A(f"s_sub_u32 {s(sT1)}, {s(sT1)}, 1")
            A(f"s_cmp_lg_u32 {s(sT1)}, 0")
            A(f"s_cbranch_scc1 KM_POLL_{tag}")
            A.label(f"KM_PD_{tag}")
            return
        P = vPoll
        A(f"v_mov_b32 {v(vT1)}, 0")
        A(f"s_mov_b32 {s(sT1)}, 1000000")
        for k in range(NPOLL - 1):
            A(f"buffer_load_dword {v(P+k)}, {v(vT1)}, {s(sO,4)}, {s(off_sgpr)} offen sc1")
            A(f"s_sleep {PSLEEP}")
        A.label(f"KM_POLL_{tag}")
        for k in range(NPOLL):
            A(f"buffer_load_dword {v(P+(k+NPOLL-1)%NPOLL)}, {v(vT1)}, {s(sO,4)}, {s(off_sgpr)} offen sc1")
            A(f"s_waitcnt vmcnt({NPOLL-1})")
            A(f"v_readfirstlane_b32 {s(sT0)}, {v(P+k)}")
            A(f"s_cmp_ge_u32 {s(sT0)}, {target}")
            A(f"s_cbranch_scc1 KM_PD_{tag}")
            A(f"s_sleep {PSLEEP}")
        A(f"s_sub_u32 {s(sT1)}, {s(sT1)}, 1")
        A(f"s_cmp_lg_u32 {s(sT1)}, 0")
        A(f"s_cbranch_scc1 KM_POLL_{tag}")
        A.label(f"KM_PD_{tag}")
    def only_wave0(tag, body):
        A(f"s_cmp_lg_u32 {s(sW8)}, 0")
        A(f"s_cbranch_scc1 KM_NW0_{tag}")
        body()
        A.label(f"KM_NW0_{tag}")
    def cnt_off(dst, base, idx_expr):
        idx_expr(dst)
        A(f"s_lshl_b32 {s(dst)}, {s(dst)}, 8")
        A(f"s_add_u32 {s(dst)}, {s(dst)}, {WS_CNT + base}")
    mkV = V.mark(); mkS = S.mark()
    sHead, sWq, sKh, sHb, sIt, sKm, sQt, sL, sG, sL0 = [S.alloc() for _ in range(10)]
    sQb = sJ2
    vK, vV, vVinc = [V.alloc() for _ in range(3)]
    A(f"s_lshl_b32 {s(sHead)}, {s(sXcd)}, 2")
    A(f"s_add_u32 {s(sHead)}, {s(sHead)}, {s(sJ3)}")
    if ks == 2:
        A(f"s_mov_b32 {s(sWq)}, {s(sW)}")
        A(f"s_lshr_b32 {s(sKh)}, {s(sW8)}, 2")
    else:
        A(f"s_mov_b32 {s(sWq)}, {s(sW8)}")
        A(f"s_mov_b32 {s(sKh)}, 0")
    A(f"s_lshl_b32 {s(sHb)}, {s(sHead)}, 16")
    Q = [V.alloc(4) for _ in range(nqb)]
    vKm = V.alloc()
    A(f"s_lshl_b32 {s(sT0)}, {s(sQb)}, 3")
    A(f"s_mul_i32 {s(sT1)}, {s(sWq)}, {nqb}")
    A(f"s_add_u32 {s(sQt)}, {s(sT0)}, {s(sT1)}")
    if ks == 2:
        A(f"s_lshl_b32 {s(sL0)}, {s(sKh)}, 5")
        A(f"s_lshl_b32 {s(sT0)}, {s(sWq)}, 1")
        A(f"s_add_u32 {s(sL0)}, {s(sL0)}, {s(sT0)}")
        gstep = 8
    else:
        A(f"s_lshl_b32 {s(sL0)}, {s(sW8)}, 1")
        gstep = 16
    A(f"s_lshl_b32 {s(sB)}, {s(sQt)}, 10")
    A(f"s_add_u32 {s(sB)}, {s(sB)}, {s(sHb)}")
    A(f"v_lshlrev_b32 {v(vT2)}, 2, {v(vLane)}")
    A("s_waitcnt lgkmcnt(0)")
    srd(A, sO, sWs, WS_SIZE)
    sXc, sTk = sXcP, sTkP
    vTk = V.alloc()
    if LOCAL:
        A(f"s_getreg_b32 {s(sXc)}, hwreg(HW_REG_XCC_ID)")
        A(f"s_and_b32 {s(sXc)}, {s(sXc)}, 7")
        A(f"s_cmp_lg_u32 {s(sW8)}, 0")
        A(f"s_cbranch_scc1 KM_NOTK")
        A(f"s_lshl_b32 {s(sT0)}, {s(sXc)}, 8")
        A(f"s_add_u32 {s(sT0)}, {s(sT0)}, {WS_CNT + 10240}")
        A(f"v_mov_b32 {v(vTk)}, 1")
        A(f"v_mov_b32 {v(vT0)}, 0")
        A(f"s_mov_b64 exec, 1")
        A(f"buffer_atomic_add {v(vTk)}, {v(vT0)}, {s(sO,4)}, {s(sT0)} offen sc0")
        A(f"s_mov_b64 exec, -1")
        A.label("KM_NOTK")
    else:
        A(f"s_mov_b32 {s(sXc)}, {s(sXcd)}")
        A(f"s_mov_b32 {s(sTk)}, {s(sJ)}")
    def kv_group(g):
        A(f"s_add_u32 {s(sL)}, {s(sL0)}, {gstep*g}")
        A(f"s_lshl_b32 {s(sT0)}, {s(sQb)}, 3")
        A(f"s_add_u32 {s(sG)}, {s(sL)}, {s(sT0)}")
        A(f"s_and_b32 {s(sG)}, {s(sG)}, 63")
        A(f"s_lshl_b32 {s(sG)}, {s(sG)}, 10")
        A(f"s_add_u32 {s(sG)}, {s(sG)}, {s(sHb)}")
        A(f"s_lshl_b32 {s(sL)}, {s(sL)}, 10")
        A(f"s_add_u32 m0, {s(sL)}, {KR}")
        A(f"s_add_u32 {s(sT0)}, {s(sG)}, {WS_KF}")
        A(f"buffer_load_dwordx4 {v(vL16)}, {s(sO,4)}, {s(sT0)} offen lds")
        A(f"buffer_load_dwordx4 {v(vL16)}, {s(sO,4)}, {s(sT0)} offen offset:1024 lds")
        A(f"s_add_u32 m0, {s(sL)}, {VR}")
        A(f"s_add_u32 {s(sT0)}, {s(sG)}, {WS_VF}")
        A(f"buffer_load_dwordx4 {v(vL16)}, {s(sO,4)}, {s(sT0)} offen lds")
        A(f"buffer_load_dwordx4 {v(vL16)}, {s(sO,4)}, {s(sT0)} offen offset:1024 lds")
    for b in range(nqb):
        A(f"buffer_load_dwordx4 {v(Q[b],4)}, {v(vL16)}, {s(sO,4)}, {s(sB)} offen offset:{b*1024}")
    A(f"s_lshl_b32 {s(sT0)}, {s(sHead)}, 8")
    A(f"s_add_u32 {s(sT0)}, {s(sT0)}, {WS_KMAX}")
    A(f"buffer_load_dword {v(vKm)}, {v(vT2)}, {s(sO,4)}, {s(sT0)} offen")
    kv_group(0)
    K.stamp()
    ZROW = "zrow" in G.FLAGS
    ZR = ON + 4608
    A(f"v_mov_b32 {v(vT1)}, 0x3f803f80")
    A(f"v_lshlrev_b32 {v(vT0)}, 2, v0")
    A(f"v_add_u32 {v(vT0)}, {ON}, {v(vT0)}")
    A(f"ds_write_b32 {v(vT0)}, {v(vT1)}")
    A(f"ds_write_b32 {v(vT0)}, {v(vT1)} offset:2048")
    if ZROW:
        A(f"v_mov_b32 {v(vT2)}, 0")
        A(f"ds_write_b32 {v(vT0)}, {v(vT2)} offset:4608")
        A(f"ds_write_b32 {v(vT0)}, {v(vT2)} offset:{4608+2048}")
    A(f"v_cmp_gt_u32 vcc, 128, v0")
    A(f"s_and_saveexec_b64 {s(sSave,2)}, vcc")
    A(f"ds_write_b32 {v(vT0)}, {v(vT1)} offset:4096")
    if ZROW: A(f"ds_write_b32 {v(vT0)}, {v(vT2)} offset:{4608+4096}")
    A(f"s_mov_b64 exec, {s(sSave,2)}")
    A(f"s_lshl_b32 {s(sT0)}, {s(sKh)}, 15")
    A(f"v_add_u32 {v(vK)}, {s(sT0)}, {v(vL16)}")
    A(f"v_lshlrev_b32 {v(vT0)}, 8, {v(vHf)}")
    A(f"v_lshl_add_u32 {v(vT0)}, {v(vTok)}, 4, {v(vT0)}")
    A(f"s_add_u32 {s(sT0)}, {s(sT0)}, {VR}")
    A(f"v_add_u32 {v(vT0)}, {s(sT0)}, {v(vT0)}")
    A(f"v_subrev_u32 {v(vT1)}, 20, {v(vTok)}")
    A(f"v_cmp_gt_u32 vcc, 8, {v(vT1)}")
    if ZROW:
        A(f"v_mov_b32 {v(vT1)}, {ZR+192}")
        A(f"v_mov_b32 {v(vT2)}, {ZR+64}")
        A(f"v_cndmask_b32 {v(vT1)}, {v(vT1)}, {v(vT2)}, vcc")
        A(f"v_mov_b32 {v(vT2)}, {ON}")
        A(f"v_cmp_eq_u32 vcc, 16, {v(vTok)}")
        A(f"v_cndmask_b32 {v(vT1)}, {v(vT1)}, {v(vT2)}, vcc")
    else:
        A(f"v_mov_b32 {v(vT1)}, {ON}")
        A(f"v_mov_b32 {v(vT2)}, {ON+64}")
        A(f"v_cndmask_b32 {v(vT1)}, {v(vT1)}, {v(vT2)}, vcc")
    A(f"v_cmp_gt_u32 vcc, 16, {v(vTok)}")
    A(f"v_cndmask_b32 {v(vV)}, {v(vT1)}, {v(vT0)}, vcc")
    A(f"v_mov_b32 {v(vT1)}, 4096")
    A(f"v_cndmask_b32 {v(vVinc)}, 0, {v(vT1)}, vcc")
    Kf = [V.alloc(4) for _ in range(2)]; Vf0 = [V.alloc(4) for _ in range(2)]; Vf1 = [V.alloc(4) for _ in range(2)]
    QB = [dict(S=[V.alloc(16), V.alloc(16)], P=V.alloc(8), O=V.alloc(16), C=V.alloc(16)) for _ in range(nqb)]
    for b in range(nqb):
        for r in range(16): A(f"v_mov_b32 {v(QB[b]['O']+r)}, 0")
        for r in range(4, 8): A(f"v_mov_b32 {v(QB[b]['P']+r)}, 0")
    for r in range(4): A(f"v_mov_b32 {v(Vf1[1]+r)}, 0")
    A(f"s_waitcnt vmcnt(4)")
    wave_max64(A, vKm, sKm, sT0)
    bad = S.alloc(2)
    for b in range(nqb):
        un = QB[b]["S"][0]
        for i in range(4):
            A(f"v_lshlrev_b32 {v(un+2*i)}, 16, {v(Q[b]+i)}")
            A(f"v_and_b32 {v(un+2*i+1)}, 0xffff0000, {v(Q[b]+i)}")
        A(f"v_mul_f32 {v(vT0)}, {v(un)}, {v(un)}")
        for i in range(1, 8): A(f"v_fmac_f32 {v(vT0)}, {v(un+i)}, {v(un+i)}")
        swap_add(A, vT0, vT1)
        A(f"v_mul_f32 {v(vT0)}, {s(sKm)}, {v(vT0)}")
        A(f"v_sqrt_f32 {v(vT0)}, {v(vT0)}")
        A(f"v_mov_b32 {v(vT1)}, {f2u(0.01):#x}")
        A(f"v_fmac_f32 {v(vT1)}, {f2u(1.01):#x}, {v(vT0)}")
        A(f"v_mov_b32 {v(vT2)}, {f2u(40.0):#x}")
        A(f"v_cmp_nge_f32 vcc, {v(vT2)}, {v(vT1)}")
        if b == 0: A(f"s_mov_b64 {s(bad,2)}, vcc")
        else: A(f"s_or_b64 {s(bad,2)}, {s(bad,2)}, vcc")
        for r in range(16): A(f"v_sub_f32 {v(QB[b]['C']+r)}, 0, {v(vT1)}")
    if LOCAL:
        A(f"s_waitcnt vmcnt(0)")
        A(f"s_cmp_lg_u32 {s(sW8)}, 0")
        A(f"s_cbranch_scc1 KM_NOTK2")
        A(f"v_mov_b32 {v(vT0)}, {TKL}")
        A(f"s_mov_b64 exec, 1")
        A(f"ds_write_b32 {v(vT0)}, {v(vTk)}")
        A(f"s_mov_b64 exec, -1")
        A.label("KM_NOTK2")
    A(f"s_waitcnt vmcnt(0) lgkmcnt(0)")
    A("s_barrier")
    K.stamp()
    if LOCAL:
        A(f"v_mov_b32 {v(vT0)}, {TKL}")
        A(f"ds_read_b32 {v(vT1)}, {v(vT0)}")
        A(f"s_waitcnt lgkmcnt(0)")
        A(f"v_readfirstlane_b32 {s(sTk)}, {v(vT1)}")
    NT = 64 // ks
    mf = "v_mfma_f32_32x32x16_bf16"
    sPF = S.alloc(4); sPFo = S.alloc()
    A(f"s_lshl_b32 {s(sT0)}, {s(sJ)}, 2")
    A(f"s_add_u32 {s(sT0)}, {s(sT0)}, {s(sW)}")
    A(f"s_cmp_lt_u32 {s(sT0)}, 72")
    A(f"s_cselect_b32 {s(sPF)}, {s(sP1)}, {s(sP2)}")
    A(f"s_cselect_b32 {s(sPF+1)}, {s(sP1+1)}, {s(sP2+1)}")
    A(f"s_cselect_b32 {s(sT1)}, 16, 72")
    A(f"s_cmp_lt_u32 {s(sT0)}, 16")
    A(f"s_cselect_b32 {s(sPF)}, {s(sPwo)}, {s(sPF)}")
    A(f"s_cselect_b32 {s(sPF+1)}, {s(sPwo+1)}, {s(sPF+1)}")
    A(f"s_cselect_b32 {s(sT1)}, 0, {s(sT1)}")
    A(f"s_sub_u32 {s(sT0)}, {s(sT0)}, {s(sT1)}")
    A(f"s_lshl_b32 {s(sT0)}, {s(sT0)}, 15")
    A(f"s_add_u32 {s(sPF)}, {s(sPF)}, {s(sT0)}")
    A(f"s_addc_u32 {s(sPF+1)}, {s(sPF+1)}, 0")
    A(f"s_and_b32 {s(sPF+1)}, {s(sPF+1)}, 0xffff")
    A(f"s_mov_b32 {s(sPF+2)}, 32768")
    A(f"s_mov_b32 {s(sPF+3)}, 0x20000")
    A(f"s_mov_b32 {s(sPFo)}, 0")
    if "nopf" in G.FLAGS:
        A(f"s_mov_b32 {s(sPFo)}, 32768")
    if "pf2" in G.FLAGS:
        A(f"s_lshl_b32 {s(sT0)}, {s(sJ)}, 2")
        A(f"s_add_u32 {s(sT0)}, {s(sT0)}, {s(sW)}")
        A(f"s_cmp_lt_u32 {s(sT0)}, 72")
        A(f"s_cselect_b32 {s(sPFo)}, 0, 32768")
    vPF = V.alloc(4)
    A(f"s_cmp_lt_u32 {s(sW8)}, 4")
    A(f"s_cbranch_scc1 KM_OLD1")
    for g in range(1, 4):
        if ks == 2:
            A(f"s_lshr_b32 {s(sL)}, {s(sW)}, 1")
            A(f"s_lshl_b32 {s(sL)}, {s(sL)}, 5")
            A(f"s_and_b32 {s(sT0)}, {s(sW)}, 1")
            A(f"s_lshl_b32 {s(sT0)}, {s(sT0)}, 2")
            A(f"s_add_u32 {s(sL)}, {s(sL)}, {s(sT0)}")
            A(f"s_add_u32 {s(sL)}, {s(sL)}, {8*g}")
        else:
            A(f"s_lshl_b32 {s(sL)}, {s(sW)}, 2")
            A(f"s_add_u32 {s(sL)}, {s(sL)}, {16*g}")
        A(f"s_lshl_b32 {s(sT0)}, {s(sQb)}, 3")
        A(f"s_add_u32 {s(sG)}, {s(sL)}, {s(sT0)}")
        A(f"s_and_b32 {s(sG)}, {s(sG)}, 63")
        A(f"s_lshl_b32 {s(sG)}, {s(sG)}, 10")
        A(f"s_add_u32 {s(sG)}, {s(sG)}, {s(sHb)}")
        A(f"s_lshl_b32 {s(sL)}, {s(sL)}, 10")
        for reg, wsb in ((KR, WS_KF), (VR, WS_VF)):
            A(f"s_add_u32 m0, {s(sL)}, {reg}")
            A(f"s_add_u32 {s(sT0)}, {s(sG)}, {wsb}")
            for i in range(4):
                A(f"buffer_load_dwordx4 {v(vL16)}, {s(sO,4)}, {s(sT0)} offen offset:{i*1024} lds")
    A("s_waitcnt vmcnt(0)")
    A("s_barrier")
    if "cpf" in G.FLAGS:
        sPC = S.alloc(2)
        A(f"s_getpc_b64 {s(sPC,2)}")
        A.label("KM_PCREF")
        A(f"s_add_u32 {s(sPC)}, {s(sPC)}, KM_FIN-KM_PCREF")
        A(f"s_addc_u32 {s(sPC+1)}, {s(sPC+1)}, 0")
        A(f"s_mul_i32 {s(sT0)}, {s(sW)}, 3072")
        A(f"v_add_u32 {v(vT0)}, {s(sT0)}, {v(vL16)}")
        for i in range(3):
            A(f"global_load_dwordx4 {v(vPF,4)}, {v(vT0)}, {s(sPC,2)} offset:{i*1024}")
    if prio: A("s_setprio 1")
    A.label("KM_OLD1")
    A(f"s_cmp_lg_u64 {s(bad,2)}, 0")
    A(f"s_cbranch_scc1 KM_SLOW")
    A(f"ds_read_b128 {v(Kf[0],4)}, {v(vK)}")
    A(f"ds_read_b128 {v(Kf[1],4)}, {v(vK)} offset:1024")
    A(f"ds_read_b128 {v(Vf0[0],4)}, {v(vV)}")
    A("s_waitcnt lgkmcnt(2)")
    for b in range(nqb):
        A(f"{mf} {v(QB[b]['S'][0],16)}, {v(Kf[0],4)}, {v(Q[b],4)}, {v(QB[b]['C'],16)}")
    sA1i = S.alloc()
    a1it = 3 if ks == 1 else 1
    A(f"s_cmp_lt_u32 {s(sW8)}, 4")
    A(f"s_cselect_b32 {s(sA1i)}, {a1it}, -1")
    sPFl = S.alloc()
    A(f"s_cselect_b32 {s(sPFl)}, 0, 32768")
    A(f"s_mov_b32 {s(sIt)}, 0")
    A.label("KM_LOOP")
    A(f"s_cmp_lg_u32 {s(sIt)}, {s(sA1i)}")
    A(f"s_cbranch_scc1 KM_NOSYNC")
    A("s_barrier")
    A.label("KM_NOSYNC")
    if prio:
        A(f"s_cmp_lg_u32 {s(sIt)}, {PRIO_IT if ks == 1 else PRIO_IT // 2}")
        A(f"s_cbranch_scc1 KM_NP2")
        A("s_setprio 0")
        A.label("KM_NP2")
    npf = 3 if ks == 1 else 6
    A(f"s_cmp_ge_u32 {s(sPFo)}, {s(sPFl)}")
    A(f"s_cbranch_scc1 KM_NOPF")
    for i in range(npf):
        if i == 4: A(f"s_add_u32 {s(sT0)}, {s(sPFo)}, 4096")
        A(f"buffer_load_dwordx4 {v(vPF,4)}, {v(vL16)}, {s(sPF,4)}, {s(sPFo if i < 4 else sT0)} offen offset:{(i&3)*1024}")
    A(f"s_add_u32 {s(sPFo)}, {s(sPFo)}, {npf*1024}")
    A.label("KM_NOPF")
    if "tlb" in G.FLAGS:
        A(f"s_cmp_lg_u32 {s(sIt)}, {TLB_IT}")
        A(f"s_cbranch_scc1 KM_NOTLB")
        A(f"s_cmp_lt_u32 {s(sW8)}, 4")
        A(f"s_cbranch_scc1 KM_NOTLB")
        A(f"v_and_b32 {v(vT0)}, 7, {v(vLane)}")
        A(f"v_lshlrev_b32 {v(vT0)}, 21, {v(vT0)}")
        A(f"s_lshl_b32 {s(sT0)}, {s(sJ)}, 12")
        A(f"s_add_u32 {s(sT0)}, {s(sT0)}, {(8 << 20) + 0x100000}")
        A(f"s_mov_b64 exec, 0x7f")
        A(f"buffer_load_dword {v(vPF)}, {v(vT0)}, {s(sO,4)}, {s(sT0)} offen")
        A(f"s_mov_b64 exec, 1")
        A(f"v_mov_b32 {v(vT0)}, 0")
        A(f"global_load_dword {v(vPF+1)}, {v(vT0)}, {s(sPo,2)}")
        A(f"global_load_dword {v(vPF+2)}, {v(vT0)}, {s(sP1+2,2)}")
        A(f"global_load_dword {v(vPF+3)}, {v(vT0)}, {s(sP2+2,2)}")
        A(f"s_mov_b64 exec, -1")
        A.label("KM_NOTLB")
    for t in range(4):
        cur, nxt = t & 1, (t + 1) & 1
        A("s_waitcnt lgkmcnt(0)")
        for b in range(nqb):
            q = QB[b]; Sx = q["S"][cur]; Sn = q["S"][nxt]; P = q["P"]; O = q["O"]
            ex = [f"v_exp_f32 {v(Sx+i)}, {v(Sx+i)}" for i in range(16)]
            cv = [f"v_cvt_pk_bf16_f32 {v(P+i)}, {v(Sx+2*i)}, {v(Sx+2*i+1)}" for i in range(8)]
            A(f"{mf} {v(Sn,16)}, {v(Kf[nxt],4)}, {v(Q[b],4)}, {v(q['C'],16)}")
            for x in ex[0:4]: A(x)
            A(cv[0])
            for x in ex[4:6]: A(x)
            A(cv[1])
            A(f"{mf} {v(O,16)}, {v(Vf1[nxt],4)}, {v(P+4,4)}, {v(O,16)}")
            if b == 0:
                A(f"ds_read_b128 {v(Kf[cur],4)}, {v(vK)} offset:{(t+2)*1024}")
                A(f"ds_read_b128 {v(Vf0[nxt],4)}, {v(vV)} offset:{(t+1)*1024}")
                A(f"ds_read_b128 {v(Vf1[cur],4)}, {v(vV)} offset:{t*1024+512}")
            for x in ex[6:8]: A(x)
            A(cv[2])
            for x in ex[8:10]: A(x)
            A(cv[3])
            for x in ex[10:12]: A(x)
            A(cv[4])
            A(f"{mf} {v(O,16)}, {v(Vf0[cur],4)}, {v(P,4)}, {v(O,16)}")
            for x in ex[12:14]: A(x)
            A(cv[5])
            for x in ex[14:16]: A(x)
            A(cv[6])
            A(cv[7])
    A(f"v_add_u32 {v(vK)}, 4096, {v(vK)}")
    A(f"v_add_u32 {v(vV)}, {v(vVinc)}, {v(vV)}")
    A(f"s_add_u32 {s(sIt)}, {s(sIt)}, 1")
    A(f"s_cmp_lt_u32 {s(sIt)}, {NT//4}")
    A(f"s_cbranch_scc1 KM_LOOP")
    A("s_waitcnt lgkmcnt(0)")
    for b in range(nqb):
        A(f"{mf} {v(QB[b]['O'],16)}, {v(Vf1[1],4)}, {v(QB[b]['P']+4,4)}, {v(QB[b]['O'],16)}")
    A("s_branch KM_FIN")
    A.label("KM_SLOW")
    A(f"s_cmp_ge_u32 {s(sW8)}, 4")
    A(f"s_cbranch_scc1 KM_SLOW2")
    A("s_barrier")
    A.label("KM_SLOW2")
    for b in range(nqb):
        A(f"v_mov_b32 {v(QB[b]['C'])}, {f2u(-3.0e38):#x}")
    A(f"s_mov_b32 {s(sIt)}, 0")
    A.label("KM_SLOOP")
    A(f"ds_read_b128 {v(Kf[0],4)}, {v(vK)}")
    A(f"ds_read_b128 {v(Vf0[0],4)}, {v(vV)}")
    A(f"ds_read_b128 {v(Vf1[0],4)}, {v(vV)} offset:512")
    A("s_waitcnt lgkmcnt(0)")
    for b in range(nqb):
        q = QB[b]; Sx = q["S"][0]; P = q["P"]; O = q["O"]; m = q["C"]; mn = q["C"] + 1; al = q["C"] + 2
        A(f"{mf} {v(Sx,16)}, {v(Kf[0],4)}, {v(Q[b],4)}, 0")
        A(f"v_max_f32 {v(mn)}, {v(Sx)}, {v(Sx+1)}")
        for i in range(2, 16): A(f"v_max_f32 {v(mn)}, {v(mn)}, {v(Sx+i)}")
        swap_add(A, mn, vT1, "v_max_f32")
        A(f"v_max_f32 {v(mn)}, {v(mn)}, {v(m)}")
        A(f"v_sub_f32 {v(al)}, {v(m)}, {v(mn)}")
        A(f"v_exp_f32 {v(al)}, {v(al)}")
        A(f"v_mov_b32 {v(m)}, {v(mn)}")
        for i in range(16): A(f"v_sub_f32 {v(Sx+i)}, {v(Sx+i)}, {v(mn)}")
        for i in range(16): A(f"v_exp_f32 {v(Sx+i)}, {v(Sx+i)}")
        for i in range(16): A(f"v_mul_f32 {v(O+i)}, {v(al)}, {v(O+i)}")
        for i in range(8): A(f"v_cvt_pk_bf16_f32 {v(P+i)}, {v(Sx+2*i)}, {v(Sx+2*i+1)}")
        A(f"{mf} {v(O,16)}, {v(Vf0[0],4)}, {v(P,4)}, {v(O,16)}")
        A(f"{mf} {v(O,16)}, {v(Vf1[0],4)}, {v(P+4,4)}, {v(O,16)}")
    A(f"v_add_u32 {v(vK)}, 1024, {v(vK)}")
    A(f"v_lshrrev_b32 {v(vT0)}, 2, {v(vVinc)}")
    A(f"v_add_u32 {v(vV)}, {v(vT0)}, {v(vV)}")
    A(f"s_add_u32 {s(sIt)}, {s(sIt)}, 1")
    A(f"s_cmp_lt_u32 {s(sIt)}, {NT}")
    A(f"s_cbranch_scc1 KM_SLOOP")
    A(f"s_mov_b32 {s(sIt)}, -1")
    A.label("KM_FIN")
    if prio: A("s_setprio 0")
    K.stamp()
    if ks == 2:
        vM = [V.alloc(), V.alloc()]
        for b in range(2): A(f"v_sub_f32 {v(vM[b])}, 0, {v(QB[b]['C'])}")
        A(f"s_cmp_lg_u32 {s(sIt)}, -1")
        A(f"s_cbranch_scc1 KM_F1")
        for b in range(2): A(f"v_mov_b32 {v(vM[b])}, {v(QB[b]['C'])}")
        A.label("KM_F1")
        snd = QB[0]["S"][0]; kp = QB[0]["S"][1]
        A(f"s_cmp_eq_u32 {s(sKh)}, 0")
        A(f"s_cbranch_scc1 KM_F2")
        for r in range(9):
            A(f"v_mov_b32 {v(snd+r)}, {v(QB[0]['O']+r)}"); A(f"v_mov_b32 {v(kp+r)}, {v(QB[1]['O']+r)}")
        A(f"v_mov_b32 {v(snd+9)}, {v(vM[0])}"); A(f"v_mov_b32 {v(kp+9)}, {v(vM[1])}")
        A("s_branch KM_F3")
        A.label("KM_F2")
        for r in range(9):
            A(f"v_mov_b32 {v(snd+r)}, {v(QB[1]['O']+r)}"); A(f"v_mov_b32 {v(kp+r)}, {v(QB[0]['O']+r)}")
        A(f"v_mov_b32 {v(snd+9)}, {v(vM[1])}"); A(f"v_mov_b32 {v(kp+9)}, {v(vM[0])}")
        A.label("KM_F3")
        A("s_barrier")
        A(f"s_mul_i32 {s(sT0)}, {s(sW8)}, 2560")
        A(f"v_lshlrev_b32 {v(vT2)}, 2, {v(vLane)}")
        A(f"v_add_u32 {v(vT0)}, {s(sT0)}, {v(vT2)}")
        for r in range(10): A(f"ds_write_b32 {v(vT0)}, {v(snd+r)} offset:{r*256}")
        A("s_waitcnt lgkmcnt(0)")
        A("s_barrier")
        A(f"s_xor_b32 {s(sT0)}, {s(sW8)}, 4")
        A(f"s_mul_i32 {s(sT0)}, {s(sT0)}, 2560")
        A(f"v_add_u32 {v(vT0)}, {s(sT0)}, {v(vT2)}")
        for r in range(10): A(f"ds_read_b32 {v(snd+r)}, {v(vT0)} offset:{r*256}")
        A("s_waitcnt lgkmcnt(0)")
        A(f"v_max_f32 {v(vT0)}, {v(kp+9)}, {v(snd+9)}")
        A(f"v_sub_f32 {v(vT1)}, {v(kp+9)}, {v(vT0)}")
        A(f"v_sub_f32 {v(vT2)}, {v(snd+9)}, {v(vT0)}")
        A(f"v_exp_f32 {v(vT1)}, {v(vT1)}")
        A(f"v_exp_f32 {v(vT2)}, {v(vT2)}")
        for r in range(9): A(f"v_mul_f32 {v(kp+r)}, {v(vT1)}, {v(kp+r)}")
        for r in range(9): A(f"v_fmac_f32 {v(kp+r)}, {v(vT2)}, {v(snd+r)}")
        Of = kp
        A(f"s_add_u32 {s(sQt)}, {s(sQt)}, {s(sKh)}")
    else:
        Of = QB[0]["O"]
    if ZROW: swap_add(A, Of + 8, vT1)
    A(f"v_rcp_f32 {v(vT0)}, {v(Of+8)}")
    for r in range(8): A(f"v_mul_f32 {v(Of+r)}, {v(vT0)}, {v(Of+r)}")
    pk = QB[0]["P"]
    for i in range(4): A(f"v_cvt_pk_bf16_f32 {v(pk+i)}, {v(Of+2*i)}, {v(Of+2*i+1)}")
    A(f"s_lshl_b32 {s(sT0)}, {s(sQt)}, 15")
    A(f"s_lshl_b32 {s(sT1)}, {s(sHead)}, 10")
    A(f"s_add_u32 {s(sT0)}, {s(sT0)}, {s(sT1)}")
    A(f"s_add_u32 {s(sT0)}, {s(sT0)}, {WS_OF}")
    A(f"buffer_store_dwordx4 {v(pk,4)}, {v(vL16)}, {s(sO,4)}, {s(sT0)} offen sc1")
    A("s_waitcnt vmcnt(0)")
    A("s_barrier")
    K.stamp()
    V.release(mkV); S.release(mkS)
    sRt, sCt, sR128, sCt4, sTb, sTr, sTi, sQbS = [S.alloc() for _ in range(8)]
    A(f"s_mov_b32 {s(sQbS)}, {s(sJ2)}")
    A(f"s_mov_b32 {s(sXcd)}, {s(sXc)}")
    A(f"s_and_b32 {s(sJ)}, {s(sTk)}, 31")
    A(f"s_and_b32 {s(sJ3)}, {s(sJ)}, 3")
    A(f"s_lshr_b32 {s(sJ2)}, {s(sJ)}, 2")
    A(f"s_lshl_b32 {s(sRt)}, {s(sXcd)}, 2")
    A(f"s_add_u32 {s(sRt)}, {s(sRt)}, {s(sJ3)}")
    A(f"s_mov_b32 {s(sCt)}, {s(sJ2)}")
    A(f"s_and_b32 {s(sTr)}, {s(sW8)}, 1")
    A(f"s_bfe_u32 {s(sTb)}, {s(sW8)}, 0x10001")
    A(f"s_lshr_b32 {s(sTi)}, {s(sW8)}, 2")
    A(f"s_lshl_b32 {s(sR128)}, {s(sXcd)}, 1")
    A(f"s_and_b32 {s(sT0)}, {s(sJ)}, 1")
    A(f"s_add_u32 {s(sR128)}, {s(sR128)}, {s(sT0)}")
    A(f"s_lshr_b32 {s(sCt4)}, {s(sJ)}, 1")
    vBl = V.alloc(); vWoff = V.alloc(); vW1off = V.alloc()
    tr_pi_base(A, vBl, vLane, vHf, vT0, vT1)
    sB1, sB2 = S.alloc(), S.alloc()
    sRw1 = S.alloc(4); sRw2 = S.alloc(4)
    def dma_w1(p):
        A(f"s_lshl_b32 {s(sT1)}, {s(sW)}, 12")
        for c in range(4):
            for q in range(4):
                A(f"s_add_u32 m0, {s(sT1)}, {W1 + p*65536 + c*16384 + q*1024}")
                A(f"s_add_u32 {s(sT0)}, {s(sB1)}, {(128*c + 8*q)*3584 + p*128}")
                A(f"buffer_load_dwordx4 {v(vW1off)}, {s(sRw1,4)}, {s(sT0)} offen lds")
    def dma_w2(c):
        A(f"s_lshl_b32 {s(sT1)}, {s(sW)}, 15")
        for q in range(8):
            A(f"s_add_u32 m0, {s(sT1)}, {W2 + (c&3)*8192 + q*1024}")
            A(f"s_add_u32 {s(sT0)}, {s(sB2)}, {(64*c + 8*q)*1024}")
            A(f"buffer_load_dwordx4 {v(vWoff)}, {s(sRw2,4)}, {s(sT0)} offen lds")
    def dma_w1_all8(p):
        A(f"s_lshl_b32 {s(sT1)}, {s(sW8)}, 13")
        A(f"s_mul_i32 {s(sB)}, {s(sW8)}, {64*3584}")
        A(f"s_lshl_b32 {s(sT0)}, {s(sCt4)}, 8")
        A(f"s_add_u32 {s(sB)}, {s(sB)}, {s(sT0)}")
        for q in range(8):
            A(f"s_add_u32 m0, {s(sT1)}, {W1 + p*65536 + q*1024}")
            A(f"s_add_u32 {s(sT0)}, {s(sB)}, {8*q*3584 + p*128}")
            A(f"buffer_load_dwordx4 {v(vW1off)}, {s(sRw1,4)}, {s(sT0)} offen lds")
    def dma_w2_lo8():
        A(f"s_lshr_b32 {s(sT1)}, {s(sW8)}, 2")
        A(f"s_mul_i32 {s(sB)}, {s(sT1)}, {448*1024}")
        A(f"s_lshl_b32 {s(sT0)}, {s(sCt)}, 7")
        A(f"s_add_u32 {s(sB)}, {s(sB)}, {s(sT0)}")
        A(f"s_lshl_b32 {s(sT0)}, {s(sW)}, 16")
        A(f"s_add_u32 {s(sB)}, {s(sB)}, {s(sT0)}")
        A(f"s_lshl_b32 {s(sT1)}, {s(sW8)}, 13")
        for q in range(8):
            A(f"s_add_u32 m0, {s(sT1)}, {W2 + q*1024}")
            A(f"s_add_u32 {s(sT0)}, {s(sB)}, {8*q*1024}")
            A(f"buffer_load_dwordx4 {v(vWoff)}, {s(sRw2,4)}, {s(sT0)} offen lds")
    def dma_w2_hi_upper():
        A(f"s_lshr_b32 {s(sT1)}, {s(sW)}, 1")
        A(f"s_add_u32 {s(sT1)}, {s(sT1)}, 2")
        A(f"s_mul_i32 {s(sB)}, {s(sT1)}, {448*1024}")
        A(f"s_lshl_b32 {s(sT0)}, {s(sCt)}, 7")
        A(f"s_add_u32 {s(sB)}, {s(sB)}, {s(sT0)}")
        A(f"s_and_b32 {s(sT0)}, {s(sW)}, 1")
        A(f"s_lshl_b32 {s(sT0)}, {s(sT0)}, 17")
        A(f"s_add_u32 {s(sB)}, {s(sB)}, {s(sT0)}")
        A(f"s_lshl_b32 {s(sT1)}, {s(sW)}, 14")
        for q in range(16):
            A(f"s_add_u32 m0, {s(sT1)}, {W2 + 65536 + q*1024}")
            A(f"s_add_u32 {s(sT0)}, {s(sB)}, {8*q*1024}")
            A(f"buffer_load_dwordx4 {v(vWoff)}, {s(sRw2,4)}, {s(sT0)} offen lds")
    sW2b, sW2l = S.alloc(), S.alloc()
    def w2_all16_setup():
        A(f"s_lshr_b32 {s(sT1)}, {s(sW8)}, 1")
        A(f"s_mul_i32 {s(sW2b)}, {s(sT1)}, {448*1024}")
        A(f"s_lshl_b32 {s(sT0)}, {s(sCt)}, 7")
        A(f"s_add_u32 {s(sW2b)}, {s(sW2b)}, {s(sT0)}")
        A(f"s_and_b32 {s(sT0)}, {s(sW8)}, 1")
        A(f"s_lshl_b32 {s(sT0)}, {s(sT0)}, 17")
        A(f"s_add_u32 {s(sW2b)}, {s(sW2b)}, {s(sT0)}")
        A(f"s_lshl_b32 {s(sW2l)}, {s(sW8)}, 14")
    def w2_piece(pc):
        A(f"s_add_u32 m0, {s(sW2l)}, {W2 + pc*1024}")
        A(f"s_add_u32 {s(sW2b)}, {s(sW2b)}, {8192 if pc else 0}")
        A(f"buffer_load_dwordx4 {v(vWoff)}, {s(sRw2,4)}, {s(sW2b)} offen lds")
    def if_upper(tag, body):
        A(f"s_cmp_lt_u32 {s(sW8)}, 4")
        A(f"s_cbranch_scc1 KM_NU_{tag}")
        body()
        A.label(f"KM_NU_{tag}")
    def dma_wo():
        mk = V.mark()
        vXoff = V.alloc()
        A(f"s_and_b32 {s(sT0)}, {s(sW)}, 1")
        A(f"s_lshl_b32 {s(sT0)}, {s(sT0)}, 2")
        A(f"v_lshrrev_b32 {v(vT0)}, 4, {v(vLane)}")
        A(f"v_or_b32 {v(vT0)}, {s(sT0)}, {v(vT0)}")
        A(f"v_and_b32 {v(vT1)}, 7, {v(vLane)}")
        A(f"v_xor_b32 {v(vT0)}, {v(vT0)}, {v(vT1)}")
        A(f"v_lshlrev_b32 {v(vT0)}, 4, {v(vT0)}")
        A(f"v_lshrrev_b32 {v(vT1)}, 3, {v(vLane)}")
        A(f"v_lshlrev_b32 {v(vT1)}, 10, {v(vT1)}")
        A(f"v_add_u32 {v(vXoff)}, {v(vT0)}, {v(vT1)}")
        srd(A, sRa, sPwo, 512 * 512 * 2)
        srd(A, sRb, sPx, 2048 * 512 * 2)
        A(f"s_lshl_b32 {s(sB)}, {s(sW)}, 17")
        A(f"s_lshl_b32 {s(sT0)}, {s(sCt)}, 7")
        A(f"s_add_u32 {s(sB)}, {s(sB)}, {s(sT0)}")
        A(f"s_lshl_b32 {s(sT1)}, {s(sW)}, 14")
        for g in range(16):
            A(f"s_add_u32 m0, {s(sT1)}, {WO + g*1024}")
            A(f"s_add_u32 {s(sT0)}, {s(sB)}, {g*8192}")
            A(f"buffer_load_dwordx4 {v(vWoff)}, {s(sRa,4)}, {s(sT0)} offen lds")
        A(f"s_lshl_b32 {s(sB)}, {s(sRt)}, 16")
        A(f"s_lshl_b32 {s(sT0)}, {s(sCt)}, 7")
        A(f"s_add_u32 {s(sB)}, {s(sB)}, {s(sT0)}")
        A(f"s_lshl_b32 {s(sT0)}, {s(sW)}, 13")
        A(f"s_add_u32 {s(sB)}, {s(sB)}, {s(sT0)}")
        A(f"s_lshl_b32 {s(sT1)}, {s(sW)}, 10")
        for n in range(2):
            A(f"s_add_u32 m0, {s(sT1)}, {XT + n*4096}")
            A(f"s_add_u32 {s(sT0)}, {s(sB)}, {n*32768}")
            A(f"buffer_load_dwordx4 {v(vXoff)}, {s(sRb,4)}, {s(sT0)} offen lds")
        A(f"s_mul_i32 {s(sB1)}, {s(sW)}, {32*3584}")
        A(f"s_lshl_b32 {s(sT0)}, {s(sCt4)}, 8")
        A(f"s_add_u32 {s(sB1)}, {s(sB1)}, {s(sT0)}")
        A(f"s_mul_i32 {s(sB2)}, {s(sW)}, {448*1024}")
        A(f"s_lshl_b32 {s(sT0)}, {s(sCt)}, 7")
        A(f"s_add_u32 {s(sB2)}, {s(sB2)}, {s(sT0)}")
        A("s_waitcnt vmcnt(0)")
        V.release(mk)
    w_voff(A, vWoff, vLane, 1024, vT0, vT1)
    w_voff(A, vW1off, vLane, 3584, vT0, vT1)
    srd(A, sRw1, sP1, 512 * 1792 * 2)
    srd(A, sRw2, sP2, 1792 * 512 * 2)
    if_upper("wo", dma_wo)
    def w0_sync2():
        cnt_off(sCn, 0, lambda d: A(f"s_mov_b32 {s(d)}, {s(sQbS)}"))
        def slot2():
            A(f"s_and_b32 {s(sT0)}, s2, 7")
            A(f"s_lshl_b32 {s(sT0)}, {s(sT0)}, 2")
            A(f"s_bfe_u32 {s(sT1)}, s2, 0x20003")
            A(f"s_add_u32 {s(sT0)}, {s(sT0)}, {s(sT1)}")
        signal(sCn, slot=slot2)
        cnt_off(sCn, 0, lambda d: A(f"s_mov_b32 {s(d)}, {s(sXcd)}"))
        poll(sCn, 32, "2")
    hpk4 = hpk
    mkC = V.mark()
    Af = [V.alloc(4) for _ in range(8)]
    acc = [V.alloc(16) for _ in range(2)]
    Bf = [[V.alloc(4) for _ in range(2)] for _ in range(2)]
    vB = V.alloc(); xr = V.alloc(4)
    sKq = S.alloc()
    A(f"s_lshr_b32 {s(sKq)}, {s(sW8)}, 1")
    A(f"s_lshl_b32 {s(sT0)}, {s(sKq)}, 14")
    A(f"v_add_u32 {v(vB)}, {s(sT0)}, {v(vBl)}")
    A(f"s_lshl_b32 {s(sB)}, {s(sRt)}, 16")
    A(f"s_lshl_b32 {s(sT0)}, {s(sTr)}, 15")
    A(f"s_add_u32 {s(sB)}, {s(sB)}, {s(sT0)}")
    A(f"s_lshl_b32 {s(sT0)}, {s(sKq)}, 13")
    A(f"s_add_u32 {s(sB)}, {s(sB)}, {s(sT0)}")
    A(f"s_add_u32 {s(sB)}, {s(sB)}, {WS_OF}")
    sB4 = S.alloc()
    A(f"s_add_u32 {s(sB4)}, {s(sB)}, 4096")
    only_wave0("2", w0_sync2)
    A("s_barrier")
    K.stamp()
    for i in range(8):
        A(f"buffer_load_dwordx4 {v(Af[i],4)}, {v(vL16)}, {s(sO,4)}, {s(sB if i < 4 else sB4)} offen offset:{(i&3)*1024} sc1")
    def rd3(i):
        for b in range(2):
            A(f"ds_read_b64_tr_b16 {v(Bf[i&1][b],2)}, {v(vB)} offset:{WO + i*2048 + b*512}")
            A(f"ds_read_b64_tr_b16 {v(Bf[i&1][b]+2,2)}, {v(vB)} offset:{WO + i*2048 + b*512 + 1024}")
    rd3(0)
    A(f"v_lshrrev_b32 {v(vT2)}, 1, {v(vTok)}")
    A(f"v_and_b32 {v(vT2)}, 7, {v(vT2)}")
    A(f"s_lshl_b32 {s(sT0)}, {s(sTr)}, 12")
    A(f"s_add_u32 {s(sT0)}, {s(sT0)}, {XT}")
    A(f"v_lshlrev_b32 {v(vT1)}, 7, {v(vTok)}")
    A(f"v_lshl_add_u32 {v(vT1)}, {v(vHf)}, 3, {v(vT1)}")
    A(f"v_add_u32 {v(vT1)}, {s(sT0)}, {v(vT1)}")
    A(f"s_lshl_b32 {s(sT1)}, {s(sTb)}, 2")
    A(f"s_lshl_b32 {s(sT0)}, {s(sTi)}, 1")
    A(f"s_add_u32 {s(sT1)}, {s(sT1)}, {s(sT0)}")
    for a_ in range(2):
        A(f"s_add_u32 {s(sT0)}, {s(sT1)}, {a_}")
        A(f"v_xor_b32 {v(vT0)}, {s(sT0)}, {v(vT2)}")
        A(f"v_lshl_add_u32 {v(vT0)}, {v(vT0)}, 4, {v(vT1)}")
        A(f"ds_read_b64 {v(xr+2*a_,2)}, {v(vT0)}")
    for i in range(8):
        if i + 1 < 8:
            rd3(i + 1)
            A(f"s_waitcnt lgkmcnt(4)")
        else:
            A(f"s_waitcnt lgkmcnt(0)")
        A(f"s_waitcnt vmcnt({7-i})")
        for b in range(2):
            A(f"v_mfma_f32_32x32x16_bf16 {v(acc[b],16)}, {v(Bf[i&1][b],4)}, {v(Af[i],4)}, {'0' if i == 0 else v(acc[b],16)}")
    A(f"s_lshl_b32 {s(sT0)}, {s(sTr)}, 14")
    A(f"s_lshl_b32 {s(sT1)}, {s(sKq)}, 12")
    A(f"s_add_u32 {s(sT0)}, {s(sT0)}, {s(sT1)}")
    A(f"s_add_u32 {s(sT0)}, {s(sT0)}, {RED}")
    A(f"v_add_u32 {v(vT0)}, {s(sT0)}, {v(vL16)}")
    for b in range(2):
        for q in range(4):
            A(f"ds_write_b128 {v(vT0)}, {v(acc[b]+4*q,4)} offset:{b*32768 + q*1024}")
    A("s_waitcnt lgkmcnt(0)")
    A("s_barrier")
    K.stamp()
    def own_reduce(REDB, dst):
        A(f"s_lshl_b32 {s(sT0)}, {s(sW)}, 14")
        A(f"s_lshl_b32 {s(sT1)}, {s(sTi)}, 11")
        A(f"s_add_u32 {s(sT0)}, {s(sT0)}, {s(sT1)}")
        A(f"s_add_u32 {s(sT0)}, {s(sT0)}, {REDB}")
        A(f"v_add_u32 {v(vT0)}, {s(sT0)}, {v(vL16)}")
        for p in range(4):
            for q in range(2):
                A(f"ds_read_b128 {v(dst+8*p+4*q,4)}, {v(vT0)} offset:{p*4096 + q*1024}")
        A("s_waitcnt lgkmcnt(4)")
        for r in range(8): A(f"v_add_f32 {v(dst+r)}, {v(dst+r)}, {v(dst+8+r)}")
        A("s_waitcnt lgkmcnt(0)")
        for r in range(8): A(f"v_add_f32 {v(dst+16+r)}, {v(dst+16+r)}, {v(dst+24+r)}")
        for r in range(8): A(f"v_add_f32 {v(dst+r)}, {v(dst+r)}, {v(dst+16+r)}")
    def w1p0():
        A(f"s_cmp_ge_u32 {s(sJ)}, 28")
        A(f"s_cbranch_scc1 KM_NW1A")
        dma_w1(0)
        A.label("KM_NW1A")
    out = Af[0]
    own_reduce(RED, out)
    un = acc[0]
    for i in range(4):
        A(f"v_lshlrev_b32 {v(un+2*i)}, 16, {v(xr+i)}")
        A(f"v_and_b32 {v(un+2*i+1)}, 0xffff0000, {v(xr+i)}")
    for r in range(8): A(f"v_add_f32 {v(out+r)}, {v(out+r)}, {v(un+r)}")
    for i in range(4): A(f"v_cvt_pk_bf16_f32 {v(hpk4+i)}, {v(out+2*i)}, {v(out+2*i+1)}")
    sR32o, sKs = S.alloc(), S.alloc()
    A(f"s_lshl_b32 {s(sR32o)}, {s(sRt)}, 1")
    A(f"s_add_u32 {s(sR32o)}, {s(sR32o)}, {s(sTr)}")
    A(f"s_lshl_b32 {s(sKs)}, {s(sCt)}, 2")
    A(f"s_lshl_b32 {s(sT0)}, {s(sTb)}, 1")
    A(f"s_add_u32 {s(sKs)}, {s(sKs)}, {s(sT0)}")
    A(f"s_add_u32 {s(sKs)}, {s(sKs)}, {s(sTi)}")
    A(f"s_lshl_b32 {s(sB)}, {s(sR32o)}, 15")
    A(f"s_lshl_b32 {s(sT0)}, {s(sKs)}, 10")
    A(f"s_add_u32 {s(sB)}, {s(sB)}, {s(sT0)}")
    A(f"s_add_u32 {s(sB)}, {s(sB)}, {WS_HF}")
    A(f"buffer_store_dwordx4 {v(hpk4,4)}, {v(vL16)}, {s(sO,4)}, {s(sB)} offen" + LSC)
    for i in range(4):
        A(f"v_lshlrev_b32 {v(un+2*i)}, 16, {v(hpk4+i)}")
        A(f"v_and_b32 {v(un+2*i+1)}, 0xffff0000, {v(hpk4+i)}")
    st = acc[1]
    A(f"v_add_f32 {v(st)}, {v(un)}, {v(un+1)}")
    A(f"v_mul_f32 {v(st+1)}, {v(un)}, {v(un)}")
    A(f"v_fmac_f32 {v(st+1)}, {v(un+1)}, {v(un+1)}")
    for r in range(2, 8):
        A(f"v_add_f32 {v(st)}, {v(st)}, {v(un+r)}")
        A(f"v_fmac_f32 {v(st+1)}, {v(un+r)}, {v(un+r)}")
    swap_add(A, st, vT1)
    swap_add(A, st + 1, vT2)
    A(f"s_lshl_b32 {s(sT0)}, {s(sW8)}, 8")
    A(f"s_add_u32 {s(sT0)}, {s(sT0)}, {STP}")
    A(f"v_lshl_add_u32 {v(vT0)}, {v(vTok)}, 3, {s(sT0)}")
    A(f"ds_write_b64 {v(vT0)}, {v(st,2)}")
    A("s_waitcnt lgkmcnt(0)")
    A("s_barrier")
    A(f"s_cmp_ge_u32 {s(sW8)}, 2")
    A(f"s_cbranch_scc1 KM_NHS")
    for p in range(4): A(f"ds_read_b64 {v(st+2*p,2)}, {v(vT0)} offset:{p*512}")
    A("s_waitcnt lgkmcnt(0)")
    for c in range(2):
        A(f"v_add_f32 {v(st+c)}, {v(st+c)}, {v(st+2+c)}")
        A(f"v_add_f32 {v(st+4+c)}, {v(st+4+c)}, {v(st+6+c)}")
    for c in range(2): A(f"v_add_f32 {v(st+c)}, {v(st+c)}, {v(st+4+c)}")
    A(f"s_lshl_b32 {s(sT0)}, {s(sR32o)}, 11")
    A(f"s_lshl_b32 {s(sT1)}, {s(sCt)}, 8")
    A(f"s_add_u32 {s(sT0)}, {s(sT0)}, {s(sT1)}")
    A(f"s_add_u32 {s(sT0)}, {s(sT0)}, {WS_HS}")
    A(f"v_lshlrev_b32 {v(vT0)}, 3, {v(vTok)}")
    A("s_mov_b32 exec_hi, 0")
    A(f"buffer_store_dwordx2 {v(st,2)}, {v(vT0)}, {s(sO,4)}, {s(sT0)} offen" + LSC)
    A("s_mov_b64 exec, -1")
    A.label("KM_NHS")
    A(f"s_cmp_ge_u32 {s(sJ)}, 28")
    A(f"s_cbranch_scc1 KM_NW1A")
    dma_w1_all8(0)
    A("s_waitcnt vmcnt(8) lgkmcnt(0)")
    A("s_branch KM_NW1B")
    A.label("KM_NW1A")
    if W2R:
        A("s_waitcnt vmcnt(0) lgkmcnt(0)")
    else:
        dma_w2_lo8()
        A("s_waitcnt vmcnt(8) lgkmcnt(0)")
    A.label("KM_NW1B")
    A("s_barrier")
    K.stamp()
    V.release(mkC)
    def sig3():
        def idx(d):
            A(f"s_lshl_b32 {s(d)}, {s(sXcd)}, 1")
            A(f"s_lshr_b32 {s(sT0)}, {s(sJ3)}, 1")
            A(f"s_add_u32 {s(d)}, {s(d)}, {s(sT0)}")
        cnt_off(sCn, 2048, idx)
        def slot3():
            A(f"s_and_b32 {s(sT0)}, {s(sJ3)}, 1")
            A(f"s_lshl_b32 {s(sT0)}, {s(sT0)}, 3")
            A(f"s_add_u32 {s(sT0)}, {s(sT0)}, {s(sJ2)}")
        signal(sCn, LOCAL, slot=slot3)
    only_wave0("3s", sig3)
    A(f"s_cmp_ge_u32 {s(sJ)}, 28")
    A(f"s_cbranch_scc1 KM_NOP4")
    if_upper("w1", lambda: dma_w1(1))
    A("s_waitcnt vmcnt(0)") if False else None
    def w0_sync3():
        cnt_off(sCn, 2048, lambda d: A(f"s_mov_b32 {s(d)}, {s(sR128)}"))
        poll(sCn, 16, "3")
    mk4 = V.mark()
    Af = [V.alloc(4) for _ in range(16)]
    acc = [V.alloc(16) for _ in range(4)]
    Bf = [[V.alloc(4) for _ in range(4)] for _ in range(2)]
    csa = [V.alloc(4)]; msk = V.alloc(4)
    vB = [V.alloc() for _ in range(4)]; vB2 = [V.alloc() for _ in range(4)]
    hs = V.alloc(8); vb1 = V.alloc()
    sR32 = S.alloc(); sQ = [S.alloc() for _ in range(4)]
    srd(A, sRa, sP1 + 2, 1792 * 2)
    A(f"s_lshl_b32 {s(sR32)}, {s(sR128)}, 2")
    A(f"s_add_u32 {s(sR32)}, {s(sR32)}, {s(sW)}")
    A(f"v_lshlrev_b32 {v(vT1)}, 2, {v(vLane)}")
    A(f"s_lshl_b32 {s(sT1)}, {s(sCt4)}, 8")
    A(f"buffer_load_dword {v(vb1)}, {v(vT1)}, {s(sRa,4)}, {s(sT1)} offen")
    for q in range(4):
        A(f"s_xor_b32 {s(sQ[q])}, {s(sW)}, {q}")
        A(f"s_lshl_b32 {s(sQ[q])}, {s(sQ[q])}, 10")
    A(f"s_lshl_b32 {s(sT1)}, {s(sTi)}, 15")
    for q in range(4):
        A(f"s_lshl_b32 {s(sT0)}, {s(sQ[q])}, 1")
        A(f"s_add_u32 {s(sT0)}, {s(sT0)}, {s(sT1)}")
        A(f"v_add_u32 {v(vB[q])}, {s(sT0)}, {v(vBl)}")
        A(f"v_add_u32 {v(vB2[q])}, 65536, {v(vB[q])}")
    A(f"s_cmp_lt_u32 {s(sW8)}, 2")
    A(f"s_cbranch_scc1 KM_NCS")
    A(f"s_cmp_ge_u32 {s(sW8)}, 4")
    A(f"s_cbranch_scc1 KM_NCS")
    A(f"s_and_b32 {s(sT0)}, {s(sW8)}, 1")
    A(f"s_lshl_b32 {s(sT0)}, {s(sT0)}, 8")
    A(f"v_lshlrev_b32 {v(vT1)}, 2, {v(vLane)}")
    A(f"v_add_u32 {v(vT1)}, {s(sT0)}, {v(vT1)}")
    A(f"s_lshl_b32 {s(sT0)}, {s(sCt4)}, 9")
    A(f"s_add_u32 {s(sT0)}, {s(sT0)}, {WS_CSG}")
    for kc in range(8):
        A(f"buffer_load_dword {v(hs+kc)}, {v(vT1)}, {s(sO,4)}, {s(sT0)} offen")
        if kc < 7: A(f"s_add_u32 {s(sT0)}, {s(sT0)}, 7168")
    A("s_waitcnt vmcnt(0)")
    for st_ in (4, 2, 1):
        for i in range(st_): A(f"v_add_f32 {v(hs+i)}, {v(hs+i)}, {v(hs+i+st_)}")
    A(f"v_add_u32 {v(vT1)}, {CS}, {v(vT1)}")
    A(f"ds_write_b32 {v(vT1)}, {v(hs)}")
    A.label("KM_NCS")
    A("s_waitcnt vmcnt(0)")
    A(f"v_lshlrev_b32 {v(hs+2)}, 16, {v(vb1)}")
    A(f"v_and_b32 {v(hs+3)}, 0xffff0000, {v(vb1)}")
    A(f"v_lshlrev_b32 {v(vT0)}, 3, {v(vLane)}")
    A(f"v_add_u32 {v(vT0)}, {BI}, {v(vT0)}")
    A(f"ds_write_b64 {v(vT0)}, {v(hs+2,2)}")
    A(f"s_lshl_b32 {s(sB)}, {s(sR32)}, 15")
    A(f"s_lshl_b32 {s(sT0)}, {s(sTi)}, 14")
    A(f"s_add_u32 {s(sB)}, {s(sB)}, {s(sT0)}")
    A(f"s_add_u32 {s(sB)}, {s(sB)}, {WS_HF}")
    sHs = S.alloc()
    A(f"s_lshl_b32 {s(sHs)}, {s(sR32)}, 11")
    A(f"s_add_u32 {s(sHs)}, {s(sHs)}, {WS_HS}")
    A(f"v_lshlrev_b32 {v(vT2)}, 3, {v(vTok)}")
    A(f"v_lshl_add_u32 {v(vT2)}, {v(vHf)}, 10, {v(vT2)}")
    for q in range(4): A(f"s_add_u32 {s(sQ[q])}, {s(sQ[q])}, {s(sB)}")
    A("s_waitcnt vmcnt(0) lgkmcnt(0)")
    only_wave0("3", w0_sync3)
    K.stamp(1)
    A("s_barrier")
    K.stamp()
    def lda4(g):
        for q in range(4):
            if g: A(f"s_add_u32 {s(sQ[q])}, {s(sQ[q])}, 4096")
            A(f"buffer_load_dwordx4 {v(Af[4*g+q],4)}, {v(vL16)}, {s(sO,4)}, {s(sQ[q])} offen" + LLD)
    lda4(0)
    for i in range(4):
        A(f"buffer_load_dwordx2 {v(hs+2*i,2)}, {v(vT2)}, {s(sO,4)}, {s(sHs)} offen offset:{i*256}" + LLD)
    lda4(1)
    def rd4(n):
        for t in range(4):
            p, b = t >> 1, t & 1
            o = (n >> 2) * 8192 + b * 512
            base = (vB if p == 0 else vB2)[n & 3]
            A(f"ds_read_b64_tr_b16 {v(Bf[n&1][t],2)}, {v(base)} offset:{o}")
            A(f"ds_read_b64_tr_b16 {v(Bf[n&1][t]+2,2)}, {v(base)} offset:{o+1024}")
    rd4(0)
    A(f"v_lshlrev_b32 {v(acc[0])}, 16, {v(vb1)}") if False else None
    for n in range(16):
        if n + 1 < 16:
            rd4(n + 1)
            A("s_waitcnt lgkmcnt(8)")
        else:
            A("s_waitcnt lgkmcnt(0)")
        if n % 4 == 0: A(f"s_waitcnt vmcnt({ {0: 8, 4: 8, 8: 4, 12: 0}[n] })")
        for t in range(4):
            A(f"v_mfma_f32_32x32x16_bf16 {v(acc[t],16)}, {v(Bf[n&1][t],4)}, {v(Af[n],4)}, {'0' if n == 0 else v(acc[t],16)}")
        if n in (0, 1): lda4(n + 2)
    K.stamp()
    for st_ in (2, 1):
        for i in range(st_):
            A(f"v_add_f32 {v(hs+2*i)}, {v(hs+2*i)}, {v(hs+2*(i+st_))}")
            A(f"v_add_f32 {v(hs+2*i+1)}, {v(hs+2*i+1)}, {v(hs+2*(i+st_)+1)}")
    swap_add(A, hs, vT1)
    swap_add(A, hs + 1, vT2)
    A("s_waitcnt lgkmcnt(0)")
    A("s_barrier")
    A(f"s_lshl_b32 {s(sT0)}, {s(sW8)}, 13")
    A(f"s_add_u32 {s(sT0)}, {s(sT0)}, 65536")
    A(f"v_add_u32 {v(vT0)}, {s(sT0)}, {v(vL16)}")
    A(f"s_cmp_eq_u32 {s(sTi)}, 0")
    A(f"s_cbranch_scc1 KM_E1")
    for t in range(2):
        for q in range(4): A(f"ds_write_b128 {v(vT0)}, {v(acc[t]+4*q,4)} offset:{t*4096 + q*1024}")
    for r in range(32): A(f"v_mov_b32 {v(acc[0]+r)}, {v(acc[2]+r)}")
    A("s_branch KM_E2")
    A.label("KM_E1")
    for t in range(2):
        for q in range(4): A(f"ds_write_b128 {v(vT0)}, {v(acc[2+t]+4*q,4)} offset:{t*4096 + q*1024}")
    A.label("KM_E2")
    A("s_waitcnt lgkmcnt(0)")
    A("s_barrier")
    K.stamp()
    A(f"s_xor_b32 {s(sT0)}, {s(sW8)}, 4")
    A(f"s_lshl_b32 {s(sT0)}, {s(sT0)}, 13")
    A(f"s_add_u32 {s(sT0)}, {s(sT0)}, 65536")
    A(f"v_add_u32 {v(vT0)}, {s(sT0)}, {v(vL16)}")
    for t in range(2):
        for q in range(4): A(f"ds_read_b128 {v(acc[2+t]+4*q,4)}, {v(vT0)} offset:{t*4096 + q*1024}")
    def R(i): return Af[0] + 16 * i
    A(f"s_lshl_b32 {s(sT0)}, {s(sTi)}, 8")
    A(f"s_add_u32 {s(sT0)}, {s(sT0)}, {CS}")
    A(f"v_lshl_add_u32 {v(vT2)}, {v(vHf)}, 4, {s(sT0)}")
    for t in range(2):
        for a_ in range(4): A(f"ds_read_b128 {v(R(t)+4*a_,4)}, {v(vT2)} offset:{t*128 + a_*32}")
    A("s_waitcnt lgkmcnt(8)")
    vMean, vRs, vMr = csa[0], csa[0] + 1, csa[0] + 2
    vC1, vC2 = msk, msk + 1
    c1 = -2.0 * 0.7978845608028654 * LOG2E
    c2 = c1 * 0.044715
    A(f"v_mul_f32 {v(vMean)}, {f2u(1/512.):#x}, {v(hs)}")
    A(f"v_mul_f32 {v(vT1)}, {v(vMean)}, {v(vMean)}")
    A(f"v_mov_b32 {v(vT0)}, {f2u(1/512.):#x}")
    A(f"v_fma_f32 {v(vT1)}, {v(hs+1)}, {v(vT0)}, -{v(vT1)}")
    A(f"v_max_f32 {v(vT1)}, 0, {v(vT1)}")
    A(f"v_add_f32 {v(hs+2)}, {f2u(1e-5):#x}, {v(vT1)}")
    A(f"v_rcp_f32 {v(vT0)}, {v(hs+2)}")
    A(f"v_rsq_f32 {v(vRs)}, {v(hs+2)}")
    A(f"v_mul_f32 {v(vT1)}, {v(vT1)}, {v(vT0)}")
    A(f"v_add_f32 {v(vT1)}, {f2u(1e-5):#x}, {v(vT1)}")
    A(f"v_rsq_f32 {v(vT1)}, {v(vT1)}")
    A(f"v_mov_b32 {v(vC1)}, {f2u(c1):#x}")
    A(f"v_mov_b32 {v(vC2)}, {f2u(c2):#x}")
    A(f"v_mul_f32 {v(vRs)}, {v(vRs)}, {v(vT1)}")
    A(f"v_mul_f32 {v(vMr)}, {v(vMean)}, {v(vRs)}")
    for t in range(2):
        for a_ in range(4): A(f"ds_read_b128 {v(R(2+t)+4*a_,4)}, {v(vT2)} offset:{512 + t*128 + a_*32}")
    if W2R:
        A("s_waitcnt lgkmcnt(8)")
        A("s_barrier")
        w2_all16_setup()
    for r in range(32): A(f"v_add_f32 {v(acc[0]+r)}, {v(acc[0]+r)}, {v(acc[2]+r)}")
    A(f"s_mul_i32 {s(sB)}, {s(sR32)}, {112*1024}")
    A(f"s_lshl_b32 {s(sT0)}, {s(sCt4)}, 13")
    A(f"s_add_u32 {s(sB)}, {s(sB)}, {s(sT0)}")
    A(f"s_lshl_b32 {s(sT0)}, {s(sTi)}, 12")
    A(f"s_add_u32 {s(sB)}, {s(sB)}, {s(sT0)}")
    A(f"s_add_u32 {s(sB)}, {s(sB)}, {WS_MF}")
    A("s_waitcnt lgkmcnt(0)")
    pcs = list(range(16)) if W2R else []
    def dm():
        for _ in range(2):
            if pcs: w2_piece(pcs.pop(0))
    for t in range(2):
        x = acc[t]; T = R(2 + t); Z = acc[2 + t]
        for r in range(16): A(f"v_fma_f32 {v(T+r)}, -{v(vMr)}, {v(R(t)+r)}, {v(T+r)}")
        dm()
        for r in range(16): A(f"v_fma_f32 {v(x+r)}, {v(x+r)}, {v(vRs)}, {v(T+r)}")
        dm()
        for r in range(16): A(f"v_mul_f32 {v(Z+r)}, {v(x+r)}, {v(x+r)}")
        dm()
        for r in range(16): A(f"v_fma_f32 {v(Z+r)}, {v(Z+r)}, {v(vC2)}, {v(vC1)}")
        dm()
        for r in range(16): A(f"v_mul_f32 {v(Z+r)}, {v(Z+r)}, {v(x+r)}")
        dm()
        for r in range(16): A(f"v_exp_f32 {v(Z+r)}, {v(Z+r)}")
        dm()
        for r in range(16): A(f"v_add_f32 {v(Z+r)}, 1.0, {v(Z+r)}")
        dm()
        for r in range(16): A(f"v_rcp_f32 {v(Z+r)}, {v(Z+r)}")
        dm()
        for r in range(16): A(f"v_mul_f32 {v(x+r)}, {v(x+r)}, {v(Z+r)}")
        pk = R(t)
        for i in range(8): A(f"v_cvt_pk_bf16_f32 {v(pk+i)}, {v(x+2*i)}, {v(x+2*i+1)}")
        A(f"buffer_store_dwordx4 {v(pk,4)}, {v(vL16)}, {s(sO,4)}, {s(sB)} offen offset:{t*2048}" + LSC)
        A(f"buffer_store_dwordx4 {v(pk+4,4)}, {v(vL16)}, {s(sO,4)}, {s(sB)} offen offset:{t*2048+1024}" + LSC)
    assert not pcs
    if W2R:
        A("s_waitcnt vmcnt(0)")
    else:
        dma_w2_lo8()
        A("s_waitcnt vmcnt(8)")
    A("s_barrier")
    K.stamp()
    def sig4():
        cnt_off(sCn, 6144, lambda d: A(f"s_mov_b32 {s(d)}, {s(sR128)}"))
        signal(sCn, LOCAL, slot=lambda: A(f"s_mov_b32 {s(sT0)}, {s(sCt4)}"))
    only_wave0("4s", sig4)
    V.release(mk4)
    if W2R:
        A("s_branch KM_P5")
        A.label("KM_NOP4")
        w2_all16_setup()
        for pc in range(16): w2_piece(pc)
        A.label("KM_P5")
    else:
        A.label("KM_NOP4")
    mkPR = V.mark()
    PR = V.alloc(96)
    V.release(mkPR)
    def w2_regs():
        for pc in range(24):
            A(f"s_add_u32 {s(sT0)}, {s(sB2)}, {(256 + 8*pc)*1024}")
            A(f"buffer_load_dwordx4 {v(PR+4*pc,4)}, {v(vWoff)}, {s(sRw2,4)}, {s(sT0)} offen")
    if_upper("w2", w2_regs if W2R else dma_w2_hi_upper)
    def w0_sync4():
        def idx(d):
            A(f"s_lshl_b32 {s(d)}, {s(sXcd)}, 1")
            A(f"s_lshr_b32 {s(sT0)}, {s(sJ3)}, 1")
            A(f"s_add_u32 {s(d)}, {s(d)}, {s(sT0)}")
        cnt_off(sCn, 6144, idx)
        poll(sCn, 14, "4")
    NW = 12
    Af = [[V.alloc(4) for _ in range(2)] for _ in range(NW)]
    acc = [V.alloc(16) for _ in range(4)]
    Bf = [[V.alloc(4) for _ in range(2)] for _ in range(2)]
    vB = V.alloc(); b2r = V.alloc(4)
    sA0, sA1 = S.alloc(), S.alloc()
    srd(A, sRa, sP2 + 2, 512 * 2)
    srd(A, sRb, sPo, 2048 * 512 * 2)
    A(f"s_lshl_b32 {s(sT0)}, {s(sCt)}, 7")
    A(f"s_lshl_b32 {s(sT1)}, {s(sTb)}, 6")
    A(f"s_add_u32 {s(sT0)}, {s(sT0)}, {s(sT1)}")
    A(f"s_lshl_b32 {s(sT1)}, {s(sTi)}, 5")
    A(f"s_add_u32 {s(sT0)}, {s(sT0)}, {s(sT1)}")
    A(f"v_lshlrev_b32 {v(vT0)}, 3, {v(vHf)}")
    for a_ in range(2):
        A(f"buffer_load_dwordx2 {v(b2r+2*a_,2)}, {v(vT0)}, {s(sRa,4)}, {s(sT0)} offen offset:{a_*16}")
    A(f"s_cmp_lt_u32 {s(sW8)}, 4")
    A(f"s_cbranch_scc1 KM_C5")
    A("s_waitcnt vmcnt(0)")
    A("s_barrier")
    if W2R:
        A(f"s_lshl_b32 {s(sT0)}, {s(sW)}, 15")
        A(f"v_add_u32 {v(vT0)}, {s(sT0)}, {v(vL16)}")
    for y in range(1, 7):
        if y >= 4: A(f"s_waitcnt lgkmcnt(0)" if W2R else f"s_waitcnt vmcnt({8*(6-y)})")
        A("s_barrier")
        if y + 3 < 7:
            if W2R:
                c = y + 3
                for q in range(8):
                    A(f"ds_write_b128 {v(vT0)}, {v(PR+4*(8*(c-4)+q),4)} offset:{W2 + (c&3)*8192 + q*1024}")
            else:
                dma_w2(y + 3)
    A("s_barrier")
    A("s_branch KM_Z")
    A.label("KM_C5")
    A(f"s_mul_i32 {s(sA0)}, {s(sRt)}, {2*112*1024}")
    A(f"s_mul_i32 {s(sT0)}, {s(sW)}, {28*1024}")
    A(f"s_add_u32 {s(sA0)}, {s(sA0)}, {s(sT0)}")
    A(f"s_add_u32 {s(sA0)}, {s(sA0)}, {WS_MF}")
    A(f"s_add_u32 {s(sA1)}, {s(sA0)}, {112*1024}")
    A(f"s_lshl_b32 {s(sT0)}, {s(sW)}, 15")
    A(f"v_add_u32 {v(vB)}, {s(sT0)}, {v(vBl)}")
    def lda(n):
        for r, sa in ((0, sA0), (1, sA1)):
            if n % 4 == 0 and n: A(f"s_add_u32 {s(sa)}, {s(sa)}, 4096")
            A(f"buffer_load_dwordx4 {v(Af[n % NW][r],4)}, {v(vL16)}, {s(sO,4)}, {s(sa)} offen offset:{(n&3)*1024}" + LLD)
    def rd5(n):
        c, i = n >> 2, n & 3
        for b in range(2):
            o = W2 + (c & 3) * 8192 + i * 2048 + b * 512
            A(f"ds_read_b64_tr_b16 {v(Bf[n&1][b],2)}, {v(vB)} offset:{o}")
            A(f"ds_read_b64_tr_b16 {v(Bf[n&1][b]+2,2)}, {v(vB)} offset:{o+1024}")
    A("s_waitcnt vmcnt(0)")
    only_wave0("4", w0_sync4)
    K.stamp(2)
    A("s_barrier")
    K.stamp()
    issued = 3
    for n in range(issued): lda(n)
    rd5(0)
    for n in range(28):
        if n + 1 < 28:
            if (n + 1) % 4 == 0:
                A("s_waitcnt lgkmcnt(0)")
                A("s_barrier")
            rd5(n + 1)
            A("s_waitcnt lgkmcnt(4)")
        else:
            A("s_waitcnt lgkmcnt(0)")
        A(f"s_waitcnt vmcnt({2*(issued - 1 - n)})")
        for b in range(2):
            for r in range(2):
                t = 2 * b + r
                A(f"v_mfma_f32_32x32x16_bf16 {v(acc[t],16)}, {v(Bf[n&1][b],4)}, {v(Af[n%NW][r],4)}, {'0' if n == 0 else v(acc[t],16)}")
        tgt = min(28, n + 1 + WIN5, issued + 2)
        while issued < tgt:
            lda(issued); issued += 1
    K.stamp()
    A("s_barrier")
    A(f"s_lshl_b32 {s(sT0)}, {s(sW)}, 12")
    A(f"s_add_u32 {s(sT0)}, {s(sT0)}, {RED5}")
    A(f"v_add_u32 {v(vT0)}, {s(sT0)}, {v(vL16)}")
    for t in range(4):
        for q in range(4):
            A(f"ds_write_b128 {v(vT0)}, {v(acc[t]+4*q,4)} offset:{t*16384 + q*1024}")
    A("s_waitcnt lgkmcnt(0)")
    A.label("KM_Z")
    A("s_barrier")
    out = Af[0][0]
    own_reduce(RED5, out)
    un = acc[0]
    for i in range(4):
        A(f"v_lshlrev_b32 {v(un+2*i)}, 16, {v(hpk4+i)}")
        A(f"v_and_b32 {v(un+2*i+1)}, 0xffff0000, {v(hpk4+i)}")
    for r in range(8): A(f"v_add_f32 {v(out+r)}, {v(out+r)}, {v(un+r)}")
    A("s_waitcnt vmcnt(0)")
    for i in range(4):
        A(f"v_lshlrev_b32 {v(un+2*i)}, 16, {v(b2r+i)}")
        A(f"v_and_b32 {v(un+2*i+1)}, 0xffff0000, {v(b2r+i)}")
    for r in range(8): A(f"v_add_f32 {v(out+r)}, {v(out+r)}, {v(un+r)}")
    pk = acc[1]
    for i in range(4): A(f"v_cvt_pk_bf16_f32 {v(pk+i)}, {v(out+2*i)}, {v(out+2*i+1)}")
    A(f"v_permlane32_swap_b32 {v(pk)}, {v(pk+2)}")
    A(f"v_permlane32_swap_b32 {v(pk+1)}, {v(pk+3)}")
    A(f"s_lshl_b32 {s(sT0)}, {s(sRt)}, 16")
    A(f"s_lshl_b32 {s(sT1)}, {s(sTr)}, 15")
    A(f"s_add_u32 {s(sT0)}, {s(sT0)}, {s(sT1)}")
    A(f"s_lshl_b32 {s(sT1)}, {s(sCt)}, 7")
    A(f"s_add_u32 {s(sT0)}, {s(sT0)}, {s(sT1)}")
    A(f"s_lshl_b32 {s(sT1)}, {s(sTb)}, 6")
    A(f"s_add_u32 {s(sT0)}, {s(sT0)}, {s(sT1)}")
    A(f"s_lshl_b32 {s(sT1)}, {s(sTi)}, 5")
    A(f"s_add_u32 {s(sT0)}, {s(sT0)}, {s(sT1)}")
    A(f"v_lshlrev_b32 {v(vT0)}, 10, {v(vTok)}")
    A(f"v_lshl_add_u32 {v(vT0)}, {v(vHf)}, 4, {v(vT0)}")
    A(f"buffer_store_dwordx4 {v(pk,4)}, {v(vT0)}, {s(sRb,4)}, {s(sT0)} offen")
    K.stamp_out(sO, 1, vT0, vT1)
    K.rt_end(sO, 1, vT0, vT1)
    A.label(END)
    A("s_endpgm")
    print("km vgprs", V.hi, "sgprs", S.hi, "lds", K.lds)
    return K

def k1b():
    K = Kern("k1_qkv_kernel", (256, 1, 1), (512, 1, 1), 134656)
    A, V, S = K.A, K.V, K.S
    END = "K1_END"
    sWs = S.alloc(2); sPx = S.alloc(2); sPq = S.alloc(2); sP1 = S.alloc(4)
    A(f"s_load_dwordx4 {s(sPx if sPx % 4 == 0 else sPx,2)}, s[0:1], 0") if False else None
    A(f"s_load_dwordx2 {s(sPx,2)}, s[0:1], 0")
    A(f"s_load_dwordx2 {s(sPq,2)}, s[0:1], 8")
    A(f"s_load_dwordx2 {s(sWs,2)}, s[0:1], 80")
    A(f"s_load_dwordx4 {s(sP1,4)}, s[0:1], 32")
    A(f"s_cmp_ge_u32 s2, 256")
    A(f"s_cbranch_scc1 {END}")
    K.rt_begin()
    K.stamp()
    sO = S.alloc(4); sRa = S.alloc(4); sRb = S.alloc(4)
    sW8, sW, sXcd, sJ, sT0, sT1, sB, sJ3, sJ2, sCn = [S.alloc() for _ in range(10)]
    sSave = S.alloc(2)
    vLane, vT0, vT1, vT2, vHf, vTok, vL16 = [V.alloc() for _ in range(7)]
    wave_ids(K, sW8, sW, vLane, vT0)
    A(f"s_and_b32 {s(sXcd)}, s2, 7")
    A(f"s_lshr_b32 {s(sJ)}, s2, 3")
    A(f"v_lshlrev_b32 {v(vL16)}, 4, {v(vLane)}")
    A(f"v_lshrrev_b32 {v(vHf)}, 5, {v(vLane)}")
    A(f"v_and_b32 {v(vTok)}, 31, {v(vLane)}")
    K1SC = ' sc1' if 'k1sc1' in G.FLAGS else ''
    XR = 0; WR = 32768; CS1 = WR + 4 * 24576; ST1 = CS1 + 1536
    mkV1 = V.mark(); mkS1 = S.mark()
    sRt1, sHq, sRot, sXb, sWb, sLx, sLw, sx, sw, sTt, sCh = [S.alloc() for _ in range(11)]
    A(f"s_and_b32 {s(sT0)}, {s(sXcd)}, 3")
    A(f"s_lshl_b32 {s(sT0)}, {s(sT0)}, 3")
    A(f"s_and_b32 {s(sT1)}, {s(sJ)}, 7")
    A(f"s_add_u32 {s(sRt1)}, {s(sT0)}, {s(sT1)}")
    A(f"s_lshr_b32 {s(sT0)}, {s(sXcd)}, 2")
    A(f"s_lshl_b32 {s(sT0)}, {s(sT0)}, 2")
    A(f"s_lshr_b32 {s(sHq)}, {s(sJ)}, 3")
    A(f"s_lshl_b32 {s(sRot)}, {s(sHq)}, 1")
    A(f"s_add_u32 {s(sRot)}, {s(sRot)}, {s(sT1)}")
    A(f"s_add_u32 {s(sRot)}, {s(sRot)}, {s(sXcd)}")
    A(f"s_add_u32 {s(sHq)}, {s(sHq)}, {s(sT0)}")
    A(f"s_and_b32 {s(sTt)}, {s(sW)}, 1")
    A(f"s_lshr_b32 {s(sCh)}, {s(sW)}, 1")
    A(f"s_cmp_lt_u32 {s(sW8)}, 4")
    A(f"s_cbranch_scc1 K1B_P1C")
    mkL1 = V.mark()
    vWoff1, vXoff1 = V.alloc(), V.alloc()
    R0 = V.alloc(32); AC = V.alloc(8); UN = V.alloc(8); vo = V.alloc()
    sKc, sCt28, sFl = S.alloc(), S.alloc(), S.alloc()
    sPFt = S.alloc(4)
    A(f"s_mul_i32 {s(sWb)}, {s(sW)}, {8*3072}")
    A(f"s_lshl_b32 {s(sT0)}, {s(sHq)}, 7")
    A(f"s_add_u32 {s(sWb)}, {s(sWb)}, {s(sT0)}")
    A(f"s_lshl_b32 {s(sLx)}, {s(sW)}, 10")
    A(f"s_add_u32 {s(sLw)}, {s(sLx)}, {WR}")
    w_voff(A, vWoff1, vLane, 3072, vT0, vT1)
    A(f"s_lshl_b32 {s(sXb)}, {s(sRt1)}, 16")
    A(f"s_lshl_b32 {s(sT0)}, {s(sW)}, 13")
    A(f"s_add_u32 {s(sXb)}, {s(sXb)}, {s(sT0)}")
    A(f"s_lshl_b32 {s(sT0)}, {s(sTt)}, 2")
    A(f"v_lshrrev_b32 {v(vT0)}, 4, {v(vLane)}")
    A(f"v_or_b32 {v(vT0)}, {s(sT0)}, {v(vT0)}")
    A(f"v_and_b32 {v(vT1)}, 7, {v(vLane)}")
    A(f"v_xor_b32 {v(vT0)}, {v(vT0)}, {v(vT1)}")
    A(f"v_lshlrev_b32 {v(vT0)}, 4, {v(vT0)}")
    A(f"v_lshrrev_b32 {v(vT1)}, 3, {v(vLane)}")
    A(f"v_lshlrev_b32 {v(vT1)}, 10, {v(vT1)}")
    A(f"v_add_u32 {v(vXoff1)}, {v(vT0)}, {v(vT1)}")
    A("s_waitcnt lgkmcnt(0)")
    srd(A, sRa, sPq, 512 * 1536 * 2)
    srd(A, sRb, sPx, 2048 * 512 * 2)
    srd(A, sO, sWs, WS_SIZE)
    def dma_stage1(st):
        slot = st & 3
        A(f"s_add_u32 {s(sT0)}, {s(sRot)}, {st}")
        A(f"s_and_b32 {s(sT0)}, {s(sT0)}, 7")
        A(f"s_lshl_b32 {s(sx)}, {s(sT0)}, 7")
        A(f"s_add_u32 {s(sx)}, {s(sx)}, {s(sXb)}")
        A(f"s_mul_i32 {s(sw)}, {s(sT0)}, {64*3072}")
        A(f"s_add_u32 {s(sw)}, {s(sw)}, {s(sWb)}")
        for n in range(2):
            A(f"s_add_u32 m0, {s(sLx)}, {XR + slot*8192 + n*4096}")
            A(f"s_add_u32 {s(sT1)}, {s(sx)}, {n*32768}")
            A(f"buffer_load_dwordx4 {v(vXoff1)}, {s(sRb,4)}, {s(sT1)} offen lds")
        for b in range(3):
            for n in range(2):
                A(f"s_add_u32 m0, {s(sLw)}, {slot*24576 + b*8192 + n*4096}")
                A(f"s_add_u32 {s(sT1)}, {s(sw)}, {b*1024 + n*32*3072}")
                A(f"buffer_load_dwordx4 {v(vWoff1)}, {s(sRa,4)}, {s(sT1)} offen lds")
    A(f"s_cmp_lg_u32 {s(sW8)}, 5")
    A(f"s_cbranch_scc1 K1B_NOZ")
    A(f"s_cmp_ge_u32 s2, 57")
    A(f"s_cbranch_scc1 K1B_NOZ")
    A(f"s_lshl_b32 {s(sT0)}, s2, 8")
    A(f"s_add_u32 {s(sT0)}, {s(sT0)}, {WS_CNT}")
    A(f"v_mov_b32 {v(vT0)}, 0")
    A(f"v_mov_b32 {v(vT1)}, 0")
    A(f"s_mov_b64 exec, 1")
    A(f"buffer_store_dword {v(vT1)}, {v(vT0)}, {s(sO,4)}, {s(sT0)} offen")
    A(f"s_mov_b64 exec, -1")
    A.label("K1B_NOZ")
    dma_stage1(0); dma_stage1(1)
    A("s_waitcnt vmcnt(8)")
    A("s_barrier")
    dma_stage1(2); dma_stage1(3)
    for sp in range(1, 8):
        vm = {1: 16, 2: 16, 3: 16, 4: 16, 5: 16, 6: 8, 7: 0}[sp]
        A(f"s_waitcnt vmcnt({vm})")
        A("s_barrier")
        if sp + 3 < 8: dma_stage1(sp + 3)
    A(f"s_mov_b32 {s(sFl)}, 0")
    A(f"s_cmp_lg_u32 {s(sW8)}, 4")
    A(f"s_cbranch_scc1 K1B_NOCS0")
    A(f"s_cmp_ge_u32 s2, 224")
    A(f"s_cbranch_scc1 K1B_NOCS0")
    A(f"s_mov_b32 {s(sFl)}, 1")
    A(f"s_mul_i32 {s(sKc)}, s2, 2341")
    A(f"s_lshr_b32 {s(sKc)}, {s(sKc)}, 16")
    A(f"s_mul_i32 {s(sCt28)}, {s(sKc)}, 28")
    A(f"s_sub_u32 {s(sCt28)}, s2, {s(sCt28)}")
    A(f"v_lshrrev_b32 {v(vo)}, 3, {v(vLane)}")
    A(f"v_mul_u32_u24 {v(vo)}, 3584, {v(vo)}")
    A(f"v_and_b32 {v(vT0)}, 7, {v(vLane)}")
    A(f"v_lshl_add_u32 {v(vo)}, {v(vT0)}, 4, {v(vo)}")
    A(f"s_mul_i32 {s(sT0)}, {s(sKc)}, {64*3584}")
    A(f"s_lshl_b32 {s(sT1)}, {s(sCt28)}, 7")
    A(f"s_add_u32 {s(sT0)}, {s(sT0)}, {s(sT1)}")
    A(f"s_mov_b32 {s(sPFt)}, {s(sP1)}")
    A(f"s_and_b32 {s(sPFt+1)}, {s(sP1+1)}, 0xffff")
    A(f"s_mov_b32 {s(sPFt+2)}, {512*1792*2}")
    A(f"s_mov_b32 {s(sPFt+3)}, 0x20000")
    for n in range(8):
        A(f"buffer_load_dwordx4 {v(R0+4*n,4)}, {v(vo)}, {s(sPFt,4)}, {s(sT0)} offen")
        A(f"s_add_u32 {s(sT0)}, {s(sT0)}, {8*3584}")
    A.label("K1B_NOCS0")
    A("s_barrier")
    A(f"s_cmp_lg_u32 {s(sW8)}, 4")
    A(f"s_cbranch_scc1 K1B_NOCS1")
    A(f"s_cmp_eq_u32 {s(sFl)}, 0")
    A(f"s_cbranch_scc1 K1B_NOCS1")
    A("s_waitcnt vmcnt(0)")
    for i in range(8): A(f"v_mov_b32 {v(AC+i)}, 0")
    for n in range(8):
        for i in range(4):
            A(f"v_lshlrev_b32 {v(UN+2*i)}, 16, {v(R0+4*n+i)}")
            A(f"v_and_b32 {v(UN+2*i+1)}, 0xffff0000, {v(R0+4*n+i)}")
        for i in range(8): A(f"v_add_f32 {v(AC+i)}, {v(AC+i)}, {v(UN+i)}")
    for i in range(8): A(f"v_add_f32_dpp {v(AC+i)}, {v(AC+i)}, {v(AC+i)} row_ror:8 row_mask:0xf bank_mask:0xf")
    for sw_ in ("v_permlane16_swap_b32", "v_permlane32_swap_b32"):
        for i in range(8): A(f"v_mov_b32 {v(UN+i)}, {v(AC+i)}")
        for i in range(8): A(f"{sw_} {v(AC+i)}, {v(UN+i)}")
        for i in range(8): A(f"v_add_f32 {v(AC+i)}, {v(AC+i)}, {v(UN+i)}")
    A(f"s_mul_i32 {s(sT0)}, {s(sKc)}, 7168")
    A(f"s_lshl_b32 {s(sT1)}, {s(sCt28)}, 8")
    A(f"s_add_u32 {s(sT0)}, {s(sT0)}, {s(sT1)}")
    A(f"s_add_u32 {s(sT0)}, {s(sT0)}, {WS_CSG}")
    A(f"v_and_b32 {v(vT0)}, 7, {v(vLane)}")
    A(f"v_lshlrev_b32 {v(vT0)}, 5, {v(vT0)}")
    A(f"s_mov_b64 exec, 0xff")
    A(f"buffer_store_dwordx4 {v(AC,4)}, {v(vT0)}, {s(sO,4)}, {s(sT0)} offen")
    A(f"buffer_store_dwordx4 {v(AC+4,4)}, {v(vT0)}, {s(sO,4)}, {s(sT0)} offen offset:16")
    A(f"s_mov_b64 exec, -1")
    A.label("K1B_NOCS1")
    A("s_endpgm")
    V.release(mkL1)
    A.label("K1B_P1C")
    vXA = [V.alloc() for _ in range(4)]; vWA = [V.alloc() for _ in range(8)]
    acc = [V.alloc(16) for _ in range(3)]
    sq = V.alloc(8); sm = V.alloc(8)
    mk = V.mark()
    csa = [V.alloc(4) for _ in range(3)]; msk = V.alloc(4)
    Xf = [V.alloc(4) for _ in range(2)]
    Wf = [[V.alloc(4) for _ in range(3)] for _ in range(2)]
    un = V.alloc(8); vMask = V.alloc()
    A(f"v_lshrrev_b32 {v(vT2)}, 1, {v(vTok)}")
    A(f"v_and_b32 {v(vT2)}, 7, {v(vT2)}")
    A(f"s_lshl_b32 {s(sT1)}, {s(sTt)}, 12")
    for pos in range(4):
        A(f"s_xor_b32 {s(sT0)}, {s(sW)}, {pos}")
        A(f"s_lshl_b32 {s(sT0)}, {s(sT0)}, 1")
        A(f"v_add_u32 {v(vT0)}, {s(sT0)}, {v(vHf)}")
        A(f"v_xor_b32 {v(vT0)}, {v(vT0)}, {v(vT2)}")
        A(f"v_lshlrev_b32 {v(vT0)}, 4, {v(vT0)}")
        A(f"v_lshl_add_u32 {v(vT0)}, {v(vTok)}, 7, {v(vT0)}")
        A(f"v_add_u32 {v(vXA[pos])}, {s(sT1)}, {v(vT0)}")
    A(f"v_and_b32 {v(vT0)}, 15, {v(vLane)}")
    A(f"v_lshrrev_b32 {v(vT1)}, 2, {v(vT0)}")
    A(f"v_lshlrev_b32 {v(vT1)}, 6, {v(vT1)}")
    A(f"v_lshl_add_u32 {v(vT1)}, {v(vHf)}, 10, {v(vT1)}")
    A(f"v_and_b32 {v(vT0)}, 3, {v(vT0)}")
    A(f"v_lshl_add_u32 {v(vT1)}, {v(vT0)}, 3, {v(vT1)}")
    A(f"v_bfe_u32 {v(vT0)}, {v(vLane)}, 4, 1")
    A(f"v_lshl_add_u32 {v(vT1)}, {v(vT0)}, 5, {v(vT1)}")
    A(f"s_lshl_b32 {s(sw)}, {s(sCh)}, 9")
    A(f"s_add_u32 {s(sw)}, {s(sw)}, {WR}")
    for pos in range(4):
        A(f"s_xor_b32 {s(sT0)}, {s(sW)}, {pos}")
        A(f"s_lshl_b32 {s(sT0)}, {s(sT0)}, 11")
        A(f"s_add_u32 {s(sT0)}, {s(sT0)}, {s(sw)}")
        A(f"v_add_u32 {v(vWA[pos])}, {s(sT0)}, {v(vT1)}")
        A(f"v_add_u32 {v(vWA[4+pos])}, {2*24576}, {v(vWA[pos])}")
    A(f"v_and_b32 {v(vT0)}, 15, {v(vLane)}")
    A(f"v_bfe_u32 {v(vT1)}, {v(vLane)}, 4, 1")
    A(f"v_cmp_eq_u32 vcc, {v(vT0)}, {v(vT1)}")
    A(f"v_mov_b32 {v(vT0)}, 0x3f803f80")
    for i in range(4): A(f"v_cndmask_b32 {v(msk+i)}, 0, {v(vT0)}, vcc")
    A(f"v_mov_b32 {v(vMask)}, 0xffff0000")
    for i in range(8):
        A(f"v_mov_b32 {v(sq+i)}, 0"); A(f"v_mov_b32 {v(sm+i)}, 0")
    def reads1(n):
        slot = (n >> 2) & 3; pos = n & 3; bf = n & 1
        A(f"ds_read_b128 {v(Xf[bf],4)}, {v(vXA[pos])} offset:{XR + slot*8192}")
        wa = vWA[pos + (4 if slot >= 2 else 0)]
        for b in range(3):
            o = (slot & 1) * 24576 + b * 8192
            A(f"ds_read_b64_tr_b16 {v(Wf[bf][b],2)}, {v(wa)} offset:{o}")
            A(f"ds_read_b64_tr_b16 {v(Wf[bf][b]+2,2)}, {v(wa)} offset:{o+256}")
    def compute1(n):
        bf = n & 1; pos = n & 3
        c = lambda b: "0" if n == 0 else v(acc[b], 16)
        cs_ = pos in (0, 2); st_ = pos in (0, 1)
        def mc(b):
            if cs_: A(f"v_mfma_f32_16x16x32_bf16 {v(csa[b],4)}, {v(Wf[bf][b],4)}, {v(msk,4)}, {'0' if n == 0 else v(csa[b],4)}")
        A(f"v_mfma_f32_32x32x16_bf16 {v(acc[0],16)}, {v(Wf[bf][0],4)}, {v(Xf[bf],4)}, {c(0)}")
        if st_:
            for i in range(4):
                A(f"v_lshlrev_b32 {v(un+2*i)}, 16, {v(Xf[bf]+i)}")
                A(f"v_and_b32 {v(un+2*i+1)}, {v(vMask)}, {v(Xf[bf]+i)}")
        mc(0)
        A(f"v_mfma_f32_32x32x16_bf16 {v(acc[1],16)}, {v(Wf[bf][1],4)}, {v(Xf[bf],4)}, {c(1)}")
        if st_:
            for i in range(8): A(f"v_fmac_f32 {v(sq+i)}, {v(un+i)}, {v(un+i)}")
        mc(1)
        A(f"v_mfma_f32_32x32x16_bf16 {v(acc[2],16)}, {v(Xf[bf],4)}, {v(Wf[bf][2],4)}, {c(2)}")
        if st_:
            for i in range(8): A(f"v_add_f32 {v(sm+i)}, {v(un+i)}, {v(sm+i)}")
        mc(2)
    A("s_waitcnt lgkmcnt(0)")
    srd(A, sO, sWs, WS_SIZE)
    sTile, sHp, sQo, sKo, sVo = [S.alloc() for _ in range(5)]
    A(f"s_lshl_b32 {s(sTile)}, {s(sRt1)}, 1")
    A(f"s_add_u32 {s(sTile)}, {s(sTile)}, {s(sTt)}")
    A(f"s_lshl_b32 {s(sHp)}, {s(sHq)}, 1")
    A(f"s_add_u32 {s(sHp)}, {s(sHp)}, {s(sCh)}")
    A(f"s_lshl_b32 {s(sT0)}, {s(sHp)}, 17")
    A(f"s_lshl_b32 {s(sT1)}, {s(sTile)}, 10")
    A(f"s_add_u32 {s(sQo)}, {s(sT0)}, {s(sT1)}")
    A(f"s_add_u32 {s(sKo)}, {s(sQo)}, {WS_KF}")
    A(f"s_add_u32 {s(sVo)}, {s(sQo)}, {WS_VF}")
    A("s_barrier")
    K.stamp()
    reads1(0)
    for n in range(32):
        if n + 1 < 32:
            if (n + 1) % 4 == 0:
                A(f"s_waitcnt lgkmcnt(0)")
                A("s_barrier")
            reads1(n + 1)
            A("s_waitcnt lgkmcnt(7)")
        else:
            A("s_waitcnt lgkmcnt(0)")
        compute1(n)
    K.stamp()
    for L in (sq, sm):
        for st in (4, 2, 1):
            for i in range(st): A(f"v_add_f32 {v(L+i)}, {v(L+i)}, {v(L+i+st)}")
    swap_add(A, sm, vT1)
    swap_add(A, sq, vT2)
    A(f"s_lshl_b32 {s(sT0)}, {s(sW)}, 8")
    A(f"s_add_u32 {s(sT0)}, {s(sT0)}, {ST1}")
    A(f"v_lshl_add_u32 {v(vT0)}, {v(vTok)}, 2, {s(sT0)}")
    A(f"ds_write_b32 {v(vT0)}, {v(sm)}")
    A(f"ds_write_b32 {v(vT0)}, {v(sq)} offset:128")
    A(f"v_and_b32 {v(vT0)}, 15, {v(vLane)}")
    A(f"v_lshrrev_b32 {v(vT1)}, 4, {v(vLane)}")
    A(f"v_lshlrev_b32 {v(vT1)}, 4, {v(vT1)}")
    A(f"v_lshl_add_u32 {v(vT1)}, {v(vT0)}, 6, {v(vT1)}")
    A(f"s_mul_i32 {s(sx)}, {s(sTt)}, 768")
    A(f"s_lshl_b32 {s(sw)}, {s(sCh)}, 7")
    A(f"s_add_u32 {s(sx)}, {s(sx)}, {s(sw)}")
    A(f"s_add_u32 {s(sx)}, {s(sx)}, {CS1}")
    A(f"v_add_u32 {v(vT1)}, {s(sx)}, {v(vT1)}")
    A(f"v_cmp_gt_u32 vcc, 2, {v(vT0)}")
    A(f"s_and_saveexec_b64 {s(sSave,2)}, vcc")
    for b in range(3): A(f"ds_write_b128 {v(vT1)}, {v(csa[b],4)} offset:{b*256}")
    A(f"s_mov_b64 exec, {s(sSave,2)}")
    A("s_waitcnt lgkmcnt(0)")
    A("s_barrier")
    V.release(mk)
    csr = V.alloc(16); csr2 = V.alloc(16); st1 = V.alloc(16); st2 = V.alloc(16)
    vCv, vMean, vRstd, vRq = [V.alloc() for _ in range(4)]
    A(f"s_lshl_b32 {s(sx)}, {s(sTt)}, 8")
    A(f"s_add_u32 {s(sx)}, {s(sx)}, {ST1}")
    A(f"v_lshl_add_u32 {v(vT1)}, {v(vTok)}, 2, {s(sx)}")
    p4 = V.alloc(4)
    A(f"ds_read_b32 {v(p4)}, {v(vT1)}")
    A(f"ds_read_b32 {v(p4+1)}, {v(vT1)} offset:512")
    A(f"ds_read_b32 {v(p4+2)}, {v(vT1)} offset:128")
    A(f"ds_read_b32 {v(p4+3)}, {v(vT1)} offset:640")
    A(f"s_lshl_b32 {s(sw)}, {s(sCh)}, 7")
    A(f"s_add_u32 {s(sw)}, {s(sw)}, {CS1}")
    A(f"v_lshl_add_u32 {v(vT0)}, {v(vHf)}, 4, {s(sw)}")
    for a_ in range(4): A(f"ds_read_b128 {v(csr+4*a_,4)}, {v(vT0)} offset:{a_*32}")
    for a_ in range(4): A(f"ds_read_b128 {v(st1+4*a_,4)}, {v(vT0)} offset:{768+a_*32}")
    A("s_waitcnt lgkmcnt(4)")
    for a_ in range(4): A(f"ds_read_b128 {v(csr2+4*a_,4)}, {v(vT0)} offset:{256+a_*32}")
    for a_ in range(4): A(f"ds_read_b128 {v(st2+4*a_,4)}, {v(vT0)} offset:{768+256+a_*32}")
    A(f"v_lshl_add_u32 {v(vT1)}, {v(vTok)}, 2, {s(sw)}")
    vCv2 = V.alloc()
    A(f"ds_read_b32 {v(vCv)}, {v(vT1)} offset:512")
    A(f"ds_read_b32 {v(vCv2)}, {v(vT1)} offset:{768+512}")
    A("s_waitcnt lgkmcnt(10)")
    for r in range(16): A(f"v_add_f32 {v(csr+r)}, {v(csr+r)}, {v(st1+r)}")
    A("s_waitcnt lgkmcnt(0)")
    for r in range(16): A(f"v_add_f32 {v(csr2+r)}, {v(csr2+r)}, {v(st2+r)}")
    A(f"v_add_f32 {v(vCv)}, {v(vCv)}, {v(vCv2)}")
    pk = V.alloc(8); pk2 = V.alloc(8); pk3 = pk
    vMr = p4 + 1
    A(f"v_add_f32 {v(p4)}, {v(p4)}, {v(p4+1)}")
    A(f"v_add_f32 {v(p4+2)}, {v(p4+2)}, {v(p4+3)}")
    A(f"v_mul_f32 {v(vMean)}, {f2u(1/512.):#x}, {v(p4)}")
    A(f"v_mul_f32 {v(vT1)}, {v(vMean)}, {v(vMean)}")
    A(f"v_mov_b32 {v(vT2)}, {f2u(1/512.):#x}")
    A(f"v_fma_f32 {v(vT1)}, {v(p4+2)}, {v(vT2)}, -{v(vT1)}")
    A(f"v_max_f32 {v(vT1)}, 0, {v(vT1)}")
    A(f"v_add_f32 {v(vT1)}, {f2u(1e-5):#x}, {v(vT1)}")
    A(f"v_rsq_f32 {v(vRstd)}, {v(vT1)}")
    A(f"v_mul_f32 {v(vMr)}, {v(vMean)}, {v(vRstd)}")
    A(f"s_lshl_b32 {s(sx)}, {s(sW)}, 8")
    A(f"s_add_u32 {s(sx)}, {s(sx)}, {ST1 + 1024}")
    A(f"v_lshl_add_u32 {v(vT1)}, {v(vTok)}, 2, {s(sx)}")
    A(f"ds_write_b32 {v(vT1)}, {v(vMr)}")
    A(f"ds_write_b32 {v(vT1)}, {v(vRstd)} offset:128")
    A(f"v_lshl_add_u32 {v(vT0)}, {v(vHf)}, 4, {s(sx)}")
    A(f"v_mul_f32 {v(vRq)}, {f2u(LOG2E*0.25):#x}, {v(vRstd)}")
    A("s_waitcnt lgkmcnt(0)")
    for a_ in range(4): A(f"ds_read_b128 {v(st1+4*a_,4)}, {v(vT0)} offset:{a_*32}")
    for a_ in range(4): A(f"ds_read_b128 {v(st2+4*a_,4)}, {v(vT0)} offset:{128+a_*32}")
    for r in range(16): A(f"v_fma_f32 {v(acc[1]+r)}, -{v(vMean)}, {v(csr2+r)}, {v(acc[1]+r)}")
    for r in range(16): A(f"v_mul_f32 {v(acc[1]+r)}, {v(vRstd)}, {v(acc[1]+r)}")
    for i in range(8): A(f"v_cvt_pk_bf16_f32 {v(pk2+i)}, {v(acc[1]+2*i)}, {v(acc[1]+2*i+1)}")
    A(f"buffer_store_dwordx4 {v(pk2,4)}, {v(vL16)}, {s(sO,4)}, {s(sKo)} offen" + K1SC)
    A(f"s_add_u32 {s(sT0)}, {s(sKo)}, 65536")
    A(f"buffer_store_dwordx4 {v(pk2+4,4)}, {v(vL16)}, {s(sO,4)}, {s(sT0)} offen" + K1SC)
    for r in range(16): A(f"v_fma_f32 {v(acc[0]+r)}, -{v(vMean)}, {v(csr+r)}, {v(acc[0]+r)}")
    for r in range(16): A(f"v_mul_f32 {v(acc[0]+r)}, {v(vRq)}, {v(acc[0]+r)}")
    for i in range(8): A(f"v_cvt_pk_bf16_f32 {v(pk+i)}, {v(acc[0]+2*i)}, {v(acc[0]+2*i+1)}")
    A(f"buffer_store_dwordx4 {v(pk,4)}, {v(vL16)}, {s(sO,4)}, {s(sQo)} offen" + K1SC)
    A(f"s_add_u32 {s(sT0)}, {s(sQo)}, 65536")
    A(f"buffer_store_dwordx4 {v(pk+4,4)}, {v(vL16)}, {s(sO,4)}, {s(sT0)} offen" + K1SC)
    A("s_waitcnt lgkmcnt(0)")
    for r in range(16): A(f"v_mul_f32 {v(st1+r)}, {v(vCv)}, {v(st1+r)}")
    for r in range(16): A(f"v_fma_f32 {v(acc[2]+r)}, {v(acc[2]+r)}, {v(st2+r)}, -{v(st1+r)}")
    pk3 = csr
    for i in range(8): A(f"v_cvt_pk_bf16_f32 {v(pk3+i)}, {v(acc[2]+2*i)}, {v(acc[2]+2*i+1)}")
    A(f"v_lshrrev_b32 {v(vT0)}, 4, {v(vTok)}")
    A(f"v_lshlrev_b32 {v(vT0)}, 16, {v(vT0)}")
    A(f"v_lshl_add_u32 {v(vT0)}, {v(vHf)}, 8, {v(vT0)}")
    A(f"v_and_b32 {v(vT1)}, 15, {v(vTok)}")
    A(f"v_lshl_add_u32 {v(vT0)}, {v(vT1)}, 4, {v(vT0)}")
    A(f"buffer_store_dwordx4 {v(pk3,4)}, {v(vT0)}, {s(sO,4)}, {s(sVo)} offen" + K1SC)
    A(f"buffer_store_dwordx4 {v(pk3+4,4)}, {v(vT0)}, {s(sO,4)}, {s(sVo)} offen offset:512" + K1SC)
    vN = [V.alloc(), V.alloc()]
    for e in range(2):
        for i in range(4):
            A(f"v_lshlrev_b32 {v(csr2+2*i)}, 16, {v(pk2+4*e+i)}")
            A(f"v_and_b32 {v(csr2+2*i+1)}, 0xffff0000, {v(pk2+4*e+i)}")
        A(f"v_mul_f32 {v(vN[e])}, {v(csr2)}, {v(csr2)}")
        for i in range(1, 8): A(f"v_fmac_f32 {v(vN[e])}, {v(csr2+i)}, {v(csr2+i)}")
    swap_add(A, vN[0], vT2)
    swap_add(A, vN[1], vT1)
    for sh in (8, 4, 2, 1):
        for e in range(2):
            A(f"v_max_f32_dpp {v(vN[e])}, {v(vN[e])}, {v(vN[e])} row_ror:{sh} row_mask:0xf bank_mask:0xf")
    sN = [S.alloc() for _ in range(4)]
    for e in range(2):
        A(f"v_readlane_b32 {s(sN[2*e])}, {v(vN[e])}, 0")
        A(f"v_readlane_b32 {s(sN[2*e+1])}, {v(vN[e])}, 16")
    for e in range(2): A(f"s_max_u32 {s(sN[2*e])}, {s(sN[2*e])}, {s(sN[2*e+1])}")
    A(f"s_lshl_b32 {s(sT0)}, {s(sHp)}, 9")
    A(f"s_lshl_b32 {s(sT1)}, {s(sTile)}, 2")
    A(f"s_add_u32 {s(sT0)}, {s(sT0)}, {s(sT1)}")
    A(f"s_add_u32 {s(sT0)}, {s(sT0)}, {WS_KMAX}")
    A(f"v_mov_b32 {v(vN[0])}, {s(sN[0])}")
    A(f"v_mov_b32 {v(vN[1])}, {s(sN[2])}")
    A(f"v_mov_b32 {v(vT1)}, 0")
    A("s_mov_b64 exec, 1")
    A(f"buffer_store_dword {v(vN[0])}, {v(vT1)}, {s(sO,4)}, {s(sT0)} offen" + K1SC)
    A(f"buffer_store_dword {v(vN[1])}, {v(vT1)}, {s(sO,4)}, {s(sT0)} offen offset:256" + K1SC)
    A("s_mov_b64 exec, -1")
    K.stamp_out(sO, 0, vT0, vT1)
    K.rt_end(sO, 0, vT0, vT1)
    A.label(END)
    A("s_endpgm")
    print("k1b vgprs", V.hi, "sgprs", S.hi, "lds", K.lds)
    return K

def k1_hook(ev, K, L):
    A, V, S = K.A, K.V, K.S
    vT0, vT1, vLane, sW8, sWs = L["vT0"], L["vT1"], L["vLane"], L["sW8"], L["sWs"]
    H = K.__dict__.setdefault("_h", {})
    if ev == "start":
        H["R0"] = V.alloc(32); H["AC"] = V.alloc(8); H["UN"] = V.alloc(8); H["vo"] = V.alloc()
        H["srd"] = S.alloc(4); H["t"] = [S.alloc() for _ in range(4)]; H["p"] = S.alloc(2); H["flag"] = S.alloc()
        R0, vo, srd_, t, p, flag = H["R0"], H["vo"], H["srd"], H["t"], H["p"], H["flag"]
        if "cpf1" in G.FLAGS:
            A(f"s_cmp_lg_u32 {s(sW8)}, 9")
            A(f"s_cbranch_scc1 K1_NOCPF")
            A(f"s_getpc_b64 {s(p,2)}")
            A.label("K1_PCREF")
            A(f"s_sub_u32 {s(p)}, {s(p)}, K1_PCREF-k1_qkv_kernel")
            A(f"s_subb_u32 {s(p+1)}, {s(p+1)}, 0")
            A(f"v_lshlrev_b32 {v(vo)}, 4, {v(vLane)}")
            for i in range(CPF1_KB):
                A(f"global_load_dwordx4 {v(R0+4*(i%8),4)}, {v(vo)}, {s(p,2)} offset:{(i&3)*1024}")
                if i % 4 == 3: A(f"v_add_u32 {v(vo)}, 4096, {v(vo)}")
            A.label("K1_NOCPF")
        A(f"s_mov_b32 {s(flag)}, 0")
        A(f"s_cmp_lg_u32 {s(sW8)}, 8")
        A(f"s_cbranch_scc1 K1_NOCS0")
        A("s_waitcnt lgkmcnt(0)")
        A(f"s_cmp_ge_u32 s2, 48")
        A(f"s_cbranch_scc1 K1_NOZ")
        srd(A, srd_, sWs, WS_SIZE)
        A(f"s_lshl_b32 {s(t[0])}, s2, 8")
        A(f"s_add_u32 {s(t[0])}, {s(t[0])}, {WS_CNT}")
        A(f"v_mov_b32 {v(vT0)}, 0")
        A(f"v_lshlrev_b32 {v(vT1)}, 2, {v(vLane)}")
        A(f"s_mov_b32 exec_hi, 0")
        A(f"buffer_store_dword {v(vT0)}, {v(vT1)}, {s(srd_,4)}, {s(t[0])} offen")
        A(f"s_mov_b64 exec, -1")
        A.label("K1_NOZ")
        A(f"s_cmp_ge_u32 s2, 224")
        A(f"s_cbranch_scc1 K1_NOCS0")
        A(f"s_mov_b32 {s(flag)}, 1")
        A(f"s_load_dwordx2 {s(p,2)}, s[0:1], 32")
        A(f"s_mul_i32 {s(t[0])}, s2, 2341")
        A(f"s_lshr_b32 {s(t[0])}, {s(t[0])}, 16")
        A(f"s_mul_i32 {s(t[1])}, {s(t[0])}, 28")
        A(f"s_sub_u32 {s(t[1])}, s2, {s(t[1])}")
        A(f"v_lshrrev_b32 {v(vo)}, 3, {v(vLane)}")
        A(f"v_mul_u32_u24 {v(vo)}, 3584, {v(vo)}")
        A(f"v_and_b32 {v(vT0)}, 7, {v(vLane)}")
        A(f"v_lshl_add_u32 {v(vo)}, {v(vT0)}, 4, {v(vo)}")
        A(f"s_mul_i32 {s(t[2])}, {s(t[0])}, {64*3584}")
        A(f"s_lshl_b32 {s(t[3])}, {s(t[1])}, 7")
        A(f"s_add_u32 {s(t[2])}, {s(t[2])}, {s(t[3])}")
        A("s_waitcnt lgkmcnt(0)")
        srd(A, srd_, p, 512 * 1792 * 2)
        for n in range(8):
            A(f"buffer_load_dwordx4 {v(R0+4*n,4)}, {v(vo)}, {s(srd_,4)}, {s(t[2])} offen")
            A(f"s_add_u32 {s(t[2])}, {s(t[2])}, {8*3584}")
        A.label("K1_NOCS0")
        for i in range(8): A(f"v_mov_b32 {v(H['AC']+i)}, 0")
    elif ev == "end":
        R0, AC, UN, srd_, t, flag = H["R0"], H["AC"], H["UN"], H["srd"], H["t"], H["flag"]
        A(f"s_cmp_eq_u32 {s(flag)}, 0")
        A(f"s_cbranch_scc1 K1_NOCS1")
        A("s_waitcnt vmcnt(0)")
        for n in range(8):
            for i in range(4):
                A(f"v_lshlrev_b32 {v(UN+2*i)}, 16, {v(R0+4*n+i)}")
                A(f"v_and_b32 {v(UN+2*i+1)}, 0xffff0000, {v(R0+4*n+i)}")
            for i in range(8): A(f"v_add_f32 {v(AC+i)}, {v(AC+i)}, {v(UN+i)}")
        for i in range(8): A(f"v_add_f32_dpp {v(AC+i)}, {v(AC+i)}, {v(AC+i)} row_ror:8 row_mask:0xf bank_mask:0xf")
        for sw in ("v_permlane16_swap_b32", "v_permlane32_swap_b32"):
            for i in range(8): A(f"v_mov_b32 {v(UN+i)}, {v(AC+i)}")
            for i in range(8): A(f"{sw} {v(AC+i)}, {v(UN+i)}")
            for i in range(8): A(f"v_add_f32 {v(AC+i)}, {v(AC+i)}, {v(UN+i)}")
        srd(A, srd_, sWs, WS_SIZE)
        A(f"s_mul_i32 {s(t[2])}, {s(t[0])}, 7168")
        A(f"s_lshl_b32 {s(t[3])}, {s(t[1])}, 8")
        A(f"s_add_u32 {s(t[2])}, {s(t[2])}, {s(t[3])}")
        A(f"s_add_u32 {s(t[2])}, {s(t[2])}, {WS_CSG}")
        A(f"v_and_b32 {v(vT0)}, 7, {v(vLane)}")
        A(f"v_lshlrev_b32 {v(vT0)}, 5, {v(vT0)}")
        A(f"s_mov_b64 exec, 0xff")
        A(f"buffer_store_dwordx4 {v(AC,4)}, {v(vT0)}, {s(srd_,4)}, {s(t[2])} offen")
        A(f"buffer_store_dwordx4 {v(AC+4,4)}, {v(vT0)}, {s(srd_,4)}, {s(t[2])} offen offset:16")
        A.label("K1_NOCS1")

def k1z():
    G.HOOK = k1_hook
    return G.k1()

if __name__ == "__main__":
    if "stamp" in sys.argv: G.STAMP = True
    if "rt" in sys.argv: G.RT = True
    G.FLAGS = set(sys.argv[2:])
    for a_ in sys.argv[2:]:
        if a_.startswith("prioit="): PRIO_IT = int(a_.split("=")[1])
        if a_.startswith("npoll="): NPOLL = int(a_.split("=")[1])
        if a_.startswith("win5="): WIN5 = int(a_.split("=")[1])
        if a_.startswith("psleep="): PSLEEP = int(a_.split("=")[1])
    ks = [k1b() if 'k1b' in G.FLAGS else k1z(), km(1 if 'q1' in G.FLAGS else 2, prio=('noprio' not in G.FLAGS))]
    build(ks, sys.argv[1] if len(sys.argv) > 1 else "out.s")
```

```python
import sys
import gen as G
from gen import *
from dsl import *

WS_CNT = (21 << 20)
G.WS_CNT = WS_CNT
G.WS_HS = WS_HS = 20 << 20
WS_CSG = (20 << 20) + (512 << 10)
G.WS_STAMP = WS_STAMP = (21 << 20) + (512 << 10)

PRIO_IT = 13
NPOLL = 1
CPF1_KB = 13
CPF1_WG = 0
TLB_IT = 6
PSLEEP = 4
WIN5 = 5
def km(nqb=2, prio=True):
    ks = nqb
    LOCAL = 'local' in G.FLAGS
    W2R = 'w2r' in G.FLAGS
    LSC = '' if LOCAL else ' sc1'
    LLD = '' if (LOCAL and 'ldsc1' not in G.FLAGS) else ' sc1'
    KR = 0; VR = 65536; ON = 131072
    WO = 0; XT = 65536; RED = XT + 8192
    W1 = 0; CS = 139264; BI = CS + 512
    W2 = 0; RED5 = 0
    TKL = BI + 512 + 2048
    STP = BI + 512
    K = Kern("km_fused_kernel", (256, 1, 1), (512, 1, 1), BI + 512 + 2048 + 64)
    A, V, S = K.A, K.V, K.S
    END = "KM_END"
    sWs = S.alloc(2); sPx = S.alloc(2); sPwo = S.alloc(2); sP1 = S.alloc(4); sP2 = S.alloc(4); sPo = S.alloc(2)
    A(f"s_load_dwordx2 {s(sWs,2)}, s[0:1], 80")
    A(f"s_load_dwordx2 {s(sPx,2)}, s[0:1], 0")
    A(f"s_load_dwordx2 {s(sPwo,2)}, s[0:1], 16")
    A(f"s_load_dwordx4 {s(sP1,4)}, s[0:1], 32")
    A(f"s_load_dwordx4 {s(sP2,4)}, s[0:1], 48")
    A(f"s_load_dwordx2 {s(sPo,2)}, s[0:1], 64")
    A(f"s_cmp_ge_u32 s2, 256")
    A(f"s_cbranch_scc1 {END}")
    K.rt_begin()
    K.stamp()
    sO = S.alloc(4); sRa = S.alloc(4); sRb = S.alloc(4)
    sW8, sW, sXcd, sJ, sT0, sT1, sB, sJ3, sJ2, sCn = [S.alloc() for _ in range(10)]
    sSave = S.alloc(2)
    sXcP, sTkP = S.alloc(), S.alloc()
    vLane, vT0, vT1, vT2, vHf, vTok, vL16 = [V.alloc() for _ in range(7)]
    hpk = V.alloc(4)
    vPoll = V.alloc(4)
    wave_ids(K, sW8, sW, vLane, vT0)
    A(f"s_and_b32 {s(sXcd)}, s2, 7")
    A(f"s_lshr_b32 {s(sJ)}, s2, 3")
    A(f"s_and_b32 {s(sJ3)}, {s(sJ)}, 3")
    A(f"s_lshr_b32 {s(sJ2)}, {s(sJ)}, 2")
    A(f"v_lshlrev_b32 {v(vL16)}, 4, {v(vLane)}")
    A(f"v_lshrrev_b32 {v(vHf)}, 5, {v(vLane)}")
    A(f"v_and_b32 {v(vTok)}, 31, {v(vLane)}")
    FLG = "flg" in G.FLAGS
    def signal(off_sgpr, local=False, slot=None):
        if FLG:
            slot()
            A(f"s_lshl_b32 {s(sT0)}, {s(sT0)}, 2")
            A(f"v_mov_b32 {v(vT1)}, {s(sT0)}")
            A(f"v_mov_b32 {v(vT0)}, 1")
            A(f"s_mov_b64 exec, 1")
            A(f"buffer_store_dword {v(vT0)}, {v(vT1)}, {s(sO,4)}, {s(off_sgpr)} offen sc1")
            A(f"s_mov_b64 exec, -1")
            return
        A(f"v_mov_b32 {v(vT0)}, 1")
        A(f"v_mov_b32 {v(vT1)}, 0")
        A(f"s_mov_b64 exec, 1")
        A(f"buffer_atomic_add {v(vT0)}, {v(vT1)}, {s(sO,4)}, {s(off_sgpr)} offen" + ("" if local else " sc1"))
        A(f"s_mov_b64 exec, -1")
    def poll(off_sgpr, target, tag):
        if FLG:
            A(f"v_lshlrev_b32 {v(vT1)}, 2, {v(vLane)}")
            A(f"s_mov_b32 {s(sT1)}, 3000000")
            A(f"s_mov_b32 exec_lo, {(1 << target) - 1:#x}")
            A(f"s_mov_b32 exec_hi, 0")
            A.label(f"KM_POLL_{tag}")
            A(f"buffer_load_dword {v(vT0)}, {v(vT1)}, {s(sO,4)}, {s(off_sgpr)} offen sc1")
            A("s_waitcnt vmcnt(0)")
            A(f"v_cmp_eq_u32 vcc, 0, {v(vT0)}")
            A("s_nop 1")
            A(f"s_cmp_eq_u64 vcc, 0")
            A(f"s_cbranch_scc1 KM_PD_{tag}")
            A("s_sleep 1")
            A(f"s_sub_u32 {s(sT1)}, {s(sT1)}, 1")
            A(f"s_cmp_lg_u32 {s(sT1)}, 0")
            A(f"s_cbranch_scc1 KM_POLL_{tag}")
            A.label(f"KM_PD_{tag}")
            A(f"s_mov_b64 exec, -1")
            return
        if NPOLL <= 1:
            A(f"v_mov_b32 {v(vT1)}, 0")
            A(f"s_mov_b32 {s(sT1)}, 3000000")
            A.label(f"KM_POLL_{tag}")
            A(f"buffer_load_dword {v(vT0)}, {v(vT1)}, {s(sO,4)}, {s(off_sgpr)} offen sc1")
            A("s_waitcnt vmcnt(0)")
            A(f"v_readfirstlane_b32 {s(sT0)}, {v(vT0)}")
            A(f"s_cmp_ge_u32 {s(sT0)}, {target}")
            A(f"s_cbranch_scc1 KM_PD_{tag}")
            A("s_sleep 1")
            A(f"s_sub_u32 {s(sT1)}, {s(sT1)}, 1")
            A(f"s_cmp_lg_u32 {s(sT1)}, 0")
            A(f"s_cbranch_scc1 KM_POLL_{tag}")
            A.label(f"KM_PD_{tag}")
            return
        P = vPoll
        A(f"v_mov_b32 {v(vT1)}, 0")
        A(f"s_mov_b32 {s(sT1)}, 1000000")
        for k in range(NPOLL - 1):
            A(f"buffer_load_dword {v(P+k)}, {v(vT1)}, {s(sO,4)}, {s(off_sgpr)} offen sc1")
            A(f"s_sleep {PSLEEP}")
        A.label(f"KM_POLL_{tag}")
        for k in range(NPOLL):
            A(f"buffer_load_dword {v(P+(k+NPOLL-1)%NPOLL)}, {v(vT1)}, {s(sO,4)}, {s(off_sgpr)} offen sc1")
            A(f"s_waitcnt vmcnt({NPOLL-1})")
            A(f"v_readfirstlane_b32 {s(sT0)}, {v(P+k)}")
            A(f"s_cmp_ge_u32 {s(sT0)}, {target}")
            A(f"s_cbranch_scc1 KM_PD_{tag}")
            A(f"s_sleep {PSLEEP}")
        A(f"s_sub_u32 {s(sT1)}, {s(sT1)}, 1")
        A(f"s_cmp_lg_u32 {s(sT1)}, 0")
        A(f"s_cbranch_scc1 KM_POLL_{tag}")
        A.label(f"KM_PD_{tag}")
    def only_wave0(tag, body):
        A(f"s_cmp_lg_u32 {s(sW8)}, 0")
        A(f"s_cbranch_scc1 KM_NW0_{tag}")
        body()
        A.label(f"KM_NW0_{tag}")
    def cnt_off(dst, base, idx_expr):
        idx_expr(dst)
        A(f"s_lshl_b32 {s(dst)}, {s(dst)}, 8")
        A(f"s_add_u32 {s(dst)}, {s(dst)}, {WS_CNT + base}")
    mkV = V.mark(); mkS = S.mark()
    sHead, sWq, sKh, sHb, sIt, sKm, sQt, sL, sG, sL0 = [S.alloc() for _ in range(10)]
    sQb = sJ2
    vK, vV, vVinc = [V.alloc() for _ in range(3)]
    A(f"s_lshl_b32 {s(sHead)}, {s(sXcd)}, 2")
    A(f"s_add_u32 {s(sHead)}, {s(sHead)}, {s(sJ3)}")
    if ks == 2:
        A(f"s_mov_b32 {s(sWq)}, {s(sW)}")
        A(f"s_lshr_b32 {s(sKh)}, {s(sW8)}, 2")
    else:
        A(f"s_mov_b32 {s(sWq)}, {s(sW8)}")
        A(f"s_mov_b32 {s(sKh)}, 0")
    A(f"s_lshl_b32 {s(sHb)}, {s(sHead)}, 16")
    Q = [V.alloc(4) for _ in range(nqb)]
    vKm = V.alloc()
    A(f"s_lshl_b32 {s(sT0)}, {s(sQb)}, 3")
    A(f"s_mul_i32 {s(sT1)}, {s(sWq)}, {nqb}")
    A(f"s_add_u32 {s(sQt)}, {s(sT0)}, {s(sT1)}")
    if ks == 2:
        A(f"s_lshl_b32 {s(sL0)}, {s(sKh)}, 5")
        A(f"s_lshl_b32 {s(sT0)}, {s(sWq)}, 1")
        A(f"s_add_u32 {s(sL0)}, {s(sL0)}, {s(sT0)}")
        gstep = 8
    else:
        A(f"s_lshl_b32 {s(sL0)}, {s(sW8)}, 1")
        gstep = 16
    A(f"s_lshl_b32 {s(sB)}, {s(sQt)}, 10")
    A(f"s_add_u32 {s(sB)}, {s(sB)}, {s(sHb)}")
    A(f"v_lshlrev_b32 {v(vT2)}, 2, {v(vLane)}")
    A("s_waitcnt lgkmcnt(0)")
    srd(A, sO, sWs, WS_SIZE)
    sXc, sTk = sXcP, sTkP
    vTk = V.alloc()
    if LOCAL:
        A(f"s_getreg_b32 {s(sXc)}, hwreg(HW_REG_XCC_ID)")
        A(f"s_and_b32 {s(sXc)}, {s(sXc)}, 7")
        A(f"s_cmp_lg_u32 {s(sW8)}, 0")
        A(f"s_cbranch_scc1 KM_NOTK")
        A(f"s_lshl_b32 {s(sT0)}, {s(sXc)}, 8")
        A(f"s_add_u32 {s(sT0)}, {s(sT0)}, {WS_CNT + 10240}")
        A(f"v_mov_b32 {v(vTk)}, 1")
        A(f"v_mov_b32 {v(vT0)}, 0")
        A(f"s_mov_b64 exec, 1")
        A(f"buffer_atomic_add {v(vTk)}, {v(vT0)}, {s(sO,4)}, {s(sT0)} offen sc0")
        A(f"s_mov_b64 exec, -1")
        A.label("KM_NOTK")
    else:
        A(f"s_mov_b32 {s(sXc)}, {s(sXcd)}")
        A(f"s_mov_b32 {s(sTk)}, {s(sJ)}")
    def kv_group(g):
        A(f"s_add_u32 {s(sL)}, {s(sL0)}, {gstep*g}")
        A(f"s_lshl_b32 {s(sT0)}, {s(sQb)}, 3")
        A(f"s_add_u32 {s(sG)}, {s(sL)}, {s(sT0)}")
        A(f"s_and_b32 {s(sG)}, {s(sG)}, 63")
        A(f"s_lshl_b32 {s(sG)}, {s(sG)}, 10")
        A(f"s_add_u32 {s(sG)}, {s(sG)}, {s(sHb)}")
        A(f"s_lshl_b32 {s(sL)}, {s(sL)}, 10")
        A(f"s_add_u32 m0, {s(sL)}, {KR}")
        A(f"s_add_u32 {s(sT0)}, {s(sG)}, {WS_KF}")
        A(f"buffer_load_dwordx4 {v(vL16)}, {s(sO,4)}, {s(sT0)} offen lds")
        A(f"buffer_load_dwordx4 {v(vL16)}, {s(sO,4)}, {s(sT0)} offen offset:1024 lds")
        A(f"s_add_u32 m0, {s(sL)}, {VR}")
        A(f"s_add_u32 {s(sT0)}, {s(sG)}, {WS_VF}")
        A(f"buffer_load_dwordx4 {v(vL16)}, {s(sO,4)}, {s(sT0)} offen lds")
        A(f"buffer_load_dwordx4 {v(vL16)}, {s(sO,4)}, {s(sT0)} offen offset:1024 lds")
    for b in range(nqb):
        A(f"buffer_load_dwordx4 {v(Q[b],4)}, {v(vL16)}, {s(sO,4)}, {s(sB)} offen offset:{b*1024}")
    A(f"s_lshl_b32 {s(sT0)}, {s(sHead)}, 8")
    A(f"s_add_u32 {s(sT0)}, {s(sT0)}, {WS_KMAX}")
    A(f"buffer_load_dword {v(vKm)}, {v(vT2)}, {s(sO,4)}, {s(sT0)} offen")
    kv_group(0)
    K.stamp()
    ZROW = "zrow" in G.FLAGS
    ZR = ON + 4608
    A(f"v_mov_b32 {v(vT1)}, 0x3f803f80")
    A(f"v_lshlrev_b32 {v(vT0)}, 2, v0")
    A(f"v_add_u32 {v(vT0)}, {ON}, {v(vT0)}")
    A(f"ds_write_b32 {v(vT0)}, {v(vT1)}")
    A(f"ds_write_b32 {v(vT0)}, {v(vT1)} offset:2048")
    if ZROW:
        A(f"v_mov_b32 {v(vT2)}, 0")
        A(f"ds_write_b32 {v(vT0)}, {v(vT2)} offset:4608")
        A(f"ds_write_b32 {v(vT0)}, {v(vT2)} offset:{4608+2048}")
    A(f"v_cmp_gt_u32 vcc, 128, v0")
    A(f"s_and_saveexec_b64 {s(sSave,2)}, vcc")
    A(f"ds_write_b32 {v(vT0)}, {v(vT1)} offset:4096")
    if ZROW: A(f"ds_write_b32 {v(vT0)}, {v(vT2)} offset:{4608+4096}")
    A(f"s_mov_b64 exec, {s(sSave,2)}")
    A(f"s_lshl_b32 {s(sT0)}, {s(sKh)}, 15")
    A(f"v_add_u32 {v(vK)}, {s(sT0)}, {v(vL16)}")
    A(f"v_lshlrev_b32 {v(vT0)}, 8, {v(vHf)}")
    A(f"v_lshl_add_u32 {v(vT0)}, {v(vTok)}, 4, {v(vT0)}")
    A(f"s_add_u32 {s(sT0)}, {s(sT0)}, {VR}")
    A(f"v_add_u32 {v(vT0)}, {s(sT0)}, {v(vT0)}")
    A(f"v_subrev_u32 {v(vT1)}, 20, {v(vTok)}")
    A(f"v_cmp_gt_u32 vcc, 8, {v(vT1)}")
    if ZROW:
        A(f"v_mov_b32 {v(vT1)}, {ZR+192}")
        A(f"v_mov_b32 {v(vT2)}, {ZR+64}")
        A(f"v_cndmask_b32 {v(vT1)}, {v(vT1)}, {v(vT2)}, vcc")
        A(f"v_mov_b32 {v(vT2)}, {ON}")
        A(f"v_cmp_eq_u32 vcc, 16, {v(vTok)}")
        A(f"v_cndmask_b32 {v(vT1)}, {v(vT1)}, {v(vT2)}, vcc")
    else:
        A(f"v_mov_b32 {v(vT1)}, {ON}")
        A(f"v_mov_b32 {v(vT2)}, {ON+64}")
        A(f"v_cndmask_b32 {v(vT1)}, {v(vT1)}, {v(vT2)}, vcc")
    A(f"v_cmp_gt_u32 vcc, 16, {v(vTok)}")
    A(f"v_cndmask_b32 {v(vV)}, {v(vT1)}, {v(vT0)}, vcc")
    A(f"v_mov_b32 {v(vT1)}, 4096")
    A(f"v_cndmask_b32 {v(vVinc)}, 0, {v(vT1)}, vcc")
    Kf = [V.alloc(4) for _ in range(2)]; Vf0 = [V.alloc(4) for _ in range(2)]; Vf1 = [V.alloc(4) for _ in range(2)]
    QB = [dict(S=[V.alloc(16), V.alloc(16)], P=V.alloc(8), O=V.alloc(16), C=V.alloc(16)) for _ in range(nqb)]
    for b in range(nqb):
        for r in range(16): A(f"v_mov_b32 {v(QB[b]['O']+r)}, 0")
        for r in range(4, 8): A(f"v_mov_b32 {v(QB[b]['P']+r)}, 0")
    for r in range(4): A(f"v_mov_b32 {v(Vf1[1]+r)}, 0")
    A(f"s_waitcnt vmcnt(4)")
    wave_max64(A, vKm, sKm, sT0)
    bad = S.alloc(2)
    for b in range(nqb):
        un = QB[b]["S"][0]
        for i in range(4):
            A(f"v_lshlrev_b32 {v(un+2*i)}, 16, {v(Q[b]+i)}")
            A(f"v_and_b32 {v(un+2*i+1)}, 0xffff0000, {v(Q[b]+i)}")
        A(f"v_mul_f32 {v(vT0)}, {v(un)}, {v(un)}")
        for i in range(1, 8): A(f"v_fmac_f32 {v(vT0)}, {v(un+i)}, {v(un+i)}")
        swap_add(A, vT0, vT1)
        A(f"v_mul_f32 {v(vT0)}, {s(sKm)}, {v(vT0)}")
        A(f"v_sqrt_f32 {v(vT0)}, {v(vT0)}")
        A(f"v_mov_b32 {v(vT1)}, {f2u(0.01):#x}")
        A(f"v_fmac_f32 {v(vT1)}, {f2u(1.01):#x}, {v(vT0)}")
        A(f"v_mov_b32 {v(vT2)}, {f2u(40.0):#x}")
        A(f"v_cmp_nge_f32 vcc, {v(vT2)}, {v(vT1)}")
        if b == 0: A(f"s_mov_b64 {s(bad,2)}, vcc")
        else: A(f"s_or_b64 {s(bad,2)}, {s(bad,2)}, vcc")
        for r in range(16): A(f"v_sub_f32 {v(QB[b]['C']+r)}, 0, {v(vT1)}")
    if LOCAL:
        A(f"s_waitcnt vmcnt(0)")
        A(f"s_cmp_lg_u32 {s(sW8)}, 0")
        A(f"s_cbranch_scc1 KM_NOTK2")
        A(f"v_mov_b32 {v(vT0)}, {TKL}")
        A(f"s_mov_b64 exec, 1")
        A(f"ds_write_b32 {v(vT0)}, {v(vTk)}")
        A(f"s_mov_b64 exec, -1")
        A.label("KM_NOTK2")
    A(f"s_waitcnt vmcnt(0) lgkmcnt(0)")
    A("s_barrier")
    K.stamp()
    if LOCAL:
        A(f"v_mov_b32 {v(vT0)}, {TKL}")
        A(f"ds_read_b32 {v(vT1)}, {v(vT0)}")
        A(f"s_waitcnt lgkmcnt(0)")
        A(f"v_readfirstlane_b32 {s(sTk)}, {v(vT1)}")
    NT = 64 // ks
    mf = "v_mfma_f32_32x32x16_bf16"
    sPF = S.alloc(4); sPFo = S.alloc()
    A(f"s_lshl_b32 {s(sT0)}, {s(sJ)}, 2")
    A(f"s_add_u32 {s(sT0)}, {s(sT0)}, {s(sW)}")
    A(f"s_cmp_lt_u32 {s(sT0)}, 72")
    A(f"s_cselect_b32 {s(sPF)}, {s(sP1)}, {s(sP2)}")
    A(f"s_cselect_b32 {s(sPF+1)}, {s(sP1+1)}, {s(sP2+1)}")
    A(f"s_cselect_b32 {s(sT1)}, 16, 72")
    A(f"s_cmp_lt_u32 {s(sT0)}, 16")
    A(f"s_cselect_b32 {s(sPF)}, {s(sPwo)}, {s(sPF)}")
    A(f"s_cselect_b32 {s(sPF+1)}, {s(sPwo+1)}, {s(sPF+1)}")
    A(f"s_cselect_b32 {s(sT1)}, 0, {s(sT1)}")
    A(f"s_sub_u32 {s(sT0)}, {s(sT0)}, {s(sT1)}")
    A(f"s_lshl_b32 {s(sT0)}, {s(sT0)}, 15")
    A(f"s_add_u32 {s(sPF)}, {s(sPF)}, {s(sT0)}")
    A(f"s_addc_u32 {s(sPF+1)}, {s(sPF+1)}, 0")
    A(f"s_and_b32 {s(sPF+1)}, {s(sPF+1)}, 0xffff")
    A(f"s_mov_b32 {s(sPF+2)}, 32768")
    A(f"s_mov_b32 {s(sPF+3)}, 0x20000")
    A(f"s_mov_b32 {s(sPFo)}, 0")
    if "nopf" in G.FLAGS:
        A(f"s_mov_b32 {s(sPFo)}, 32768")
    if "pf2" in G.FLAGS:
        A(f"s_lshl_b32 {s(sT0)}, {s(sJ)}, 2")
        A(f"s_add_u32 {s(sT0)}, {s(sT0)}, {s(sW)}")
        A(f"s_cmp_lt_u32 {s(sT0)}, 72")
        A(f"s_cselect_b32 {s(sPFo)}, 0, 32768")
    vPF = V.alloc(4)
    A(f"s_cmp_lt_u32 {s(sW8)}, 4")
    A(f"s_cbranch_scc1 KM_OLD1")
    for g in range(1, 4):
        if ks == 2:
            A(f"s_lshr_b32 {s(sL)}, {s(sW)}, 1")
            A(f"s_lshl_b32 {s(sL)}, {s(sL)}, 5")
            A(f"s_and_b32 {s(sT0)}, {s(sW)}, 1")
            A(f"s_lshl_b32 {s(sT0)}, {s(sT0)}, 2")
            A(f"s_add_u32 {s(sL)}, {s(sL)}, {s(sT0)}")
            A(f"s_add_u32 {s(sL)}, {s(sL)}, {8*g}")
        else:
            A(f"s_lshl_b32 {s(sL)}, {s(sW)}, 2")
            A(f"s_add_u32 {s(sL)}, {s(sL)}, {16*g}")
        A(f"s_lshl_b32 {s(sT0)}, {s(sQb)}, 3")
        A(f"s_add_u32 {s(sG)}, {s(sL)}, {s(sT0)}")
        A(f"s_and_b32 {s(sG)}, {s(sG)}, 63")
        A(f"s_lshl_b32 {s(sG)}, {s(sG)}, 10")
        A(f"s_add_u32 {s(sG)}, {s(sG)}, {s(sHb)}")
        A(f"s_lshl_b32 {s(sL)}, {s(sL)}, 10")
        for reg, wsb in ((KR, WS_KF), (VR, WS_VF)):
            A(f"s_add_u32 m0, {s(sL)}, {reg}")
            A(f"s_add_u32 {s(sT0)}, {s(sG)}, {wsb}")
            for i in range(4):
                A(f"buffer_load_dwordx4 {v(vL16)}, {s(sO,4)}, {s(sT0)} offen offset:{i*1024} lds")
    A("s_waitcnt vmcnt(0)")
    A("s_barrier")
    if "cpf" in G.FLAGS:
        sPC = S.alloc(2)
        A(f"s_getpc_b64 {s(sPC,2)}")
        A.label("KM_PCREF")
        A(f"s_add_u32 {s(sPC)}, {s(sPC)}, KM_FIN-KM_PCREF")
        A(f"s_addc_u32 {s(sPC+1)}, {s(sPC+1)}, 0")
        A(f"s_mul_i32 {s(sT0)}, {s(sW)}, 3072")
        A(f"v_add_u32 {v(vT0)}, {s(sT0)}, {v(vL16)}")
        for i in range(3):
            A(f"global_load_dwordx4 {v(vPF,4)}, {v(vT0)}, {s(sPC,2)} offset:{i*1024}")
    if prio: A("s_setprio 1")
    A.label("KM_OLD1")
    A(f"s_cmp_lg_u64 {s(bad,2)}, 0")
    A(f"s_cbranch_scc1 KM_SLOW")
    A(f"ds_read_b128 {v(Kf[0],4)}, {v(vK)}")
    A(f"ds_read_b128 {v(Kf[1],4)}, {v(vK)} offset:1024")
    A(f"ds_read_b128 {v(Vf0[0],4)}, {v(vV)}")
    A("s_waitcnt lgkmcnt(2)")
    for b in range(nqb):
        A(f"{mf} {v(QB[b]['S'][0],16)}, {v(Kf[0],4)}, {v(Q[b],4)}, {v(QB[b]['C'],16)}")
    sA1i = S.alloc()
    a1it = 3 if ks == 1 else 1
    A(f"s_cmp_lt_u32 {s(sW8)}, 4")
    A(f"s_cselect_b32 {s(sA1i)}, {a1it}, -1")
    sPFl = S.alloc()
    A(f"s_cselect_b32 {s(sPFl)}, 0, 32768")
    A(f"s_mov_b32 {s(sIt)}, 0")
    A.label("KM_LOOP")
    A(f"s_cmp_lg_u32 {s(sIt)}, {s(sA1i)}")
    A(f"s_cbranch_scc1 KM_NOSYNC")
    A("s_barrier")
    A.label("KM_NOSYNC")
    if prio:
        A(f"s_cmp_lg_u32 {s(sIt)}, {PRIO_IT if ks == 1 else PRIO_IT // 2}")
        A(f"s_cbranch_scc1 KM_NP2")
        A("s_setprio 0")
        A.label("KM_NP2")
    npf = 3 if ks == 1 else 6
    A(f"s_cmp_ge_u32 {s(sPFo)}, {s(sPFl)}")
    A(f"s_cbranch_scc1 KM_NOPF")
    for i in range(npf):
        if i == 4: A(f"s_add_u32 {s(sT0)}, {s(sPFo)}, 4096")
        A(f"buffer_load_dwordx4 {v(vPF,4)}, {v(vL16)}, {s(sPF,4)}, {s(sPFo if i < 4 else sT0)} offen offset:{(i&3)*1024}")
    A(f"s_add_u32 {s(sPFo)}, {s(sPFo)}, {npf*1024}")
    A.label("KM_NOPF")
    if "tlb" in G.FLAGS:
        A(f"s_cmp_lg_u32 {s(sIt)}, {TLB_IT}")
        A(f"s_cbranch_scc1 KM_NOTLB")
        A(f"s_cmp_lt_u32 {s(sW8)}, 4")
        A(f"s_cbranch_scc1 KM_NOTLB")
        A(f"v_and_b32 {v(vT0)}, 7, {v(vLane)}")
        A(f"v_lshlrev_b32 {v(vT0)}, 21, {v(vT0)}")
        A(f"s_lshl_b32 {s(sT0)}, {s(sJ)}, 12")
        A(f"s_add_u32 {s(sT0)}, {s(sT0)}, {(8 << 20) + 0x100000}")
        A(f"s_mov_b64 exec, 0x7f")
        A(f"buffer_load_dword {v(vPF)}, {v(vT0)}, {s(sO,4)}, {s(sT0)} offen")
        A(f"s_mov_b64 exec, 1")
        A(f"v_mov_b32 {v(vT0)}, 0")
        A(f"global_load_dword {v(vPF+1)}, {v(vT0)}, {s(sPo,2)}")
        A(f"global_load_dword {v(vPF+2)}, {v(vT0)}, {s(sP1+2,2)}")
        A(f"global_load_dword {v(vPF+3)}, {v(vT0)}, {s(sP2+2,2)}")
        A(f"s_mov_b64 exec, -1")
        A.label("KM_NOTLB")
    for t in range(4):
        cur, nxt = t & 1, (t + 1) & 1
        A("s_waitcnt lgkmcnt(0)")
        for b in range(nqb):
            q = QB[b]; Sx = q["S"][cur]; Sn = q["S"][nxt]; P = q["P"]; O = q["O"]
            ex = [f"v_exp_f32 {v(Sx+i)}, {v(Sx+i)}" for i in range(16)]
            cv = [f"v_cvt_pk_bf16_f32 {v(P+i)}, {v(Sx+2*i)}, {v(Sx+2*i+1)}" for i in range(8)]
            A(f"{mf} {v(Sn,16)}, {v(Kf[nxt],4)}, {v(Q[b],4)}, {v(q['C'],16)}")
            for x in ex[0:4]: A(x)
            A(cv[0])
            for x in ex[4:6]: A(x)
            A(cv[1])
            A(f"{mf} {v(O,16)}, {v(Vf1[nxt],4)}, {v(P+4,4)}, {v(O,16)}")
            if b == 0:
                A(f"ds_read_b128 {v(Kf[cur],4)}, {v(vK)} offset:{(t+2)*1024}")
                A(f"ds_read_b128 {v(Vf0[nxt],4)}, {v(vV)} offset:{(t+1)*1024}")
                A(f"ds_read_b128 {v(Vf1[cur],4)}, {v(vV)} offset:{t*1024+512}")
            for x in ex[6:8]: A(x)
            A(cv[2])
            for x in ex[8:10]: A(x)
            A(cv[3])
            for x in ex[10:12]: A(x)
            A(cv[4])
            A(f"{mf} {v(O,16)}, {v(Vf0[cur],4)}, {v(P,4)}, {v(O,16)}")
            for x in ex[12:14]: A(x)
            A(cv[5])
            for x in ex[14:16]: A(x)
            A(cv[6])
            A(cv[7])
    A(f"v_add_u32 {v(vK)}, 4096, {v(vK)}")
    A(f"v_add_u32 {v(vV)}, {v(vVinc)}, {v(vV)}")
    A(f"s_add_u32 {s(sIt)}, {s(sIt)}, 1")
    A(f"s_cmp_lt_u32 {s(sIt)}, {NT//4}")
    A(f"s_cbranch_scc1 KM_LOOP")
    A("s_waitcnt lgkmcnt(0)")
    for b in range(nqb):
        A(f"{mf} {v(QB[b]['O'],16)}, {v(Vf1[1],4)}, {v(QB[b]['P']+4,4)}, {v(QB[b]['O'],16)}")
    A("s_branch KM_FIN")
    A.label("KM_SLOW")
    A(f"s_cmp_ge_u32 {s(sW8)}, 4")
    A(f"s_cbranch_scc1 KM_SLOW2")
    A("s_barrier")
    A.label("KM_SLOW2")
    for b in range(nqb):
        A(f"v_mov_b32 {v(QB[b]['C'])}, {f2u(-3.0e38):#x}")
    A(f"s_mov_b32 {s(sIt)}, 0")
    A.label("KM_SLOOP")
    A(f"ds_read_b128 {v(Kf[0],4)}, {v(vK)}")
    A(f"ds_read_b128 {v(Vf0[0],4)}, {v(vV)}")
    A(f"ds_read_b128 {v(Vf1[0],4)}, {v(vV)} offset:512")
    A("s_waitcnt lgkmcnt(0)")
    for b in range(nqb):
        q = QB[b]; Sx = q["S"][0]; P = q["P"]; O = q["O"]; m = q["C"]; mn = q["C"] + 1; al = q["C"] + 2
        A(f"{mf} {v(Sx,16)}, {v(Kf[0],4)}, {v(Q[b],4)}, 0")
        A(f"v_max_f32 {v(mn)}, {v(Sx)}, {v(Sx+1)}")
        for i in range(2, 16): A(f"v_max_f32 {v(mn)}, {v(mn)}, {v(Sx+i)}")
        swap_add(A, mn, vT1, "v_max_f32")
        A(f"v_max_f32 {v(mn)}, {v(mn)}, {v(m)}")
        A(f"v_sub_f32 {v(al)}, {v(m)}, {v(mn)}")
        A(f"v_exp_f32 {v(al)}, {v(al)}")
        A(f"v_mov_b32 {v(m)}, {v(mn)}")
        for i in range(16): A(f"v_sub_f32 {v(Sx+i)}, {v(Sx+i)}, {v(mn)}")
        for i in range(16): A(f"v_exp_f32 {v(Sx+i)}, {v(Sx+i)}")
        for i in range(16): A(f"v_mul_f32 {v(O+i)}, {v(al)}, {v(O+i)}")
        for i in range(8): A(f"v_cvt_pk_bf16_f32 {v(P+i)}, {v(Sx+2*i)}, {v(Sx+2*i+1)}")
        A(f"{mf} {v(O,16)}, {v(Vf0[0],4)}, {v(P,4)}, {v(O,16)}")
        A(f"{mf} {v(O,16)}, {v(Vf1[0],4)}, {v(P+4,4)}, {v(O,16)}")
    A(f"v_add_u32 {v(vK)}, 1024, {v(vK)}")
    A(f"v_lshrrev_b32 {v(vT0)}, 2, {v(vVinc)}")
    A(f"v_add_u32 {v(vV)}, {v(vT0)}, {v(vV)}")
    A(f"s_add_u32 {s(sIt)}, {s(sIt)}, 1")
    A(f"s_cmp_lt_u32 {s(sIt)}, {NT}")
    A(f"s_cbranch_scc1 KM_SLOOP")
    A(f"s_mov_b32 {s(sIt)}, -1")
    A.label("KM_FIN")
    if prio: A("s_setprio 0")
    K.stamp()
    if ks == 2:
        vM = [V.alloc(), V.alloc()]
        for b in range(2): A(f"v_sub_f32 {v(vM[b])}, 0, {v(QB[b]['C'])}")
        A(f"s_cmp_lg_u32 {s(sIt)}, -1")
        A(f"s_cbranch_scc1 KM_F1")
        for b in range(2): A(f"v_mov_b32 {v(vM[b])}, {v(QB[b]['C'])}")
        A.label("KM_F1")
        snd = QB[0]["S"][0]; kp = QB[0]["S"][1]
        A(f"s_cmp_eq_u32 {s(sKh)}, 0")
        A(f"s_cbranch_scc1 KM_F2")
        for r in range(9):
            A(f"v_mov_b32 {v(snd+r)}, {v(QB[0]['O']+r)}"); A(f"v_mov_b32 {v(kp+r)}, {v(QB[1]['O']+r)}")
        A(f"v_mov_b32 {v(snd+9)}, {v(vM[0])}"); A(f"v_mov_b32 {v(kp+9)}, {v(vM[1])}")
        A("s_branch KM_F3")
        A.label("KM_F2")
        for r in range(9):
            A(f"v_mov_b32 {v(snd+r)}, {v(QB[1]['O']+r)}"); A(f"v_mov_b32 {v(kp+r)}, {v(QB[0]['O']+r)}")
        A(f"v_mov_b32 {v(snd+9)}, {v(vM[1])}"); A(f"v_mov_b32 {v(kp+9)}, {v(vM[0])}")
        A.label("KM_F3")
        A("s_barrier")
        A(f"s_mul_i32 {s(sT0)}, {s(sW8)}, 2560")
        A(f"v_lshlrev_b32 {v(vT2)}, 2, {v(vLane)}")
        A(f"v_add_u32 {v(vT0)}, {s(sT0)}, {v(vT2)}")
        for r in range(10): A(f"ds_write_b32 {v(vT0)}, {v(snd+r)} offset:{r*256}")
        A("s_waitcnt lgkmcnt(0)")
        A("s_barrier")
        A(f"s_xor_b32 {s(sT0)}, {s(sW8)}, 4")
        A(f"s_mul_i32 {s(sT0)}, {s(sT0)}, 2560")
        A(f"v_add_u32 {v(vT0)}, {s(sT0)}, {v(vT2)}")
        for r in range(10): A(f"ds_read_b32 {v(snd+r)}, {v(vT0)} offset:{r*256}")
        A("s_waitcnt lgkmcnt(0)")
        A(f"v_max_f32 {v(vT0)}, {v(kp+9)}, {v(snd+9)}")
        A(f"v_sub_f32 {v(vT1)}, {v(kp+9)}, {v(vT0)}")
        A(f"v_sub_f32 {v(vT2)}, {v(snd+9)}, {v(vT0)}")
        A(f"v_exp_f32 {v(vT1)}, {v(vT1)}")
        A(f"v_exp_f32 {v(vT2)}, {v(vT2)}")
        for r in range(9): A(f"v_mul_f32 {v(kp+r)}, {v(vT1)}, {v(kp+r)}")
        for r in range(9): A(f"v_fmac_f32 {v(kp+r)}, {v(vT2)}, {v(snd+r)}")
        Of = kp
        A(f"s_add_u32 {s(sQt)}, {s(sQt)}, {s(sKh)}")
    else:
        Of = QB[0]["O"]
    if ZROW: swap_add(A, Of + 8, vT1)
    A(f"v_rcp_f32 {v(vT0)}, {v(Of+8)}")
    for r in range(8): A(f"v_mul_f32 {v(Of+r)}, {v(vT0)}, {v(Of+r)}")
    pk = QB[0]["P"]
    for i in range(4): A(f"v_cvt_pk_bf16_f32 {v(pk+i)}, {v(Of+2*i)}, {v(Of+2*i+1)}")
    A(f"s_lshl_b32 {s(sT0)}, {s(sQt)}, 15")
    A(f"s_lshl_b32 {s(sT1)}, {s(sHead)}, 10")
    A(f"s_add_u32 {s(sT0)}, {s(sT0)}, {s(sT1)}")
    A(f"s_add_u32 {s(sT0)}, {s(sT0)}, {WS_OF}")
    A(f"buffer_store_dwordx4 {v(pk,4)}, {v(vL16)}, {s(sO,4)}, {s(sT0)} offen sc1")
    A("s_waitcnt vmcnt(0)")
    A("s_barrier")
    K.stamp()
    V.release(mkV); S.release(mkS)
    sRt, sCt, sR128, sCt4, sTb, sTr, sTi, sQbS = [S.alloc() for _ in range(8)]
    A(f"s_mov_b32 {s(sQbS)}, {s(sJ2)}")
    A(f"s_mov_b32 {s(sXcd)}, {s(sXc)}")
    A(f"s_and_b32 {s(sJ)}, {s(sTk)}, 31")
    A(f"s_and_b32 {s(sJ3)}, {s(sJ)}, 3")
    A(f"s_lshr_b32 {s(sJ2)}, {s(sJ)}, 2")
    A(f"s_lshl_b32 {s(sRt)}, {s(sXcd)}, 2")
    A(f"s_add_u32 {s(sRt)}, {s(sRt)}, {s(sJ3)}")
    A(f"s_mov_b32 {s(sCt)}, {s(sJ2)}")
    A(f"s_and_b32 {s(sTr)}, {s(sW8)}, 1")
    A(f"s_bfe_u32 {s(sTb)}, {s(sW8)}, 0x10001")
    A(f"s_lshr_b32 {s(sTi)}, {s(sW8)}, 2")
    A(f"s_lshl_b32 {s(sR128)}, {s(sXcd)}, 1")
    A(f"s_and_b32 {s(sT0)}, {s(sJ)}, 1")
    A(f"s_add_u32 {s(sR128)}, {s(sR128)}, {s(sT0)}")
    A(f"s_lshr_b32 {s(sCt4)}, {s(sJ)}, 1")
    vBl = V.alloc(); vWoff = V.alloc(); vW1off = V.alloc()
    tr_pi_base(A, vBl, vLane, vHf, vT0, vT1)
    sB1, sB2 = S.alloc(), S.alloc()
    sRw1 = S.alloc(4); sRw2 = S.alloc(4)
    def dma_w1(p):
        A(f"s_lshl_b32 {s(sT1)}, {s(sW)}, 12")
        for c in range(4):
            for q in range(4):
                A(f"s_add_u32 m0, {s(sT1)}, {W1 + p*65536 + c*16384 + q*1024}")
                A(f"s_add_u32 {s(sT0)}, {s(sB1)}, {(128*c + 8*q)*3584 + p*128}")
                A(f"buffer_load_dwordx4 {v(vW1off)}, {s(sRw1,4)}, {s(sT0)} offen lds")
    def dma_w2(c):
        A(f"s_lshl_b32 {s(sT1)}, {s(sW)}, 15")
        for q in range(8):
            A(f"s_add_u32 m0, {s(sT1)}, {W2 + (c&3)*8192 + q*1024}")
            A(f"s_add_u32 {s(sT0)}, {s(sB2)}, {(64*c + 8*q)*1024}")
            A(f"buffer_load_dwordx4 {v(vWoff)}, {s(sRw2,4)}, {s(sT0)} offen lds")
    def dma_w1_all8(p):
        A(f"s_lshl_b32 {s(sT1)}, {s(sW8)}, 13")
        A(f"s_mul_i32 {s(sB)}, {s(sW8)}, {64*3584}")
        A(f"s_lshl_b32 {s(sT0)}, {s(sCt4)}, 8")
        A(f"s_add_u32 {s(sB)}, {s(sB)}, {s(sT0)}")
        for q in range(8):
            A(f"s_add_u32 m0, {s(sT1)}, {W1 + p*65536 + q*1024}")
            A(f"s_add_u32 {s(sT0)}, {s(sB)}, {8*q*3584 + p*128}")
            A(f"buffer_load_dwordx4 {v(vW1off)}, {s(sRw1,4)}, {s(sT0)} offen lds")
    def dma_w2_lo8():
        A(f"s_lshr_b32 {s(sT1)}, {s(sW8)}, 2")
        A(f"s_mul_i32 {s(sB)}, {s(sT1)}, {448*1024}")
        A(f"s_lshl_b32 {s(sT0)}, {s(sCt)}, 7")
        A(f"s_add_u32 {s(sB)}, {s(sB)}, {s(sT0)}")
        A(f"s_lshl_b32 {s(sT0)}, {s(sW)}, 16")
        A(f"s_add_u32 {s(sB)}, {s(sB)}, {s(sT0)}")
        A(f"s_lshl_b32 {s(sT1)}, {s(sW8)}, 13")
        for q in range(8):
            A(f"s_add_u32 m0, {s(sT1)}, {W2 + q*1024}")
            A(f"s_add_u32 {s(sT0)}, {s(sB)}, {8*q*1024}")
            A(f"buffer_load_dwordx4 {v(vWoff)}, {s(sRw2,4)}, {s(sT0)} offen lds")
    def dma_w2_hi_upper():
        A(f"s_lshr_b32 {s(sT1)}, {s(sW)}, 1")
        A(f"s_add_u32 {s(sT1)}, {s(sT1)}, 2")
        A(f"s_mul_i32 {s(sB)}, {s(sT1)}, {448*1024}")
        A(f"s_lshl_b32 {s(sT0)}, {s(sCt)}, 7")
        A(f"s_add_u32 {s(sB)}, {s(sB)}, {s(sT0)}")
        A(f"s_and_b32 {s(sT0)}, {s(sW)}, 1")
        A(f"s_lshl_b32 {s(sT0)}, {s(sT0)}, 17")
        A(f"s_add_u32 {s(sB)}, {s(sB)}, {s(sT0)}")
        A(f"s_lshl_b32 {s(sT1)}, {s(sW)}, 14")
        for q in range(16):
            A(f"s_add_u32 m0, {s(sT1)}, {W2 + 65536 + q*1024}")
            A(f"s_add_u32 {s(sT0)}, {s(sB)}, {8*q*1024}")
            A(f"buffer_load_dwordx4 {v(vWoff)}, {s(sRw2,4)}, {s(sT0)} offen lds")
    sW2b, sW2l = S.alloc(), S.alloc()
    def w2_all16_setup():
        A(f"s_lshr_b32 {s(sT1)}, {s(sW8)}, 1")
        A(f"s_mul_i32 {s(sW2b)}, {s(sT1)}, {448*1024}")
        A(f"s_lshl_b32 {s(sT0)}, {s(sCt)}, 7")
        A(f"s_add_u32 {s(sW2b)}, {s(sW2b)}, {s(sT0)}")
        A(f"s_and_b32 {s(sT0)}, {s(sW8)}, 1")
        A(f"s_lshl_b32 {s(sT0)}, {s(sT0)}, 17")
        A(f"s_add_u32 {s(sW2b)}, {s(sW2b)}, {s(sT0)}")
        A(f"s_lshl_b32 {s(sW2l)}, {s(sW8)}, 14")
    def w2_piece(pc):
        A(f"s_add_u32 m0, {s(sW2l)}, {W2 + pc*1024}")
        A(f"s_add_u32 {s(sW2b)}, {s(sW2b)}, {8192 if pc else 0}")
        A(f"buffer_load_dwordx4 {v(vWoff)}, {s(sRw2,4)}, {s(sW2b)} offen lds")
    def if_upper(tag, body):
        A(f"s_cmp_lt_u32 {s(sW8)}, 4")
        A(f"s_cbranch_scc1 KM_NU_{tag}")
        body()
        A.label(f"KM_NU_{tag}")
    def dma_wo():
        mk = V.mark()
        vXoff = V.alloc()
        A(f"s_and_b32 {s(sT0)}, {s(sW)}, 1")
        A(f"s_lshl_b32 {s(sT0)}, {s(sT0)}, 2")
        A(f"v_lshrrev_b32 {v(vT0)}, 4, {v(vLane)}")
        A(f"v_or_b32 {v(vT0)}, {s(sT0)}, {v(vT0)}")
        A(f"v_and_b32 {v(vT1)}, 7, {v(vLane)}")
        A(f"v_xor_b32 {v(vT0)}, {v(vT0)}, {v(vT1)}")
        A(f"v_lshlrev_b32 {v(vT0)}, 4, {v(vT0)}")
        A(f"v_lshrrev_b32 {v(vT1)}, 3, {v(vLane)}")
        A(f"v_lshlrev_b32 {v(vT1)}, 10, {v(vT1)}")
        A(f"v_add_u32 {v(vXoff)}, {v(vT0)}, {v(vT1)}")
        srd(A, sRa, sPwo, 512 * 512 * 2)
        srd(A, sRb, sPx, 2048 * 512 * 2)
        A(f"s_lshl_b32 {s(sB)}, {s(sW)}, 17")
        A(f"s_lshl_b32 {s(sT0)}, {s(sCt)}, 7")
        A(f"s_add_u32 {s(sB)}, {s(sB)}, {s(sT0)}")
        A(f"s_lshl_b32 {s(sT1)}, {s(sW)}, 14")
        for g in range(16):
            A(f"s_add_u32 m0, {s(sT1)}, {WO + g*1024}")
            A(f"s_add_u32 {s(sT0)}, {s(sB)}, {g*8192}")
            A(f"buffer_load_dwordx4 {v(vWoff)}, {s(sRa,4)}, {s(sT0)} offen lds")
        A(f"s_lshl_b32 {s(sB)}, {s(sRt)}, 16")
        A(f"s_lshl_b32 {s(sT0)}, {s(sCt)}, 7")
        A(f"s_add_u32 {s(sB)}, {s(sB)}, {s(sT0)}")
        A(f"s_lshl_b32 {s(sT0)}, {s(sW)}, 13")
        A(f"s_add_u32 {s(sB)}, {s(sB)}, {s(sT0)}")
        A(f"s_lshl_b32 {s(sT1)}, {s(sW)}, 10")
        for n in range(2):
            A(f"s_add_u32 m0, {s(sT1)}, {XT + n*4096}")
            A(f"s_add_u32 {s(sT0)}, {s(sB)}, {n*32768}")
            A(f"buffer_load_dwordx4 {v(vXoff)}, {s(sRb,4)}, {s(sT0)} offen lds")
        A(f"s_mul_i32 {s(sB1)}, {s(sW)}, {32*3584}")
        A(f"s_lshl_b32 {s(sT0)}, {s(sCt4)}, 8")
        A(f"s_add_u32 {s(sB1)}, {s(sB1)}, {s(sT0)}")
        A(f"s_mul_i32 {s(sB2)}, {s(sW)}, {448*1024}")
        A(f"s_lshl_b32 {s(sT0)}, {s(sCt)}, 7")
        A(f"s_add_u32 {s(sB2)}, {s(sB2)}, {s(sT0)}")
        A("s_waitcnt vmcnt(0)")
        V.release(mk)
    w_voff(A, vWoff, vLane, 1024, vT0, vT1)
    w_voff(A, vW1off, vLane, 3584, vT0, vT1)
    srd(A, sRw1, sP1, 512 * 1792 * 2)
    srd(A, sRw2, sP2, 1792 * 512 * 2)
    if_upper("wo", dma_wo)
    def w0_sync2():
        cnt_off(sCn, 0, lambda d: A(f"s_mov_b32 {s(d)}, {s(sQbS)}"))
        def slot2():
            A(f"s_and_b32 {s(sT0)}, s2, 7")
            A(f"s_lshl_b32 {s(sT0)}, {s(sT0)}, 2")
            A(f"s_bfe_u32 {s(sT1)}, s2, 0x20003")
            A(f"s_add_u32 {s(sT0)}, {s(sT0)}, {s(sT1)}")
        signal(sCn, slot=slot2)
        cnt_off(sCn, 0, lambda d: A(f"s_mov_b32 {s(d)}, {s(sXcd)}"))
        poll(sCn, 32, "2")
    hpk4 = hpk
    mkC = V.mark()
    Af = [V.alloc(4) for _ in range(8)]
    acc = [V.alloc(16) for _ in range(2)]
    Bf = [[V.alloc(4) for _ in range(2)] for _ in range(2)]
    vB = V.alloc(); xr = V.alloc(4)
    sKq = S.alloc()
    A(f"s_lshr_b32 {s(sKq)}, {s(sW8)}, 1")
    A(f"s_lshl_b32 {s(sT0)}, {s(sKq)}, 14")
    A(f"v_add_u32 {v(vB)}, {s(sT0)}, {v(vBl)}")
    A(f"s_lshl_b32 {s(sB)}, {s(sRt)}, 16")
    A(f"s_lshl_b32 {s(sT0)}, {s(sTr)}, 15")
    A(f"s_add_u32 {s(sB)}, {s(sB)}, {s(sT0)}")
    A(f"s_lshl_b32 {s(sT0)}, {s(sKq)}, 13")
    A(f"s_add_u32 {s(sB)}, {s(sB)}, {s(sT0)}")
    A(f"s_add_u32 {s(sB)}, {s(sB)}, {WS_OF}")
    sB4 = S.alloc()
    A(f"s_add_u32 {s(sB4)}, {s(sB)}, 4096")
    only_wave0("2", w0_sync2)
    A("s_barrier")
    K.stamp()
    for i in range(8):
        A(f"buffer_load_dwordx4 {v(Af[i],4)}, {v(vL16)}, {s(sO,4)}, {s(sB if i < 4 else sB4)} offen offset:{(i&3)*1024} sc1")
    def rd3(i):
        for b in range(2):
            A(f"ds_read_b64_tr_b16 {v(Bf[i&1][b],2)}, {v(vB)} offset:{WO + i*2048 + b*512}")
            A(f"ds_read_b64_tr_b16 {v(Bf[i&1][b]+2,2)}, {v(vB)} offset:{WO + i*2048 + b*512 + 1024}")
    rd3(0)
    A(f"v_lshrrev_b32 {v(vT2)}, 1, {v(vTok)}")
    A(f"v_and_b32 {v(vT2)}, 7, {v(vT2)}")
    A(f"s_lshl_b32 {s(sT0)}, {s(sTr)}, 12")
    A(f"s_add_u32 {s(sT0)}, {s(sT0)}, {XT}")
    A(f"v_lshlrev_b32 {v(vT1)}, 7, {v(vTok)}")
    A(f"v_lshl_add_u32 {v(vT1)}, {v(vHf)}, 3, {v(vT1)}")
    A(f"v_add_u32 {v(vT1)}, {s(sT0)}, {v(vT1)}")
    A(f"s_lshl_b32 {s(sT1)}, {s(sTb)}, 2")
    A(f"s_lshl_b32 {s(sT0)}, {s(sTi)}, 1")
    A(f"s_add_u32 {s(sT1)}, {s(sT1)}, {s(sT0)}")
    for a_ in range(2):
        A(f"s_add_u32 {s(sT0)}, {s(sT1)}, {a_}")
        A(f"v_xor_b32 {v(vT0)}, {s(sT0)}, {v(vT2)}")
        A(f"v_lshl_add_u32 {v(vT0)}, {v(vT0)}, 4, {v(vT1)}")
        A(f"ds_read_b64 {v(xr+2*a_,2)}, {v(vT0)}")
    for i in range(8):
        if i + 1 < 8:
            rd3(i + 1)
            A(f"s_waitcnt lgkmcnt(4)")
        else:
            A(f"s_waitcnt lgkmcnt(0)")
        A(f"s_waitcnt vmcnt({7-i})")
        for b in range(2):
            A(f"v_mfma_f32_32x32x16_bf16 {v(acc[b],16)}, {v(Bf[i&1][b],4)}, {v(Af[i],4)}, {'0' if i == 0 else v(acc[b],16)}")
    A(f"s_lshl_b32 {s(sT0)}, {s(sTr)}, 14")
    A(f"s_lshl_b32 {s(sT1)}, {s(sKq)}, 12")
    A(f"s_add_u32 {s(sT0)}, {s(sT0)}, {s(sT1)}")
    A(f"s_add_u32 {s(sT0)}, {s(sT0)}, {RED}")
    A(f"v_add_u32 {v(vT0)}, {s(sT0)}, {v(vL16)}")
    for b in range(2):
        for q in range(4):
            A(f"ds_write_b128 {v(vT0)}, {v(acc[b]+4*q,4)} offset:{b*32768 + q*1024}")
    A("s_waitcnt lgkmcnt(0)")
    A("s_barrier")
    K.stamp()
    def own_reduce(REDB, dst):
        A(f"s_lshl_b32 {s(sT0)}, {s(sW)}, 14")
        A(f"s_lshl_b32 {s(sT1)}, {s(sTi)}, 11")
        A(f"s_add_u32 {s(sT0)}, {s(sT0)}, {s(sT1)}")
        A(f"s_add_u32 {s(sT0)}, {s(sT0)}, {REDB}")
        A(f"v_add_u32 {v(vT0)}, {s(sT0)}, {v(vL16)}")
        for p in range(4):
            for q in range(2):
                A(f"ds_read_b128 {v(dst+8*p+4*q,4)}, {v(vT0)} offset:{p*4096 + q*1024}")
        A("s_waitcnt lgkmcnt(4)")
        for r in range(8): A(f"v_add_f32 {v(dst+r)}, {v(dst+r)}, {v(dst+8+r)}")
        A("s_waitcnt lgkmcnt(0)")
        for r in range(8): A(f"v_add_f32 {v(dst+16+r)}, {v(dst+16+r)}, {v(dst+24+r)}")
        for r in range(8): A(f"v_add_f32 {v(dst+r)}, {v(dst+r)}, {v(dst+16+r)}")
    def w1p0():
        A(f"s_cmp_ge_u32 {s(sJ)}, 28")
        A(f"s_cbranch_scc1 KM_NW1A")
        dma_w1(0)
        A.label("KM_NW1A")
    out = Af[0]
    own_reduce(RED, out)
    un = acc[0]
    for i in range(4):
        A(f"v_lshlrev_b32 {v(un+2*i)}, 16, {v(xr+i)}")
        A(f"v_and_b32 {v(un+2*i+1)}, 0xffff0000, {v(xr+i)}")
    for r in range(8): A(f"v_add_f32 {v(out+r)}, {v(out+r)}, {v(un+r)}")
    for i in range(4): A(f"v_cvt_pk_bf16_f32 {v(hpk4+i)}, {v(out+2*i)}, {v(out+2*i+1)}")
    sR32o, sKs = S.alloc(), S.alloc()
    A(f"s_lshl_b32 {s(sR32o)}, {s(sRt)}, 1")
    A(f"s_add_u32 {s(sR32o)}, {s(sR32o)}, {s(sTr)}")
    A(f"s_lshl_b32 {s(sKs)}, {s(sCt)}, 2")
    A(f"s_lshl_b32 {s(sT0)}, {s(sTb)}, 1")
    A(f"s_add_u32 {s(sKs)}, {s(sKs)}, {s(sT0)}")
    A(f"s_add_u32 {s(sKs)}, {s(sKs)}, {s(sTi)}")
    A(f"s_lshl_b32 {s(sB)}, {s(sR32o)}, 15")
    A(f"s_lshl_b32 {s(sT0)}, {s(sKs)}, 10")
    A(f"s_add_u32 {s(sB)}, {s(sB)}, {s(sT0)}")
    A(f"s_add_u32 {s(sB)}, {s(sB)}, {WS_HF}")
    A(f"buffer_store_dwordx4 {v(hpk4,4)}, {v(vL16)}, {s(sO,4)}, {s(sB)} offen" + LSC)
    for i in range(4):
        A(f"v_lshlrev_b32 {v(un+2*i)}, 16, {v(hpk4+i)}")
        A(f"v_and_b32 {v(un+2*i+1)}, 0xffff0000, {v(hpk4+i)}")
    st = acc[1]
    A(f"v_add_f32 {v(st)}, {v(un)}, {v(un+1)}")
    A(f"v_mul_f32 {v(st+1)}, {v(un)}, {v(un)}")
    A(f"v_fmac_f32 {v(st+1)}, {v(un+1)}, {v(un+1)}")
    for r in range(2, 8):
        A(f"v_add_f32 {v(st)}, {v(st)}, {v(un+r)}")
        A(f"v_fmac_f32 {v(st+1)}, {v(un+r)}, {v(un+r)}")
    swap_add(A, st, vT1)
    swap_add(A, st + 1, vT2)
    A(f"s_lshl_b32 {s(sT0)}, {s(sW8)}, 8")
    A(f"s_add_u32 {s(sT0)}, {s(sT0)}, {STP}")
    A(f"v_lshl_add_u32 {v(vT0)}, {v(vTok)}, 3, {s(sT0)}")
    A(f"ds_write_b64 {v(vT0)}, {v(st,2)}")
    A("s_waitcnt lgkmcnt(0)")
    A("s_barrier")
    A(f"s_cmp_ge_u32 {s(sW8)}, 2")
    A(f"s_cbranch_scc1 KM_NHS")
    for p in range(4): A(f"ds_read_b64 {v(st+2*p,2)}, {v(vT0)} offset:{p*512}")
    A("s_waitcnt lgkmcnt(0)")
    for c in range(2):
        A(f"v_add_f32 {v(st+c)}, {v(st+c)}, {v(st+2+c)}")
        A(f"v_add_f32 {v(st+4+c)}, {v(st+4+c)}, {v(st+6+c)}")
    for c in range(2): A(f"v_add_f32 {v(st+c)}, {v(st+c)}, {v(st+4+c)}")
    A(f"s_lshl_b32 {s(sT0)}, {s(sR32o)}, 11")
    A(f"s_lshl_b32 {s(sT1)}, {s(sCt)}, 8")
    A(f"s_add_u32 {s(sT0)}, {s(sT0)}, {s(sT1)}")
    A(f"s_add_u32 {s(sT0)}, {s(sT0)}, {WS_HS}")
    A(f"v_lshlrev_b32 {v(vT0)}, 3, {v(vTok)}")
    A("s_mov_b32 exec_hi, 0")
    A(f"buffer_store_dwordx2 {v(st,2)}, {v(vT0)}, {s(sO,4)}, {s(sT0)} offen" + LSC)
    A("s_mov_b64 exec, -1")
    A.label("KM_NHS")
    A(f"s_cmp_ge_u32 {s(sJ)}, 28")
    A(f"s_cbranch_scc1 KM_NW1A")
    dma_w1_all8(0)
    A("s_waitcnt vmcnt(8) lgkmcnt(0)")
    A("s_branch KM_NW1B")
    A.label("KM_NW1A")
    if W2R:
        A("s_waitcnt vmcnt(0) lgkmcnt(0)")
    else:
        dma_w2_lo8()
        A("s_waitcnt vmcnt(8) lgkmcnt(0)")
    A.label("KM_NW1B")
    A("s_barrier")
    K.stamp()
    V.release(mkC)
    def sig3():
        def idx(d):
            A(f"s_lshl_b32 {s(d)}, {s(sXcd)}, 1")
            A(f"s_lshr_b32 {s(sT0)}, {s(sJ3)}, 1")
            A(f"s_add_u32 {s(d)}, {s(d)}, {s(sT0)}")
        cnt_off(sCn, 2048, idx)
        def slot3():
            A(f"s_and_b32 {s(sT0)}, {s(sJ3)}, 1")
            A(f"s_lshl_b32 {s(sT0)}, {s(sT0)}, 3")
            A(f"s_add_u32 {s(sT0)}, {s(sT0)}, {s(sJ2)}")
        signal(sCn, LOCAL, slot=slot3)
    only_wave0("3s", sig3)
    A(f"s_cmp_ge_u32 {s(sJ)}, 28")
    A(f"s_cbranch_scc1 KM_NOP4")
    if_upper("w1", lambda: dma_w1(1))
    A("s_waitcnt vmcnt(0)") if False else None
    def w0_sync3():
        cnt_off(sCn, 2048, lambda d: A(f"s_mov_b32 {s(d)}, {s(sR128)}"))
        poll(sCn, 16, "3")
    mk4 = V.mark()
    Af = [V.alloc(4) for _ in range(16)]
    acc = [V.alloc(16) for _ in range(4)]
    Bf = [[V.alloc(4) for _ in range(4)] for _ in range(2)]
    csa = [V.alloc(4)]; msk = V.alloc(4)
    vB = [V.alloc() for _ in range(4)]; vB2 = [V.alloc() for _ in range(4)]
    hs = V.alloc(8); vb1 = V.alloc()
    sR32 = S.alloc(); sQ = [S.alloc() for _ in range(4)]
    srd(A, sRa, sP1 + 2, 1792 * 2)
    A(f"s_lshl_b32 {s(sR32)}, {s(sR128)}, 2")
    A(f"s_add_u32 {s(sR32)}, {s(sR32)}, {s(sW)}")
    A(f"v_lshlrev_b32 {v(vT1)}, 2, {v(vLane)}")
    A(f"s_lshl_b32 {s(sT1)}, {s(sCt4)}, 8")
    A(f"buffer_load_dword {v(vb1)}, {v(vT1)}, {s(sRa,4)}, {s(sT1)} offen")
    for q in range(4):
        A(f"s_xor_b32 {s(sQ[q])}, {s(sW)}, {q}")
        A(f"s_lshl_b32 {s(sQ[q])}, {s(sQ[q])}, 10")
    A(f"s_lshl_b32 {s(sT1)}, {s(sTi)}, 15")
    for q in range(4):
        A(f"s_lshl_b32 {s(sT0)}, {s(sQ[q])}, 1")
        A(f"s_add_u32 {s(sT0)}, {s(sT0)}, {s(sT1)}")
        A(f"v_add_u32 {v(vB[q])}, {s(sT0)}, {v(vBl)}")
        A(f"v_add_u32 {v(vB2[q])}, 65536, {v(vB[q])}")
    A(f"s_cmp_lt_u32 {s(sW8)}, 2")
    A(f"s_cbranch_scc1 KM_NCS")
    A(f"s_cmp_ge_u32 {s(sW8)}, 4")
    A(f"s_cbranch_scc1 KM_NCS")
    A(f"s_and_b32 {s(sT0)}, {s(sW8)}, 1")
    A(f"s_lshl_b32 {s(sT0)}, {s(sT0)}, 8")
    A(f"v_lshlrev_b32 {v(vT1)}, 2, {v(vLane)}")
    A(f"v_add_u32 {v(vT1)}, {s(sT0)}, {v(vT1)}")
    A(f"s_lshl_b32 {s(sT0)}, {s(sCt4)}, 9")
    A(f"s_add_u32 {s(sT0)}, {s(sT0)}, {WS_CSG}")
    for kc in range(8):
        A(f"buffer_load_dword {v(hs+kc)}, {v(vT1)}, {s(sO,4)}, {s(sT0)} offen")
        if kc < 7: A(f"s_add_u32 {s(sT0)}, {s(sT0)}, 7168")
    A("s_waitcnt vmcnt(0)")
    for st_ in (4, 2, 1):
        for i in range(st_): A(f"v_add_f32 {v(hs+i)}, {v(hs+i)}, {v(hs+i+st_)}")
    A(f"v_add_u32 {v(vT1)}, {CS}, {v(vT1)}")
    A(f"ds_write_b32 {v(vT1)}, {v(hs)}")
    A.label("KM_NCS")
    A("s_waitcnt vmcnt(0)")
    A(f"v_lshlrev_b32 {v(hs+2)}, 16, {v(vb1)}")
    A(f"v_and_b32 {v(hs+3)}, 0xffff0000, {v(vb1)}")
    A(f"v_lshlrev_b32 {v(vT0)}, 3, {v(vLane)}")
    A(f"v_add_u32 {v(vT0)}, {BI}, {v(vT0)}")
    A(f"ds_write_b64 {v(vT0)}, {v(hs+2,2)}")
    A(f"s_lshl_b32 {s(sB)}, {s(sR32)}, 15")
    A(f"s_lshl_b32 {s(sT0)}, {s(sTi)}, 14")
    A(f"s_add_u32 {s(sB)}, {s(sB)}, {s(sT0)}")
    A(f"s_add_u32 {s(sB)}, {s(sB)}, {WS_HF}")
    sHs = S.alloc()
    A(f"s_lshl_b32 {s(sHs)}, {s(sR32)}, 11")
    A(f"s_add_u32 {s(sHs)}, {s(sHs)}, {WS_HS}")
    A(f"v_lshlrev_b32 {v(vT2)}, 3, {v(vTok)}")
    A(f"v_lshl_add_u32 {v(vT2)}, {v(vHf)}, 10, {v(vT2)}")
    for q in range(4): A(f"s_add_u32 {s(sQ[q])}, {s(sQ[q])}, {s(sB)}")
    A("s_waitcnt vmcnt(0) lgkmcnt(0)")
    only_wave0("3", w0_sync3)
    K.stamp(1)
    A("s_barrier")
    K.stamp()
    def lda4(g):
        for q in range(4):
            if g: A(f"s_add_u32 {s(sQ[q])}, {s(sQ[q])}, 4096")
            A(f"buffer_load_dwordx4 {v(Af[4*g+q],4)}, {v(vL16)}, {s(sO,4)}, {s(sQ[q])} offen" + LLD)
    lda4(0)
    for i in range(4):
        A(f"buffer_load_dwordx2 {v(hs+2*i,2)}, {v(vT2)}, {s(sO,4)}, {s(sHs)} offen offset:{i*256}" + LLD)
    lda4(1)
    def rd4(n):
        for t in range(4):
            p, b = t >> 1, t & 1
            o = (n >> 2) * 8192 + b * 512
            base = (vB if p == 0 else vB2)[n & 3]
            A(f"ds_read_b64_tr_b16 {v(Bf[n&1][t],2)}, {v(base)} offset:{o}")
            A(f"ds_read_b64_tr_b16 {v(Bf[n&1][t]+2,2)}, {v(base)} offset:{o+1024}")
    rd4(0)
    A(f"v_lshlrev_b32 {v(acc[0])}, 16, {v(vb1)}") if False else None
    for n in range(16):
        if n + 1 < 16:
            rd4(n + 1)
            A("s_waitcnt lgkmcnt(8)")
        else:
            A("s_waitcnt lgkmcnt(0)")
        if n % 4 == 0: A(f"s_waitcnt vmcnt({ {0: 8, 4: 8, 8: 4, 12: 0}[n] })")
        for t in range(4):
            A(f"v_mfma_f32_32x32x16_bf16 {v(acc[t],16)}, {v(Bf[n&1][t],4)}, {v(Af[n],4)}, {'0' if n == 0 else v(acc[t],16)}")
        if n in (0, 1): lda4(n + 2)
    K.stamp()
    for st_ in (2, 1):
        for i in range(st_):
            A(f"v_add_f32 {v(hs+2*i)}, {v(hs+2*i)}, {v(hs+2*(i+st_))}")
            A(f"v_add_f32 {v(hs+2*i+1)}, {v(hs+2*i+1)}, {v(hs+2*(i+st_)+1)}")
    swap_add(A, hs, vT1)
    swap_add(A, hs + 1, vT2)
    A("s_waitcnt lgkmcnt(0)")
    A("s_barrier")
    A(f"s_lshl_b32 {s(sT0)}, {s(sW8)}, 13")
    A(f"s_add_u32 {s(sT0)}, {s(sT0)}, 65536")
    A(f"v_add_u32 {v(vT0)}, {s(sT0)}, {v(vL16)}")
    A(f"s_cmp_eq_u32 {s(sTi)}, 0")
    A(f"s_cbranch_scc1 KM_E1")
    for t in range(2):
        for q in range(4): A(f"ds_write_b128 {v(vT0)}, {v(acc[t]+4*q,4)} offset:{t*4096 + q*1024}")
    for r in range(32): A(f"v_mov_b32 {v(acc[0]+r)}, {v(acc[2]+r)}")
    A("s_branch KM_E2")
    A.label("KM_E1")
    for t in range(2):
        for q in range(4): A(f"ds_write_b128 {v(vT0)}, {v(acc[2+t]+4*q,4)} offset:{t*4096 + q*1024}")
    A.label("KM_E2")
    A("s_waitcnt lgkmcnt(0)")
    A("s_barrier")
    K.stamp()
    A(f"s_xor_b32 {s(sT0)}, {s(sW8)}, 4")
    A(f"s_lshl_b32 {s(sT0)}, {s(sT0)}, 13")
    A(f"s_add_u32 {s(sT0)}, {s(sT0)}, 65536")
    A(f"v_add_u32 {v(vT0)}, {s(sT0)}, {v(vL16)}")
    for t in range(2):
        for q in range(4): A(f"ds_read_b128 {v(acc[2+t]+4*q,4)}, {v(vT0)} offset:{t*4096 + q*1024}")
    def R(i): return Af[0] + 16 * i
    A(f"s_lshl_b32 {s(sT0)}, {s(sTi)}, 8")
    A(f"s_add_u32 {s(sT0)}, {s(sT0)}, {CS}")
    A(f"v_lshl_add_u32 {v(vT2)}, {v(vHf)}, 4, {s(sT0)}")
    for t in range(2):
        for a_ in range(4): A(f"ds_read_b128 {v(R(t)+4*a_,4)}, {v(vT2)} offset:{t*128 + a_*32}")
    A("s_waitcnt lgkmcnt(8)")
    vMean, vRs, vMr = csa[0], csa[0] + 1, csa[0] + 2
    vC1, vC2 = msk, msk + 1
    c1 = -2.0 * 0.7978845608028654 * LOG2E
    c2 = c1 * 0.044715
    A(f"v_mul_f32 {v(vMean)}, {f2u(1/512.):#x}, {v(hs)}")
    A(f"v_mul_f32 {v(vT1)}, {v(vMean)}, {v(vMean)}")
    A(f"v_mov_b32 {v(vT0)}, {f2u(1/512.):#x}")
    A(f"v_fma_f32 {v(vT1)}, {v(hs+1)}, {v(vT0)}, -{v(vT1)}")
    A(f"v_max_f32 {v(vT1)}, 0, {v(vT1)}")
    A(f"v_add_f32 {v(hs+2)}, {f2u(1e-5):#x}, {v(vT1)}")
    A(f"v_rcp_f32 {v(vT0)}, {v(hs+2)}")
    A(f"v_rsq_f32 {v(vRs)}, {v(hs+2)}")
    A(f"v_mul_f32 {v(vT1)}, {v(vT1)}, {v(vT0)}")
    A(f"v_add_f32 {v(vT1)}, {f2u(1e-5):#x}, {v(vT1)}")
    A(f"v_rsq_f32 {v(vT1)}, {v(vT1)}")
    A(f"v_mov_b32 {v(vC1)}, {f2u(c1):#x}")
    A(f"v_mov_b32 {v(vC2)}, {f2u(c2):#x}")
    A(f"v_mul_f32 {v(vRs)}, {v(vRs)}, {v(vT1)}")
    A(f"v_mul_f32 {v(vMr)}, {v(vMean)}, {v(vRs)}")
    for t in range(2):
        for a_ in range(4): A(f"ds_read_b128 {v(R(2+t)+4*a_,4)}, {v(vT2)} offset:{512 + t*128 + a_*32}")
    if W2R:
        A("s_waitcnt lgkmcnt(8)")
        A("s_barrier")
        w2_all16_setup()
    for r in range(32): A(f"v_add_f32 {v(acc[0]+r)}, {v(acc[0]+r)}, {v(acc[2]+r)}")
    A(f"s_mul_i32 {s(sB)}, {s(sR32)}, {112*1024}")
    A(f"s_lshl_b32 {s(sT0)}, {s(sCt4)}, 13")
    A(f"s_add_u32 {s(sB)}, {s(sB)}, {s(sT0)}")
    A(f"s_lshl_b32 {s(sT0)}, {s(sTi)}, 12")
    A(f"s_add_u32 {s(sB)}, {s(sB)}, {s(sT0)}")
    A(f"s_add_u32 {s(sB)}, {s(sB)}, {WS_MF}")
    A("s_waitcnt lgkmcnt(0)")
    pcs = list(range(16)) if W2R else []
    def dm():
        for _ in range(2):
            if pcs: w2_piece(pcs.pop(0))
    for t in range(2):
        x = acc[t]; T = R(2 + t); Z = acc[2 + t]
        for r in range(16): A(f"v_fma_f32 {v(T+r)}, -{v(vMr)}, {v(R(t)+r)}, {v(T+r)}")
        dm()
        for r in range(16): A(f"v_fma_f32 {v(x+r)}, {v(x+r)}, {v(vRs)}, {v(T+r)}")
        dm()
        for r in range(16): A(f"v_mul_f32 {v(Z+r)}, {v(x+r)}, {v(x+r)}")
        dm()
        for r in range(16): A(f"v_fma_f32 {v(Z+r)}, {v(Z+r)}, {v(vC2)}, {v(vC1)}")
        dm()
        for r in range(16): A(f"v_mul_f32 {v(Z+r)}, {v(Z+r)}, {v(x+r)}")
        dm()
        for r in range(16): A(f"v_exp_f32 {v(Z+r)}, {v(Z+r)}")
        dm()
        for r in range(16): A(f"v_add_f32 {v(Z+r)}, 1.0, {v(Z+r)}")
        dm()
        for r in range(16): A(f"v_rcp_f32 {v(Z+r)}, {v(Z+r)}")
        dm()
        for r in range(16): A(f"v_mul_f32 {v(x+r)}, {v(x+r)}, {v(Z+r)}")
        pk = R(t)
        for i in range(8): A(f"v_cvt_pk_bf16_f32 {v(pk+i)}, {v(x+2*i)}, {v(x+2*i+1)}")
        A(f"buffer_store_dwordx4 {v(pk,4)}, {v(vL16)}, {s(sO,4)}, {s(sB)} offen offset:{t*2048}" + LSC)
        A(f"buffer_store_dwordx4 {v(pk+4,4)}, {v(vL16)}, {s(sO,4)}, {s(sB)} offen offset:{t*2048+1024}" + LSC)
    assert not pcs
    if W2R:
        A("s_waitcnt vmcnt(0)")
    else:
        dma_w2_lo8()
        A("s_waitcnt vmcnt(8)")
    A("s_barrier")
    K.stamp()
    def sig4():
        cnt_off(sCn, 6144, lambda d: A(f"s_mov_b32 {s(d)}, {s(sR128)}"))
        signal(sCn, LOCAL, slot=lambda: A(f"s_mov_b32 {s(sT0)}, {s(sCt4)}"))
    only_wave0("4s", sig4)
    V.release(mk4)
    if W2R:
        A("s_branch KM_P5")
        A.label("KM_NOP4")
        w2_all16_setup()
        for pc in range(16): w2_piece(pc)
        A.label("KM_P5")
    else:
        A.label("KM_NOP4")
    mkPR = V.mark()
    PR = V.alloc(96)
    V.release(mkPR)
    def w2_regs():
        for pc in range(24):
            A(f"s_add_u32 {s(sT0)}, {s(sB2)}, {(256 + 8*pc)*1024}")
            A(f"buffer_load_dwordx4 {v(PR+4*pc,4)}, {v(vWoff)}, {s(sRw2,4)}, {s(sT0)} offen")
    if_upper("w2", w2_regs if W2R else dma_w2_hi_upper)
    def w0_sync4():
        def idx(d):
            A(f"s_lshl_b32 {s(d)}, {s(sXcd)}, 1")
            A(f"s_lshr_b32 {s(sT0)}, {s(sJ3)}, 1")
            A(f"s_add_u32 {s(d)}, {s(d)}, {s(sT0)}")
        cnt_off(sCn, 6144, idx)
        poll(sCn, 14, "4")
    NW = 12
    Af = [[V.alloc(4) for _ in range(2)] for _ in range(NW)]
    acc = [V.alloc(16) for _ in range(4)]
    Bf = [[V.alloc(4) for _ in range(2)] for _ in range(2)]
    vB = V.alloc(); b2r = V.alloc(4)
    sA0, sA1 = S.alloc(), S.alloc()
    srd(A, sRa, sP2 + 2, 512 * 2)
    srd(A, sRb, sPo, 2048 * 512 * 2)
    A(f"s_lshl_b32 {s(sT0)}, {s(sCt)}, 7")
    A(f"s_lshl_b32 {s(sT1)}, {s(sTb)}, 6")
    A(f"s_add_u32 {s(sT0)}, {s(sT0)}, {s(sT1)}")
    A(f"s_lshl_b32 {s(sT1)}, {s(sTi)}, 5")
    A(f"s_add_u32 {s(sT0)}, {s(sT0)}, {s(sT1)}")
    A(f"v_lshlrev_b32 {v(vT0)}, 3, {v(vHf)}")
    for a_ in range(2):
        A(f"buffer_load_dwordx2 {v(b2r+2*a_,2)}, {v(vT0)}, {s(sRa,4)}, {s(sT0)} offen offset:{a_*16}")
    A(f"s_cmp_lt_u32 {s(sW8)}, 4")
    A(f"s_cbranch_scc1 KM_C5")
    A("s_waitcnt vmcnt(0)")
    A("s_barrier")
    if W2R:
        A(f"s_lshl_b32 {s(sT0)}, {s(sW)}, 15")
        A(f"v_add_u32 {v(vT0)}, {s(sT0)}, {v(vL16)}")
    for y in range(1, 7):
        if y >= 4: A(f"s_waitcnt lgkmcnt(0)" if W2R else f"s_waitcnt vmcnt({8*(6-y)})")
        A("s_barrier")
        if y + 3 < 7:
            if W2R:
                c = y + 3
                for q in range(8):
                    A(f"ds_write_b128 {v(vT0)}, {v(PR+4*(8*(c-4)+q),4)} offset:{W2 + (c&3)*8192 + q*1024}")
            else:
                dma_w2(y + 3)
    A("s_barrier")
    A("s_branch KM_Z")
    A.label("KM_C5")
    A(f"s_mul_i32 {s(sA0)}, {s(sRt)}, {2*112*1024}")
    A(f"s_mul_i32 {s(sT0)}, {s(sW)}, {28*1024}")
    A(f"s_add_u32 {s(sA0)}, {s(sA0)}, {s(sT0)}")
    A(f"s_add_u32 {s(sA0)}, {s(sA0)}, {WS_MF}")
    A(f"s_add_u32 {s(sA1)}, {s(sA0)}, {112*1024}")
    A(f"s_lshl_b32 {s(sT0)}, {s(sW)}, 15")
    A(f"v_add_u32 {v(vB)}, {s(sT0)}, {v(vBl)}")
    def lda(n):
        for r, sa in ((0, sA0), (1, sA1)):
            if n % 4 == 0 and n: A(f"s_add_u32 {s(sa)}, {s(sa)}, 4096")
            A(f"buffer_load_dwordx4 {v(Af[n % NW][r],4)}, {v(vL16)}, {s(sO,4)}, {s(sa)} offen offset:{(n&3)*1024}" + LLD)
    def rd5(n):
        c, i = n >> 2, n & 3
        for b in range(2):
            o = W2 + (c & 3) * 8192 + i * 2048 + b * 512
            A(f"ds_read_b64_tr_b16 {v(Bf[n&1][b],2)}, {v(vB)} offset:{o}")
            A(f"ds_read_b64_tr_b16 {v(Bf[n&1][b]+2,2)}, {v(vB)} offset:{o+1024}")
    A("s_waitcnt vmcnt(0)")
    only_wave0("4", w0_sync4)
    K.stamp(2)
    A("s_barrier")
    K.stamp()
    issued = 3
    for n in range(issued): lda(n)
    rd5(0)
    for n in range(28):
        if n + 1 < 28:
            if (n + 1) % 4 == 0:
                A("s_waitcnt lgkmcnt(0)")
                A("s_barrier")
            rd5(n + 1)
            A("s_waitcnt lgkmcnt(4)")
        else:
            A("s_waitcnt lgkmcnt(0)")
        A(f"s_waitcnt vmcnt({2*(issued - 1 - n)})")
        for b in range(2):
            for r in range(2):
                t = 2 * b + r
                A(f"v_mfma_f32_32x32x16_bf16 {v(acc[t],16)}, {v(Bf[n&1][b],4)}, {v(Af[n%NW][r],4)}, {'0' if n == 0 else v(acc[t],16)}")
        tgt = min(28, n + 1 + WIN5, issued + 2)
        while issued < tgt:
            lda(issued); issued += 1
    K.stamp()
    A("s_barrier")
    A(f"s_lshl_b32 {s(sT0)}, {s(sW)}, 12")
    A(f"s_add_u32 {s(sT0)}, {s(sT0)}, {RED5}")
    A(f"v_add_u32 {v(vT0)}, {s(sT0)}, {v(vL16)}")
    for t in range(4):
        for q in range(4):
            A(f"ds_write_b128 {v(vT0)}, {v(acc[t]+4*q,4)} offset:{t*16384 + q*1024}")
    A("s_waitcnt lgkmcnt(0)")
    A.label("KM_Z")
    A("s_barrier")
    out = Af[0][0]
    own_reduce(RED5, out)
    un = acc[0]
    for i in range(4):
        A(f"v_lshlrev_b32 {v(un+2*i)}, 16, {v(hpk4+i)}")
        A(f"v_and_b32 {v(un+2*i+1)}, 0xffff0000, {v(hpk4+i)}")
    for r in range(8): A(f"v_add_f32 {v(out+r)}, {v(out+r)}, {v(un+r)}")
    A("s_waitcnt vmcnt(0)")
    for i in range(4):
        A(f"v_lshlrev_b32 {v(un+2*i)}, 16, {v(b2r+i)}")
        A(f"v_and_b32 {v(un+2*i+1)}, 0xffff0000, {v(b2r+i)}")
    for r in range(8): A(f"v_add_f32 {v(out+r)}, {v(out+r)}, {v(un+r)}")
    pk = acc[1]
    for i in range(4): A(f"v_cvt_pk_bf16_f32 {v(pk+i)}, {v(out+2*i)}, {v(out+2*i+1)}")
    A(f"v_permlane32_swap_b32 {v(pk)}, {v(pk+2)}")
    A(f"v_permlane32_swap_b32 {v(pk+1)}, {v(pk+3)}")
    A(f"s_lshl_b32 {s(sT0)}, {s(sRt)}, 16")
    A(f"s_lshl_b32 {s(sT1)}, {s(sTr)}, 15")
    A(f"s_add_u32 {s(sT0)}, {s(sT0)}, {s(sT1)}")
    A(f"s_lshl_b32 {s(sT1)}, {s(sCt)}, 7")
    A(f"s_add_u32 {s(sT0)}, {s(sT0)}, {s(sT1)}")
    A(f"s_lshl_b32 {s(sT1)}, {s(sTb)}, 6")
    A(f"s_add_u32 {s(sT0)}, {s(sT0)}, {s(sT1)}")
    A(f"s_lshl_b32 {s(sT1)}, {s(sTi)}, 5")
    A(f"s_add_u32 {s(sT0)}, {s(sT0)}, {s(sT1)}")
    A(f"v_lshlrev_b32 {v(vT0)}, 10, {v(vTok)}")
    A(f"v_lshl_add_u32 {v(vT0)}, {v(vHf)}, 4, {v(vT0)}")
    A(f"buffer_store_dwordx4 {v(pk,4)}, {v(vT0)}, {s(sRb,4)}, {s(sT0)} offen")
    K.stamp_out(sO, 1, vT0, vT1)
    K.rt_end(sO, 1, vT0, vT1)
    A.label(END)
    A("s_endpgm")
    print("km vgprs", V.hi, "sgprs", S.hi, "lds", K.lds)
    return K

def k1b():
    K = Kern("k1_qkv_kernel", (256, 1, 1), (512, 1, 1), 134656)
    A, V, S = K.A, K.V, K.S
    END = "K1_END"
    sWs = S.alloc(2); sPx = S.alloc(2); sPq = S.alloc(2); sP1 = S.alloc(4)
    A(f"s_load_dwordx4 {s(sPx if sPx % 4 == 0 else sPx,2)}, s[0:1], 0") if False else None
    A(f"s_load_dwordx2 {s(sPx,2)}, s[0:1], 0")
    A(f"s_load_dwordx2 {s(sPq,2)}, s[0:1], 8")
    A(f"s_load_dwordx2 {s(sWs,2)}, s[0:1], 80")
    A(f"s_load_dwordx4 {s(sP1,4)}, s[0:1], 32")
    A(f"s_cmp_ge_u32 s2, 256")
    A(f"s_cbranch_scc1 {END}")
    K.rt_begin()
    K.stamp()
    sO = S.alloc(4); sRa = S.alloc(4); sRb = S.alloc(4)
    sW8, sW, sXcd, sJ, sT0, sT1, sB, sJ3, sJ2, sCn = [S.alloc() for _ in range(10)]
    sSave = S.alloc(2)
    vLane, vT0, vT1, vT2, vHf, vTok, vL16 = [V.alloc() for _ in range(7)]
    wave_ids(K, sW8, sW, vLane, vT0)
    A(f"s_and_b32 {s(sXcd)}, s2, 7")
    A(f"s_lshr_b32 {s(sJ)}, s2, 3")
    A(f"v_lshlrev_b32 {v(vL16)}, 4, {v(vLane)}")
    A(f"v_lshrrev_b32 {v(vHf)}, 5, {v(vLane)}")
    A(f"v_and_b32 {v(vTok)}, 31, {v(vLane)}")
    K1SC = ' sc1' if 'k1sc1' in G.FLAGS else ''
    XR = 0; WR = 32768; CS1 = WR + 4 * 24576; ST1 = CS1 + 1536
    mkV1 = V.mark(); mkS1 = S.mark()
    sRt1, sHq, sRot, sXb, sWb, sLx, sLw, sx, sw, sTt, sCh = [S.alloc() for _ in range(11)]
    A(f"s_and_b32 {s(sT0)}, {s(sXcd)}, 3")
    A(f"s_lshl_b32 {s(sT0)}, {s(sT0)}, 3")
    A(f"s_and_b32 {s(sT1)}, {s(sJ)}, 7")
    A(f"s_add_u32 {s(sRt1)}, {s(sT0)}, {s(sT1)}")
    A(f"s_lshr_b32 {s(sT0)}, {s(sXcd)}, 2")
    A(f"s_lshl_b32 {s(sT0)}, {s(sT0)}, 2")
    A(f"s_lshr_b32 {s(sHq)}, {s(sJ)}, 3")
    A(f"s_lshl_b32 {s(sRot)}, {s(sHq)}, 1")
    A(f"s_add_u32 {s(sRot)}, {s(sRot)}, {s(sT1)}")
    A(f"s_add_u32 {s(sRot)}, {s(sRot)}, {s(sXcd)}")
    A(f"s_add_u32 {s(sHq)}, {s(sHq)}, {s(sT0)}")
    A(f"s_and_b32 {s(sTt)}, {s(sW)}, 1")
    A(f"s_lshr_b32 {s(sCh)}, {s(sW)}, 1")
    A(f"s_cmp_lt_u32 {s(sW8)}, 4")
    A(f"s_cbranch_scc1 K1B_P1C")
    mkL1 = V.mark()
    vWoff1, vXoff1 = V.alloc(), V.alloc()
    R0 = V.alloc(32); AC = V.alloc(8); UN = V.alloc(8); vo = V.alloc()
    sKc, sCt28, sFl = S.alloc(), S.alloc(), S.alloc()
    sPFt = S.alloc(4)
    A(f"s_mul_i32 {s(sWb)}, {s(sW)}, {8*3072}")
    A(f"s_lshl_b32 {s(sT0)}, {s(sHq)}, 7")
    A(f"s_add_u32 {s(sWb)}, {s(sWb)}, {s(sT0)}")
    A(f"s_lshl_b32 {s(sLx)}, {s(sW)}, 10")
    A(f"s_add_u32 {s(sLw)}, {s(sLx)}, {WR}")
    w_voff(A, vWoff1, vLane, 3072, vT0, vT1)
    A(f"s_lshl_b32 {s(sXb)}, {s(sRt1)}, 16")
    A(f"s_lshl_b32 {s(sT0)}, {s(sW)}, 13")
    A(f"s_add_u32 {s(sXb)}, {s(sXb)}, {s(sT0)}")
    A(f"s_lshl_b32 {s(sT0)}, {s(sTt)}, 2")
    A(f"v_lshrrev_b32 {v(vT0)}, 4, {v(vLane)}")
    A(f"v_or_b32 {v(vT0)}, {s(sT0)}, {v(vT0)}")
    A(f"v_and_b32 {v(vT1)}, 7, {v(vLane)}")
    A(f"v_xor_b32 {v(vT0)}, {v(vT0)}, {v(vT1)}")
    A(f"v_lshlrev_b32 {v(vT0)}, 4, {v(vT0)}")
    A(f"v_lshrrev_b32 {v(vT1)}, 3, {v(vLane)}")
    A(f"v_lshlrev_b32 {v(vT1)}, 10, {v(vT1)}")
    A(f"v_add_u32 {v(vXoff1)}, {v(vT0)}, {v(vT1)}")
    A("s_waitcnt lgkmcnt(0)")
    srd(A, sRa, sPq, 512 * 1536 * 2)
    srd(A, sRb, sPx, 2048 * 512 * 2)
    srd(A, sO, sWs, WS_SIZE)
    def dma_stage1(st):
        slot = st & 3
        A(f"s_add_u32 {s(sT0)}, {s(sRot)}, {st}")
        A(f"s_and_b32 {s(sT0)}, {s(sT0)}, 7")
        A(f"s_lshl_b32 {s(sx)}, {s(sT0)}, 7")
        A(f"s_add_u32 {s(sx)}, {s(sx)}, {s(sXb)}")
        A(f"s_mul_i32 {s(sw)}, {s(sT0)}, {64*3072}")
        A(f"s_add_u32 {s(sw)}, {s(sw)}, {s(sWb)}")
        for n in range(2):
            A(f"s_add_u32 m0, {s(sLx)}, {XR + slot*8192 + n*4096}")
            A(f"s_add_u32 {s(sT1)}, {s(sx)}, {n*32768}")
            A(f"buffer_load_dwordx4 {v(vXoff1)}, {s(sRb,4)}, {s(sT1)} offen lds")
        for b in range(3):
            for n in range(2):
                A(f"s_add_u32 m0, {s(sLw)}, {slot*24576 + b*8192 + n*4096}")
                A(f"s_add_u32 {s(sT1)}, {s(sw)}, {b*1024 + n*32*3072}")
                A(f"buffer_load_dwordx4 {v(vWoff1)}, {s(sRa,4)}, {s(sT1)} offen lds")
    A(f"s_cmp_lg_u32 {s(sW8)}, 5")
    A(f"s_cbranch_scc1 K1B_NOZ")
    A(f"s_cmp_ge_u32 s2, 57")
    A(f"s_cbranch_scc1 K1B_NOZ")
    A(f"s_lshl_b32 {s(sT0)}, s2, 8")
    A(f"s_add_u32 {s(sT0)}, {s(sT0)}, {WS_CNT}")
    A(f"v_mov_b32 {v(vT0)}, 0")
    A(f"v_mov_b32 {v(vT1)}, 0")
    A(f"s_mov_b64 exec, 1")
    A(f"buffer_store_dword {v(vT1)}, {v(vT0)}, {s(sO,4)}, {s(sT0)} offen")
    A(f"s_mov_b64 exec, -1")
    A.label("K1B_NOZ")
    dma_stage1(0); dma_stage1(1)
    A("s_waitcnt vmcnt(8)")
    A("s_barrier")
    dma_stage1(2); dma_stage1(3)
    for sp in range(1, 8):
        vm = {1: 16, 2: 16, 3: 16, 4: 16, 5: 16, 6: 8, 7: 0}[sp]
        A(f"s_waitcnt vmcnt({vm})")
        A("s_barrier")
        if sp + 3 < 8: dma_stage1(sp + 3)
    A(f"s_mov_b32 {s(sFl)}, 0")
    A(f"s_cmp_lg_u32 {s(sW8)}, 4")
    A(f"s_cbranch_scc1 K1B_NOCS0")
    A(f"s_cmp_ge_u32 s2, 224")
    A(f"s_cbranch_scc1 K1B_NOCS0")
    A(f"s_mov_b32 {s(sFl)}, 1")
    A(f"s_mul_i32 {s(sKc)}, s2, 2341")
    A(f"s_lshr_b32 {s(sKc)}, {s(sKc)}, 16")
    A(f"s_mul_i32 {s(sCt28)}, {s(sKc)}, 28")
    A(f"s_sub_u32 {s(sCt28)}, s2, {s(sCt28)}")
    A(f"v_lshrrev_b32 {v(vo)}, 3, {v(vLane)}")
    A(f"v_mul_u32_u24 {v(vo)}, 3584, {v(vo)}")
    A(f"v_and_b32 {v(vT0)}, 7, {v(vLane)}")
    A(f"v_lshl_add_u32 {v(vo)}, {v(vT0)}, 4, {v(vo)}")
    A(f"s_mul_i32 {s(sT0)}, {s(sKc)}, {64*3584}")
    A(f"s_lshl_b32 {s(sT1)}, {s(sCt28)}, 7")
    A(f"s_add_u32 {s(sT0)}, {s(sT0)}, {s(sT1)}")
    A(f"s_mov_b32 {s(sPFt)}, {s(sP1)}")
    A(f"s_and_b32 {s(sPFt+1)}, {s(sP1+1)}, 0xffff")
    A(f"s_mov_b32 {s(sPFt+2)}, {512*1792*2}")
    A(f"s_mov_b32 {s(sPFt+3)}, 0x20000")
    for n in range(8):
        A(f"buffer_load_dwordx4 {v(R0+4*n,4)}, {v(vo)}, {s(sPFt,4)}, {s(sT0)} offen")
        A(f"s_add_u32 {s(sT0)}, {s(sT0)}, {8*3584}")
    A.label("K1B_NOCS0")
    A("s_barrier")
    A(f"s_cmp_lg_u32 {s(sW8)}, 4")
    A(f"s_cbranch_scc1 K1B_NOCS1")
    A(f"s_cmp_eq_u32 {s(sFl)}, 0")
    A(f"s_cbranch_scc1 K1B_NOCS1")
    A("s_waitcnt vmcnt(0)")
    for i in range(8): A(f"v_mov_b32 {v(AC+i)}, 0")
    for n in range(8):
        for i in range(4):
            A(f"v_lshlrev_b32 {v(UN+2*i)}, 16, {v(R0+4*n+i)}")
            A(f"v_and_b32 {v(UN+2*i+1)}, 0xffff0000, {v(R0+4*n+i)}")
        for i in range(8): A(f"v_add_f32 {v(AC+i)}, {v(AC+i)}, {v(UN+i)}")
    for i in range(8): A(f"v_add_f32_dpp {v(AC+i)}, {v(AC+i)}, {v(AC+i)} row_ror:8 row_mask:0xf bank_mask:0xf")
    for sw_ in ("v_permlane16_swap_b32", "v_permlane32_swap_b32"):
        for i in range(8): A(f"v_mov_b32 {v(UN+i)}, {v(AC+i)}")
        for i in range(8): A(f"{sw_} {v(AC+i)}, {v(UN+i)}")
        for i in range(8): A(f"v_add_f32 {v(AC+i)}, {v(AC+i)}, {v(UN+i)}")
    A(f"s_mul_i32 {s(sT0)}, {s(sKc)}, 7168")
    A(f"s_lshl_b32 {s(sT1)}, {s(sCt28)}, 8")
    A(f"s_add_u32 {s(sT0)}, {s(sT0)}, {s(sT1)}")
    A(f"s_add_u32 {s(sT0)}, {s(sT0)}, {WS_CSG}")
    A(f"v_and_b32 {v(vT0)}, 7, {v(vLane)}")
    A(f"v_lshlrev_b32 {v(vT0)}, 5, {v(vT0)}")
    A(f"s_mov_b64 exec, 0xff")
    A(f"buffer_store_dwordx4 {v(AC,4)}, {v(vT0)}, {s(sO,4)}, {s(sT0)} offen")
    A(f"buffer_store_dwordx4 {v(AC+4,4)}, {v(vT0)}, {s(sO,4)}, {s(sT0)} offen offset:16")
    A(f"s_mov_b64 exec, -1")
    A.label("K1B_NOCS1")
    A("s_endpgm")
    V.release(mkL1)
    A.label("K1B_P1C")
    vXA = [V.alloc() for _ in range(4)]; vWA = [V.alloc() for _ in range(8)]
    acc = [V.alloc(16) for _ in range(3)]
    sq = V.alloc(8); sm = V.alloc(8)
    mk = V.mark()
    csa = [V.alloc(4) for _ in range(3)]; msk = V.alloc(4)
    Xf = [V.alloc(4) for _ in range(2)]
    Wf = [[V.alloc(4) for _ in range(3)] for _ in range(2)]
    un = V.alloc(8); vMask = V.alloc()
    A(f"v_lshrrev_b32 {v(vT2)}, 1, {v(vTok)}")
    A(f"v_and_b32 {v(vT2)}, 7, {v(vT2)}")
    A(f"s_lshl_b32 {s(sT1)}, {s(sTt)}, 12")
    for pos in range(4):
        A(f"s_xor_b32 {s(sT0)}, {s(sW)}, {pos}")
        A(f"s_lshl_b32 {s(sT0)}, {s(sT0)}, 1")
        A(f"v_add_u32 {v(vT0)}, {s(sT0)}, {v(vHf)}")
        A(f"v_xor_b32 {v(vT0)}, {v(vT0)}, {v(vT2)}")
        A(f"v_lshlrev_b32 {v(vT0)}, 4, {v(vT0)}")
        A(f"v_lshl_add_u32 {v(vT0)}, {v(vTok)}, 7, {v(vT0)}")
        A(f"v_add_u32 {v(vXA[pos])}, {s(sT1)}, {v(vT0)}")
    A(f"v_and_b32 {v(vT0)}, 15, {v(vLane)}")
    A(f"v_lshrrev_b32 {v(vT1)}, 2, {v(vT0)}")
    A(f"v_lshlrev_b32 {v(vT1)}, 6, {v(vT1)}")
    A(f"v_lshl_add_u32 {v(vT1)}, {v(vHf)}, 10, {v(vT1)}")
    A(f"v_and_b32 {v(vT0)}, 3, {v(vT0)}")
    A(f"v_lshl_add_u32 {v(vT1)}, {v(vT0)}, 3, {v(vT1)}")
    A(f"v_bfe_u32 {v(vT0)}, {v(vLane)}, 4, 1")
    A(f"v_lshl_add_u32 {v(vT1)}, {v(vT0)}, 5, {v(vT1)}")
    A(f"s_lshl_b32 {s(sw)}, {s(sCh)}, 9")
    A(f"s_add_u32 {s(sw)}, {s(sw)}, {WR}")
    for pos in range(4):
        A(f"s_xor_b32 {s(sT0)}, {s(sW)}, {pos}")
        A(f"s_lshl_b32 {s(sT0)}, {s(sT0)}, 11")
        A(f"s_add_u32 {s(sT0)}, {s(sT0)}, {s(sw)}")
        A(f"v_add_u32 {v(vWA[pos])}, {s(sT0)}, {v(vT1)}")
        A(f"v_add_u32 {v(vWA[4+pos])}, {2*24576}, {v(vWA[pos])}")
    A(f"v_and_b32 {v(vT0)}, 15, {v(vLane)}")
    A(f"v_bfe_u32 {v(vT1)}, {v(vLane)}, 4, 1")
    A(f"v_cmp_eq_u32 vcc, {v(vT0)}, {v(vT1)}")
    A(f"v_mov_b32 {v(vT0)}, 0x3f803f80")
    for i in range(4): A(f"v_cndmask_b32 {v(msk+i)}, 0, {v(vT0)}, vcc")
    A(f"v_mov_b32 {v(vMask)}, 0xffff0000")
    for i in range(8):
        A(f"v_mov_b32 {v(sq+i)}, 0"); A(f"v_mov_b32 {v(sm+i)}, 0")
    def reads1(n):
        slot = (n >> 2) & 3; pos = n & 3; bf = n & 1
        A(f"ds_read_b128 {v(Xf[bf],4)}, {v(vXA[pos])} offset:{XR + slot*8192}")
        wa = vWA[pos + (4 if slot >= 2 else 0)]
        for b in range(3):
            o = (slot & 1) * 24576 + b * 8192
            A(f"ds_read_b64_tr_b16 {v(Wf[bf][b],2)}, {v(wa)} offset:{o}")
            A(f"ds_read_b64_tr_b16 {v(Wf[bf][b]+2,2)}, {v(wa)} offset:{o+256}")
    def compute1(n):
        bf = n & 1; pos = n & 3
        c = lambda b: "0" if n == 0 else v(acc[b], 16)
        cs_ = pos in (0, 2); st_ = pos in (0, 1)
        def mc(b):
            if cs_: A(f"v_mfma_f32_16x16x32_bf16 {v(csa[b],4)}, {v(Wf[bf][b],4)}, {v(msk,4)}, {'0' if n == 0 else v(csa[b],4)}")
        A(f"v_mfma_f32_32x32x16_bf16 {v(acc[0],16)}, {v(Wf[bf][0],4)}, {v(Xf[bf],4)}, {c(0)}")
        if st_:
            for i in range(4):
                A(f"v_lshlrev_b32 {v(un+2*i)}, 16, {v(Xf[bf]+i)}")
                A(f"v_and_b32 {v(un+2*i+1)}, {v(vMask)}, {v(Xf[bf]+i)}")
        mc(0)
        A(f"v_mfma_f32_32x32x16_bf16 {v(acc[1],16)}, {v(Wf[bf][1],4)}, {v(Xf[bf],4)}, {c(1)}")
        if st_:
            for i in range(8): A(f"v_fmac_f32 {v(sq+i)}, {v(un+i)}, {v(un+i)}")
        mc(1)
        A(f"v_mfma_f32_32x32x16_bf16 {v(acc[2],16)}, {v(Xf[bf],4)}, {v(Wf[bf][2],4)}, {c(2)}")
        if st_:
            for i in range(8): A(f"v_add_f32 {v(sm+i)}, {v(un+i)}, {v(sm+i)}")
        mc(2)
    A("s_waitcnt lgkmcnt(0)")
    srd(A, sO, sWs, WS_SIZE)
    sTile, sHp, sQo, sKo, sVo = [S.alloc() for _ in range(5)]
    A(f"s_lshl_b32 {s(sTile)}, {s(sRt1)}, 1")
    A(f"s_add_u32 {s(sTile)}, {s(sTile)}, {s(sTt)}")
    A(f"s_lshl_b32 {s(sHp)}, {s(sHq)}, 1")
    A(f"s_add_u32 {s(sHp)}, {s(sHp)}, {s(sCh)}")
    A(f"s_lshl_b32 {s(sT0)}, {s(sHp)}, 17")
    A(f"s_lshl_b32 {s(sT1)}, {s(sTile)}, 10")
    A(f"s_add_u32 {s(sQo)}, {s(sT0)}, {s(sT1)}")
    A(f"s_add_u32 {s(sKo)}, {s(sQo)}, {WS_KF}")
    A(f"s_add_u32 {s(sVo)}, {s(sQo)}, {WS_VF}")
    A("s_barrier")
    K.stamp()
    reads1(0)
    for n in range(32):
        if n + 1 < 32:
            if (n + 1) % 4 == 0:
                A(f"s_waitcnt lgkmcnt(0)")
                A("s_barrier")
            reads1(n + 1)
            A("s_waitcnt lgkmcnt(7)")
        else:
            A("s_waitcnt lgkmcnt(0)")
        compute1(n)
    K.stamp()
    for L in (sq, sm):
        for st in (4, 2, 1):
            for i in range(st): A(f"v_add_f32 {v(L+i)}, {v(L+i)}, {v(L+i+st)}")
    swap_add(A, sm, vT1)
    swap_add(A, sq, vT2)
    A(f"s_lshl_b32 {s(sT0)}, {s(sW)}, 8")
    A(f"s_add_u32 {s(sT0)}, {s(sT0)}, {ST1}")
    A(f"v_lshl_add_u32 {v(vT0)}, {v(vTok)}, 2, {s(sT0)}")
    A(f"ds_write_b32 {v(vT0)}, {v(sm)}")
    A(f"ds_write_b32 {v(vT0)}, {v(sq)} offset:128")
    A(f"v_and_b32 {v(vT0)}, 15, {v(vLane)}")
    A(f"v_lshrrev_b32 {v(vT1)}, 4, {v(vLane)}")
    A(f"v_lshlrev_b32 {v(vT1)}, 4, {v(vT1)}")
    A(f"v_lshl_add_u32 {v(vT1)}, {v(vT0)}, 6, {v(vT1)}")
    A(f"s_mul_i32 {s(sx)}, {s(sTt)}, 768")
    A(f"s_lshl_b32 {s(sw)}, {s(sCh)}, 7")
    A(f"s_add_u32 {s(sx)}, {s(sx)}, {s(sw)}")
    A(f"s_add_u32 {s(sx)}, {s(sx)}, {CS1}")
    A(f"v_add_u32 {v(vT1)}, {s(sx)}, {v(vT1)}")
    A(f"v_cmp_gt_u32 vcc, 2, {v(vT0)}")
    A(f"s_and_saveexec_b64 {s(sSave,2)}, vcc")
    for b in range(3): A(f"ds_write_b128 {v(vT1)}, {v(csa[b],4)} offset:{b*256}")
    A(f"s_mov_b64 exec, {s(sSave,2)}")
    A("s_waitcnt lgkmcnt(0)")
    A("s_barrier")
    V.release(mk)
    csr = V.alloc(16); csr2 = V.alloc(16); st1 = V.alloc(16); st2 = V.alloc(16)
    vCv, vMean, vRstd, vRq = [V.alloc() for _ in range(4)]
    A(f"s_lshl_b32 {s(sx)}, {s(sTt)}, 8")
    A(f"s_add_u32 {s(sx)}, {s(sx)}, {ST1}")
    A(f"v_lshl_add_u32 {v(vT1)}, {v(vTok)}, 2, {s(sx)}")
    p4 = V.alloc(4)
    A(f"ds_read_b32 {v(p4)}, {v(vT1)}")
    A(f"ds_read_b32 {v(p4+1)}, {v(vT1)} offset:512")
    A(f"ds_read_b32 {v(p4+2)}, {v(vT1)} offset:128")
    A(f"ds_read_b32 {v(p4+3)}, {v(vT1)} offset:640")
    A(f"s_lshl_b32 {s(sw)}, {s(sCh)}, 7")
    A(f"s_add_u32 {s(sw)}, {s(sw)}, {CS1}")
    A(f"v_lshl_add_u32 {v(vT0)}, {v(vHf)}, 4, {s(sw)}")
    for a_ in range(4): A(f"ds_read_b128 {v(csr+4*a_,4)}, {v(vT0)} offset:{a_*32}")
    for a_ in range(4): A(f"ds_read_b128 {v(st1+4*a_,4)}, {v(vT0)} offset:{768+a_*32}")
    A("s_waitcnt lgkmcnt(4)")
    for a_ in range(4): A(f"ds_read_b128 {v(csr2+4*a_,4)}, {v(vT0)} offset:{256+a_*32}")
    for a_ in range(4): A(f"ds_read_b128 {v(st2+4*a_,4)}, {v(vT0)} offset:{768+256+a_*32}")
    A(f"v_lshl_add_u32 {v(vT1)}, {v(vTok)}, 2, {s(sw)}")
    vCv2 = V.alloc()
    A(f"ds_read_b32 {v(vCv)}, {v(vT1)} offset:512")
    A(f"ds_read_b32 {v(vCv2)}, {v(vT1)} offset:{768+512}")
    A("s_waitcnt lgkmcnt(10)")
    for r in range(16): A(f"v_add_f32 {v(csr+r)}, {v(csr+r)}, {v(st1+r)}")
    A("s_waitcnt lgkmcnt(0)")
    for r in range(16): A(f"v_add_f32 {v(csr2+r)}, {v(csr2+r)}, {v(st2+r)}")
    A(f"v_add_f32 {v(vCv)}, {v(vCv)}, {v(vCv2)}")
    pk = V.alloc(8); pk2 = V.alloc(8); pk3 = pk
    vMr = p4 + 1
    A(f"v_add_f32 {v(p4)}, {v(p4)}, {v(p4+1)}")
    A(f"v_add_f32 {v(p4+2)}, {v(p4+2)}, {v(p4+3)}")
    A(f"v_mul_f32 {v(vMean)}, {f2u(1/512.):#x}, {v(p4)}")
    A(f"v_mul_f32 {v(vT1)}, {v(vMean)}, {v(vMean)}")
    A(f"v_mov_b32 {v(vT2)}, {f2u(1/512.):#x}")
    A(f"v_fma_f32 {v(vT1)}, {v(p4+2)}, {v(vT2)}, -{v(vT1)}")
    A(f"v_max_f32 {v(vT1)}, 0, {v(vT1)}")
    A(f"v_add_f32 {v(vT1)}, {f2u(1e-5):#x}, {v(vT1)}")
    A(f"v_rsq_f32 {v(vRstd)}, {v(vT1)}")
    A(f"v_mul_f32 {v(vMr)}, {v(vMean)}, {v(vRstd)}")
    A(f"s_lshl_b32 {s(sx)}, {s(sW)}, 8")
    A(f"s_add_u32 {s(sx)}, {s(sx)}, {ST1 + 1024}")
    A(f"v_lshl_add_u32 {v(vT1)}, {v(vTok)}, 2, {s(sx)}")
    A(f"ds_write_b32 {v(vT1)}, {v(vMr)}")
    A(f"ds_write_b32 {v(vT1)}, {v(vRstd)} offset:128")
    A(f"v_lshl_add_u32 {v(vT0)}, {v(vHf)}, 4, {s(sx)}")
    A(f"v_mul_f32 {v(vRq)}, {f2u(LOG2E*0.25):#x}, {v(vRstd)}")
    A("s_waitcnt lgkmcnt(0)")
    for a_ in range(4): A(f"ds_read_b128 {v(st1+4*a_,4)}, {v(vT0)} offset:{a_*32}")
    for a_ in range(4): A(f"ds_read_b128 {v(st2+4*a_,4)}, {v(vT0)} offset:{128+a_*32}")
    for r in range(16): A(f"v_fma_f32 {v(acc[1]+r)}, -{v(vMean)}, {v(csr2+r)}, {v(acc[1]+r)}")
    for r in range(16): A(f"v_mul_f32 {v(acc[1]+r)}, {v(vRstd)}, {v(acc[1]+r)}")
    for i in range(8): A(f"v_cvt_pk_bf16_f32 {v(pk2+i)}, {v(acc[1]+2*i)}, {v(acc[1]+2*i+1)}")
    A(f"buffer_store_dwordx4 {v(pk2,4)}, {v(vL16)}, {s(sO,4)}, {s(sKo)} offen" + K1SC)
    A(f"s_add_u32 {s(sT0)}, {s(sKo)}, 65536")
    A(f"buffer_store_dwordx4 {v(pk2+4,4)}, {v(vL16)}, {s(sO,4)}, {s(sT0)} offen" + K1SC)
    for r in range(16): A(f"v_fma_f32 {v(acc[0]+r)}, -{v(vMean)}, {v(csr+r)}, {v(acc[0]+r)}")
    for r in range(16): A(f"v_mul_f32 {v(acc[0]+r)}, {v(vRq)}, {v(acc[0]+r)}")
    for i in range(8): A(f"v_cvt_pk_bf16_f32 {v(pk+i)}, {v(acc[0]+2*i)}, {v(acc[0]+2*i+1)}")
    A(f"buffer_store_dwordx4 {v(pk,4)}, {v(vL16)}, {s(sO,4)}, {s(sQo)} offen" + K1SC)
    A(f"s_add_u32 {s(sT0)}, {s(sQo)}, 65536")
    A(f"buffer_store_dwordx4 {v(pk+4,4)}, {v(vL16)}, {s(sO,4)}, {s(sT0)} offen" + K1SC)
    A("s_waitcnt lgkmcnt(0)")
    for r in range(16): A(f"v_mul_f32 {v(st1+r)}, {v(vCv)}, {v(st1+r)}")
    for r in range(16): A(f"v_fma_f32 {v(acc[2]+r)}, {v(acc[2]+r)}, {v(st2+r)}, -{v(st1+r)}")
    pk3 = csr
    for i in range(8): A(f"v_cvt_pk_bf16_f32 {v(pk3+i)}, {v(acc[2]+2*i)}, {v(acc[2]+2*i+1)}")
    A(f"v_lshrrev_b32 {v(vT0)}, 4, {v(vTok)}")
    A(f"v_lshlrev_b32 {v(vT0)}, 16, {v(vT0)}")
    A(f"v_lshl_add_u32 {v(vT0)}, {v(vHf)}, 8, {v(vT0)}")
    A(f"v_and_b32 {v(vT1)}, 15, {v(vTok)}")
    A(f"v_lshl_add_u32 {v(vT0)}, {v(vT1)}, 4, {v(vT0)}")
    A(f"buffer_store_dwordx4 {v(pk3,4)}, {v(vT0)}, {s(sO,4)}, {s(sVo)} offen" + K1SC)
    A(f"buffer_store_dwordx4 {v(pk3+4,4)}, {v(vT0)}, {s(sO,4)}, {s(sVo)} offen offset:512" + K1SC)
    vN = [V.alloc(), V.alloc()]
    for e in range(2):
        for i in range(4):
            A(f"v_lshlrev_b32 {v(csr2+2*i)}, 16, {v(pk2+4*e+i)}")
            A(f"v_and_b32 {v(csr2+2*i+1)}, 0xffff0000, {v(pk2+4*e+i)}")
        A(f"v_mul_f32 {v(vN[e])}, {v(csr2)}, {v(csr2)}")
        for i in range(1, 8): A(f"v_fmac_f32 {v(vN[e])}, {v(csr2+i)}, {v(csr2+i)}")
    swap_add(A, vN[0], vT2)
    swap_add(A, vN[1], vT1)
    for sh in (8, 4, 2, 1):
        for e in range(2):
            A(f"v_max_f32_dpp {v(vN[e])}, {v(vN[e])}, {v(vN[e])} row_ror:{sh} row_mask:0xf bank_mask:0xf")
    sN = [S.alloc() for _ in range(4)]
    for e in range(2):
        A(f"v_readlane_b32 {s(sN[2*e])}, {v(vN[e])}, 0")
        A(f"v_readlane_b32 {s(sN[2*e+1])}, {v(vN[e])}, 16")
    for e in range(2): A(f"s_max_u32 {s(sN[2*e])}, {s(sN[2*e])}, {s(sN[2*e+1])}")
    A(f"s_lshl_b32 {s(sT0)}, {s(sHp)}, 9")
    A(f"s_lshl_b32 {s(sT1)}, {s(sTile)}, 2")
    A(f"s_add_u32 {s(sT0)}, {s(sT0)}, {s(sT1)}")
    A(f"s_add_u32 {s(sT0)}, {s(sT0)}, {WS_KMAX}")
    A(f"v_mov_b32 {v(vN[0])}, {s(sN[0])}")
    A(f"v_mov_b32 {v(vN[1])}, {s(sN[2])}")
    A(f"v_mov_b32 {v(vT1)}, 0")
    A("s_mov_b64 exec, 1")
    A(f"buffer_store_dword {v(vN[0])}, {v(vT1)}, {s(sO,4)}, {s(sT0)} offen" + K1SC)
    A(f"buffer_store_dword {v(vN[1])}, {v(vT1)}, {s(sO,4)}, {s(sT0)} offen offset:256" + K1SC)
    A("s_mov_b64 exec, -1")
    K.stamp_out(sO, 0, vT0, vT1)
    K.rt_end(sO, 0, vT0, vT1)
    A.label(END)
    A("s_endpgm")
    print("k1b vgprs", V.hi, "sgprs", S.hi, "lds", K.lds)
    return K

def k1_hook(ev, K, L):
    A, V, S = K.A, K.V, K.S
    vT0, vT1, vLane, sW8, sWs = L["vT0"], L["vT1"], L["vLane"], L["sW8"], L["sWs"]
    H = K.__dict__.setdefault("_h", {})
    if ev == "start":
        H["R0"] = V.alloc(32); H["AC"] = V.alloc(8); H["UN"] = V.alloc(8); H["vo"] = V.alloc()
        H["srd"] = S.alloc(4); H["t"] = [S.alloc() for _ in range(4)]; H["p"] = S.alloc(2); H["flag"] = S.alloc()
        R0, vo, srd_, t, p, flag = H["R0"], H["vo"], H["srd"], H["t"], H["p"], H["flag"]
        if "cpf1" in G.FLAGS:
            A(f"s_cmp_lg_u32 {s(sW8)}, 9")
            A(f"s_cbranch_scc1 K1_NOCPF")
            if CPF1_WG:
                A(f"s_cmp_ge_u32 s2, {CPF1_WG}")
                A(f"s_cbranch_scc1 K1_NOCPF")
            A(f"s_getpc_b64 {s(p,2)}")
            A.label("K1_PCREF")
            A(f"s_sub_u32 {s(p)}, {s(p)}, K1_PCREF-k1_qkv_kernel")
            A(f"s_subb_u32 {s(p+1)}, {s(p+1)}, 0")
            A(f"v_lshlrev_b32 {v(vo)}, 4, {v(vLane)}")
            for i in range(CPF1_KB):
                A(f"global_load_dwordx4 {v(R0+4*(i%8),4)}, {v(vo)}, {s(p,2)} offset:{(i&3)*1024}")
                if i % 4 == 3: A(f"v_add_u32 {v(vo)}, 4096, {v(vo)}")
            A.label("K1_NOCPF")
        A(f"s_mov_b32 {s(flag)}, 0")
        A(f"s_cmp_lg_u32 {s(sW8)}, 8")
        A(f"s_cbranch_scc1 K1_NOCS0")
        A("s_waitcnt lgkmcnt(0)")
        A(f"s_cmp_ge_u32 s2, 48")
        A(f"s_cbranch_scc1 K1_NOZ")
        srd(A, srd_, sWs, WS_SIZE)
        A(f"s_lshl_b32 {s(t[0])}, s2, 8")
        A(f"s_add_u32 {s(t[0])}, {s(t[0])}, {WS_CNT}")
        A(f"v_mov_b32 {v(vT0)}, 0")
        A(f"v_lshlrev_b32 {v(vT1)}, 2, {v(vLane)}")
        A(f"s_mov_b32 exec_hi, 0")
        A(f"buffer_store_dword {v(vT0)}, {v(vT1)}, {s(srd_,4)}, {s(t[0])} offen")
        A(f"s_mov_b64 exec, -1")
        A.label("K1_NOZ")
        A(f"s_cmp_ge_u32 s2, 224")
        A(f"s_cbranch_scc1 K1_NOCS0")
        A(f"s_mov_b32 {s(flag)}, 1")
        A(f"s_load_dwordx2 {s(p,2)}, s[0:1], 32")
        A(f"s_mul_i32 {s(t[0])}, s2, 2341")
        A(f"s_lshr_b32 {s(t[0])}, {s(t[0])}, 16")
        A(f"s_mul_i32 {s(t[1])}, {s(t[0])}, 28")
        A(f"s_sub_u32 {s(t[1])}, s2, {s(t[1])}")
        A(f"v_lshrrev_b32 {v(vo)}, 3, {v(vLane)}")
        A(f"v_mul_u32_u24 {v(vo)}, 3584, {v(vo)}")
        A(f"v_and_b32 {v(vT0)}, 7, {v(vLane)}")
        A(f"v_lshl_add_u32 {v(vo)}, {v(vT0)}, 4, {v(vo)}")
        A(f"s_mul_i32 {s(t[2])}, {s(t[0])}, {64*3584}")
        A(f"s_lshl_b32 {s(t[3])}, {s(t[1])}, 7")
        A(f"s_add_u32 {s(t[2])}, {s(t[2])}, {s(t[3])}")
        A("s_waitcnt lgkmcnt(0)")
        srd(A, srd_, p, 512 * 1792 * 2)
        for n in range(8):
            A(f"buffer_load_dwordx4 {v(R0+4*n,4)}, {v(vo)}, {s(srd_,4)}, {s(t[2])} offen")
            A(f"s_add_u32 {s(t[2])}, {s(t[2])}, {8*3584}")
        A.label("K1_NOCS0")
        for i in range(8): A(f"v_mov_b32 {v(H['AC']+i)}, 0")
    elif ev == "end":
        R0, AC, UN, srd_, t, flag = H["R0"], H["AC"], H["UN"], H["srd"], H["t"], H["flag"]
        A(f"s_cmp_eq_u32 {s(flag)}, 0")
        A(f"s_cbranch_scc1 K1_NOCS1")
        A("s_waitcnt vmcnt(0)")
        for n in range(8):
            for i in range(4):
                A(f"v_lshlrev_b32 {v(UN+2*i)}, 16, {v(R0+4*n+i)}")
                A(f"v_and_b32 {v(UN+2*i+1)}, 0xffff0000, {v(R0+4*n+i)}")
            for i in range(8): A(f"v_add_f32 {v(AC+i)}, {v(AC+i)}, {v(UN+i)}")
        for i in range(8): A(f"v_add_f32_dpp {v(AC+i)}, {v(AC+i)}, {v(AC+i)} row_ror:8 row_mask:0xf bank_mask:0xf")
        for sw in ("v_permlane16_swap_b32", "v_permlane32_swap_b32"):
            for i in range(8): A(f"v_mov_b32 {v(UN+i)}, {v(AC+i)}")
            for i in range(8): A(f"{sw} {v(AC+i)}, {v(UN+i)}")
            for i in range(8): A(f"v_add_f32 {v(AC+i)}, {v(AC+i)}, {v(UN+i)}")
        srd(A, srd_, sWs, WS_SIZE)
        A(f"s_mul_i32 {s(t[2])}, {s(t[0])}, 7168")
        A(f"s_lshl_b32 {s(t[3])}, {s(t[1])}, 8")
        A(f"s_add_u32 {s(t[2])}, {s(t[2])}, {s(t[3])}")
        A(f"s_add_u32 {s(t[2])}, {s(t[2])}, {WS_CSG}")
        A(f"v_and_b32 {v(vT0)}, 7, {v(vLane)}")
        A(f"v_lshlrev_b32 {v(vT0)}, 5, {v(vT0)}")
        A(f"s_mov_b64 exec, 0xff")
        A(f"buffer_store_dwordx4 {v(AC,4)}, {v(vT0)}, {s(srd_,4)}, {s(t[2])} offen")
        A(f"buffer_store_dwordx4 {v(AC+4,4)}, {v(vT0)}, {s(srd_,4)}, {s(t[2])} offen offset:16")
        A.label("K1_NOCS1")

def k1z():
    G.HOOK = k1_hook
    return G.k1()

if __name__ == "__main__":
    if "stamp" in sys.argv: G.STAMP = True
    if "rt" in sys.argv: G.RT = True
    G.FLAGS = set(sys.argv[2:])
    for a_ in sys.argv[2:]:
        if a_.startswith("prioit="): PRIO_IT = int(a_.split("=")[1])
        if a_.startswith("npoll="): NPOLL = int(a_.split("=")[1])
        if a_.startswith("win5="): WIN5 = int(a_.split("=")[1])
        if a_.startswith("cpfkb="): CPF1_KB = int(a_.split("=")[1])
        if a_.startswith("cpfwg="): CPF1_WG = int(a_.split("=")[1])
        if a_.startswith("psleep="): PSLEEP = int(a_.split("=")[1])
    ks = [k1b() if 'k1b' in G.FLAGS else k1z(), km(1 if 'q1' in G.FLAGS else 2, prio=('noprio' not in G.FLAGS))]
    build(ks, sys.argv[1] if len(sys.argv) > 1 else "out.s")
```

```python
import sys
import gen as G
from gen import *
from dsl import *

WS_CNT = (21 << 20)
G.WS_CNT = WS_CNT
G.WS_HS = WS_HS = 20 << 20
WS_CSG = (20 << 20) + (512 << 10)
G.WS_STAMP = WS_STAMP = (21 << 20) + (512 << 10)

PRIO_IT = 13
NPOLL = 1
CPF1_KB = 13
CPF1_WG = 0
TLB_IT = 6
PSLEEP = 4
WIN5 = 5
def km(nqb=2, prio=True):
    ks = nqb
    LOCAL = 'local' in G.FLAGS
    W2R = 'w2r' in G.FLAGS
    LSC = '' if LOCAL else ' sc1'
    LLD = '' if (LOCAL and 'ldsc1' not in G.FLAGS) else ' sc1'
    KR = 0; VR = 65536; ON = 131072
    WO = 0; XT = 65536; RED = XT + 8192
    W1 = 0; CS = 139264; BI = CS + 512
    W2 = 0; RED5 = 0
    TKL = BI + 512 + 2048
    STP = BI + 512
    K = Kern("km_fused_kernel", (256, 1, 1), (512, 1, 1), BI + 512 + 2048 + 64)
    A, V, S = K.A, K.V, K.S
    END = "KM_END"
    sWs = S.alloc(2); sPx = S.alloc(2); sPwo = S.alloc(2); sP1 = S.alloc(4); sP2 = S.alloc(4); sPo = S.alloc(2)
    A(f"s_load_dwordx2 {s(sWs,2)}, s[0:1], 80")
    A(f"s_load_dwordx2 {s(sPx,2)}, s[0:1], 0")
    A(f"s_load_dwordx2 {s(sPwo,2)}, s[0:1], 16")
    A(f"s_load_dwordx4 {s(sP1,4)}, s[0:1], 32")
    A(f"s_load_dwordx4 {s(sP2,4)}, s[0:1], 48")
    A(f"s_load_dwordx2 {s(sPo,2)}, s[0:1], 64")
    A(f"s_cmp_ge_u32 s2, 256")
    A(f"s_cbranch_scc1 {END}")
    K.rt_begin()
    K.stamp()
    sO = S.alloc(4); sRa = S.alloc(4); sRb = S.alloc(4)
    sW8, sW, sXcd, sJ, sT0, sT1, sB, sJ3, sJ2, sCn = [S.alloc() for _ in range(10)]
    sSave = S.alloc(2)
    sXcP, sTkP = S.alloc(), S.alloc()
    vLane, vT0, vT1, vT2, vHf, vTok, vL16 = [V.alloc() for _ in range(7)]
    hpk = V.alloc(4)
    vPoll = V.alloc(4)
    wave_ids(K, sW8, sW, vLane, vT0)
    A(f"s_and_b32 {s(sXcd)}, s2, 7")
    A(f"s_lshr_b32 {s(sJ)}, s2, 3")
    A(f"s_and_b32 {s(sJ3)}, {s(sJ)}, 3")
    A(f"s_lshr_b32 {s(sJ2)}, {s(sJ)}, 2")
    A(f"v_lshlrev_b32 {v(vL16)}, 4, {v(vLane)}")
    if "cpf0" in G.FLAGS:
        A(f"s_cmp_lg_u32 {s(sW8)}, 7")
        A(f"s_cbranch_scc1 KM_NOCPF0")
        A(f"s_getpc_b64 {s(sRa,2)}")
        A.label("KM_PCREF0")
        for i in range(3):
            A(f"global_load_dwordx4 {v(vPoll,4)}, {v(vL16)}, {s(sRa,2)} offset:{i*1024}")
        A.label("KM_NOCPF0")
    A(f"v_lshrrev_b32 {v(vHf)}, 5, {v(vLane)}")
    A(f"v_and_b32 {v(vTok)}, 31, {v(vLane)}")
    FLG = "flg" in G.FLAGS
    def signal(off_sgpr, local=False, slot=None):
        if FLG:
            slot()
            A(f"s_lshl_b32 {s(sT0)}, {s(sT0)}, 2")
            A(f"v_mov_b32 {v(vT1)}, {s(sT0)}")
            A(f"v_mov_b32 {v(vT0)}, 1")
            A(f"s_mov_b64 exec, 1")
            A(f"buffer_store_dword {v(vT0)}, {v(vT1)}, {s(sO,4)}, {s(off_sgpr)} offen sc1")
            A(f"s_mov_b64 exec, -1")
            return
        A(f"v_mov_b32 {v(vT0)}, 1")
        A(f"v_mov_b32 {v(vT1)}, 0")
        A(f"s_mov_b64 exec, 1")
        A(f"buffer_atomic_add {v(vT0)}, {v(vT1)}, {s(sO,4)}, {s(off_sgpr)} offen" + ("" if local else " sc1"))
        A(f"s_mov_b64 exec, -1")
    def poll(off_sgpr, target, tag):
        if FLG:
            A(f"v_lshlrev_b32 {v(vT1)}, 2, {v(vLane)}")
            A(f"s_mov_b32 {s(sT1)}, 3000000")
            A(f"s_mov_b32 exec_lo, {(1 << target) - 1:#x}")
            A(f"s_mov_b32 exec_hi, 0")
            A.label(f"KM_POLL_{tag}")
            A(f"buffer_load_dword {v(vT0)}, {v(vT1)}, {s(sO,4)}, {s(off_sgpr)} offen sc1")
            A("s_waitcnt vmcnt(0)")
            A(f"v_cmp_eq_u32 vcc, 0, {v(vT0)}")
            A("s_nop 1")
            A(f"s_cmp_eq_u64 vcc, 0")
            A(f"s_cbranch_scc1 KM_PD_{tag}")
            A("s_sleep 1")
            A(f"s_sub_u32 {s(sT1)}, {s(sT1)}, 1")
            A(f"s_cmp_lg_u32 {s(sT1)}, 0")
            A(f"s_cbranch_scc1 KM_POLL_{tag}")
            A.label(f"KM_PD_{tag}")
            A(f"s_mov_b64 exec, -1")
            return
        if NPOLL <= 1:
            A(f"v_mov_b32 {v(vT1)}, 0")
            A(f"s_mov_b32 {s(sT1)}, 3000000")
            A.label(f"KM_POLL_{tag}")
            A(f"buffer_load_dword {v(vT0)}, {v(vT1)}, {s(sO,4)}, {s(off_sgpr)} offen sc1")
            A("s_waitcnt vmcnt(0)")
            A(f"v_readfirstlane_b32 {s(sT0)}, {v(vT0)}")
            A(f"s_cmp_ge_u32 {s(sT0)}, {target}")
            A(f"s_cbranch_scc1 KM_PD_{tag}")
            A("s_sleep 1")
            A(f"s_sub_u32 {s(sT1)}, {s(sT1)}, 1")
            A(f"s_cmp_lg_u32 {s(sT1)}, 0")
            A(f"s_cbranch_scc1 KM_POLL_{tag}")
            A.label(f"KM_PD_{tag}")
            return
        P = vPoll
        A(f"v_mov_b32 {v(vT1)}, 0")
        A(f"s_mov_b32 {s(sT1)}, 1000000")
        for k in range(NPOLL - 1):
            A(f"buffer_load_dword {v(P+k)}, {v(vT1)}, {s(sO,4)}, {s(off_sgpr)} offen sc1")
            A(f"s_sleep {PSLEEP}")
        A.label(f"KM_POLL_{tag}")
        for k in range(NPOLL):
            A(f"buffer_load_dword {v(P+(k+NPOLL-1)%NPOLL)}, {v(vT1)}, {s(sO,4)}, {s(off_sgpr)} offen sc1")
            A(f"s_waitcnt vmcnt({NPOLL-1})")
            A(f"v_readfirstlane_b32 {s(sT0)}, {v(P+k)}")
            A(f"s_cmp_ge_u32 {s(sT0)}, {target}")
            A(f"s_cbranch_scc1 KM_PD_{tag}")
            A(f"s_sleep {PSLEEP}")
        A(f"s_sub_u32 {s(sT1)}, {s(sT1)}, 1")
        A(f"s_cmp_lg_u32 {s(sT1)}, 0")
        A(f"s_cbranch_scc1 KM_POLL_{tag}")
        A.label(f"KM_PD_{tag}")
    def only_wave0(tag, body):
        A(f"s_cmp_lg_u32 {s(sW8)}, 0")
        A(f"s_cbranch_scc1 KM_NW0_{tag}")
        body()
        A.label(f"KM_NW0_{tag}")
    def cnt_off(dst, base, idx_expr):
        idx_expr(dst)
        A(f"s_lshl_b32 {s(dst)}, {s(dst)}, 8")
        A(f"s_add_u32 {s(dst)}, {s(dst)}, {WS_CNT + base}")
    mkV = V.mark(); mkS = S.mark()
    sHead, sWq, sKh, sHb, sIt, sKm, sQt, sL, sG, sL0 = [S.alloc() for _ in range(10)]
    sQb = sJ2
    vK, vV, vVinc = [V.alloc() for _ in range(3)]
    A(f"s_lshl_b32 {s(sHead)}, {s(sXcd)}, 2")
    A(f"s_add_u32 {s(sHead)}, {s(sHead)}, {s(sJ3)}")
    if ks == 2:
        A(f"s_mov_b32 {s(sWq)}, {s(sW)}")
        A(f"s_lshr_b32 {s(sKh)}, {s(sW8)}, 2")
    else:
        A(f"s_mov_b32 {s(sWq)}, {s(sW8)}")
        A(f"s_mov_b32 {s(sKh)}, 0")
    A(f"s_lshl_b32 {s(sHb)}, {s(sHead)}, 16")
    Q = [V.alloc(4) for _ in range(nqb)]
    vKm = V.alloc()
    A(f"s_lshl_b32 {s(sT0)}, {s(sQb)}, 3")
    A(f"s_mul_i32 {s(sT1)}, {s(sWq)}, {nqb}")
    A(f"s_add_u32 {s(sQt)}, {s(sT0)}, {s(sT1)}")
    if ks == 2:
        A(f"s_lshl_b32 {s(sL0)}, {s(sKh)}, 5")
        A(f"s_lshl_b32 {s(sT0)}, {s(sWq)}, 1")
        A(f"s_add_u32 {s(sL0)}, {s(sL0)}, {s(sT0)}")
        gstep = 8
    else:
        A(f"s_lshl_b32 {s(sL0)}, {s(sW8)}, 1")
        gstep = 16
    A(f"s_lshl_b32 {s(sB)}, {s(sQt)}, 10")
    A(f"s_add_u32 {s(sB)}, {s(sB)}, {s(sHb)}")
    A(f"v_lshlrev_b32 {v(vT2)}, 2, {v(vLane)}")
    A("s_waitcnt lgkmcnt(0)")
    srd(A, sO, sWs, WS_SIZE)
    sXc, sTk = sXcP, sTkP
    vTk = V.alloc()
    if LOCAL:
        A(f"s_getreg_b32 {s(sXc)}, hwreg(HW_REG_XCC_ID)")
        A(f"s_and_b32 {s(sXc)}, {s(sXc)}, 7")
        A(f"s_cmp_lg_u32 {s(sW8)}, 0")
        A(f"s_cbranch_scc1 KM_NOTK")
        A(f"s_lshl_b32 {s(sT0)}, {s(sXc)}, 8")
        A(f"s_add_u32 {s(sT0)}, {s(sT0)}, {WS_CNT + 10240}")
        A(f"v_mov_b32 {v(vTk)}, 1")
        A(f"v_mov_b32 {v(vT0)}, 0")
        A(f"s_mov_b64 exec, 1")
        A(f"buffer_atomic_add {v(vTk)}, {v(vT0)}, {s(sO,4)}, {s(sT0)} offen sc0")
        A(f"s_mov_b64 exec, -1")
        A.label("KM_NOTK")
    else:
        A(f"s_mov_b32 {s(sXc)}, {s(sXcd)}")
        A(f"s_mov_b32 {s(sTk)}, {s(sJ)}")
    def kv_group(g):
        A(f"s_add_u32 {s(sL)}, {s(sL0)}, {gstep*g}")
        A(f"s_lshl_b32 {s(sT0)}, {s(sQb)}, 3")
        A(f"s_add_u32 {s(sG)}, {s(sL)}, {s(sT0)}")
        A(f"s_and_b32 {s(sG)}, {s(sG)}, 63")
        A(f"s_lshl_b32 {s(sG)}, {s(sG)}, 10")
        A(f"s_add_u32 {s(sG)}, {s(sG)}, {s(sHb)}")
        A(f"s_lshl_b32 {s(sL)}, {s(sL)}, 10")
        A(f"s_add_u32 m0, {s(sL)}, {KR}")
        A(f"s_add_u32 {s(sT0)}, {s(sG)}, {WS_KF}")
        A(f"buffer_load_dwordx4 {v(vL16)}, {s(sO,4)}, {s(sT0)} offen lds")
        A(f"buffer_load_dwordx4 {v(vL16)}, {s(sO,4)}, {s(sT0)} offen offset:1024 lds")
        A(f"s_add_u32 m0, {s(sL)}, {VR}")
        A(f"s_add_u32 {s(sT0)}, {s(sG)}, {WS_VF}")
        A(f"buffer_load_dwordx4 {v(vL16)}, {s(sO,4)}, {s(sT0)} offen lds")
        A(f"buffer_load_dwordx4 {v(vL16)}, {s(sO,4)}, {s(sT0)} offen offset:1024 lds")
    for b in range(nqb):
        A(f"buffer_load_dwordx4 {v(Q[b],4)}, {v(vL16)}, {s(sO,4)}, {s(sB)} offen offset:{b*1024}")
    A(f"s_lshl_b32 {s(sT0)}, {s(sHead)}, 8")
    A(f"s_add_u32 {s(sT0)}, {s(sT0)}, {WS_KMAX}")
    A(f"buffer_load_dword {v(vKm)}, {v(vT2)}, {s(sO,4)}, {s(sT0)} offen")
    kv_group(0)
    K.stamp()
    ZROW = "zrow" in G.FLAGS
    ZR = ON + 4608
    A(f"v_mov_b32 {v(vT1)}, 0x3f803f80")
    A(f"v_lshlrev_b32 {v(vT0)}, 2, v0")
    A(f"v_add_u32 {v(vT0)}, {ON}, {v(vT0)}")
    A(f"ds_write_b32 {v(vT0)}, {v(vT1)}")
    A(f"ds_write_b32 {v(vT0)}, {v(vT1)} offset:2048")
    if ZROW:
        A(f"v_mov_b32 {v(vT2)}, 0")
        A(f"ds_write_b32 {v(vT0)}, {v(vT2)} offset:4608")
        A(f"ds_write_b32 {v(vT0)}, {v(vT2)} offset:{4608+2048}")
    A(f"v_cmp_gt_u32 vcc, 128, v0")
    A(f"s_and_saveexec_b64 {s(sSave,2)}, vcc")
    A(f"ds_write_b32 {v(vT0)}, {v(vT1)} offset:4096")
    if ZROW: A(f"ds_write_b32 {v(vT0)}, {v(vT2)} offset:{4608+4096}")
    A(f"s_mov_b64 exec, {s(sSave,2)}")
    A(f"s_lshl_b32 {s(sT0)}, {s(sKh)}, 15")
    A(f"v_add_u32 {v(vK)}, {s(sT0)}, {v(vL16)}")
    A(f"v_lshlrev_b32 {v(vT0)}, 8, {v(vHf)}")
    A(f"v_lshl_add_u32 {v(vT0)}, {v(vTok)}, 4, {v(vT0)}")
    A(f"s_add_u32 {s(sT0)}, {s(sT0)}, {VR}")
    A(f"v_add_u32 {v(vT0)}, {s(sT0)}, {v(vT0)}")
    A(f"v_subrev_u32 {v(vT1)}, 20, {v(vTok)}")
    A(f"v_cmp_gt_u32 vcc, 8, {v(vT1)}")
    if ZROW:
        A(f"v_mov_b32 {v(vT1)}, {ZR+192}")
        A(f"v_mov_b32 {v(vT2)}, {ZR+64}")
        A(f"v_cndmask_b32 {v(vT1)}, {v(vT1)}, {v(vT2)}, vcc")
        A(f"v_mov_b32 {v(vT2)}, {ON}")
        A(f"v_cmp_eq_u32 vcc, 16, {v(vTok)}")
        A(f"v_cndmask_b32 {v(vT1)}, {v(vT1)}, {v(vT2)}, vcc")
    else:
        A(f"v_mov_b32 {v(vT1)}, {ON}")
        A(f"v_mov_b32 {v(vT2)}, {ON+64}")
        A(f"v_cndmask_b32 {v(vT1)}, {v(vT1)}, {v(vT2)}, vcc")
    A(f"v_cmp_gt_u32 vcc, 16, {v(vTok)}")
    A(f"v_cndmask_b32 {v(vV)}, {v(vT1)}, {v(vT0)}, vcc")
    A(f"v_mov_b32 {v(vT1)}, 4096")
    A(f"v_cndmask_b32 {v(vVinc)}, 0, {v(vT1)}, vcc")
    Kf = [V.alloc(4) for _ in range(2)]; Vf0 = [V.alloc(4) for _ in range(2)]; Vf1 = [V.alloc(4) for _ in range(2)]
    QB = [dict(S=[V.alloc(16), V.alloc(16)], P=V.alloc(8), O=V.alloc(16), C=V.alloc(16)) for _ in range(nqb)]
    for b in range(nqb):
        for r in range(16): A(f"v_mov_b32 {v(QB[b]['O']+r)}, 0")
        for r in range(4, 8): A(f"v_mov_b32 {v(QB[b]['P']+r)}, 0")
    for r in range(4): A(f"v_mov_b32 {v(Vf1[1]+r)}, 0")
    A(f"s_waitcnt vmcnt(4)")
    wave_max64(A, vKm, sKm, sT0)
    bad = S.alloc(2)
    for b in range(nqb):
        un = QB[b]["S"][0]
        for i in range(4):
            A(f"v_lshlrev_b32 {v(un+2*i)}, 16, {v(Q[b]+i)}")
            A(f"v_and_b32 {v(un+2*i+1)}, 0xffff0000, {v(Q[b]+i)}")
        A(f"v_mul_f32 {v(vT0)}, {v(un)}, {v(un)}")
        for i in range(1, 8): A(f"v_fmac_f32 {v(vT0)}, {v(un+i)}, {v(un+i)}")
        swap_add(A, vT0, vT1)
        A(f"v_mul_f32 {v(vT0)}, {s(sKm)}, {v(vT0)}")
        A(f"v_sqrt_f32 {v(vT0)}, {v(vT0)}")
        A(f"v_mov_b32 {v(vT1)}, {f2u(0.01):#x}")
        A(f"v_fmac_f32 {v(vT1)}, {f2u(1.01):#x}, {v(vT0)}")
        A(f"v_mov_b32 {v(vT2)}, {f2u(40.0):#x}")
        A(f"v_cmp_nge_f32 vcc, {v(vT2)}, {v(vT1)}")
        if b == 0: A(f"s_mov_b64 {s(bad,2)}, vcc")
        else: A(f"s_or_b64 {s(bad,2)}, {s(bad,2)}, vcc")
        for r in range(16): A(f"v_sub_f32 {v(QB[b]['C']+r)}, 0, {v(vT1)}")
    if LOCAL:
        A(f"s_waitcnt vmcnt(0)")
        A(f"s_cmp_lg_u32 {s(sW8)}, 0")
        A(f"s_cbranch_scc1 KM_NOTK2")
        A(f"v_mov_b32 {v(vT0)}, {TKL}")
        A(f"s_mov_b64 exec, 1")
        A(f"ds_write_b32 {v(vT0)}, {v(vTk)}")
        A(f"s_mov_b64 exec, -1")
        A.label("KM_NOTK2")
    A(f"s_waitcnt vmcnt(0) lgkmcnt(0)")
    A("s_barrier")
    K.stamp()
    if LOCAL:
        A(f"v_mov_b32 {v(vT0)}, {TKL}")
        A(f"ds_read_b32 {v(vT1)}, {v(vT0)}")
        A(f"s_waitcnt lgkmcnt(0)")
        A(f"v_readfirstlane_b32 {s(sTk)}, {v(vT1)}")
    NT = 64 // ks
    mf = "v_mfma_f32_32x32x16_bf16"
    sPF = S.alloc(4); sPFo = S.alloc()
    A(f"s_lshl_b32 {s(sT0)}, {s(sJ)}, 2")
    A(f"s_add_u32 {s(sT0)}, {s(sT0)}, {s(sW)}")
    A(f"s_cmp_lt_u32 {s(sT0)}, 72")
    A(f"s_cselect_b32 {s(sPF)}, {s(sP1)}, {s(sP2)}")
    A(f"s_cselect_b32 {s(sPF+1)}, {s(sP1+1)}, {s(sP2+1)}")
    A(f"s_cselect_b32 {s(sT1)}, 16, 72")
    A(f"s_cmp_lt_u32 {s(sT0)}, 16")
    A(f"s_cselect_b32 {s(sPF)}, {s(sPwo)}, {s(sPF)}")
    A(f"s_cselect_b32 {s(sPF+1)}, {s(sPwo+1)}, {s(sPF+1)}")
    A(f"s_cselect_b32 {s(sT1)}, 0, {s(sT1)}")
    A(f"s_sub_u32 {s(sT0)}, {s(sT0)}, {s(sT1)}")
    A(f"s_lshl_b32 {s(sT0)}, {s(sT0)}, 15")
    A(f"s_add_u32 {s(sPF)}, {s(sPF)}, {s(sT0)}")
    A(f"s_addc_u32 {s(sPF+1)}, {s(sPF+1)}, 0")
    A(f"s_and_b32 {s(sPF+1)}, {s(sPF+1)}, 0xffff")
    A(f"s_mov_b32 {s(sPF+2)}, 32768")
    A(f"s_mov_b32 {s(sPF+3)}, 0x20000")
    A(f"s_mov_b32 {s(sPFo)}, 0")
    if "nopf" in G.FLAGS:
        A(f"s_mov_b32 {s(sPFo)}, 32768")
    if "pf2" in G.FLAGS:
        A(f"s_lshl_b32 {s(sT0)}, {s(sJ)}, 2")
        A(f"s_add_u32 {s(sT0)}, {s(sT0)}, {s(sW)}")
        A(f"s_cmp_lt_u32 {s(sT0)}, 72")
        A(f"s_cselect_b32 {s(sPFo)}, 0, 32768")
    vPF = V.alloc(4)
    A(f"s_cmp_lt_u32 {s(sW8)}, 4")
    A(f"s_cbranch_scc1 KM_OLD1")
    for g in range(1, 4):
        if ks == 2:
            A(f"s_lshr_b32 {s(sL)}, {s(sW)}, 1")
            A(f"s_lshl_b32 {s(sL)}, {s(sL)}, 5")
            A(f"s_and_b32 {s(sT0)}, {s(sW)}, 1")
            A(f"s_lshl_b32 {s(sT0)}, {s(sT0)}, 2")
            A(f"s_add_u32 {s(sL)}, {s(sL)}, {s(sT0)}")
            A(f"s_add_u32 {s(sL)}, {s(sL)}, {8*g}")
        else:
            A(f"s_lshl_b32 {s(sL)}, {s(sW)}, 2")
            A(f"s_add_u32 {s(sL)}, {s(sL)}, {16*g}")
        A(f"s_lshl_b32 {s(sT0)}, {s(sQb)}, 3")
        A(f"s_add_u32 {s(sG)}, {s(sL)}, {s(sT0)}")
        A(f"s_and_b32 {s(sG)}, {s(sG)}, 63")
        A(f"s_lshl_b32 {s(sG)}, {s(sG)}, 10")
        A(f"s_add_u32 {s(sG)}, {s(sG)}, {s(sHb)}")
        A(f"s_lshl_b32 {s(sL)}, {s(sL)}, 10")
        for reg, wsb in ((KR, WS_KF), (VR, WS_VF)):
            A(f"s_add_u32 m0, {s(sL)}, {reg}")
            A(f"s_add_u32 {s(sT0)}, {s(sG)}, {wsb}")
            for i in range(4):
                A(f"buffer_load_dwordx4 {v(vL16)}, {s(sO,4)}, {s(sT0)} offen offset:{i*1024} lds")
    A("s_waitcnt vmcnt(0)")
    A("s_barrier")
    if "cpf" in G.FLAGS:
        sPC = S.alloc(2)
        A(f"s_getpc_b64 {s(sPC,2)}")
        A.label("KM_PCREF")
        A(f"s_add_u32 {s(sPC)}, {s(sPC)}, KM_FIN-KM_PCREF")
        A(f"s_addc_u32 {s(sPC+1)}, {s(sPC+1)}, 0")
        A(f"s_mul_i32 {s(sT0)}, {s(sW)}, 3072")
        A(f"v_add_u32 {v(vT0)}, {s(sT0)}, {v(vL16)}")
        for i in range(3):
            A(f"global_load_dwordx4 {v(vPF,4)}, {v(vT0)}, {s(sPC,2)} offset:{i*1024}")
    if prio: A("s_setprio 1")
    A.label("KM_OLD1")
    A(f"s_cmp_lg_u64 {s(bad,2)}, 0")
    A(f"s_cbranch_scc1 KM_SLOW")
    A(f"ds_read_b128 {v(Kf[0],4)}, {v(vK)}")
    A(f"ds_read_b128 {v(Kf[1],4)}, {v(vK)} offset:1024")
    A(f"ds_read_b128 {v(Vf0[0],4)}, {v(vV)}")
    A("s_waitcnt lgkmcnt(2)")
    for b in range(nqb):
        A(f"{mf} {v(QB[b]['S'][0],16)}, {v(Kf[0],4)}, {v(Q[b],4)}, {v(QB[b]['C'],16)}")
    sA1i = S.alloc()
    a1it = 3 if ks == 1 else 1
    A(f"s_cmp_lt_u32 {s(sW8)}, 4")
    A(f"s_cselect_b32 {s(sA1i)}, {a1it}, -1")
    sPFl = S.alloc()
    A(f"s_cselect_b32 {s(sPFl)}, 0, 32768")
    A(f"s_mov_b32 {s(sIt)}, 0")
    A.label("KM_LOOP")
    A(f"s_cmp_lg_u32 {s(sIt)}, {s(sA1i)}")
    A(f"s_cbranch_scc1 KM_NOSYNC")
    A("s_barrier")
    A.label("KM_NOSYNC")
    if prio:
        A(f"s_cmp_lg_u32 {s(sIt)}, {PRIO_IT if ks == 1 else PRIO_IT // 2}")
        A(f"s_cbranch_scc1 KM_NP2")
        A("s_setprio 0")
        A.label("KM_NP2")
    npf = 3 if ks == 1 else 6
    A(f"s_cmp_ge_u32 {s(sPFo)}, {s(sPFl)}")
    A(f"s_cbranch_scc1 KM_NOPF")
    for i in range(npf):
        if i == 4: A(f"s_add_u32 {s(sT0)}, {s(sPFo)}, 4096")
        A(f"buffer_load_dwordx4 {v(vPF,4)}, {v(vL16)}, {s(sPF,4)}, {s(sPFo if i < 4 else sT0)} offen offset:{(i&3)*1024}")
    A(f"s_add_u32 {s(sPFo)}, {s(sPFo)}, {npf*1024}")
    A.label("KM_NOPF")
    if "tlb" in G.FLAGS:
        A(f"s_cmp_lg_u32 {s(sIt)}, {TLB_IT}")
        A(f"s_cbranch_scc1 KM_NOTLB")
        A(f"s_cmp_lt_u32 {s(sW8)}, 4")
        A(f"s_cbranch_scc1 KM_NOTLB")
        A(f"v_and_b32 {v(vT0)}, 7, {v(vLane)}")
        A(f"v_lshlrev_b32 {v(vT0)}, 21, {v(vT0)}")
        A(f"s_lshl_b32 {s(sT0)}, {s(sJ)}, 12")
        A(f"s_add_u32 {s(sT0)}, {s(sT0)}, {(8 << 20) + 0x100000}")
        A(f"s_mov_b64 exec, 0x7f")
        A(f"buffer_load_dword {v(vPF)}, {v(vT0)}, {s(sO,4)}, {s(sT0)} offen")
        A(f"s_mov_b64 exec, 1")
        A(f"v_mov_b32 {v(vT0)}, 0")
        A(f"global_load_dword {v(vPF+1)}, {v(vT0)}, {s(sPo,2)}")
        A(f"global_load_dword {v(vPF+2)}, {v(vT0)}, {s(sP1+2,2)}")
        A(f"global_load_dword {v(vPF+3)}, {v(vT0)}, {s(sP2+2,2)}")
        A(f"s_mov_b64 exec, -1")
        A.label("KM_NOTLB")
    for t in range(4):
        cur, nxt = t & 1, (t + 1) & 1
        A("s_waitcnt lgkmcnt(0)")
        for b in range(nqb):
            q = QB[b]; Sx = q["S"][cur]; Sn = q["S"][nxt]; P = q["P"]; O = q["O"]
            ex = [f"v_exp_f32 {v(Sx+i)}, {v(Sx+i)}" for i in range(16)]
            cv = [f"v_cvt_pk_bf16_f32 {v(P+i)}, {v(Sx+2*i)}, {v(Sx+2*i+1)}" for i in range(8)]
            A(f"{mf} {v(Sn,16)}, {v(Kf[nxt],4)}, {v(Q[b],4)}, {v(q['C'],16)}")
            for x in ex[0:4]: A(x)
            A(cv[0])
            for x in ex[4:6]: A(x)
            A(cv[1])
            A(f"{mf} {v(O,16)}, {v(Vf1[nxt],4)}, {v(P+4,4)}, {v(O,16)}")
            if b == 0:
                A(f"ds_read_b128 {v(Kf[cur],4)}, {v(vK)} offset:{(t+2)*1024}")
                A(f"ds_read_b128 {v(Vf0[nxt],4)}, {v(vV)} offset:{(t+1)*1024}")
                A(f"ds_read_b128 {v(Vf1[cur],4)}, {v(vV)} offset:{t*1024+512}")
            for x in ex[6:8]: A(x)
            A(cv[2])
            for x in ex[8:10]: A(x)
            A(cv[3])
            for x in ex[10:12]: A(x)
            A(cv[4])
            A(f"{mf} {v(O,16)}, {v(Vf0[cur],4)}, {v(P,4)}, {v(O,16)}")
            for x in ex[12:14]: A(x)
            A(cv[5])
            for x in ex[14:16]: A(x)
            A(cv[6])
            A(cv[7])
    A(f"v_add_u32 {v(vK)}, 4096, {v(vK)}")
    A(f"v_add_u32 {v(vV)}, {v(vVinc)}, {v(vV)}")
    A(f"s_add_u32 {s(sIt)}, {s(sIt)}, 1")
    A(f"s_cmp_lt_u32 {s(sIt)}, {NT//4}")
    A(f"s_cbranch_scc1 KM_LOOP")
    A("s_waitcnt lgkmcnt(0)")
    for b in range(nqb):
        A(f"{mf} {v(QB[b]['O'],16)}, {v(Vf1[1],4)}, {v(QB[b]['P']+4,4)}, {v(QB[b]['O'],16)}")
    A("s_branch KM_FIN")
    A.label("KM_SLOW")
    A(f"s_cmp_ge_u32 {s(sW8)}, 4")
    A(f"s_cbranch_scc1 KM_SLOW2")
    A("s_barrier")
    A.label("KM_SLOW2")
    for b in range(nqb):
        A(f"v_mov_b32 {v(QB[b]['C'])}, {f2u(-3.0e38):#x}")
    A(f"s_mov_b32 {s(sIt)}, 0")
    A.label("KM_SLOOP")
    A(f"ds_read_b128 {v(Kf[0],4)}, {v(vK)}")
    A(f"ds_read_b128 {v(Vf0[0],4)}, {v(vV)}")
    A(f"ds_read_b128 {v(Vf1[0],4)}, {v(vV)} offset:512")
    A("s_waitcnt lgkmcnt(0)")
    for b in range(nqb):
        q = QB[b]; Sx = q["S"][0]; P = q["P"]; O = q["O"]; m = q["C"]; mn = q["C"] + 1; al = q["C"] + 2
        A(f"{mf} {v(Sx,16)}, {v(Kf[0],4)}, {v(Q[b],4)}, 0")
        A(f"v_max_f32 {v(mn)}, {v(Sx)}, {v(Sx+1)}")
        for i in range(2, 16): A(f"v_max_f32 {v(mn)}, {v(mn)}, {v(Sx+i)}")
        swap_add(A, mn, vT1, "v_max_f32")
        A(f"v_max_f32 {v(mn)}, {v(mn)}, {v(m)}")
        A(f"v_sub_f32 {v(al)}, {v(m)}, {v(mn)}")
        A(f"v_exp_f32 {v(al)}, {v(al)}")
        A(f"v_mov_b32 {v(m)}, {v(mn)}")
        for i in range(16): A(f"v_sub_f32 {v(Sx+i)}, {v(Sx+i)}, {v(mn)}")
        for i in range(16): A(f"v_exp_f32 {v(Sx+i)}, {v(Sx+i)}")
        for i in range(16): A(f"v_mul_f32 {v(O+i)}, {v(al)}, {v(O+i)}")
        for i in range(8): A(f"v_cvt_pk_bf16_f32 {v(P+i)}, {v(Sx+2*i)}, {v(Sx+2*i+1)}")
        A(f"{mf} {v(O,16)}, {v(Vf0[0],4)}, {v(P,4)}, {v(O,16)}")
        A(f"{mf} {v(O,16)}, {v(Vf1[0],4)}, {v(P+4,4)}, {v(O,16)}")
    A(f"v_add_u32 {v(vK)}, 1024, {v(vK)}")
    A(f"v_lshrrev_b32 {v(vT0)}, 2, {v(vVinc)}")
    A(f"v_add_u32 {v(vV)}, {v(vT0)}, {v(vV)}")
    A(f"s_add_u32 {s(sIt)}, {s(sIt)}, 1")
    A(f"s_cmp_lt_u32 {s(sIt)}, {NT}")
    A(f"s_cbranch_scc1 KM_SLOOP")
    A(f"s_mov_b32 {s(sIt)}, -1")
    A.label("KM_FIN")
    if prio: A("s_setprio 0")
    K.stamp()
    if ks == 2:
        vM = [V.alloc(), V.alloc()]
        for b in range(2): A(f"v_sub_f32 {v(vM[b])}, 0, {v(QB[b]['C'])}")
        A(f"s_cmp_lg_u32 {s(sIt)}, -1")
        A(f"s_cbranch_scc1 KM_F1")
        for b in range(2): A(f"v_mov_b32 {v(vM[b])}, {v(QB[b]['C'])}")
        A.label("KM_F1")
        snd = QB[0]["S"][0]; kp = QB[0]["S"][1]
        A(f"s_cmp_eq_u32 {s(sKh)}, 0")
        A(f"s_cbranch_scc1 KM_F2")
        for r in range(9):
            A(f"v_mov_b32 {v(snd+r)}, {v(QB[0]['O']+r)}"); A(f"v_mov_b32 {v(kp+r)}, {v(QB[1]['O']+r)}")
        A(f"v_mov_b32 {v(snd+9)}, {v(vM[0])}"); A(f"v_mov_b32 {v(kp+9)}, {v(vM[1])}")
        A("s_branch KM_F3")
        A.label("KM_F2")
        for r in range(9):
            A(f"v_mov_b32 {v(snd+r)}, {v(QB[1]['O']+r)}"); A(f"v_mov_b32 {v(kp+r)}, {v(QB[0]['O']+r)}")
        A(f"v_mov_b32 {v(snd+9)}, {v(vM[1])}"); A(f"v_mov_b32 {v(kp+9)}, {v(vM[0])}")
        A.label("KM_F3")
        A("s_barrier")
        A(f"s_mul_i32 {s(sT0)}, {s(sW8)}, 2560")
        A(f"v_lshlrev_b32 {v(vT2)}, 2, {v(vLane)}")
        A(f"v_add_u32 {v(vT0)}, {s(sT0)}, {v(vT2)}")
        for r in range(10): A(f"ds_write_b32 {v(vT0)}, {v(snd+r)} offset:{r*256}")
        A("s_waitcnt lgkmcnt(0)")
        A("s_barrier")
        A(f"s_xor_b32 {s(sT0)}, {s(sW8)}, 4")
        A(f"s_mul_i32 {s(sT0)}, {s(sT0)}, 2560")
        A(f"v_add_u32 {v(vT0)}, {s(sT0)}, {v(vT2)}")
        for r in range(10): A(f"ds_read_b32 {v(snd+r)}, {v(vT0)} offset:{r*256}")
        A("s_waitcnt lgkmcnt(0)")
        A(f"v_max_f32 {v(vT0)}, {v(kp+9)}, {v(snd+9)}")
        A(f"v_sub_f32 {v(vT1)}, {v(kp+9)}, {v(vT0)}")
        A(f"v_sub_f32 {v(vT2)}, {v(snd+9)}, {v(vT0)}")
        A(f"v_exp_f32 {v(vT1)}, {v(vT1)}")
        A(f"v_exp_f32 {v(vT2)}, {v(vT2)}")
        for r in range(9): A(f"v_mul_f32 {v(kp+r)}, {v(vT1)}, {v(kp+r)}")
        for r in range(9): A(f"v_fmac_f32 {v(kp+r)}, {v(vT2)}, {v(snd+r)}")
        Of = kp
        A(f"s_add_u32 {s(sQt)}, {s(sQt)}, {s(sKh)}")
    else:
        Of = QB[0]["O"]
    if ZROW: swap_add(A, Of + 8, vT1)
    A(f"v_rcp_f32 {v(vT0)}, {v(Of+8)}")
    for r in range(8): A(f"v_mul_f32 {v(Of+r)}, {v(vT0)}, {v(Of+r)}")
    pk = QB[0]["P"]
    for i in range(4): A(f"v_cvt_pk_bf16_f32 {v(pk+i)}, {v(Of+2*i)}, {v(Of+2*i+1)}")
    A(f"s_lshl_b32 {s(sT0)}, {s(sQt)}, 15")
    A(f"s_lshl_b32 {s(sT1)}, {s(sHead)}, 10")
    A(f"s_add_u32 {s(sT0)}, {s(sT0)}, {s(sT1)}")
    A(f"s_add_u32 {s(sT0)}, {s(sT0)}, {WS_OF}")
    A(f"buffer_store_dwordx4 {v(pk,4)}, {v(vL16)}, {s(sO,4)}, {s(sT0)} offen sc1")
    A("s_waitcnt vmcnt(0)")
    A("s_barrier")
    K.stamp()
    V.release(mkV); S.release(mkS)
    sRt, sCt, sR128, sCt4, sTb, sTr, sTi, sQbS = [S.alloc() for _ in range(8)]
    A(f"s_mov_b32 {s(sQbS)}, {s(sJ2)}")
    A(f"s_mov_b32 {s(sXcd)}, {s(sXc)}")
    A(f"s_and_b32 {s(sJ)}, {s(sTk)}, 31")
    A(f"s_and_b32 {s(sJ3)}, {s(sJ)}, 3")
    A(f"s_lshr_b32 {s(sJ2)}, {s(sJ)}, 2")
    A(f"s_lshl_b32 {s(sRt)}, {s(sXcd)}, 2")
    A(f"s_add_u32 {s(sRt)}, {s(sRt)}, {s(sJ3)}")
    A(f"s_mov_b32 {s(sCt)}, {s(sJ2)}")
    A(f"s_and_b32 {s(sTr)}, {s(sW8)}, 1")
    A(f"s_bfe_u32 {s(sTb)}, {s(sW8)}, 0x10001")
    A(f"s_lshr_b32 {s(sTi)}, {s(sW8)}, 2")
    A(f"s_lshl_b32 {s(sR128)}, {s(sXcd)}, 1")
    A(f"s_and_b32 {s(sT0)}, {s(sJ)}, 1")
    A(f"s_add_u32 {s(sR128)}, {s(sR128)}, {s(sT0)}")
    A(f"s_lshr_b32 {s(sCt4)}, {s(sJ)}, 1")
    vBl = V.alloc(); vWoff = V.alloc(); vW1off = V.alloc()
    tr_pi_base(A, vBl, vLane, vHf, vT0, vT1)
    sB1, sB2 = S.alloc(), S.alloc()
    sRw1 = S.alloc(4); sRw2 = S.alloc(4)
    def dma_w1(p):
        A(f"s_lshl_b32 {s(sT1)}, {s(sW)}, 12")
        for c in range(4):
            for q in range(4):
                A(f"s_add_u32 m0, {s(sT1)}, {W1 + p*65536 + c*16384 + q*1024}")
                A(f"s_add_u32 {s(sT0)}, {s(sB1)}, {(128*c + 8*q)*3584 + p*128}")
                A(f"buffer_load_dwordx4 {v(vW1off)}, {s(sRw1,4)}, {s(sT0)} offen lds")
    def dma_w2(c):
        A(f"s_lshl_b32 {s(sT1)}, {s(sW)}, 15")
        for q in range(8):
            A(f"s_add_u32 m0, {s(sT1)}, {W2 + (c&3)*8192 + q*1024}")
            A(f"s_add_u32 {s(sT0)}, {s(sB2)}, {(64*c + 8*q)*1024}")
            A(f"buffer_load_dwordx4 {v(vWoff)}, {s(sRw2,4)}, {s(sT0)} offen lds")
    def dma_w1_all8(p):
        A(f"s_lshl_b32 {s(sT1)}, {s(sW8)}, 13")
        A(f"s_mul_i32 {s(sB)}, {s(sW8)}, {64*3584}")
        A(f"s_lshl_b32 {s(sT0)}, {s(sCt4)}, 8")
        A(f"s_add_u32 {s(sB)}, {s(sB)}, {s(sT0)}")
        for q in range(8):
            A(f"s_add_u32 m0, {s(sT1)}, {W1 + p*65536 + q*1024}")
            A(f"s_add_u32 {s(sT0)}, {s(sB)}, {8*q*3584 + p*128}")
            A(f"buffer_load_dwordx4 {v(vW1off)}, {s(sRw1,4)}, {s(sT0)} offen lds")
    def dma_w2_lo8():
        A(f"s_lshr_b32 {s(sT1)}, {s(sW8)}, 2")
        A(f"s_mul_i32 {s(sB)}, {s(sT1)}, {448*1024}")
        A(f"s_lshl_b32 {s(sT0)}, {s(sCt)}, 7")
        A(f"s_add_u32 {s(sB)}, {s(sB)}, {s(sT0)}")
        A(f"s_lshl_b32 {s(sT0)}, {s(sW)}, 16")
        A(f"s_add_u32 {s(sB)}, {s(sB)}, {s(sT0)}")
        A(f"s_lshl_b32 {s(sT1)}, {s(sW8)}, 13")
        for q in range(8):
            A(f"s_add_u32 m0, {s(sT1)}, {W2 + q*1024}")
            A(f"s_add_u32 {s(sT0)}, {s(sB)}, {8*q*1024}")
            A(f"buffer_load_dwordx4 {v(vWoff)}, {s(sRw2,4)}, {s(sT0)} offen lds")
    def dma_w2_hi_upper():
        A(f"s_lshr_b32 {s(sT1)}, {s(sW)}, 1")
        A(f"s_add_u32 {s(sT1)}, {s(sT1)}, 2")
        A(f"s_mul_i32 {s(sB)}, {s(sT1)}, {448*1024}")
        A(f"s_lshl_b32 {s(sT0)}, {s(sCt)}, 7")
        A(f"s_add_u32 {s(sB)}, {s(sB)}, {s(sT0)}")
        A(f"s_and_b32 {s(sT0)}, {s(sW)}, 1")
        A(f"s_lshl_b32 {s(sT0)}, {s(sT0)}, 17")
        A(f"s_add_u32 {s(sB)}, {s(sB)}, {s(sT0)}")
        A(f"s_lshl_b32 {s(sT1)}, {s(sW)}, 14")
        for q in range(16):
            A(f"s_add_u32 m0, {s(sT1)}, {W2 + 65536 + q*1024}")
            A(f"s_add_u32 {s(sT0)}, {s(sB)}, {8*q*1024}")
            A(f"buffer_load_dwordx4 {v(vWoff)}, {s(sRw2,4)}, {s(sT0)} offen lds")
    sW2b, sW2l = S.alloc(), S.alloc()
    def w2_all16_setup():
        A(f"s_lshr_b32 {s(sT1)}, {s(sW8)}, 1")
        A(f"s_mul_i32 {s(sW2b)}, {s(sT1)}, {448*1024}")
        A(f"s_lshl_b32 {s(sT0)}, {s(sCt)}, 7")
        A(f"s_add_u32 {s(sW2b)}, {s(sW2b)}, {s(sT0)}")
        A(f"s_and_b32 {s(sT0)}, {s(sW8)}, 1")
        A(f"s_lshl_b32 {s(sT0)}, {s(sT0)}, 17")
        A(f"s_add_u32 {s(sW2b)}, {s(sW2b)}, {s(sT0)}")
        A(f"s_lshl_b32 {s(sW2l)}, {s(sW8)}, 14")
    def w2_piece(pc):
        A(f"s_add_u32 m0, {s(sW2l)}, {W2 + pc*1024}")
        A(f"s_add_u32 {s(sW2b)}, {s(sW2b)}, {8192 if pc else 0}")
        A(f"buffer_load_dwordx4 {v(vWoff)}, {s(sRw2,4)}, {s(sW2b)} offen lds")
    def if_upper(tag, body):
        A(f"s_cmp_lt_u32 {s(sW8)}, 4")
        A(f"s_cbranch_scc1 KM_NU_{tag}")
        body()
        A.label(f"KM_NU_{tag}")
    def dma_wo():
        mk = V.mark()
        vXoff = V.alloc()
        A(f"s_and_b32 {s(sT0)}, {s(sW)}, 1")
        A(f"s_lshl_b32 {s(sT0)}, {s(sT0)}, 2")
        A(f"v_lshrrev_b32 {v(vT0)}, 4, {v(vLane)}")
        A(f"v_or_b32 {v(vT0)}, {s(sT0)}, {v(vT0)}")
        A(f"v_and_b32 {v(vT1)}, 7, {v(vLane)}")
        A(f"v_xor_b32 {v(vT0)}, {v(vT0)}, {v(vT1)}")
        A(f"v_lshlrev_b32 {v(vT0)}, 4, {v(vT0)}")
        A(f"v_lshrrev_b32 {v(vT1)}, 3, {v(vLane)}")
        A(f"v_lshlrev_b32 {v(vT1)}, 10, {v(vT1)}")
        A(f"v_add_u32 {v(vXoff)}, {v(vT0)}, {v(vT1)}")
        srd(A, sRa, sPwo, 512 * 512 * 2)
        srd(A, sRb, sPx, 2048 * 512 * 2)
        A(f"s_lshl_b32 {s(sB)}, {s(sW)}, 17")
        A(f"s_lshl_b32 {s(sT0)}, {s(sCt)}, 7")
        A(f"s_add_u32 {s(sB)}, {s(sB)}, {s(sT0)}")
        A(f"s_lshl_b32 {s(sT1)}, {s(sW)}, 14")
        for g in range(16):
            A(f"s_add_u32 m0, {s(sT1)}, {WO + g*1024}")
            A(f"s_add_u32 {s(sT0)}, {s(sB)}, {g*8192}")
            A(f"buffer_load_dwordx4 {v(vWoff)}, {s(sRa,4)}, {s(sT0)} offen lds")
        A(f"s_lshl_b32 {s(sB)}, {s(sRt)}, 16")
        A(f"s_lshl_b32 {s(sT0)}, {s(sCt)}, 7")
        A(f"s_add_u32 {s(sB)}, {s(sB)}, {s(sT0)}")
        A(f"s_lshl_b32 {s(sT0)}, {s(sW)}, 13")
        A(f"s_add_u32 {s(sB)}, {s(sB)}, {s(sT0)}")
        A(f"s_lshl_b32 {s(sT1)}, {s(sW)}, 10")
        for n in range(2):
            A(f"s_add_u32 m0, {s(sT1)}, {XT + n*4096}")
            A(f"s_add_u32 {s(sT0)}, {s(sB)}, {n*32768}")
            A(f"buffer_load_dwordx4 {v(vXoff)}, {s(sRb,4)}, {s(sT0)} offen lds")
        A(f"s_mul_i32 {s(sB1)}, {s(sW)}, {32*3584}")
        A(f"s_lshl_b32 {s(sT0)}, {s(sCt4)}, 8")
        A(f"s_add_u32 {s(sB1)}, {s(sB1)}, {s(sT0)}")
        A(f"s_mul_i32 {s(sB2)}, {s(sW)}, {448*1024}")
        A(f"s_lshl_b32 {s(sT0)}, {s(sCt)}, 7")
        A(f"s_add_u32 {s(sB2)}, {s(sB2)}, {s(sT0)}")
        A("s_waitcnt vmcnt(0)")
        V.release(mk)
    w_voff(A, vWoff, vLane, 1024, vT0, vT1)
    w_voff(A, vW1off, vLane, 3584, vT0, vT1)
    srd(A, sRw1, sP1, 512 * 1792 * 2)
    srd(A, sRw2, sP2, 1792 * 512 * 2)
    if_upper("wo", dma_wo)
    def w0_sync2():
        cnt_off(sCn, 0, lambda d: A(f"s_mov_b32 {s(d)}, {s(sQbS)}"))
        def slot2():
            A(f"s_and_b32 {s(sT0)}, s2, 7")
            A(f"s_lshl_b32 {s(sT0)}, {s(sT0)}, 2")
            A(f"s_bfe_u32 {s(sT1)}, s2, 0x20003")
            A(f"s_add_u32 {s(sT0)}, {s(sT0)}, {s(sT1)}")
        signal(sCn, slot=slot2)
        cnt_off(sCn, 0, lambda d: A(f"s_mov_b32 {s(d)}, {s(sXcd)}"))
        poll(sCn, 32, "2")
    hpk4 = hpk
    mkC = V.mark()
    Af = [V.alloc(4) for _ in range(8)]
    acc = [V.alloc(16) for _ in range(2)]
    Bf = [[V.alloc(4) for _ in range(2)] for _ in range(2)]
    vB = V.alloc(); xr = V.alloc(4)
    sKq = S.alloc()
    A(f"s_lshr_b32 {s(sKq)}, {s(sW8)}, 1")
    A(f"s_lshl_b32 {s(sT0)}, {s(sKq)}, 14")
    A(f"v_add_u32 {v(vB)}, {s(sT0)}, {v(vBl)}")
    A(f"s_lshl_b32 {s(sB)}, {s(sRt)}, 16")
    A(f"s_lshl_b32 {s(sT0)}, {s(sTr)}, 15")
    A(f"s_add_u32 {s(sB)}, {s(sB)}, {s(sT0)}")
    A(f"s_lshl_b32 {s(sT0)}, {s(sKq)}, 13")
    A(f"s_add_u32 {s(sB)}, {s(sB)}, {s(sT0)}")
    A(f"s_add_u32 {s(sB)}, {s(sB)}, {WS_OF}")
    sB4 = S.alloc()
    A(f"s_add_u32 {s(sB4)}, {s(sB)}, 4096")
    only_wave0("2", w0_sync2)
    A("s_barrier")
    K.stamp()
    for i in range(8):
        A(f"buffer_load_dwordx4 {v(Af[i],4)}, {v(vL16)}, {s(sO,4)}, {s(sB if i < 4 else sB4)} offen offset:{(i&3)*1024} sc1")
    def rd3(i):
        for b in range(2):
            A(f"ds_read_b64_tr_b16 {v(Bf[i&1][b],2)}, {v(vB)} offset:{WO + i*2048 + b*512}")
            A(f"ds_read_b64_tr_b16 {v(Bf[i&1][b]+2,2)}, {v(vB)} offset:{WO + i*2048 + b*512 + 1024}")
    rd3(0)
    A(f"v_lshrrev_b32 {v(vT2)}, 1, {v(vTok)}")
    A(f"v_and_b32 {v(vT2)}, 7, {v(vT2)}")
    A(f"s_lshl_b32 {s(sT0)}, {s(sTr)}, 12")
    A(f"s_add_u32 {s(sT0)}, {s(sT0)}, {XT}")
    A(f"v_lshlrev_b32 {v(vT1)}, 7, {v(vTok)}")
    A(f"v_lshl_add_u32 {v(vT1)}, {v(vHf)}, 3, {v(vT1)}")
    A(f"v_add_u32 {v(vT1)}, {s(sT0)}, {v(vT1)}")
    A(f"s_lshl_b32 {s(sT1)}, {s(sTb)}, 2")
    A(f"s_lshl_b32 {s(sT0)}, {s(sTi)}, 1")
    A(f"s_add_u32 {s(sT1)}, {s(sT1)}, {s(sT0)}")
    for a_ in range(2):
        A(f"s_add_u32 {s(sT0)}, {s(sT1)}, {a_}")
        A(f"v_xor_b32 {v(vT0)}, {s(sT0)}, {v(vT2)}")
        A(f"v_lshl_add_u32 {v(vT0)}, {v(vT0)}, 4, {v(vT1)}")
        A(f"ds_read_b64 {v(xr+2*a_,2)}, {v(vT0)}")
    for i in range(8):
        if i + 1 < 8:
            rd3(i + 1)
            A(f"s_waitcnt lgkmcnt(4)")
        else:
            A(f"s_waitcnt lgkmcnt(0)")
        A(f"s_waitcnt vmcnt({7-i})")
        for b in range(2):
            A(f"v_mfma_f32_32x32x16_bf16 {v(acc[b],16)}, {v(Bf[i&1][b],4)}, {v(Af[i],4)}, {'0' if i == 0 else v(acc[b],16)}")
    A(f"s_lshl_b32 {s(sT0)}, {s(sTr)}, 14")
    A(f"s_lshl_b32 {s(sT1)}, {s(sKq)}, 12")
    A(f"s_add_u32 {s(sT0)}, {s(sT0)}, {s(sT1)}")
    A(f"s_add_u32 {s(sT0)}, {s(sT0)}, {RED}")
    A(f"v_add_u32 {v(vT0)}, {s(sT0)}, {v(vL16)}")
    for b in range(2):
        for q in range(4):
            A(f"ds_write_b128 {v(vT0)}, {v(acc[b]+4*q,4)} offset:{b*32768 + q*1024}")
    A("s_waitcnt lgkmcnt(0)")
    A("s_barrier")
    K.stamp()
    def own_reduce(REDB, dst):
        A(f"s_lshl_b32 {s(sT0)}, {s(sW)}, 14")
        A(f"s_lshl_b32 {s(sT1)}, {s(sTi)}, 11")
        A(f"s_add_u32 {s(sT0)}, {s(sT0)}, {s(sT1)}")
        A(f"s_add_u32 {s(sT0)}, {s(sT0)}, {REDB}")
        A(f"v_add_u32 {v(vT0)}, {s(sT0)}, {v(vL16)}")
        for p in range(4):
            for q in range(2):
                A(f"ds_read_b128 {v(dst+8*p+4*q,4)}, {v(vT0)} offset:{p*4096 + q*1024}")
        A("s_waitcnt lgkmcnt(4)")
        for r in range(8): A(f"v_add_f32 {v(dst+r)}, {v(dst+r)}, {v(dst+8+r)}")
        A("s_waitcnt lgkmcnt(0)")
        for r in range(8): A(f"v_add_f32 {v(dst+16+r)}, {v(dst+16+r)}, {v(dst+24+r)}")
        for r in range(8): A(f"v_add_f32 {v(dst+r)}, {v(dst+r)}, {v(dst+16+r)}")
    def w1p0():
        A(f"s_cmp_ge_u32 {s(sJ)}, 28")
        A(f"s_cbranch_scc1 KM_NW1A")
        dma_w1(0)
        A.label("KM_NW1A")
    out = Af[0]
    own_reduce(RED, out)
    un = acc[0]
    for i in range(4):
        A(f"v_lshlrev_b32 {v(un+2*i)}, 16, {v(xr+i)}")
        A(f"v_and_b32 {v(un+2*i+1)}, 0xffff0000, {v(xr+i)}")
    for r in range(8): A(f"v_add_f32 {v(out+r)}, {v(out+r)}, {v(un+r)}")
    for i in range(4): A(f"v_cvt_pk_bf16_f32 {v(hpk4+i)}, {v(out+2*i)}, {v(out+2*i+1)}")
    sR32o, sKs = S.alloc(), S.alloc()
    A(f"s_lshl_b32 {s(sR32o)}, {s(sRt)}, 1")
    A(f"s_add_u32 {s(sR32o)}, {s(sR32o)}, {s(sTr)}")
    A(f"s_lshl_b32 {s(sKs)}, {s(sCt)}, 2")
    A(f"s_lshl_b32 {s(sT0)}, {s(sTb)}, 1")
    A(f"s_add_u32 {s(sKs)}, {s(sKs)}, {s(sT0)}")
    A(f"s_add_u32 {s(sKs)}, {s(sKs)}, {s(sTi)}")
    A(f"s_lshl_b32 {s(sB)}, {s(sR32o)}, 15")
    A(f"s_lshl_b32 {s(sT0)}, {s(sKs)}, 10")
    A(f"s_add_u32 {s(sB)}, {s(sB)}, {s(sT0)}")
    A(f"s_add_u32 {s(sB)}, {s(sB)}, {WS_HF}")
    A(f"buffer_store_dwordx4 {v(hpk4,4)}, {v(vL16)}, {s(sO,4)}, {s(sB)} offen" + LSC)
    for i in range(4):
        A(f"v_lshlrev_b32 {v(un+2*i)}, 16, {v(hpk4+i)}")
        A(f"v_and_b32 {v(un+2*i+1)}, 0xffff0000, {v(hpk4+i)}")
    st = acc[1]
    A(f"v_add_f32 {v(st)}, {v(un)}, {v(un+1)}")
    A(f"v_mul_f32 {v(st+1)}, {v(un)}, {v(un)}")
    A(f"v_fmac_f32 {v(st+1)}, {v(un+1)}, {v(un+1)}")
    for r in range(2, 8):
        A(f"v_add_f32 {v(st)}, {v(st)}, {v(un+r)}")
        A(f"v_fmac_f32 {v(st+1)}, {v(un+r)}, {v(un+r)}")
    swap_add(A, st, vT1)
    swap_add(A, st + 1, vT2)
    A(f"s_lshl_b32 {s(sT0)}, {s(sW8)}, 8")
    A(f"s_add_u32 {s(sT0)}, {s(sT0)}, {STP}")
    A(f"v_lshl_add_u32 {v(vT0)}, {v(vTok)}, 3, {s(sT0)}")
    A(f"ds_write_b64 {v(vT0)}, {v(st,2)}")
    A("s_waitcnt lgkmcnt(0)")
    A("s_barrier")
    A(f"s_cmp_ge_u32 {s(sW8)}, 2")
    A(f"s_cbranch_scc1 KM_NHS")
    for p in range(4): A(f"ds_read_b64 {v(st+2*p,2)}, {v(vT0)} offset:{p*512}")
    A("s_waitcnt lgkmcnt(0)")
    for c in range(2):
        A(f"v_add_f32 {v(st+c)}, {v(st+c)}, {v(st+2+c)}")
        A(f"v_add_f32 {v(st+4+c)}, {v(st+4+c)}, {v(st+6+c)}")
    for c in range(2): A(f"v_add_f32 {v(st+c)}, {v(st+c)}, {v(st+4+c)}")
    A(f"s_lshl_b32 {s(sT0)}, {s(sR32o)}, 11")
    A(f"s_lshl_b32 {s(sT1)}, {s(sCt)}, 8")
    A(f"s_add_u32 {s(sT0)}, {s(sT0)}, {s(sT1)}")
    A(f"s_add_u32 {s(sT0)}, {s(sT0)}, {WS_HS}")
    A(f"v_lshlrev_b32 {v(vT0)}, 3, {v(vTok)}")
    A("s_mov_b32 exec_hi, 0")
    A(f"buffer_store_dwordx2 {v(st,2)}, {v(vT0)}, {s(sO,4)}, {s(sT0)} offen" + LSC)
    A("s_mov_b64 exec, -1")
    A.label("KM_NHS")
    A(f"s_cmp_ge_u32 {s(sJ)}, 28")
    A(f"s_cbranch_scc1 KM_NW1A")
    dma_w1_all8(0)
    A("s_waitcnt vmcnt(8) lgkmcnt(0)")
    A("s_branch KM_NW1B")
    A.label("KM_NW1A")
    if W2R:
        A("s_waitcnt vmcnt(0) lgkmcnt(0)")
    else:
        dma_w2_lo8()
        A("s_waitcnt vmcnt(8) lgkmcnt(0)")
    A.label("KM_NW1B")
    A("s_barrier")
    K.stamp()
    V.release(mkC)
    def sig3():
        def idx(d):
            A(f"s_lshl_b32 {s(d)}, {s(sXcd)}, 1")
            A(f"s_lshr_b32 {s(sT0)}, {s(sJ3)}, 1")
            A(f"s_add_u32 {s(d)}, {s(d)}, {s(sT0)}")
        cnt_off(sCn, 2048, idx)
        def slot3():
            A(f"s_and_b32 {s(sT0)}, {s(sJ3)}, 1")
            A(f"s_lshl_b32 {s(sT0)}, {s(sT0)}, 3")
            A(f"s_add_u32 {s(sT0)}, {s(sT0)}, {s(sJ2)}")
        signal(sCn, LOCAL, slot=slot3)
    only_wave0("3s", sig3)
    A(f"s_cmp_ge_u32 {s(sJ)}, 28")
    A(f"s_cbranch_scc1 KM_NOP4")
    if_upper("w1", lambda: dma_w1(1))
    A("s_waitcnt vmcnt(0)") if False else None
    def w0_sync3():
        cnt_off(sCn, 2048, lambda d: A(f"s_mov_b32 {s(d)}, {s(sR128)}"))
        poll(sCn, 16, "3")
    mk4 = V.mark()
    Af = [V.alloc(4) for _ in range(16)]
    acc = [V.alloc(16) for _ in range(4)]
    Bf = [[V.alloc(4) for _ in range(4)] for _ in range(2)]
    csa = [V.alloc(4)]; msk = V.alloc(4)
    vB = [V.alloc() for _ in range(4)]; vB2 = [V.alloc() for _ in range(4)]
    hs = V.alloc(8, 4); vb1 = V.alloc()
    sR32 = S.alloc(); sQ = [S.alloc() for _ in range(4)]
    srd(A, sRa, sP1 + 2, 1792 * 2)
    A(f"s_lshl_b32 {s(sR32)}, {s(sR128)}, 2")
    A(f"s_add_u32 {s(sR32)}, {s(sR32)}, {s(sW)}")
    A(f"v_lshlrev_b32 {v(vT1)}, 2, {v(vLane)}")
    A(f"s_lshl_b32 {s(sT1)}, {s(sCt4)}, 8")
    A(f"buffer_load_dword {v(vb1)}, {v(vT1)}, {s(sRa,4)}, {s(sT1)} offen")
    for q in range(4):
        A(f"s_xor_b32 {s(sQ[q])}, {s(sW)}, {q}")
        A(f"s_lshl_b32 {s(sQ[q])}, {s(sQ[q])}, 10")
    A(f"s_lshl_b32 {s(sT1)}, {s(sTi)}, 15")
    for q in range(4):
        A(f"s_lshl_b32 {s(sT0)}, {s(sQ[q])}, 1")
        A(f"s_add_u32 {s(sT0)}, {s(sT0)}, {s(sT1)}")
        A(f"v_add_u32 {v(vB[q])}, {s(sT0)}, {v(vBl)}")
        A(f"v_add_u32 {v(vB2[q])}, 65536, {v(vB[q])}")
    A(f"s_cmp_lt_u32 {s(sW8)}, 2")
    A(f"s_cbranch_scc1 KM_NCS")
    A(f"s_cmp_ge_u32 {s(sW8)}, 4")
    A(f"s_cbranch_scc1 KM_NCS")
    A(f"s_and_b32 {s(sT0)}, {s(sW8)}, 1")
    A(f"s_lshl_b32 {s(sT0)}, {s(sT0)}, 8")
    A(f"v_lshlrev_b32 {v(vT1)}, 2, {v(vLane)}")
    A(f"v_add_u32 {v(vT1)}, {s(sT0)}, {v(vT1)}")
    A(f"s_lshl_b32 {s(sT0)}, {s(sCt4)}, 9")
    A(f"s_add_u32 {s(sT0)}, {s(sT0)}, {WS_CSG}")
    for kc in range(8):
        A(f"buffer_load_dword {v(hs+kc)}, {v(vT1)}, {s(sO,4)}, {s(sT0)} offen")
        if kc < 7: A(f"s_add_u32 {s(sT0)}, {s(sT0)}, 7168")
    A("s_waitcnt vmcnt(0)")
    for st_ in (4, 2, 1):
        for i in range(st_): A(f"v_add_f32 {v(hs+i)}, {v(hs+i)}, {v(hs+i+st_)}")
    A(f"v_add_u32 {v(vT1)}, {CS}, {v(vT1)}")
    A(f"ds_write_b32 {v(vT1)}, {v(hs)}")
    A.label("KM_NCS")
    A("s_waitcnt vmcnt(0)")
    A(f"v_lshlrev_b32 {v(hs+2)}, 16, {v(vb1)}")
    A(f"v_and_b32 {v(hs+3)}, 0xffff0000, {v(vb1)}")
    A(f"v_lshlrev_b32 {v(vT0)}, 3, {v(vLane)}")
    A(f"v_add_u32 {v(vT0)}, {BI}, {v(vT0)}")
    A(f"ds_write_b64 {v(vT0)}, {v(hs+2,2)}")
    A(f"s_lshl_b32 {s(sB)}, {s(sR32)}, 15")
    A(f"s_lshl_b32 {s(sT0)}, {s(sTi)}, 14")
    A(f"s_add_u32 {s(sB)}, {s(sB)}, {s(sT0)}")
    A(f"s_add_u32 {s(sB)}, {s(sB)}, {WS_HF}")
    sHs = S.alloc()
    A(f"s_lshl_b32 {s(sHs)}, {s(sR32)}, 11")
    A(f"s_add_u32 {s(sHs)}, {s(sHs)}, {WS_HS}")
    A(f"v_lshlrev_b32 {v(vT2)}, 3, {v(vTok)}")
    A(f"v_lshl_add_u32 {v(vT2)}, {v(vHf)}, 10, {v(vT2)}")
    for q in range(4): A(f"s_add_u32 {s(sQ[q])}, {s(sQ[q])}, {s(sB)}")
    A("s_waitcnt vmcnt(0) lgkmcnt(0)")
    only_wave0("3", w0_sync3)
    K.stamp(1)
    A("s_barrier")
    K.stamp()
    def lda4(g):
        for q in range(4):
            if g: A(f"s_add_u32 {s(sQ[q])}, {s(sQ[q])}, 4096")
            A(f"buffer_load_dwordx4 {v(Af[4*g+q],4)}, {v(vL16)}, {s(sO,4)}, {s(sQ[q])} offen" + LLD)
    lda4(0)
    for i in range(4):
        A(f"buffer_load_dwordx2 {v(hs+2*i,2)}, {v(vT2)}, {s(sO,4)}, {s(sHs)} offen offset:{i*256}" + LLD)
    lda4(1)
    def rd4(n):
        for t in range(4):
            p, b = t >> 1, t & 1
            o = (n >> 2) * 8192 + b * 512
            base = (vB if p == 0 else vB2)[n & 3]
            A(f"ds_read_b64_tr_b16 {v(Bf[n&1][t],2)}, {v(base)} offset:{o}")
            A(f"ds_read_b64_tr_b16 {v(Bf[n&1][t]+2,2)}, {v(base)} offset:{o+1024}")
    rd4(0)
    A(f"v_lshlrev_b32 {v(acc[0])}, 16, {v(vb1)}") if False else None
    for n in range(16):
        if n + 1 < 16:
            rd4(n + 1)
            A("s_waitcnt lgkmcnt(8)")
        else:
            A("s_waitcnt lgkmcnt(0)")
        if n % 4 == 0: A(f"s_waitcnt vmcnt({ {0: 8, 4: 8, 8: 4, 12: 0}[n] })")
        for t in range(4):
            A(f"v_mfma_f32_32x32x16_bf16 {v(acc[t],16)}, {v(Bf[n&1][t],4)}, {v(Af[n],4)}, {'0' if n == 0 else v(acc[t],16)}")
        if n in (0, 1): lda4(n + 2)
    K.stamp()
    for st_ in (2, 1):
        for i in range(st_):
            A(f"v_add_f32 {v(hs+2*i)}, {v(hs+2*i)}, {v(hs+2*(i+st_))}")
            A(f"v_add_f32 {v(hs+2*i+1)}, {v(hs+2*i+1)}, {v(hs+2*(i+st_)+1)}")
    swap_add(A, hs, vT1)
    swap_add(A, hs + 1, vT2)
    A("s_waitcnt lgkmcnt(0)")
    A("s_barrier")
    A(f"s_lshl_b32 {s(sT0)}, {s(sW8)}, 13")
    A(f"s_add_u32 {s(sT0)}, {s(sT0)}, 65536")
    A(f"v_add_u32 {v(vT0)}, {s(sT0)}, {v(vL16)}")
    A(f"s_cmp_eq_u32 {s(sTi)}, 0")
    A(f"s_cbranch_scc1 KM_E1")
    for t in range(2):
        for q in range(4): A(f"ds_write_b128 {v(vT0)}, {v(acc[t]+4*q,4)} offset:{t*4096 + q*1024}")
    for r in range(32): A(f"v_mov_b32 {v(acc[0]+r)}, {v(acc[2]+r)}")
    A("s_branch KM_E2")
    A.label("KM_E1")
    for t in range(2):
        for q in range(4): A(f"ds_write_b128 {v(vT0)}, {v(acc[2+t]+4*q,4)} offset:{t*4096 + q*1024}")
    A.label("KM_E2")
    A("s_waitcnt lgkmcnt(0)")
    A("s_barrier")
    K.stamp()
    A(f"s_xor_b32 {s(sT0)}, {s(sW8)}, 4")
    A(f"s_lshl_b32 {s(sT0)}, {s(sT0)}, 13")
    A(f"s_add_u32 {s(sT0)}, {s(sT0)}, 65536")
    A(f"v_add_u32 {v(vT0)}, {s(sT0)}, {v(vL16)}")
    for t in range(2):
        for q in range(4): A(f"ds_read_b128 {v(acc[2+t]+4*q,4)}, {v(vT0)} offset:{t*4096 + q*1024}")
    def R(i): return Af[0] + 16 * i
    A(f"s_lshl_b32 {s(sT0)}, {s(sTi)}, 8")
    A(f"s_add_u32 {s(sT0)}, {s(sT0)}, {CS}")
    A(f"v_lshl_add_u32 {v(vT2)}, {v(vHf)}, 4, {s(sT0)}")
    for t in range(2):
        for a_ in range(4): A(f"ds_read_b128 {v(R(t)+4*a_,4)}, {v(vT2)} offset:{t*128 + a_*32}")
    A("s_waitcnt lgkmcnt(8)")
    vMean, vRs, vMr = csa[0], csa[0] + 1, csa[0] + 2
    vC1, vC2 = msk, msk + 1
    c1 = -2.0 * 0.7978845608028654 * LOG2E
    c2 = c1 * 0.044715
    A(f"v_mul_f32 {v(vMean)}, {f2u(1/512.):#x}, {v(hs)}")
    A(f"v_mul_f32 {v(vT1)}, {v(vMean)}, {v(vMean)}")
    A(f"v_mov_b32 {v(vT0)}, {f2u(1/512.):#x}")
    A(f"v_fma_f32 {v(vT1)}, {v(hs+1)}, {v(vT0)}, -{v(vT1)}")
    A(f"v_max_f32 {v(vT1)}, 0, {v(vT1)}")
    A(f"v_add_f32 {v(hs+2)}, {f2u(1e-5):#x}, {v(vT1)}")
    A(f"v_rcp_f32 {v(vT0)}, {v(hs+2)}")
    A(f"v_rsq_f32 {v(vRs)}, {v(hs+2)}")
    A(f"v_mul_f32 {v(vT1)}, {v(vT1)}, {v(vT0)}")
    A(f"v_add_f32 {v(vT1)}, {f2u(1e-5):#x}, {v(vT1)}")
    A(f"v_rsq_f32 {v(vT1)}, {v(vT1)}")
    A(f"v_mov_b32 {v(vC1)}, {f2u(c1):#x}")
    A(f"v_mov_b32 {v(vC2)}, {f2u(c2):#x}")
    A(f"v_mul_f32 {v(vRs)}, {v(vRs)}, {v(vT1)}")
    A(f"v_mul_f32 {v(vMr)}, {v(vMean)}, {v(vRs)}")
    for t in range(2):
        for a_ in range(4): A(f"ds_read_b128 {v(R(2+t)+4*a_,4)}, {v(vT2)} offset:{512 + t*128 + a_*32}")
    if W2R:
        A("s_waitcnt lgkmcnt(8)")
        A("s_barrier")
        w2_all16_setup()
    for r in range(32): A(f"v_add_f32 {v(acc[0]+r)}, {v(acc[0]+r)}, {v(acc[2]+r)}")
    A(f"s_mul_i32 {s(sB)}, {s(sR32)}, {112*1024}")
    A(f"s_lshl_b32 {s(sT0)}, {s(sCt4)}, 13")
    A(f"s_add_u32 {s(sB)}, {s(sB)}, {s(sT0)}")
    A(f"s_lshl_b32 {s(sT0)}, {s(sTi)}, 12")
    A(f"s_add_u32 {s(sB)}, {s(sB)}, {s(sT0)}")
    A(f"s_add_u32 {s(sB)}, {s(sB)}, {WS_MF}")
    A("s_waitcnt lgkmcnt(0)")
    pcs = list(range(16)) if W2R else []
    def dm():
        for _ in range(2):
            if pcs: w2_piece(pcs.pop(0))
    for t in range(2):
        x = acc[t]; T = R(2 + t); Z = acc[2 + t]
        for r in range(16): A(f"v_fma_f32 {v(T+r)}, -{v(vMr)}, {v(R(t)+r)}, {v(T+r)}")
        dm()
        for r in range(16): A(f"v_fma_f32 {v(x+r)}, {v(x+r)}, {v(vRs)}, {v(T+r)}")
        dm()
        for r in range(16): A(f"v_mul_f32 {v(Z+r)}, {v(x+r)}, {v(x+r)}")
        dm()
        for r in range(16): A(f"v_fma_f32 {v(Z+r)}, {v(Z+r)}, {v(vC2)}, {v(vC1)}")
        dm()
        for r in range(16): A(f"v_mul_f32 {v(Z+r)}, {v(Z+r)}, {v(x+r)}")
        dm()
        for r in range(16): A(f"v_exp_f32 {v(Z+r)}, {v(Z+r)}")
        dm()
        for r in range(16): A(f"v_add_f32 {v(Z+r)}, 1.0, {v(Z+r)}")
        dm()
        for r in range(16): A(f"v_rcp_f32 {v(Z+r)}, {v(Z+r)}")
        dm()
        for r in range(16): A(f"v_mul_f32 {v(x+r)}, {v(x+r)}, {v(Z+r)}")
        pk = R(t)
        for i in range(8): A(f"v_cvt_pk_bf16_f32 {v(pk+i)}, {v(x+2*i)}, {v(x+2*i+1)}")
        A(f"buffer_store_dwordx4 {v(pk,4)}, {v(vL16)}, {s(sO,4)}, {s(sB)} offen offset:{t*2048}" + LSC)
        A(f"buffer_store_dwordx4 {v(pk+4,4)}, {v(vL16)}, {s(sO,4)}, {s(sB)} offen offset:{t*2048+1024}" + LSC)
    assert not pcs
    if W2R:
        A("s_waitcnt vmcnt(0)")
    else:
        dma_w2_lo8()
        A("s_waitcnt vmcnt(8)")
    A("s_barrier")
    K.stamp()
    def sig4():
        cnt_off(sCn, 6144, lambda d: A(f"s_mov_b32 {s(d)}, {s(sR128)}"))
        signal(sCn, LOCAL, slot=lambda: A(f"s_mov_b32 {s(sT0)}, {s(sCt4)}"))
    only_wave0("4s", sig4)
    V.release(mk4)
    if W2R:
        A("s_branch KM_P5")
        A.label("KM_NOP4")
        w2_all16_setup()
        for pc in range(16): w2_piece(pc)
        A.label("KM_P5")
    else:
        A.label("KM_NOP4")
    mkPR = V.mark()
    PR = V.alloc(96)
    V.release(mkPR)
    def w2_regs():
        for pc in range(24):
            A(f"s_add_u32 {s(sT0)}, {s(sB2)}, {(256 + 8*pc)*1024}")
            A(f"buffer_load_dwordx4 {v(PR+4*pc,4)}, {v(vWoff)}, {s(sRw2,4)}, {s(sT0)} offen")
    if_upper("w2", w2_regs if W2R else dma_w2_hi_upper)
    def w0_sync4():
        def idx(d):
            A(f"s_lshl_b32 {s(d)}, {s(sXcd)}, 1")
            A(f"s_lshr_b32 {s(sT0)}, {s(sJ3)}, 1")
            A(f"s_add_u32 {s(d)}, {s(d)}, {s(sT0)}")
        cnt_off(sCn, 6144, idx)
        poll(sCn, 14, "4")
    NW = 12
    Af = [[V.alloc(4) for _ in range(2)] for _ in range(NW)]
    acc = [V.alloc(16) for _ in range(4)]
    Bf = [[V.alloc(4) for _ in range(2)] for _ in range(2)]
    vB = V.alloc(); b2r = V.alloc(4)
    sA0, sA1 = S.alloc(), S.alloc()
    srd(A, sRa, sP2 + 2, 512 * 2)
    srd(A, sRb, sPo, 2048 * 512 * 2)
    A(f"s_lshl_b32 {s(sT0)}, {s(sCt)}, 7")
    A(f"s_lshl_b32 {s(sT1)}, {s(sTb)}, 6")
    A(f"s_add_u32 {s(sT0)}, {s(sT0)}, {s(sT1)}")
    A(f"s_lshl_b32 {s(sT1)}, {s(sTi)}, 5")
    A(f"s_add_u32 {s(sT0)}, {s(sT0)}, {s(sT1)}")
    A(f"v_lshlrev_b32 {v(vT0)}, 3, {v(vHf)}")
    for a_ in range(2):
        A(f"buffer_load_dwordx2 {v(b2r+2*a_,2)}, {v(vT0)}, {s(sRa,4)}, {s(sT0)} offen offset:{a_*16}")
    A(f"s_cmp_lt_u32 {s(sW8)}, 4")
    A(f"s_cbranch_scc1 KM_C5")
    A("s_waitcnt vmcnt(0)")
    A("s_barrier")
    if W2R:
        A(f"s_lshl_b32 {s(sT0)}, {s(sW)}, 15")
        A(f"v_add_u32 {v(vT0)}, {s(sT0)}, {v(vL16)}")
    for y in range(1, 7):
        if y >= 4: A(f"s_waitcnt lgkmcnt(0)" if W2R else f"s_waitcnt vmcnt({8*(6-y)})")
        A("s_barrier")
        if y + 3 < 7:
            if W2R:
                c = y + 3
                for q in range(8):
                    A(f"ds_write_b128 {v(vT0)}, {v(PR+4*(8*(c-4)+q),4)} offset:{W2 + (c&3)*8192 + q*1024}")
            else:
                dma_w2(y + 3)
    A("s_barrier")
    A("s_branch KM_Z")
    A.label("KM_C5")
    A(f"s_mul_i32 {s(sA0)}, {s(sRt)}, {2*112*1024}")
    A(f"s_mul_i32 {s(sT0)}, {s(sW)}, {28*1024}")
    A(f"s_add_u32 {s(sA0)}, {s(sA0)}, {s(sT0)}")
    A(f"s_add_u32 {s(sA0)}, {s(sA0)}, {WS_MF}")
    A(f"s_add_u32 {s(sA1)}, {s(sA0)}, {112*1024}")
    A(f"s_lshl_b32 {s(sT0)}, {s(sW)}, 15")
    A(f"v_add_u32 {v(vB)}, {s(sT0)}, {v(vBl)}")
    def lda(n):
        for r, sa in ((0, sA0), (1, sA1)):
            if n % 4 == 0 and n: A(f"s_add_u32 {s(sa)}, {s(sa)}, 4096")
            A(f"buffer_load_dwordx4 {v(Af[n % NW][r],4)}, {v(vL16)}, {s(sO,4)}, {s(sa)} offen offset:{(n&3)*1024}" + LLD)
    def rd5(n):
        c, i = n >> 2, n & 3
        for b in range(2):
            o = W2 + (c & 3) * 8192 + i * 2048 + b * 512
            A(f"ds_read_b64_tr_b16 {v(Bf[n&1][b],2)}, {v(vB)} offset:{o}")
            A(f"ds_read_b64_tr_b16 {v(Bf[n&1][b]+2,2)}, {v(vB)} offset:{o+1024}")
    A("s_waitcnt vmcnt(0)")
    only_wave0("4", w0_sync4)
    K.stamp(2)
    A("s_barrier")
    K.stamp()
    issued = 3
    for n in range(issued): lda(n)
    rd5(0)
    for n in range(28):
        if n + 1 < 28:
            if (n + 1) % 4 == 0:
                A("s_waitcnt lgkmcnt(0)")
                A("s_barrier")
            rd5(n + 1)
            A("s_waitcnt lgkmcnt(4)")
        else:
            A("s_waitcnt lgkmcnt(0)")
        A(f"s_waitcnt vmcnt({2*(issued - 1 - n)})")
        for b in range(2):
            for r in range(2):
                t = 2 * b + r
                A(f"v_mfma_f32_32x32x16_bf16 {v(acc[t],16)}, {v(Bf[n&1][b],4)}, {v(Af[n%NW][r],4)}, {'0' if n == 0 else v(acc[t],16)}")
        tgt = min(28, n + 1 + WIN5, issued + 2)
        while issued < tgt:
            lda(issued); issued += 1
    K.stamp()
    A("s_barrier")
    A(f"s_lshl_b32 {s(sT0)}, {s(sW)}, 12")
    A(f"s_add_u32 {s(sT0)}, {s(sT0)}, {RED5}")
    A(f"v_add_u32 {v(vT0)}, {s(sT0)}, {v(vL16)}")
    for t in range(4):
        for q in range(4):
            A(f"ds_write_b128 {v(vT0)}, {v(acc[t]+4*q,4)} offset:{t*16384 + q*1024}")
    A("s_waitcnt lgkmcnt(0)")
    A.label("KM_Z")
    A("s_barrier")
    out = Af[0][0]
    own_reduce(RED5, out)
    un = acc[0]
    for i in range(4):
        A(f"v_lshlrev_b32 {v(un+2*i)}, 16, {v(hpk4+i)}")
        A(f"v_and_b32 {v(un+2*i+1)}, 0xffff0000, {v(hpk4+i)}")
    for r in range(8): A(f"v_add_f32 {v(out+r)}, {v(out+r)}, {v(un+r)}")
    A("s_waitcnt vmcnt(0)")
    for i in range(4):
        A(f"v_lshlrev_b32 {v(un+2*i)}, 16, {v(b2r+i)}")
        A(f"v_and_b32 {v(un+2*i+1)}, 0xffff0000, {v(b2r+i)}")
    for r in range(8): A(f"v_add_f32 {v(out+r)}, {v(out+r)}, {v(un+r)}")
    pk = acc[1]
    for i in range(4): A(f"v_cvt_pk_bf16_f32 {v(pk+i)}, {v(out+2*i)}, {v(out+2*i+1)}")
    A(f"v_permlane32_swap_b32 {v(pk)}, {v(pk+2)}")
    A(f"v_permlane32_swap_b32 {v(pk+1)}, {v(pk+3)}")
    A(f"s_lshl_b32 {s(sT0)}, {s(sRt)}, 16")
    A(f"s_lshl_b32 {s(sT1)}, {s(sTr)}, 15")
    A(f"s_add_u32 {s(sT0)}, {s(sT0)}, {s(sT1)}")
    A(f"s_lshl_b32 {s(sT1)}, {s(sCt)}, 7")
    A(f"s_add_u32 {s(sT0)}, {s(sT0)}, {s(sT1)}")
    A(f"s_lshl_b32 {s(sT1)}, {s(sTb)}, 6")
    A(f"s_add_u32 {s(sT0)}, {s(sT0)}, {s(sT1)}")
    A(f"s_lshl_b32 {s(sT1)}, {s(sTi)}, 5")
    A(f"s_add_u32 {s(sT0)}, {s(sT0)}, {s(sT1)}")
    A(f"v_lshlrev_b32 {v(vT0)}, 10, {v(vTok)}")
    A(f"v_lshl_add_u32 {v(vT0)}, {v(vHf)}, 4, {v(vT0)}")
    A(f"buffer_store_dwordx4 {v(pk,4)}, {v(vT0)}, {s(sRb,4)}, {s(sT0)} offen")
    K.stamp_out(sO, 1, vT0, vT1)
    K.rt_end(sO, 1, vT0, vT1)
    A.label(END)
    A("s_endpgm")
    print("km vgprs", V.hi, "sgprs", S.hi, "lds", K.lds)
    return K

def k1b():
    K = Kern("k1_qkv_kernel", (256, 1, 1), (512, 1, 1), 134656)
    A, V, S = K.A, K.V, K.S
    END = "K1_END"
    sWs = S.alloc(2); sPx = S.alloc(2); sPq = S.alloc(2); sP1 = S.alloc(4)
    A(f"s_load_dwordx4 {s(sPx if sPx % 4 == 0 else sPx,2)}, s[0:1], 0") if False else None
    A(f"s_load_dwordx2 {s(sPx,2)}, s[0:1], 0")
    A(f"s_load_dwordx2 {s(sPq,2)}, s[0:1], 8")
    A(f"s_load_dwordx2 {s(sWs,2)}, s[0:1], 80")
    A(f"s_load_dwordx4 {s(sP1,4)}, s[0:1], 32")
    A(f"s_cmp_ge_u32 s2, 256")
    A(f"s_cbranch_scc1 {END}")
    K.rt_begin()
    K.stamp()
    sO = S.alloc(4); sRa = S.alloc(4); sRb = S.alloc(4)
    sW8, sW, sXcd, sJ, sT0, sT1, sB, sJ3, sJ2, sCn = [S.alloc() for _ in range(10)]
    sSave = S.alloc(2)
    vLane, vT0, vT1, vT2, vHf, vTok, vL16 = [V.alloc() for _ in range(7)]
    wave_ids(K, sW8, sW, vLane, vT0)
    A(f"s_and_b32 {s(sXcd)}, s2, 7")
    A(f"s_lshr_b32 {s(sJ)}, s2, 3")
    A(f"v_lshlrev_b32 {v(vL16)}, 4, {v(vLane)}")
    A(f"v_lshrrev_b32 {v(vHf)}, 5, {v(vLane)}")
    A(f"v_and_b32 {v(vTok)}, 31, {v(vLane)}")
    K1SC = ' sc1' if 'k1sc1' in G.FLAGS else ''
    XR = 0; WR = 32768; CS1 = WR + 4 * 24576; ST1 = CS1 + 1536
    mkV1 = V.mark(); mkS1 = S.mark()
    sRt1, sHq, sRot, sXb, sWb, sLx, sLw, sx, sw, sTt, sCh = [S.alloc() for _ in range(11)]
    A(f"s_and_b32 {s(sT0)}, {s(sXcd)}, 3")
    A(f"s_lshl_b32 {s(sT0)}, {s(sT0)}, 3")
    A(f"s_and_b32 {s(sT1)}, {s(sJ)}, 7")
    A(f"s_add_u32 {s(sRt1)}, {s(sT0)}, {s(sT1)}")
    A(f"s_lshr_b32 {s(sT0)}, {s(sXcd)}, 2")
    A(f"s_lshl_b32 {s(sT0)}, {s(sT0)}, 2")
    A(f"s_lshr_b32 {s(sHq)}, {s(sJ)}, 3")
    A(f"s_lshl_b32 {s(sRot)}, {s(sHq)}, 1")
    A(f"s_add_u32 {s(sRot)}, {s(sRot)}, {s(sT1)}")
    A(f"s_add_u32 {s(sRot)}, {s(sRot)}, {s(sXcd)}")
    A(f"s_add_u32 {s(sHq)}, {s(sHq)}, {s(sT0)}")
    A(f"s_and_b32 {s(sTt)}, {s(sW)}, 1")
    A(f"s_lshr_b32 {s(sCh)}, {s(sW)}, 1")
    A(f"s_cmp_lt_u32 {s(sW8)}, 4")
    A(f"s_cbranch_scc1 K1B_P1C")
    mkL1 = V.mark()
    vWoff1, vXoff1 = V.alloc(), V.alloc()
    R0 = V.alloc(32); AC = V.alloc(8); UN = V.alloc(8); vo = V.alloc()
    sKc, sCt28, sFl = S.alloc(), S.alloc(), S.alloc()
    sPFt = S.alloc(4)
    A(f"s_mul_i32 {s(sWb)}, {s(sW)}, {8*3072}")
    A(f"s_lshl_b32 {s(sT0)}, {s(sHq)}, 7")
    A(f"s_add_u32 {s(sWb)}, {s(sWb)}, {s(sT0)}")
    A(f"s_lshl_b32 {s(sLx)}, {s(sW)}, 10")
    A(f"s_add_u32 {s(sLw)}, {s(sLx)}, {WR}")
    w_voff(A, vWoff1, vLane, 3072, vT0, vT1)
    A(f"s_lshl_b32 {s(sXb)}, {s(sRt1)}, 16")
    A(f"s_lshl_b32 {s(sT0)}, {s(sW)}, 13")
    A(f"s_add_u32 {s(sXb)}, {s(sXb)}, {s(sT0)}")
    A(f"s_lshl_b32 {s(sT0)}, {s(sTt)}, 2")
    A(f"v_lshrrev_b32 {v(vT0)}, 4, {v(vLane)}")
    A(f"v_or_b32 {v(vT0)}, {s(sT0)}, {v(vT0)}")
    A(f"v_and_b32 {v(vT1)}, 7, {v(vLane)}")
    A(f"v_xor_b32 {v(vT0)}, {v(vT0)}, {v(vT1)}")
    A(f"v_lshlrev_b32 {v(vT0)}, 4, {v(vT0)}")
    A(f"v_lshrrev_b32 {v(vT1)}, 3, {v(vLane)}")
    A(f"v_lshlrev_b32 {v(vT1)}, 10, {v(vT1)}")
    A(f"v_add_u32 {v(vXoff1)}, {v(vT0)}, {v(vT1)}")
    A("s_waitcnt lgkmcnt(0)")
    srd(A, sRa, sPq, 512 * 1536 * 2)
    srd(A, sRb, sPx, 2048 * 512 * 2)
    srd(A, sO, sWs, WS_SIZE)
    def dma_stage1(st):
        slot = st & 3
        A(f"s_add_u32 {s(sT0)}, {s(sRot)}, {st}")
        A(f"s_and_b32 {s(sT0)}, {s(sT0)}, 7")
        A(f"s_lshl_b32 {s(sx)}, {s(sT0)}, 7")
        A(f"s_add_u32 {s(sx)}, {s(sx)}, {s(sXb)}")
        A(f"s_mul_i32 {s(sw)}, {s(sT0)}, {64*3072}")
        A(f"s_add_u32 {s(sw)}, {s(sw)}, {s(sWb)}")
        for n in range(2):
            A(f"s_add_u32 m0, {s(sLx)}, {XR + slot*8192 + n*4096}")
            A(f"s_add_u32 {s(sT1)}, {s(sx)}, {n*32768}")
            A(f"buffer_load_dwordx4 {v(vXoff1)}, {s(sRb,4)}, {s(sT1)} offen lds")
        for b in range(3):
            for n in range(2):
                A(f"s_add_u32 m0, {s(sLw)}, {slot*24576 + b*8192 + n*4096}")
                A(f"s_add_u32 {s(sT1)}, {s(sw)}, {b*1024 + n*32*3072}")
                A(f"buffer_load_dwordx4 {v(vWoff1)}, {s(sRa,4)}, {s(sT1)} offen lds")
    A(f"s_cmp_lg_u32 {s(sW8)}, 5")
    A(f"s_cbranch_scc1 K1B_NOZ")
    A(f"s_cmp_ge_u32 s2, 57")
    A(f"s_cbranch_scc1 K1B_NOZ")
    A(f"s_lshl_b32 {s(sT0)}, s2, 8")
    A(f"s_add_u32 {s(sT0)}, {s(sT0)}, {WS_CNT}")
    A(f"v_mov_b32 {v(vT0)}, 0")
    A(f"v_mov_b32 {v(vT1)}, 0")
    A(f"s_mov_b64 exec, 1")
    A(f"buffer_store_dword {v(vT1)}, {v(vT0)}, {s(sO,4)}, {s(sT0)} offen")
    A(f"s_mov_b64 exec, -1")
    A.label("K1B_NOZ")
    dma_stage1(0); dma_stage1(1)
    A("s_waitcnt vmcnt(8)")
    A("s_barrier")
    dma_stage1(2); dma_stage1(3)
    for sp in range(1, 8):
        vm = {1: 16, 2: 16, 3: 16, 4: 16, 5: 16, 6: 8, 7: 0}[sp]
        A(f"s_waitcnt vmcnt({vm})")
        A("s_barrier")
        if sp + 3 < 8: dma_stage1(sp + 3)
    A(f"s_mov_b32 {s(sFl)}, 0")
    A(f"s_cmp_lg_u32 {s(sW8)}, 4")
    A(f"s_cbranch_scc1 K1B_NOCS0")
    A(f"s_cmp_ge_u32 s2, 224")
    A(f"s_cbranch_scc1 K1B_NOCS0")
    A(f"s_mov_b32 {s(sFl)}, 1")
    A(f"s_mul_i32 {s(sKc)}, s2, 2341")
    A(f"s_lshr_b32 {s(sKc)}, {s(sKc)}, 16")
    A(f"s_mul_i32 {s(sCt28)}, {s(sKc)}, 28")
    A(f"s_sub_u32 {s(sCt28)}, s2, {s(sCt28)}")
    A(f"v_lshrrev_b32 {v(vo)}, 3, {v(vLane)}")
    A(f"v_mul_u32_u24 {v(vo)}, 3584, {v(vo)}")
    A(f"v_and_b32 {v(vT0)}, 7, {v(vLane)}")
    A(f"v_lshl_add_u32 {v(vo)}, {v(vT0)}, 4, {v(vo)}")
    A(f"s_mul_i32 {s(sT0)}, {s(sKc)}, {64*3584}")
    A(f"s_lshl_b32 {s(sT1)}, {s(sCt28)}, 7")
    A(f"s_add_u32 {s(sT0)}, {s(sT0)}, {s(sT1)}")
    A(f"s_mov_b32 {s(sPFt)}, {s(sP1)}")
    A(f"s_and_b32 {s(sPFt+1)}, {s(sP1+1)}, 0xffff")
    A(f"s_mov_b32 {s(sPFt+2)}, {512*1792*2}")
    A(f"s_mov_b32 {s(sPFt+3)}, 0x20000")
    for n in range(8):
        A(f"buffer_load_dwordx4 {v(R0+4*n,4)}, {v(vo)}, {s(sPFt,4)}, {s(sT0)} offen")
        A(f"s_add_u32 {s(sT0)}, {s(sT0)}, {8*3584}")
    A.label("K1B_NOCS0")
    A("s_barrier")
    A(f"s_cmp_lg_u32 {s(sW8)}, 4")
    A(f"s_cbranch_scc1 K1B_NOCS1")
    A(f"s_cmp_eq_u32 {s(sFl)}, 0")
    A(f"s_cbranch_scc1 K1B_NOCS1")
    A("s_waitcnt vmcnt(0)")
    for i in range(8): A(f"v_mov_b32 {v(AC+i)}, 0")
    for n in range(8):
        for i in range(4):
            A(f"v_lshlrev_b32 {v(UN+2*i)}, 16, {v(R0+4*n+i)}")
            A(f"v_and_b32 {v(UN+2*i+1)}, 0xffff0000, {v(R0+4*n+i)}")
        for i in range(8): A(f"v_add_f32 {v(AC+i)}, {v(AC+i)}, {v(UN+i)}")
    for i in range(8): A(f"v_add_f32_dpp {v(AC+i)}, {v(AC+i)}, {v(AC+i)} row_ror:8 row_mask:0xf bank_mask:0xf")
    for sw_ in ("v_permlane16_swap_b32", "v_permlane32_swap_b32"):
        for i in range(8): A(f"v_mov_b32 {v(UN+i)}, {v(AC+i)}")
        for i in range(8): A(f"{sw_} {v(AC+i)}, {v(UN+i)}")
        for i in range(8): A(f"v_add_f32 {v(AC+i)}, {v(AC+i)}, {v(UN+i)}")
    A(f"s_mul_i32 {s(sT0)}, {s(sKc)}, 7168")
    A(f"s_lshl_b32 {s(sT1)}, {s(sCt28)}, 8")
    A(f"s_add_u32 {s(sT0)}, {s(sT0)}, {s(sT1)}")
    A(f"s_add_u32 {s(sT0)}, {s(sT0)}, {WS_CSG}")
    A(f"v_and_b32 {v(vT0)}, 7, {v(vLane)}")
    A(f"v_lshlrev_b32 {v(vT0)}, 5, {v(vT0)}")
    A(f"s_mov_b64 exec, 0xff")
    A(f"buffer_store_dwordx4 {v(AC,4)}, {v(vT0)}, {s(sO,4)}, {s(sT0)} offen")
    A(f"buffer_store_dwordx4 {v(AC+4,4)}, {v(vT0)}, {s(sO,4)}, {s(sT0)} offen offset:16")
    A(f"s_mov_b64 exec, -1")
    A.label("K1B_NOCS1")
    A("s_endpgm")
    V.release(mkL1)
    A.label("K1B_P1C")
    vXA = [V.alloc() for _ in range(4)]; vWA = [V.alloc() for _ in range(8)]
    acc = [V.alloc(16) for _ in range(3)]
    sq = V.alloc(8); sm = V.alloc(8)
    mk = V.mark()
    csa = [V.alloc(4) for _ in range(3)]; msk = V.alloc(4)
    Xf = [V.alloc(4) for _ in range(2)]
    Wf = [[V.alloc(4) for _ in range(3)] for _ in range(2)]
    un = V.alloc(8); vMask = V.alloc()
    A(f"v_lshrrev_b32 {v(vT2)}, 1, {v(vTok)}")
    A(f"v_and_b32 {v(vT2)}, 7, {v(vT2)}")
    A(f"s_lshl_b32 {s(sT1)}, {s(sTt)}, 12")
    for pos in range(4):
        A(f"s_xor_b32 {s(sT0)}, {s(sW)}, {pos}")
        A(f"s_lshl_b32 {s(sT0)}, {s(sT0)}, 1")
        A(f"v_add_u32 {v(vT0)}, {s(sT0)}, {v(vHf)}")
        A(f"v_xor_b32 {v(vT0)}, {v(vT0)}, {v(vT2)}")
        A(f"v_lshlrev_b32 {v(vT0)}, 4, {v(vT0)}")
        A(f"v_lshl_add_u32 {v(vT0)}, {v(vTok)}, 7, {v(vT0)}")
        A(f"v_add_u32 {v(vXA[pos])}, {s(sT1)}, {v(vT0)}")
    A(f"v_and_b32 {v(vT0)}, 15, {v(vLane)}")
    A(f"v_lshrrev_b32 {v(vT1)}, 2, {v(vT0)}")
    A(f"v_lshlrev_b32 {v(vT1)}, 6, {v(vT1)}")
    A(f"v_lshl_add_u32 {v(vT1)}, {v(vHf)}, 10, {v(vT1)}")
    A(f"v_and_b32 {v(vT0)}, 3, {v(vT0)}")
    A(f"v_lshl_add_u32 {v(vT1)}, {v(vT0)}, 3, {v(vT1)}")
    A(f"v_bfe_u32 {v(vT0)}, {v(vLane)}, 4, 1")
    A(f"v_lshl_add_u32 {v(vT1)}, {v(vT0)}, 5, {v(vT1)}")
    A(f"s_lshl_b32 {s(sw)}, {s(sCh)}, 9")
    A(f"s_add_u32 {s(sw)}, {s(sw)}, {WR}")
    for pos in range(4):
        A(f"s_xor_b32 {s(sT0)}, {s(sW)}, {pos}")
        A(f"s_lshl_b32 {s(sT0)}, {s(sT0)}, 11")
        A(f"s_add_u32 {s(sT0)}, {s(sT0)}, {s(sw)}")
        A(f"v_add_u32 {v(vWA[pos])}, {s(sT0)}, {v(vT1)}")
        A(f"v_add_u32 {v(vWA[4+pos])}, {2*24576}, {v(vWA[pos])}")
    A(f"v_and_b32 {v(vT0)}, 15, {v(vLane)}")
    A(f"v_bfe_u32 {v(vT1)}, {v(vLane)}, 4, 1")
    A(f"v_cmp_eq_u32 vcc, {v(vT0)}, {v(vT1)}")
    A(f"v_mov_b32 {v(vT0)}, 0x3f803f80")
    for i in range(4): A(f"v_cndmask_b32 {v(msk+i)}, 0, {v(vT0)}, vcc")
    A(f"v_mov_b32 {v(vMask)}, 0xffff0000")
    for i in range(8):
        A(f"v_mov_b32 {v(sq+i)}, 0"); A(f"v_mov_b32 {v(sm+i)}, 0")
    def reads1(n):
        slot = (n >> 2) & 3; pos = n & 3; bf = n & 1
        A(f"ds_read_b128 {v(Xf[bf],4)}, {v(vXA[pos])} offset:{XR + slot*8192}")
        wa = vWA[pos + (4 if slot >= 2 else 0)]
        for b in range(3):
            o = (slot & 1) * 24576 + b * 8192
            A(f"ds_read_b64_tr_b16 {v(Wf[bf][b],2)}, {v(wa)} offset:{o}")
            A(f"ds_read_b64_tr_b16 {v(Wf[bf][b]+2,2)}, {v(wa)} offset:{o+256}")
    def compute1(n):
        bf = n & 1; pos = n & 3
        c = lambda b: "0" if n == 0 else v(acc[b], 16)
        cs_ = pos in (0, 2); st_ = pos in (0, 1)
        def mc(b):
            if cs_: A(f"v_mfma_f32_16x16x32_bf16 {v(csa[b],4)}, {v(Wf[bf][b],4)}, {v(msk,4)}, {'0' if n == 0 else v(csa[b],4)}")
        A(f"v_mfma_f32_32x32x16_bf16 {v(acc[0],16)}, {v(Wf[bf][0],4)}, {v(Xf[bf],4)}, {c(0)}")
        if st_:
            for i in range(4):
                A(f"v_lshlrev_b32 {v(un+2*i)}, 16, {v(Xf[bf]+i)}")
                A(f"v_and_b32 {v(un+2*i+1)}, {v(vMask)}, {v(Xf[bf]+i)}")
        mc(0)
        A(f"v_mfma_f32_32x32x16_bf16 {v(acc[1],16)}, {v(Wf[bf][1],4)}, {v(Xf[bf],4)}, {c(1)}")
        if st_:
            for i in range(8): A(f"v_fmac_f32 {v(sq+i)}, {v(un+i)}, {v(un+i)}")
        mc(1)
        A(f"v_mfma_f32_32x32x16_bf16 {v(acc[2],16)}, {v(Xf[bf],4)}, {v(Wf[bf][2],4)}, {c(2)}")
        if st_:
            for i in range(8): A(f"v_add_f32 {v(sm+i)}, {v(un+i)}, {v(sm+i)}")
        mc(2)
    A("s_waitcnt lgkmcnt(0)")
    srd(A, sO, sWs, WS_SIZE)
    sTile, sHp, sQo, sKo, sVo = [S.alloc() for _ in range(5)]
    A(f"s_lshl_b32 {s(sTile)}, {s(sRt1)}, 1")
    A(f"s_add_u32 {s(sTile)}, {s(sTile)}, {s(sTt)}")
    A(f"s_lshl_b32 {s(sHp)}, {s(sHq)}, 1")
    A(f"s_add_u32 {s(sHp)}, {s(sHp)}, {s(sCh)}")
    A(f"s_lshl_b32 {s(sT0)}, {s(sHp)}, 17")
    A(f"s_lshl_b32 {s(sT1)}, {s(sTile)}, 10")
    A(f"s_add_u32 {s(sQo)}, {s(sT0)}, {s(sT1)}")
    A(f"s_add_u32 {s(sKo)}, {s(sQo)}, {WS_KF}")
    A(f"s_add_u32 {s(sVo)}, {s(sQo)}, {WS_VF}")
    A("s_barrier")
    K.stamp()
    reads1(0)
    for n in range(32):
        if n + 1 < 32:
            if (n + 1) % 4 == 0:
                A(f"s_waitcnt lgkmcnt(0)")
                A("s_barrier")
            reads1(n + 1)
            A("s_waitcnt lgkmcnt(7)")
        else:
            A("s_waitcnt lgkmcnt(0)")
        compute1(n)
    K.stamp()
    for L in (sq, sm):
        for st in (4, 2, 1):
            for i in range(st): A(f"v_add_f32 {v(L+i)}, {v(L+i)}, {v(L+i+st)}")
    swap_add(A, sm, vT1)
    swap_add(A, sq, vT2)
    A(f"s_lshl_b32 {s(sT0)}, {s(sW)}, 8")
    A(f"s_add_u32 {s(sT0)}, {s(sT0)}, {ST1}")
    A(f"v_lshl_add_u32 {v(vT0)}, {v(vTok)}, 2, {s(sT0)}")
    A(f"ds_write_b32 {v(vT0)}, {v(sm)}")
    A(f"ds_write_b32 {v(vT0)}, {v(sq)} offset:128")
    A(f"v_and_b32 {v(vT0)}, 15, {v(vLane)}")
    A(f"v_lshrrev_b32 {v(vT1)}, 4, {v(vLane)}")
    A(f"v_lshlrev_b32 {v(vT1)}, 4, {v(vT1)}")
    A(f"v_lshl_add_u32 {v(vT1)}, {v(vT0)}, 6, {v(vT1)}")
    A(f"s_mul_i32 {s(sx)}, {s(sTt)}, 768")
    A(f"s_lshl_b32 {s(sw)}, {s(sCh)}, 7")
    A(f"s_add_u32 {s(sx)}, {s(sx)}, {s(sw)}")
    A(f"s_add_u32 {s(sx)}, {s(sx)}, {CS1}")
    A(f"v_add_u32 {v(vT1)}, {s(sx)}, {v(vT1)}")
    A(f"v_cmp_gt_u32 vcc, 2, {v(vT0)}")
    A(f"s_and_saveexec_b64 {s(sSave,2)}, vcc")
    for b in range(3): A(f"ds_write_b128 {v(vT1)}, {v(csa[b],4)} offset:{b*256}")
    A(f"s_mov_b64 exec, {s(sSave,2)}")
    A("s_waitcnt lgkmcnt(0)")
    A("s_barrier")
    V.release(mk)
    csr = V.alloc(16); csr2 = V.alloc(16); st1 = V.alloc(16); st2 = V.alloc(16)
    vCv, vMean, vRstd, vRq = [V.alloc() for _ in range(4)]
    A(f"s_lshl_b32 {s(sx)}, {s(sTt)}, 8")
    A(f"s_add_u32 {s(sx)}, {s(sx)}, {ST1}")
    A(f"v_lshl_add_u32 {v(vT1)}, {v(vTok)}, 2, {s(sx)}")
    p4 = V.alloc(4)
    A(f"ds_read_b32 {v(p4)}, {v(vT1)}")
    A(f"ds_read_b32 {v(p4+1)}, {v(vT1)} offset:512")
    A(f"ds_read_b32 {v(p4+2)}, {v(vT1)} offset:128")
    A(f"ds_read_b32 {v(p4+3)}, {v(vT1)} offset:640")
    A(f"s_lshl_b32 {s(sw)}, {s(sCh)}, 7")
    A(f"s_add_u32 {s(sw)}, {s(sw)}, {CS1}")
    A(f"v_lshl_add_u32 {v(vT0)}, {v(vHf)}, 4, {s(sw)}")
    for a_ in range(4): A(f"ds_read_b128 {v(csr+4*a_,4)}, {v(vT0)} offset:{a_*32}")
    for a_ in range(4): A(f"ds_read_b128 {v(st1+4*a_,4)}, {v(vT0)} offset:{768+a_*32}")
    A("s_waitcnt lgkmcnt(4)")
    for a_ in range(4): A(f"ds_read_b128 {v(csr2+4*a_,4)}, {v(vT0)} offset:{256+a_*32}")
    for a_ in range(4): A(f"ds_read_b128 {v(st2+4*a_,4)}, {v(vT0)} offset:{768+256+a_*32}")
    A(f"v_lshl_add_u32 {v(vT1)}, {v(vTok)}, 2, {s(sw)}")
    vCv2 = V.alloc()
    A(f"ds_read_b32 {v(vCv)}, {v(vT1)} offset:512")
    A(f"ds_read_b32 {v(vCv2)}, {v(vT1)} offset:{768+512}")
    A("s_waitcnt lgkmcnt(10)")
    for r in range(16): A(f"v_add_f32 {v(csr+r)}, {v(csr+r)}, {v(st1+r)}")
    A("s_waitcnt lgkmcnt(0)")
    for r in range(16): A(f"v_add_f32 {v(csr2+r)}, {v(csr2+r)}, {v(st2+r)}")
    A(f"v_add_f32 {v(vCv)}, {v(vCv)}, {v(vCv2)}")
    pk = V.alloc(8); pk2 = V.alloc(8); pk3 = pk
    vMr = p4 + 1
    A(f"v_add_f32 {v(p4)}, {v(p4)}, {v(p4+1)}")
    A(f"v_add_f32 {v(p4+2)}, {v(p4+2)}, {v(p4+3)}")
    A(f"v_mul_f32 {v(vMean)}, {f2u(1/512.):#x}, {v(p4)}")
    A(f"v_mul_f32 {v(vT1)}, {v(vMean)}, {v(vMean)}")
    A(f"v_mov_b32 {v(vT2)}, {f2u(1/512.):#x}")
    A(f"v_fma_f32 {v(vT1)}, {v(p4+2)}, {v(vT2)}, -{v(vT1)}")
    A(f"v_max_f32 {v(vT1)}, 0, {v(vT1)}")
    A(f"v_add_f32 {v(vT1)}, {f2u(1e-5):#x}, {v(vT1)}")
    A(f"v_rsq_f32 {v(vRstd)}, {v(vT1)}")
    A(f"v_mul_f32 {v(vMr)}, {v(vMean)}, {v(vRstd)}")
    A(f"s_lshl_b32 {s(sx)}, {s(sW)}, 8")
    A(f"s_add_u32 {s(sx)}, {s(sx)}, {ST1 + 1024}")
    A(f"v_lshl_add_u32 {v(vT1)}, {v(vTok)}, 2, {s(sx)}")
    A(f"ds_write_b32 {v(vT1)}, {v(vMr)}")
    A(f"ds_write_b32 {v(vT1)}, {v(vRstd)} offset:128")
    A(f"v_lshl_add_u32 {v(vT0)}, {v(vHf)}, 4, {s(sx)}")
    A(f"v_mul_f32 {v(vRq)}, {f2u(LOG2E*0.25):#x}, {v(vRstd)}")
    A("s_waitcnt lgkmcnt(0)")
    for a_ in range(4): A(f"ds_read_b128 {v(st1+4*a_,4)}, {v(vT0)} offset:{a_*32}")
    for a_ in range(4): A(f"ds_read_b128 {v(st2+4*a_,4)}, {v(vT0)} offset:{128+a_*32}")
    for r in range(16): A(f"v_fma_f32 {v(acc[1]+r)}, -{v(vMean)}, {v(csr2+r)}, {v(acc[1]+r)}")
    for r in range(16): A(f"v_mul_f32 {v(acc[1]+r)}, {v(vRstd)}, {v(acc[1]+r)}")
    for i in range(8): A(f"v_cvt_pk_bf16_f32 {v(pk2+i)}, {v(acc[1]+2*i)}, {v(acc[1]+2*i+1)}")
    A(f"buffer_store_dwordx4 {v(pk2,4)}, {v(vL16)}, {s(sO,4)}, {s(sKo)} offen" + K1SC)
    A(f"s_add_u32 {s(sT0)}, {s(sKo)}, 65536")
    A(f"buffer_store_dwordx4 {v(pk2+4,4)}, {v(vL16)}, {s(sO,4)}, {s(sT0)} offen" + K1SC)
    for r in range(16): A(f"v_fma_f32 {v(acc[0]+r)}, -{v(vMean)}, {v(csr+r)}, {v(acc[0]+r)}")
    for r in range(16): A(f"v_mul_f32 {v(acc[0]+r)}, {v(vRq)}, {v(acc[0]+r)}")
    for i in range(8): A(f"v_cvt_pk_bf16_f32 {v(pk+i)}, {v(acc[0]+2*i)}, {v(acc[0]+2*i+1)}")
    A(f"buffer_store_dwordx4 {v(pk,4)}, {v(vL16)}, {s(sO,4)}, {s(sQo)} offen" + K1SC)
    A(f"s_add_u32 {s(sT0)}, {s(sQo)}, 65536")
    A(f"buffer_store_dwordx4 {v(pk+4,4)}, {v(vL16)}, {s(sO,4)}, {s(sT0)} offen" + K1SC)
    A("s_waitcnt lgkmcnt(0)")
    for r in range(16): A(f"v_mul_f32 {v(st1+r)}, {v(vCv)}, {v(st1+r)}")
    for r in range(16): A(f"v_fma_f32 {v(acc[2]+r)}, {v(acc[2]+r)}, {v(st2+r)}, -{v(st1+r)}")
    pk3 = csr
    for i in range(8): A(f"v_cvt_pk_bf16_f32 {v(pk3+i)}, {v(acc[2]+2*i)}, {v(acc[2]+2*i+1)}")
    A(f"v_lshrrev_b32 {v(vT0)}, 4, {v(vTok)}")
    A(f"v_lshlrev_b32 {v(vT0)}, 16, {v(vT0)}")
    A(f"v_lshl_add_u32 {v(vT0)}, {v(vHf)}, 8, {v(vT0)}")
    A(f"v_and_b32 {v(vT1)}, 15, {v(vTok)}")
    A(f"v_lshl_add_u32 {v(vT0)}, {v(vT1)}, 4, {v(vT0)}")
    A(f"buffer_store_dwordx4 {v(pk3,4)}, {v(vT0)}, {s(sO,4)}, {s(sVo)} offen" + K1SC)
    A(f"buffer_store_dwordx4 {v(pk3+4,4)}, {v(vT0)}, {s(sO,4)}, {s(sVo)} offen offset:512" + K1SC)
    vN = [V.alloc(), V.alloc()]
    for e in range(2):
        for i in range(4):
            A(f"v_lshlrev_b32 {v(csr2+2*i)}, 16, {v(pk2+4*e+i)}")
            A(f"v_and_b32 {v(csr2+2*i+1)}, 0xffff0000, {v(pk2+4*e+i)}")
        A(f"v_mul_f32 {v(vN[e])}, {v(csr2)}, {v(csr2)}")
        for i in range(1, 8): A(f"v_fmac_f32 {v(vN[e])}, {v(csr2+i)}, {v(csr2+i)}")
    swap_add(A, vN[0], vT2)
    swap_add(A, vN[1], vT1)
    for sh in (8, 4, 2, 1):
        for e in range(2):
            A(f"v_max_f32_dpp {v(vN[e])}, {v(vN[e])}, {v(vN[e])} row_ror:{sh} row_mask:0xf bank_mask:0xf")
    sN = [S.alloc() for _ in range(4)]
    for e in range(2):
        A(f"v_readlane_b32 {s(sN[2*e])}, {v(vN[e])}, 0")
        A(f"v_readlane_b32 {s(sN[2*e+1])}, {v(vN[e])}, 16")
    for e in range(2): A(f"s_max_u32 {s(sN[2*e])}, {s(sN[2*e])}, {s(sN[2*e+1])}")
    A(f"s_lshl_b32 {s(sT0)}, {s(sHp)}, 9")
    A(f"s_lshl_b32 {s(sT1)}, {s(sTile)}, 2")
    A(f"s_add_u32 {s(sT0)}, {s(sT0)}, {s(sT1)}")
    A(f"s_add_u32 {s(sT0)}, {s(sT0)}, {WS_KMAX}")
    A(f"v_mov_b32 {v(vN[0])}, {s(sN[0])}")
    A(f"v_mov_b32 {v(vN[1])}, {s(sN[2])}")
    A(f"v_mov_b32 {v(vT1)}, 0")
    A("s_mov_b64 exec, 1")
    A(f"buffer_store_dword {v(vN[0])}, {v(vT1)}, {s(sO,4)}, {s(sT0)} offen" + K1SC)
    A(f"buffer_store_dword {v(vN[1])}, {v(vT1)}, {s(sO,4)}, {s(sT0)} offen offset:256" + K1SC)
    A("s_mov_b64 exec, -1")
    K.stamp_out(sO, 0, vT0, vT1)
    K.rt_end(sO, 0, vT0, vT1)
    A.label(END)
    A("s_endpgm")
    print("k1b vgprs", V.hi, "sgprs", S.hi, "lds", K.lds)
    return K

def k1_hook(ev, K, L):
    A, V, S = K.A, K.V, K.S
    vT0, vT1, vLane, sW8, sWs = L["vT0"], L["vT1"], L["vLane"], L["sW8"], L["sWs"]
    H = K.__dict__.setdefault("_h", {})
    if ev == "start":
        H["R0"] = V.alloc(32); H["AC"] = V.alloc(8); H["UN"] = V.alloc(8); H["vo"] = V.alloc()
        H["srd"] = S.alloc(4); H["t"] = [S.alloc() for _ in range(4)]; H["p"] = S.alloc(2); H["flag"] = S.alloc()
        R0, vo, srd_, t, p, flag = H["R0"], H["vo"], H["srd"], H["t"], H["p"], H["flag"]
        if "cpf1" in G.FLAGS:
            A(f"s_cmp_lg_u32 {s(sW8)}, 9")
            A(f"s_cbranch_scc1 K1_NOCPF")
            if CPF1_WG:
                A(f"s_cmp_ge_u32 s2, {CPF1_WG}")
                A(f"s_cbranch_scc1 K1_NOCPF")
            A(f"s_getpc_b64 {s(p,2)}")
            A.label("K1_PCREF")
            A(f"s_sub_u32 {s(p)}, {s(p)}, K1_PCREF-k1_qkv_kernel")
            A(f"s_subb_u32 {s(p+1)}, {s(p+1)}, 0")
            A(f"v_lshlrev_b32 {v(vo)}, 4, {v(vLane)}")
            for i in range(CPF1_KB):
                A(f"global_load_dwordx4 {v(R0+4*(i%8),4)}, {v(vo)}, {s(p,2)} offset:{(i&3)*1024}")
                if i % 4 == 3: A(f"v_add_u32 {v(vo)}, 4096, {v(vo)}")
            A.label("K1_NOCPF")
        A(f"s_mov_b32 {s(flag)}, 0")
        A(f"s_cmp_lg_u32 {s(sW8)}, 8")
        A(f"s_cbranch_scc1 K1_NOCS0")
        A("s_waitcnt lgkmcnt(0)")
        A(f"s_cmp_ge_u32 s2, 48")
        A(f"s_cbranch_scc1 K1_NOZ")
        srd(A, srd_, sWs, WS_SIZE)
        A(f"s_lshl_b32 {s(t[0])}, s2, 8")
        A(f"s_add_u32 {s(t[0])}, {s(t[0])}, {WS_CNT}")
        A(f"v_mov_b32 {v(vT0)}, 0")
        A(f"v_lshlrev_b32 {v(vT1)}, 2, {v(vLane)}")
        A(f"s_mov_b32 exec_hi, 0")
        A(f"buffer_store_dword {v(vT0)}, {v(vT1)}, {s(srd_,4)}, {s(t[0])} offen")
        A(f"s_mov_b64 exec, -1")
        A.label("K1_NOZ")
        A(f"s_cmp_ge_u32 s2, 224")
        A(f"s_cbranch_scc1 K1_NOCS0")
        A(f"s_mov_b32 {s(flag)}, 1")
        A(f"s_load_dwordx2 {s(p,2)}, s[0:1], 32")
        A(f"s_mul_i32 {s(t[0])}, s2, 2341")
        A(f"s_lshr_b32 {s(t[0])}, {s(t[0])}, 16")
        A(f"s_mul_i32 {s(t[1])}, {s(t[0])}, 28")
        A(f"s_sub_u32 {s(t[1])}, s2, {s(t[1])}")
        A(f"v_lshrrev_b32 {v(vo)}, 3, {v(vLane)}")
        A(f"v_mul_u32_u24 {v(vo)}, 3584, {v(vo)}")
        A(f"v_and_b32 {v(vT0)}, 7, {v(vLane)}")
        A(f"v_lshl_add_u32 {v(vo)}, {v(vT0)}, 4, {v(vo)}")
        A(f"s_mul_i32 {s(t[2])}, {s(t[0])}, {64*3584}")
        A(f"s_lshl_b32 {s(t[3])}, {s(t[1])}, 7")
        A(f"s_add_u32 {s(t[2])}, {s(t[2])}, {s(t[3])}")
        A("s_waitcnt lgkmcnt(0)")
        srd(A, srd_, p, 512 * 1792 * 2)
        for n in range(8):
            A(f"buffer_load_dwordx4 {v(R0+4*n,4)}, {v(vo)}, {s(srd_,4)}, {s(t[2])} offen")
            A(f"s_add_u32 {s(t[2])}, {s(t[2])}, {8*3584}")
        A.label("K1_NOCS0")
        for i in range(8): A(f"v_mov_b32 {v(H['AC']+i)}, 0")
    elif ev == "end":
        R0, AC, UN, srd_, t, flag = H["R0"], H["AC"], H["UN"], H["srd"], H["t"], H["flag"]
        A(f"s_cmp_eq_u32 {s(flag)}, 0")
        A(f"s_cbranch_scc1 K1_NOCS1")
        A("s_waitcnt vmcnt(0)")
        for n in range(8):
            for i in range(4):
                A(f"v_lshlrev_b32 {v(UN+2*i)}, 16, {v(R0+4*n+i)}")
                A(f"v_and_b32 {v(UN+2*i+1)}, 0xffff0000, {v(R0+4*n+i)}")
            for i in range(8): A(f"v_add_f32 {v(AC+i)}, {v(AC+i)}, {v(UN+i)}")
        for i in range(8): A(f"v_add_f32_dpp {v(AC+i)}, {v(AC+i)}, {v(AC+i)} row_ror:8 row_mask:0xf bank_mask:0xf")
        for sw in ("v_permlane16_swap_b32", "v_permlane32_swap_b32"):
            for i in range(8): A(f"v_mov_b32 {v(UN+i)}, {v(AC+i)}")
            for i in range(8): A(f"{sw} {v(AC+i)}, {v(UN+i)}")
            for i in range(8): A(f"v_add_f32 {v(AC+i)}, {v(AC+i)}, {v(UN+i)}")
        srd(A, srd_, sWs, WS_SIZE)
        A(f"s_mul_i32 {s(t[2])}, {s(t[0])}, 7168")
        A(f"s_lshl_b32 {s(t[3])}, {s(t[1])}, 8")
        A(f"s_add_u32 {s(t[2])}, {s(t[2])}, {s(t[3])}")
        A(f"s_add_u32 {s(t[2])}, {s(t[2])}, {WS_CSG}")
        A(f"v_and_b32 {v(vT0)}, 7, {v(vLane)}")
        A(f"v_lshlrev_b32 {v(vT0)}, 5, {v(vT0)}")
        A(f"s_mov_b64 exec, 0xff")
        A(f"buffer_store_dwordx4 {v(AC,4)}, {v(vT0)}, {s(srd_,4)}, {s(t[2])} offen")
        A(f"buffer_store_dwordx4 {v(AC+4,4)}, {v(vT0)}, {s(srd_,4)}, {s(t[2])} offen offset:16")
        A.label("K1_NOCS1")

def k1z():
    G.HOOK = k1_hook
    return G.k1()

if __name__ == "__main__":
    if "stamp" in sys.argv: G.STAMP = True
    if "rt" in sys.argv: G.RT = True
    G.FLAGS = set(sys.argv[2:])
    for a_ in sys.argv[2:]:
        if a_.startswith("prioit="): PRIO_IT = int(a_.split("=")[1])
        if a_.startswith("npoll="): NPOLL = int(a_.split("=")[1])
        if a_.startswith("win5="): WIN5 = int(a_.split("=")[1])
        if a_.startswith("cpfkb="): CPF1_KB = int(a_.split("=")[1])
        if a_.startswith("cpfwg="): CPF1_WG = int(a_.split("=")[1])
        if a_.startswith("psleep="): PSLEEP = int(a_.split("=")[1])
    ks = [k1b() if 'k1b' in G.FLAGS else k1z(), km(1 if 'q1' in G.FLAGS else 2, prio=('noprio' not in G.FLAGS))]
    build(ks, sys.argv[1] if len(sys.argv) > 1 else "out.s")
```
